```python
import torch

def _softmax(x, axis=-1):
    return torch.softmax(x, dim=axis)
def _gelu(x):
    return torch.nn.functional.gelu(x, approximate="tanh")
def _silu(x):
    return torch.nn.functional.silu(x)
def _sigmoid(x):
    return torch.sigmoid(x)
def _layernorm(x, axis=-1, eps=1e-5):
    m = x.mean(dim=axis, keepdim=True)
    v = x.var(dim=axis, keepdim=True, unbiased=False)
    return (x - m) / torch.sqrt(v + eps)
def _scatter_add(tgt, idx, src, axis=0):
    return tgt.clone().index_add_(axis, idx, src)
def _segment_sum(src, seg, n):
    out = torch.zeros((n,) + src.shape[1:], dtype=src.dtype)
    return out.index_add_(0, seg, src)
def _pad(x, pw):
    flat = tuple(v for pair in reversed(pw) for v in pair)
    return torch.nn.functional.pad(x, flat)

kernel_name = 'sequential_preLN__sliding_local_dilated__glu_gated_glu__prompt'

def setup_inputs():

    _w = (lambda a: (lambda t: t.to(torch.bfloat16) if t.is_floating_point() else t)(torch.as_tensor(a)))
    def _A_setup():
        B, S, D = 1, 2048, 448
        return {
            "x": _w((lambda *s: torch.randn(*s, dtype=torch.bfloat16) * 0.05)(B, S, D)),
            "wqkv": _w((lambda *s: torch.randn(*s, dtype=torch.bfloat16) * 0.05)(D, 3 * D)),
            "wo": _w((lambda *s: torch.randn(*s, dtype=torch.bfloat16) * 0.05)(D, D)),
        }
    _A_in = _A_setup()

    def _B_setup():
        B, S, D, F = 1, 2048, 448, 1792
        return {
            "x": _w((lambda *s: torch.randn(*s, dtype=torch.bfloat16) * 0.05)(B, S, D)),
            "w_gate": _w((lambda *s: torch.randn(*s, dtype=torch.bfloat16) * 0.05)(D, F)),
            "w_up": _w((lambda *s: torch.randn(*s, dtype=torch.bfloat16) * 0.05)(D, F)),
            "w_down": _w((lambda *s: torch.randn(*s, dtype=torch.bfloat16) * 0.05)(F, D)),
        }
    _B_in = _B_setup()

    return {
        "A_x": _A_in["x"],
        "A_wqkv": _A_in["wqkv"],
        "A_wo": _A_in["wo"],
        "B_x": _B_in["x"],
        "B_w_gate": _B_in["w_gate"],
        "B_w_up": _B_in["w_up"],
        "B_w_down": _B_in["w_down"],
    }

def reference(A_x, A_wqkv, A_wo, B_x, B_w_gate, B_w_up, B_w_down):
    def _A_ref(x, wqkv, wo):
        B, S, D = x.shape
        H = 16; Dh = D // H
        W, dil = 8, 2
        qkv = (lambda x, *d: x.permute(*d))((x @ wqkv).reshape(B, S, 3, H, Dh), 2, 0, 3, 1, 4)
        q, k, v = qkv[0], qkv[1], qkv[2]
        scale = Dh ** -0.5
        pos = torch.arange(S)
        off = torch.arange(W) * dil
        idx = pos[:, None] - off[None, :]
        mask = idx >= 0
        idx_c = torch.where(mask, idx, 0).reshape(-1)
        kg = k[:, :, idx_c, :].reshape(B, H, S, W, Dh)
        vg = v[:, :, idx_c, :].reshape(B, H, S, W, Dh)
        logits = torch.einsum("bhsd,bhswd->bhsw", q, kg) * scale
        logits = torch.where(mask[None, None, :, :], logits, -1e9)
        attn = _softmax(logits, axis=-1)
        o = torch.einsum("bhsw,bhswd->bhsd", attn, vg)
        return (lambda x, *d: x.permute(*d))(o, 0, 2, 1, 3).reshape(B, S, D) @ wo

    def _B_ref(x, w_gate, w_up, w_down):
        g = torch.einsum("bsd,df->bsf", x, w_gate)
        u = torch.einsum("bsd,df->bsf", x, w_up)
        h = _sigmoid(g) * u
        return torch.einsum("bsf,fd->bsd", h, w_down)

    x = A_x
    h = x + _A_ref(_layernorm(x, axis=-1), A_wqkv, A_wo)
    h2 = h + _B_ref(_layernorm(h, axis=-1), B_w_gate, B_w_up, B_w_down)
    return h2
```

```python
import re

REG_RE = re.compile(r"\b([vsa])(\d+)\b|\b([vsa])\[(\d+):(\d+)\]|\b(vcc|exec|m0|scc)\b")

TRANS = ("v_exp_f32", "v_log_f32", "v_rcp_f32", "v_rsq_f32", "v_sqrt_f32", "v_sin_f32", "v_cos_f32")


def regs_of(op):
    out = []
    for m in REG_RE.finditer(op):
        if m.group(1):
            out.append(m.group(1) + m.group(2))
        elif m.group(3):
            for i in range(int(m.group(4)), int(m.group(5)) + 1):
                out.append(m.group(3) + str(i))
        else:
            out.append(m.group(6))
    return out


def split_ops(s):
    ops, depth, cur = [], 0, ""
    for ch in s:
        if ch == "[":
            depth += 1
        if ch == "]":
            depth -= 1
        if ch == "," and depth == 0:
            ops.append(cur.strip())
            cur = ""
        else:
            cur += ch
    if cur.strip():
        ops.append(cur.strip())
    return ops


class Ins:
    __slots__ = ("text", "mn", "kind", "w", "r", "srcc", "ab", "passes", "ws", "wide_store", "dpp")

    def __init__(self, text):
        self.text = text
        t = text.split(";")[0].strip()
        parts = t.split(None, 1)
        mn = parts[0]
        self.mn = mn
        rest = parts[1] if len(parts) > 1 else ""
        ops = split_ops(rest)
        self.w, self.r, self.srcc, self.ab = [], [], [], []
        self.passes = 0
        self.ws = 1
        self.wide_store = False
        self.dpp = ("_dpp" in mn) or ("row_" in rest) or ("quad_perm" in rest)
        allr = lambda lst: [x for o in lst for x in regs_of(o)]
        if mn.startswith("v_mfma"):
            self.kind = "mfma"
            self.w = regs_of(ops[0])
            self.ab = allr(ops[1:3])
            self.srcc = regs_of(ops[3])
            self.r = self.ab + self.srcc
            self.passes = 8 if "32x32" in mn else 4
        elif mn.startswith("v_"):
            self.kind = "valu"
            if mn in TRANS:
                self.kind = "trans"
            if mn.startswith("v_dot2"):
                self.kind = "dot"
            if mn.startswith("v_permlane"):
                self.kind = "permlane"
                self.w = allr(ops)
                self.r = allr(ops)
            elif mn.startswith("v_cmp"):
                self.w = regs_of(ops[0])
                self.r = allr(ops[1:])
            elif mn.startswith("v_readfirstlane") or mn.startswith("v_readlane"):
                self.kind = "readlane"
                self.w = regs_of(ops[0])
                self.r = allr(ops[1:])
            elif mn.startswith("v_add_co") or mn.startswith("v_addc_co"):
                self.w = allr(ops[:2])
                self.r = allr(ops[2:])
            else:
                self.w = regs_of(ops[0])
                self.r = allr(ops[1:])
                if mn.startswith("v_fmac") or mn.startswith("v_dot2c") or self.dpp:
                    self.r = self.r + self.w
        elif mn.startswith("buffer_") or mn.startswith("global_"):
            self.kind = "vmem"
            if "store" in mn or "atomic" in mn:
                self.r = allr(ops)
                self.wide_store = mn.endswith("x4") or mn.endswith("x3")
                if self.wide_store:
                    self.srcc = regs_of(ops[0] if mn.startswith("buffer_") else ops[1])
            elif re.search(r"\blds\b", rest) or "load_lds" in mn:
                self.r = allr(ops) + ["m0"]
                self.kind = "dma"
            else:
                self.w = regs_of(ops[0])
                self.r = allr(ops[1:])
        elif mn.startswith("ds_"):
            self.kind = "ds"
            if mn.startswith("ds_read") or "rtn" in mn or mn.startswith("ds_bpermute") or mn.startswith("ds_swizzle"):
                self.w = regs_of(ops[0])
                self.r = allr(ops[1:])
            else:
                self.r = allr(ops)
        elif mn.startswith("s_"):
            self.kind = "salu"
            if mn == "s_nop":
                self.ws = int(ops[0]) + 1
            elif mn.startswith("s_cmp") or mn.startswith("s_bitcmp"):
                self.r = allr(ops)
                self.w = ["scc"]
            elif mn.startswith(("s_waitcnt", "s_barrier", "s_branch", "s_cbranch", "s_endpgm", "s_sleep", "s_setprio")):
                self.r = []
            elif mn.startswith("s_load") or mn.startswith("s_mem"):
                self.kind = "smem"
                self.w = regs_of(ops[0])
                self.r = allr(ops[1:])
            else:
                self.w = regs_of(ops[0])
                self.r = allr(ops[1:])
                if "saveexec" in mn:
                    self.w = self.w + ["exec"]
        else:
            raise ValueError("unknown instruction: " + text)


VALUK = ("valu", "trans", "dot", "permlane", "readlane")


def need_ws(p, c):
    n = 0
    pw, cw, cr = set(p.w), set(c.w), set(c.r)
    if p.kind in VALUK:
        vw = {x for x in pw if x[0] in "va" and x not in ("vcc",)}
        sw = pw - vw
        if c.kind == "mfma" and vw & cr:
            n = max(n, 2)
        if c.kind == "permlane" and vw & cr:
            n = max(n, 2)
        if c.kind in VALUK and c.dpp and vw & cr:
            n = max(n, 2)
        if c.kind == "readlane" and vw & cr:
            n = max(n, 1)
        if p.kind == "trans" and c.kind != "trans" and vw & cr:
            n = max(n, 1)
        if p.kind == "trans" and c.kind == "trans" and vw & cr:
            n = max(n, 1)
        if p.kind == "dot" and vw & (cr | cw):
            if not (c.kind == "dot" and c.mn == p.mn and not (vw & set(c.r[:2]))):
                n = max(n, 3)
        if sw:
            if c.kind in ("vmem", "dma") and sw & cr:
                n = max(n, 5)
            if c.kind in VALUK and sw & cr:
                n = max(n, 4 if c.kind == "readlane" else 2)
            if c.kind in ("salu", "smem") and sw & cr:
                n = max(n, 2)
    if p.kind == "mfma":
        big = p.passes == 8
        if c.kind == "mfma":
            if pw & set(c.ab):
                n = max(n, 12 if big else 8)
            if pw & set(c.srcc):
                if not (list(p.w) == list(c.srcc) and p.passes == c.passes):
                    n = max(n, 10 if big else 6)
            elif pw & cw:
                n = max(n, 10 if big else 6)
        elif c.kind in VALUK or c.kind in ("vmem", "dma", "ds"):
            if pw & (cr | cw):
                n = max(n, 12 if big else 8)
            if c.kind in VALUK and set(p.srcc) & cw:
                n = max(n, 7 if big else 3)
    if p.kind == "salu" and "m0" in pw and c.kind == "dma":
        n = max(n, 1)
    if p.wide_store and set(p.srcc) & cw:
        n = max(n, 2)
    return n


class Asm:
    def __init__(self):
        self.items = []
        self.uid = 0
        self.lg = []
        self.vm = []

    def _wait(self, vm=None, lg=None):
        parts = []
        if vm is not None:
            vm = min(vm, 63)
            parts.append("vmcnt(%d)" % vm)
            if len(self.vm) > vm:
                self.vm = self.vm[len(self.vm) - vm:] if vm else []
        if lg is not None:
            lg = min(lg, 15)
            parts.append("lgkmcnt(%d)" % lg)
            if len(self.lg) > lg:
                self.lg = self.lg[len(self.lg) - lg:] if lg else []
        self.items.append(("i", Ins("s_waitcnt " + " ".join(parts))))

    @staticmethod
    def _after(q, pred):
        for i in range(len(q) - 1, -1, -1):
            if pred(q[i]):
                return len(q) - 1 - i
        return None

    def wait_tag(self, tag, lg0=False):
        n = self._after(self.vm, lambda e: e[1] == tag)
        l = 0 if (lg0 and self.lg) else None
        if n is not None or l is not None:
            self._wait(vm=n, lg=l)

    def wait_all(self, vm=True, lg=True):
        v = 0 if (vm and self.vm) else None
        l = 0 if (lg and self.lg) else None
        if v is not None or l is not None:
            self._wait(vm=v, lg=l)

    def __call__(self, text, tag=None):
        for line in text.split("\n"):
            line = line.strip()
            if not line:
                continue
            if line.startswith(";") or line.startswith(".") or line.endswith(":"):
                self.items.append(("l", line))
                continue
            ins = Ins(line)
            if ins.mn == "s_waitcnt":
                m = re.search(r"vmcnt\((\d+)\)", line)
                if m:
                    n = int(m.group(1))
                    if len(self.vm) > n:
                        self.vm = self.vm[len(self.vm) - n:] if n else []
                m = re.search(r"lgkmcnt\((\d+)\)", line)
                if m:
                    n = int(m.group(1))
                    if len(self.lg) > n:
                        self.lg = self.lg[len(self.lg) - n:] if n else []
                self.items.append(("i", ins))
                continue
            touched = set(ins.r) | set(ins.w)
            nv = self._after(self.vm, lambda e: e[0] & touched)
            nl = self._after(self.lg, lambda e: e[0] & touched)
            if ins.kind == "ds" and nl is not None and not (set().union(*[e[0] for e in self.lg]) & set(ins.r)):
                nl = None
            if nv is not None or nl is not None:
                self._wait(vm=nv, lg=nl)
            self.items.append(("i", ins))
            if ins.kind == "ds":
                self.lg.append((set(ins.w), tag))
            elif ins.kind in ("vmem", "dma"):
                self.vm.append((set(ins.w), tag))

    def label(self, base):
        self.uid += 1
        return "L%s_%d" % (base, self.uid)

    def render(self):
        out = []
        hist = []
        for k, it in self.items:
            if k == "l":
                out.append(it if (it.endswith(":") or it.startswith(".")) else "  " + it)
                continue
            dist = 0
            pad = 0
            for p in reversed(hist):
                n = need_ws(p, it)
                if n > dist:
                    pad = max(pad, n - dist)
                dist += p.ws
                if dist >= 12:
                    break
            while pad > 0:
                k2 = min(pad, 16)
                nop = Ins("s_nop %d" % (k2 - 1))
                out.append("  " + nop.text)
                hist.append(nop)
                pad -= k2
            out.append("  " + it.text)
            hist.append(it)
            if len(hist) > 16:
                hist = hist[-16:]
        return "\n".join(out) + "\n"
```

```python
import sys, math, struct
sys.path.insert(0, "dev")
from asmlib import Asm

NAME = "sequential_preLN__sliding_local_dilated__glu_gated_glu__prompt"

WS_O = 0
WS_H = 2 << 20
WS_ST = 4 << 20
WS_HH = 8 << 20
WS_FL = 16 << 20
WS_SIZE = 32 << 20

SX, SWQKV, SWO, SWG, SWU, SWD, SOUT, SWS, SDBG = [("s[%d:%d]" % (b, b + 3)) for b in range(8, 44, 4)]
sW, sXC, sJ, sNONCE = "s44", "s45", "s46", "s47"

vLANE, vG, vC, vR, vQ = "v1", "v2", "v3", "v4", "v5"

LOG2E = 1.4426950408889634


def f2u(x):
    return struct.unpack("<I", struct.pack("<f", x))[0]


def vr(b, n=4):
    return "v[%d:%d]" % (b, b + n - 1)


def prologue(a, nwg):
    a("s_load_dwordx16 s[64:79], s[0:1], 0")
    a("s_load_dwordx4 s[80:83], s[0:1], 64")
    a("s_cmp_ge_u32 s2, %d" % nwg)
    a("s_cbranch_scc1 Lend")
    a("v_and_b32 v1, 63, v0")
    a("v_lshrrev_b32 v6, 6, v0")
    a("v_lshrrev_b32 v2, 4, v1")
    a("v_readfirstlane_b32 %s, v6" % sW)
    a("v_and_b32 v3, 15, v0")
    a("v_bfe_u32 v4, v0, 2, 2")
    a("v_and_b32 v5, 3, v0")
    a("s_and_b32 %s, s2, 7" % sXC)
    a("s_lshr_b32 %s, s2, 3" % sJ)
    sizes = {8: 2048 * 896, 12: 448 * 2688, 16: 448 * 896, 20: 448 * 3584, 24: 448 * 3584,
             28: 1792 * 896, 32: 2048 * 896, 36: WS_SIZE, 40: 256}
    for b, sz in sizes.items():
        a("s_mov_b32 s%d, %d" % (b + 2, sz))
        a("s_mov_b32 s%d, 0x00020000" % (b + 3))
    a("s_waitcnt lgkmcnt(0)")
    src = {8: 64, 12: 66, 16: 68, 20: 72, 24: 74, 28: 76, 32: 78, 36: 82, 40: 80}
    for b, s in src.items():
        a("s_mov_b64 s[%d:%d], s[%d:%d]" % (b, b + 1, s, s + 1))


def xg_reduce(a, op, x, t):
    a("v_mov_b32 %s, %s" % (t, x))
    a("v_permlane32_swap_b32 %s, %s" % (t, x))
    a("%s %s, %s, %s" % (op, x, x, t))
    a("v_mov_b32 %s, %s" % (t, x))
    a("v_permlane16_swap_b32 %s, %s" % (t, x))
    a("%s %s, %s, %s" % (op, x, x, t))


def xg_reduce_multi(a, op, xs, ts):
    for step in ("v_permlane32_swap_b32", "v_permlane16_swap_b32"):
        for x, t in zip(xs, ts):
            a("v_mov_b32 %s, %s" % (t, x))
        for x, t in zip(xs, ts):
            a("%s %s, %s" % (step, t, x))
        for x, t in zip(xs, ts):
            a("%s %s, %s, %s" % (op, x, x, t))


A_SLOT = 34816
A_XOFF = 24576
A_EX = 4 * A_SLOT
A_CS = A_EX + 20480


def phase_A(a, sc):
    sTB, sHP, sT0, sTI, sHD = "s48", "s49", "s50", "s51", "s52"
    sW1024, sW256, sT, sT2 = "s53", "s54", "s55", "s56"
    sHM = "s[58:59]"
    a("; ---------------- phase A ----------------")
    a("s_lshl_b32 %s, %s, 2" % (sTB, sXC))
    a("s_lshr_b32 %s, %s, 3" % (sT, sJ))
    a("s_add_u32 %s, %s, %s" % (sTB, sTB, sT))
    a("s_and_b32 %s, %s, 7" % (sHP, sJ))
    a("s_lshl_b32 %s, %s, 6" % (sT0, sTB))
    a("s_and_b32 %s, %s, 3" % (sTI, sW))
    a("s_lshr_b32 %s, %s, 2" % (sHD, sW))
    a("s_lshl_b32 %s, %s, 10" % (sW1024, sW))
    a("s_lshl_b32 %s, %s, 8" % (sW256, sW))
    vAX, vAH, vAW = "v16", "v17", "v18"
    a("v_lshrrev_b32 v6, 3, v1")
    a("v_and_b32 v7, 7, v1")
    a("s_and_b32 %s, %s, 1" % (sT, sW))
    a("s_lshl_b32 %s, %s, 2" % (sT, sT))
    a("v_and_b32 v8, 2, v6")
    a("v_or_b32 v8, %s, v8" % sT)
    a("v_xor_b32 v8, v8, v7")
    a("v_min_u32 v8, 6, v8")
    a("s_lshl_b32 %s, %s, 3" % (sT, sW))
    a("v_add_u32 v9, %s, v6" % sT)
    a("v_mul_u32_u24 v9, 2688, v9")
    a("s_mul_i32 %s, %s, 112" % (sT, sHP))
    a("v_lshl_add_u32 v9, v8, 4, v9")
    a("v_add_u32 %s, %s, v9" % (vAW, sT))
    a("s_lshl_b32 %s, %s, 5" % (sT, sHD))
    a("s_add_u32 %s, %s, %s" % (sT, sT, sT0))
    a("s_bfe_u32 %s, %s, 0x10001" % (sT2, sW))
    a("s_add_u32 %s, %s, %s" % (sT, sT, sT2))
    a("s_and_b32 %s, %s, 1" % (sT2, sW))
    a("s_lshl_b32 %s, %s, 4" % (sT2, sT2))
    a("s_add_u32 %s, %s, %s" % (sT, sT, sT2))
    a("v_lshl_add_u32 v9, v6, 1, %s" % sT)
    a("v_mul_u32_u24 v9, 896, v9")
    a("s_lshr_b32 %s, %s, 2" % (sT2, sT2))
    a("v_lshrrev_b32 v8, 1, v6")
    a("v_add_u32 v8, %s, v8" % sT2)
    a("v_xor_b32 v8, v8, v7")
    a("v_lshl_add_u32 %s, v8, 4, v9" % vAX)
    a("s_lshl_b32 %s, %s, 2" % (sT, sTI))
    a("s_add_u32 %s, %s, %s" % (sT, sT, sT0))
    a("s_add_u32 %s, %s, %s" % (sT, sT, sHD))
    a("s_sub_u32 %s, %s, 16" % (sT, sT))
    a("v_and_b32 v8, 1, v6")
    a("v_lshl_add_u32 v9, v8, 1, %s" % sT)
    a("v_max_i32 v9, 0, v9")
    a("v_mul_u32_u24 v9, 896, v9")
    a("v_xor_b32 v8, %s, v7" % sW)
    a("v_lshl_add_u32 %s, v8, 4, v9" % vAH)
    a("s_mov_b32 s59, 0")
    a("s_cmp_eq_u32 %s, 0" % sW)
    a("s_mov_b32 s58, 0xffff")
    a("s_cselect_b32 s58, 0xff00, s58")

    def dma(ch):
        sb = (ch % 4) * A_SLOT
        a("s_mov_b32 %s, %d" % (sT, ch * 172032))
        for m in range(3):
            a("s_add_u32 m0, %s, %d" % (sW1024, sb + m * 8192 - m * 896))
            a("buffer_load_dwordx4 %s, %s, %s offen offset:%d lds" % (vAW, SWQKV, sT, m * 896), tag=("A", ch))
        a("s_add_u32 m0, %s, %d" % (sW1024, sb + A_XOFF - ch * 128))
        a("buffer_load_dwordx4 %s, %s, 0 offen offset:%d lds" % (vAX, SX, ch * 128), tag=("A", ch))
        a("s_add_u32 m0, %s, %d" % (sW256, sb + A_XOFF + 8192 - ch * 128))
        a("s_mov_b64 exec, %s" % sHM)
        a("buffer_load_dwordx4 %s, %s, 0 offen offset:%d lds" % (vAH, SX, ch * 128), tag=("A", ch))
        a("s_mov_b64 exec, -1")

    for ch in range(4):
        dma(ch)

    ONES = 20
    for i in range(4):
        a("v_mov_b32 v%d, 0x3f803f80" % (ONES + i))
    a("v_and_b32 v8, 3, v6")
    a("v_mul_u32_u24 v8, %d, v8" % A_SLOT)
    a("v_lshl_add_u32 v8, v7, 4, v8")
    a("ds_write_b128 v8, %s offset:%d" % (vr(ONES), A_XOFF + 8192))
    aX0, aX1, aXH0, aXH1, aW0, aW1, aWH = range(24, 31)
    a("v_bfe_u32 v8, v3, 1, 3")
    a("v_xor_b32 v8, v8, v2")
    a("v_lshlrev_b32 v8, 4, v8")
    a("v_lshl_add_u32 v8, v3, 7, v8")
    a("v_add_u32 v%d, %d, v8" % (aXH0, A_XOFF + 8192))
    a("v_xor_b32 v%d, 64, v%d" % (aXH1, aXH0))
    a("s_lshl_b32 %s, %s, 11" % (sT, sTI))
    a("s_add_u32 %s, %s, %d" % (sT, sT, A_XOFF))
    a("v_add_u32 v%d, %s, v8" % (aX0, sT))
    a("v_xor_b32 v%d, 64, v%d" % (aX1, aX0))
    a("v_and_b32 v8, 2, v4")
    a("v_and_b32 v9, 1, v2")
    a("v_lshl_or_b32 v8, v9, 2, v8")
    a("v_lshlrev_b32 v8, 4, v8")
    a("v_lshl_add_u32 v9, v2, 3, v4")
    a("v_lshlrev_b32 v9, 7, v9")
    a("s_mul_i32 %s, %s, 56" % (sT, sHD))
    a("v_lshl_add_u32 v10, v5, 3, %s" % sT)
    a("v_xor_b32 v11, v10, v8")
    a("v_add_u32 v%d, v11, v9" % aW0)
    a("v_add_u32 v10, 32, v10")
    a("v_xor_b32 v11, v10, v8")
    a("v_add_u32 v%d, v11, v9" % aW1)
    a("s_and_b32 %s, %s, 1" % (sT, sTI))
    a("s_cmp_eq_u32 %s, 1" % sT)
    a("s_cselect_b64 vcc, -1, 0")
    a("s_lshr_b32 %s, %s, 1" % (sT, sTI))
    a("s_add_u32 %s, %s, 1" % (sT, sT))
    a("s_lshl_b32 %s, %s, 13" % (sT, sT))
    a("v_cndmask_b32 v8, v%d, v%d, vcc" % (aW0, aW1))
    a("v_add_u32 v%d, %s, v8" % (aWH, sT))
    for i in range(7):
        a("v_add_u32 v%d, %d, v%d" % (31 + i, 2 * A_SLOT, 24 + i))
    ACC = 40
    for i in range(40):
        a("v_mov_b32 v%d, 0" % (ACC + i))
    S1, S2, H1, H2 = "v76", "v77", "v78", "v79"
    BP, BC = 80, 84
    a("v_lshlrev_b32 v8, 2, v2")
    a("v_sub_u32 v9, v3, v8")
    a("s_lshl_b32 %s, %s, 2" % (sT, sTB))
    a("s_add_u32 %s, %s, %s" % (sT, sT, sTI))
    a("s_cmp_lt_u32 %s, 2" % sT)
    a("s_cselect_b32 %s, 0x10000, 0" % sT2)
    a("v_mov_b32 v11, 0x%x" % f2u(-1e30))
    for rr in range(4):
        a("v_subrev_u32 v10, %d, v9" % rr)
        a("v_cmp_gt_u32 vcc, 8, v10")
        a("v_cndmask_b32 v%d, v11, 0, vcc" % (BC + rr))
        a("v_add_u32 v10, 16, v10")
        a("v_add_u32 v10, %s, v10" % sT2)
        a("v_cmp_gt_u32 vcc, 8, v10")
        a("v_cndmask_b32 v%d, v11, 0, vcc" % (BP + rr))
    FB = [88, 124]

    def reads(ch, ks):
        sl = ch % 4
        ab = 24 if sl < 2 else 31
        ib = (sl & 1) * A_SLOT
        fb = FB[ks]
        out = []
        out.append("ds_read_b128 %s, v%d offset:%d" % (vr(fb), ab + ks, ib))
        for t in range(6):
            m, dt = t >> 1, t & 1
            for hf in range(2):
                out.append("ds_read_b64_tr_b16 %s, v%d offset:%d" % (vr(fb + 8 + 4 * t + 2 * hf, 2), ab + 4 + dt, ib + m * 8192 + ks * 4096 + hf * 512))
        out.append("ds_read_b128 %s, v%d offset:%d" % (vr(fb + 4), ab + 2 + ks, ib))
        for hf in range(2):
            out.append("ds_read_b64_tr_b16 %s, v%d offset:%d" % (vr(fb + 32 + 2 * hf, 2), ab + 6, ib + ks * 4096 + hf * 512))
        return out

    def compute(ks):
        fb = FB[ks]
        out = []
        mf = lambda acc, A, B: "v_mfma_f32_16x16x32_bf16 %s, %s, %s, %s" % (vr(acc), vr(A), vr(B), vr(acc))
        st = []
        for i in range(4):
            st.append("v_dot2c_f32_bf16 %s, v%d, v%d" % (S1, fb + i, ONES))
            st.append("v_dot2c_f32_bf16 %s, v%d, v%d" % (S2, fb + i, fb + i))
        sh = []
        for i in range(4):
            sh.append("v_dot2c_f32_bf16 %s, v%d, v%d" % (H1, fb + 4 + i, ONES))
            sh.append("v_dot2c_f32_bf16 %s, v%d, v%d" % (H2, fb + 4 + i, fb + 4 + i))
        out += [mf(ACC + 0, fb + 8, fb), st[0], st[1], mf(ACC + 28, fb + 8, ONES), st[2], st[3]]
        out += [mf(ACC + 4, fb + 12, fb), st[4], st[5], mf(ACC + 32, fb + 12, ONES), st[6], st[7]]
        for t in range(2, 6):
            out.append(mf(ACC + 4 * t, fb + 8 + 4 * t, fb))
        out += sh[:4] + [mf(ACC + 24, fb + 32, fb + 4)] + sh[4:]
        return out

    for ch in range(7):
        a.wait_tag(("A", ch), lg0=True)
        a("s_barrier")
        r0 = reads(ch, 0)
        r1 = reads(ch, 1)
        for x in r0[:13]:
            a(x)
        if 1 <= ch <= 3:
            dma(ch + 3)
        c0 = compute(0)
        rest = r0[13:] + r1
        for i, x in enumerate(c0):
            a(x)
            if x.startswith("v_mfma"):
                for _ in range(2):
                    if rest:
                        a(rest.pop(0))
        for x in rest:
            a(x)
        for x in compute(1):
            a(x)

    T = 88
    aH = ACC + 24
    for rr in range(4):
        a("v_mov_b32_dpp v%d, v%d row_newbcast:0 row_mask:0xf bank_mask:0xf" % (T + rr, aH + rr))
    a("s_lshl_b32 %s, %s, 6" % (sT, sW))
    a("v_lshl_add_u32 v8, v2, 4, %s" % sT)
    a("v_add_u32 v8, %d, v8" % A_CS)
    a("ds_write_b128 v8, %s" % vr(T))
    xg_reduce_multi(a, "v_add_f32", [S1, S2, H1, H2], ["v8", "v9", "v10", "v11"])
    a("s_waitcnt lgkmcnt(0)")
    a("s_barrier")
    CS = T + 4
    a("s_lshl_b32 %s, %s, 8" % (sT, sHD))
    a("v_lshl_add_u32 v8, v2, 4, %s" % sT)
    a("v_add_u32 v8, %d, v8" % A_CS)
    for t in range(4):
        a("ds_read_b128 %s, v8 offset:%d" % (vr(CS + 4 * t), 64 * t))
    a("s_mov_b32 %s, 0x%x" % (sT, f2u(1.0 / 448)))
    a("v_mov_b32 v12, 0x%x" % f2u(1e-5))
    for (s1, s2) in ((S1, S2), (H1, H2)):
        a("v_mul_f32 %s, %s, %s" % (s1, sT, s1))
        a("v_fma_f32 %s, %s, %s, v12" % (s2, s2, sT))
        a("v_fma_f32 %s, -%s, %s, %s" % (s2, s1, s1, s2))
        a("v_max_f32 %s, %s, v12" % (s2, s2))
        a("v_rsq_f32 %s, %s" % (s2, s2))
        a("v_mul_f32 %s, %s, %s" % (s1, s1, s2))
    RHO, MR, HRHO, HMR = S2, S1, H2, H1
    for rr in range(4):
        a("v_mul_f32 v%d, %s, v%d" % (T + rr, HMR, T + rr))
        a("v_fma_f32 v%d, %s, v%d, -v%d" % (aH + rr, HRHO, aH + rr, T + rr))
    a("v_cvt_pk_bf16_f32 v%d, v%d, v%d" % (T, aH, aH + 1))
    a("v_cvt_pk_bf16_f32 v%d, v%d, v%d" % (T + 1, aH + 2, aH + 3))
    a("s_lshl_b32 %s, %s, 9" % (sT, sW))
    a("s_add_u32 %s, %s, %d" % (sT, sT, A_EX + 4 * 4096))
    a("v_lshl_add_u32 v8, v1, 3, %s" % sT)
    a("ds_write_b64 v8, %s" % vr(T, 2))
    PK = 108
    for t in range(4):
        acc = ACC + 8 + 4 * t
        for rr in range(4):
            a("v_mul_f32 v%d, %s, v%d" % (CS + 4 * t + rr, MR, CS + 4 * t + rr))
            a("v_fma_f32 v%d, %s, v%d, -v%d" % (acc + rr, RHO, acc + rr, CS + 4 * t + rr))
        a("v_cvt_pk_bf16_f32 v%d, v%d, v%d" % (PK + 2 * t, acc, acc + 1))
        a("v_cvt_pk_bf16_f32 v%d, v%d, v%d" % (PK + 2 * t + 1, acc + 2, acc + 3))
    a("s_lshl_b32 %s, %s, 12" % (sT, sTI))
    a("s_lshl_b32 %s, %s, 11" % (sT2, sHD))
    a("s_add_u32 %s, %s, %s" % (sT, sT, sT2))
    a("s_add_u32 %s, %s, %d" % (sT, sT, A_EX))
    a("v_lshl_add_u32 v8, v1, 3, %s" % sT)
    for t in range(4):
        a("ds_write_b64 v8, %s offset:%d" % (vr(PK + 2 * t, 2), 512 * t))
    a("v_lshl_add_u32 v9, v2, 2, v4")
    a("v_lshl_add_u32 v10, v5, 4, v9")
    a("v_lshl_add_u32 v13, v10, 3, %s" % sT)
    a("s_cmp_lt_u32 %s, 2" % sTI)
    a("s_cselect_b32 s60, 7, 15")
    a("s_cselect_b32 s61, %s, 0" % sTI)
    a("s_lshl_b32 s61, s61, 3")
    a("s_sub_u32 s62, %s, 8192" % sT)
    a("s_add_u32 s63, %s, %d" % (sT2, A_EX + 4 * 4096))
    a("s_cmp_lt_u32 %s, 2" % sTI)
    a("s_cselect_b32 s62, s63, s62")
    a("v_and_b32 v9, s60, v9")
    a("v_add_u32 v9, s61, v9")
    a("v_lshl_add_u32 v10, v5, 4, v9")
    a("v_lshl_add_u32 v14, v10, 3, s62")
    a("v_and_b32 v9, s60, v3")
    a("v_add_u32 v9, s61, v9")
    a("v_lshl_add_u32 v10, v2, 4, v9")
    a("v_lshl_add_u32 v15, v10, 3, s62")
    a("v_cmp_gt_u32 vcc, 3, v2")
    for t in range(2):
        acc = ACC + 4 * t
        cq = ACC + 28 + 4 * t
        for rr in range(4):
            a("v_mul_f32 v%d, %s, v%d" % (cq + rr, MR, cq + rr))
            a("v_fma_f32 v%d, %s, v%d, -v%d" % (acc + rr, RHO, acc + rr, cq + rr))
        a("v_cvt_pk_bf16_f32 v%d, v%d, v%d" % (PK + 8 + 2 * t, acc, acc + 1))
        a("v_cvt_pk_bf16_f32 v%d, v%d, v%d" % (PK + 8 + 2 * t + 1, acc + 2, acc + 3))
    a("v_cndmask_b32 v%d, 0, v%d, vcc" % (PK + 10, PK + 10))
    a("v_cndmask_b32 v%d, 0, v%d, vcc" % (PK + 11, PK + 11))
    a("v_mfma_f32_16x16x32_bf16 %s, %s, %s, %s" % (vr(BC), vr(PK), vr(PK + 8), vr(BC)))
    a("s_waitcnt lgkmcnt(0)")
    a("s_barrier")
    KP, V0, V1 = 120, 124, 128
    a("ds_read_b64 %s, v15" % vr(KP, 2))
    a("ds_read_b64 %s, v15 offset:512" % vr(KP + 2, 2))
    a("ds_read_b64_tr_b16 %s, v14 offset:1024" % vr(V0, 2))
    a("ds_read_b64_tr_b16 %s, v13 offset:1024" % vr(V0 + 2, 2))
    a("ds_read_b64_tr_b16 %s, v14 offset:1536" % vr(V1, 2))
    a("ds_read_b64_tr_b16 %s, v13 offset:1536" % vr(V1 + 2, 2))
    a("v_mfma_f32_16x16x32_bf16 %s, %s, %s, %s" % (vr(BP), vr(KP), vr(PK + 8), vr(BP)))
    a("v_max3_f32 v8, v%d, v%d, v%d" % (BC, BC + 1, BC + 2))
    a("v_max_f32 v8, v8, v%d" % (BC + 3))
    a("v_max3_f32 v8, v8, v%d, v%d" % (BP, BP + 1))
    a("v_max3_f32 v8, v8, v%d, v%d" % (BP + 2, BP + 3))
    xg_reduce(a, "v_max_f32", "v8", "v9")
    a("s_mov_b32 %s, 0x%x" % (sT, f2u(28 ** -0.5 * LOG2E)))
    a("v_mul_f32 v8, %s, v8" % sT)
    for i in range(8):
        a("v_fma_f32 v%d, v%d, %s, -v8" % (BP + i, BP + i, sT))
    for i in range(8):
        a("v_exp_f32 v%d, v%d" % (BP + i, BP + i))
    a("v_add_f32 v9, v%d, v%d" % (BP, BP + 1))
    a("v_add_f32 v10, v%d, v%d" % (BP + 2, BP + 3))
    a("v_add_f32 v11, v%d, v%d" % (BP + 4, BP + 5))
    a("v_add_f32 v12, v%d, v%d" % (BP + 6, BP + 7))
    a("v_add_f32 v9, v9, v10")
    a("v_add_f32 v11, v11, v12")
    a("v_add_f32 v9, v9, v11")
    xg_reduce(a, "v_add_f32", "v9", "v10")
    a("v_rcp_f32 v9, v9")
    for i in range(8):
        a("v_mul_f32 v%d, v9, v%d" % (BP + i, BP + i))
    P = 132
    for i in range(4):
        a("v_cvt_pk_bf16_f32 v%d, v%d, v%d" % (P + i, BP + 2 * i, BP + 2 * i + 1))
    O0, O1 = 136, 140
    a("v_mfma_f32_16x16x32_bf16 %s, %s, %s, 0" % (vr(O0), vr(V0), vr(P)))
    a("v_mfma_f32_16x16x32_bf16 %s, %s, %s, 0" % (vr(O1), vr(V1), vr(P)))
    a("s_lshl_b32 %s, %s, 2" % (sT, sTB))
    a("s_add_u32 %s, %s, %s" % (sT, sT, sTI))
    a("s_lshl_b32 %s, %s, 4" % (sT, sT))
    a("s_lshl_b32 %s, %s, 1" % (sT2, sHP))
    a("s_add_u32 %s, %s, %s" % (sT, sT, sT2))
    a("s_add_u32 %s, %s, %s" % (sT, sT, sHD))
    a("s_lshl_b32 %s, %s, 10" % (sT, sT))
    a("v_lshlrev_b32 v8, 4, v1")
    a("v_cvt_pk_bf16_f32 v%d, v%d, v%d" % (P, O0, O0 + 1))
    a("v_cvt_pk_bf16_f32 v%d, v%d, v%d" % (P + 1, O0 + 2, O0 + 3))
    a("v_cvt_pk_bf16_f32 v%d, v%d, v%d" % (P + 2, O1, O1 + 1))
    a("v_cvt_pk_bf16_f32 v%d, v%d, v%d" % (P + 3, O1 + 2, O1 + 3))
    a("v_cndmask_b32 v%d, 0, v%d, vcc" % (P + 2, P + 2))
    a("v_cndmask_b32 v%d, 0, v%d, vcc" % (P + 3, P + 3))
    a("buffer_store_dwordx4 %s, v8, %s, %s offen%s" % (vr(P), SWS, sT, sc))


def role7(a, sRB, sCB, mul, base_expr):
    a("s_mul_i32 %s, %s, 37" % (sRB, sJ))
    a("s_lshr_b32 %s, %s, 8" % (sRB, sRB))
    a("s_mul_i32 %s, %s, 7" % (sCB, sRB))
    a("s_sub_u32 %s, %s, %s" % (sCB, sJ, sCB))


def phase_B(a, sc):
    sRB, sCB, sTT, sKH, sT, sT2, sTAU = "s48", "s49", "s50", "s51", "s55", "s56", "s52"
    a("; ---------------- phase B ----------------")
    role7(a, sRB, sCB, 0, 0)
    a("s_lshl_b32 %s, %s, 2" % (sT, sXC))
    a("s_add_u32 %s, %s, %s" % (sRB, sRB, sT))
    a("s_and_b32 %s, %s, 3" % (sTT, sW))
    a("s_lshr_b32 %s, %s, 2" % (sKH, sW))
    a("s_lshl_b32 %s, %s, 2" % (sTAU, sRB))
    a("s_add_u32 %s, %s, %s" % (sTAU, sTAU, sTT))
    a("v_lshrrev_b32 v6, 3, v1")
    a("v_and_b32 v7, 7, v1")
    a("v_and_b32 v8, 2, v6")
    a("v_lshlrev_b32 v8, 1, v8")
    a("v_xor_b32 v8, v8, v7")
    a("s_mul_i32 %s, %s, 56" % (sT, sW))
    a("v_add_u32 v9, %s, v6" % sT)
    a("v_mul_u32_u24 v9, 896, v9")
    a("v_lshl_add_u32 v9, v8, 4, v9")
    a("s_lshl_b32 %s, %s, 7" % (sT, sCB))
    a("v_add_u32 v16, %s, v9" % sT)
    a("s_mul_i32 %s, %s, 7168" % (sT2, sW))
    for i in range(7):
        a("s_add_u32 m0, %s, %d" % (sT2, i * 1024))
        a("s_mov_b32 %s, %d" % (sT, i * 7168))
        a("buffer_load_dwordx4 v16, %s, %s offen lds" % (SWO, sT), tag="wo")
    XR = 20
    a("s_lshr_b32 %s, %s, 1" % (sT, sTAU))
    a("s_lshl_b32 %s, %s, 5" % (sT, sT))
    a("s_and_b32 %s, %s, 1" % (sT2, sTAU))
    a("s_add_u32 %s, %s, %s" % (sT, sT, sT2))
    a("v_lshl_add_u32 v8, v3, 1, %s" % sT)
    a("v_mul_u32_u24 v8, 896, v8")
    a("v_lshl_add_u32 v8, v2, 4, v8")
    a("s_lshl_b32 s53, %s, 1" % sCB)
    a("s_add_u32 s53, s53, %s" % sKH)
    a("s_lshl_b32 %s, s53, 6" % sT)
    a("buffer_load_dwordx4 %s, v8, %s, %s offen" % (vr(XR), SX, sT))
    a("v_lshl_add_u32 v8, v2, 2, v4")
    a("s_mul_i32 %s, %s, 224" % (sT, sKH))
    a("v_add_u32 v8, %s, v8" % sT)
    a("v_lshlrev_b32 v8, 7, v8")
    a("v_and_b32 v9, 2, v4")
    a("v_lshlrev_b32 v9, 1, v9")
    a("s_lshl_b32 %s, %s, 2" % (sT, sKH))
    a("v_or_b32 v10, %s, v5" % sT)
    a("v_xor_b32 v10, v10, v9")
    a("v_lshl_add_u32 v24, v10, 4, v8")
    a("v_xor_b32 v25, 64, v24")
    a("v_cmp_gt_u32 vcc, 3, v2")
    a("v_mov_b32 v9, 2048")
    a("v_cndmask_b32 v9, 0, v9, vcc")
    a("v_add_u32 v26, v24, v9")
    a("v_add_u32 v27, v25, v9")
    WF = 128
    a.wait_tag("wo")
    a("s_barrier")
    for hh in range(8):
        for t in range(4):
            off = hh * 3584 + (t & 1) * 8
            a("ds_read_b64_tr_b16 %s, v%d offset:%d" % (vr(WF + 16 * hh + 4 * t, 2), 24 + (t >> 1), off))
            a("ds_read_b64_tr_b16 %s, v%d offset:%d" % (vr(WF + 16 * hh + 4 * t + 2, 2), 26 + (t >> 1), off))
    OF, ACC = 32, 64
    a("s_lshl_b32 %s, %s, 4" % (sT, sTAU))
    a("s_lshl_b32 %s, %s, 3" % (sT2, sKH))
    a("s_add_u32 %s, %s, %s" % (sT, sT, sT2))
    a("s_lshl_b32 %s, %s, 10" % (sT, sT))
    a("s_add_u32 %s, %s, 4096" % (sT2, sT))
    a("v_lshlrev_b32 v8, 4, v1")
    for hh in range(8):
        a("buffer_load_dwordx4 %s, v8, %s, %s offen offset:%d%s" % (vr(OF + 4 * hh), SWS, sT if hh < 4 else sT2, (hh & 3) * 1024, sc))
    for hh in range(8):
        for t in (2, 3, 0, 1):
            a("v_mfma_f32_16x16x32_bf16 %s, %s, %s, %s" % (vr(ACC + 4 * t), vr(WF + 16 * hh + 4 * t), vr(OF + 4 * hh), vr(ACC + 4 * t) if hh else "0"))
    RBASE = 57344
    a("s_lshl_b32 %s, %s, 11" % (sT, sW))
    a("v_add_u32 v9, %s, v8" % sT)
    a("v_xor_b32 v10, 8192, v9")
    a("ds_write_b128 v9, %s offset:%d" % (vr(ACC + 8), RBASE))
    a("ds_write_b128 v9, %s offset:%d" % (vr(ACC + 12), RBASE + 1024))
    a("s_waitcnt lgkmcnt(0)")
    a("s_barrier")
    a("ds_read_b128 %s, v10 offset:%d" % (vr(ACC + 8), RBASE))
    a("ds_read_b128 %s, v10 offset:%d" % (vr(ACC + 12), RBASE + 1024))
    for i in range(4):
        a("v_lshlrev_b32 v11, 16, v%d" % (XR + i))
        a("v_and_b32 v12, 0xffff0000, v%d" % (XR + i))
        a("v_add_f32 v%d, v%d, v11" % (ACC + 2 * i, ACC + 2 * i))
        a("v_add_f32 v%d, v%d, v12" % (ACC + 2 * i + 1, ACC + 2 * i + 1))
    for i in range(8):
        a("v_add_f32 v%d, v%d, v%d" % (ACC + i, ACC + i, ACC + 8 + i))
    HP = 28
    for i in range(4):
        a("v_cvt_pk_bf16_f32 v%d, v%d, v%d" % (HP + i, ACC + 2 * i, ACC + 2 * i + 1))
    a("s_mul_i32 %s, %s, 14" % (sT, sTAU))
    a("s_add_u32 %s, %s, s53" % (sT, sT))
    a("s_lshl_b32 %s, %s, 10" % (sT2, sT))
    a("s_add_u32 %s, %s, %d" % (sT2, sT2, WS_H))
    a("buffer_store_dwordx4 %s, v8, %s, %s offen%s" % (vr(HP), SWS, sT2, sc))
    a("v_mov_b32 v12, 0")
    a("v_mov_b32 v13, 0")
    a("v_mov_b32 v11, 0x3f803f80")
    for i in range(4):
        a("v_dot2c_f32_bf16 v12, v%d, v11" % (HP + i))
        a("v_dot2c_f32_bf16 v13, v%d, v%d" % (HP + i, HP + i))
    xg_reduce_multi(a, "v_add_f32", ["v12", "v13"], ["v14", "v15"])
    a("s_lshl_b32 %s, %s, 7" % (sT2, sT))
    a("s_add_u32 %s, %s, %d" % (sT2, sT2, WS_ST))
    a("v_lshlrev_b32 v9, 3, v3")
    a("s_mov_b64 exec, 0xffff")
    a("buffer_store_dwordx2 v[12:13], v9, %s, %s offen%s" % (SWS, sT2, sc))
    a("s_mov_b64 exec, -1")


def phase_C(a, sc):
    sRQ, sFS, sT, sT2, sW1024 = "s48", "s49", "s55", "s56", "s53"
    a("; ---------------- phase C ----------------")
    role7(a, sRQ, sFS, 0, 0)
    a("s_lshr_b32 %s, %s, 1" % (sT, sXC))
    a("s_lshl_b32 %s, %s, 2" % (sT, sT))
    a("s_add_u32 %s, %s, %s" % (sRQ, sRQ, sT))
    a("s_and_b32 %s, %s, 1" % (sT, sXC))
    a("s_mul_i32 %s, %s, 7" % (sT, sT))
    a("s_add_u32 %s, %s, %s" % (sFS, sFS, sT))
    a("s_lshl_b32 %s, %s, 10" % (sW1024, sW))
    a("s_bfe_u32 %s, %s, 0x10001" % (sT, sW))
    a("s_lshl_b32 %s, %s, 3" % (sT, sT))
    a("v_lshl_or_b32 v8, v2, 1, %s" % sT)
    a("v_xor_b32 v8, v8, v3")
    a("s_lshl_b32 %s, %s, 2" % (sT, sW))
    a("v_add_u32 v9, %s, v2" % sT)
    a("v_mul_u32_u24 v9, 3584, v9")
    a("v_lshl_add_u32 v9, v8, 4, v9")
    a("s_lshl_b32 %s, %s, 8" % (sT, sFS))
    a("v_add_u32 v16, %s, v9" % sT)
    a("v_and_b32 v8, 1, v2")
    a("v_lshl_or_b32 v8, v8, 2, v4")
    a("v_lshlrev_b32 v8, 1, v8")
    a("v_lshrrev_b32 v9, 1, v5")
    a("s_lshl_b32 %s, %s, 1" % (sT, sW))
    a("v_add_u32 v9, %s, v9" % sT)
    a("v_xor_b32 v8, v8, v9")
    a("v_lshl_add_u32 v9, v2, 3, v4")
    a("v_lshlrev_b32 v9, 8, v9")
    a("v_lshl_add_u32 v9, v8, 4, v9")
    a("v_and_b32 v8, 1, v5")
    a("v_lshl_add_u32 v17, v8, 3, v9")
    a("v_add_u32 v18, 57344, v17")
    WGF, WUF = 32, 88
    for (srd, wf, tag) in ((SWG, WGF, "wg"), (SWU, WUF, "wu")):
        for i in range(14):
            a("s_add_u32 m0, %s, %d" % (sW1024, i * 8192))
            a("s_mov_b32 %s, %d" % (sT, i * 114688))
            a("buffer_load_dwordx4 v16, %s, %s offen lds" % (srd, sT), tag=tag)
        a.wait_tag(tag)
        a("s_barrier")
        for u in range(14):
            for hf in range(2):
                a("ds_read_b64_tr_b16 %s, v%d offset:%d" % (vr(wf + 4 * u + 2 * hf, 2), 17 if u < 7 else 18, (u % 7) * 8192 + hf * 1024))
        a("s_waitcnt lgkmcnt(0)")
        a("s_barrier")
    ONES, CSG, CSU = 20, 24, 28
    for i in range(4):
        a("v_mov_b32 v%d, 0x3f803f80" % (ONES + i))
    for u in range(14):
        a("v_mfma_f32_16x16x32_bf16 %s, %s, %s, %s" % (vr(CSG), vr(WGF + 4 * u), vr(ONES), vr(CSG) if u else "0"))
        a("v_mfma_f32_16x16x32_bf16 %s, %s, %s, %s" % (vr(CSU), vr(WUF + 4 * u), vr(ONES), vr(CSU) if u else "0"))
    a("s_mul_i32 %s, %s, 114688" % (sT, sRQ))
    a("s_add_u32 %s, %s, %d" % (sT, sT, WS_H))
    a("s_mul_i32 s57, %s, 3584" % sW)
    a("v_lshl_add_u32 v8, v1, 4, s57")
    for tp in range(4):
        a("s_add_u32 m0, s57, %d" % (tp * 28672))
        for i in range(3):
            a("buffer_load_dwordx4 v8, %s, %s offen offset:%d%s lds" % (SWS, sT, i * 1024, sc), tag=("h", tp))
        a("s_mov_b32 exec_hi, 0")
        a("buffer_load_dwordx4 v8, %s, %s offen offset:3072%s lds" % (SWS, sT, sc), tag=("h", tp))
        a("s_mov_b64 exec, -1")
        if tp == 0:
            a("s_lshl_b32 %s, %s, 3" % (sT2, sRQ))
            a("s_add_u32 %s, %s, %s" % (sT2, sT2, sW))
            a("s_mul_i32 %s, %s, 1792" % (sT2, sT2))
            a("s_add_u32 %s, %s, %d" % (sT2, sT2, WS_ST))
            a("v_lshlrev_b32 v9, 3, v1")
            a("v_mov_b32 v150, 0")
            a("v_mov_b32 v151, 0")
            for i in range(3):
                a("buffer_load_dwordx2 v[%d:%d], v9, %s, %s offen offset:%d%s" % (144 + 2 * i, 145 + 2 * i, SWS, sT2, 512 * i, sc))
            a("s_mov_b32 exec_hi, 0")
            a("buffer_load_dwordx2 v[150:151], v9, %s, %s offen offset:1536%s" % (SWS, sT2, sc))
            a("s_mov_b64 exec, -1")
        if tp < 3:
            a("s_add_u32 %s, %s, 28672" % (sT, sT))
    STB = 114688
    for i in range(1, 4):
        a("v_add_f32 v144, v144, v%d" % (144 + 2 * i))
        a("v_add_f32 v145, v145, v%d" % (145 + 2 * i))
    xg_reduce_multi(a, "v_add_f32", ["v144", "v145"], ["v10", "v11"])
    a("s_mov_b32 %s, 0x%x" % (sT, f2u(1.0 / 448)))
    a("v_mov_b32 v12, 0x%x" % f2u(1e-5))
    a("v_mul_f32 v144, %s, v144" % sT)
    a("v_fma_f32 v145, v145, %s, v12" % sT)
    a("v_fma_f32 v145, -v144, v144, v145")
    a("v_max_f32 v145, v145, v12")
    a("v_rsq_f32 v145, v145")
    a("v_mul_f32 v144, v144, v145")
    a("s_lshl_b32 %s, %s, 7" % (sT, sW))
    a("s_add_u32 %s, %s, %d" % (sT, sT, STB))
    a("v_lshl_add_u32 v9, v3, 3, %s" % sT)
    a("ds_write_b64 v9, v[144:145]")
    a("v_lshlrev_b32 v19, 3, v3")
    a("v_add_u32 v19, %d, v19" % STB)
    a("v_lshlrev_b32 v14, 4, v1")
    a("v_add_u32 v15, 57344, v14")
    a("v_and_b32 v8, 1, v2")
    a("v_mul_u32_u24 v8, 57344, v8")
    a("v_lshrrev_b32 v9, 1, v2")
    a("s_and_b32 %s, %s, 1" % (sT, sW))
    a("s_lshl_b32 %s, %s, 1" % (sT, sT))
    a("v_add_u32 v9, %s, v9" % sT)
    a("v_lshl_add_u32 v8, v9, 8, v8")
    a("v_lshl_add_u32 v13, v3, 4, v8")
    a("s_mul_i32 s58, %s, 448" % sRQ)
    a("s_lshl_b32 %s, %s, 2" % (sT, sFS))
    a("s_add_u32 s58, s58, %s" % sT)
    a("s_lshr_b32 %s, %s, 1" % (sT, sW))
    a("s_add_u32 s58, s58, %s" % sT)
    a("s_lshl_b32 s58, s58, 10")
    a("s_add_u32 s58, s58, %d" % WS_HH)
    a("s_mov_b32 s59, 0x%x" % f2u(LOG2E))
    AF = 152
    ACC = 184
    ST = 200
    NR = 8
    for tp in range(4):
        if tp == 0:
            a.wait_tag(("h", 0), lg0=True)
            a("s_barrier")
        if tp == 1:
            a.wait_tag(("h", 3), lg0=True)
            a("s_barrier")
        rd = []
        for u in range(14):
            for t in range(2):
                off = (tp * 2 + t) * 14336 + u * 1024
                rd.append("ds_read_b128 %s, v%d offset:%d" % (vr(AF + 4 * ((u * 2 + t) % NR)), 14 if off < 57344 else 15, off % 57344))
        a("ds_read_b64 %s, v19 offset:%d" % (vr(ST, 2), tp * 256))
        a("ds_read_b64 %s, v19 offset:%d" % (vr(ST + 2, 2), tp * 256 + 128))
        for x in rd[:NR - 2]:
            a(x)
        nxt = NR - 2
        for u in range(14):
            for t in range(2):
                f = AF + 4 * ((u * 2 + t) % NR)
                a("v_mfma_f32_16x16x32_bf16 %s, %s, %s, %s" % (vr(ACC + 8 * t), vr(WGF + 4 * u), vr(f), vr(ACC + 8 * t) if u else "0"))
                if nxt < len(rd):
                    a(rd[nxt])
                    nxt += 1
                a("v_mfma_f32_16x16x32_bf16 %s, %s, %s, %s" % (vr(ACC + 8 * t + 4), vr(WUF + 4 * u), vr(f), vr(ACC + 8 * t + 4) if u else "0"))
        TM = 204
        for t in range(2):
            mr, rho = "v%d" % (ST + 2 * t), "v%d" % (ST + 2 * t + 1)
            a("v_mul_f32 v8, s59, %s" % rho)
            a("v_mul_f32 v9, s59, %s" % mr)
            for rr in range(4):
                a("v_mul_f32 v%d, v9, v%d" % (TM + rr, CSG + rr))
                a("v_mul_f32 v%d, %s, v%d" % (TM + 4 + rr, mr, CSU + rr))
            for rr in range(4):
                g = ACC + 8 * t + rr
                a("v_fma_f32 v%d, -v8, v%d, v%d" % (g, g, TM + rr))
            for rr in range(4):
                g = ACC + 8 * t + rr
                a("v_exp_f32 v%d, v%d" % (g, g))
            for rr in range(4):
                u_ = ACC + 8 * t + 4 + rr
                a("v_fma_f32 v%d, %s, v%d, -v%d" % (u_, rho, u_, TM + 4 + rr))
            for rr in range(4):
                g = ACC + 8 * t + rr
                a("v_add_f32 v%d, 1.0, v%d" % (g, g))
            for rr in range(4):
                g = ACC + 8 * t + rr
                a("v_rcp_f32 v%d, v%d" % (g, g))
            for rr in range(4):
                g = ACC + 8 * t + rr
                a("v_mul_f32 v%d, v%d, v%d" % (g, g, g + 4))
        PKD = 212 + 4 * (tp & 1)
        a("v_cvt_pk_bf16_f32 v%d, v%d, v%d" % (PKD, ACC, ACC + 1))
        a("v_cvt_pk_bf16_f32 v%d, v%d, v%d" % (PKD + 1, ACC + 2, ACC + 3))
        a("v_cvt_pk_bf16_f32 v%d, v%d, v%d" % (PKD + 2, ACC + 8, ACC + 9))
        a("v_cvt_pk_bf16_f32 v%d, v%d, v%d" % (PKD + 3, ACC + 10, ACC + 11))
        a("v_permlane16_swap_b32 v%d, v%d" % (PKD, PKD + 2))
        a("v_permlane16_swap_b32 v%d, v%d" % (PKD + 1, PKD + 3))
        a("buffer_store_dwordx4 %s, v13, %s, s58 offen%s" % (vr(PKD), SWS, sc))
        if tp < 3:
            a("s_add_u32 s58, s58, %d" % (2 * 57344))


def phase_D(a, sc):
    sRB, sCB, sT, sT2 = "s48", "s49", "s55", "s56"
    a("; ---------------- phase D ----------------")
    role7(a, sRB, sCB, 0, 0)
    a("s_lshl_b32 %s, %s, 2" % (sT, sXC))
    a("s_add_u32 %s, %s, %s" % (sRB, sRB, sT))
    a("v_lshrrev_b32 v6, 3, v1")
    a("v_and_b32 v7, 7, v1")
    a("v_and_b32 v8, 6, v6")
    a("v_xor_b32 v8, v8, v7")
    a("v_and_b32 v9, 3, v6")
    a("v_lshrrev_b32 v10, 2, v6")
    a("v_lshl_add_u32 v9, v10, 3, v9")
    a("s_mul_i32 %s, %s, 224" % (sT, sW))
    a("v_add_u32 v9, %s, v9" % sT)
    a("v_mul_u32_u24 v9, 896, v9")
    a("v_lshl_add_u32 v9, v8, 4, v9")
    a("s_lshl_b32 %s, %s, 7" % (sT, sCB))
    a("v_add_u32 v16, %s, v9" % sT)
    a("v_and_b32 v8, 1, v2")
    a("v_lshl_add_u32 v8, v8, 2, v4")
    a("v_and_b32 v9, 6, v8")
    a("v_lshrrev_b32 v10, 1, v5")
    a("v_xor_b32 v9, v9, v10")
    a("v_lshrrev_b32 v10, 1, v2")
    a("v_lshl_add_u32 v8, v10, 4, v8")
    a("v_lshlrev_b32 v8, 7, v8")
    a("v_lshl_add_u32 v8, v9, 4, v8")
    a("v_and_b32 v9, 1, v5")
    a("v_lshl_add_u32 v8, v9, 3, v8")
    a("s_lshl_b32 s53, %s, 14" % sW)
    a("v_add_u32 v24, s53, v8")
    for t in range(1, 4):
        a("v_xor_b32 v%d, %d, v24" % (24 + t, 32 * t))
    WF = 32
    for (u0, u1) in ((0, 4), (4, 7)):
        for u in range(u0, u1):
            for i4 in range(4):
                i = 4 * u + i4
                a("s_add_u32 m0, s53, %d" % ((i - 4 * u0) * 1024))
                a("s_mov_b32 %s, %d" % (sT, (16 * (i >> 1) + 4 * (i & 1)) * 896))
                a("buffer_load_dwordx4 v16, %s, %s offen lds" % (SWD, sT), tag="wd")
        a.wait_tag("wd")
        for u in range(u0, u1):
            for t in range(4):
                for hf in range(2):
                    a("ds_read_b64_tr_b16 %s, v%d offset:%d" % (vr(WF + 16 * u + 4 * t + 2 * hf, 2), 24 + t, (u - u0) * 4096 + hf * 1024))
        a("s_waitcnt lgkmcnt(0)")
    a("s_barrier")
    HR = 20
    a("s_lshr_b32 %s, %s, 1" % (sT, sW))
    a("s_lshl_b32 s57, %s, 2" % sRB)
    a("s_add_u32 s57, s57, %s" % sT)
    a("s_and_b32 %s, %s, 1" % (sT2, sW))
    a("s_lshl_b32 %s, %s, 3" % (sT2, sT2))
    a("v_add_u32 v12, %s, v6" % sT2)
    a("v_lshlrev_b32 v8, 8, v7")
    a("v_lshl_add_u32 v8, v12, 4, v8")
    a("s_mul_i32 %s, s57, 14" % sT)
    a("s_lshl_b32 %s, %s, 1" % (sT2, sCB))
    a("s_add_u32 %s, %s, %s" % (sT, sT, sT2))
    a("s_lshl_b32 %s, %s, 10" % (sT, sT))
    a("s_add_u32 %s, %s, %d" % (sT, sT, WS_H))
    a("buffer_load_dwordx4 %s, v8, %s, %s offen%s" % (vr(HR), SWS, sT, sc))
    AF = 144
    ACC = 228
    a("s_mul_i32 %s, %s, 224" % (sT, sRB))
    a("s_mul_i32 %s, %s, 7" % (sT2, sW))
    a("s_add_u32 %s, %s, %s" % (sT, sT, sT2))
    a("s_lshl_b32 %s, %s, 10" % (sT, sT))
    a("s_add_u32 s58, %s, %d" % (sT, WS_HH))
    a("v_lshlrev_b32 v8, 4, v1")
    a("v_add_u32 v9, 4096, v8")

    def loads(rt):
        for i in range(7):
            a("buffer_load_dwordx4 %s, v%d, %s, s58 offen offset:%d%s" % (vr(AF + 28 * (rt % 3) + 4 * i), 8 if i < 4 else 9, SWS, (i & 3) * 1024, sc))
        a("s_add_u32 s58, s58, 57344")

    for rt in range(3):
        loads(rt)
    a("v_lshrrev_b32 v10, 1, v2")
    a("v_lshl_add_u32 v10, v10, 1, v3")
    a("s_lshl_b32 %s, %s, 12" % (sT, sW))
    a("v_lshl_add_u32 v11, v2, 8, %s" % sT)
    for t in range(4):
        a("v_add_u32 v13, %d, v10" % (4 * t))
        a("v_and_b32 v13, 15, v13")
        a("v_lshl_add_u32 v%d, v13, 4, v11" % (24 + t))
        a("v_add_u32 v%d, 65536, v%d" % (28 + t, 24 + t))
    for rt in range(4):
        for i in range(7):
            for t in range(4):
                a("v_mfma_f32_16x16x32_bf16 %s, %s, %s, %s" % (vr(ACC + 4 * t), vr(WF + 16 * i + 4 * t), vr(AF + 28 * (rt % 3) + 4 * i), vr(ACC + 4 * t) if i else "0"))
        if rt == 0:
            loads(3)
        for t in range(4):
            a("ds_write_b128 v%d, %s offset:%d" % ((24 if rt < 2 else 28) + t, vr(ACC + 4 * t), (rt & 1) * 32768 + t * 1024))
    a("v_lshl_add_u32 v10, v7, 1, v12")
    a("v_and_b32 v10, 15, v10")
    a("v_lshlrev_b32 v10, 4, v10")
    a("v_lshl_add_u32 v10, v7, 9, v10")
    a("s_lshr_b32 %s, %s, 1" % (sT, sW))
    a("s_lshl_b32 %s, %s, 15" % (sT, sT))
    a("v_add_u32 v10, %s, v10" % sT)
    a("s_lshr_b32 %s, s57, 1" % sT)
    a("s_lshl_b32 %s, %s, 5" % (sT, sT))
    a("s_and_b32 %s, s57, 1" % sT2)
    a("s_add_u32 %s, %s, %s" % (sT, sT, sT2))
    a("v_lshl_add_u32 v11, v12, 1, %s" % sT)
    a("v_mul_u32_u24 v11, 896, v11")
    a("v_lshl_add_u32 v11, v7, 4, v11")
    a("s_lshl_b32 %s, %s, 7" % (sT, sCB))
    S = 228
    for i in range(4):
        a("v_lshlrev_b32 v%d, 16, v%d" % (244 + 2 * i, HR + i))
        a("v_and_b32 v%d, 0xffff0000, v%d" % (245 + 2 * i, HR + i))
    a("s_waitcnt lgkmcnt(0)")
    a("s_barrier")
    RD = 144
    for p in range(8):
        a("ds_read_b128 %s, v10 offset:%d" % (vr(RD + 8 * p), p * 4096))
        a("ds_read_b128 %s, v10 offset:%d" % (vr(RD + 8 * p + 4), p * 4096 + 256))
    for p in range(8):
        for i in range(8):
            a("v_add_f32 v%d, v%d, v%d" % (244 + i, 244 + i, RD + 8 * p + i))
    for i in range(4):
        a("v_cvt_pk_bf16_f32 v%d, v%d, v%d" % (S + i, 244 + 2 * i, 245 + 2 * i))
    a("buffer_store_dwordx4 %s, v11, %s, %s offen" % (vr(S), SOUT, sT))


HEADER = open("cdna_kernels/%s.s.ref" % NAME).read().split("; Override launch")[0]


def kd(name):
    return """.amdhsa_kernel %s
  .amdhsa_next_free_vgpr 256
  .amdhsa_next_free_sgpr 102
  .amdhsa_accum_offset 256
  .amdhsa_group_segment_fixed_size 0
  .amdhsa_kernarg_size 80
  .amdhsa_user_sgpr_count 2
  .amdhsa_user_sgpr_kernarg_segment_ptr 1
  .amdhsa_system_sgpr_workgroup_id_x 1
.end_amdhsa_kernel
""" % name


def build_multi(sc=""):
    ks = [("pa_kernel", phase_A, 256), ("pb_kernel", phase_B, 224), ("pc_kernel", phase_C, 224), ("pd_kernel", phase_D, 224)]
    out = HEADER
    for n, _, g in ks:
        out += "; @launch kernel=%s grid=(%d,1,1) block=(512,1,1) lds=163840\n" % (n, g)
    out += '.amdgcn_target "amdgcn-amd-amdhsa--gfx950"\n.text\n'
    for n, f, g in ks:
        a = Asm()
        prologue(a, g)
        f(a, sc)
        a("Lend:")
        a("s_endpgm")
        body = a.render().replace("Lend", "Lend_" + n)
        out += ".globl %s\n.p2align 8\n.type %s,@function\n%s:\n%s" % (n, n, n, body)
    out += '.section .rodata,"a"\n'
    for n, _, _ in ks:
        out += ".p2align 6\n" + kd(n)
    return out


if __name__ == "__main__":
    dst = sys.argv[1] if len(sys.argv) > 1 else "cdna_kernels/%s.s" % NAME
    open(dst, "w").write(build_multi())
    print("wrote", dst)
```

```python
import sys, struct
sys.path.insert(0, "dev")
from asmlib import Asm, Ins

NAME = "sequential_preLN__sliding_local_dilated__glu_gated_glu__prompt"

WS_O = 0
WS_H = 2 << 20
WS_ST = 4 << 20
WS_HH = 8 << 20
WS_FA = 16 << 20
WS_FB = WS_FA + 8192
WS_FC = WS_FA + 16384
WS_TS = 20 << 20
WS_SIZE = 32 << 20

SX, SWQKV, SWO, SWG, SWU, SWD, SOUT, SWS, SDBG = [("s[%d:%d]" % (b, b + 3)) for b in range(8, 44, 4)]
sW, sXC, sJ, sNONCE = "s44", "s45", "s46", "s47"
sT, sT2, sT3 = "s55", "s56", "s57"
sW1024 = "s53"
sRB, sCB, sRQ, sFS = "s84", "s85", "s86", "s87"
SC = " sc1"
LOG2E = 1.4426950408889634
STAMPS = False
OPT = set()
NSTAMP = [0]
ASPACE = 3


def f2u(x):
    return struct.unpack("<I", struct.pack("<f", x))[0]


def vr(b, n=4):
    return "v[%d:%d]" % (b, b + n - 1)


def mfma(acc, A, B, C=None):
    return "v_mfma_f32_16x16x32_bf16 %s, %s, %s, %s" % (vr(acc), vr(A), vr(B), vr(acc) if C is None else C)


def raw(a, text):
    for line in text.split("\n"):
        line = line.strip()
        if not line:
            continue
        if line.endswith(":"):
            a.items.append(("l", line))
        else:
            a.items.append(("i", Ins(line)))


def stamp(a, name):
    if STAMPS:
        i = NSTAMP[0]
        NSTAMP[0] += 1
        a("; STAMP %d %s" % (i, name))
        a("s_memrealtime s[100:101]")
        a("s_waitcnt lgkmcnt(0)")
        a("v_writelane_b32 v15, s100, %d" % i)


def stamp_flush(a):
    if STAMPS:
        a("s_lshl_b32 s3, s2, 3")
        a("s_add_u32 s3, s3, %s" % sW)
        a("s_lshl_b32 s3, s3, 8")
        a("s_add_u32 s3, s3, %d" % WS_TS)
        a("v_lshlrev_b32 v7, 2, v1")
        a("buffer_store_dword v15, v7, %s, s3 offen" % SWS)


def xg_reduce_multi(a, op, xs, ts):
    for step in ("v_permlane32_swap_b32", "v_permlane16_swap_b32"):
        for x, t in zip(xs, ts):
            a("v_mov_b32 %s, %s" % (t, x))
        for x, t in zip(xs, ts):
            a("%s %s, %s" % (step, t, x))
        for x, t in zip(xs, ts):
            a("%s %s, %s, %s" % (op, x, x, t))


def publish(a, soff):
    L = a.label("pub")
    raw(a, "s_cmp_lg_u32 %s, 0" % sW)
    raw(a, "s_cbranch_scc1 %s" % L)
    raw(a, "s_mov_b64 exec, 1")
    raw(a, "v_mov_b32 v6, %s" % sNONCE)
    raw(a, "v_mov_b32 v7, 0")
    raw(a, "buffer_store_dword v6, v7, %s, %s offen sc1" % (SWS, soff))
    raw(a, "s_mov_b64 exec, -1")
    raw(a, "%s:" % L)


def poll(a, soff, mask_lo, mask_hi):
    L, Lp, Ld = a.label("skip"), a.label("poll"), a.label("done")
    raw(a, "s_cmp_lg_u32 %s, 0" % sW)
    raw(a, "s_cbranch_scc1 %s" % L)
    raw(a, "v_lshlrev_b32 v7, 2, v1")
    raw(a, "s_mov_b32 exec_lo, 0x%x" % mask_lo)
    raw(a, "s_mov_b32 exec_hi, 0x%x" % mask_hi)
    raw(a, "s_mov_b32 s3, 20000")
    raw(a, "%s:" % Lp)
    raw(a, "buffer_load_dword v6, v7, %s, %s offen sc1" % (SWS, soff))
    raw(a, "s_waitcnt vmcnt(0)")
    raw(a, "v_cmp_ne_u32 vcc, %s, v6" % sNONCE)
    raw(a, "s_sub_u32 s3, s3, 1")
    raw(a, "s_cbranch_scc1 %s" % Ld)
    raw(a, "s_nop 1")
    raw(a, "s_cmp_lg_u64 vcc, 0")
    raw(a, "s_cbranch_scc1 %s" % Lp)
    raw(a, "%s:" % Ld)
    raw(a, "s_mov_b64 exec, -1")
    raw(a, "%s:" % L)
    a("s_barrier")


def prologue(a):
    a("s_load_dwordx16 s[64:79], s[0:1], 0")
    a("s_load_dwordx4 s[80:83], s[0:1], 64")
    a("s_memrealtime s[4:5]")
    a("s_cmp_ge_u32 s2, 256")
    a("s_cbranch_scc1 Lend")
    a("s_getpc_b64 s[6:7]")
    a("v_and_b32 v1, 63, v0")
    a("v_lshrrev_b32 v6, 6, v0")
    a("v_lshrrev_b32 v2, 4, v1")
    a("v_readfirstlane_b32 %s, v6" % sW)
    a("v_and_b32 v3, 15, v0")
    a("v_bfe_u32 v4, v0, 2, 2")
    a("v_and_b32 v5, 3, v0")
    if STAMPS:
        a("v_mov_b32 v15, 0")
    a("s_and_b32 %s, s2, 7" % sXC)
    a("s_lshr_b32 %s, s2, 3" % sJ)
    a("v_lshlrev_b32 v6, 7, v0")
    a("v_min_u32 v6, CODE_BYTES, v6")
    a("s_cmp_gt_u32 %s, 3" % sW)
    a("s_cbranch_scc1 Lnopf")
    raw(a, "global_load_dword v7, v6, s[6:7]")
    a("Lnopf:")
    sizes = {8: 2048 * 896, 12: 448 * 2688, 16: 448 * 896, 20: 448 * 3584, 24: 448 * 3584,
             28: 1792 * 896, 32: 2048 * 896, 36: WS_SIZE, 40: 256}
    for b, sz in sizes.items():
        a("s_mov_b32 s%d, %d" % (b + 2, sz))
        a("s_mov_b32 s%d, 0x00020000" % (b + 3))
    a("s_lshl_b32 %s, %s, 10" % (sW1024, sW))


def prologue2(a):
    a("s_waitcnt lgkmcnt(0)")
    src = {8: 64, 12: 66, 16: 68, 20: 72, 24: 74, 28: 76, 32: 78, 36: 82, 40: 80}
    for b, s in src.items():
        a("s_mov_b64 s[%d:%d], s[%d:%d]" % (b, b + 1, s, s + 1))


def nonce_publish(a):
    a("s_or_b32 s3, s2, %s" % sW)
    a("s_cmp_lg_u32 s3, 0")
    a("s_cbranch_scc1 Lnononce")
    raw(a, "s_or_b32 s3, s4, 1")
    raw(a, "v_mov_b32 v8, s3")
    raw(a, "v_mov_b32 v9, 0")
    raw(a, "s_mov_b64 exec, 1")
    raw(a, "buffer_store_dword v8, v9, %s, 0 offen sc1" % SDBG)
    raw(a, "s_mov_b64 exec, -1")
    a("Lnononce:")


def nonce_fetch(a, vN):
    L, Lp = a.label("nskip"), a.label("npoll")
    a("v_readfirstlane_b32 %s, %s" % (sNONCE, vN))
    raw(a, "s_nop 1")
    raw(a, "s_cmp_lg_u32 %s, 0" % sNONCE)
    raw(a, "s_cbranch_scc1 %s" % L)
    raw(a, "s_mov_b32 s3, 20000")
    raw(a, "v_mov_b32 v7, 0")
    raw(a, "%s:" % Lp)
    raw(a, "buffer_load_dword v6, v7, %s, 0 offen sc1" % SDBG)
    raw(a, "s_waitcnt vmcnt(0)")
    raw(a, "v_readfirstlane_b32 %s, v6" % sNONCE)
    raw(a, "s_sub_u32 s3, s3, 1")
    raw(a, "s_cbranch_scc1 %s" % L)
    raw(a, "s_nop 1")
    raw(a, "s_cmp_eq_u32 %s, 0" % sNONCE)
    raw(a, "s_cbranch_scc1 %s" % Lp)
    raw(a, "%s:" % L)
    raw(a, "s_nop 3")


A_SLOT = 34816
A_XOFF = 24576
A_EX = 4 * A_SLOT
A_CS = A_EX + 20480
R0, R1, R2 = 0, 57344, 139264
B_RB = R2
C_ST = 114688

vWO_DMA, vWC_DMA, vWC_TR = "v176", "v177", 178
WGF, WUF = 80, 136
WOF = 128


def roles_BCD(a):
    a("s_mul_i32 %s, %s, 37" % (sRB, sJ))
    a("s_lshr_b32 %s, %s, 8" % (sRB, sRB))
    a("s_mul_i32 %s, %s, 7" % (sCB, sRB))
    a("s_sub_u32 %s, %s, %s" % (sCB, sJ, sCB))
    a("s_lshr_b32 %s, %s, 1" % (sT, sXC))
    a("s_lshl_b32 %s, %s, 2" % (sT, sT))
    a("s_add_u32 %s, %s, %s" % (sRQ, sRB, sT))
    a("s_and_b32 %s, %s, 1" % (sT, sXC))
    a("s_mul_i32 %s, %s, 7" % (sT, sT))
    a("s_add_u32 %s, %s, %s" % (sFS, sCB, sT))
    a("s_lshl_b32 %s, %s, 2" % (sT, sXC))
    a("s_add_u32 %s, %s, %s" % (sRB, sRB, sT))


def wo_dma(a, i0, i1, vaddr):
    for i in range(i0, i1):
        a("s_add_u32 m0, %s, %d" % (sW1024, R0 + i * 8192))
        a("s_mov_b32 %s, %d" % (sT, i * 64 * 896))
        a("buffer_load_dwordx4 %s, %s, %s offen lds" % (vaddr, SWO, sT), tag="wo")


def wc_dma(a, slabs, vaddr, tag):
    for (s, base) in slabs:
        a("s_add_u32 m0, %s, %d" % (sW1024, base))
        a("s_mov_b32 %s, %d" % (sT, (s % 14) * 114688))
        a("buffer_load_dwordx4 %s, %s, %s offen lds" % (vaddr, SWG if s < 14 else SWU, sT), tag=tag)


def wc_read(slabs, vtr):
    out = []
    for (s, base) in slabs:
        for hf in range(2):
            out.append("ds_read_b64_tr_b16 %s, v%d offset:%d" % (vr(WGF + 4 * s + 2 * hf, 2), vtr + base // 57344, base % 57344 + hf * 1024))
    return out


def phase_A(a):
    sTB, sHP, sT0, sTI, sHD = "s48", "s49", "s50", "s51", "s52"
    sW256 = "s54"
    sHM = "s[58:59]"
    a("; ---------------- phase A ----------------")
    a("s_lshl_b32 %s, %s, 2" % (sTB, sXC))
    a("s_lshr_b32 %s, %s, 3" % (sT, sJ))
    a("s_add_u32 %s, %s, %s" % (sTB, sTB, sT))
    a("s_and_b32 %s, %s, 7" % (sHP, sJ))
    a("s_lshl_b32 %s, %s, 6" % (sT0, sTB))
    a("s_and_b32 %s, %s, 3" % (sTI, sW))
    a("s_lshr_b32 %s, %s, 2" % (sHD, sW))
    a("s_lshl_b32 %s, %s, 8" % (sW256, sW))
    vAX, vAH, vAW = "v16", "v17", "v18"
    a("v_lshrrev_b32 v12, 3, v1")
    a("v_and_b32 v13, 7, v1")
    a("s_and_b32 %s, %s, 1" % (sT, sW))
    a("s_lshl_b32 %s, %s, 2" % (sT, sT))
    a("v_and_b32 v8, 2, v12")
    a("v_or_b32 v8, %s, v8" % sT)
    a("v_xor_b32 v8, v8, v13")
    a("v_min_u32 v8, 6, v8")
    a("s_lshl_b32 %s, %s, 3" % (sT, sW))
    a("v_add_u32 v9, %s, v12" % sT)
    a("v_mul_u32_u24 v9, 2688, v9")
    a("s_mul_i32 %s, %s, 112" % (sT, sHP))
    a("v_lshl_add_u32 v9, v8, 4, v9")
    a("v_add_u32 %s, %s, v9" % (vAW, sT))
    a("s_lshl_b32 %s, %s, 5" % (sT, sHD))
    a("s_add_u32 %s, %s, %s" % (sT, sT, sT0))
    a("s_bfe_u32 %s, %s, 0x10001" % (sT2, sW))
    a("s_add_u32 %s, %s, %s" % (sT, sT, sT2))
    a("s_and_b32 %s, %s, 1" % (sT2, sW))
    a("s_lshl_b32 %s, %s, 4" % (sT2, sT2))
    a("s_add_u32 %s, %s, %s" % (sT, sT, sT2))
    a("v_lshl_add_u32 v9, v12, 1, %s" % sT)
    a("v_mul_u32_u24 v9, 896, v9")
    a("s_lshr_b32 %s, %s, 2" % (sT2, sT2))
    a("v_lshrrev_b32 v8, 1, v12")
    a("v_add_u32 v8, %s, v8" % sT2)
    a("v_xor_b32 v8, v8, v13")
    a("v_lshl_add_u32 %s, v8, 4, v9" % vAX)
    a("s_lshl_b32 %s, %s, 2" % (sT, sTI))
    a("s_add_u32 %s, %s, %s" % (sT, sT, sT0))
    a("s_add_u32 %s, %s, %s" % (sT, sT, sHD))
    a("s_sub_u32 %s, %s, 16" % (sT, sT))
    a("v_and_b32 v8, 1, v12")
    a("v_lshl_add_u32 v9, v8, 1, %s" % sT)
    a("v_max_i32 v9, 0, v9")
    a("v_mul_u32_u24 v9, 896, v9")
    a("v_xor_b32 v8, %s, v13" % sW)
    a("v_lshl_add_u32 %s, v8, 4, v9" % vAH)
    a("s_mov_b32 s59, 0")
    a("s_cmp_eq_u32 %s, 0" % sW)
    a("s_mov_b32 s58, 0xffff")
    a("s_cselect_b32 s58, 0xff00, s58")
    prologue2(a)

    def slot(ch):
        return (ch + 1) % 4

    def dma_groups(ch):
        sb = slot(ch) * A_SLOT
        tg = ("A", ch)
        gs = []
        for m in range(3):
            g = [("s_mov_b32 s64, %d" % (ch * 172032), None)] if m == 0 else []
            g += [("s_add_u32 m0, %s, %d" % (sW1024, sb + m * 8192 - m * 896), None),
                  ("buffer_load_dwordx4 %s, %s, s64 offen offset:%d lds" % (vAW, SWQKV, m * 896), tg)]
            gs.append(g)
        gs.append([("s_add_u32 m0, %s, %d" % (sW1024, sb + A_XOFF - ch * 128), None),
                   ("buffer_load_dwordx4 %s, %s, 0 offen offset:%d lds" % (vAX, SX, ch * 128), tg)])
        gs.append([("s_add_u32 m0, %s, %d" % (sW256, sb + A_XOFF + 8192 - ch * 128), None),
                   ("s_mov_b64 exec, %s" % sHM, None),
                   ("buffer_load_dwordx4 %s, %s, 0 offen offset:%d lds" % (vAH, SX, ch * 128), tg),
                   ("s_mov_b64 exec, -1", None)])
        return gs

    def emit_group(g):
        for (x, tg) in g:
            a(x, tag=tg)

    def dma(ch):
        for g in dma_groups(ch):
            emit_group(g)

    stamp(a, "A start")
    dma(0)
    nonce_publish(a)
    a("s_barrier")
    dma(1)
    stamp(a, "A dma issued")
    ONES = 20
    for i in range(4):
        a("v_mov_b32 v%d, 0x3f803f80" % (ONES + i))
    a("v_and_b32 v8, 3, v12")
    a("v_mul_u32_u24 v8, %d, v8" % A_SLOT)
    a("v_lshl_add_u32 v8, v13, 4, v8")
    a("ds_write_b128 v8, %s offset:%d" % (vr(ONES), A_XOFF + 8192))
    aX0, aX1, aXH0, aXH1, aW0, aW1, aWH = range(24, 31)
    a("v_bfe_u32 v8, v3, 1, 3")
    a("v_xor_b32 v8, v8, v2")
    a("v_lshlrev_b32 v8, 4, v8")
    a("v_lshl_add_u32 v8, v3, 7, v8")
    a("v_add_u32 v%d, %d, v8" % (aXH0, A_XOFF + 8192))
    a("v_xor_b32 v%d, 64, v%d" % (aXH1, aXH0))
    a("s_lshl_b32 %s, %s, 11" % (sT, sTI))
    a("s_add_u32 %s, %s, %d" % (sT, sT, A_XOFF))
    a("v_add_u32 v%d, %s, v8" % (aX0, sT))
    a("v_xor_b32 v%d, 64, v%d" % (aX1, aX0))
    a("v_and_b32 v8, 2, v4")
    a("v_and_b32 v9, 1, v2")
    a("v_lshl_or_b32 v8, v9, 2, v8")
    a("v_lshlrev_b32 v8, 4, v8")
    a("v_lshl_add_u32 v9, v2, 3, v4")
    a("v_lshlrev_b32 v9, 7, v9")
    a("s_mul_i32 %s, %s, 56" % (sT, sHD))
    a("v_lshl_add_u32 v10, v5, 3, %s" % sT)
    a("v_xor_b32 v11, v10, v8")
    a("v_add_u32 v%d, v11, v9" % aW0)
    a("v_add_u32 v10, 32, v10")
    a("v_xor_b32 v11, v10, v8")
    a("v_add_u32 v%d, v11, v9" % aW1)
    a("s_and_b32 %s, %s, 1" % (sT, sTI))
    a("s_cmp_eq_u32 %s, 1" % sT)
    a("s_cselect_b64 vcc, -1, 0")
    a("s_lshr_b32 %s, %s, 1" % (sT, sTI))
    a("s_add_u32 %s, %s, 1" % (sT, sT))
    a("s_lshl_b32 %s, %s, 13" % (sT, sT))
    a("v_cndmask_b32 v8, v%d, v%d, vcc" % (aW0, aW1))
    a("v_add_u32 v%d, %s, v8" % (aWH, sT))
    for i in range(7):
        a("v_add_u32 v%d, %d, v%d" % (31 + i, 2 * A_SLOT, 24 + i))
    ACC = 40
    aH, cQ0, cQ1, aRS, aGR, aGH = ACC + 24, ACC + 28, ACC + 32, ACC + 36, ACC + 40, ACC + 44
    BP, BC = 88, 92
    a("v_lshlrev_b32 v8, 2, v2")
    a("v_sub_u32 v9, v3, v8")
    a("s_lshl_b32 %s, %s, 2" % (sT, sTB))
    a("s_add_u32 %s, %s, %s" % (sT, sT, sTI))
    a("s_cmp_lt_u32 %s, 2" % sT)
    a("s_cselect_b32 %s, 0x10000, 0" % sT2)
    a("v_mov_b32 v11, 0x%x" % f2u(-1e30))
    for rr in range(4):
        a("v_subrev_u32 v10, %d, v9" % rr)
        a("v_cmp_gt_u32 vcc, 8, v10")
        a("v_cndmask_b32 v%d, v11, 0, vcc" % (BC + rr))
        a("v_add_u32 v10, 16, v10")
        a("v_add_u32 v10, %s, v10" % sT2)
        a("v_cmp_gt_u32 vcc, 8, v10")
        a("v_cndmask_b32 v%d, v11, 0, vcc" % (BP + rr))
    a("v_cmp_eq_u32 s[60:61], 1, v5")
    a("v_cmp_eq_u32 s[62:63], 2, v5")
    a("v_cmp_eq_u32 s[88:89], 3, v5")
    a("v_cmp_eq_u32 s[90:91], v4, v2")
    a("v_cmp_eq_u32 s[92:93], 0, v2")
    a("v_cmp_gt_u32 s[94:95], 3, v2")
    a("s_lshl_b32 %s, %s, 6" % (sT, sW))
    a("s_add_u32 %s, %s, %d" % (sT, sT, A_CS))
    a("v_lshl_add_u32 v168, v2, 4, %s" % sT)
    a("s_lshl_b32 %s, %s, 8" % (sT, sHD))
    a("s_add_u32 %s, %s, %d" % (sT, sT, A_CS))
    a("v_lshl_add_u32 v169, v2, 4, %s" % sT)
    a("s_lshl_b32 %s, %s, 9" % (sT, sW))
    a("s_add_u32 %s, %s, %d" % (sT, sT, A_EX + 4 * 4096))
    a("v_lshl_add_u32 v170, v1, 3, %s" % sT)
    a("s_lshl_b32 %s, %s, 12" % (sT, sTI))
    a("s_lshl_b32 %s, %s, 11" % (sT2, sHD))
    a("s_add_u32 %s, %s, %s" % (sT, sT, sT2))
    a("s_add_u32 %s, %s, %d" % (sT, sT, A_EX))
    a("v_lshl_add_u32 v171, v1, 3, %s" % sT)
    a("v_lshl_add_u32 v9, v2, 2, v4")
    a("v_lshl_add_u32 v10, v5, 4, v9")
    a("v_lshl_add_u32 v172, v10, 3, %s" % sT)
    a("s_sub_u32 %s, %s, 8192" % (sT, sT))
    a("s_add_u32 %s, %s, %d" % (sT2, sT2, A_EX + 4 * 4096))
    a("s_lshl_b32 s97, %s, 3" % sTI)
    a("s_cmp_lt_u32 %s, 2" % sTI)
    a("s_cselect_b32 s96, 7, 15")
    a("s_cselect_b32 s97, s97, 0")
    a("s_cselect_b32 %s, %s, %s" % (sT, sT2, sT))
    a("v_and_b32 v9, s96, v9")
    a("v_add_u32 v9, s97, v9")
    a("v_lshl_add_u32 v10, v5, 4, v9")
    a("v_lshl_add_u32 v173, v10, 3, %s" % sT)
    a("v_and_b32 v9, s96, v3")
    a("v_add_u32 v9, s97, v9")
    a("v_lshl_add_u32 v10, v2, 4, v9")
    a("v_lshl_add_u32 v174, v10, 3, %s" % sT)
    a("s_lshl_b32 %s, %s, 2" % (sT, sTB))
    a("s_add_u32 %s, %s, %s" % (sT, sT, sTI))
    a("s_lshl_b32 %s, %s, 4" % (sT, sT))
    a("s_lshl_b32 %s, %s, 1" % (sT2, sHP))
    a("s_add_u32 %s, %s, %s" % (sT, sT, sT2))
    a("s_add_u32 %s, %s, %s" % (sT, sT, sHD))
    a("s_lshl_b32 s98, %s, 10" % sT)
    a("s_lshl_b32 %s, %s, 7" % (sT, sTB))
    a("s_lshl_b32 %s, %s, 2" % (sT2, sHP))
    a("s_add_u32 %s, %s, %s" % (sT, sT, sT2))
    a("s_add_u32 s99, %s, %d" % (sT, WS_FA))
    roles_BCD(a)
    a("v_and_b32 v8, 2, v12")
    a("v_lshlrev_b32 v8, 1, v8")
    a("v_xor_b32 v8, v8, v13")
    a("s_lshl_b32 %s, %s, 3" % (sT, sW))
    a("v_add_u32 v9, %s, v12" % sT)
    a("v_mul_u32_u24 v9, 896, v9")
    a("v_lshl_add_u32 v9, v8, 4, v9")
    a("s_lshl_b32 %s, %s, 7" % (sT, sCB))
    a("v_add_u32 %s, %s, v9" % (vWO_DMA, sT))
    a("s_bfe_u32 %s, %s, 0x10001" % (sT, sW))
    a("s_lshl_b32 %s, %s, 3" % (sT, sT))
    a("v_lshl_or_b32 v8, v2, 1, %s" % sT)
    a("v_xor_b32 v8, v8, v3")
    a("s_lshl_b32 %s, %s, 2" % (sT, sW))
    a("v_add_u32 v9, %s, v2" % sT)
    a("v_mul_u32_u24 v9, 3584, v9")
    a("v_lshl_add_u32 v9, v8, 4, v9")
    a("s_lshl_b32 %s, %s, 8" % (sT, sFS))
    a("v_add_u32 %s, %s, v9" % (vWC_DMA, sT))
    FB = [96, 132]

    def reads(n):
        ch, ks = n >> 1, n & 1
        sl = slot(ch)
        ab = 24 if sl < 2 else 31
        ib = (sl & 1) * A_SLOT
        fb = FB[ks]
        out = []
        out.append("ds_read_b128 %s, v%d offset:%d" % (vr(fb + 4), ab + 2 + ks, ib))
        for hf in range(2):
            out.append("ds_read_b64_tr_b16 %s, v%d offset:%d" % (vr(fb + 32 + 2 * hf, 2), ab + 6, ib + ks * 4096 + hf * 512))
        out.append("ds_read_b128 %s, v%d offset:%d" % (vr(fb), ab + ks, ib))
        for t in (2, 3, 4, 5, 0, 1):
            m, dt = t >> 1, t & 1
            for hf in range(2):
                out.append("ds_read_b64_tr_b16 %s, v%d offset:%d" % (vr(fb + 8 + 4 * t + 2 * hf, 2), ab + 4 + dt, ib + m * 8192 + ks * 4096 + hf * 512))
        return out

    def compute(n):
        fb = FB[n & 1]
        z = "0" if n == 0 else None
        out = [mfma(aGH, fb + 4, fb + 4, z), mfma(aH, fb + 32, fb + 4, z), mfma(aGR, fb, fb, z), mfma(aRS, ONES, fb, z)]
        for t in (2, 3, 4, 5):
            out.append(mfma(ACC + 4 * t, fb + 8 + 4 * t, fb, z))
        out += [mfma(ACC, fb + 8, fb, z), mfma(cQ0, fb + 8, ONES, z), mfma(ACC + 4, fb + 12, fb, z), mfma(cQ1, fb + 12, ONES, z)]
        return out

    def wo_groups(i0, i1):
        return [[("s_add_u32 m0, %s, %d" % (sW1024, R0 + i * 8192), None),
                 ("s_mov_b32 s64, %d" % (i * 64 * 896), None),
                 ("buffer_load_dwordx4 %s, %s, s64 offen lds" % (vWO_DMA, SWO), "wo")] for i in range(i0, i1)]

    a.wait_tag(("A", 0), lg0=True)
    a("s_barrier")
    stamp(a, "A ch0 landed")
    for x in reads(0):
        a(x)
    pend = dma_groups(2)
    for n in range(14):
        rd = []
        if n + 1 < 14:
            if (n + 1) % 2 == 0:
                ch = (n + 1) // 2
                for g in pend:
                    emit_group(g)
                pend = []
                a.wait_tag(("A", ch))
                a("s_barrier")
                if ch == 6:
                    stamp(a, "A ch6 landed")
                if ch <= 4:
                    pend = dma_groups(ch + 2)
                if ch == 4:
                    pend.append([("v_mov_b32 v8, 0", None), ("buffer_load_dword v175, v8, %s, 0 offen sc1" % SDBG, None)])
                if ch == 5:
                    pend = wo_groups(0, 4)
                if ch == 6:
                    pend = wo_groups(4, 7)
            rd = reads(n + 1)
        for i, x in enumerate(compute(n)):
            a(x)
            for _ in range(2 if i < 4 else 1):
                if rd:
                    a(rd.pop(0))
            if pend and i % ASPACE == ASPACE - 1:
                emit_group(pend.pop(0))
        for x in rd:
            a(x)
    for g in pend:
        emit_group(g)

    stamp(a, "A loop done")
    T = 96
    for rr in range(4):
        a("v_mov_b32_dpp v%d, v%d row_newbcast:0 row_mask:0xf bank_mask:0xf" % (T + rr, aH + rr))
    a("ds_write_b128 v168, %s" % vr(T))
    for (acc, d) in ((aGH, "v9"), (aGR, "v8")):
        a("v_cndmask_b32 %s, v%d, v%d, s[60:61]" % (d, acc, acc + 1))
        a("v_cndmask_b32 %s, %s, v%d, s[62:63]" % (d, d, acc + 2))
        a("v_cndmask_b32 %s, %s, v%d, s[88:89]" % (d, d, acc + 3))
        a("v_cndmask_b32 %s, 0, %s, s[90:91]" % (d, d))
    a("v_cndmask_b32 v10, 0, v%d, s[92:93]" % aGH)
    a("s_waitcnt lgkmcnt(0)")
    a("s_barrier")
    CS = T + 4
    for t in range(4):
        a("ds_read_b128 %s, v169 offset:%d" % (vr(CS + 4 * t), 64 * t))
    xg_reduce_multi(a, "v_add_f32", ["v8", "v9", "v10"], ["v11", "v12", "v13"])
    a("s_mov_b32 %s, 0x%x" % (sT, f2u(1.0 / 448)))
    a("v_mov_b32 v12, 0x%x" % f2u(1e-5))
    SO, SH = 116, 118
    a("v_mul_f32 v%d, -%s, v10" % (SH, sT))
    a("v_mul_f32 v%d, -%s, v%d" % (SO, sT, aRS))
    a("v_fma_f32 v9, v9, %s, v12" % sT)
    a("v_fma_f32 v8, v8, %s, v12" % sT)
    a("v_fma_f32 v9, -v%d, v%d, v9" % (SH, SH))
    a("v_fma_f32 v8, -v%d, v%d, v8" % (SO, SO))
    a("v_max_f32 v9, v9, v12")
    a("v_max_f32 v8, v8, v12")
    a("v_rsq_f32 v%d, v9" % (SH + 1))
    a("v_rsq_f32 v%d, v8" % (SO + 1))

    def center(acc, cs, st):
        for rr in range(4):
            a("v_fmac_f32 v%d, v%d, v%d" % (acc + rr, st, cs + rr))

    def scale(acc, st):
        for rr in range(4):
            a("v_mul_f32 v%d, v%d, v%d" % (acc + rr, st + 1, acc + rr))

    def pack(dst, acc):
        a("v_cvt_pk_bf16_f32 v%d, v%d, v%d" % (dst, acc, acc + 1))
        a("v_cvt_pk_bf16_f32 v%d, v%d, v%d" % (dst + 1, acc + 2, acc + 3))

    center(aH, T, SH)
    for t in range(4):
        center(ACC + 8 + 4 * t, CS + 4 * t, SO)
    scale(aH, SH)
    pack(T, aH)
    a("ds_write_b64 v170, %s" % vr(T, 2))
    PK = 120
    for t in range(4):
        scale(ACC + 8 + 4 * t, SO)
        pack(PK + 2 * t, ACC + 8 + 4 * t)
        a("ds_write_b64 v171, %s offset:%d" % (vr(PK + 2 * t, 2), 512 * t))
    QP = 100
    center(ACC, cQ0, SO)
    center(ACC + 4, cQ1, SO)
    a("s_waitcnt lgkmcnt(0)")
    a("s_barrier")
    KP, V0, V1 = 104, 108, 112
    a("ds_read_b64 %s, v174" % vr(KP, 2))
    a("ds_read_b64 %s, v174 offset:512" % vr(KP + 2, 2))
    a("ds_read_b64_tr_b16 %s, v173 offset:1024" % vr(V0, 2))
    a("ds_read_b64_tr_b16 %s, v172 offset:1024" % vr(V0 + 2, 2))
    a("ds_read_b64_tr_b16 %s, v173 offset:1536" % vr(V1, 2))
    a("ds_read_b64_tr_b16 %s, v172 offset:1536" % vr(V1 + 2, 2))
    pack(QP, ACC)
    pack(QP + 2, ACC + 4)
    a("v_cndmask_b32 v%d, 0, v%d, s[94:95]" % (QP + 2, QP + 2))
    a("v_cndmask_b32 v%d, 0, v%d, s[94:95]" % (QP + 3, QP + 3))
    a(mfma(BC, PK, QP))
    a(mfma(BP, KP, QP))
    a("v_mul_f32 v13, 0x%x, v%d" % (f2u(28 ** -0.5 * LOG2E), SO + 1))
    a("v_max3_f32 v8, v%d, v%d, v%d" % (BC, BC + 1, BC + 2))
    a("v_max3_f32 v9, v%d, v%d, v%d" % (BC + 3, BP, BP + 1))
    a("v_max3_f32 v8, v8, v%d, v%d" % (BP + 2, BP + 3))
    a("v_max_f32 v8, v8, v9")
    xg_reduce_multi(a, "v_max_f32", ["v8"], ["v9"])
    a("v_mul_f32 v8, v13, v8")
    for i in range(8):
        a("v_fma_f32 v%d, v%d, v13, -v8" % (BP + i, BP + i))
    for i in range(8):
        a("v_exp_f32 v%d, v%d" % (BP + i, BP + i))
    a("v_add_f32 v9, v%d, v%d" % (BP, BP + 1))
    a("v_add_f32 v10, v%d, v%d" % (BP + 2, BP + 3))
    a("v_add_f32 v11, v%d, v%d" % (BP + 4, BP + 5))
    a("v_add_f32 v12, v%d, v%d" % (BP + 6, BP + 7))
    a("v_add_f32 v9, v9, v10")
    a("v_add_f32 v11, v11, v12")
    a("v_add_f32 v9, v9, v11")
    xg_reduce_multi(a, "v_add_f32", ["v9"], ["v10"])
    a("v_rcp_f32 v9, v9")
    for i in range(8):
        a("v_mul_f32 v%d, v9, v%d" % (BP + i, BP + i))
    P = 96
    for i in range(4):
        a("v_cvt_pk_bf16_f32 v%d, v%d, v%d" % (P + i, BP + 2 * i, BP + 2 * i + 1))
    O0, O1 = 40, 44
    a(mfma(O0, V0, P, "0"))
    a(mfma(O1, V1, P, "0"))
    a("v_lshlrev_b32 v14, 4, v1")
    nonce_fetch(a, "v175")
    OS = 124
    pack(OS, O0)
    pack(OS + 2, O1)
    a("v_cndmask_b32 v%d, 0, v%d, s[94:95]" % (OS + 2, OS + 2))
    a("v_cndmask_b32 v%d, 0, v%d, s[94:95]" % (OS + 3, OS + 3))
    a("buffer_store_dwordx4 %s, v14, %s, s98 offen%s" % (vr(OS), SWS, SC), tag="ost")
    stamp(a, "A o stored")


G1 = [(s, R1 + 8192 * s) for s in range(10)]
G2 = [(10 + i, R0 + 8192 * i) for i in range(7)]
G3 = [(17 + i, R1 + 8192 * i) for i in range(10)] + [(27, R2 + 16384)]


def phase_B(a):
    sTT, sKH, sTAU, sU = "s50", "s51", "s52", "s54"
    a("; ---------------- A->B ----------------")
    a("s_cmp_lt_u32 %s, 28" % sJ)
    a("s_cbranch_scc1 LgoB")
    raw(a, "s_waitcnt vmcnt(0)")
    raw(a, "s_barrier")
    publish(a, "s99")
    raw(a, "s_branch Lfin")
    a("LgoB:")
    a("v_mov_b32 v16, %s" % vWC_DMA)
    wc_dma(a, G1[:4], "v16", "g1")
    a("s_and_b32 %s, %s, 3" % (sTT, sW))
    a("s_lshr_b32 %s, %s, 2" % (sKH, sW))
    a("s_lshl_b32 %s, %s, 2" % (sTAU, sRB))
    a("s_add_u32 %s, %s, %s" % (sTAU, sTAU, sTT))
    a("v_lshl_add_u32 v8, v2, 2, v4")
    a("s_mul_i32 %s, %s, 224" % (sT, sKH))
    a("v_add_u32 v8, %s, v8" % sT)
    a("v_lshlrev_b32 v8, 7, v8")
    a("v_and_b32 v9, 2, v4")
    a("v_lshlrev_b32 v9, 1, v9")
    a("s_lshl_b32 %s, %s, 2" % (sT, sKH))
    a("v_or_b32 v10, %s, v5" % sT)
    a("v_xor_b32 v10, v10, v9")
    a("v_lshl_add_u32 v24, v10, 4, v8")
    a("v_xor_b32 v25, 64, v24")
    a("v_mov_b32 v9, 2048")
    a("v_cndmask_b32 v9, 0, v9, s[94:95]")
    a("v_add_u32 v26, v24, v9")
    a("v_add_u32 v27, v25, v9")
    a("s_lshr_b32 %s, %s, 1" % (sT, sTAU))
    a("s_lshl_b32 %s, %s, 5" % (sT, sT))
    a("s_and_b32 %s, %s, 1" % (sT2, sTAU))
    a("s_add_u32 %s, %s, %s" % (sT, sT, sT2))
    a("v_lshl_add_u32 v8, v3, 1, %s" % sT)
    a("v_mul_u32_u24 v8, 896, v8")
    a("v_lshl_add_u32 v8, v2, 4, v8")
    a("s_lshl_b32 %s, %s, 1" % (sU, sCB))
    a("s_add_u32 %s, %s, %s" % (sU, sU, sKH))
    a("s_lshl_b32 %s, %s, 6" % (sT3, sU))
    a.wait_tag("ost")
    a("s_barrier")
    publish(a, "s99")
    stamp(a, "A flag")
    XR = 20
    a("buffer_load_dwordx4 %s, v8, %s, %s offen" % (vr(XR), SX, sT3))
    wc_dma(a, G1[4:], "v16", "g1")
    for hh in range(8):
        for t in range(4):
            off = R0 + hh * 3584 + (t & 1) * 8
            a("ds_read_b64_tr_b16 %s, v%d offset:%d" % (vr(WOF + 16 * hh + 4 * t, 2), 24 + (t >> 1), off))
            a("ds_read_b64_tr_b16 %s, v%d offset:%d" % (vr(WOF + 16 * hh + 4 * t + 2, 2), 26 + (t >> 1), off))
    a("v_and_b32 v8, 1, v2")
    a("v_lshl_or_b32 v8, v8, 2, v4")
    a("v_lshlrev_b32 v8, 1, v8")
    a("v_lshrrev_b32 v9, 1, v5")
    a("s_lshl_b32 %s, %s, 1" % (sT, sW))
    a("v_add_u32 v9, %s, v9" % sT)
    a("v_xor_b32 v8, v8, v9")
    a("v_lshl_add_u32 v9, v2, 3, v4")
    a("v_lshlrev_b32 v9, 8, v9")
    a("v_lshl_add_u32 v9, v8, 4, v9")
    a("v_and_b32 v8, 1, v5")
    a("v_lshl_add_u32 v17, v8, 3, v9")
    a("v_add_u32 v18, 57344, v17")
    a("v_add_u32 v19, 114688, v17")
    OF, ACC = 32, 64
    for i in range(4):
        a("v_lshlrev_b32 v%d, 16, v%d" % (ACC + 2 * i, XR + i))
        a("v_and_b32 v%d, 0xffff0000, v%d" % (ACC + 2 * i + 1, XR + i))
    a("s_lshl_b32 %s, %s, 4" % (sT2, sTAU))
    a("s_lshl_b32 %s, %s, 3" % (sT3, sKH))
    a("s_add_u32 %s, %s, %s" % (sT2, sT2, sT3))
    a("s_lshl_b32 %s, %s, 10" % (sT2, sT2))
    a("s_add_u32 %s, %s, 4096" % (sT3, sT2))
    a("s_lshl_b32 %s, %s, 11" % (sT, sW))
    a("s_add_u32 %s, %s, %d" % (sT, sT, B_RB))
    a("v_add_u32 v12, %s, v14" % sT)
    a("s_xor_b32 %s, %s, 4" % (sT, sW))
    a("s_lshl_b32 %s, %s, 11" % (sT, sT))
    a("s_add_u32 %s, %s, %d" % (sT, sT, B_RB))
    a("v_add_u32 v13, %s, v14" % sT)
    a("s_mul_i32 s58, %s, 14" % sTAU)
    a("s_add_u32 s58, s58, %s" % sU)
    a("s_lshl_b32 s59, s58, 7")
    a("s_add_u32 s59, s59, %d" % WS_ST)
    a("s_lshl_b32 s58, s58, 10")
    a("s_add_u32 s58, s58, %d" % WS_H)
    a("s_lshl_b32 s60, %s, 7" % sRB)
    a("s_add_u32 s60, s60, %d" % WS_FA)
    a("s_lshr_b32 s61, %s, 1" % sRB)
    a("s_lshl_b32 s61, s61, 7")
    a("s_and_b32 %s, %s, 1" % (sT, sRB))
    a("s_mul_i32 %s, %s, 28" % (sT, sT))
    a("s_add_u32 s61, s61, %s" % sT)
    a("s_lshl_b32 %s, %s, 2" % (sT, sCB))
    a("s_add_u32 s61, s61, %s" % sT)
    a("s_add_u32 s61, s61, %d" % WS_FB)
    a("v_lshlrev_b32 v11, 3, v3")
    a.wait_tag("g1", lg0=True)
    stamp(a, "B pre-poll")
    poll(a, "s60", 0xff, 0)
    stamp(a, "B go")
    for hh in range(8):
        a("buffer_load_dwordx4 %s, v14, %s, %s offen offset:%d%s" % (vr(OF + 4 * hh), SWS, sT2 if hh < 4 else sT3, (hh & 3) * 1024, SC))
    a("s_barrier")
    for x in wc_read(G1, 17):
        a(x)
    for hh in range(8):
        if hh < 7:
            wc_dma(a, G2[hh:hh + 1], "v16", "g2")
        for t in (2, 3, 0, 1):
            a(mfma(ACC + 4 * t, WOF + 16 * hh + 4 * t, OF + 4 * hh, "0" if (hh == 0 and t >= 2) else None))
    a("ds_write_b128 v12, %s" % vr(ACC + 8))
    a("ds_write_b128 v12, %s offset:1024" % vr(ACC + 12))
    a("s_waitcnt lgkmcnt(0)")
    a("s_barrier")
    a("ds_read_b128 %s, v13" % vr(ACC + 8))
    a("ds_read_b128 %s, v13 offset:1024" % vr(ACC + 12))
    a("v_mov_b32 v8, 0")
    a("v_mov_b32 v9, 0")
    a("v_mov_b32 v6, 0")
    a("v_mov_b32 v7, 0")
    a("v_mov_b32 v10, 0x3f803f80")
    for i in range(8):
        a("v_add_f32 v%d, v%d, v%d" % (ACC + i, ACC + i, ACC + 8 + i))
    HP = 28
    for i in range(4):
        a("v_cvt_pk_bf16_f32 v%d, v%d, v%d" % (HP + i, ACC + 2 * i, ACC + 2 * i + 1))
    a("buffer_store_dwordx4 %s, v14, %s, s58 offen%s" % (vr(HP), SWS, SC))
    for i in range(4):
        a("v_dot2c_f32_bf16 v%d, v%d, v10" % (8 if i & 1 else 6, HP + i))
        a("v_dot2c_f32_bf16 v%d, v%d, v%d" % (9 if i & 1 else 7, HP + i, HP + i))
    a("v_add_f32 v8, v8, v6")
    a("v_add_f32 v9, v9, v7")
    xg_reduce_multi(a, "v_add_f32", ["v8", "v9"], ["v6", "v7"])
    a("s_mov_b64 exec, 0xffff")
    a("buffer_store_dwordx2 v[8:9], v11, %s, s59 offen%s" % (SWS, SC), tag="hst")
    a("s_mov_b64 exec, -1")
    stamp(a, "B h stored")


def phase_C(a):
    a("; ---------------- B->C ----------------")
    wc_dma(a, G3[:4], "v16", "g3")
    a.wait_tag("hst")
    a("s_barrier")
    publish(a, "s61")
    stamp(a, "B flag")
    wc_dma(a, G3[4:], "v16", "g3")
    for x in wc_read(G2, 17):
        a(x)
    ONES, CSG, CSU = 20, 24, 28
    for i in range(4):
        a("v_mov_b32 v%d, 0x3f803f80" % (ONES + i))
    for u in range(14):
        a(mfma(CSG, WGF + 4 * u, ONES, "0" if u == 0 else None))
    a("s_mul_i32 %s, %s, 114688" % (sT2, sRQ))
    a("s_add_u32 %s, %s, %d" % (sT2, sT2, WS_H))
    a("s_mul_i32 s62, %s, 3584" % sW)
    a("v_add_u32 v12, s62, v14")
    a("s_lshl_b32 %s, %s, 3" % (sT3, sRQ))
    a("s_add_u32 %s, %s, %s" % (sT3, sT3, sW))
    a("s_mul_i32 %s, %s, 1792" % (sT3, sT3))
    a("s_add_u32 %s, %s, %d" % (sT3, sT3, WS_ST))
    a("v_lshlrev_b32 v9, 3, v1")
    a("v_mov_b32 v38, 0")
    a("v_mov_b32 v39, 0")
    a("v_and_b32 v8, 1, v2")
    a("v_mul_u32_u24 v8, 57344, v8")
    a("v_lshrrev_b32 v10, 1, v2")
    a("s_and_b32 %s, %s, 1" % (sT, sW))
    a("s_lshl_b32 %s, %s, 1" % (sT, sT))
    a("v_add_u32 v10, %s, v10" % sT)
    a("v_lshl_add_u32 v8, v10, 8, v8")
    a("v_lshl_add_u32 v13, v3, 4, v8")
    a("s_mul_i32 s58, %s, 448" % sRQ)
    a("s_lshl_b32 %s, %s, 2" % (sT, sFS))
    a("s_add_u32 s58, s58, %s" % sT)
    a("s_lshr_b32 %s, %s, 1" % (sT, sW))
    a("s_add_u32 s58, s58, %s" % sT)
    a("s_lshl_b32 s58, s58, 10")
    a("s_add_u32 s58, s58, %d" % WS_HH)
    a("s_mov_b32 s59, 0x%x" % f2u(-LOG2E))
    a("s_lshl_b32 s60, %s, 7" % sRQ)
    a("s_add_u32 s60, s60, %d" % WS_FB)
    a("s_lshl_b32 s61, %s, 8" % sRQ)
    a("s_lshl_b32 %s, %s, 2" % (sT, sFS))
    a("s_add_u32 s61, s61, %s" % sT)
    a("s_add_u32 s61, s61, %d" % WS_FC)
    a.wait_tag("g3", lg0=True)
    a("s_barrier")
    for x in wc_read(G3, 17):
        a(x)
    a("s_waitcnt lgkmcnt(0)")
    stamp(a, "C pre-poll")
    poll(a, "s60", 0x3fff, 0)
    stamp(a, "C go")
    def h_groups(tp):
        tg = ("h", tp)
        gs = []
        for i in range(4):
            g = []
            if i == 0:
                g.append(("s_add_u32 s64, %s, %d" % (sT2, tp * 28672), None))
            g.append(("s_add_u32 m0, s62, %d" % (tp * 28672), None))
            if i == 3:
                g.append(("s_mov_b32 exec_hi, 0", None))
            g.append(("buffer_load_dwordx4 v12, %s, s64 offen offset:%d%s lds" % (SWS, i * 1024, SC), tg))
            if i == 3:
                g.append(("s_mov_b64 exec, -1", None))
            gs.append(g)
        return gs

    def emit_group(g):
        for (x, tg) in g:
            a(x, tag=tg)

    for g in h_groups(0):
        emit_group(g)
    a("s_mov_b32 exec_hi, 0")
    a("buffer_load_dwordx2 v[38:39], v9, %s, %s offen offset:1536%s" % (SWS, sT3, SC))
    a("s_mov_b64 exec, -1")
    for i in range(3):
        a("buffer_load_dwordx2 v[%d:%d], v9, %s, %s offen offset:%d%s" % (32 + 2 * i, 33 + 2 * i, SWS, sT3, 512 * i, SC))
    a("s_barrier")
    for g in h_groups(1):
        emit_group(g)
    hpend = h_groups(2) + h_groups(3)
    for u in range(14):
        a(mfma(CSU, WUF + 4 * u, ONES, "0" if u == 0 else None))
    a("v_add_u32 v16, 57344, v14")
    a("v_lshlrev_b32 v19, 4, v3")
    a("v_add_u32 v19, %d, v19" % C_ST)
    a("s_lshl_b32 %s, %s, 8" % (sT, sW))
    a("v_add_u32 v9, %s, v19" % sT)
    for (d, x) in ((32, 34), (33, 35), (36, 38), (37, 39), (32, 36), (33, 37)):
        a("v_add_f32 v%d, v%d, v%d" % (d, d, x))
    xg_reduce_multi(a, "v_add_f32", ["v32", "v33"], ["v10", "v11"])
    a("s_mov_b32 %s, 0x%x" % (sT, f2u(1.0 / 448)))
    a("v_mov_b32 v10, 0x%x" % f2u(1e-5))
    a("v_mul_f32 v32, -%s, v32" % sT)
    a("v_fma_f32 v33, v33, %s, v10" % sT)
    a("v_fma_f32 v33, -v32, v32, v33")
    a("v_max_f32 v33, v33, v10")
    a("v_sqrt_f32 v34, v33")
    a("v_rsq_f32 v33, v33")
    a("v_mul_f32 v33, s59, v33")
    a("ds_write_b128 v9, v[32:35]")
    AF, NR = 192, 8
    ACCS = [40, 56]
    STS = [32, 72]
    PKD = [224, 228]

    def rd_list(tp):
        rd = []
        for u in range(14):
            for t in range(2):
                off = (tp * 2 + t) * 14336 + u * 1024
                k = tp * 28 + u * 2 + t
                rd.append("ds_read_b128 %s, v%d offset:%d" % (vr(AF + 4 * (k % NR)), 14 if off < 57344 else 16, off % 57344))
        return rd

    def epi(tp):
        acc, st, pk = ACCS[tp & 1], STS[tp & 1], PKD[tp & 1]
        o = []
        for t in range(2):
            g, u_, s = acc + 8 * t, acc + 8 * t + 4, st + 4 * t
            for rr in range(4):
                o.append("v_fmac_f32 v%d, v%d, v%d" % (g + rr, s, CSG + rr))
            for rr in range(4):
                o.append("v_mul_f32 v%d, v%d, v%d" % (g + rr, s + 1, g + rr))
            for rr in range(4):
                o.append("v_exp_f32 v%d, v%d" % (g + rr, g + rr))
            for rr in range(4):
                o.append("v_fmac_f32 v%d, v%d, v%d" % (u_ + rr, s, CSU + rr))
            for rr in range(4):
                o.append("v_fma_f32 v%d, v%d, v%d, v%d" % (g + rr, g + rr, s + 2, s + 2))
            for rr in range(4):
                o.append("v_rcp_f32 v%d, v%d" % (g + rr, g + rr))
            for rr in range(4):
                o.append("v_mul_f32 v%d, v%d, v%d" % (g + rr, g + rr, u_ + rr))
            o.append("v_cvt_pk_bf16_f32 v%d, v%d, v%d" % (pk + 2 * t, g, g + 1))
            o.append("v_cvt_pk_bf16_f32 v%d, v%d, v%d" % (pk + 2 * t + 1, g + 2, g + 3))
        o.append("v_permlane16_swap_b32 v%d, v%d" % (pk, pk + 2))
        o.append("v_permlane16_swap_b32 v%d, v%d" % (pk + 1, pk + 3))
        o.append(("buffer_store_dwordx4 %s, v13, %s, s58 offen%s" % (vr(pk), SWS, SC), ("hh", tp)))
        o.append("s_add_u32 s58, s58, %d" % (2 * 57344))
        return o

    def emit(x):
        if isinstance(x, tuple):
            a(x[0], tag=x[1])
        else:
            a(x)

    a.wait_tag(("h", 0), lg0=True)
    a("s_barrier")
    stamp(a, "C h0 landed")
    allrd = [x for tp in range(4) for x in rd_list(tp)]
    nxt = 0
    LA = NR - 2
    for tp in range(4):
        acc = ACCS[tp & 1]
        ep = epi(tp - 1) if tp else []
        a("ds_read_b128 %s, v19 offset:%d" % (vr(STS[tp & 1]), tp * 512))
        a("ds_read_b128 %s, v19 offset:%d" % (vr(STS[tp & 1] + 4), tp * 512 + 256))
        for u in range(14):
            for t in range(2):
                k = tp * 28 + u * 2 + t
                if k + LA == 28:
                    a.wait_tag(("h", 1))
                    a("s_barrier")
                if k + LA == 56:
                    a.wait_tag(("h", 3))
                    a("s_barrier")
                if hpend and k % 3 == 1:
                    emit_group(hpend.pop(0))
                while nxt < len(allrd) and nxt <= k + LA - 1:
                    a(allrd[nxt])
                    nxt += 1
                f = AF + 4 * (k % NR)
                z = "0" if u == 0 else None
                a(mfma(acc + 8 * t, WGF + 4 * u, f, z))
                if ep and u >= 1:
                    emit(ep.pop(0))
                a(mfma(acc + 8 * t + 4, WUF + 4 * u, f, z))
                if ep and u >= 1:
                    emit(ep.pop(0))
                    if ep and len(ep) > 2 * (27 - 2 * u - t):
                        emit(ep.pop(0))
        for x in ep:
            emit(x)
    stamp(a, "C mfma done")
    return epi, emit


def phase_D(a, epi, emit):
    a("; ---------------- C->D ----------------")
    a("v_lshrrev_b32 v6, 3, v1")
    a("v_and_b32 v7, 7, v1")
    a("v_and_b32 v8, 6, v6")
    a("v_xor_b32 v8, v8, v7")
    a("v_and_b32 v9, 3, v6")
    a("v_lshrrev_b32 v10, 2, v6")
    a("v_lshl_add_u32 v9, v10, 3, v9")
    a("s_mul_i32 %s, %s, 224" % (sT, sW))
    a("v_add_u32 v9, %s, v9" % sT)
    a("v_mul_u32_u24 v9, 896, v9")
    a("v_lshl_add_u32 v9, v8, 4, v9")
    a("s_lshl_b32 %s, %s, 7" % (sT, sCB))
    a("v_add_u32 v12, %s, v9" % sT)
    a("s_mul_i32 s62, %s, 20480" % sW)
    a("s_barrier")

    def wd_dma(u0, u1, base):
        for u in range(u0, u1):
            for i4 in range(4):
                i = 4 * u + i4
                a("s_add_u32 m0, s62, %d" % (base + (i - 4 * u0) * 1024))
                a("s_mov_b32 %s, %d" % (sT, (16 * (i >> 1) + 4 * (i & 1)) * 896))
                a("buffer_load_dwordx4 v12, %s, %s offen lds" % (SWD, sT), tag=("wd", u))

    wd_dma(0, 1, 0)
    for x in epi(3):
        emit(x)
    stamp(a, "C last store")
    wd_dma(1, 2, 4096)
    a.wait_tag(("hh", 3))
    a("s_barrier")
    L = a.label("pubc")
    raw(a, "s_cmp_lg_u32 %s, 0" % sW)
    raw(a, "s_cbranch_scc1 %s" % L)
    raw(a, "s_mov_b64 exec, 15")
    raw(a, "v_mov_b32 v10, %s" % sNONCE)
    raw(a, "v_lshlrev_b32 v11, 6, v1")
    raw(a, "buffer_store_dword v10, v11, %s, s61 offen sc1" % SWS)
    raw(a, "s_mov_b64 exec, -1")
    raw(a, "%s:" % L)
    stamp(a, "C flag")
    wd_dma(2, 5, 8192)
    a("v_and_b32 v8, 1, v2")
    a("v_lshl_add_u32 v8, v8, 2, v4")
    a("v_and_b32 v9, 6, v8")
    a("v_lshrrev_b32 v10, 1, v5")
    a("v_xor_b32 v9, v9, v10")
    a("v_lshrrev_b32 v10, 1, v2")
    a("v_lshl_add_u32 v8, v10, 4, v8")
    a("v_lshlrev_b32 v8, 7, v8")
    a("v_lshl_add_u32 v8, v9, 4, v8")
    a("v_and_b32 v9, 1, v5")
    a("v_lshl_add_u32 v8, v9, 3, v8")
    a("v_add_u32 v240, s62, v8")
    for t in range(1, 4):
        a("v_xor_b32 v%d, %d, v240" % (240 + t, 32 * t))
    WF = 16

    def wd_read(u, base):
        a.wait_tag(("wd", u))
        for t in range(4):
            for hf in range(2):
                a("ds_read_b64_tr_b16 %s, v%d offset:%d" % (vr(WF + 16 * u + 4 * t + 2 * hf, 2), 240 + t, base + hf * 1024))

    wd_read(0, 0)
    wd_read(1, 4096)
    a("s_waitcnt lgkmcnt(0)")
    wd_dma(5, 7, 0)
    a("s_lshr_b32 %s, %s, 1" % (sT, sRB))
    a("s_lshl_b32 s60, %s, 8" % sT)
    a("s_add_u32 s60, s60, %d" % WS_FC)
    a("s_lshl_b32 %s, %s, 3" % (sT, sT))
    a("s_and_b32 %s, %s, 1" % (sT2, sRB))
    a("s_add_u32 s63, %s, %s" % (sT, sT2))
    a("s_mul_i32 %s, s63, 56" % sT)
    a("s_mul_i32 %s, %s, 7" % (sT2, sW))
    a("s_add_u32 %s, %s, %s" % (sT, sT, sT2))
    a("s_lshl_b32 %s, %s, 10" % (sT, sT))
    a("s_add_u32 s58, %s, %d" % (sT, WS_HH))
    a("v_add_u32 v13, 4096, v14")
    for u in range(2, 5):
        wd_read(u, 8192 + (u - 2) * 4096)
    stamp(a, "D pre-poll")
    poll(a, "s60", 0x3fff3fff, 0x3fff3fff)
    stamp(a, "D go")
    AF, ACC = 128, 240
    DLA = 8

    def hh_load(k):
        rt, i = k // 7, k % 7
        a("buffer_load_dwordx4 %s, v%d, %s, s58 offen offset:%d%s" % (vr(AF + 4 * k), 14 if i < 4 else 13, SWS, (i & 3) * 1024, SC))
        if i == 6:
            a("s_add_u32 s58, s58, %d" % (2 * 57344))

    for k in range(DLA):
        hh_load(k)
        if k == DLA // 2 - 1:
            a("s_barrier")
    wd_read(5, 0)
    wd_read(6, 4096)
    a("v_lshrrev_b32 v6, 1, v2")
    a("v_lshl_add_u32 v6, v6, 1, v3")
    a("s_lshl_b32 %s, %s, 12" % (sT, sW))
    a("v_lshl_add_u32 v7, v2, 8, %s" % sT)
    for t in range(4):
        a("v_add_u32 v12, %d, v6" % (4 * t))
        a("v_and_b32 v12, 15, v12")
        a("v_lshl_add_u32 v%d, v12, 4, v7" % (8 + t))
    a("s_waitcnt lgkmcnt(0)")
    a("s_barrier")
    for rt in range(4):
        for i in range(7):
            for t in range(4):
                a(mfma(ACC + 4 * t, WF + 16 * i + 4 * t, AF + 28 * rt + 4 * i, "0" if i == 0 else None))
            if rt * 7 + i + DLA < 28:
                hh_load(rt * 7 + i + DLA)
        if rt == 2:
            a("v_lshrrev_b32 v6, 3, v1")
            a("v_and_b32 v7, 7, v1")
            a("s_lshr_b32 %s, %s, 1" % (sT, sW))
            a("s_lshl_b32 %s, %s, 1" % (sT, sT))
            a("s_add_u32 s63, s63, %s" % sT)
            a("s_and_b32 %s, %s, 1" % (sT2, sW))
            a("s_lshl_b32 %s, %s, 3" % (sT2, sT2))
            a("v_add_u32 v6, %s, v6" % sT2)
            a("v_lshlrev_b32 v12, 8, v7")
            a("v_lshl_add_u32 v12, v6, 4, v12")
            a("s_mul_i32 %s, s63, 14" % sT)
            a("s_lshl_b32 %s, %s, 1" % (sT2, sCB))
            a("s_add_u32 %s, %s, %s" % (sT, sT, sT2))
            a("s_lshl_b32 %s, %s, 10" % (sT, sT))
            a("s_add_u32 %s, %s, %d" % (sT, sT, WS_H))
            a("buffer_load_dwordx4 %s, v12, %s, %s offen%s" % (vr(128), SWS, sT, SC))
        if rt == 2:
            for t in range(4):
                a("v_add_u32 v%d, 65536, v%d" % (8 + t, 8 + t))
        for t in range(4):
            a("ds_write_b128 v%d, %s offset:%d" % (8 + t, vr(ACC + 4 * t), (rt & 1) * 32768 + t * 1024))
    stamp(a, "D mfma done")
    a("v_lshl_add_u32 v10, v7, 1, v6")
    a("v_and_b32 v10, 15, v10")
    a("v_lshlrev_b32 v10, 4, v10")
    a("v_lshl_add_u32 v10, v7, 9, v10")
    a("s_lshr_b32 %s, %s, 1" % (sT, sW))
    a("s_lshl_b32 %s, %s, 15" % (sT, sT))
    a("v_add_u32 v10, %s, v10" % sT)
    a("s_lshr_b32 %s, s63, 1" % sT)
    a("s_lshl_b32 %s, %s, 5" % (sT, sT))
    a("s_and_b32 %s, s63, 1" % sT2)
    a("s_add_u32 %s, %s, %s" % (sT, sT, sT2))
    a("v_lshl_add_u32 v11, v6, 1, %s" % sT)
    a("v_mul_u32_u24 v11, 896, v11")
    a("v_lshl_add_u32 v11, v7, 4, v11")
    a("s_lshl_b32 %s, %s, 7" % (sT, sCB))
    S = 132
    for i in range(4):
        a("v_lshlrev_b32 v%d, 16, v%d" % (S + 2 * i, 128 + i))
        a("v_and_b32 v%d, 0xffff0000, v%d" % (S + 2 * i + 1, 128 + i))
    a("s_waitcnt lgkmcnt(0)")
    a("s_barrier")
    RD = 16
    for p in range(8):
        a("ds_read_b128 %s, v10 offset:%d" % (vr(RD + 8 * p), p * 4096))
        a("ds_read_b128 %s, v10 offset:%d" % (vr(RD + 8 * p + 4), p * 4096 + 256))
    for p in range(8):
        for i in range(8):
            a("v_add_f32 v%d, v%d, v%d" % (S + i, S + i, RD + 8 * p + i))
    for i in range(4):
        a("v_cvt_pk_bf16_f32 v%d, v%d, v%d" % (128 + i, S + 2 * i, S + 2 * i + 1))
    a("buffer_store_dwordx4 %s, v11, %s, %s offen" % (vr(128), SOUT, sT))
    stamp(a, "D out stored")


HEADER = open("cdna_kernels/%s.s.ref" % NAME).read().split("; Override launch")[0]


def build():
    n = NAME + "_kernel"
    out = HEADER
    out += "; @launch grid=(256,1,1) block=(512,1,1) lds=163840\n"
    out += '.amdgcn_target "amdgcn-amd-amdhsa--gfx950"\n.text\n'
    a = Asm()
    prologue(a)
    phase_A(a)
    phase_B(a)
    epi, emit = phase_C(a)
    phase_D(a, epi, emit)
    a("Lfin:")
    stamp_flush(a)
    a("Lend:")
    a("s_endpgm")
    a("Lcode_end:")
    body = a.render()
    out += ".globl %s\n.p2align 8\n.type %s,@function\n%s:\nLcode_begin:\n%s" % (n, n, n, body)

    out += '.section .rodata,"a"\n.p2align 6\n'
    out += """.amdhsa_kernel %s
  .amdhsa_next_free_vgpr 256
  .amdhsa_next_free_sgpr 102
  .amdhsa_accum_offset 256
  .amdhsa_group_segment_fixed_size 0
  .amdhsa_kernarg_size 80
  .amdhsa_user_sgpr_count 2
  .amdhsa_user_sgpr_kernarg_segment_ptr 1
  .amdhsa_system_sgpr_workgroup_id_x 1
.end_amdhsa_kernel
""" % n
    return out


if __name__ == "__main__":
    dst = sys.argv[1] if len(sys.argv) > 1 else "cdna_kernels/%s.s" % NAME
    STAMPS = "stamps" in sys.argv
    OPT = set(sys.argv[2:])
    txt = build()
    import subprocess, re
    open("_sz.s", "w").write(txt.replace("CODE_BYTES", "0x12345"))
    subprocess.check_call(["clang", "-x", "assembler", "-target", "amdgcn-amd-amdhsa", "-mcpu=gfx950", "-c", "_sz.s", "-o", "_sz.o"])
    sym = subprocess.check_output(["llvm-objdump", "-t", "_sz.o"]).decode()
    end = int(re.search(r"([0-9a-f]+) .*Lcode_end", sym).group(1), 16)
    print("code bytes", end)
    open(dst, "w").write(txt.replace("CODE_BYTES", str((end - 64) & ~3)))
    print("wrote", dst)
```

```python
import sys, struct
sys.path.insert(0, "dev")
from asmlib import Asm, Ins

NAME = "sequential_preLN__sliding_local_dilated__glu_gated_glu__prompt"

WS_O = 0
WS_H = 2 << 20
WS_ST = 4 << 20
WS_HH = 8 << 20
WS_FA = 16 << 20
WS_FB = WS_FA + 8192
WS_FC = WS_FA + 16384
WS_TS = 20 << 20
WS_SIZE = 32 << 20

SX, SWQKV, SWO, SWG, SWU, SWD, SOUT, SWS, SDBG = [("s[%d:%d]" % (b, b + 3)) for b in range(8, 44, 4)]
sW, sXC, sJ, sNONCE = "s44", "s45", "s46", "s47"
sT, sT2, sT3 = "s55", "s56", "s57"
sW1024 = "s53"
sRB, sCB, sRQ, sFS = "s84", "s85", "s86", "s87"
SC = " sc1"
LOG2E = 1.4426950408889634
STAMPS = False
OPT = set()
NSTAMP = [0]
ASPACE = 3


def f2u(x):
    return struct.unpack("<I", struct.pack("<f", x))[0]


def vr(b, n=4):
    return "v[%d:%d]" % (b, b + n - 1)


def mfma(acc, A, B, C=None):
    return "v_mfma_f32_16x16x32_bf16 %s, %s, %s, %s" % (vr(acc), vr(A), vr(B), vr(acc) if C is None else C)


def raw(a, text):
    for line in text.split("\n"):
        line = line.strip()
        if not line:
            continue
        if line.endswith(":"):
            a.items.append(("l", line))
        else:
            a.items.append(("i", Ins(line)))


def stamp(a, name):
    if STAMPS:
        i = NSTAMP[0]
        NSTAMP[0] += 1
        a("; STAMP %d %s" % (i, name))
        a("s_memrealtime s[100:101]")
        a("s_waitcnt lgkmcnt(0)")
        a("v_writelane_b32 v15, s100, %d" % i)


def stamp_flush(a):
    if STAMPS:
        a("s_lshl_b32 s3, s2, 3")
        a("s_add_u32 s3, s3, %s" % sW)
        a("s_lshl_b32 s3, s3, 8")
        a("s_add_u32 s3, s3, %d" % WS_TS)
        a("v_lshlrev_b32 v7, 2, v1")
        a("buffer_store_dword v15, v7, %s, s3 offen" % SWS)


def xg_reduce_multi(a, op, xs, ts):
    for step in ("v_permlane32_swap_b32", "v_permlane16_swap_b32"):
        for x, t in zip(xs, ts):
            a("v_mov_b32 %s, %s" % (t, x))
        for x, t in zip(xs, ts):
            a("%s %s, %s" % (step, t, x))
        for x, t in zip(xs, ts):
            a("%s %s, %s, %s" % (op, x, x, t))


def publish(a, soff):
    L = a.label("pub")
    raw(a, "s_cmp_lg_u32 %s, 0" % sW)
    raw(a, "s_cbranch_scc1 %s" % L)
    raw(a, "s_mov_b64 exec, 1")
    raw(a, "v_mov_b32 v6, %s" % sNONCE)
    raw(a, "v_mov_b32 v7, 0")
    raw(a, "buffer_store_dword v6, v7, %s, %s offen sc1" % (SWS, soff))
    raw(a, "s_mov_b64 exec, -1")
    raw(a, "%s:" % L)


def poll(a, soff, mask_lo, mask_hi):
    L, Lp, Ld = a.label("skip"), a.label("poll"), a.label("done")
    raw(a, "s_cmp_lg_u32 %s, 0" % sW)
    raw(a, "s_cbranch_scc1 %s" % L)
    raw(a, "v_lshlrev_b32 v7, 2, v1")
    raw(a, "s_mov_b32 exec_lo, 0x%x" % mask_lo)
    raw(a, "s_mov_b32 exec_hi, 0x%x" % mask_hi)
    raw(a, "s_mov_b32 s3, 20000")
    raw(a, "%s:" % Lp)
    raw(a, "buffer_load_dword v6, v7, %s, %s offen sc1" % (SWS, soff))
    raw(a, "s_waitcnt vmcnt(0)")
    raw(a, "v_cmp_ne_u32 vcc, %s, v6" % sNONCE)
    raw(a, "s_sub_u32 s3, s3, 1")
    raw(a, "s_cbranch_scc1 %s" % Ld)
    raw(a, "s_nop 1")
    raw(a, "s_cmp_lg_u64 vcc, 0")
    raw(a, "s_cbranch_scc1 %s" % Lp)
    raw(a, "%s:" % Ld)
    raw(a, "s_mov_b64 exec, -1")
    raw(a, "%s:" % L)
    a("s_barrier")


def prologue(a):
    a("s_load_dwordx16 s[64:79], s[0:1], 0")
    a("s_load_dwordx4 s[80:83], s[0:1], 64")
    a("s_memrealtime s[4:5]")
    a("s_cmp_ge_u32 s2, 256")
    a("s_cbranch_scc1 Lend")
    a("s_getpc_b64 s[6:7]")
    a("v_and_b32 v1, 63, v0")
    a("v_lshrrev_b32 v6, 6, v0")
    a("v_lshrrev_b32 v2, 4, v1")
    a("v_readfirstlane_b32 %s, v6" % sW)
    a("v_and_b32 v3, 15, v0")
    a("v_bfe_u32 v4, v0, 2, 2")
    a("v_and_b32 v5, 3, v0")
    if STAMPS:
        a("v_mov_b32 v15, 0")
    a("s_and_b32 %s, s2, 7" % sXC)
    a("s_lshr_b32 %s, s2, 3" % sJ)
    a("v_lshlrev_b32 v6, 7, v0")
    a("v_min_u32 v6, CODE_BYTES, v6")
    a("s_cmp_gt_u32 %s, 3" % sW)
    a("s_cbranch_scc1 Lnopf")
    raw(a, "global_load_dword v7, v6, s[6:7]")
    a("Lnopf:")
    sizes = {8: 2048 * 896, 12: 448 * 2688, 16: 448 * 896, 20: 448 * 3584, 24: 448 * 3584,
             28: 1792 * 896, 32: 2048 * 896, 36: WS_SIZE, 40: 256}
    for b, sz in sizes.items():
        a("s_mov_b32 s%d, %d" % (b + 2, sz))
        a("s_mov_b32 s%d, 0x00020000" % (b + 3))
    a("s_lshl_b32 %s, %s, 10" % (sW1024, sW))


def prologue2(a):
    a("s_waitcnt lgkmcnt(0)")
    src = {8: 64, 12: 66, 16: 68, 20: 72, 24: 74, 28: 76, 32: 78, 36: 82, 40: 80}
    for b, s in src.items():
        a("s_mov_b64 s[%d:%d], s[%d:%d]" % (b, b + 1, s, s + 1))


def nonce_publish(a):
    a("s_or_b32 s3, s2, %s" % sW)
    a("s_cmp_lg_u32 s3, 0")
    a("s_cbranch_scc1 Lnononce")
    raw(a, "s_or_b32 s3, s4, 1")
    raw(a, "v_mov_b32 v8, s3")
    raw(a, "v_mov_b32 v9, 0")
    raw(a, "s_mov_b64 exec, 1")
    raw(a, "buffer_store_dword v8, v9, %s, 0 offen sc1" % SDBG)
    raw(a, "s_mov_b64 exec, -1")
    a("Lnononce:")


def nonce_fetch(a, vN):
    L, Lp = a.label("nskip"), a.label("npoll")
    a("v_readfirstlane_b32 %s, %s" % (sNONCE, vN))
    raw(a, "s_nop 1")
    raw(a, "s_cmp_lg_u32 %s, 0" % sNONCE)
    raw(a, "s_cbranch_scc1 %s" % L)
    raw(a, "s_mov_b32 s3, 20000")
    raw(a, "v_mov_b32 v7, 0")
    raw(a, "%s:" % Lp)
    raw(a, "buffer_load_dword v6, v7, %s, 0 offen sc1" % SDBG)
    raw(a, "s_waitcnt vmcnt(0)")
    raw(a, "v_readfirstlane_b32 %s, v6" % sNONCE)
    raw(a, "s_sub_u32 s3, s3, 1")
    raw(a, "s_cbranch_scc1 %s" % L)
    raw(a, "s_nop 1")
    raw(a, "s_cmp_eq_u32 %s, 0" % sNONCE)
    raw(a, "s_cbranch_scc1 %s" % Lp)
    raw(a, "%s:" % L)
    raw(a, "s_nop 3")


def touch(a, jobs):
    Lend = a.label("tend")
    for (w, srd, n) in jobs:
        L = a.label("tn")
        raw(a, "s_cmp_lg_u32 %s, %d" % (sW, w))
        raw(a, "s_cbranch_scc1 %s" % L)
        raw(a, "s_mul_i32 s3, s2, %d" % (n * 128))
        raw(a, "v_min_u32 v6, %d, v1" % (n - 1))
        raw(a, "v_lshlrev_b32 v6, 7, v6")
        raw(a, "buffer_load_dword v7, v6, %s, s3 offen" % srd)
        raw(a, "s_branch %s" % Lend)
        raw(a, "%s:" % L)
    raw(a, "%s:" % Lend)


A_SLOT = 34816
A_XOFF = 24576
A_EX = 4 * A_SLOT
A_CS = A_EX + 20480
R0, R1, R2 = 0, 57344, 139264
B_RB = R2
C_ST = 114688

vWO_DMA, vWC_DMA, vWC_TR = "v176", "v177", 178
WGF, WUF = 80, 136
WOF = 128


def roles_BCD(a):
    a("s_mul_i32 %s, %s, 37" % (sRB, sJ))
    a("s_lshr_b32 %s, %s, 8" % (sRB, sRB))
    a("s_mul_i32 %s, %s, 7" % (sCB, sRB))
    a("s_sub_u32 %s, %s, %s" % (sCB, sJ, sCB))
    a("s_lshr_b32 %s, %s, 1" % (sT, sXC))
    a("s_lshl_b32 %s, %s, 2" % (sT, sT))
    a("s_add_u32 %s, %s, %s" % (sRQ, sRB, sT))
    a("s_and_b32 %s, %s, 1" % (sT, sXC))
    a("s_mul_i32 %s, %s, 7" % (sT, sT))
    a("s_add_u32 %s, %s, %s" % (sFS, sCB, sT))
    a("s_lshl_b32 %s, %s, 2" % (sT, sXC))
    a("s_add_u32 %s, %s, %s" % (sRB, sRB, sT))


def wo_dma(a, i0, i1, vaddr):
    for i in range(i0, i1):
        a("s_add_u32 m0, %s, %d" % (sW1024, R0 + i * 8192))
        a("s_mov_b32 %s, %d" % (sT, i * 64 * 896))
        a("buffer_load_dwordx4 %s, %s, %s offen lds" % (vaddr, SWO, sT), tag="wo")


def wc_dma(a, slabs, vaddr, tag):
    for (s, base) in slabs:
        a("s_add_u32 m0, %s, %d" % (sW1024, base))
        a("s_mov_b32 %s, %d" % (sT, (s % 14) * 114688))
        a("buffer_load_dwordx4 %s, %s, %s offen lds" % (vaddr, SWG if s < 14 else SWU, sT), tag=tag)


def wc_read(slabs, vtr):
    out = []
    for (s, base) in slabs:
        for hf in range(2):
            out.append("ds_read_b64_tr_b16 %s, v%d offset:%d" % (vr(WGF + 4 * s + 2 * hf, 2), vtr + base // 57344, base % 57344 + hf * 1024))
    return out


def phase_A(a):
    sTB, sHP, sT0, sTI, sHD = "s48", "s49", "s50", "s51", "s52"
    sW256 = "s54"
    sHM = "s[58:59]"
    a("; ---------------- phase A ----------------")
    a("s_lshl_b32 %s, %s, 2" % (sTB, sXC))
    a("s_lshr_b32 %s, %s, 3" % (sT, sJ))
    a("s_add_u32 %s, %s, %s" % (sTB, sTB, sT))
    a("s_and_b32 %s, %s, 7" % (sHP, sJ))
    a("s_lshl_b32 %s, %s, 6" % (sT0, sTB))
    a("s_and_b32 %s, %s, 3" % (sTI, sW))
    a("s_lshr_b32 %s, %s, 2" % (sHD, sW))
    a("s_lshl_b32 %s, %s, 8" % (sW256, sW))
    vAX, vAH, vAW = "v16", "v17", "v18"
    a("v_lshrrev_b32 v12, 3, v1")
    a("v_and_b32 v13, 7, v1")
    a("s_and_b32 %s, %s, 1" % (sT, sW))
    a("s_lshl_b32 %s, %s, 2" % (sT, sT))
    a("v_and_b32 v8, 2, v12")
    a("v_or_b32 v8, %s, v8" % sT)
    a("v_xor_b32 v8, v8, v13")
    a("v_min_u32 v8, 6, v8")
    a("s_lshl_b32 %s, %s, 3" % (sT, sW))
    a("v_add_u32 v9, %s, v12" % sT)
    a("v_mul_u32_u24 v9, 2688, v9")
    a("s_mul_i32 %s, %s, 112" % (sT, sHP))
    a("v_lshl_add_u32 v9, v8, 4, v9")
    a("v_add_u32 %s, %s, v9" % (vAW, sT))
    a("s_lshl_b32 %s, %s, 5" % (sT, sHD))
    a("s_add_u32 %s, %s, %s" % (sT, sT, sT0))
    a("s_bfe_u32 %s, %s, 0x10001" % (sT2, sW))
    a("s_add_u32 %s, %s, %s" % (sT, sT, sT2))
    a("s_and_b32 %s, %s, 1" % (sT2, sW))
    a("s_lshl_b32 %s, %s, 4" % (sT2, sT2))
    a("s_add_u32 %s, %s, %s" % (sT, sT, sT2))
    a("v_lshl_add_u32 v9, v12, 1, %s" % sT)
    a("v_mul_u32_u24 v9, 896, v9")
    a("s_lshr_b32 %s, %s, 2" % (sT2, sT2))
    a("v_lshrrev_b32 v8, 1, v12")
    a("v_add_u32 v8, %s, v8" % sT2)
    a("v_xor_b32 v8, v8, v13")
    a("v_lshl_add_u32 %s, v8, 4, v9" % vAX)
    a("s_lshl_b32 %s, %s, 2" % (sT, sTI))
    a("s_add_u32 %s, %s, %s" % (sT, sT, sT0))
    a("s_add_u32 %s, %s, %s" % (sT, sT, sHD))
    a("s_sub_u32 %s, %s, 16" % (sT, sT))
    a("v_and_b32 v8, 1, v12")
    a("v_lshl_add_u32 v9, v8, 1, %s" % sT)
    a("v_max_i32 v9, 0, v9")
    a("v_mul_u32_u24 v9, 896, v9")
    a("v_xor_b32 v8, %s, v13" % sW)
    a("v_lshl_add_u32 %s, v8, 4, v9" % vAH)
    a("s_mov_b32 s59, 0")
    a("s_cmp_eq_u32 %s, 0" % sW)
    a("s_mov_b32 s58, 0xffff")
    a("s_cselect_b32 s58, 0xff00, s58")
    prologue2(a)

    def slot(ch):
        return (ch + 1) % 4

    def dma_groups(ch):
        sb = slot(ch) * A_SLOT
        tg = ("A", ch)
        gs = []
        for m in range(3):
            g = [("s_mov_b32 s64, %d" % (ch * 172032), None)] if m == 0 else []
            g += [("s_add_u32 m0, %s, %d" % (sW1024, sb + m * 8192 - m * 896), None),
                  ("buffer_load_dwordx4 %s, %s, s64 offen offset:%d lds" % (vAW, SWQKV, m * 896), tg)]
            gs.append(g)
        gs.append([("s_add_u32 m0, %s, %d" % (sW1024, sb + A_XOFF - ch * 128), None),
                   ("buffer_load_dwordx4 %s, %s, 0 offen offset:%d lds" % (vAX, SX, ch * 128), tg)])
        gs.append([("s_add_u32 m0, %s, %d" % (sW256, sb + A_XOFF + 8192 - ch * 128), None),
                   ("s_mov_b64 exec, %s" % sHM, None),
                   ("buffer_load_dwordx4 %s, %s, 0 offen offset:%d lds" % (vAH, SX, ch * 128), tg),
                   ("s_mov_b64 exec, -1", None)])
        return gs

    def emit_group(g):
        for (x, tg) in g:
            a(x, tag=tg)

    def dma(ch):
        for g in dma_groups(ch):
            emit_group(g)

    stamp(a, "A start")
    dma(0)
    nonce_publish(a)
    if "notouch" not in OPT:
        touch(a, [(0, SWQKV, 37), (1, SX, 56)])
    a("s_barrier")
    dma(1)
    if "notouch" not in OPT:
        touch(a, [(2, SWO, 13), (3, SWG, 49), (4, SWU, 49), (5, SWD, 49)])
    stamp(a, "A dma issued")
    ONES = 20
    for i in range(4):
        a("v_mov_b32 v%d, 0x3f803f80" % (ONES + i))
    a("v_and_b32 v8, 3, v12")
    a("v_mul_u32_u24 v8, %d, v8" % A_SLOT)
    a("v_lshl_add_u32 v8, v13, 4, v8")
    a("ds_write_b128 v8, %s offset:%d" % (vr(ONES), A_XOFF + 8192))
    aX0, aX1, aXH0, aXH1, aW0, aW1, aWH = range(24, 31)
    a("v_bfe_u32 v8, v3, 1, 3")
    a("v_xor_b32 v8, v8, v2")
    a("v_lshlrev_b32 v8, 4, v8")
    a("v_lshl_add_u32 v8, v3, 7, v8")
    a("v_add_u32 v%d, %d, v8" % (aXH0, A_XOFF + 8192))
    a("v_xor_b32 v%d, 64, v%d" % (aXH1, aXH0))
    a("s_lshl_b32 %s, %s, 11" % (sT, sTI))
    a("s_add_u32 %s, %s, %d" % (sT, sT, A_XOFF))
    a("v_add_u32 v%d, %s, v8" % (aX0, sT))
    a("v_xor_b32 v%d, 64, v%d" % (aX1, aX0))
    a("v_and_b32 v8, 2, v4")
    a("v_and_b32 v9, 1, v2")
    a("v_lshl_or_b32 v8, v9, 2, v8")
    a("v_lshlrev_b32 v8, 4, v8")
    a("v_lshl_add_u32 v9, v2, 3, v4")
    a("v_lshlrev_b32 v9, 7, v9")
    a("s_mul_i32 %s, %s, 56" % (sT, sHD))
    a("v_lshl_add_u32 v10, v5, 3, %s" % sT)
    a("v_xor_b32 v11, v10, v8")
    a("v_add_u32 v%d, v11, v9" % aW0)
    a("v_add_u32 v10, 32, v10")
    a("v_xor_b32 v11, v10, v8")
    a("v_add_u32 v%d, v11, v9" % aW1)
    a("s_and_b32 %s, %s, 1" % (sT, sTI))
    a("s_cmp_eq_u32 %s, 1" % sT)
    a("s_cselect_b64 vcc, -1, 0")
    a("s_lshr_b32 %s, %s, 1" % (sT, sTI))
    a("s_add_u32 %s, %s, 1" % (sT, sT))
    a("s_lshl_b32 %s, %s, 13" % (sT, sT))
    a("v_cndmask_b32 v8, v%d, v%d, vcc" % (aW0, aW1))
    a("v_add_u32 v%d, %s, v8" % (aWH, sT))
    for i in range(7):
        a("v_add_u32 v%d, %d, v%d" % (31 + i, 2 * A_SLOT, 24 + i))
    ACC = 40
    aH, cQ0, cQ1, aRS, aGR, aGH = ACC + 24, ACC + 28, ACC + 32, ACC + 36, ACC + 40, ACC + 44
    BP, BC = 88, 92
    a("v_lshlrev_b32 v8, 2, v2")
    a("v_sub_u32 v9, v3, v8")
    a("s_lshl_b32 %s, %s, 2" % (sT, sTB))
    a("s_add_u32 %s, %s, %s" % (sT, sT, sTI))
    a("s_cmp_lt_u32 %s, 2" % sT)
    a("s_cselect_b32 %s, 0x10000, 0" % sT2)
    a("v_mov_b32 v11, 0x%x" % f2u(-1e30))
    for rr in range(4):
        a("v_subrev_u32 v10, %d, v9" % rr)
        a("v_cmp_gt_u32 vcc, 8, v10")
        a("v_cndmask_b32 v%d, v11, 0, vcc" % (BC + rr))
        a("v_add_u32 v10, 16, v10")
        a("v_add_u32 v10, %s, v10" % sT2)
        a("v_cmp_gt_u32 vcc, 8, v10")
        a("v_cndmask_b32 v%d, v11, 0, vcc" % (BP + rr))
    a("v_cmp_eq_u32 s[60:61], 1, v5")
    a("v_cmp_eq_u32 s[62:63], 2, v5")
    a("v_cmp_eq_u32 s[88:89], 3, v5")
    a("v_cmp_eq_u32 s[90:91], v4, v2")
    a("v_cmp_eq_u32 s[92:93], 0, v2")
    a("v_cmp_gt_u32 s[94:95], 3, v2")
    a("s_lshl_b32 %s, %s, 6" % (sT, sW))
    a("s_add_u32 %s, %s, %d" % (sT, sT, A_CS))
    a("v_lshl_add_u32 v168, v2, 4, %s" % sT)
    a("s_lshl_b32 %s, %s, 8" % (sT, sHD))
    a("s_add_u32 %s, %s, %d" % (sT, sT, A_CS))
    a("v_lshl_add_u32 v169, v2, 4, %s" % sT)
    a("s_lshl_b32 %s, %s, 9" % (sT, sW))
    a("s_add_u32 %s, %s, %d" % (sT, sT, A_EX + 4 * 4096))
    a("v_lshl_add_u32 v170, v1, 3, %s" % sT)
    a("s_lshl_b32 %s, %s, 12" % (sT, sTI))
    a("s_lshl_b32 %s, %s, 11" % (sT2, sHD))
    a("s_add_u32 %s, %s, %s" % (sT, sT, sT2))
    a("s_add_u32 %s, %s, %d" % (sT, sT, A_EX))
    a("v_lshl_add_u32 v171, v1, 3, %s" % sT)
    a("v_lshl_add_u32 v9, v2, 2, v4")
    a("v_lshl_add_u32 v10, v5, 4, v9")
    a("v_lshl_add_u32 v172, v10, 3, %s" % sT)
    a("s_sub_u32 %s, %s, 8192" % (sT, sT))
    a("s_add_u32 %s, %s, %d" % (sT2, sT2, A_EX + 4 * 4096))
    a("s_lshl_b32 s97, %s, 3" % sTI)
    a("s_cmp_lt_u32 %s, 2" % sTI)
    a("s_cselect_b32 s96, 7, 15")
    a("s_cselect_b32 s97, s97, 0")
    a("s_cselect_b32 %s, %s, %s" % (sT, sT2, sT))
    a("v_and_b32 v9, s96, v9")
    a("v_add_u32 v9, s97, v9")
    a("v_lshl_add_u32 v10, v5, 4, v9")
    a("v_lshl_add_u32 v173, v10, 3, %s" % sT)
    a("v_and_b32 v9, s96, v3")
    a("v_add_u32 v9, s97, v9")
    a("v_lshl_add_u32 v10, v2, 4, v9")
    a("v_lshl_add_u32 v174, v10, 3, %s" % sT)
    a("s_lshl_b32 %s, %s, 2" % (sT, sTB))
    a("s_add_u32 %s, %s, %s" % (sT, sT, sTI))
    a("s_lshl_b32 %s, %s, 4" % (sT, sT))
    a("s_lshl_b32 %s, %s, 1" % (sT2, sHP))
    a("s_add_u32 %s, %s, %s" % (sT, sT, sT2))
    a("s_add_u32 %s, %s, %s" % (sT, sT, sHD))
    a("s_lshl_b32 s98, %s, 10" % sT)
    a("s_lshl_b32 %s, %s, 7" % (sT, sTB))
    a("s_lshl_b32 %s, %s, 2" % (sT2, sHP))
    a("s_add_u32 %s, %s, %s" % (sT, sT, sT2))
    a("s_add_u32 s99, %s, %d" % (sT, WS_FA))
    roles_BCD(a)
    a("v_and_b32 v8, 2, v12")
    a("v_lshlrev_b32 v8, 1, v8")
    a("v_xor_b32 v8, v8, v13")
    a("s_lshl_b32 %s, %s, 3" % (sT, sW))
    a("v_add_u32 v9, %s, v12" % sT)
    a("v_mul_u32_u24 v9, 896, v9")
    a("v_lshl_add_u32 v9, v8, 4, v9")
    a("s_lshl_b32 %s, %s, 7" % (sT, sCB))
    a("v_add_u32 %s, %s, v9" % (vWO_DMA, sT))
    a("s_bfe_u32 %s, %s, 0x10001" % (sT, sW))
    a("s_lshl_b32 %s, %s, 3" % (sT, sT))
    a("v_lshl_or_b32 v8, v2, 1, %s" % sT)
    a("v_xor_b32 v8, v8, v3")
    a("s_lshl_b32 %s, %s, 2" % (sT, sW))
    a("v_add_u32 v9, %s, v2" % sT)
    a("v_mul_u32_u24 v9, 3584, v9")
    a("v_lshl_add_u32 v9, v8, 4, v9")
    a("s_lshl_b32 %s, %s, 8" % (sT, sFS))
    a("v_add_u32 %s, %s, v9" % (vWC_DMA, sT))
    FB = [96, 132]

    def reads(n):
        ch, ks = n >> 1, n & 1
        sl = slot(ch)
        ab = 24 if sl < 2 else 31
        ib = (sl & 1) * A_SLOT
        fb = FB[ks]
        out = []
        out.append("ds_read_b128 %s, v%d offset:%d" % (vr(fb + 4), ab + 2 + ks, ib))
        for hf in range(2):
            out.append("ds_read_b64_tr_b16 %s, v%d offset:%d" % (vr(fb + 32 + 2 * hf, 2), ab + 6, ib + ks * 4096 + hf * 512))
        out.append("ds_read_b128 %s, v%d offset:%d" % (vr(fb), ab + ks, ib))
        for t in (2, 3, 4, 5, 0, 1):
            m, dt = t >> 1, t & 1
            for hf in range(2):
                out.append("ds_read_b64_tr_b16 %s, v%d offset:%d" % (vr(fb + 8 + 4 * t + 2 * hf, 2), ab + 4 + dt, ib + m * 8192 + ks * 4096 + hf * 512))
        return out

    def compute(n):
        fb = FB[n & 1]
        z = "0" if n == 0 else None
        out = [mfma(aGH, fb + 4, fb + 4, z), mfma(aH, fb + 32, fb + 4, z), mfma(aGR, fb, fb, z), mfma(aRS, ONES, fb, z)]
        for t in (2, 3, 4, 5):
            out.append(mfma(ACC + 4 * t, fb + 8 + 4 * t, fb, z))
        out += [mfma(ACC, fb + 8, fb, z), mfma(cQ0, fb + 8, ONES, z), mfma(ACC + 4, fb + 12, fb, z), mfma(cQ1, fb + 12, ONES, z)]
        return out

    def wo_groups(i0, i1):
        return [[("s_add_u32 m0, %s, %d" % (sW1024, R0 + i * 8192), None),
                 ("s_mov_b32 s64, %d" % (i * 64 * 896), None),
                 ("buffer_load_dwordx4 %s, %s, s64 offen lds" % (vWO_DMA, SWO), "wo")] for i in range(i0, i1)]

    a.wait_tag(("A", 0), lg0=True)
    a("s_barrier")
    stamp(a, "A ch0 landed")
    for x in reads(0):
        a(x)
    pend = dma_groups(2)
    for n in range(14):
        rd = []
        if n + 1 < 14:
            if (n + 1) % 2 == 0:
                ch = (n + 1) // 2
                for g in pend:
                    emit_group(g)
                pend = []
                a.wait_tag(("A", ch))
                a("s_barrier")
                if ch == 6:
                    stamp(a, "A ch6 landed")
                if ch <= 4:
                    pend = dma_groups(ch + 2)
                if ch == 4:
                    pend.append([("v_mov_b32 v8, 0", None), ("buffer_load_dword v175, v8, %s, 0 offen sc1" % SDBG, None)])
                if ch == 5:
                    pend = wo_groups(0, 4)
                if ch == 6:
                    pend = wo_groups(4, 7)
            rd = reads(n + 1)
        for i, x in enumerate(compute(n)):
            a(x)
            for _ in range(2 if i < 4 else 1):
                if rd:
                    a(rd.pop(0))
            if pend and i % ASPACE == ASPACE - 1:
                emit_group(pend.pop(0))
        for x in rd:
            a(x)
    for g in pend:
        emit_group(g)

    stamp(a, "A loop done")
    T = 96
    for rr in range(4):
        a("v_mov_b32_dpp v%d, v%d row_newbcast:0 row_mask:0xf bank_mask:0xf" % (T + rr, aH + rr))
    a("ds_write_b128 v168, %s" % vr(T))
    for (acc, d) in ((aGH, "v9"), (aGR, "v8")):
        a("v_cndmask_b32 %s, v%d, v%d, s[60:61]" % (d, acc, acc + 1))
        a("v_cndmask_b32 %s, %s, v%d, s[62:63]" % (d, d, acc + 2))
        a("v_cndmask_b32 %s, %s, v%d, s[88:89]" % (d, d, acc + 3))
        a("v_cndmask_b32 %s, 0, %s, s[90:91]" % (d, d))
    a("v_cndmask_b32 v10, 0, v%d, s[92:93]" % aGH)
    a("s_waitcnt lgkmcnt(0)")
    a("s_barrier")
    CS = T + 4
    for t in range(4):
        a("ds_read_b128 %s, v169 offset:%d" % (vr(CS + 4 * t), 64 * t))
    xg_reduce_multi(a, "v_add_f32", ["v8", "v9", "v10"], ["v11", "v12", "v13"])
    a("s_mov_b32 %s, 0x%x" % (sT, f2u(1.0 / 448)))
    a("v_mov_b32 v12, 0x%x" % f2u(1e-5))
    SO, SH = 116, 118
    a("v_mul_f32 v%d, -%s, v10" % (SH, sT))
    a("v_mul_f32 v%d, -%s, v%d" % (SO, sT, aRS))
    a("v_fma_f32 v9, v9, %s, v12" % sT)
    a("v_fma_f32 v8, v8, %s, v12" % sT)
    a("v_fma_f32 v9, -v%d, v%d, v9" % (SH, SH))
    a("v_fma_f32 v8, -v%d, v%d, v8" % (SO, SO))
    a("v_max_f32 v9, v9, v12")
    a("v_max_f32 v8, v8, v12")
    a("v_rsq_f32 v%d, v9" % (SH + 1))
    a("v_rsq_f32 v%d, v8" % (SO + 1))

    def center(acc, cs, st):
        for rr in range(4):
            a("v_fmac_f32 v%d, v%d, v%d" % (acc + rr, st, cs + rr))

    def scale(acc, st):
        for rr in range(4):
            a("v_mul_f32 v%d, v%d, v%d" % (acc + rr, st + 1, acc + rr))

    def pack(dst, acc):
        a("v_cvt_pk_bf16_f32 v%d, v%d, v%d" % (dst, acc, acc + 1))
        a("v_cvt_pk_bf16_f32 v%d, v%d, v%d" % (dst + 1, acc + 2, acc + 3))

    center(aH, T, SH)
    for t in range(4):
        center(ACC + 8 + 4 * t, CS + 4 * t, SO)
    scale(aH, SH)
    pack(T, aH)
    a("ds_write_b64 v170, %s" % vr(T, 2))
    PK = 120
    for t in range(4):
        scale(ACC + 8 + 4 * t, SO)
        pack(PK + 2 * t, ACC + 8 + 4 * t)
        a("ds_write_b64 v171, %s offset:%d" % (vr(PK + 2 * t, 2), 512 * t))
    QP = 100
    center(ACC, cQ0, SO)
    center(ACC + 4, cQ1, SO)
    a("s_waitcnt lgkmcnt(0)")
    a("s_barrier")
    KP, V0, V1 = 104, 108, 112
    a("ds_read_b64 %s, v174" % vr(KP, 2))
    a("ds_read_b64 %s, v174 offset:512" % vr(KP + 2, 2))
    a("ds_read_b64_tr_b16 %s, v173 offset:1024" % vr(V0, 2))
    a("ds_read_b64_tr_b16 %s, v172 offset:1024" % vr(V0 + 2, 2))
    a("ds_read_b64_tr_b16 %s, v173 offset:1536" % vr(V1, 2))
    a("ds_read_b64_tr_b16 %s, v172 offset:1536" % vr(V1 + 2, 2))
    pack(QP, ACC)
    pack(QP + 2, ACC + 4)
    a("v_cndmask_b32 v%d, 0, v%d, s[94:95]" % (QP + 2, QP + 2))
    a("v_cndmask_b32 v%d, 0, v%d, s[94:95]" % (QP + 3, QP + 3))
    a(mfma(BC, PK, QP))
    a(mfma(BP, KP, QP))
    a("v_mul_f32 v13, 0x%x, v%d" % (f2u(28 ** -0.5 * LOG2E), SO + 1))
    a("v_max3_f32 v8, v%d, v%d, v%d" % (BC, BC + 1, BC + 2))
    a("v_max3_f32 v9, v%d, v%d, v%d" % (BC + 3, BP, BP + 1))
    a("v_max3_f32 v8, v8, v%d, v%d" % (BP + 2, BP + 3))
    a("v_max_f32 v8, v8, v9")
    xg_reduce_multi(a, "v_max_f32", ["v8"], ["v9"])
    a("v_mul_f32 v8, v13, v8")
    for i in range(8):
        a("v_fma_f32 v%d, v%d, v13, -v8" % (BP + i, BP + i))
    for i in range(8):
        a("v_exp_f32 v%d, v%d" % (BP + i, BP + i))
    a("v_add_f32 v9, v%d, v%d" % (BP, BP + 1))
    a("v_add_f32 v10, v%d, v%d" % (BP + 2, BP + 3))
    a("v_add_f32 v11, v%d, v%d" % (BP + 4, BP + 5))
    a("v_add_f32 v12, v%d, v%d" % (BP + 6, BP + 7))
    a("v_add_f32 v9, v9, v10")
    a("v_add_f32 v11, v11, v12")
    a("v_add_f32 v9, v9, v11")
    xg_reduce_multi(a, "v_add_f32", ["v9"], ["v10"])
    a("v_rcp_f32 v9, v9")
    for i in range(8):
        a("v_mul_f32 v%d, v9, v%d" % (BP + i, BP + i))
    P = 96
    for i in range(4):
        a("v_cvt_pk_bf16_f32 v%d, v%d, v%d" % (P + i, BP + 2 * i, BP + 2 * i + 1))
    O0, O1 = 40, 44
    a(mfma(O0, V0, P, "0"))
    a(mfma(O1, V1, P, "0"))
    a("v_lshlrev_b32 v14, 4, v1")
    nonce_fetch(a, "v175")
    OS = 124
    pack(OS, O0)
    pack(OS + 2, O1)
    a("v_cndmask_b32 v%d, 0, v%d, s[94:95]" % (OS + 2, OS + 2))
    a("v_cndmask_b32 v%d, 0, v%d, s[94:95]" % (OS + 3, OS + 3))
    a("buffer_store_dwordx4 %s, v14, %s, s98 offen%s" % (vr(OS), SWS, SC), tag="ost")
    stamp(a, "A o stored")


G1 = [(s, R1 + 8192 * s) for s in range(10)]
G2 = [(10 + i, R0 + 8192 * i) for i in range(7)]
G3 = [(17 + i, R1 + 8192 * i) for i in range(10)] + [(27, R2 + 16384)]


def phase_B(a):
    sTT, sKH, sTAU, sU = "s50", "s51", "s52", "s54"
    a("; ---------------- A->B ----------------")
    a("s_cmp_lt_u32 %s, 28" % sJ)
    a("s_cbranch_scc1 LgoB")
    raw(a, "s_waitcnt vmcnt(0)")
    raw(a, "s_barrier")
    publish(a, "s99")
    raw(a, "s_branch Lfin")
    a("LgoB:")
    a("v_mov_b32 v16, %s" % vWC_DMA)
    wc_dma(a, G1[:4], "v16", "g1")
    a("s_and_b32 %s, %s, 3" % (sTT, sW))
    a("s_lshr_b32 %s, %s, 2" % (sKH, sW))
    a("s_lshl_b32 %s, %s, 2" % (sTAU, sRB))
    a("s_add_u32 %s, %s, %s" % (sTAU, sTAU, sTT))
    a("v_lshl_add_u32 v8, v2, 2, v4")
    a("s_mul_i32 %s, %s, 224" % (sT, sKH))
    a("v_add_u32 v8, %s, v8" % sT)
    a("v_lshlrev_b32 v8, 7, v8")
    a("v_and_b32 v9, 2, v4")
    a("v_lshlrev_b32 v9, 1, v9")
    a("s_lshl_b32 %s, %s, 2" % (sT, sKH))
    a("v_or_b32 v10, %s, v5" % sT)
    a("v_xor_b32 v10, v10, v9")
    a("v_lshl_add_u32 v24, v10, 4, v8")
    a("v_xor_b32 v25, 64, v24")
    a("v_mov_b32 v9, 2048")
    a("v_cndmask_b32 v9, 0, v9, s[94:95]")
    a("v_add_u32 v26, v24, v9")
    a("v_add_u32 v27, v25, v9")
    a("s_lshr_b32 %s, %s, 1" % (sT, sTAU))
    a("s_lshl_b32 %s, %s, 5" % (sT, sT))
    a("s_and_b32 %s, %s, 1" % (sT2, sTAU))
    a("s_add_u32 %s, %s, %s" % (sT, sT, sT2))
    a("v_lshl_add_u32 v8, v3, 1, %s" % sT)
    a("v_mul_u32_u24 v8, 896, v8")
    a("v_lshl_add_u32 v8, v2, 4, v8")
    a("s_lshl_b32 %s, %s, 1" % (sU, sCB))
    a("s_add_u32 %s, %s, %s" % (sU, sU, sKH))
    a("s_lshl_b32 %s, %s, 6" % (sT3, sU))
    a.wait_tag("ost")
    a("s_barrier")
    publish(a, "s99")
    stamp(a, "A flag")
    XR = 20
    a("buffer_load_dwordx4 %s, v8, %s, %s offen" % (vr(XR), SX, sT3))
    wc_dma(a, G1[4:], "v16", "g1")
    for hh in range(8):
        for t in range(4):
            off = R0 + hh * 3584 + (t & 1) * 8
            a("ds_read_b64_tr_b16 %s, v%d offset:%d" % (vr(WOF + 16 * hh + 4 * t, 2), 24 + (t >> 1), off))
            a("ds_read_b64_tr_b16 %s, v%d offset:%d" % (vr(WOF + 16 * hh + 4 * t + 2, 2), 26 + (t >> 1), off))
    a("v_and_b32 v8, 1, v2")
    a("v_lshl_or_b32 v8, v8, 2, v4")
    a("v_lshlrev_b32 v8, 1, v8")
    a("v_lshrrev_b32 v9, 1, v5")
    a("s_lshl_b32 %s, %s, 1" % (sT, sW))
    a("v_add_u32 v9, %s, v9" % sT)
    a("v_xor_b32 v8, v8, v9")
    a("v_lshl_add_u32 v9, v2, 3, v4")
    a("v_lshlrev_b32 v9, 8, v9")
    a("v_lshl_add_u32 v9, v8, 4, v9")
    a("v_and_b32 v8, 1, v5")
    a("v_lshl_add_u32 v17, v8, 3, v9")
    a("v_add_u32 v18, 57344, v17")
    a("v_add_u32 v19, 114688, v17")
    OF, ACC = 32, 64
    for i in range(4):
        a("v_lshlrev_b32 v%d, 16, v%d" % (ACC + 2 * i, XR + i))
        a("v_and_b32 v%d, 0xffff0000, v%d" % (ACC + 2 * i + 1, XR + i))
    a("s_lshl_b32 %s, %s, 4" % (sT2, sTAU))
    a("s_lshl_b32 %s, %s, 3" % (sT3, sKH))
    a("s_add_u32 %s, %s, %s" % (sT2, sT2, sT3))
    a("s_lshl_b32 %s, %s, 10" % (sT2, sT2))
    a("s_add_u32 %s, %s, 4096" % (sT3, sT2))
    a("s_lshl_b32 %s, %s, 11" % (sT, sW))
    a("s_add_u32 %s, %s, %d" % (sT, sT, B_RB))
    a("v_add_u32 v12, %s, v14" % sT)
    a("s_xor_b32 %s, %s, 4" % (sT, sW))
    a("s_lshl_b32 %s, %s, 11" % (sT, sT))
    a("s_add_u32 %s, %s, %d" % (sT, sT, B_RB))
    a("v_add_u32 v13, %s, v14" % sT)
    a("s_mul_i32 s58, %s, 14" % sTAU)
    a("s_add_u32 s58, s58, %s" % sU)
    a("s_lshl_b32 s59, s58, 7")
    a("s_add_u32 s59, s59, %d" % WS_ST)
    a("s_lshl_b32 s58, s58, 10")
    a("s_add_u32 s58, s58, %d" % WS_H)
    a("s_lshl_b32 s60, %s, 7" % sRB)
    a("s_add_u32 s60, s60, %d" % WS_FA)
    a("s_lshr_b32 s61, %s, 1" % sRB)
    a("s_lshl_b32 s61, s61, 7")
    a("s_and_b32 %s, %s, 1" % (sT, sRB))
    a("s_mul_i32 %s, %s, 28" % (sT, sT))
    a("s_add_u32 s61, s61, %s" % sT)
    a("s_lshl_b32 %s, %s, 2" % (sT, sCB))
    a("s_add_u32 s61, s61, %s" % sT)
    a("s_add_u32 s61, s61, %d" % WS_FB)
    a("v_lshlrev_b32 v11, 3, v3")
    a.wait_tag("g1", lg0=True)
    stamp(a, "B pre-poll")
    poll(a, "s60", 0xff, 0)
    stamp(a, "B go")
    for hh in range(8):
        a("buffer_load_dwordx4 %s, v14, %s, %s offen offset:%d%s" % (vr(OF + 4 * hh), SWS, sT2 if hh < 4 else sT3, (hh & 3) * 1024, SC))
    a("s_barrier")
    for x in wc_read(G1, 17):
        a(x)
    for hh in range(8):
        if hh < 7:
            wc_dma(a, G2[hh:hh + 1], "v16", "g2")
        for t in (2, 3, 0, 1):
            a(mfma(ACC + 4 * t, WOF + 16 * hh + 4 * t, OF + 4 * hh, "0" if (hh == 0 and t >= 2) else None))
    a("ds_write_b128 v12, %s" % vr(ACC + 8))
    a("ds_write_b128 v12, %s offset:1024" % vr(ACC + 12))
    a("s_waitcnt lgkmcnt(0)")
    a("s_barrier")
    a("ds_read_b128 %s, v13" % vr(ACC + 8))
    a("ds_read_b128 %s, v13 offset:1024" % vr(ACC + 12))
    a("v_mov_b32 v8, 0")
    a("v_mov_b32 v9, 0")
    a("v_mov_b32 v6, 0")
    a("v_mov_b32 v7, 0")
    a("v_mov_b32 v10, 0x3f803f80")
    for i in range(8):
        a("v_add_f32 v%d, v%d, v%d" % (ACC + i, ACC + i, ACC + 8 + i))
    HP = 28
    for i in range(4):
        a("v_cvt_pk_bf16_f32 v%d, v%d, v%d" % (HP + i, ACC + 2 * i, ACC + 2 * i + 1))
    a("buffer_store_dwordx4 %s, v14, %s, s58 offen%s" % (vr(HP), SWS, SC))
    for i in range(4):
        a("v_dot2c_f32_bf16 v%d, v%d, v10" % (8 if i & 1 else 6, HP + i))
        a("v_dot2c_f32_bf16 v%d, v%d, v%d" % (9 if i & 1 else 7, HP + i, HP + i))
    a("v_add_f32 v8, v8, v6")
    a("v_add_f32 v9, v9, v7")
    xg_reduce_multi(a, "v_add_f32", ["v8", "v9"], ["v6", "v7"])
    a("s_mov_b64 exec, 0xffff")
    a("buffer_store_dwordx2 v[8:9], v11, %s, s59 offen%s" % (SWS, SC), tag="hst")
    a("s_mov_b64 exec, -1")
    stamp(a, "B h stored")


def phase_C(a):
    a("; ---------------- B->C ----------------")
    wc_dma(a, G3[:4], "v16", "g3")
    a.wait_tag("hst")
    a("s_barrier")
    publish(a, "s61")
    stamp(a, "B flag")
    wc_dma(a, G3[4:], "v16", "g3")
    for x in wc_read(G2, 17):
        a(x)
    ONES, CSG, CSU = 20, 24, 28
    for i in range(4):
        a("v_mov_b32 v%d, 0x3f803f80" % (ONES + i))
    for u in range(14):
        a(mfma(CSG, WGF + 4 * u, ONES, "0" if u == 0 else None))
    a("s_mul_i32 %s, %s, 114688" % (sT2, sRQ))
    a("s_add_u32 %s, %s, %d" % (sT2, sT2, WS_H))
    a("s_mul_i32 s62, %s, 3584" % sW)
    a("v_add_u32 v12, s62, v14")
    a("s_lshl_b32 %s, %s, 3" % (sT3, sRQ))
    a("s_add_u32 %s, %s, %s" % (sT3, sT3, sW))
    a("s_mul_i32 %s, %s, 1792" % (sT3, sT3))
    a("s_add_u32 %s, %s, %d" % (sT3, sT3, WS_ST))
    a("v_lshlrev_b32 v9, 3, v1")
    a("v_mov_b32 v38, 0")
    a("v_mov_b32 v39, 0")
    a("v_and_b32 v8, 1, v2")
    a("v_mul_u32_u24 v8, 57344, v8")
    a("v_lshrrev_b32 v10, 1, v2")
    a("s_and_b32 %s, %s, 1" % (sT, sW))
    a("s_lshl_b32 %s, %s, 1" % (sT, sT))
    a("v_add_u32 v10, %s, v10" % sT)
    a("v_lshl_add_u32 v8, v10, 8, v8")
    a("v_lshl_add_u32 v13, v3, 4, v8")
    a("s_mul_i32 s58, %s, 448" % sRQ)
    a("s_lshl_b32 %s, %s, 2" % (sT, sFS))
    a("s_add_u32 s58, s58, %s" % sT)
    a("s_lshr_b32 %s, %s, 1" % (sT, sW))
    a("s_add_u32 s58, s58, %s" % sT)
    a("s_lshl_b32 s58, s58, 10")
    a("s_add_u32 s58, s58, %d" % WS_HH)
    a("s_mov_b32 s59, 0x%x" % f2u(-LOG2E))
    a("s_lshl_b32 s60, %s, 7" % sRQ)
    a("s_add_u32 s60, s60, %d" % WS_FB)
    a("s_lshl_b32 s61, %s, 8" % sRQ)
    a("s_lshl_b32 %s, %s, 2" % (sT, sFS))
    a("s_add_u32 s61, s61, %s" % sT)
    a("s_add_u32 s61, s61, %d" % WS_FC)
    a.wait_tag("g3", lg0=True)
    a("s_barrier")
    for x in wc_read(G3, 17):
        a(x)
    a("s_waitcnt lgkmcnt(0)")
    stamp(a, "C pre-poll")
    poll(a, "s60", 0x3fff, 0)
    stamp(a, "C go")
    def h_groups(tp):
        tg = ("h", tp)
        gs = []
        for i in range(4):
            g = []
            if i == 0:
                g.append(("s_add_u32 s64, %s, %d" % (sT2, tp * 28672), None))
            g.append(("s_add_u32 m0, s62, %d" % (tp * 28672), None))
            if i == 3:
                g.append(("s_mov_b32 exec_hi, 0", None))
            g.append(("buffer_load_dwordx4 v12, %s, s64 offen offset:%d%s lds" % (SWS, i * 1024, SC), tg))
            if i == 3:
                g.append(("s_mov_b64 exec, -1", None))
            gs.append(g)
        return gs

    def emit_group(g):
        for (x, tg) in g:
            a(x, tag=tg)

    for g in h_groups(0):
        emit_group(g)
    a("s_mov_b32 exec_hi, 0")
    a("buffer_load_dwordx2 v[38:39], v9, %s, %s offen offset:1536%s" % (SWS, sT3, SC))
    a("s_mov_b64 exec, -1")
    for i in range(3):
        a("buffer_load_dwordx2 v[%d:%d], v9, %s, %s offen offset:%d%s" % (32 + 2 * i, 33 + 2 * i, SWS, sT3, 512 * i, SC))
    a("s_barrier")
    for g in h_groups(1):
        emit_group(g)
    hpend = h_groups(2) + h_groups(3)
    for u in range(14):
        a(mfma(CSU, WUF + 4 * u, ONES, "0" if u == 0 else None))
    a("v_add_u32 v16, 57344, v14")
    a("v_lshlrev_b32 v19, 4, v3")
    a("v_add_u32 v19, %d, v19" % C_ST)
    a("s_lshl_b32 %s, %s, 8" % (sT, sW))
    a("v_add_u32 v9, %s, v19" % sT)
    for (d, x) in ((32, 34), (33, 35), (36, 38), (37, 39), (32, 36), (33, 37)):
        a("v_add_f32 v%d, v%d, v%d" % (d, d, x))
    xg_reduce_multi(a, "v_add_f32", ["v32", "v33"], ["v10", "v11"])
    a("s_mov_b32 %s, 0x%x" % (sT, f2u(1.0 / 448)))
    a("v_mov_b32 v10, 0x%x" % f2u(1e-5))
    a("v_mul_f32 v32, -%s, v32" % sT)
    a("v_fma_f32 v33, v33, %s, v10" % sT)
    a("v_fma_f32 v33, -v32, v32, v33")
    a("v_max_f32 v33, v33, v10")
    a("v_sqrt_f32 v34, v33")
    a("v_rsq_f32 v33, v33")
    a("v_mul_f32 v33, s59, v33")
    a("ds_write_b128 v9, v[32:35]")
    AF, NR = 192, 8
    ACCS = [40, 56]
    STS = [32, 72]
    PKD = [224, 228]

    def rd_list(tp):
        rd = []
        for u in range(14):
            for t in range(2):
                off = (tp * 2 + t) * 14336 + u * 1024
                k = tp * 28 + u * 2 + t
                rd.append("ds_read_b128 %s, v%d offset:%d" % (vr(AF + 4 * (k % NR)), 14 if off < 57344 else 16, off % 57344))
        return rd

    def epi(tp):
        acc, st, pk = ACCS[tp & 1], STS[tp & 1], PKD[tp & 1]
        o = []
        for t in range(2):
            g, u_, s = acc + 8 * t, acc + 8 * t + 4, st + 4 * t
            for rr in range(4):
                o.append("v_fmac_f32 v%d, v%d, v%d" % (g + rr, s, CSG + rr))
            for rr in range(4):
                o.append("v_mul_f32 v%d, v%d, v%d" % (g + rr, s + 1, g + rr))
            for rr in range(4):
                o.append("v_exp_f32 v%d, v%d" % (g + rr, g + rr))
            for rr in range(4):
                o.append("v_fmac_f32 v%d, v%d, v%d" % (u_ + rr, s, CSU + rr))
            for rr in range(4):
                o.append("v_fma_f32 v%d, v%d, v%d, v%d" % (g + rr, g + rr, s + 2, s + 2))
            for rr in range(4):
                o.append("v_rcp_f32 v%d, v%d" % (g + rr, g + rr))
            for rr in range(4):
                o.append("v_mul_f32 v%d, v%d, v%d" % (g + rr, g + rr, u_ + rr))
            o.append("v_cvt_pk_bf16_f32 v%d, v%d, v%d" % (pk + 2 * t, g, g + 1))
            o.append("v_cvt_pk_bf16_f32 v%d, v%d, v%d" % (pk + 2 * t + 1, g + 2, g + 3))
        o.append("v_permlane16_swap_b32 v%d, v%d" % (pk, pk + 2))
        o.append("v_permlane16_swap_b32 v%d, v%d" % (pk + 1, pk + 3))
        o.append(("buffer_store_dwordx4 %s, v13, %s, s58 offen%s" % (vr(pk), SWS, SC), ("hh", tp)))
        o.append("s_add_u32 s58, s58, %d" % (2 * 57344))
        return o

    def emit(x):
        if isinstance(x, tuple):
            a(x[0], tag=x[1])
        else:
            a(x)

    a.wait_tag(("h", 0), lg0=True)
    a("s_barrier")
    stamp(a, "C h0 landed")
    allrd = [x for tp in range(4) for x in rd_list(tp)]
    nxt = 0
    LA = NR - 2
    for tp in range(4):
        acc = ACCS[tp & 1]
        ep = epi(tp - 1) if tp else []
        a("ds_read_b128 %s, v19 offset:%d" % (vr(STS[tp & 1]), tp * 512))
        a("ds_read_b128 %s, v19 offset:%d" % (vr(STS[tp & 1] + 4), tp * 512 + 256))
        for u in range(14):
            for t in range(2):
                k = tp * 28 + u * 2 + t
                if k + LA == 28:
                    a.wait_tag(("h", 1))
                    a("s_barrier")
                if k + LA == 56:
                    a.wait_tag(("h", 3))
                    a("s_barrier")
                if hpend and k % 3 == 1:
                    emit_group(hpend.pop(0))
                while nxt < len(allrd) and nxt <= k + LA - 1:
                    a(allrd[nxt])
                    nxt += 1
                f = AF + 4 * (k % NR)
                z = "0" if u == 0 else None
                a(mfma(acc + 8 * t, WGF + 4 * u, f, z))
                if ep and u >= 1:
                    emit(ep.pop(0))
                a(mfma(acc + 8 * t + 4, WUF + 4 * u, f, z))
                if ep and u >= 1:
                    emit(ep.pop(0))
                    if ep and len(ep) > 2 * (27 - 2 * u - t):
                        emit(ep.pop(0))
        for x in ep:
            emit(x)
    stamp(a, "C mfma done")
    return epi, emit


def phase_D(a, epi, emit):
    a("; ---------------- C->D ----------------")
    a("v_lshrrev_b32 v6, 3, v1")
    a("v_and_b32 v7, 7, v1")
    a("v_and_b32 v8, 6, v6")
    a("v_xor_b32 v8, v8, v7")
    a("v_and_b32 v9, 3, v6")
    a("v_lshrrev_b32 v10, 2, v6")
    a("v_lshl_add_u32 v9, v10, 3, v9")
    a("s_mul_i32 %s, %s, 224" % (sT, sW))
    a("v_add_u32 v9, %s, v9" % sT)
    a("v_mul_u32_u24 v9, 896, v9")
    a("v_lshl_add_u32 v9, v8, 4, v9")
    a("s_lshl_b32 %s, %s, 7" % (sT, sCB))
    a("v_add_u32 v12, %s, v9" % sT)
    a("s_mul_i32 s62, %s, 20480" % sW)
    a("s_barrier")

    def wd_dma(u0, u1, base):
        for u in range(u0, u1):
            for i4 in range(4):
                i = 4 * u + i4
                a("s_add_u32 m0, s62, %d" % (base + (i - 4 * u0) * 1024))
                a("s_mov_b32 %s, %d" % (sT, (16 * (i >> 1) + 4 * (i & 1)) * 896))
                a("buffer_load_dwordx4 v12, %s, %s offen lds" % (SWD, sT), tag=("wd", u))

    wd_dma(0, 1, 0)
    for x in epi(3):
        emit(x)
    stamp(a, "C last store")
    wd_dma(1, 2, 4096)
    a.wait_tag(("hh", 3))
    a("s_barrier")
    L = a.label("pubc")
    raw(a, "s_cmp_lg_u32 %s, 0" % sW)
    raw(a, "s_cbranch_scc1 %s" % L)
    raw(a, "s_mov_b64 exec, 15")
    raw(a, "v_mov_b32 v10, %s" % sNONCE)
    raw(a, "v_lshlrev_b32 v11, 6, v1")
    raw(a, "buffer_store_dword v10, v11, %s, s61 offen sc1" % SWS)
    raw(a, "s_mov_b64 exec, -1")
    raw(a, "%s:" % L)
    stamp(a, "C flag")
    wd_dma(2, 5, 8192)
    a("v_and_b32 v8, 1, v2")
    a("v_lshl_add_u32 v8, v8, 2, v4")
    a("v_and_b32 v9, 6, v8")
    a("v_lshrrev_b32 v10, 1, v5")
    a("v_xor_b32 v9, v9, v10")
    a("v_lshrrev_b32 v10, 1, v2")
    a("v_lshl_add_u32 v8, v10, 4, v8")
    a("v_lshlrev_b32 v8, 7, v8")
    a("v_lshl_add_u32 v8, v9, 4, v8")
    a("v_and_b32 v9, 1, v5")
    a("v_lshl_add_u32 v8, v9, 3, v8")
    a("v_add_u32 v240, s62, v8")
    for t in range(1, 4):
        a("v_xor_b32 v%d, %d, v240" % (240 + t, 32 * t))
    WF = 16

    def wd_read(u, base):
        a.wait_tag(("wd", u))
        for t in range(4):
            for hf in range(2):
                a("ds_read_b64_tr_b16 %s, v%d offset:%d" % (vr(WF + 16 * u + 4 * t + 2 * hf, 2), 240 + t, base + hf * 1024))

    wd_read(0, 0)
    wd_read(1, 4096)
    a("s_waitcnt lgkmcnt(0)")
    wd_dma(5, 7, 0)
    a("s_lshr_b32 %s, %s, 1" % (sT, sRB))
    a("s_lshl_b32 s60, %s, 8" % sT)
    a("s_add_u32 s60, s60, %d" % WS_FC)
    a("s_lshl_b32 %s, %s, 3" % (sT, sT))
    a("s_and_b32 %s, %s, 1" % (sT2, sRB))
    a("s_add_u32 s63, %s, %s" % (sT, sT2))
    a("s_mul_i32 %s, s63, 56" % sT)
    a("s_mul_i32 %s, %s, 7" % (sT2, sW))
    a("s_add_u32 %s, %s, %s" % (sT, sT, sT2))
    a("s_lshl_b32 %s, %s, 10" % (sT, sT))
    a("s_add_u32 s58, %s, %d" % (sT, WS_HH))
    a("v_add_u32 v13, 4096, v14")
    for u in range(2, 5):
        wd_read(u, 8192 + (u - 2) * 4096)
    stamp(a, "D pre-poll")
    poll(a, "s60", 0x3fff3fff, 0x3fff3fff)
    stamp(a, "D go")
    AF, ACC = 128, 240
    DLA = 8

    def hh_load(k):
        rt, i = k // 7, k % 7
        a("buffer_load_dwordx4 %s, v%d, %s, s58 offen offset:%d%s" % (vr(AF + 4 * k), 14 if i < 4 else 13, SWS, (i & 3) * 1024, SC))
        if i == 6:
            a("s_add_u32 s58, s58, %d" % (2 * 57344))

    for k in range(DLA):
        hh_load(k)
        if k == DLA // 2 - 1:
            a("s_barrier")
    wd_read(5, 0)
    wd_read(6, 4096)
    a("v_lshrrev_b32 v6, 1, v2")
    a("v_lshl_add_u32 v6, v6, 1, v3")
    a("s_lshl_b32 %s, %s, 12" % (sT, sW))
    a("v_lshl_add_u32 v7, v2, 8, %s" % sT)
    for t in range(4):
        a("v_add_u32 v12, %d, v6" % (4 * t))
        a("v_and_b32 v12, 15, v12")
        a("v_lshl_add_u32 v%d, v12, 4, v7" % (8 + t))
    a("s_waitcnt lgkmcnt(0)")
    a("s_barrier")
    for rt in range(4):
        for i in range(7):
            for t in range(4):
                a(mfma(ACC + 4 * t, WF + 16 * i + 4 * t, AF + 28 * rt + 4 * i, "0" if i == 0 else None))
            if rt * 7 + i + DLA < 28:
                hh_load(rt * 7 + i + DLA)
        if rt == 2:
            a("v_lshrrev_b32 v6, 3, v1")
            a("v_and_b32 v7, 7, v1")
            a("s_lshr_b32 %s, %s, 1" % (sT, sW))
            a("s_lshl_b32 %s, %s, 1" % (sT, sT))
            a("s_add_u32 s63, s63, %s" % sT)
            a("s_and_b32 %s, %s, 1" % (sT2, sW))
            a("s_lshl_b32 %s, %s, 3" % (sT2, sT2))
            a("v_add_u32 v6, %s, v6" % sT2)
            a("v_lshlrev_b32 v12, 8, v7")
            a("v_lshl_add_u32 v12, v6, 4, v12")
            a("s_mul_i32 %s, s63, 14" % sT)
            a("s_lshl_b32 %s, %s, 1" % (sT2, sCB))
            a("s_add_u32 %s, %s, %s" % (sT, sT, sT2))
            a("s_lshl_b32 %s, %s, 10" % (sT, sT))
            a("s_add_u32 %s, %s, %d" % (sT, sT, WS_H))
            a("buffer_load_dwordx4 %s, v12, %s, %s offen%s" % (vr(128), SWS, sT, SC))
        if rt == 2:
            for t in range(4):
                a("v_add_u32 v%d, 65536, v%d" % (8 + t, 8 + t))
        for t in range(4):
            a("ds_write_b128 v%d, %s offset:%d" % (8 + t, vr(ACC + 4 * t), (rt & 1) * 32768 + t * 1024))
    stamp(a, "D mfma done")
    a("v_lshl_add_u32 v10, v7, 1, v6")
    a("v_and_b32 v10, 15, v10")
    a("v_lshlrev_b32 v10, 4, v10")
    a("v_lshl_add_u32 v10, v7, 9, v10")
    a("s_lshr_b32 %s, %s, 1" % (sT, sW))
    a("s_lshl_b32 %s, %s, 15" % (sT, sT))
    a("v_add_u32 v10, %s, v10" % sT)
    a("s_lshr_b32 %s, s63, 1" % sT)
    a("s_lshl_b32 %s, %s, 5" % (sT, sT))
    a("s_and_b32 %s, s63, 1" % sT2)
    a("s_add_u32 %s, %s, %s" % (sT, sT, sT2))
    a("v_lshl_add_u32 v11, v6, 1, %s" % sT)
    a("v_mul_u32_u24 v11, 896, v11")
    a("v_lshl_add_u32 v11, v7, 4, v11")
    a("s_lshl_b32 %s, %s, 7" % (sT, sCB))
    S = 132
    for i in range(4):
        a("v_lshlrev_b32 v%d, 16, v%d" % (S + 2 * i, 128 + i))
        a("v_and_b32 v%d, 0xffff0000, v%d" % (S + 2 * i + 1, 128 + i))
    a("s_waitcnt lgkmcnt(0)")
    a("s_barrier")
    RD = 16
    for p in range(8):
        a("ds_read_b128 %s, v10 offset:%d" % (vr(RD + 8 * p), p * 4096))
        a("ds_read_b128 %s, v10 offset:%d" % (vr(RD + 8 * p + 4), p * 4096 + 256))
    for p in range(8):
        for i in range(8):
            a("v_add_f32 v%d, v%d, v%d" % (S + i, S + i, RD + 8 * p + i))
    for i in range(4):
        a("v_cvt_pk_bf16_f32 v%d, v%d, v%d" % (128 + i, S + 2 * i, S + 2 * i + 1))
    a("buffer_store_dwordx4 %s, v11, %s, %s offen" % (vr(128), SOUT, sT))
    stamp(a, "D out stored")


HEADER = open("cdna_kernels/%s.s.ref" % NAME).read().split("; Override launch")[0]


def build():
    n = NAME + "_kernel"
    out = HEADER
    out += "; @launch grid=(256,1,1) block=(512,1,1) lds=163840\n"
    out += '.amdgcn_target "amdgcn-amd-amdhsa--gfx950"\n.text\n'
    a = Asm()
    prologue(a)
    phase_A(a)
    phase_B(a)
    epi, emit = phase_C(a)
    phase_D(a, epi, emit)
    a("Lfin:")
    stamp_flush(a)
    a("Lend:")
    a("s_endpgm")
    a("Lcode_end:")
    body = a.render()
    out += ".globl %s\n.p2align 8\n.type %s,@function\n%s:\nLcode_begin:\n%s" % (n, n, n, body)

    out += '.section .rodata,"a"\n.p2align 6\n'
    out += """.amdhsa_kernel %s
  .amdhsa_next_free_vgpr 256
  .amdhsa_next_free_sgpr 102
  .amdhsa_accum_offset 256
  .amdhsa_group_segment_fixed_size 0
  .amdhsa_kernarg_size 80
  .amdhsa_user_sgpr_count 2
  .amdhsa_user_sgpr_kernarg_segment_ptr 1
  .amdhsa_system_sgpr_workgroup_id_x 1
.end_amdhsa_kernel
""" % n
    return out


if __name__ == "__main__":
    dst = sys.argv[1] if len(sys.argv) > 1 else "cdna_kernels/%s.s" % NAME
    STAMPS = "stamps" in sys.argv
    OPT = set(sys.argv[2:])
    txt = build()
    import subprocess, re
    open("_sz.s", "w").write(txt.replace("CODE_BYTES", "0x12345"))
    subprocess.check_call(["clang", "-x", "assembler", "-target", "amdgcn-amd-amdhsa", "-mcpu=gfx950", "-c", "_sz.s", "-o", "_sz.o"])
    sym = subprocess.check_output(["llvm-objdump", "-t", "_sz.o"]).decode()
    end = int(re.search(r"([0-9a-f]+) .*Lcode_end", sym).group(1), 16)
    print("code bytes", end)
    open(dst, "w").write(txt.replace("CODE_BYTES", str((end - 64) & ~3)))
    print("wrote", dst)
```

```python
import sys, struct
sys.path.insert(0, "dev")
from asmlib import Asm, Ins

NAME = "sequential_preLN__sliding_local_dilated__glu_gated_glu__prompt"

WS_O = 0
WS_H = 2 << 20
WS_ST = 4 << 20
WS_HH = 8 << 20
WS_FA = 16 << 20
WS_FB = WS_FA + 8192
WS_FC = WS_FA + 16384
WS_TS = 20 << 20
WS_SIZE = 32 << 20

SX, SWQKV, SWO, SWG, SWU, SWD, SOUT, SWS, SDBG = [("s[%d:%d]" % (b, b + 3)) for b in range(8, 44, 4)]
sW, sXC, sJ, sNONCE = "s44", "s45", "s46", "s47"
sT, sT2, sT3 = "s55", "s56", "s57"
sW1024 = "s53"
sRB, sCB, sRQ, sFS = "s84", "s85", "s86", "s87"
SC = " sc1"
LOG2E = 1.4426950408889634
STAMPS = False
OPT = set()
NSTAMP = [0]
ASPACE = 3


def f2u(x):
    return struct.unpack("<I", struct.pack("<f", x))[0]


def vr(b, n=4):
    return "v[%d:%d]" % (b, b + n - 1)


def mfma(acc, A, B, C=None):
    return "v_mfma_f32_16x16x32_bf16 %s, %s, %s, %s" % (vr(acc), vr(A), vr(B), vr(acc) if C is None else C)


def raw(a, text):
    for line in text.split("\n"):
        line = line.strip()
        if not line:
            continue
        if line.endswith(":"):
            a.items.append(("l", line))
        else:
            a.items.append(("i", Ins(line)))


def stamp(a, name):
    if STAMPS:
        i = NSTAMP[0]
        NSTAMP[0] += 1
        a("; STAMP %d %s" % (i, name))
        a("s_memrealtime s[100:101]")
        a("s_waitcnt lgkmcnt(0)")
        a("v_writelane_b32 v15, s100, %d" % i)


def stamp_flush(a):
    if STAMPS:
        a("s_lshl_b32 s3, s2, 3")
        a("s_add_u32 s3, s3, %s" % sW)
        a("s_lshl_b32 s3, s3, 8")
        a("s_add_u32 s3, s3, %d" % WS_TS)
        a("v_lshlrev_b32 v7, 2, v1")
        a("buffer_store_dword v15, v7, %s, s3 offen" % SWS)
        if "dbgout" in OPT:
            a("s_cmp_lg_u32 s2, 100")
            a("s_cbranch_scc1 Lend")
            a("s_cmp_lg_u32 %s, 3" % sW)
            a("s_cbranch_scc1 Lend")
            sel = [0, 2, 3, 5, 6, 8, 9, 10, 12, 13, 14, 16, 18, 19, 20]
            a("v_mov_b32 v7, 0")
            for i, st in enumerate(sel):
                a("v_readlane_b32 s3, v15, %d" % st)
                a("s_sub_u32 s3, s3, %s" % sNONCE)
                a("v_mov_b32 v6, s3")
                a("buffer_store_dword v6, v7, %s, 0 offen offset:%d" % (SDBG, 4 + 4 * i))


def xg_reduce_multi(a, op, xs, ts):
    for step in ("v_permlane32_swap_b32", "v_permlane16_swap_b32"):
        for x, t in zip(xs, ts):
            a("v_mov_b32 %s, %s" % (t, x))
        for x, t in zip(xs, ts):
            a("%s %s, %s" % (step, t, x))
        for x, t in zip(xs, ts):
            a("%s %s, %s, %s" % (op, x, x, t))


def publish(a, soff):
    L = a.label("pub")
    raw(a, "s_cmp_lg_u32 %s, 0" % sW)
    raw(a, "s_cbranch_scc1 %s" % L)
    raw(a, "s_mov_b64 exec, 1")
    raw(a, "v_mov_b32 v6, %s" % sNONCE)
    raw(a, "v_mov_b32 v7, 0")
    raw(a, "buffer_store_dword v6, v7, %s, %s offen sc1" % (SWS, soff))
    raw(a, "s_mov_b64 exec, -1")
    raw(a, "%s:" % L)


def poll(a, soff, mask_lo, mask_hi):
    L, Lp, Ld = a.label("skip"), a.label("poll"), a.label("done")
    raw(a, "s_cmp_lg_u32 %s, 0" % sW)
    raw(a, "s_cbranch_scc1 %s" % L)
    raw(a, "v_lshlrev_b32 v7, 2, v1")
    raw(a, "s_mov_b32 exec_lo, 0x%x" % mask_lo)
    raw(a, "s_mov_b32 exec_hi, 0x%x" % mask_hi)
    raw(a, "s_mov_b32 s3, 20000")
    raw(a, "%s:" % Lp)
    raw(a, "buffer_load_dword v6, v7, %s, %s offen sc1" % (SWS, soff))
    raw(a, "s_waitcnt vmcnt(0)")
    raw(a, "v_cmp_ne_u32 vcc, %s, v6" % sNONCE)
    raw(a, "s_sub_u32 s3, s3, 1")
    raw(a, "s_cbranch_scc1 %s" % Ld)
    raw(a, "s_nop 1")
    raw(a, "s_cmp_lg_u64 vcc, 0")
    raw(a, "s_cbranch_scc1 %s" % Lp)
    raw(a, "%s:" % Ld)
    raw(a, "s_mov_b64 exec, -1")
    raw(a, "%s:" % L)
    a("s_barrier")


def prologue(a):
    a("s_load_dwordx16 s[64:79], s[0:1], 0")
    a("s_load_dwordx4 s[80:83], s[0:1], 64")
    a("s_memrealtime s[4:5]")
    a("s_cmp_ge_u32 s2, 256")
    a("s_cbranch_scc1 Lend")
    a("s_getpc_b64 s[6:7]")
    a("v_and_b32 v1, 63, v0")
    a("v_lshrrev_b32 v6, 6, v0")
    a("v_lshrrev_b32 v2, 4, v1")
    a("v_readfirstlane_b32 %s, v6" % sW)
    a("v_and_b32 v3, 15, v0")
    a("v_bfe_u32 v4, v0, 2, 2")
    a("v_and_b32 v5, 3, v0")
    if STAMPS:
        a("v_mov_b32 v15, 0")
    a("s_and_b32 %s, s2, 7" % sXC)
    a("s_lshr_b32 %s, s2, 3" % sJ)
    a("v_lshlrev_b32 v6, 7, v0")
    a("v_min_u32 v6, CODE_BYTES, v6")
    a("s_cmp_gt_u32 %s, 3" % sW)
    a("s_cbranch_scc1 Lnopf")
    raw(a, "global_load_dword v7, v6, s[6:7]")
    a("Lnopf:")
    sizes = {8: 2048 * 896, 12: 448 * 2688, 16: 448 * 896, 20: 448 * 3584, 24: 448 * 3584,
             28: 1792 * 896, 32: 2048 * 896, 36: WS_SIZE, 40: 256}
    for b, sz in sizes.items():
        a("s_mov_b32 s%d, %d" % (b + 2, sz))
        a("s_mov_b32 s%d, 0x00020000" % (b + 3))
    a("s_lshl_b32 %s, %s, 10" % (sW1024, sW))


def prologue2(a):
    a("s_waitcnt lgkmcnt(0)")
    src = {8: 64, 12: 66, 16: 68, 20: 72, 24: 74, 28: 76, 32: 78, 36: 82, 40: 80}
    for b, s in src.items():
        a("s_mov_b64 s[%d:%d], s[%d:%d]" % (b, b + 1, s, s + 1))


def nonce_publish(a):
    a("s_or_b32 s3, s2, %s" % sW)
    a("s_cmp_lg_u32 s3, 0")
    a("s_cbranch_scc1 Lnononce")
    raw(a, "s_or_b32 s3, s4, 1")
    raw(a, "v_mov_b32 v8, s3")
    raw(a, "v_mov_b32 v9, 0")
    raw(a, "s_mov_b64 exec, 1")
    raw(a, "buffer_store_dword v8, v9, %s, 0 offen sc1" % SDBG)
    raw(a, "s_mov_b64 exec, -1")
    a("Lnononce:")


def nonce_fetch(a, vN):
    L, Lp = a.label("nskip"), a.label("npoll")
    a("v_readfirstlane_b32 %s, %s" % (sNONCE, vN))
    raw(a, "s_nop 1")
    raw(a, "s_cmp_lg_u32 %s, 0" % sNONCE)
    raw(a, "s_cbranch_scc1 %s" % L)
    raw(a, "s_mov_b32 s3, 20000")
    raw(a, "v_mov_b32 v7, 0")
    raw(a, "%s:" % Lp)
    raw(a, "buffer_load_dword v6, v7, %s, 0 offen sc1" % SDBG)
    raw(a, "s_waitcnt vmcnt(0)")
    raw(a, "v_readfirstlane_b32 %s, v6" % sNONCE)
    raw(a, "s_sub_u32 s3, s3, 1")
    raw(a, "s_cbranch_scc1 %s" % L)
    raw(a, "s_nop 1")
    raw(a, "s_cmp_eq_u32 %s, 0" % sNONCE)
    raw(a, "s_cbranch_scc1 %s" % Lp)
    raw(a, "%s:" % L)
    raw(a, "s_nop 3")


def touch(a, jobs):
    Lend = a.label("tend")
    for (w, srd, n) in jobs:
        L = a.label("tn")
        raw(a, "s_cmp_lg_u32 %s, %d" % (sW, w))
        raw(a, "s_cbranch_scc1 %s" % L)
        raw(a, "s_mul_i32 s3, s2, %d" % (n * 128))
        raw(a, "v_min_u32 v6, %d, v1" % (n - 1))
        raw(a, "v_lshlrev_b32 v6, 7, v6")
        raw(a, "buffer_load_dword v7, v6, %s, s3 offen" % srd)
        raw(a, "s_branch %s" % Lend)
        raw(a, "%s:" % L)
    raw(a, "%s:" % Lend)


A_SLOT = 34816
A_XOFF = 24576
A_EX = 4 * A_SLOT
A_CS = A_EX + 20480
R0, R1, R2 = 0, 57344, 139264
B_RB = R2
C_ST = 114688

vWO_DMA, vWC_DMA, vWC_TR = "v176", "v177", 178
WGF, WUF = 80, 136
WOF = 128


def roles_BCD(a):
    a("s_mul_i32 %s, %s, 37" % (sRB, sJ))
    a("s_lshr_b32 %s, %s, 8" % (sRB, sRB))
    a("s_mul_i32 %s, %s, 7" % (sCB, sRB))
    a("s_sub_u32 %s, %s, %s" % (sCB, sJ, sCB))
    a("s_lshr_b32 %s, %s, 1" % (sT, sXC))
    a("s_lshl_b32 %s, %s, 2" % (sT, sT))
    a("s_add_u32 %s, %s, %s" % (sRQ, sRB, sT))
    a("s_and_b32 %s, %s, 1" % (sT, sXC))
    a("s_mul_i32 %s, %s, 7" % (sT, sT))
    a("s_add_u32 %s, %s, %s" % (sFS, sCB, sT))
    a("s_lshl_b32 %s, %s, 2" % (sT, sXC))
    a("s_add_u32 %s, %s, %s" % (sRB, sRB, sT))


def wo_dma(a, i0, i1, vaddr):
    for i in range(i0, i1):
        a("s_add_u32 m0, %s, %d" % (sW1024, R0 + i * 8192))
        a("s_mov_b32 %s, %d" % (sT, i * 64 * 896))
        a("buffer_load_dwordx4 %s, %s, %s offen lds" % (vaddr, SWO, sT), tag="wo")


def wc_dma(a, slabs, vaddr, tag):
    for (s, base) in slabs:
        a("s_add_u32 m0, %s, %d" % (sW1024, base))
        a("s_mov_b32 %s, %d" % (sT, (s % 14) * 114688))
        a("buffer_load_dwordx4 %s, %s, %s offen lds" % (vaddr, SWG if s < 14 else SWU, sT), tag=tag)


def wc_read(slabs, vtr):
    out = []
    for (s, base) in slabs:
        for hf in range(2):
            out.append("ds_read_b64_tr_b16 %s, v%d offset:%d" % (vr(WGF + 4 * s + 2 * hf, 2), vtr + base // 57344, base % 57344 + hf * 1024))
    return out


def phase_A(a):
    sTB, sHP, sT0, sTI, sHD = "s48", "s49", "s50", "s51", "s52"
    sW256 = "s54"
    sHM = "s[58:59]"
    a("; ---------------- phase A ----------------")
    a("s_lshl_b32 %s, %s, 2" % (sTB, sXC))
    a("s_lshr_b32 %s, %s, 3" % (sT, sJ))
    a("s_add_u32 %s, %s, %s" % (sTB, sTB, sT))
    a("s_and_b32 %s, %s, 7" % (sHP, sJ))
    a("s_lshl_b32 %s, %s, 6" % (sT0, sTB))
    a("s_and_b32 %s, %s, 3" % (sTI, sW))
    a("s_lshr_b32 %s, %s, 2" % (sHD, sW))
    a("s_lshl_b32 %s, %s, 8" % (sW256, sW))
    vAX, vAH, vAW = "v16", "v17", "v18"
    a("v_lshrrev_b32 v12, 3, v1")
    a("v_and_b32 v13, 7, v1")
    a("s_and_b32 %s, %s, 1" % (sT, sW))
    a("s_lshl_b32 %s, %s, 2" % (sT, sT))
    a("v_and_b32 v8, 2, v12")
    a("v_or_b32 v8, %s, v8" % sT)
    a("v_xor_b32 v8, v8, v13")
    a("v_min_u32 v8, 6, v8")
    a("s_lshl_b32 %s, %s, 3" % (sT, sW))
    a("v_add_u32 v9, %s, v12" % sT)
    a("v_mul_u32_u24 v9, 2688, v9")
    a("s_mul_i32 %s, %s, 112" % (sT, sHP))
    a("v_lshl_add_u32 v9, v8, 4, v9")
    a("v_add_u32 %s, %s, v9" % (vAW, sT))
    a("s_lshl_b32 %s, %s, 5" % (sT, sHD))
    a("s_add_u32 %s, %s, %s" % (sT, sT, sT0))
    a("s_bfe_u32 %s, %s, 0x10001" % (sT2, sW))
    a("s_add_u32 %s, %s, %s" % (sT, sT, sT2))
    a("s_and_b32 %s, %s, 1" % (sT2, sW))
    a("s_lshl_b32 %s, %s, 4" % (sT2, sT2))
    a("s_add_u32 %s, %s, %s" % (sT, sT, sT2))
    a("v_lshl_add_u32 v9, v12, 1, %s" % sT)
    a("v_mul_u32_u24 v9, 896, v9")
    a("s_lshr_b32 %s, %s, 2" % (sT2, sT2))
    a("v_lshrrev_b32 v8, 1, v12")
    a("v_add_u32 v8, %s, v8" % sT2)
    a("v_xor_b32 v8, v8, v13")
    a("v_lshl_add_u32 %s, v8, 4, v9" % vAX)
    a("s_lshl_b32 %s, %s, 2" % (sT, sTI))
    a("s_add_u32 %s, %s, %s" % (sT, sT, sT0))
    a("s_add_u32 %s, %s, %s" % (sT, sT, sHD))
    a("s_sub_u32 %s, %s, 16" % (sT, sT))
    a("v_and_b32 v8, 1, v12")
    a("v_lshl_add_u32 v9, v8, 1, %s" % sT)
    a("v_max_i32 v9, 0, v9")
    a("v_mul_u32_u24 v9, 896, v9")
    a("v_xor_b32 v8, %s, v13" % sW)
    a("v_lshl_add_u32 %s, v8, 4, v9" % vAH)
    a("s_mov_b32 s59, 0")
    a("s_cmp_eq_u32 %s, 0" % sW)
    a("s_mov_b32 s58, 0xffff")
    a("s_cselect_b32 s58, 0xff00, s58")
    prologue2(a)

    def slot(ch):
        return (ch + 1) % 4

    def dma_groups(ch):
        sb = slot(ch) * A_SLOT
        tg = ("A", ch)
        gs = []
        for m in range(3):
            g = [("s_mov_b32 s64, %d" % (ch * 172032), None)] if m == 0 else []
            g += [("s_add_u32 m0, %s, %d" % (sW1024, sb + m * 8192 - m * 896), None),
                  ("buffer_load_dwordx4 %s, %s, s64 offen offset:%d lds" % (vAW, SWQKV, m * 896), tg)]
            gs.append(g)
        gs.append([("s_add_u32 m0, %s, %d" % (sW1024, sb + A_XOFF - ch * 128), None),
                   ("buffer_load_dwordx4 %s, %s, 0 offen offset:%d lds" % (vAX, SX, ch * 128), tg)])
        gs.append([("s_add_u32 m0, %s, %d" % (sW256, sb + A_XOFF + 8192 - ch * 128), None),
                   ("s_mov_b64 exec, %s" % sHM, None),
                   ("buffer_load_dwordx4 %s, %s, 0 offen offset:%d lds" % (vAH, SX, ch * 128), tg),
                   ("s_mov_b64 exec, -1", None)])
        return gs

    def emit_group(g):
        for (x, tg) in g:
            a(x, tag=tg)

    def dma(ch):
        for g in dma_groups(ch):
            emit_group(g)

    stamp(a, "A start")
    dma(0)
    nonce_publish(a)
    if "notouch" not in OPT:
        touch(a, [(0, SWQKV, 37), (1, SX, 56)])
    a("s_barrier")
    dma(1)
    if "notouch" not in OPT:
        touch(a, [(2, SWO, 13), (3, SWG, 49), (4, SWU, 49), (5, SWD, 49)])
    stamp(a, "A dma issued")
    ONES = 20
    for i in range(4):
        a("v_mov_b32 v%d, 0x3f803f80" % (ONES + i))
    a("v_and_b32 v8, 3, v12")
    a("v_mul_u32_u24 v8, %d, v8" % A_SLOT)
    a("v_lshl_add_u32 v8, v13, 4, v8")
    a("ds_write_b128 v8, %s offset:%d" % (vr(ONES), A_XOFF + 8192))
    aX0, aX1, aXH0, aXH1, aW0, aW1, aWH = range(24, 31)
    a("v_bfe_u32 v8, v3, 1, 3")
    a("v_xor_b32 v8, v8, v2")
    a("v_lshlrev_b32 v8, 4, v8")
    a("v_lshl_add_u32 v8, v3, 7, v8")
    a("v_add_u32 v%d, %d, v8" % (aXH0, A_XOFF + 8192))
    a("v_xor_b32 v%d, 64, v%d" % (aXH1, aXH0))
    a("s_lshl_b32 %s, %s, 11" % (sT, sTI))
    a("s_add_u32 %s, %s, %d" % (sT, sT, A_XOFF))
    a("v_add_u32 v%d, %s, v8" % (aX0, sT))
    a("v_xor_b32 v%d, 64, v%d" % (aX1, aX0))
    a("v_and_b32 v8, 2, v4")
    a("v_and_b32 v9, 1, v2")
    a("v_lshl_or_b32 v8, v9, 2, v8")
    a("v_lshlrev_b32 v8, 4, v8")
    a("v_lshl_add_u32 v9, v2, 3, v4")
    a("v_lshlrev_b32 v9, 7, v9")
    a("s_mul_i32 %s, %s, 56" % (sT, sHD))
    a("v_lshl_add_u32 v10, v5, 3, %s" % sT)
    a("v_xor_b32 v11, v10, v8")
    a("v_add_u32 v%d, v11, v9" % aW0)
    a("v_add_u32 v10, 32, v10")
    a("v_xor_b32 v11, v10, v8")
    a("v_add_u32 v%d, v11, v9" % aW1)
    a("s_and_b32 %s, %s, 1" % (sT, sTI))
    a("s_cmp_eq_u32 %s, 1" % sT)
    a("s_cselect_b64 vcc, -1, 0")
    a("s_lshr_b32 %s, %s, 1" % (sT, sTI))
    a("s_add_u32 %s, %s, 1" % (sT, sT))
    a("s_lshl_b32 %s, %s, 13" % (sT, sT))
    a("v_cndmask_b32 v8, v%d, v%d, vcc" % (aW0, aW1))
    a("v_add_u32 v%d, %s, v8" % (aWH, sT))
    for i in range(7):
        a("v_add_u32 v%d, %d, v%d" % (31 + i, 2 * A_SLOT, 24 + i))
    ACC = 40
    aH, cQ0, cQ1, aRS, aGR, aGH = ACC + 24, ACC + 28, ACC + 32, ACC + 36, ACC + 40, ACC + 44
    BP, BC = 88, 92
    a("v_lshlrev_b32 v8, 2, v2")
    a("v_sub_u32 v9, v3, v8")
    a("s_lshl_b32 %s, %s, 2" % (sT, sTB))
    a("s_add_u32 %s, %s, %s" % (sT, sT, sTI))
    a("s_cmp_lt_u32 %s, 2" % sT)
    a("s_cselect_b32 %s, 0x10000, 0" % sT2)
    a("v_mov_b32 v11, 0x%x" % f2u(-1e30))
    for rr in range(4):
        a("v_subrev_u32 v10, %d, v9" % rr)
        a("v_cmp_gt_u32 vcc, 8, v10")
        a("v_cndmask_b32 v%d, v11, 0, vcc" % (BC + rr))
        a("v_add_u32 v10, 16, v10")
        a("v_add_u32 v10, %s, v10" % sT2)
        a("v_cmp_gt_u32 vcc, 8, v10")
        a("v_cndmask_b32 v%d, v11, 0, vcc" % (BP + rr))
    a("v_cmp_eq_u32 s[60:61], 1, v5")
    a("v_cmp_eq_u32 s[62:63], 2, v5")
    a("v_cmp_eq_u32 s[88:89], 3, v5")
    a("v_cmp_eq_u32 s[90:91], v4, v2")
    a("v_cmp_eq_u32 s[92:93], 0, v2")
    a("v_cmp_gt_u32 s[94:95], 3, v2")
    a("s_lshl_b32 %s, %s, 6" % (sT, sW))
    a("s_add_u32 %s, %s, %d" % (sT, sT, A_CS))
    a("v_lshl_add_u32 v168, v2, 4, %s" % sT)
    a("s_lshl_b32 %s, %s, 8" % (sT, sHD))
    a("s_add_u32 %s, %s, %d" % (sT, sT, A_CS))
    a("v_lshl_add_u32 v169, v2, 4, %s" % sT)
    a("s_lshl_b32 %s, %s, 9" % (sT, sW))
    a("s_add_u32 %s, %s, %d" % (sT, sT, A_EX + 4 * 4096))
    a("v_lshl_add_u32 v170, v1, 3, %s" % sT)
    a("s_lshl_b32 %s, %s, 12" % (sT, sTI))
    a("s_lshl_b32 %s, %s, 11" % (sT2, sHD))
    a("s_add_u32 %s, %s, %s" % (sT, sT, sT2))
    a("s_add_u32 %s, %s, %d" % (sT, sT, A_EX))
    a("v_lshl_add_u32 v171, v1, 3, %s" % sT)
    a("v_lshl_add_u32 v9, v2, 2, v4")
    a("v_lshl_add_u32 v10, v5, 4, v9")
    a("v_lshl_add_u32 v172, v10, 3, %s" % sT)
    a("s_sub_u32 %s, %s, 8192" % (sT, sT))
    a("s_add_u32 %s, %s, %d" % (sT2, sT2, A_EX + 4 * 4096))
    a("s_lshl_b32 s97, %s, 3" % sTI)
    a("s_cmp_lt_u32 %s, 2" % sTI)
    a("s_cselect_b32 s96, 7, 15")
    a("s_cselect_b32 s97, s97, 0")
    a("s_cselect_b32 %s, %s, %s" % (sT, sT2, sT))
    a("v_and_b32 v9, s96, v9")
    a("v_add_u32 v9, s97, v9")
    a("v_lshl_add_u32 v10, v5, 4, v9")
    a("v_lshl_add_u32 v173, v10, 3, %s" % sT)
    a("v_and_b32 v9, s96, v3")
    a("v_add_u32 v9, s97, v9")
    a("v_lshl_add_u32 v10, v2, 4, v9")
    a("v_lshl_add_u32 v174, v10, 3, %s" % sT)
    a("s_lshl_b32 %s, %s, 2" % (sT, sTB))
    a("s_add_u32 %s, %s, %s" % (sT, sT, sTI))
    a("s_lshl_b32 %s, %s, 4" % (sT, sT))
    a("s_lshl_b32 %s, %s, 1" % (sT2, sHP))
    a("s_add_u32 %s, %s, %s" % (sT, sT, sT2))
    a("s_add_u32 %s, %s, %s" % (sT, sT, sHD))
    a("s_lshl_b32 s98, %s, 10" % sT)
    a("s_lshl_b32 %s, %s, 7" % (sT, sTB))
    a("s_lshl_b32 %s, %s, 2" % (sT2, sHP))
    a("s_add_u32 %s, %s, %s" % (sT, sT, sT2))
    a("s_add_u32 s99, %s, %d" % (sT, WS_FA))
    roles_BCD(a)
    a("v_and_b32 v8, 2, v12")
    a("v_lshlrev_b32 v8, 1, v8")
    a("v_xor_b32 v8, v8, v13")
    a("s_lshl_b32 %s, %s, 3" % (sT, sW))
    a("v_add_u32 v9, %s, v12" % sT)
    a("v_mul_u32_u24 v9, 896, v9")
    a("v_lshl_add_u32 v9, v8, 4, v9")
    a("s_lshl_b32 %s, %s, 7" % (sT, sCB))
    a("v_add_u32 %s, %s, v9" % (vWO_DMA, sT))
    a("s_bfe_u32 %s, %s, 0x10001" % (sT, sW))
    a("s_lshl_b32 %s, %s, 3" % (sT, sT))
    a("v_lshl_or_b32 v8, v2, 1, %s" % sT)
    a("v_xor_b32 v8, v8, v3")
    a("s_lshl_b32 %s, %s, 2" % (sT, sW))
    a("v_add_u32 v9, %s, v2" % sT)
    a("v_mul_u32_u24 v9, 3584, v9")
    a("v_lshl_add_u32 v9, v8, 4, v9")
    a("s_lshl_b32 %s, %s, 8" % (sT, sFS))
    a("v_add_u32 %s, %s, v9" % (vWC_DMA, sT))
    FB = [96, 132]

    def reads(n):
        ch, ks = n >> 1, n & 1
        sl = slot(ch)
        ab = 24 if sl < 2 else 31
        ib = (sl & 1) * A_SLOT
        fb = FB[ks]
        out = []
        out.append("ds_read_b128 %s, v%d offset:%d" % (vr(fb + 4), ab + 2 + ks, ib))
        for hf in range(2):
            out.append("ds_read_b64_tr_b16 %s, v%d offset:%d" % (vr(fb + 32 + 2 * hf, 2), ab + 6, ib + ks * 4096 + hf * 512))
        out.append("ds_read_b128 %s, v%d offset:%d" % (vr(fb), ab + ks, ib))
        for t in (2, 3, 4, 5, 0, 1):
            m, dt = t >> 1, t & 1
            for hf in range(2):
                out.append("ds_read_b64_tr_b16 %s, v%d offset:%d" % (vr(fb + 8 + 4 * t + 2 * hf, 2), ab + 4 + dt, ib + m * 8192 + ks * 4096 + hf * 512))
        return out

    def compute(n):
        fb = FB[n & 1]
        z = "0" if n == 0 else None
        out = [mfma(aGH, fb + 4, fb + 4, z), mfma(aH, fb + 32, fb + 4, z), mfma(aGR, fb, fb, z), mfma(aRS, ONES, fb, z)]
        for t in (2, 3, 4, 5):
            out.append(mfma(ACC + 4 * t, fb + 8 + 4 * t, fb, z))
        out += [mfma(ACC, fb + 8, fb, z), mfma(cQ0, fb + 8, ONES, z), mfma(ACC + 4, fb + 12, fb, z), mfma(cQ1, fb + 12, ONES, z)]
        return out

    def wo_groups(i0, i1):
        return [[("s_add_u32 m0, %s, %d" % (sW1024, R0 + i * 8192), None),
                 ("s_mov_b32 s64, %d" % (i * 64 * 896), None),
                 ("buffer_load_dwordx4 %s, %s, s64 offen lds" % (vWO_DMA, SWO), "wo")] for i in range(i0, i1)]

    a.wait_tag(("A", 0), lg0=True)
    a("s_barrier")
    stamp(a, "A ch0 landed")
    for x in reads(0):
        a(x)
    pend = dma_groups(2)
    for n in range(14):
        rd = []
        if n + 1 < 14:
            if (n + 1) % 2 == 0:
                ch = (n + 1) // 2
                for g in pend:
                    emit_group(g)
                pend = []
                a.wait_tag(("A", ch))
                a("s_barrier")
                if ch == 6:
                    stamp(a, "A ch6 landed")
                if ch <= 4:
                    pend = dma_groups(ch + 2)
                if ch == 4:
                    pend.append([("v_mov_b32 v8, 0", None), ("buffer_load_dword v175, v8, %s, 0 offen sc1" % SDBG, None)])
                if ch == 5:
                    pend = wo_groups(0, 4)
                if ch == 6:
                    pend = wo_groups(4, 7)
            rd = reads(n + 1)
        for i, x in enumerate(compute(n)):
            a(x)
            for _ in range(2 if i < 4 else 1):
                if rd:
                    a(rd.pop(0))
            if pend and i % ASPACE == ASPACE - 1:
                emit_group(pend.pop(0))
        for x in rd:
            a(x)
    for g in pend:
        emit_group(g)

    stamp(a, "A loop done")
    T = 96
    for rr in range(4):
        a("v_mov_b32_dpp v%d, v%d row_newbcast:0 row_mask:0xf bank_mask:0xf" % (T + rr, aH + rr))
    a("ds_write_b128 v168, %s" % vr(T))
    for (acc, d) in ((aGH, "v9"), (aGR, "v8")):
        a("v_cndmask_b32 %s, v%d, v%d, s[60:61]" % (d, acc, acc + 1))
        a("v_cndmask_b32 %s, %s, v%d, s[62:63]" % (d, d, acc + 2))
        a("v_cndmask_b32 %s, %s, v%d, s[88:89]" % (d, d, acc + 3))
        a("v_cndmask_b32 %s, 0, %s, s[90:91]" % (d, d))
    a("v_cndmask_b32 v10, 0, v%d, s[92:93]" % aGH)
    a("s_waitcnt lgkmcnt(0)")
    a("s_barrier")
    CS = T + 4
    for t in range(4):
        a("ds_read_b128 %s, v169 offset:%d" % (vr(CS + 4 * t), 64 * t))
    xg_reduce_multi(a, "v_add_f32", ["v8", "v9", "v10"], ["v11", "v12", "v13"])
    a("s_mov_b32 %s, 0x%x" % (sT, f2u(1.0 / 448)))
    a("v_mov_b32 v12, 0x%x" % f2u(1e-5))
    SO, SH = 116, 118
    a("v_mul_f32 v%d, -%s, v10" % (SH, sT))
    a("v_mul_f32 v%d, -%s, v%d" % (SO, sT, aRS))
    a("v_fma_f32 v9, v9, %s, v12" % sT)
    a("v_fma_f32 v8, v8, %s, v12" % sT)
    a("v_fma_f32 v9, -v%d, v%d, v9" % (SH, SH))
    a("v_fma_f32 v8, -v%d, v%d, v8" % (SO, SO))
    a("v_max_f32 v9, v9, v12")
    a("v_max_f32 v8, v8, v12")
    a("v_rsq_f32 v%d, v9" % (SH + 1))
    a("v_rsq_f32 v%d, v8" % (SO + 1))

    def center(acc, cs, st):
        for rr in range(4):
            a("v_fmac_f32 v%d, v%d, v%d" % (acc + rr, st, cs + rr))

    def scale(acc, st):
        for rr in range(4):
            a("v_mul_f32 v%d, v%d, v%d" % (acc + rr, st + 1, acc + rr))

    def pack(dst, acc):
        a("v_cvt_pk_bf16_f32 v%d, v%d, v%d" % (dst, acc, acc + 1))
        a("v_cvt_pk_bf16_f32 v%d, v%d, v%d" % (dst + 1, acc + 2, acc + 3))

    center(aH, T, SH)
    for t in range(4):
        center(ACC + 8 + 4 * t, CS + 4 * t, SO)
    scale(aH, SH)
    pack(T, aH)
    a("ds_write_b64 v170, %s" % vr(T, 2))
    PK = 120
    for t in range(4):
        scale(ACC + 8 + 4 * t, SO)
        pack(PK + 2 * t, ACC + 8 + 4 * t)
        a("ds_write_b64 v171, %s offset:%d" % (vr(PK + 2 * t, 2), 512 * t))
    QP = 100
    center(ACC, cQ0, SO)
    center(ACC + 4, cQ1, SO)
    a("s_waitcnt lgkmcnt(0)")
    a("s_barrier")
    KP, V0, V1 = 104, 108, 112
    a("ds_read_b64 %s, v174" % vr(KP, 2))
    a("ds_read_b64 %s, v174 offset:512" % vr(KP + 2, 2))
    a("ds_read_b64_tr_b16 %s, v173 offset:1024" % vr(V0, 2))
    a("ds_read_b64_tr_b16 %s, v172 offset:1024" % vr(V0 + 2, 2))
    a("ds_read_b64_tr_b16 %s, v173 offset:1536" % vr(V1, 2))
    a("ds_read_b64_tr_b16 %s, v172 offset:1536" % vr(V1 + 2, 2))
    pack(QP, ACC)
    pack(QP + 2, ACC + 4)
    a("v_cndmask_b32 v%d, 0, v%d, s[94:95]" % (QP + 2, QP + 2))
    a("v_cndmask_b32 v%d, 0, v%d, s[94:95]" % (QP + 3, QP + 3))
    a(mfma(BC, PK, QP))
    a(mfma(BP, KP, QP))
    a("v_mul_f32 v13, 0x%x, v%d" % (f2u(28 ** -0.5 * LOG2E), SO + 1))
    a("v_max3_f32 v8, v%d, v%d, v%d" % (BC, BC + 1, BC + 2))
    a("v_max3_f32 v9, v%d, v%d, v%d" % (BC + 3, BP, BP + 1))
    a("v_max3_f32 v8, v8, v%d, v%d" % (BP + 2, BP + 3))
    a("v_max_f32 v8, v8, v9")
    xg_reduce_multi(a, "v_max_f32", ["v8"], ["v9"])
    a("v_mul_f32 v8, v13, v8")
    for i in range(8):
        a("v_fma_f32 v%d, v%d, v13, -v8" % (BP + i, BP + i))
    for i in range(8):
        a("v_exp_f32 v%d, v%d" % (BP + i, BP + i))
    a("v_add_f32 v9, v%d, v%d" % (BP, BP + 1))
    a("v_add_f32 v10, v%d, v%d" % (BP + 2, BP + 3))
    a("v_add_f32 v11, v%d, v%d" % (BP + 4, BP + 5))
    a("v_add_f32 v12, v%d, v%d" % (BP + 6, BP + 7))
    a("v_add_f32 v9, v9, v10")
    a("v_add_f32 v11, v11, v12")
    a("v_add_f32 v9, v9, v11")
    xg_reduce_multi(a, "v_add_f32", ["v9"], ["v10"])
    a("v_rcp_f32 v9, v9")
    for i in range(8):
        a("v_mul_f32 v%d, v9, v%d" % (BP + i, BP + i))
    P = 96
    for i in range(4):
        a("v_cvt_pk_bf16_f32 v%d, v%d, v%d" % (P + i, BP + 2 * i, BP + 2 * i + 1))
    O0, O1 = 40, 44
    a(mfma(O0, V0, P, "0"))
    a(mfma(O1, V1, P, "0"))
    a("v_lshlrev_b32 v14, 4, v1")
    nonce_fetch(a, "v175")
    OS = 124
    pack(OS, O0)
    pack(OS + 2, O1)
    a("v_cndmask_b32 v%d, 0, v%d, s[94:95]" % (OS + 2, OS + 2))
    a("v_cndmask_b32 v%d, 0, v%d, s[94:95]" % (OS + 3, OS + 3))
    a("buffer_store_dwordx4 %s, v14, %s, s98 offen%s" % (vr(OS), SWS, SC), tag="ost")
    stamp(a, "A o stored")


G1 = [(s, R1 + 8192 * s) for s in range(10)]
G2 = [(10 + i, R0 + 8192 * i) for i in range(7)]
G3 = [(17 + i, R1 + 8192 * i) for i in range(10)] + [(27, R2 + 16384)]


def phase_B(a):
    sTT, sKH, sTAU, sU = "s50", "s51", "s52", "s54"
    a("; ---------------- A->B ----------------")
    a("s_cmp_lt_u32 %s, 28" % sJ)
    a("s_cbranch_scc1 LgoB")
    raw(a, "s_waitcnt vmcnt(0)")
    raw(a, "s_barrier")
    publish(a, "s99")
    raw(a, "s_branch Lfin")
    a("LgoB:")
    a("v_mov_b32 v16, %s" % vWC_DMA)
    wc_dma(a, G1[:4], "v16", "g1")
    a("s_and_b32 %s, %s, 3" % (sTT, sW))
    a("s_lshr_b32 %s, %s, 2" % (sKH, sW))
    a("s_lshl_b32 %s, %s, 2" % (sTAU, sRB))
    a("s_add_u32 %s, %s, %s" % (sTAU, sTAU, sTT))
    a("v_lshl_add_u32 v8, v2, 2, v4")
    a("s_mul_i32 %s, %s, 224" % (sT, sKH))
    a("v_add_u32 v8, %s, v8" % sT)
    a("v_lshlrev_b32 v8, 7, v8")
    a("v_and_b32 v9, 2, v4")
    a("v_lshlrev_b32 v9, 1, v9")
    a("s_lshl_b32 %s, %s, 2" % (sT, sKH))
    a("v_or_b32 v10, %s, v5" % sT)
    a("v_xor_b32 v10, v10, v9")
    a("v_lshl_add_u32 v24, v10, 4, v8")
    a("v_xor_b32 v25, 64, v24")
    a("v_mov_b32 v9, 2048")
    a("v_cndmask_b32 v9, 0, v9, s[94:95]")
    a("v_add_u32 v26, v24, v9")
    a("v_add_u32 v27, v25, v9")
    a("s_lshr_b32 %s, %s, 1" % (sT, sTAU))
    a("s_lshl_b32 %s, %s, 5" % (sT, sT))
    a("s_and_b32 %s, %s, 1" % (sT2, sTAU))
    a("s_add_u32 %s, %s, %s" % (sT, sT, sT2))
    a("v_lshl_add_u32 v8, v3, 1, %s" % sT)
    a("v_mul_u32_u24 v8, 896, v8")
    a("v_lshl_add_u32 v8, v2, 4, v8")
    a("s_lshl_b32 %s, %s, 1" % (sU, sCB))
    a("s_add_u32 %s, %s, %s" % (sU, sU, sKH))
    a("s_lshl_b32 %s, %s, 6" % (sT3, sU))
    a.wait_tag("ost")
    a("s_barrier")
    publish(a, "s99")
    stamp(a, "A flag")
    XR = 20
    a("buffer_load_dwordx4 %s, v8, %s, %s offen" % (vr(XR), SX, sT3))
    wc_dma(a, G1[4:], "v16", "g1")
    for hh in range(8):
        for t in range(4):
            off = R0 + hh * 3584 + (t & 1) * 8
            a("ds_read_b64_tr_b16 %s, v%d offset:%d" % (vr(WOF + 16 * hh + 4 * t, 2), 24 + (t >> 1), off))
            a("ds_read_b64_tr_b16 %s, v%d offset:%d" % (vr(WOF + 16 * hh + 4 * t + 2, 2), 26 + (t >> 1), off))
    a("v_and_b32 v8, 1, v2")
    a("v_lshl_or_b32 v8, v8, 2, v4")
    a("v_lshlrev_b32 v8, 1, v8")
    a("v_lshrrev_b32 v9, 1, v5")
    a("s_lshl_b32 %s, %s, 1" % (sT, sW))
    a("v_add_u32 v9, %s, v9" % sT)
    a("v_xor_b32 v8, v8, v9")
    a("v_lshl_add_u32 v9, v2, 3, v4")
    a("v_lshlrev_b32 v9, 8, v9")
    a("v_lshl_add_u32 v9, v8, 4, v9")
    a("v_and_b32 v8, 1, v5")
    a("v_lshl_add_u32 v17, v8, 3, v9")
    a("v_add_u32 v18, 57344, v17")
    a("v_add_u32 v19, 114688, v17")
    OF, ACC = 32, 64
    for i in range(4):
        a("v_lshlrev_b32 v%d, 16, v%d" % (ACC + 2 * i, XR + i))
        a("v_and_b32 v%d, 0xffff0000, v%d" % (ACC + 2 * i + 1, XR + i))
    a("s_lshl_b32 %s, %s, 4" % (sT2, sTAU))
    a("s_lshl_b32 %s, %s, 3" % (sT3, sKH))
    a("s_add_u32 %s, %s, %s" % (sT2, sT2, sT3))
    a("s_lshl_b32 %s, %s, 10" % (sT2, sT2))
    a("s_add_u32 %s, %s, 4096" % (sT3, sT2))
    a("s_lshl_b32 %s, %s, 11" % (sT, sW))
    a("s_add_u32 %s, %s, %d" % (sT, sT, B_RB))
    a("v_add_u32 v12, %s, v14" % sT)
    a("s_xor_b32 %s, %s, 4" % (sT, sW))
    a("s_lshl_b32 %s, %s, 11" % (sT, sT))
    a("s_add_u32 %s, %s, %d" % (sT, sT, B_RB))
    a("v_add_u32 v13, %s, v14" % sT)
    a("s_mul_i32 s58, %s, 14" % sTAU)
    a("s_add_u32 s58, s58, %s" % sU)
    a("s_lshl_b32 s59, s58, 7")
    a("s_add_u32 s59, s59, %d" % WS_ST)
    a("s_lshl_b32 s58, s58, 10")
    a("s_add_u32 s58, s58, %d" % WS_H)
    a("s_lshl_b32 s60, %s, 7" % sRB)
    a("s_add_u32 s60, s60, %d" % WS_FA)
    a("s_lshr_b32 s61, %s, 1" % sRB)
    a("s_lshl_b32 s61, s61, 7")
    a("s_and_b32 %s, %s, 1" % (sT, sRB))
    a("s_mul_i32 %s, %s, 28" % (sT, sT))
    a("s_add_u32 s61, s61, %s" % sT)
    a("s_lshl_b32 %s, %s, 2" % (sT, sCB))
    a("s_add_u32 s61, s61, %s" % sT)
    a("s_add_u32 s61, s61, %d" % WS_FB)
    a("v_lshlrev_b32 v11, 3, v3")
    a.wait_tag("g1", lg0=True)
    stamp(a, "B pre-poll")
    poll(a, "s60", 0xff, 0)
    stamp(a, "B go")
    for hh in range(8):
        a("buffer_load_dwordx4 %s, v14, %s, %s offen offset:%d%s" % (vr(OF + 4 * hh), SWS, sT2 if hh < 4 else sT3, (hh & 3) * 1024, SC))
    a("s_barrier")
    for x in wc_read(G1, 17):
        a(x)
    for hh in range(8):
        if hh < 7:
            wc_dma(a, G2[hh:hh + 1], "v16", "g2")
        for t in (2, 3, 0, 1):
            a(mfma(ACC + 4 * t, WOF + 16 * hh + 4 * t, OF + 4 * hh, "0" if (hh == 0 and t >= 2) else None))
    a("ds_write_b128 v12, %s" % vr(ACC + 8))
    a("ds_write_b128 v12, %s offset:1024" % vr(ACC + 12))
    a("s_waitcnt lgkmcnt(0)")
    a("s_barrier")
    a("ds_read_b128 %s, v13" % vr(ACC + 8))
    a("ds_read_b128 %s, v13 offset:1024" % vr(ACC + 12))
    a("v_mov_b32 v8, 0")
    a("v_mov_b32 v9, 0")
    a("v_mov_b32 v6, 0")
    a("v_mov_b32 v7, 0")
    a("v_mov_b32 v10, 0x3f803f80")
    for i in range(8):
        a("v_add_f32 v%d, v%d, v%d" % (ACC + i, ACC + i, ACC + 8 + i))
    HP = 28
    for i in range(4):
        a("v_cvt_pk_bf16_f32 v%d, v%d, v%d" % (HP + i, ACC + 2 * i, ACC + 2 * i + 1))
    a("buffer_store_dwordx4 %s, v14, %s, s58 offen%s" % (vr(HP), SWS, SC))
    for i in range(4):
        a("v_dot2c_f32_bf16 v%d, v%d, v10" % (8 if i & 1 else 6, HP + i))
        a("v_dot2c_f32_bf16 v%d, v%d, v%d" % (9 if i & 1 else 7, HP + i, HP + i))
    a("v_add_f32 v8, v8, v6")
    a("v_add_f32 v9, v9, v7")
    xg_reduce_multi(a, "v_add_f32", ["v8", "v9"], ["v6", "v7"])
    a("s_mov_b64 exec, 0xffff")
    a("buffer_store_dwordx2 v[8:9], v11, %s, s59 offen%s" % (SWS, SC), tag="hst")
    a("s_mov_b64 exec, -1")
    stamp(a, "B h stored")


def phase_C(a):
    a("; ---------------- B->C ----------------")
    wc_dma(a, G3[:4], "v16", "g3")
    a.wait_tag("hst")
    a("s_barrier")
    publish(a, "s61")
    stamp(a, "B flag")
    wc_dma(a, G3[4:], "v16", "g3")
    for x in wc_read(G2, 17):
        a(x)
    ONES, CSG, CSU = 20, 24, 28
    for i in range(4):
        a("v_mov_b32 v%d, 0x3f803f80" % (ONES + i))
    for u in range(14):
        a(mfma(CSG, WGF + 4 * u, ONES, "0" if u == 0 else None))
    a("s_mul_i32 %s, %s, 114688" % (sT2, sRQ))
    a("s_add_u32 %s, %s, %d" % (sT2, sT2, WS_H))
    a("s_mul_i32 s62, %s, 3584" % sW)
    a("v_add_u32 v12, s62, v14")
    a("s_lshl_b32 %s, %s, 3" % (sT3, sRQ))
    a("s_add_u32 %s, %s, %s" % (sT3, sT3, sW))
    a("s_mul_i32 %s, %s, 1792" % (sT3, sT3))
    a("s_add_u32 %s, %s, %d" % (sT3, sT3, WS_ST))
    a("v_lshlrev_b32 v9, 3, v1")
    a("v_mov_b32 v38, 0")
    a("v_mov_b32 v39, 0")
    a("v_and_b32 v8, 1, v2")
    a("v_mul_u32_u24 v8, 57344, v8")
    a("v_lshrrev_b32 v10, 1, v2")
    a("s_and_b32 %s, %s, 1" % (sT, sW))
    a("s_lshl_b32 %s, %s, 1" % (sT, sT))
    a("v_add_u32 v10, %s, v10" % sT)
    a("v_lshl_add_u32 v8, v10, 8, v8")
    a("v_lshl_add_u32 v13, v3, 4, v8")
    a("s_mul_i32 s58, %s, 448" % sRQ)
    a("s_lshl_b32 %s, %s, 2" % (sT, sFS))
    a("s_add_u32 s58, s58, %s" % sT)
    a("s_lshr_b32 %s, %s, 1" % (sT, sW))
    a("s_add_u32 s58, s58, %s" % sT)
    a("s_lshl_b32 s58, s58, 10")
    a("s_add_u32 s58, s58, %d" % WS_HH)
    a("s_mov_b32 s59, 0x%x" % f2u(-LOG2E))
    a("s_lshl_b32 s60, %s, 7" % sRQ)
    a("s_add_u32 s60, s60, %d" % WS_FB)
    a("s_lshl_b32 s61, %s, 8" % sRQ)
    a("s_lshl_b32 %s, %s, 2" % (sT, sFS))
    a("s_add_u32 s61, s61, %s" % sT)
    a("s_add_u32 s61, s61, %d" % WS_FC)
    a.wait_tag("g3", lg0=True)
    a("s_barrier")
    for x in wc_read(G3, 17):
        a(x)
    a("s_waitcnt lgkmcnt(0)")
    stamp(a, "C pre-poll")
    poll(a, "s60", 0x3fff, 0)
    stamp(a, "C go")
    def h_groups(tp):
        tg = ("h", tp)
        gs = []
        for i in range(4):
            g = []
            if i == 0:
                g.append(("s_add_u32 s64, %s, %d" % (sT2, tp * 28672), None))
            g.append(("s_add_u32 m0, s62, %d" % (tp * 28672), None))
            if i == 3:
                g.append(("s_mov_b32 exec_hi, 0", None))
            g.append(("buffer_load_dwordx4 v12, %s, s64 offen offset:%d%s lds" % (SWS, i * 1024, SC), tg))
            if i == 3:
                g.append(("s_mov_b64 exec, -1", None))
            gs.append(g)
        return gs

    def emit_group(g):
        for (x, tg) in g:
            a(x, tag=tg)

    for g in h_groups(0):
        emit_group(g)
    a("s_mov_b32 exec_hi, 0")
    a("buffer_load_dwordx2 v[38:39], v9, %s, %s offen offset:1536%s" % (SWS, sT3, SC))
    a("s_mov_b64 exec, -1")
    for i in range(3):
        a("buffer_load_dwordx2 v[%d:%d], v9, %s, %s offen offset:%d%s" % (32 + 2 * i, 33 + 2 * i, SWS, sT3, 512 * i, SC))
    a("s_barrier")
    for g in h_groups(1):
        emit_group(g)
    hpend = h_groups(2) + h_groups(3)
    for u in range(14):
        a(mfma(CSU, WUF + 4 * u, ONES, "0" if u == 0 else None))
    a("v_add_u32 v16, 57344, v14")
    a("v_lshlrev_b32 v19, 4, v3")
    a("v_add_u32 v19, %d, v19" % C_ST)
    a("s_lshl_b32 %s, %s, 8" % (sT, sW))
    a("v_add_u32 v9, %s, v19" % sT)
    for (d, x) in ((32, 34), (33, 35), (36, 38), (37, 39), (32, 36), (33, 37)):
        a("v_add_f32 v%d, v%d, v%d" % (d, d, x))
    xg_reduce_multi(a, "v_add_f32", ["v32", "v33"], ["v10", "v11"])
    a("s_mov_b32 %s, 0x%x" % (sT, f2u(1.0 / 448)))
    a("v_mov_b32 v10, 0x%x" % f2u(1e-5))
    a("v_mul_f32 v32, -%s, v32" % sT)
    a("v_fma_f32 v33, v33, %s, v10" % sT)
    a("v_fma_f32 v33, -v32, v32, v33")
    a("v_max_f32 v33, v33, v10")
    a("v_sqrt_f32 v34, v33")
    a("v_rsq_f32 v33, v33")
    a("v_mul_f32 v33, s59, v33")
    a("ds_write_b128 v9, v[32:35]")
    AF, NR = 192, 8
    ACCS = [40, 56]
    STS = [32, 72]
    PKD = [224, 228]

    def rd_list(tp):
        rd = []
        for u in range(14):
            for t in range(2):
                off = (tp * 2 + t) * 14336 + u * 1024
                k = tp * 28 + u * 2 + t
                rd.append("ds_read_b128 %s, v%d offset:%d" % (vr(AF + 4 * (k % NR)), 14 if off < 57344 else 16, off % 57344))
        return rd

    def epi(tp):
        acc, st, pk = ACCS[tp & 1], STS[tp & 1], PKD[tp & 1]
        o = []
        for t in range(2):
            g, u_, s = acc + 8 * t, acc + 8 * t + 4, st + 4 * t
            for rr in range(4):
                o.append("v_fmac_f32 v%d, v%d, v%d" % (g + rr, s, CSG + rr))
            for rr in range(4):
                o.append("v_mul_f32 v%d, v%d, v%d" % (g + rr, s + 1, g + rr))
            for rr in range(4):
                o.append("v_exp_f32 v%d, v%d" % (g + rr, g + rr))
            for rr in range(4):
                o.append("v_fmac_f32 v%d, v%d, v%d" % (u_ + rr, s, CSU + rr))
            for rr in range(4):
                o.append("v_fma_f32 v%d, v%d, v%d, v%d" % (g + rr, g + rr, s + 2, s + 2))
            for rr in range(4):
                o.append("v_rcp_f32 v%d, v%d" % (g + rr, g + rr))
            for rr in range(4):
                o.append("v_mul_f32 v%d, v%d, v%d" % (g + rr, g + rr, u_ + rr))
            o.append("v_cvt_pk_bf16_f32 v%d, v%d, v%d" % (pk + 2 * t, g, g + 1))
            o.append("v_cvt_pk_bf16_f32 v%d, v%d, v%d" % (pk + 2 * t + 1, g + 2, g + 3))
        o.append("v_permlane16_swap_b32 v%d, v%d" % (pk, pk + 2))
        o.append("v_permlane16_swap_b32 v%d, v%d" % (pk + 1, pk + 3))
        o.append(("buffer_store_dwordx4 %s, v13, %s, s58 offen%s" % (vr(pk), SWS, SC), ("hh", tp)))
        o.append("s_add_u32 s58, s58, %d" % (2 * 57344))
        return o

    def emit(x):
        if isinstance(x, tuple):
            a(x[0], tag=x[1])
        else:
            a(x)

    a.wait_tag(("h", 0), lg0=True)
    a("s_barrier")
    stamp(a, "C h0 landed")
    allrd = [x for tp in range(4) for x in rd_list(tp)]
    nxt = 0
    LA = NR - 2
    for tp in range(4):
        acc = ACCS[tp & 1]
        ep = epi(tp - 1) if tp else []
        a("ds_read_b128 %s, v19 offset:%d" % (vr(STS[tp & 1]), tp * 512))
        a("ds_read_b128 %s, v19 offset:%d" % (vr(STS[tp & 1] + 4), tp * 512 + 256))
        for u in range(14):
            for t in range(2):
                k = tp * 28 + u * 2 + t
                if k + LA == 28:
                    a.wait_tag(("h", 1))
                    a("s_barrier")
                if k + LA == 56:
                    a.wait_tag(("h", 3))
                    a("s_barrier")
                if hpend and k % 3 == 1:
                    emit_group(hpend.pop(0))
                while nxt < len(allrd) and nxt <= k + LA - 1:
                    a(allrd[nxt])
                    nxt += 1
                f = AF + 4 * (k % NR)
                z = "0" if u == 0 else None
                a(mfma(acc + 8 * t, WGF + 4 * u, f, z))
                if ep and u >= 1:
                    emit(ep.pop(0))
                a(mfma(acc + 8 * t + 4, WUF + 4 * u, f, z))
                if ep and u >= 1:
                    emit(ep.pop(0))
                    if ep and len(ep) > 2 * (27 - 2 * u - t):
                        emit(ep.pop(0))
        for x in ep:
            emit(x)
    stamp(a, "C mfma done")
    return epi, emit


def phase_D(a, epi, emit):
    a("; ---------------- C->D ----------------")
    a("v_lshrrev_b32 v6, 3, v1")
    a("v_and_b32 v7, 7, v1")
    a("v_and_b32 v8, 6, v6")
    a("v_xor_b32 v8, v8, v7")
    a("v_and_b32 v9, 3, v6")
    a("v_lshrrev_b32 v10, 2, v6")
    a("v_lshl_add_u32 v9, v10, 3, v9")
    a("s_mul_i32 %s, %s, 224" % (sT, sW))
    a("v_add_u32 v9, %s, v9" % sT)
    a("v_mul_u32_u24 v9, 896, v9")
    a("v_lshl_add_u32 v9, v8, 4, v9")
    a("s_lshl_b32 %s, %s, 7" % (sT, sCB))
    a("v_add_u32 v12, %s, v9" % sT)
    a("s_mul_i32 s62, %s, 20480" % sW)
    a("s_barrier")

    def wd_dma(u0, u1, base):
        for u in range(u0, u1):
            for i4 in range(4):
                i = 4 * u + i4
                a("s_add_u32 m0, s62, %d" % (base + (i - 4 * u0) * 1024))
                a("s_mov_b32 %s, %d" % (sT, (16 * (i >> 1) + 4 * (i & 1)) * 896))
                a("buffer_load_dwordx4 v12, %s, %s offen lds" % (SWD, sT), tag=("wd", u))

    wd_dma(0, 1, 0)
    for x in epi(3):
        emit(x)
    stamp(a, "C last store")
    wd_dma(1, 2, 4096)
    a.wait_tag(("hh", 3))
    a("s_barrier")
    L = a.label("pubc")
    raw(a, "s_cmp_lg_u32 %s, 0" % sW)
    raw(a, "s_cbranch_scc1 %s" % L)
    raw(a, "s_mov_b64 exec, 15")
    raw(a, "v_mov_b32 v10, %s" % sNONCE)
    raw(a, "v_lshlrev_b32 v11, 6, v1")
    raw(a, "buffer_store_dword v10, v11, %s, s61 offen sc1" % SWS)
    raw(a, "s_mov_b64 exec, -1")
    raw(a, "%s:" % L)
    stamp(a, "C flag")
    wd_dma(2, 5, 8192)
    a("v_and_b32 v8, 1, v2")
    a("v_lshl_add_u32 v8, v8, 2, v4")
    a("v_and_b32 v9, 6, v8")
    a("v_lshrrev_b32 v10, 1, v5")
    a("v_xor_b32 v9, v9, v10")
    a("v_lshrrev_b32 v10, 1, v2")
    a("v_lshl_add_u32 v8, v10, 4, v8")
    a("v_lshlrev_b32 v8, 7, v8")
    a("v_lshl_add_u32 v8, v9, 4, v8")
    a("v_and_b32 v9, 1, v5")
    a("v_lshl_add_u32 v8, v9, 3, v8")
    a("v_add_u32 v240, s62, v8")
    for t in range(1, 4):
        a("v_xor_b32 v%d, %d, v240" % (240 + t, 32 * t))
    WF = 16

    def wd_read(u, base):
        a.wait_tag(("wd", u))
        for t in range(4):
            for hf in range(2):
                a("ds_read_b64_tr_b16 %s, v%d offset:%d" % (vr(WF + 16 * u + 4 * t + 2 * hf, 2), 240 + t, base + hf * 1024))

    wd_read(0, 0)
    wd_read(1, 4096)
    a("s_waitcnt lgkmcnt(0)")
    wd_dma(5, 7, 0)
    a("s_lshr_b32 %s, %s, 1" % (sT, sRB))
    a("s_lshl_b32 s60, %s, 8" % sT)
    a("s_add_u32 s60, s60, %d" % WS_FC)
    a("s_lshl_b32 %s, %s, 3" % (sT, sT))
    a("s_and_b32 %s, %s, 1" % (sT2, sRB))
    a("s_add_u32 s63, %s, %s" % (sT, sT2))
    a("s_mul_i32 %s, s63, 56" % sT)
    a("s_mul_i32 %s, %s, 7" % (sT2, sW))
    a("s_add_u32 %s, %s, %s" % (sT, sT, sT2))
    a("s_lshl_b32 %s, %s, 10" % (sT, sT))
    a("s_add_u32 s58, %s, %d" % (sT, WS_HH))
    a("v_add_u32 v13, 4096, v14")
    for u in range(2, 5):
        wd_read(u, 8192 + (u - 2) * 4096)
    stamp(a, "D pre-poll")
    poll(a, "s60", 0x3fff3fff, 0x3fff3fff)
    stamp(a, "D go")
    AF, ACC = 128, 240
    DLA = 8

    def hh_load(k):
        rt, i = k // 7, k % 7
        a("buffer_load_dwordx4 %s, v%d, %s, s58 offen offset:%d%s" % (vr(AF + 4 * k), 14 if i < 4 else 13, SWS, (i & 3) * 1024, SC))
        if i == 6:
            a("s_add_u32 s58, s58, %d" % (2 * 57344))

    for k in range(DLA):
        hh_load(k)
        if k == DLA // 2 - 1:
            a("s_barrier")
    wd_read(5, 0)
    wd_read(6, 4096)
    a("v_lshrrev_b32 v6, 1, v2")
    a("v_lshl_add_u32 v6, v6, 1, v3")
    a("s_lshl_b32 %s, %s, 12" % (sT, sW))
    a("v_lshl_add_u32 v7, v2, 8, %s" % sT)
    for t in range(4):
        a("v_add_u32 v12, %d, v6" % (4 * t))
        a("v_and_b32 v12, 15, v12")
        a("v_lshl_add_u32 v%d, v12, 4, v7" % (8 + t))
    a("s_waitcnt lgkmcnt(0)")
    a("s_barrier")
    for rt in range(4):
        for i in range(7):
            for t in range(4):
                a(mfma(ACC + 4 * t, WF + 16 * i + 4 * t, AF + 28 * rt + 4 * i, "0" if i == 0 else None))
            if rt * 7 + i + DLA < 28:
                hh_load(rt * 7 + i + DLA)
        if rt == 2:
            a("v_lshrrev_b32 v6, 3, v1")
            a("v_and_b32 v7, 7, v1")
            a("s_lshr_b32 %s, %s, 1" % (sT, sW))
            a("s_lshl_b32 %s, %s, 1" % (sT, sT))
            a("s_add_u32 s63, s63, %s" % sT)
            a("s_and_b32 %s, %s, 1" % (sT2, sW))
            a("s_lshl_b32 %s, %s, 3" % (sT2, sT2))
            a("v_add_u32 v6, %s, v6" % sT2)
            a("v_lshlrev_b32 v12, 8, v7")
            a("v_lshl_add_u32 v12, v6, 4, v12")
            a("s_mul_i32 %s, s63, 14" % sT)
            a("s_lshl_b32 %s, %s, 1" % (sT2, sCB))
            a("s_add_u32 %s, %s, %s" % (sT, sT, sT2))
            a("s_lshl_b32 %s, %s, 10" % (sT, sT))
            a("s_add_u32 %s, %s, %d" % (sT, sT, WS_H))
            a("buffer_load_dwordx4 %s, v12, %s, %s offen%s" % (vr(128), SWS, sT, SC))
        if rt == 2:
            for t in range(4):
                a("v_add_u32 v%d, 65536, v%d" % (8 + t, 8 + t))
        for t in range(4):
            a("ds_write_b128 v%d, %s offset:%d" % (8 + t, vr(ACC + 4 * t), (rt & 1) * 32768 + t * 1024))
    stamp(a, "D mfma done")
    a("v_lshl_add_u32 v10, v7, 1, v6")
    a("v_and_b32 v10, 15, v10")
    a("v_lshlrev_b32 v10, 4, v10")
    a("v_lshl_add_u32 v10, v7, 9, v10")
    a("s_lshr_b32 %s, %s, 1" % (sT, sW))
    a("s_lshl_b32 %s, %s, 15" % (sT, sT))
    a("v_add_u32 v10, %s, v10" % sT)
    a("s_lshr_b32 %s, s63, 1" % sT)
    a("s_lshl_b32 %s, %s, 5" % (sT, sT))
    a("s_and_b32 %s, s63, 1" % sT2)
    a("s_add_u32 %s, %s, %s" % (sT, sT, sT2))
    a("v_lshl_add_u32 v11, v6, 1, %s" % sT)
    a("v_mul_u32_u24 v11, 896, v11")
    a("v_lshl_add_u32 v11, v7, 4, v11")
    a("s_lshl_b32 %s, %s, 7" % (sT, sCB))
    S = 132
    for i in range(4):
        a("v_lshlrev_b32 v%d, 16, v%d" % (S + 2 * i, 128 + i))
        a("v_and_b32 v%d, 0xffff0000, v%d" % (S + 2 * i + 1, 128 + i))
    a("s_waitcnt lgkmcnt(0)")
    a("s_barrier")
    RD = 16
    for p in range(8):
        a("ds_read_b128 %s, v10 offset:%d" % (vr(RD + 8 * p), p * 4096))
        a("ds_read_b128 %s, v10 offset:%d" % (vr(RD + 8 * p + 4), p * 4096 + 256))
    for p in range(8):
        for i in range(8):
            a("v_add_f32 v%d, v%d, v%d" % (S + i, S + i, RD + 8 * p + i))
    for i in range(4):
        a("v_cvt_pk_bf16_f32 v%d, v%d, v%d" % (128 + i, S + 2 * i, S + 2 * i + 1))
    a("buffer_store_dwordx4 %s, v11, %s, %s offen" % (vr(128), SOUT, sT))
    stamp(a, "D out stored")


HEADER = open("cdna_kernels/%s.s.ref" % NAME).read().split("; Override launch")[0]


def build():
    n = NAME + "_kernel"
    out = HEADER
    out += "; @launch grid=(256,1,1) block=(512,1,1) lds=163840\n"
    out += '.amdgcn_target "amdgcn-amd-amdhsa--gfx950"\n.text\n'
    a = Asm()
    prologue(a)
    phase_A(a)
    phase_B(a)
    epi, emit = phase_C(a)
    phase_D(a, epi, emit)
    a("Lfin:")
    stamp_flush(a)
    a("Lend:")
    a("s_endpgm")
    a("Lcode_end:")
    body = a.render()
    out += ".globl %s\n.p2align 8\n.type %s,@function\n%s:\nLcode_begin:\n%s" % (n, n, n, body)

    out += '.section .rodata,"a"\n.p2align 6\n'
    out += """.amdhsa_kernel %s
  .amdhsa_next_free_vgpr 256
  .amdhsa_next_free_sgpr 102
  .amdhsa_accum_offset 256
  .amdhsa_group_segment_fixed_size 0
  .amdhsa_kernarg_size 80
  .amdhsa_user_sgpr_count 2
  .amdhsa_user_sgpr_kernarg_segment_ptr 1
  .amdhsa_system_sgpr_workgroup_id_x 1
.end_amdhsa_kernel
""" % n
    return out


if __name__ == "__main__":
    dst = sys.argv[1] if len(sys.argv) > 1 else "cdna_kernels/%s.s" % NAME
    STAMPS = "stamps" in sys.argv
    OPT = set(sys.argv[2:])
    txt = build()
    import subprocess, re
    open("_sz.s", "w").write(txt.replace("CODE_BYTES", "0x12345"))
    subprocess.check_call(["clang", "-x", "assembler", "-target", "amdgcn-amd-amdhsa", "-mcpu=gfx950", "-c", "_sz.s", "-o", "_sz.o"])
    sym = subprocess.check_output(["llvm-objdump", "-t", "_sz.o"]).decode()
    end = int(re.search(r"([0-9a-f]+) .*Lcode_end", sym).group(1), 16)
    print("code bytes", end)
    open(dst, "w").write(txt.replace("CODE_BYTES", str((end - 64) & ~3)))
    print("wrote", dst)
```

```python
import sys, struct
sys.path.insert(0, "dev")
from asmlib import Asm, Ins

NAME = "sequential_preLN__sliding_local_dilated__glu_gated_glu__prompt"

WS_O = 0
WS_H = 2 << 20
WS_ST = 4 << 20
WS_HH = 8 << 20
WS_FA = 16 << 20
WS_FB = WS_FA + 8192
WS_FC = WS_FA + 16384
WS_TS = 20 << 20
WS_SIZE = 32 << 20

SX, SWQKV, SWO, SWG, SWU, SWD, SOUT, SWS, SDBG = [("s[%d:%d]" % (b, b + 3)) for b in range(8, 44, 4)]
sW, sXC, sJ, sNONCE = "s44", "s45", "s46", "s47"
sT, sT2, sT3 = "s55", "s56", "s57"
sW1024 = "s53"
sRB, sCB, sRQ, sFS = "s84", "s85", "s86", "s87"
SC = " sc1"
LOG2E = 1.4426950408889634
STAMPS = False
OPT = set()
NSTAMP = [0]
ASPACE = 3


def f2u(x):
    return struct.unpack("<I", struct.pack("<f", x))[0]


def vr(b, n=4):
    return "v[%d:%d]" % (b, b + n - 1)


def mfma(acc, A, B, C=None):
    return "v_mfma_f32_16x16x32_bf16 %s, %s, %s, %s" % (vr(acc), vr(A), vr(B), vr(acc) if C is None else C)


def raw(a, text):
    for line in text.split("\n"):
        line = line.strip()
        if not line:
            continue
        if line.endswith(":"):
            a.items.append(("l", line))
        else:
            a.items.append(("i", Ins(line)))


def stamp(a, name):
    if STAMPS:
        i = NSTAMP[0]
        NSTAMP[0] += 1
        a("; STAMP %d %s" % (i, name))
        a("s_memrealtime s[100:101]")
        a("s_waitcnt lgkmcnt(0)")
        a("v_writelane_b32 v15, s100, %d" % i)


def stamp_flush(a):
    if STAMPS:
        a("s_lshl_b32 s3, s2, 3")
        a("s_add_u32 s3, s3, %s" % sW)
        a("s_lshl_b32 s3, s3, 8")
        a("s_add_u32 s3, s3, %d" % WS_TS)
        a("v_lshlrev_b32 v7, 2, v1")
        a("buffer_store_dword v15, v7, %s, s3 offen" % SWS)
        if "dbgout" in OPT:
            a("s_cmp_lg_u32 s2, 100")
            a("s_cbranch_scc1 Lend")
            a("s_cmp_lg_u32 %s, 3" % sW)
            a("s_cbranch_scc1 Lend")
            sel = [0, 2, 3, 5, 6, 8, 9, 10, 12, 13, 14, 16, 18, 19, 20]
            a("v_mov_b32 v7, 0")
            for i, st in enumerate(sel):
                a("v_readlane_b32 s3, v15, %d" % st)
                a("s_sub_u32 s3, s3, %s" % sNONCE)
                a("v_mov_b32 v6, s3")
                a("buffer_store_dword v6, v7, %s, 0 offen offset:%d" % (SDBG, 4 + 4 * i))


def xg_reduce_multi(a, op, xs, ts):
    for step in ("v_permlane32_swap_b32", "v_permlane16_swap_b32"):
        for x, t in zip(xs, ts):
            a("v_mov_b32 %s, %s" % (t, x))
        for x, t in zip(xs, ts):
            a("%s %s, %s" % (step, t, x))
        for x, t in zip(xs, ts):
            a("%s %s, %s, %s" % (op, x, x, t))


def publish(a, soff):
    L = a.label("pub")
    raw(a, "s_cmp_lg_u32 %s, 0" % sW)
    raw(a, "s_cbranch_scc1 %s" % L)
    raw(a, "s_mov_b64 exec, 1")
    raw(a, "v_mov_b32 v6, %s" % sNONCE)
    raw(a, "v_mov_b32 v7, 0")
    raw(a, "buffer_store_dword v6, v7, %s, %s offen sc1" % (SWS, soff))
    raw(a, "s_mov_b64 exec, -1")
    raw(a, "%s:" % L)


def poll(a, soff, mask_lo, mask_hi):
    L, Lp, Ld = a.label("skip"), a.label("poll"), a.label("done")
    raw(a, "s_cmp_lg_u32 %s, 0" % sW)
    raw(a, "s_cbranch_scc1 %s" % L)
    raw(a, "v_lshlrev_b32 v7, 2, v1")
    raw(a, "s_mov_b32 exec_lo, 0x%x" % mask_lo)
    raw(a, "s_mov_b32 exec_hi, 0x%x" % mask_hi)
    raw(a, "s_mov_b32 s3, 20000")
    raw(a, "%s:" % Lp)
    raw(a, "buffer_load_dword v6, v7, %s, %s offen sc1" % (SWS, soff))
    raw(a, "s_waitcnt vmcnt(0)")
    raw(a, "v_cmp_ne_u32 vcc, %s, v6" % sNONCE)
    raw(a, "s_sub_u32 s3, s3, 1")
    raw(a, "s_cbranch_scc1 %s" % Ld)
    raw(a, "s_nop 1")
    raw(a, "s_cmp_lg_u64 vcc, 0")
    raw(a, "s_cbranch_scc1 %s" % Lp)
    raw(a, "%s:" % Ld)
    raw(a, "s_mov_b64 exec, -1")
    raw(a, "%s:" % L)
    a("s_barrier")


def prologue(a):
    a("s_load_dwordx16 s[64:79], s[0:1], 0")
    a("s_load_dwordx4 s[80:83], s[0:1], 64")
    a("s_memrealtime s[4:5]")
    a("s_cmp_ge_u32 s2, 256")
    a("s_cbranch_scc1 Lend")
    a("s_getpc_b64 s[6:7]")
    a("v_and_b32 v1, 63, v0")
    a("v_lshrrev_b32 v6, 6, v0")
    a("v_lshrrev_b32 v2, 4, v1")
    a("v_readfirstlane_b32 %s, v6" % sW)
    a("v_and_b32 v3, 15, v0")
    a("v_bfe_u32 v4, v0, 2, 2")
    a("v_and_b32 v5, 3, v0")
    if STAMPS:
        a("v_mov_b32 v15, 0")
    a("s_and_b32 %s, s2, 7" % sXC)
    a("s_lshr_b32 %s, s2, 3" % sJ)
    a("v_lshlrev_b32 v6, 7, v0")
    a("v_min_u32 v6, CODE_BYTES, v6")
    a("s_cmp_gt_u32 %s, 3" % sW)
    a("s_cbranch_scc1 Lnopf")
    raw(a, "global_load_dword v7, v6, s[6:7]")
    a("Lnopf:")
    sizes = {8: 2048 * 896, 12: 448 * 2688, 16: 448 * 896, 20: 448 * 3584, 24: 448 * 3584,
             28: 1792 * 896, 32: 2048 * 896, 36: WS_SIZE, 40: 256}
    for b, sz in sizes.items():
        a("s_mov_b32 s%d, %d" % (b + 2, sz))
        a("s_mov_b32 s%d, 0x00020000" % (b + 3))
    a("s_lshl_b32 %s, %s, 10" % (sW1024, sW))


def prologue2(a):
    a("s_waitcnt lgkmcnt(0)")
    src = {8: 64, 12: 66, 16: 68, 20: 72, 24: 74, 28: 76, 32: 78, 36: 82, 40: 80}
    for b, s in src.items():
        a("s_mov_b64 s[%d:%d], s[%d:%d]" % (b, b + 1, s, s + 1))


def nonce_publish(a):
    a("s_or_b32 s3, s2, %s" % sW)
    a("s_cmp_lg_u32 s3, 0")
    a("s_cbranch_scc1 Lnononce")
    raw(a, "s_or_b32 s3, s4, 1")
    raw(a, "v_mov_b32 v8, s3")
    raw(a, "v_mov_b32 v9, 0")
    raw(a, "s_mov_b64 exec, 1")
    raw(a, "buffer_store_dword v8, v9, %s, 0 offen sc1" % SDBG)
    raw(a, "s_mov_b64 exec, -1")
    a("Lnononce:")


def nonce_fetch(a, vN):
    L, Lp = a.label("nskip"), a.label("npoll")
    a("v_readfirstlane_b32 %s, %s" % (sNONCE, vN))
    raw(a, "s_nop 1")
    raw(a, "s_cmp_lg_u32 %s, 0" % sNONCE)
    raw(a, "s_cbranch_scc1 %s" % L)
    raw(a, "s_mov_b32 s3, 20000")
    raw(a, "v_mov_b32 v7, 0")
    raw(a, "%s:" % Lp)
    raw(a, "buffer_load_dword v6, v7, %s, 0 offen sc1" % SDBG)
    raw(a, "s_waitcnt vmcnt(0)")
    raw(a, "v_readfirstlane_b32 %s, v6" % sNONCE)
    raw(a, "s_sub_u32 s3, s3, 1")
    raw(a, "s_cbranch_scc1 %s" % L)
    raw(a, "s_nop 1")
    raw(a, "s_cmp_eq_u32 %s, 0" % sNONCE)
    raw(a, "s_cbranch_scc1 %s" % Lp)
    raw(a, "%s:" % L)
    raw(a, "s_nop 3")


def touch(a, jobs):
    Lend = a.label("tend")
    for (w, srd, n) in jobs:
        L = a.label("tn")
        raw(a, "s_cmp_lg_u32 %s, %d" % (sW, w))
        raw(a, "s_cbranch_scc1 %s" % L)
        raw(a, "s_mul_i32 s3, s2, %d" % (n * 128))
        raw(a, "v_min_u32 v6, %d, v1" % (n - 1))
        raw(a, "v_lshlrev_b32 v6, 7, v6")
        raw(a, "buffer_load_dword v7, v6, %s, s3 offen" % srd)
        raw(a, "s_branch %s" % Lend)
        raw(a, "%s:" % L)
    raw(a, "%s:" % Lend)


A_SLOT = 34816
A_XOFF = 24576
A_EX = 4 * A_SLOT
A_CS = A_EX + 20480
R0, R1, R2 = 0, 57344, 139264
B_RB = R2
C_ST = 114688

vWO_DMA, vWC_DMA, vWC_TR = "v176", "v177", 178
WGF, WUF = 80, 136
WOF = 128


def roles_BCD(a):
    a("s_mul_i32 %s, %s, 37" % (sRB, sJ))
    a("s_lshr_b32 %s, %s, 8" % (sRB, sRB))
    a("s_mul_i32 %s, %s, 7" % (sCB, sRB))
    a("s_sub_u32 %s, %s, %s" % (sCB, sJ, sCB))
    a("s_lshr_b32 %s, %s, 1" % (sT, sXC))
    a("s_lshl_b32 %s, %s, 2" % (sT, sT))
    a("s_add_u32 %s, %s, %s" % (sRQ, sRB, sT))
    a("s_and_b32 %s, %s, 1" % (sT, sXC))
    a("s_mul_i32 %s, %s, 7" % (sT, sT))
    a("s_add_u32 %s, %s, %s" % (sFS, sCB, sT))
    a("s_lshl_b32 %s, %s, 2" % (sT, sXC))
    a("s_add_u32 %s, %s, %s" % (sRB, sRB, sT))


def wo_dma(a, i0, i1, vaddr):
    for i in range(i0, i1):
        a("s_add_u32 m0, %s, %d" % (sW1024, R0 + i * 8192))
        a("s_mov_b32 %s, %d" % (sT, i * 64 * 896))
        a("buffer_load_dwordx4 %s, %s, %s offen lds" % (vaddr, SWO, sT), tag="wo")


def wc_dma(a, slabs, vaddr, tag):
    for (s, base) in slabs:
        a("s_add_u32 m0, %s, %d" % (sW1024, base))
        a("s_mov_b32 %s, %d" % (sT, (s % 14) * 114688))
        a("buffer_load_dwordx4 %s, %s, %s offen lds" % (vaddr, SWG if s < 14 else SWU, sT), tag=tag)


def wc_read(slabs, vtr):
    out = []
    for (s, base) in slabs:
        for hf in range(2):
            out.append("ds_read_b64_tr_b16 %s, v%d offset:%d" % (vr(WGF + 4 * s + 2 * hf, 2), vtr + base // 57344, base % 57344 + hf * 1024))
    return out


def phase_A(a):
    sTB, sHP, sT0, sTI, sHD = "s48", "s49", "s50", "s51", "s52"
    sW256 = "s54"
    sHM = "s[58:59]"
    a("; ---------------- phase A ----------------")
    a("s_lshl_b32 %s, %s, 2" % (sTB, sXC))
    a("s_lshr_b32 %s, %s, 3" % (sT, sJ))
    a("s_add_u32 %s, %s, %s" % (sTB, sTB, sT))
    a("s_and_b32 %s, %s, 7" % (sHP, sJ))
    a("s_lshl_b32 %s, %s, 6" % (sT0, sTB))
    a("s_and_b32 %s, %s, 3" % (sTI, sW))
    a("s_lshr_b32 %s, %s, 2" % (sHD, sW))
    a("s_lshl_b32 %s, %s, 8" % (sW256, sW))
    vAX, vAH, vAW = "v16", "v17", "v18"
    a("v_lshrrev_b32 v12, 3, v1")
    a("v_and_b32 v13, 7, v1")
    a("s_and_b32 %s, %s, 1" % (sT, sW))
    a("s_lshl_b32 %s, %s, 2" % (sT, sT))
    a("v_and_b32 v8, 2, v12")
    a("v_or_b32 v8, %s, v8" % sT)
    a("v_xor_b32 v8, v8, v13")
    a("v_min_u32 v8, 6, v8")
    a("s_lshl_b32 %s, %s, 3" % (sT, sW))
    a("v_add_u32 v9, %s, v12" % sT)
    a("v_mul_u32_u24 v9, 2688, v9")
    a("s_mul_i32 %s, %s, 112" % (sT, sHP))
    a("v_lshl_add_u32 v9, v8, 4, v9")
    a("v_add_u32 %s, %s, v9" % (vAW, sT))
    a("s_lshl_b32 %s, %s, 5" % (sT, sHD))
    a("s_add_u32 %s, %s, %s" % (sT, sT, sT0))
    a("s_bfe_u32 %s, %s, 0x10001" % (sT2, sW))
    a("s_add_u32 %s, %s, %s" % (sT, sT, sT2))
    a("s_and_b32 %s, %s, 1" % (sT2, sW))
    a("s_lshl_b32 %s, %s, 4" % (sT2, sT2))
    a("s_add_u32 %s, %s, %s" % (sT, sT, sT2))
    a("v_lshl_add_u32 v9, v12, 1, %s" % sT)
    a("v_mul_u32_u24 v9, 896, v9")
    a("s_lshr_b32 %s, %s, 2" % (sT2, sT2))
    a("v_lshrrev_b32 v8, 1, v12")
    a("v_add_u32 v8, %s, v8" % sT2)
    a("v_xor_b32 v8, v8, v13")
    a("v_lshl_add_u32 %s, v8, 4, v9" % vAX)
    a("s_lshl_b32 %s, %s, 2" % (sT, sTI))
    a("s_add_u32 %s, %s, %s" % (sT, sT, sT0))
    a("s_add_u32 %s, %s, %s" % (sT, sT, sHD))
    a("s_sub_u32 %s, %s, 16" % (sT, sT))
    a("v_and_b32 v8, 1, v12")
    a("v_lshl_add_u32 v9, v8, 1, %s" % sT)
    a("v_max_i32 v9, 0, v9")
    a("v_mul_u32_u24 v9, 896, v9")
    a("v_xor_b32 v8, %s, v13" % sW)
    a("v_lshl_add_u32 %s, v8, 4, v9" % vAH)
    a("s_mov_b32 s59, 0")
    a("s_cmp_eq_u32 %s, 0" % sW)
    a("s_mov_b32 s58, 0xffff")
    a("s_cselect_b32 s58, 0xff00, s58")
    prologue2(a)

    def slot(ch):
        return (ch + 1) % 4

    def dma_groups(ch):
        sb = slot(ch) * A_SLOT
        tg = ("A", ch)
        gs = []
        for m in range(3):
            g = [("s_mov_b32 s64, %d" % (ch * 172032), None)] if m == 0 else []
            g += [("s_add_u32 m0, %s, %d" % (sW1024, sb + m * 8192 - m * 896), None),
                  ("buffer_load_dwordx4 %s, %s, s64 offen offset:%d lds" % (vAW, SWQKV, m * 896), tg)]
            gs.append(g)
        gs.append([("s_add_u32 m0, %s, %d" % (sW1024, sb + A_XOFF - ch * 128), None),
                   ("buffer_load_dwordx4 %s, %s, 0 offen offset:%d lds" % (vAX, SX, ch * 128), tg)])
        gs.append([("s_add_u32 m0, %s, %d" % (sW256, sb + A_XOFF + 8192 - ch * 128), None),
                   ("s_mov_b64 exec, %s" % sHM, None),
                   ("buffer_load_dwordx4 %s, %s, 0 offen offset:%d lds" % (vAH, SX, ch * 128), tg),
                   ("s_mov_b64 exec, -1", None)])
        return gs

    def emit_group(g):
        for (x, tg) in g:
            a(x, tag=tg)

    def dma(ch):
        for g in dma_groups(ch):
            emit_group(g)

    stamp(a, "A start")
    dma(0)
    nonce_publish(a)
    if "notouch" not in OPT:
        touch(a, [(0, SWQKV, 37), (1, SX, 56)])
    a("s_barrier")
    dma(1)
    if "notouch" not in OPT:
        touch(a, [(2, SWO, 13), (3, SWG, 49), (4, SWU, 49), (5, SWD, 49)])
    stamp(a, "A dma issued")
    ONES = 20
    for i in range(4):
        a("v_mov_b32 v%d, 0x3f803f80" % (ONES + i))
    a("v_and_b32 v8, 3, v12")
    a("v_mul_u32_u24 v8, %d, v8" % A_SLOT)
    a("v_lshl_add_u32 v8, v13, 4, v8")
    a("ds_write_b128 v8, %s offset:%d" % (vr(ONES), A_XOFF + 8192))
    aX0, aX1, aXH0, aXH1, aW0, aW1, aWH = range(24, 31)
    a("v_bfe_u32 v8, v3, 1, 3")
    a("v_xor_b32 v8, v8, v2")
    a("v_lshlrev_b32 v8, 4, v8")
    a("v_lshl_add_u32 v8, v3, 7, v8")
    a("v_add_u32 v%d, %d, v8" % (aXH0, A_XOFF + 8192))
    a("v_xor_b32 v%d, 64, v%d" % (aXH1, aXH0))
    a("s_lshl_b32 %s, %s, 11" % (sT, sTI))
    a("s_add_u32 %s, %s, %d" % (sT, sT, A_XOFF))
    a("v_add_u32 v%d, %s, v8" % (aX0, sT))
    a("v_xor_b32 v%d, 64, v%d" % (aX1, aX0))
    a("v_and_b32 v8, 2, v4")
    a("v_and_b32 v9, 1, v2")
    a("v_lshl_or_b32 v8, v9, 2, v8")
    a("v_lshlrev_b32 v8, 4, v8")
    a("v_lshl_add_u32 v9, v2, 3, v4")
    a("v_lshlrev_b32 v9, 7, v9")
    a("s_mul_i32 %s, %s, 56" % (sT, sHD))
    a("v_lshl_add_u32 v10, v5, 3, %s" % sT)
    a("v_xor_b32 v11, v10, v8")
    a("v_add_u32 v%d, v11, v9" % aW0)
    a("v_add_u32 v10, 32, v10")
    a("v_xor_b32 v11, v10, v8")
    a("v_add_u32 v%d, v11, v9" % aW1)
    a("s_and_b32 %s, %s, 1" % (sT, sTI))
    a("s_cmp_eq_u32 %s, 1" % sT)
    a("s_cselect_b64 vcc, -1, 0")
    a("s_lshr_b32 %s, %s, 1" % (sT, sTI))
    a("s_add_u32 %s, %s, 1" % (sT, sT))
    a("s_lshl_b32 %s, %s, 13" % (sT, sT))
    a("v_cndmask_b32 v8, v%d, v%d, vcc" % (aW0, aW1))
    a("v_add_u32 v%d, %s, v8" % (aWH, sT))
    for i in range(7):
        a("v_add_u32 v%d, %d, v%d" % (31 + i, 2 * A_SLOT, 24 + i))
    ACC = 40
    aH, cQ0, cQ1, aRS, aGR, aGH = ACC + 24, ACC + 28, ACC + 32, ACC + 36, ACC + 40, ACC + 44
    BP, BC = 88, 92
    a("v_lshlrev_b32 v8, 2, v2")
    a("v_sub_u32 v9, v3, v8")
    a("s_lshl_b32 %s, %s, 2" % (sT, sTB))
    a("s_add_u32 %s, %s, %s" % (sT, sT, sTI))
    a("s_cmp_lt_u32 %s, 2" % sT)
    a("s_cselect_b32 %s, 0x10000, 0" % sT2)
    a("v_mov_b32 v11, 0x%x" % f2u(-1e30))
    for rr in range(4):
        a("v_subrev_u32 v10, %d, v9" % rr)
        a("v_cmp_gt_u32 vcc, 8, v10")
        a("v_cndmask_b32 v%d, v11, 0, vcc" % (BC + rr))
        a("v_add_u32 v10, 16, v10")
        a("v_add_u32 v10, %s, v10" % sT2)
        a("v_cmp_gt_u32 vcc, 8, v10")
        a("v_cndmask_b32 v%d, v11, 0, vcc" % (BP + rr))
    a("v_cmp_eq_u32 s[60:61], 1, v5")
    a("v_cmp_eq_u32 s[62:63], 2, v5")
    a("v_cmp_eq_u32 s[88:89], 3, v5")
    a("v_cmp_eq_u32 s[90:91], v4, v2")
    a("v_cmp_eq_u32 s[92:93], 0, v2")
    a("v_cmp_gt_u32 s[94:95], 3, v2")
    a("s_lshl_b32 %s, %s, 6" % (sT, sW))
    a("s_add_u32 %s, %s, %d" % (sT, sT, A_CS))
    a("v_lshl_add_u32 v168, v2, 4, %s" % sT)
    a("s_lshl_b32 %s, %s, 8" % (sT, sHD))
    a("s_add_u32 %s, %s, %d" % (sT, sT, A_CS))
    a("v_lshl_add_u32 v169, v2, 4, %s" % sT)
    a("s_lshl_b32 %s, %s, 9" % (sT, sW))
    a("s_add_u32 %s, %s, %d" % (sT, sT, A_EX + 4 * 4096))
    a("v_lshl_add_u32 v170, v1, 3, %s" % sT)
    a("s_lshl_b32 %s, %s, 12" % (sT, sTI))
    a("s_lshl_b32 %s, %s, 11" % (sT2, sHD))
    a("s_add_u32 %s, %s, %s" % (sT, sT, sT2))
    a("s_add_u32 %s, %s, %d" % (sT, sT, A_EX))
    a("v_lshl_add_u32 v171, v1, 3, %s" % sT)
    a("v_lshl_add_u32 v9, v2, 2, v4")
    a("v_lshl_add_u32 v10, v5, 4, v9")
    a("v_lshl_add_u32 v172, v10, 3, %s" % sT)
    a("s_sub_u32 %s, %s, 8192" % (sT, sT))
    a("s_add_u32 %s, %s, %d" % (sT2, sT2, A_EX + 4 * 4096))
    a("s_lshl_b32 s97, %s, 3" % sTI)
    a("s_cmp_lt_u32 %s, 2" % sTI)
    a("s_cselect_b32 s96, 7, 15")
    a("s_cselect_b32 s97, s97, 0")
    a("s_cselect_b32 %s, %s, %s" % (sT, sT2, sT))
    a("v_and_b32 v9, s96, v9")
    a("v_add_u32 v9, s97, v9")
    a("v_lshl_add_u32 v10, v5, 4, v9")
    a("v_lshl_add_u32 v173, v10, 3, %s" % sT)
    a("v_and_b32 v9, s96, v3")
    a("v_add_u32 v9, s97, v9")
    a("v_lshl_add_u32 v10, v2, 4, v9")
    a("v_lshl_add_u32 v174, v10, 3, %s" % sT)
    a("s_lshl_b32 %s, %s, 2" % (sT, sTB))
    a("s_add_u32 %s, %s, %s" % (sT, sT, sTI))
    a("s_lshl_b32 %s, %s, 4" % (sT, sT))
    a("s_lshl_b32 %s, %s, 1" % (sT2, sHP))
    a("s_add_u32 %s, %s, %s" % (sT, sT, sT2))
    a("s_add_u32 %s, %s, %s" % (sT, sT, sHD))
    a("s_lshl_b32 s98, %s, 10" % sT)
    a("s_lshl_b32 %s, %s, 7" % (sT, sTB))
    a("s_lshl_b32 %s, %s, 2" % (sT2, sHP))
    a("s_add_u32 %s, %s, %s" % (sT, sT, sT2))
    a("s_add_u32 s99, %s, %d" % (sT, WS_FA))
    roles_BCD(a)
    a("v_and_b32 v8, 2, v12")
    a("v_lshlrev_b32 v8, 1, v8")
    a("v_xor_b32 v8, v8, v13")
    a("s_lshl_b32 %s, %s, 3" % (sT, sW))
    a("v_add_u32 v9, %s, v12" % sT)
    a("v_mul_u32_u24 v9, 896, v9")
    a("v_lshl_add_u32 v9, v8, 4, v9")
    a("s_lshl_b32 %s, %s, 7" % (sT, sCB))
    a("v_add_u32 %s, %s, v9" % (vWO_DMA, sT))
    a("s_bfe_u32 %s, %s, 0x10001" % (sT, sW))
    a("s_lshl_b32 %s, %s, 3" % (sT, sT))
    a("v_lshl_or_b32 v8, v2, 1, %s" % sT)
    a("v_xor_b32 v8, v8, v3")
    a("s_lshl_b32 %s, %s, 2" % (sT, sW))
    a("v_add_u32 v9, %s, v2" % sT)
    a("v_mul_u32_u24 v9, 3584, v9")
    a("v_lshl_add_u32 v9, v8, 4, v9")
    a("s_lshl_b32 %s, %s, 8" % (sT, sFS))
    a("v_add_u32 %s, %s, v9" % (vWC_DMA, sT))
    FB = [96, 132]

    def reads(n):
        ch, ks = n >> 1, n & 1
        sl = slot(ch)
        ab = 24 if sl < 2 else 31
        ib = (sl & 1) * A_SLOT
        fb = FB[ks]
        out = []
        out.append("ds_read_b128 %s, v%d offset:%d" % (vr(fb + 4), ab + 2 + ks, ib))
        for hf in range(2):
            out.append("ds_read_b64_tr_b16 %s, v%d offset:%d" % (vr(fb + 32 + 2 * hf, 2), ab + 6, ib + ks * 4096 + hf * 512))
        out.append("ds_read_b128 %s, v%d offset:%d" % (vr(fb), ab + ks, ib))
        for t in (2, 3, 4, 5, 0, 1):
            m, dt = t >> 1, t & 1
            for hf in range(2):
                out.append("ds_read_b64_tr_b16 %s, v%d offset:%d" % (vr(fb + 8 + 4 * t + 2 * hf, 2), ab + 4 + dt, ib + m * 8192 + ks * 4096 + hf * 512))
        return out

    def compute(n):
        fb = FB[n & 1]
        z = "0" if n == 0 else None
        out = [mfma(aGH, fb + 4, fb + 4, z), mfma(aH, fb + 32, fb + 4, z), mfma(aGR, fb, fb, z), mfma(aRS, ONES, fb, z)]
        for t in (2, 3, 4, 5):
            out.append(mfma(ACC + 4 * t, fb + 8 + 4 * t, fb, z))
        out += [mfma(ACC, fb + 8, fb, z), mfma(cQ0, fb + 8, ONES, z), mfma(ACC + 4, fb + 12, fb, z), mfma(cQ1, fb + 12, ONES, z)]
        return out

    def wo_groups(i0, i1):
        return [[("s_add_u32 m0, %s, %d" % (sW1024, R0 + i * 8192), None),
                 ("s_mov_b32 s64, %d" % (i * 64 * 896), None),
                 ("buffer_load_dwordx4 %s, %s, s64 offen lds" % (vWO_DMA, SWO), "wo")] for i in range(i0, i1)]

    a.wait_tag(("A", 0), lg0=True)
    a("s_barrier")
    stamp(a, "A ch0 landed")
    for x in reads(0):
        a(x)
    pend = dma_groups(2)
    for n in range(14):
        rd = []
        if n + 1 < 14:
            if (n + 1) % 2 == 0:
                ch = (n + 1) // 2
                for g in pend:
                    emit_group(g)
                pend = []
                a.wait_tag(("A", ch))
                a("s_barrier")
                if ch == 6:
                    stamp(a, "A ch6 landed")
                if ch <= 4:
                    pend = dma_groups(ch + 2)
                if ch == 4:
                    pend.append([("v_mov_b32 v8, 0", None), ("buffer_load_dword v175, v8, %s, 0 offen sc1" % SDBG, None)])
                if ch == 5:
                    pend = wo_groups(0, 4)
                if ch == 6:
                    pend = wo_groups(4, 7)
            rd = reads(n + 1)
        for i, x in enumerate(compute(n)):
            a(x)
            for _ in range(2 if i < 4 else 1):
                if rd:
                    a(rd.pop(0))
            if pend and i % ASPACE == ASPACE - 1:
                emit_group(pend.pop(0))
        for x in rd:
            a(x)
    for g in pend:
        emit_group(g)

    stamp(a, "A loop done")
    T = 96
    for rr in range(4):
        a("v_mov_b32_dpp v%d, v%d row_newbcast:0 row_mask:0xf bank_mask:0xf" % (T + rr, aH + rr))
    a("ds_write_b128 v168, %s" % vr(T))
    for (acc, d) in ((aGH, "v9"), (aGR, "v8")):
        a("v_cndmask_b32 %s, v%d, v%d, s[60:61]" % (d, acc, acc + 1))
        a("v_cndmask_b32 %s, %s, v%d, s[62:63]" % (d, d, acc + 2))
        a("v_cndmask_b32 %s, %s, v%d, s[88:89]" % (d, d, acc + 3))
        a("v_cndmask_b32 %s, 0, %s, s[90:91]" % (d, d))
    a("v_cndmask_b32 v10, 0, v%d, s[92:93]" % aGH)
    a("s_waitcnt lgkmcnt(0)")
    a("s_barrier")
    CS = T + 4
    for t in range(4):
        a("ds_read_b128 %s, v169 offset:%d" % (vr(CS + 4 * t), 64 * t))
    xg_reduce_multi(a, "v_add_f32", ["v8", "v9", "v10"], ["v11", "v12", "v13"])
    a("s_mov_b32 %s, 0x%x" % (sT, f2u(1.0 / 448)))
    a("v_mov_b32 v12, 0x%x" % f2u(1e-5))
    SO, SH = 116, 118
    a("v_mul_f32 v%d, -%s, v10" % (SH, sT))
    a("v_mul_f32 v%d, -%s, v%d" % (SO, sT, aRS))
    a("v_fma_f32 v9, v9, %s, v12" % sT)
    a("v_fma_f32 v8, v8, %s, v12" % sT)
    a("v_fma_f32 v9, -v%d, v%d, v9" % (SH, SH))
    a("v_fma_f32 v8, -v%d, v%d, v8" % (SO, SO))
    a("v_max_f32 v9, v9, v12")
    a("v_max_f32 v8, v8, v12")
    a("v_rsq_f32 v%d, v9" % (SH + 1))
    a("v_rsq_f32 v%d, v8" % (SO + 1))

    def center(acc, cs, st):
        for rr in range(4):
            a("v_fmac_f32 v%d, v%d, v%d" % (acc + rr, st, cs + rr))

    def scale(acc, st):
        for rr in range(4):
            a("v_mul_f32 v%d, v%d, v%d" % (acc + rr, st + 1, acc + rr))

    def pack(dst, acc):
        a("v_cvt_pk_bf16_f32 v%d, v%d, v%d" % (dst, acc, acc + 1))
        a("v_cvt_pk_bf16_f32 v%d, v%d, v%d" % (dst + 1, acc + 2, acc + 3))

    center(aH, T, SH)
    for t in range(4):
        center(ACC + 8 + 4 * t, CS + 4 * t, SO)
    scale(aH, SH)
    pack(T, aH)
    a("ds_write_b64 v170, %s" % vr(T, 2))
    PK = 120
    for t in range(4):
        scale(ACC + 8 + 4 * t, SO)
        pack(PK + 2 * t, ACC + 8 + 4 * t)
        a("ds_write_b64 v171, %s offset:%d" % (vr(PK + 2 * t, 2), 512 * t))
    QP = 100
    center(ACC, cQ0, SO)
    center(ACC + 4, cQ1, SO)
    a("s_waitcnt lgkmcnt(0)")
    a("s_barrier")
    KP, V0, V1 = 104, 108, 112
    a("ds_read_b64 %s, v174" % vr(KP, 2))
    a("ds_read_b64 %s, v174 offset:512" % vr(KP + 2, 2))
    a("ds_read_b64_tr_b16 %s, v173 offset:1024" % vr(V0, 2))
    a("ds_read_b64_tr_b16 %s, v172 offset:1024" % vr(V0 + 2, 2))
    a("ds_read_b64_tr_b16 %s, v173 offset:1536" % vr(V1, 2))
    a("ds_read_b64_tr_b16 %s, v172 offset:1536" % vr(V1 + 2, 2))
    pack(QP, ACC)
    pack(QP + 2, ACC + 4)
    a("v_cndmask_b32 v%d, 0, v%d, s[94:95]" % (QP + 2, QP + 2))
    a("v_cndmask_b32 v%d, 0, v%d, s[94:95]" % (QP + 3, QP + 3))
    a(mfma(BC, PK, QP))
    a(mfma(BP, KP, QP))
    a("v_mul_f32 v13, 0x%x, v%d" % (f2u(28 ** -0.5 * LOG2E), SO + 1))
    a("v_max3_f32 v8, v%d, v%d, v%d" % (BC, BC + 1, BC + 2))
    a("v_max3_f32 v9, v%d, v%d, v%d" % (BC + 3, BP, BP + 1))
    a("v_max3_f32 v8, v8, v%d, v%d" % (BP + 2, BP + 3))
    a("v_max_f32 v8, v8, v9")
    xg_reduce_multi(a, "v_max_f32", ["v8"], ["v9"])
    a("v_mul_f32 v8, v13, v8")
    for i in range(8):
        a("v_fma_f32 v%d, v%d, v13, -v8" % (BP + i, BP + i))
    for i in range(8):
        a("v_exp_f32 v%d, v%d" % (BP + i, BP + i))
    a("v_add_f32 v9, v%d, v%d" % (BP, BP + 1))
    a("v_add_f32 v10, v%d, v%d" % (BP + 2, BP + 3))
    a("v_add_f32 v11, v%d, v%d" % (BP + 4, BP + 5))
    a("v_add_f32 v12, v%d, v%d" % (BP + 6, BP + 7))
    a("v_add_f32 v9, v9, v10")
    a("v_add_f32 v11, v11, v12")
    a("v_add_f32 v9, v9, v11")
    xg_reduce_multi(a, "v_add_f32", ["v9"], ["v10"])
    a("v_rcp_f32 v9, v9")
    for i in range(8):
        a("v_mul_f32 v%d, v9, v%d" % (BP + i, BP + i))
    P = 96
    for i in range(4):
        a("v_cvt_pk_bf16_f32 v%d, v%d, v%d" % (P + i, BP + 2 * i, BP + 2 * i + 1))
    O0, O1 = 40, 44
    a(mfma(O0, V0, P, "0"))
    a(mfma(O1, V1, P, "0"))
    a("v_lshlrev_b32 v14, 4, v1")
    nonce_fetch(a, "v175")
    OS = 124
    pack(OS, O0)
    pack(OS + 2, O1)
    a("v_cndmask_b32 v%d, 0, v%d, s[94:95]" % (OS + 2, OS + 2))
    a("v_cndmask_b32 v%d, 0, v%d, s[94:95]" % (OS + 3, OS + 3))
    a("buffer_store_dwordx4 %s, v14, %s, s98 offen%s" % (vr(OS), SWS, SC), tag="ost")
    stamp(a, "A o stored")


G1 = [(s, R1 + 8192 * s) for s in range(10)]
G2 = [(10 + i, R0 + 8192 * i) for i in range(7)]
G3 = [(17 + i, R1 + 8192 * i) for i in range(10)] + [(27, R2 + 16384)]


def phase_B(a):
    sTT, sKH, sTAU, sU = "s50", "s51", "s52", "s54"
    a("; ---------------- A->B ----------------")
    a("s_cmp_lt_u32 %s, 28" % sJ)
    a("s_cbranch_scc1 LgoB")
    raw(a, "s_waitcnt vmcnt(0)")
    raw(a, "s_barrier")
    publish(a, "s99")
    raw(a, "s_branch Lfin")
    a("LgoB:")
    a("v_mov_b32 v16, %s" % vWC_DMA)
    wc_dma(a, G1[:4], "v16", "g1")
    a("s_and_b32 %s, %s, 3" % (sTT, sW))
    a("s_lshr_b32 %s, %s, 2" % (sKH, sW))
    a("s_lshl_b32 %s, %s, 2" % (sTAU, sRB))
    a("s_add_u32 %s, %s, %s" % (sTAU, sTAU, sTT))
    a("v_lshl_add_u32 v8, v2, 2, v4")
    a("s_mul_i32 %s, %s, 224" % (sT, sKH))
    a("v_add_u32 v8, %s, v8" % sT)
    a("v_lshlrev_b32 v8, 7, v8")
    a("v_and_b32 v9, 2, v4")
    a("v_lshlrev_b32 v9, 1, v9")
    a("s_lshl_b32 %s, %s, 2" % (sT, sKH))
    a("v_or_b32 v10, %s, v5" % sT)
    a("v_xor_b32 v10, v10, v9")
    a("v_lshl_add_u32 v24, v10, 4, v8")
    a("v_xor_b32 v25, 64, v24")
    a("v_mov_b32 v9, 2048")
    a("v_cndmask_b32 v9, 0, v9, s[94:95]")
    a("v_add_u32 v26, v24, v9")
    a("v_add_u32 v27, v25, v9")
    a("s_lshr_b32 %s, %s, 1" % (sT, sTAU))
    a("s_lshl_b32 %s, %s, 5" % (sT, sT))
    a("s_and_b32 %s, %s, 1" % (sT2, sTAU))
    a("s_add_u32 %s, %s, %s" % (sT, sT, sT2))
    a("v_lshl_add_u32 v8, v3, 1, %s" % sT)
    a("v_mul_u32_u24 v8, 896, v8")
    a("v_lshl_add_u32 v8, v2, 4, v8")
    a("s_lshl_b32 %s, %s, 1" % (sU, sCB))
    a("s_add_u32 %s, %s, %s" % (sU, sU, sKH))
    a("s_lshl_b32 %s, %s, 6" % (sT3, sU))
    a.wait_tag("ost")
    a("s_barrier")
    publish(a, "s99")
    stamp(a, "A flag")
    XR = 20
    a("buffer_load_dwordx4 %s, v8, %s, %s offen" % (vr(XR), SX, sT3))
    wc_dma(a, G1[4:], "v16", "g1")
    for hh in range(8):
        for t in range(4):
            off = R0 + hh * 3584 + (t & 1) * 8
            a("ds_read_b64_tr_b16 %s, v%d offset:%d" % (vr(WOF + 16 * hh + 4 * t, 2), 24 + (t >> 1), off))
            a("ds_read_b64_tr_b16 %s, v%d offset:%d" % (vr(WOF + 16 * hh + 4 * t + 2, 2), 26 + (t >> 1), off))
    a("v_and_b32 v8, 1, v2")
    a("v_lshl_or_b32 v8, v8, 2, v4")
    a("v_lshlrev_b32 v8, 1, v8")
    a("v_lshrrev_b32 v9, 1, v5")
    a("s_lshl_b32 %s, %s, 1" % (sT, sW))
    a("v_add_u32 v9, %s, v9" % sT)
    a("v_xor_b32 v8, v8, v9")
    a("v_lshl_add_u32 v9, v2, 3, v4")
    a("v_lshlrev_b32 v9, 8, v9")
    a("v_lshl_add_u32 v9, v8, 4, v9")
    a("v_and_b32 v8, 1, v5")
    a("v_lshl_add_u32 v17, v8, 3, v9")
    a("v_add_u32 v18, 57344, v17")
    a("v_add_u32 v19, 114688, v17")
    OF, ACC = 32, 64
    for i in range(4):
        a("v_lshlrev_b32 v%d, 16, v%d" % (ACC + 2 * i, XR + i))
        a("v_and_b32 v%d, 0xffff0000, v%d" % (ACC + 2 * i + 1, XR + i))
    a("s_lshl_b32 %s, %s, 4" % (sT2, sTAU))
    a("s_lshl_b32 %s, %s, 3" % (sT3, sKH))
    a("s_add_u32 %s, %s, %s" % (sT2, sT2, sT3))
    a("s_lshl_b32 %s, %s, 10" % (sT2, sT2))
    a("s_add_u32 %s, %s, 4096" % (sT3, sT2))
    a("s_lshl_b32 %s, %s, 11" % (sT, sW))
    a("s_add_u32 %s, %s, %d" % (sT, sT, B_RB))
    a("v_add_u32 v12, %s, v14" % sT)
    a("s_xor_b32 %s, %s, 4" % (sT, sW))
    a("s_lshl_b32 %s, %s, 11" % (sT, sT))
    a("s_add_u32 %s, %s, %d" % (sT, sT, B_RB))
    a("v_add_u32 v13, %s, v14" % sT)
    a("s_mul_i32 s58, %s, 14" % sTAU)
    a("s_add_u32 s58, s58, %s" % sU)
    a("s_lshl_b32 s59, s58, 7")
    a("s_add_u32 s59, s59, %d" % WS_ST)
    a("s_lshl_b32 s58, s58, 10")
    a("s_add_u32 s58, s58, %d" % WS_H)
    a("s_lshl_b32 s60, %s, 7" % sRB)
    a("s_add_u32 s60, s60, %d" % WS_FA)
    a("s_lshr_b32 s61, %s, 1" % sRB)
    a("s_lshl_b32 s61, s61, 7")
    a("s_and_b32 %s, %s, 1" % (sT, sRB))
    a("s_mul_i32 %s, %s, 28" % (sT, sT))
    a("s_add_u32 s61, s61, %s" % sT)
    a("s_lshl_b32 %s, %s, 2" % (sT, sCB))
    a("s_add_u32 s61, s61, %s" % sT)
    a("s_add_u32 s61, s61, %d" % WS_FB)
    a("v_lshlrev_b32 v11, 3, v3")
    a.wait_tag("g1", lg0=True)
    stamp(a, "B pre-poll")
    poll(a, "s60", 0xff, 0)
    stamp(a, "B go")
    for hh in range(8):
        a("buffer_load_dwordx4 %s, v14, %s, %s offen offset:%d%s" % (vr(OF + 4 * hh), SWS, sT2 if hh < 4 else sT3, (hh & 3) * 1024, SC))
    a("s_barrier")
    for x in wc_read(G1, 17):
        a(x)
    for hh in range(8):
        if hh < 7:
            wc_dma(a, G2[hh:hh + 1], "v16", "g2")
        for t in (2, 3, 0, 1):
            a(mfma(ACC + 4 * t, WOF + 16 * hh + 4 * t, OF + 4 * hh, "0" if (hh == 0 and t >= 2) else None))
    a("ds_write_b128 v12, %s" % vr(ACC + 8))
    a("ds_write_b128 v12, %s offset:1024" % vr(ACC + 12))
    a("s_waitcnt lgkmcnt(0)")
    a("s_barrier")
    a("ds_read_b128 %s, v13" % vr(ACC + 8))
    a("ds_read_b128 %s, v13 offset:1024" % vr(ACC + 12))
    a("v_mov_b32 v8, 0")
    a("v_mov_b32 v9, 0")
    a("v_mov_b32 v6, 0")
    a("v_mov_b32 v7, 0")
    a("v_mov_b32 v10, 0x3f803f80")
    for i in range(8):
        a("v_add_f32 v%d, v%d, v%d" % (ACC + i, ACC + i, ACC + 8 + i))
    HP = 28
    for i in range(4):
        a("v_cvt_pk_bf16_f32 v%d, v%d, v%d" % (HP + i, ACC + 2 * i, ACC + 2 * i + 1))
    a("buffer_store_dwordx4 %s, v14, %s, s58 offen%s" % (vr(HP), SWS, SC))
    for i in range(4):
        a("v_dot2c_f32_bf16 v%d, v%d, v10" % (8 if i & 1 else 6, HP + i))
        a("v_dot2c_f32_bf16 v%d, v%d, v%d" % (9 if i & 1 else 7, HP + i, HP + i))
    a("v_add_f32 v8, v8, v6")
    a("v_add_f32 v9, v9, v7")
    xg_reduce_multi(a, "v_add_f32", ["v8", "v9"], ["v6", "v7"])
    a("s_mov_b64 exec, 0xffff")
    a("buffer_store_dwordx2 v[8:9], v11, %s, s59 offen%s" % (SWS, SC), tag="hst")
    a("s_mov_b64 exec, -1")
    stamp(a, "B h stored")


def phase_C(a):
    a("; ---------------- B->C ----------------")
    wc_dma(a, G3[:4], "v16", "g3")
    a.wait_tag("hst")
    a("s_barrier")
    publish(a, "s61")
    stamp(a, "B flag")
    wc_dma(a, G3[4:], "v16", "g3")
    for x in wc_read(G2, 17):
        a(x)
    ONES, CSG, CSU = 20, 24, 28
    for i in range(4):
        a("v_mov_b32 v%d, 0x3f803f80" % (ONES + i))
    for u in range(14):
        a(mfma(CSG, WGF + 4 * u, ONES, "0" if u == 0 else None))
    a("s_mul_i32 %s, %s, 114688" % (sT2, sRQ))
    a("s_add_u32 %s, %s, %d" % (sT2, sT2, WS_H))
    a("s_mul_i32 s62, %s, 3584" % sW)
    a("v_add_u32 v12, s62, v14")
    a("s_lshl_b32 %s, %s, 3" % (sT3, sRQ))
    a("s_add_u32 %s, %s, %s" % (sT3, sT3, sW))
    a("s_mul_i32 %s, %s, 1792" % (sT3, sT3))
    a("s_add_u32 %s, %s, %d" % (sT3, sT3, WS_ST))
    a("v_lshlrev_b32 v9, 3, v1")
    a("v_mov_b32 v38, 0")
    a("v_mov_b32 v39, 0")
    a("v_and_b32 v8, 1, v2")
    a("v_mul_u32_u24 v8, 57344, v8")
    a("v_lshrrev_b32 v10, 1, v2")
    a("s_and_b32 %s, %s, 1" % (sT, sW))
    a("s_lshl_b32 %s, %s, 1" % (sT, sT))
    a("v_add_u32 v10, %s, v10" % sT)
    a("v_lshl_add_u32 v8, v10, 8, v8")
    a("v_lshl_add_u32 v13, v3, 4, v8")
    a("s_mul_i32 s58, %s, 448" % sRQ)
    a("s_lshl_b32 %s, %s, 2" % (sT, sFS))
    a("s_add_u32 s58, s58, %s" % sT)
    a("s_lshr_b32 %s, %s, 1" % (sT, sW))
    a("s_add_u32 s58, s58, %s" % sT)
    a("s_lshl_b32 s58, s58, 10")
    a("s_add_u32 s58, s58, %d" % WS_HH)
    a("s_mov_b32 s59, 0x%x" % f2u(-LOG2E))
    a("s_lshl_b32 s60, %s, 7" % sRQ)
    a("s_add_u32 s60, s60, %d" % WS_FB)
    a("s_lshl_b32 s61, %s, 8" % sRQ)
    a("s_lshl_b32 %s, %s, 2" % (sT, sFS))
    a("s_add_u32 s61, s61, %s" % sT)
    a("s_add_u32 s61, s61, %d" % WS_FC)
    a.wait_tag("g3", lg0=True)
    a("s_barrier")
    for x in wc_read(G3, 17):
        a(x)
    a("s_waitcnt lgkmcnt(0)")
    stamp(a, "C pre-poll")
    poll(a, "s60", 0x3fff, 0)
    stamp(a, "C go")
    def h_groups(tp):
        tg = ("h", tp)
        gs = []
        for i in range(4):
            g = []
            if i == 0:
                g.append(("s_add_u32 s64, %s, %d" % (sT2, tp * 28672), None))
            g.append(("s_add_u32 m0, s62, %d" % (tp * 28672), None))
            if i == 3:
                g.append(("s_mov_b32 exec_hi, 0", None))
            g.append(("buffer_load_dwordx4 v12, %s, s64 offen offset:%d%s lds" % (SWS, i * 1024, SC), tg))
            if i == 3:
                g.append(("s_mov_b64 exec, -1", None))
            gs.append(g)
        return gs

    def emit_group(g):
        for (x, tg) in g:
            a(x, tag=tg)

    for g in h_groups(0):
        emit_group(g)
    a("s_mov_b32 exec_hi, 0")
    a("buffer_load_dwordx2 v[38:39], v9, %s, %s offen offset:1536%s" % (SWS, sT3, SC))
    a("s_mov_b64 exec, -1")
    for i in range(3):
        a("buffer_load_dwordx2 v[%d:%d], v9, %s, %s offen offset:%d%s" % (32 + 2 * i, 33 + 2 * i, SWS, sT3, 512 * i, SC))
    a("s_barrier")
    for g in h_groups(1):
        emit_group(g)
    hpend = h_groups(2) + h_groups(3)
    for u in range(14):
        a(mfma(CSU, WUF + 4 * u, ONES, "0" if u == 0 else None))
    a("v_add_u32 v16, 57344, v14")
    a("v_lshlrev_b32 v19, 4, v3")
    a("v_add_u32 v19, %d, v19" % C_ST)
    a("s_lshl_b32 %s, %s, 8" % (sT, sW))
    a("v_add_u32 v9, %s, v19" % sT)
    for (d, x) in ((32, 34), (33, 35), (36, 38), (37, 39), (32, 36), (33, 37)):
        a("v_add_f32 v%d, v%d, v%d" % (d, d, x))
    xg_reduce_multi(a, "v_add_f32", ["v32", "v33"], ["v10", "v11"])
    a("s_mov_b32 %s, 0x%x" % (sT, f2u(1.0 / 448)))
    a("v_mov_b32 v10, 0x%x" % f2u(1e-5))
    a("v_mul_f32 v32, -%s, v32" % sT)
    a("v_fma_f32 v33, v33, %s, v10" % sT)
    a("v_fma_f32 v33, -v32, v32, v33")
    a("v_max_f32 v33, v33, v10")
    a("v_sqrt_f32 v34, v33")
    a("v_rsq_f32 v33, v33")
    a("v_mul_f32 v33, s59, v33")
    a("ds_write_b128 v9, v[32:35]")
    AF, NR = 192, 8
    ACCS = [40, 56]
    STS = [32, 72]
    PKD = [224, 228]

    def rd_list(tp):
        rd = []
        for u in range(14):
            for t in range(2):
                off = (tp * 2 + t) * 14336 + u * 1024
                k = tp * 28 + u * 2 + t
                rd.append("ds_read_b128 %s, v%d offset:%d" % (vr(AF + 4 * (k % NR)), 14 if off < 57344 else 16, off % 57344))
        return rd

    def epi(tp):
        acc, st, pk = ACCS[tp & 1], STS[tp & 1], PKD[tp & 1]
        o = []
        for t in range(2):
            g, u_, s = acc + 8 * t, acc + 8 * t + 4, st + 4 * t
            for rr in range(4):
                o.append("v_fmac_f32 v%d, v%d, v%d" % (g + rr, s, CSG + rr))
            for rr in range(4):
                o.append("v_mul_f32 v%d, v%d, v%d" % (g + rr, s + 1, g + rr))
            for rr in range(4):
                o.append("v_exp_f32 v%d, v%d" % (g + rr, g + rr))
            for rr in range(4):
                o.append("v_fmac_f32 v%d, v%d, v%d" % (u_ + rr, s, CSU + rr))
            for rr in range(4):
                o.append("v_fma_f32 v%d, v%d, v%d, v%d" % (g + rr, g + rr, s + 2, s + 2))
            for rr in range(4):
                o.append("v_rcp_f32 v%d, v%d" % (g + rr, g + rr))
            for rr in range(4):
                o.append("v_mul_f32 v%d, v%d, v%d" % (g + rr, g + rr, u_ + rr))
            o.append("v_cvt_pk_bf16_f32 v%d, v%d, v%d" % (pk + 2 * t, g, g + 1))
            o.append("v_cvt_pk_bf16_f32 v%d, v%d, v%d" % (pk + 2 * t + 1, g + 2, g + 3))
        o.append("v_permlane16_swap_b32 v%d, v%d" % (pk, pk + 2))
        o.append("v_permlane16_swap_b32 v%d, v%d" % (pk + 1, pk + 3))
        o.append(("buffer_store_dwordx4 %s, v13, %s, s58 offen%s" % (vr(pk), SWS, SC), ("hh", tp)))
        o.append("s_add_u32 s58, s58, %d" % (2 * 57344))
        return o

    def emit(x):
        if isinstance(x, tuple):
            a(x[0], tag=x[1])
        else:
            a(x)

    a.wait_tag(("h", 0), lg0=True)
    a("s_barrier")
    stamp(a, "C h0 landed")
    allrd = [x for tp in range(4) for x in rd_list(tp)]
    nxt = 0
    LA = NR - 2
    for tp in range(4):
        acc = ACCS[tp & 1]
        ep = epi(tp - 1) if tp else []
        a("ds_read_b128 %s, v19 offset:%d" % (vr(STS[tp & 1]), tp * 512))
        a("ds_read_b128 %s, v19 offset:%d" % (vr(STS[tp & 1] + 4), tp * 512 + 256))
        for u in range(14):
            for t in range(2):
                k = tp * 28 + u * 2 + t
                if k + LA == 28:
                    a.wait_tag(("h", 1))
                    a("s_barrier")
                if k + LA == 56:
                    a.wait_tag(("h", 3))
                    a("s_barrier")
                if hpend and k % 3 == 1:
                    emit_group(hpend.pop(0))
                while nxt < len(allrd) and nxt <= k + LA - 1:
                    a(allrd[nxt])
                    nxt += 1
                f = AF + 4 * (k % NR)
                z = "0" if u == 0 else None
                a(mfma(acc + 8 * t, WGF + 4 * u, f, z))
                if ep and u >= 1:
                    emit(ep.pop(0))
                a(mfma(acc + 8 * t + 4, WUF + 4 * u, f, z))
                if ep and u >= 1:
                    emit(ep.pop(0))
                    if ep and len(ep) > 2 * (27 - 2 * u - t):
                        emit(ep.pop(0))
        for x in ep:
            emit(x)
    stamp(a, "C mfma done")
    return epi, emit


def phase_D(a, epi, emit):
    a("; ---------------- C->D ----------------")
    a("v_lshrrev_b32 v6, 3, v1")
    a("v_and_b32 v7, 7, v1")
    a("v_and_b32 v8, 6, v6")
    a("v_xor_b32 v8, v8, v7")
    a("v_and_b32 v9, 3, v6")
    a("v_lshrrev_b32 v10, 2, v6")
    a("v_lshl_add_u32 v9, v10, 3, v9")
    a("s_mul_i32 %s, %s, 224" % (sT, sW))
    a("v_add_u32 v9, %s, v9" % sT)
    a("v_mul_u32_u24 v9, 896, v9")
    a("v_lshl_add_u32 v9, v8, 4, v9")
    a("s_lshl_b32 %s, %s, 7" % (sT, sCB))
    a("v_add_u32 v12, %s, v9" % sT)
    a("s_mul_i32 s62, %s, 20480" % sW)
    a("s_barrier")

    def wd_dma(u0, u1, base):
        for u in range(u0, u1):
            for i4 in range(4):
                i = 4 * u + i4
                a("s_add_u32 m0, s62, %d" % (base + (i - 4 * u0) * 1024))
                a("s_mov_b32 %s, %d" % (sT, (16 * (i >> 1) + 4 * (i & 1)) * 896))
                a("buffer_load_dwordx4 v12, %s, %s offen lds" % (SWD, sT), tag=("wd", u))

    wd_dma(0, 1, 0)
    for x in epi(3):
        emit(x)
    stamp(a, "C last store")
    wd_dma(1, 2, 4096)
    a.wait_tag(("hh", 3))
    a("s_barrier")
    L = a.label("pubc")
    raw(a, "s_cmp_lg_u32 %s, 0" % sW)
    raw(a, "s_cbranch_scc1 %s" % L)
    raw(a, "s_mov_b64 exec, 15")
    raw(a, "v_mov_b32 v10, %s" % sNONCE)
    raw(a, "v_lshlrev_b32 v11, 6, v1")
    raw(a, "buffer_store_dword v10, v11, %s, s61 offen sc1" % SWS)
    raw(a, "s_mov_b64 exec, -1")
    raw(a, "%s:" % L)
    stamp(a, "C flag")
    wd_dma(2, 5, 8192)
    a("v_and_b32 v8, 1, v2")
    a("v_lshl_add_u32 v8, v8, 2, v4")
    a("v_and_b32 v9, 6, v8")
    a("v_lshrrev_b32 v10, 1, v5")
    a("v_xor_b32 v9, v9, v10")
    a("v_lshrrev_b32 v10, 1, v2")
    a("v_lshl_add_u32 v8, v10, 4, v8")
    a("v_lshlrev_b32 v8, 7, v8")
    a("v_lshl_add_u32 v8, v9, 4, v8")
    a("v_and_b32 v9, 1, v5")
    a("v_lshl_add_u32 v8, v9, 3, v8")
    a("v_add_u32 v240, s62, v8")
    for t in range(1, 4):
        a("v_xor_b32 v%d, %d, v240" % (240 + t, 32 * t))
    WF = 16

    def wd_read(u, base):
        a.wait_tag(("wd", u))
        for t in range(4):
            for hf in range(2):
                a("ds_read_b64_tr_b16 %s, v%d offset:%d" % (vr(WF + 16 * u + 4 * t + 2 * hf, 2), 240 + t, base + hf * 1024))

    wd_read(0, 0)
    wd_read(1, 4096)
    a("s_waitcnt lgkmcnt(0)")
    wd_dma(5, 7, 0)
    a("s_lshr_b32 %s, %s, 1" % (sT, sRB))
    a("s_lshl_b32 s60, %s, 8" % sT)
    a("s_add_u32 s60, s60, %d" % WS_FC)
    a("s_lshl_b32 %s, %s, 3" % (sT, sT))
    a("s_and_b32 %s, %s, 1" % (sT2, sRB))
    a("s_add_u32 s63, %s, %s" % (sT, sT2))
    a("s_mul_i32 %s, s63, 56" % sT)
    a("s_mul_i32 %s, %s, 7" % (sT2, sW))
    a("s_add_u32 %s, %s, %s" % (sT, sT, sT2))
    a("s_lshl_b32 %s, %s, 10" % (sT, sT))
    a("s_add_u32 s58, %s, %d" % (sT, WS_HH))
    a("v_add_u32 v13, 4096, v14")
    for u in range(2, 5):
        wd_read(u, 8192 + (u - 2) * 4096)
    stamp(a, "D pre-poll")
    poll(a, "s60", 0x3fff3fff, 0x3fff3fff)
    stamp(a, "D go")
    AF, ACC = 128, 240
    DLA = 8

    def hh_load(k):
        rt, i = k // 7, k % 7
        a("buffer_load_dwordx4 %s, v%d, %s, s58 offen offset:%d%s" % (vr(AF + 4 * k), 14 if i < 4 else 13, SWS, (i & 3) * 1024, SC))
        if i == 6:
            a("s_add_u32 s58, s58, %d" % (2 * 57344))

    for k in range(DLA):
        hh_load(k)
        if k == DLA // 2 - 1:
            a("s_barrier")
    wd_read(5, 0)
    wd_read(6, 4096)
    a("v_lshrrev_b32 v6, 1, v2")
    a("v_lshl_add_u32 v6, v6, 1, v3")
    a("s_lshl_b32 %s, %s, 12" % (sT, sW))
    a("v_lshl_add_u32 v7, v2, 8, %s" % sT)
    for t in range(4):
        a("v_add_u32 v12, %d, v6" % (4 * t))
        a("v_and_b32 v12, 15, v12")
        a("v_lshl_add_u32 v%d, v12, 4, v7" % (8 + t))
    a("s_waitcnt lgkmcnt(0)")
    a("s_barrier")
    for rt in range(4):
        for i in range(7):
            for t in range(4):
                a(mfma(ACC + 4 * t, WF + 16 * i + 4 * t, AF + 28 * rt + 4 * i, "0" if i == 0 else None))
            if rt * 7 + i + DLA < 28:
                hh_load(rt * 7 + i + DLA)
        if rt == 2:
            a("v_lshrrev_b32 v6, 3, v1")
            a("v_and_b32 v7, 7, v1")
            a("s_lshr_b32 %s, %s, 1" % (sT, sW))
            a("s_lshl_b32 %s, %s, 1" % (sT, sT))
            a("s_add_u32 s63, s63, %s" % sT)
            a("s_and_b32 %s, %s, 1" % (sT2, sW))
            a("s_lshl_b32 %s, %s, 3" % (sT2, sT2))
            a("v_add_u32 v6, %s, v6" % sT2)
            a("v_lshlrev_b32 v12, 8, v7")
            a("v_lshl_add_u32 v12, v6, 4, v12")
            a("s_mul_i32 %s, s63, 14" % sT)
            a("s_lshl_b32 %s, %s, 1" % (sT2, sCB))
            a("s_add_u32 %s, %s, %s" % (sT, sT, sT2))
            a("s_lshl_b32 %s, %s, 10" % (sT, sT))
            a("s_add_u32 %s, %s, %d" % (sT, sT, WS_H))
            a("buffer_load_dwordx4 %s, v12, %s, %s offen%s" % (vr(128), SWS, sT, SC))
        if rt == 2:
            for t in range(4):
                a("v_add_u32 v%d, 65536, v%d" % (8 + t, 8 + t))
        for t in range(4):
            a("ds_write_b128 v%d, %s offset:%d" % (8 + t, vr(ACC + 4 * t), (rt & 1) * 32768 + t * 1024))
    stamp(a, "D mfma done")
    a("v_lshl_add_u32 v10, v7, 1, v6")
    a("v_and_b32 v10, 15, v10")
    a("v_lshlrev_b32 v10, 4, v10")
    a("v_lshl_add_u32 v10, v7, 9, v10")
    a("s_lshr_b32 %s, %s, 1" % (sT, sW))
    a("s_lshl_b32 %s, %s, 15" % (sT, sT))
    a("v_add_u32 v10, %s, v10" % sT)
    a("s_lshr_b32 %s, s63, 1" % sT)
    a("s_lshl_b32 %s, %s, 5" % (sT, sT))
    a("s_and_b32 %s, s63, 1" % sT2)
    a("s_add_u32 %s, %s, %s" % (sT, sT, sT2))
    a("v_lshl_add_u32 v11, v6, 1, %s" % sT)
    a("v_mul_u32_u24 v11, 896, v11")
    a("v_lshl_add_u32 v11, v7, 4, v11")
    a("s_lshl_b32 %s, %s, 7" % (sT, sCB))
    S = 132
    for i in range(4):
        a("v_lshlrev_b32 v%d, 16, v%d" % (S + 2 * i, 128 + i))
        a("v_and_b32 v%d, 0xffff0000, v%d" % (S + 2 * i + 1, 128 + i))
    a("s_waitcnt lgkmcnt(0)")
    a("s_barrier")
    RD = 16
    for p in range(8):
        a("ds_read_b128 %s, v10 offset:%d" % (vr(RD + 8 * p), p * 4096))
        a("ds_read_b128 %s, v10 offset:%d" % (vr(RD + 8 * p + 4), p * 4096 + 256))
    for p in range(8):
        for i in range(8):
            a("v_add_f32 v%d, v%d, v%d" % (S + i, S + i, RD + 8 * p + i))
    for i in range(4):
        a("v_cvt_pk_bf16_f32 v%d, v%d, v%d" % (128 + i, S + 2 * i, S + 2 * i + 1))
    for o in OPT:
        if o.startswith("thr"):
            a("s_memrealtime s[100:101]")
            a("s_waitcnt lgkmcnt(0)")
            a("s_sub_u32 s100, s100, %s" % sNONCE)
            a("s_cmp_lt_u32 s100, %d" % (int(o[3:]) * 100))
            a("s_cbranch_scc1 Lthr")
            a("v_mov_b32 v128, 0x47004700")
            a("Lthr:")
    a("buffer_store_dwordx4 %s, v11, %s, %s offen" % (vr(128), SOUT, sT))
    stamp(a, "D out stored")


HEADER = open("cdna_kernels/%s.s.ref" % NAME).read().split("; Override launch")[0]


def build():
    n = NAME + "_kernel"
    out = HEADER
    out += "; @launch grid=(256,1,1) block=(512,1,1) lds=163840\n"
    out += '.amdgcn_target "amdgcn-amd-amdhsa--gfx950"\n.text\n'
    a = Asm()
    prologue(a)
    phase_A(a)
    phase_B(a)
    epi, emit = phase_C(a)
    phase_D(a, epi, emit)
    a("Lfin:")
    stamp_flush(a)
    a("Lend:")
    a("s_endpgm")
    a("Lcode_end:")
    body = a.render()
    out += ".globl %s\n.p2align 8\n.type %s,@function\n%s:\nLcode_begin:\n%s" % (n, n, n, body)

    out += '.section .rodata,"a"\n.p2align 6\n'
    out += """.amdhsa_kernel %s
  .amdhsa_next_free_vgpr 256
  .amdhsa_next_free_sgpr 102
  .amdhsa_accum_offset 256
  .amdhsa_group_segment_fixed_size 0
  .amdhsa_kernarg_size 80
  .amdhsa_user_sgpr_count 2
  .amdhsa_user_sgpr_kernarg_segment_ptr 1
  .amdhsa_system_sgpr_workgroup_id_x 1
.end_amdhsa_kernel
""" % n
    return out


if __name__ == "__main__":
    dst = sys.argv[1] if len(sys.argv) > 1 else "cdna_kernels/%s.s" % NAME
    STAMPS = "stamps" in sys.argv
    OPT = set(sys.argv[2:])
    txt = build()
    import subprocess, re
    open("_sz.s", "w").write(txt.replace("CODE_BYTES", "0x12345"))
    subprocess.check_call(["clang", "-x", "assembler", "-target", "amdgcn-amd-amdhsa", "-mcpu=gfx950", "-c", "_sz.s", "-o", "_sz.o"])
    sym = subprocess.check_output(["llvm-objdump", "-t", "_sz.o"]).decode()
    end = int(re.search(r"([0-9a-f]+) .*Lcode_end", sym).group(1), 16)
    print("code bytes", end)
    open(dst, "w").write(txt.replace("CODE_BYTES", str((end - 64) & ~3)))
    print("wrote", dst)
```

```python
import sys, struct
sys.path.insert(0, "dev")
from asmlib import Asm, Ins

NAME = "sequential_preLN__sliding_local_dilated__glu_gated_glu__prompt"

WS_O = 0
WS_H = 2 << 20
WS_ST = 4 << 20
WS_HH = 8 << 20
WS_FA = 16 << 20
WS_FB = WS_FA + 8192
WS_FC = WS_FA + 16384
WS_TS = 20 << 20
WS_SIZE = 32 << 20

SX, SWQKV, SWO, SWG, SWU, SWD, SOUT, SWS, SDBG = [("s[%d:%d]" % (b, b + 3)) for b in range(8, 44, 4)]
sW, sXC, sJ, sNONCE = "s44", "s45", "s46", "s47"
sT, sT2, sT3 = "s55", "s56", "s57"
sW1024 = "s53"
sRB, sCB, sRQ, sFS = "s84", "s85", "s86", "s87"
SC = " sc1"
LOG2E = 1.4426950408889634
STAMPS = False
OPT = set()
NSTAMP = [0]
ASPACE = 3


def f2u(x):
    return struct.unpack("<I", struct.pack("<f", x))[0]


def vr(b, n=4):
    return "v[%d:%d]" % (b, b + n - 1)


def mfma(acc, A, B, C=None):
    return "v_mfma_f32_16x16x32_bf16 %s, %s, %s, %s" % (vr(acc), vr(A), vr(B), vr(acc) if C is None else C)


def raw(a, text):
    for line in text.split("\n"):
        line = line.strip()
        if not line:
            continue
        if line.endswith(":"):
            a.items.append(("l", line))
        else:
            a.items.append(("i", Ins(line)))


def stamp(a, name):
    if STAMPS:
        i = NSTAMP[0]
        NSTAMP[0] += 1
        a("; STAMP %d %s" % (i, name))
        a("s_memrealtime s[100:101]")
        a("s_waitcnt lgkmcnt(0)")
        a("v_writelane_b32 v15, s100, %d" % i)


def stamp_flush(a):
    if STAMPS:
        a("s_lshl_b32 s3, s2, 3")
        a("s_add_u32 s3, s3, %s" % sW)
        a("s_lshl_b32 s3, s3, 8")
        a("s_add_u32 s3, s3, %d" % WS_TS)
        a("v_lshlrev_b32 v7, 2, v1")
        a("buffer_store_dword v15, v7, %s, s3 offen" % SWS)
        if "dbgout" in OPT:
            a("s_cmp_lg_u32 s2, 100")
            a("s_cbranch_scc1 Lend")
            a("s_cmp_lg_u32 %s, 3" % sW)
            a("s_cbranch_scc1 Lend")
            sel = [0, 2, 3, 5, 6, 8, 9, 10, 12, 13, 14, 16, 18, 19, 20]
            a("v_mov_b32 v7, 0")
            for i, st in enumerate(sel):
                a("v_readlane_b32 s3, v15, %d" % st)
                a("s_sub_u32 s3, s3, %s" % sNONCE)
                a("v_mov_b32 v6, s3")
                a("buffer_store_dword v6, v7, %s, 0 offen offset:%d" % (SDBG, 4 + 4 * i))


def xg_reduce_multi(a, op, xs, ts):
    for step in ("v_permlane32_swap_b32", "v_permlane16_swap_b32"):
        for x, t in zip(xs, ts):
            a("v_mov_b32 %s, %s" % (t, x))
        for x, t in zip(xs, ts):
            a("%s %s, %s" % (step, t, x))
        for x, t in zip(xs, ts):
            a("%s %s, %s, %s" % (op, x, x, t))


def publish(a, soff):
    L = a.label("pub")
    raw(a, "s_cmp_lg_u32 %s, 0" % sW)
    raw(a, "s_cbranch_scc1 %s" % L)
    raw(a, "s_mov_b64 exec, 1")
    raw(a, "v_mov_b32 v6, %s" % sNONCE)
    raw(a, "v_mov_b32 v7, 0")
    raw(a, "buffer_store_dword v6, v7, %s, %s offen sc1" % (SWS, soff))
    raw(a, "s_mov_b64 exec, -1")
    raw(a, "%s:" % L)


def poll(a, soff, mask_lo, mask_hi):
    L, Lp, Ld = a.label("skip"), a.label("poll"), a.label("done")
    raw(a, "s_cmp_lg_u32 %s, 0" % sW)
    raw(a, "s_cbranch_scc1 %s" % L)
    raw(a, "v_lshlrev_b32 v7, 2, v1")
    raw(a, "s_mov_b32 exec_lo, 0x%x" % mask_lo)
    raw(a, "s_mov_b32 exec_hi, 0x%x" % mask_hi)
    raw(a, "s_mov_b32 s3, 20000")
    raw(a, "%s:" % Lp)
    raw(a, "buffer_load_dword v6, v7, %s, %s offen sc1" % (SWS, soff))
    raw(a, "s_waitcnt vmcnt(0)")
    raw(a, "v_cmp_ne_u32 vcc, %s, v6" % sNONCE)
    raw(a, "s_sub_u32 s3, s3, 1")
    raw(a, "s_cbranch_scc1 %s" % Ld)
    raw(a, "s_nop 1")
    raw(a, "s_cmp_lg_u64 vcc, 0")
    raw(a, "s_cbranch_scc1 %s" % Lp)
    raw(a, "%s:" % Ld)
    raw(a, "s_mov_b64 exec, -1")
    raw(a, "%s:" % L)
    a("s_barrier")


def prologue(a):
    a("s_load_dwordx16 s[64:79], s[0:1], 0")
    a("s_load_dwordx4 s[80:83], s[0:1], 64")
    a("s_memrealtime s[4:5]")
    a("s_cmp_ge_u32 s2, 256")
    a("s_cbranch_scc1 Lend")
    a("s_getpc_b64 s[6:7]")
    a("v_and_b32 v1, 63, v0")
    a("v_lshrrev_b32 v6, 6, v0")
    a("v_lshrrev_b32 v2, 4, v1")
    a("v_readfirstlane_b32 %s, v6" % sW)
    a("v_and_b32 v3, 15, v0")
    a("v_bfe_u32 v4, v0, 2, 2")
    a("v_and_b32 v5, 3, v0")
    if STAMPS:
        a("v_mov_b32 v15, 0")
    a("s_and_b32 %s, s2, 7" % sXC)
    a("s_lshr_b32 %s, s2, 3" % sJ)
    a("v_lshlrev_b32 v6, 7, v0")
    a("v_min_u32 v6, CODE_BYTES, v6")
    a("s_cmp_gt_u32 %s, 3" % sW)
    a("s_cbranch_scc1 Lnopf")
    raw(a, "global_load_dword v7, v6, s[6:7]")
    a("Lnopf:")
    sizes = {8: 2048 * 896, 12: 448 * 2688, 16: 448 * 896, 20: 448 * 3584, 24: 448 * 3584,
             28: 1792 * 896, 32: 2048 * 896, 36: WS_SIZE, 40: 256}
    for b, sz in sizes.items():
        a("s_mov_b32 s%d, %d" % (b + 2, sz))
        a("s_mov_b32 s%d, 0x00020000" % (b + 3))
    a("s_lshl_b32 %s, %s, 10" % (sW1024, sW))


def prologue2(a):
    a("s_waitcnt lgkmcnt(0)")
    src = {8: 64, 12: 66, 16: 68, 20: 72, 24: 74, 28: 76, 32: 78, 36: 82, 40: 80}
    for b, s in src.items():
        a("s_mov_b64 s[%d:%d], s[%d:%d]" % (b, b + 1, s, s + 1))


def nonce_publish(a):
    a("s_or_b32 s3, s2, %s" % sW)
    a("s_cmp_lg_u32 s3, 0")
    a("s_cbranch_scc1 Lnononce")
    raw(a, "s_or_b32 s3, s4, 1")
    raw(a, "v_mov_b32 v8, s3")
    raw(a, "v_mov_b32 v9, 0")
    raw(a, "s_mov_b64 exec, 1")
    raw(a, "buffer_store_dword v8, v9, %s, 0 offen sc1" % SDBG)
    raw(a, "s_mov_b64 exec, -1")
    a("Lnononce:")


def nonce_fetch(a, vN):
    L, Lp = a.label("nskip"), a.label("npoll")
    a("v_readfirstlane_b32 %s, %s" % (sNONCE, vN))
    raw(a, "s_nop 1")
    raw(a, "s_cmp_lg_u32 %s, 0" % sNONCE)
    raw(a, "s_cbranch_scc1 %s" % L)
    raw(a, "s_mov_b32 s3, 20000")
    raw(a, "v_mov_b32 v7, 0")
    raw(a, "%s:" % Lp)
    raw(a, "buffer_load_dword v6, v7, %s, 0 offen sc1" % SDBG)
    raw(a, "s_waitcnt vmcnt(0)")
    raw(a, "v_readfirstlane_b32 %s, v6" % sNONCE)
    raw(a, "s_sub_u32 s3, s3, 1")
    raw(a, "s_cbranch_scc1 %s" % L)
    raw(a, "s_nop 1")
    raw(a, "s_cmp_eq_u32 %s, 0" % sNONCE)
    raw(a, "s_cbranch_scc1 %s" % Lp)
    raw(a, "%s:" % L)
    raw(a, "s_nop 3")


def touch(a, jobs):
    Lend = a.label("tend")
    for (w, srd, n) in jobs:
        L = a.label("tn")
        raw(a, "s_cmp_lg_u32 %s, %d" % (sW, w))
        raw(a, "s_cbranch_scc1 %s" % L)
        raw(a, "s_mul_i32 s3, s2, %d" % (n * 128))
        raw(a, "v_min_u32 v6, %d, v1" % (n - 1))
        raw(a, "v_lshlrev_b32 v6, 7, v6")
        raw(a, "buffer_load_dword v7, v6, %s, s3 offen" % srd)
        raw(a, "s_branch %s" % Lend)
        raw(a, "%s:" % L)
    raw(a, "%s:" % Lend)


A_SLOT = 34816
A_XOFF = 24576
A_EX = 4 * A_SLOT
A_CS = A_EX + 20480
R0, R1, R2 = 0, 57344, 139264
B_RB = R2
C_ST = 114688

vWO_DMA, vWC_DMA, vWC_TR = "v176", "v177", 178
WGF, WUF = 80, 136
WOF = 128


def roles_BCD(a):
    a("s_mul_i32 %s, %s, 37" % (sRB, sJ))
    a("s_lshr_b32 %s, %s, 8" % (sRB, sRB))
    a("s_mul_i32 %s, %s, 7" % (sCB, sRB))
    a("s_sub_u32 %s, %s, %s" % (sCB, sJ, sCB))
    a("s_lshr_b32 %s, %s, 1" % (sT, sXC))
    a("s_lshl_b32 %s, %s, 2" % (sT, sT))
    a("s_add_u32 %s, %s, %s" % (sRQ, sRB, sT))
    a("s_and_b32 %s, %s, 1" % (sT, sXC))
    a("s_mul_i32 %s, %s, 7" % (sT, sT))
    a("s_add_u32 %s, %s, %s" % (sFS, sCB, sT))
    a("s_lshl_b32 %s, %s, 2" % (sT, sXC))
    a("s_add_u32 %s, %s, %s" % (sRB, sRB, sT))


def wo_dma(a, i0, i1, vaddr):
    for i in range(i0, i1):
        a("s_add_u32 m0, %s, %d" % (sW1024, R0 + i * 8192))
        a("s_mov_b32 %s, %d" % (sT, i * 64 * 896))
        a("buffer_load_dwordx4 %s, %s, %s offen lds" % (vaddr, SWO, sT), tag="wo")


def wc_dma(a, slabs, vaddr, tag):
    for (s, base) in slabs:
        a("s_add_u32 m0, %s, %d" % (sW1024, base))
        a("s_mov_b32 %s, %d" % (sT, (s % 14) * 114688))
        a("buffer_load_dwordx4 %s, %s, %s offen lds" % (vaddr, SWG if s < 14 else SWU, sT), tag=tag)


def wc_read(slabs, vtr):
    out = []
    for (s, base) in slabs:
        for hf in range(2):
            out.append("ds_read_b64_tr_b16 %s, v%d offset:%d" % (vr(WGF + 4 * s + 2 * hf, 2), vtr + base // 57344, base % 57344 + hf * 1024))
    return out


def phase_A(a):
    sTB, sHP, sT0, sTI, sHD = "s48", "s49", "s50", "s51", "s52"
    sW256 = "s54"
    sHM = "s[58:59]"
    a("; ---------------- phase A ----------------")
    a("s_lshl_b32 %s, %s, 2" % (sTB, sXC))
    a("s_lshr_b32 %s, %s, 3" % (sT, sJ))
    a("s_add_u32 %s, %s, %s" % (sTB, sTB, sT))
    a("s_and_b32 %s, %s, 7" % (sHP, sJ))
    a("s_lshl_b32 %s, %s, 6" % (sT0, sTB))
    a("s_and_b32 %s, %s, 3" % (sTI, sW))
    a("s_lshr_b32 %s, %s, 2" % (sHD, sW))
    a("s_lshl_b32 %s, %s, 8" % (sW256, sW))
    vAX, vAH, vAW = "v16", "v17", "v18"
    a("v_lshrrev_b32 v12, 3, v1")
    a("v_and_b32 v13, 7, v1")
    a("s_and_b32 %s, %s, 1" % (sT, sW))
    a("s_lshl_b32 %s, %s, 2" % (sT, sT))
    a("v_and_b32 v8, 2, v12")
    a("v_or_b32 v8, %s, v8" % sT)
    a("v_xor_b32 v8, v8, v13")
    a("v_min_u32 v8, 6, v8")
    a("s_lshl_b32 %s, %s, 3" % (sT, sW))
    a("v_add_u32 v9, %s, v12" % sT)
    a("v_mul_u32_u24 v9, 2688, v9")
    a("s_mul_i32 %s, %s, 112" % (sT, sHP))
    a("v_lshl_add_u32 v9, v8, 4, v9")
    a("v_add_u32 %s, %s, v9" % (vAW, sT))
    a("s_lshl_b32 %s, %s, 5" % (sT, sHD))
    a("s_add_u32 %s, %s, %s" % (sT, sT, sT0))
    a("s_bfe_u32 %s, %s, 0x10001" % (sT2, sW))
    a("s_add_u32 %s, %s, %s" % (sT, sT, sT2))
    a("s_and_b32 %s, %s, 1" % (sT2, sW))
    a("s_lshl_b32 %s, %s, 4" % (sT2, sT2))
    a("s_add_u32 %s, %s, %s" % (sT, sT, sT2))
    a("v_lshl_add_u32 v9, v12, 1, %s" % sT)
    a("v_mul_u32_u24 v9, 896, v9")
    a("s_lshr_b32 %s, %s, 2" % (sT2, sT2))
    a("v_lshrrev_b32 v8, 1, v12")
    a("v_add_u32 v8, %s, v8" % sT2)
    a("v_xor_b32 v8, v8, v13")
    a("v_lshl_add_u32 %s, v8, 4, v9" % vAX)
    a("s_lshl_b32 %s, %s, 2" % (sT, sTI))
    a("s_add_u32 %s, %s, %s" % (sT, sT, sT0))
    a("s_add_u32 %s, %s, %s" % (sT, sT, sHD))
    a("s_sub_u32 %s, %s, 16" % (sT, sT))
    a("v_and_b32 v8, 1, v12")
    a("v_lshl_add_u32 v9, v8, 1, %s" % sT)
    a("v_max_i32 v9, 0, v9")
    a("v_mul_u32_u24 v9, 896, v9")
    a("v_xor_b32 v8, %s, v13" % sW)
    a("v_lshl_add_u32 %s, v8, 4, v9" % vAH)
    a("s_mov_b32 s59, 0")
    a("s_cmp_eq_u32 %s, 0" % sW)
    a("s_mov_b32 s58, 0xffff")
    a("s_cselect_b32 s58, 0xff00, s58")
    prologue2(a)

    def slot(ch):
        return (ch + 1) % 4

    def dma_groups(ch):
        sb = slot(ch) * A_SLOT
        tg = ("A", ch)
        gs = []
        for m in range(3):
            g = [("s_mov_b32 s64, %d" % (ch * 172032), None)] if m == 0 else []
            g += [("s_add_u32 m0, %s, %d" % (sW1024, sb + m * 8192 - m * 896), None),
                  ("buffer_load_dwordx4 %s, %s, s64 offen offset:%d lds" % (vAW, SWQKV, m * 896), tg)]
            gs.append(g)
        gs.append([("s_add_u32 m0, %s, %d" % (sW1024, sb + A_XOFF - ch * 128), None),
                   ("buffer_load_dwordx4 %s, %s, 0 offen offset:%d lds" % (vAX, SX, ch * 128), tg)])
        gs.append([("s_add_u32 m0, %s, %d" % (sW256, sb + A_XOFF + 8192 - ch * 128), None),
                   ("s_mov_b64 exec, %s" % sHM, None),
                   ("buffer_load_dwordx4 %s, %s, 0 offen offset:%d lds" % (vAH, SX, ch * 128), tg),
                   ("s_mov_b64 exec, -1", None)])
        return gs

    def emit_group(g):
        for (x, tg) in g:
            a(x, tag=tg)

    def dma(ch):
        for g in dma_groups(ch):
            emit_group(g)

    stamp(a, "A start")
    dma(0)
    nonce_publish(a)
    if "notouch" not in OPT:
        touch(a, [(0, SWQKV, 37), (1, SX, 56)])
    a("s_barrier")
    dma(1)
    if "notouch" not in OPT:
        touch(a, [(2, SWO, 13), (3, SWG, 49), (4, SWU, 49), (5, SWD, 49)])
    stamp(a, "A dma issued")
    ONES = 20
    for i in range(4):
        a("v_mov_b32 v%d, 0x3f803f80" % (ONES + i))
    a("v_and_b32 v8, 3, v12")
    a("v_mul_u32_u24 v8, %d, v8" % A_SLOT)
    a("v_lshl_add_u32 v8, v13, 4, v8")
    a("ds_write_b128 v8, %s offset:%d" % (vr(ONES), A_XOFF + 8192))
    aX0, aX1, aXH0, aXH1, aW0, aW1, aWH = range(24, 31)
    a("v_bfe_u32 v8, v3, 1, 3")
    a("v_xor_b32 v8, v8, v2")
    a("v_lshlrev_b32 v8, 4, v8")
    a("v_lshl_add_u32 v8, v3, 7, v8")
    a("v_add_u32 v%d, %d, v8" % (aXH0, A_XOFF + 8192))
    a("v_xor_b32 v%d, 64, v%d" % (aXH1, aXH0))
    a("s_lshl_b32 %s, %s, 11" % (sT, sTI))
    a("s_add_u32 %s, %s, %d" % (sT, sT, A_XOFF))
    a("v_add_u32 v%d, %s, v8" % (aX0, sT))
    a("v_xor_b32 v%d, 64, v%d" % (aX1, aX0))
    a("v_and_b32 v8, 2, v4")
    a("v_and_b32 v9, 1, v2")
    a("v_lshl_or_b32 v8, v9, 2, v8")
    a("v_lshlrev_b32 v8, 4, v8")
    a("v_lshl_add_u32 v9, v2, 3, v4")
    a("v_lshlrev_b32 v9, 7, v9")
    a("s_mul_i32 %s, %s, 56" % (sT, sHD))
    a("v_lshl_add_u32 v10, v5, 3, %s" % sT)
    a("v_xor_b32 v11, v10, v8")
    a("v_add_u32 v%d, v11, v9" % aW0)
    a("v_add_u32 v10, 32, v10")
    a("v_xor_b32 v11, v10, v8")
    a("v_add_u32 v%d, v11, v9" % aW1)
    a("s_and_b32 %s, %s, 1" % (sT, sTI))
    a("s_cmp_eq_u32 %s, 1" % sT)
    a("s_cselect_b64 vcc, -1, 0")
    a("s_lshr_b32 %s, %s, 1" % (sT, sTI))
    a("s_add_u32 %s, %s, 1" % (sT, sT))
    a("s_lshl_b32 %s, %s, 13" % (sT, sT))
    a("v_cndmask_b32 v8, v%d, v%d, vcc" % (aW0, aW1))
    a("v_add_u32 v%d, %s, v8" % (aWH, sT))
    for i in range(7):
        a("v_add_u32 v%d, %d, v%d" % (31 + i, 2 * A_SLOT, 24 + i))
    ACC = 40
    aH, cQ0, cQ1, aRS, aGR, aGH = ACC + 24, ACC + 28, ACC + 32, ACC + 36, ACC + 40, ACC + 44
    BP, BC = 88, 92
    a("v_lshlrev_b32 v8, 2, v2")
    a("v_sub_u32 v9, v3, v8")
    a("s_lshl_b32 %s, %s, 2" % (sT, sTB))
    a("s_add_u32 %s, %s, %s" % (sT, sT, sTI))
    a("s_cmp_lt_u32 %s, 2" % sT)
    a("s_cselect_b32 %s, 0x10000, 0" % sT2)
    a("v_mov_b32 v11, 0x%x" % f2u(-1e30))
    for rr in range(4):
        a("v_subrev_u32 v10, %d, v9" % rr)
        a("v_cmp_gt_u32 vcc, 8, v10")
        a("v_cndmask_b32 v%d, v11, 0, vcc" % (BC + rr))
        a("v_add_u32 v10, 16, v10")
        a("v_add_u32 v10, %s, v10" % sT2)
        a("v_cmp_gt_u32 vcc, 8, v10")
        a("v_cndmask_b32 v%d, v11, 0, vcc" % (BP + rr))
    a("v_cmp_eq_u32 s[60:61], 1, v5")
    a("v_cmp_eq_u32 s[62:63], 2, v5")
    a("v_cmp_eq_u32 s[88:89], 3, v5")
    a("v_cmp_eq_u32 s[90:91], v4, v2")
    a("v_cmp_eq_u32 s[92:93], 0, v2")
    a("v_cmp_gt_u32 s[94:95], 3, v2")
    a("s_lshl_b32 %s, %s, 6" % (sT, sW))
    a("s_add_u32 %s, %s, %d" % (sT, sT, A_CS))
    a("v_lshl_add_u32 v168, v2, 4, %s" % sT)
    a("s_lshl_b32 %s, %s, 8" % (sT, sHD))
    a("s_add_u32 %s, %s, %d" % (sT, sT, A_CS))
    a("v_lshl_add_u32 v169, v2, 4, %s" % sT)
    a("s_lshl_b32 %s, %s, 9" % (sT, sW))
    a("s_add_u32 %s, %s, %d" % (sT, sT, A_EX + 4 * 4096))
    a("v_lshl_add_u32 v170, v1, 3, %s" % sT)
    a("s_lshl_b32 %s, %s, 12" % (sT, sTI))
    a("s_lshl_b32 %s, %s, 11" % (sT2, sHD))
    a("s_add_u32 %s, %s, %s" % (sT, sT, sT2))
    a("s_add_u32 %s, %s, %d" % (sT, sT, A_EX))
    a("v_lshl_add_u32 v171, v1, 3, %s" % sT)
    a("v_lshl_add_u32 v9, v2, 2, v4")
    a("v_lshl_add_u32 v10, v5, 4, v9")
    a("v_lshl_add_u32 v172, v10, 3, %s" % sT)
    a("s_sub_u32 %s, %s, 8192" % (sT, sT))
    a("s_add_u32 %s, %s, %d" % (sT2, sT2, A_EX + 4 * 4096))
    a("s_lshl_b32 s97, %s, 3" % sTI)
    a("s_cmp_lt_u32 %s, 2" % sTI)
    a("s_cselect_b32 s96, 7, 15")
    a("s_cselect_b32 s97, s97, 0")
    a("s_cselect_b32 %s, %s, %s" % (sT, sT2, sT))
    a("v_and_b32 v9, s96, v9")
    a("v_add_u32 v9, s97, v9")
    a("v_lshl_add_u32 v10, v5, 4, v9")
    a("v_lshl_add_u32 v173, v10, 3, %s" % sT)
    a("v_and_b32 v9, s96, v3")
    a("v_add_u32 v9, s97, v9")
    a("v_lshl_add_u32 v10, v2, 4, v9")
    a("v_lshl_add_u32 v174, v10, 3, %s" % sT)
    a("s_lshl_b32 %s, %s, 2" % (sT, sTB))
    a("s_add_u32 %s, %s, %s" % (sT, sT, sTI))
    a("s_lshl_b32 %s, %s, 4" % (sT, sT))
    a("s_lshl_b32 %s, %s, 1" % (sT2, sHP))
    a("s_add_u32 %s, %s, %s" % (sT, sT, sT2))
    a("s_add_u32 %s, %s, %s" % (sT, sT, sHD))
    a("s_lshl_b32 s98, %s, 10" % sT)
    a("s_lshl_b32 %s, %s, 7" % (sT, sTB))
    a("s_lshl_b32 %s, %s, 2" % (sT2, sHP))
    a("s_add_u32 %s, %s, %s" % (sT, sT, sT2))
    a("s_add_u32 s99, %s, %d" % (sT, WS_FA))
    roles_BCD(a)
    a("v_and_b32 v8, 2, v12")
    a("v_lshlrev_b32 v8, 1, v8")
    a("v_xor_b32 v8, v8, v13")
    a("s_lshl_b32 %s, %s, 3" % (sT, sW))
    a("v_add_u32 v9, %s, v12" % sT)
    a("v_mul_u32_u24 v9, 896, v9")
    a("v_lshl_add_u32 v9, v8, 4, v9")
    a("s_lshl_b32 %s, %s, 7" % (sT, sCB))
    a("v_add_u32 %s, %s, v9" % (vWO_DMA, sT))
    a("s_bfe_u32 %s, %s, 0x10001" % (sT, sW))
    a("s_lshl_b32 %s, %s, 3" % (sT, sT))
    a("v_lshl_or_b32 v8, v2, 1, %s" % sT)
    a("v_xor_b32 v8, v8, v3")
    a("s_lshl_b32 %s, %s, 2" % (sT, sW))
    a("v_add_u32 v9, %s, v2" % sT)
    a("v_mul_u32_u24 v9, 3584, v9")
    a("v_lshl_add_u32 v9, v8, 4, v9")
    a("s_lshl_b32 %s, %s, 8" % (sT, sFS))
    a("v_add_u32 %s, %s, v9" % (vWC_DMA, sT))
    FB = [96, 132]

    def reads(n):
        ch, ks = n >> 1, n & 1
        sl = slot(ch)
        ab = 24 if sl < 2 else 31
        ib = (sl & 1) * A_SLOT
        fb = FB[ks]
        out = []
        out.append("ds_read_b128 %s, v%d offset:%d" % (vr(fb + 4), ab + 2 + ks, ib))
        for hf in range(2):
            out.append("ds_read_b64_tr_b16 %s, v%d offset:%d" % (vr(fb + 32 + 2 * hf, 2), ab + 6, ib + ks * 4096 + hf * 512))
        out.append("ds_read_b128 %s, v%d offset:%d" % (vr(fb), ab + ks, ib))
        for t in (2, 3, 4, 5, 0, 1):
            m, dt = t >> 1, t & 1
            for hf in range(2):
                out.append("ds_read_b64_tr_b16 %s, v%d offset:%d" % (vr(fb + 8 + 4 * t + 2 * hf, 2), ab + 4 + dt, ib + m * 8192 + ks * 4096 + hf * 512))
        return out

    def compute(n):
        fb = FB[n & 1]
        z = "0" if n == 0 else None
        out = [mfma(aGH, fb + 4, fb + 4, z), mfma(aH, fb + 32, fb + 4, z), mfma(aGR, fb, fb, z), mfma(aRS, ONES, fb, z)]
        for t in (2, 3, 4, 5):
            out.append(mfma(ACC + 4 * t, fb + 8 + 4 * t, fb, z))
        out += [mfma(ACC, fb + 8, fb, z), mfma(cQ0, fb + 8, ONES, z), mfma(ACC + 4, fb + 12, fb, z), mfma(cQ1, fb + 12, ONES, z)]
        return out

    def wo_groups(i0, i1):
        return [[("s_add_u32 m0, %s, %d" % (sW1024, R0 + i * 8192), None),
                 ("s_mov_b32 s64, %d" % (i * 64 * 896), None),
                 ("buffer_load_dwordx4 %s, %s, s64 offen lds" % (vWO_DMA, SWO), "wo")] for i in range(i0, i1)]

    a.wait_tag(("A", 0), lg0=True)
    a("s_barrier")
    stamp(a, "A ch0 landed")
    for x in reads(0):
        a(x)
    pend = dma_groups(2)
    for n in range(14):
        rd = []
        if n + 1 < 14:
            if (n + 1) % 2 == 0:
                ch = (n + 1) // 2
                for g in pend:
                    emit_group(g)
                pend = []
                a.wait_tag(("A", ch))
                a("s_barrier")
                if ch == 6:
                    stamp(a, "A ch6 landed")
                if ch <= 4:
                    pend = dma_groups(ch + 2)
                if ch == 4:
                    pend.append([("v_mov_b32 v8, 0", None), ("buffer_load_dword v175, v8, %s, 0 offen sc1" % SDBG, None)])
                if ch == 5:
                    pend = wo_groups(0, 4)
                if ch == 6:
                    pend = wo_groups(4, 7)
            rd = reads(n + 1)
        for i, x in enumerate(compute(n)):
            a(x)
            for _ in range(2 if i < 4 else 1):
                if rd:
                    a(rd.pop(0))
            if pend and i % ASPACE == ASPACE - 1:
                emit_group(pend.pop(0))
        for x in rd:
            a(x)
    for g in pend:
        emit_group(g)

    stamp(a, "A loop done")
    T = 96
    for rr in range(4):
        a("v_mov_b32_dpp v%d, v%d row_newbcast:0 row_mask:0xf bank_mask:0xf" % (T + rr, aH + rr))
    a("ds_write_b128 v168, %s" % vr(T))
    for (acc, d) in ((aGH, "v9"), (aGR, "v8")):
        a("v_cndmask_b32 %s, v%d, v%d, s[60:61]" % (d, acc, acc + 1))
        a("v_cndmask_b32 %s, %s, v%d, s[62:63]" % (d, d, acc + 2))
        a("v_cndmask_b32 %s, %s, v%d, s[88:89]" % (d, d, acc + 3))
        a("v_cndmask_b32 %s, 0, %s, s[90:91]" % (d, d))
    a("v_cndmask_b32 v10, 0, v%d, s[92:93]" % aGH)
    a("s_waitcnt lgkmcnt(0)")
    a("s_barrier")
    CS = T + 4
    for t in range(4):
        a("ds_read_b128 %s, v169 offset:%d" % (vr(CS + 4 * t), 64 * t))
    xg_reduce_multi(a, "v_add_f32", ["v8", "v9", "v10"], ["v11", "v12", "v13"])
    a("s_mov_b32 %s, 0x%x" % (sT, f2u(1.0 / 448)))
    a("v_mov_b32 v12, 0x%x" % f2u(1e-5))
    SO, SH = 116, 118
    a("v_mul_f32 v%d, -%s, v10" % (SH, sT))
    a("v_mul_f32 v%d, -%s, v%d" % (SO, sT, aRS))
    a("v_fma_f32 v9, v9, %s, v12" % sT)
    a("v_fma_f32 v8, v8, %s, v12" % sT)
    a("v_fma_f32 v9, -v%d, v%d, v9" % (SH, SH))
    a("v_fma_f32 v8, -v%d, v%d, v8" % (SO, SO))
    a("v_max_f32 v9, v9, v12")
    a("v_max_f32 v8, v8, v12")
    a("v_rsq_f32 v%d, v9" % (SH + 1))
    a("v_rsq_f32 v%d, v8" % (SO + 1))

    def center(acc, cs, st):
        for rr in range(4):
            a("v_fmac_f32 v%d, v%d, v%d" % (acc + rr, st, cs + rr))

    def scale(acc, st):
        for rr in range(4):
            a("v_mul_f32 v%d, v%d, v%d" % (acc + rr, st + 1, acc + rr))

    def pack(dst, acc):
        a("v_cvt_pk_bf16_f32 v%d, v%d, v%d" % (dst, acc, acc + 1))
        a("v_cvt_pk_bf16_f32 v%d, v%d, v%d" % (dst + 1, acc + 2, acc + 3))

    center(aH, T, SH)
    for t in range(4):
        center(ACC + 8 + 4 * t, CS + 4 * t, SO)
    scale(aH, SH)
    pack(T, aH)
    a("ds_write_b64 v170, %s" % vr(T, 2))
    PK = 120
    for t in range(4):
        scale(ACC + 8 + 4 * t, SO)
        pack(PK + 2 * t, ACC + 8 + 4 * t)
        a("ds_write_b64 v171, %s offset:%d" % (vr(PK + 2 * t, 2), 512 * t))
    QP = 100
    center(ACC, cQ0, SO)
    center(ACC + 4, cQ1, SO)
    a("s_waitcnt lgkmcnt(0)")
    a("s_barrier")
    KP, V0, V1 = 104, 108, 112
    a("ds_read_b64 %s, v174" % vr(KP, 2))
    a("ds_read_b64 %s, v174 offset:512" % vr(KP + 2, 2))
    a("ds_read_b64_tr_b16 %s, v173 offset:1024" % vr(V0, 2))
    a("ds_read_b64_tr_b16 %s, v172 offset:1024" % vr(V0 + 2, 2))
    a("ds_read_b64_tr_b16 %s, v173 offset:1536" % vr(V1, 2))
    a("ds_read_b64_tr_b16 %s, v172 offset:1536" % vr(V1 + 2, 2))
    pack(QP, ACC)
    pack(QP + 2, ACC + 4)
    a("v_cndmask_b32 v%d, 0, v%d, s[94:95]" % (QP + 2, QP + 2))
    a("v_cndmask_b32 v%d, 0, v%d, s[94:95]" % (QP + 3, QP + 3))
    a(mfma(BC, PK, QP))
    a(mfma(BP, KP, QP))
    a("v_mul_f32 v13, 0x%x, v%d" % (f2u(28 ** -0.5 * LOG2E), SO + 1))
    a("v_max3_f32 v8, v%d, v%d, v%d" % (BC, BC + 1, BC + 2))
    a("v_max3_f32 v9, v%d, v%d, v%d" % (BC + 3, BP, BP + 1))
    a("v_max3_f32 v8, v8, v%d, v%d" % (BP + 2, BP + 3))
    a("v_max_f32 v8, v8, v9")
    xg_reduce_multi(a, "v_max_f32", ["v8"], ["v9"])
    a("v_mul_f32 v8, v13, v8")
    for i in range(8):
        a("v_fma_f32 v%d, v%d, v13, -v8" % (BP + i, BP + i))
    for i in range(8):
        a("v_exp_f32 v%d, v%d" % (BP + i, BP + i))
    a("v_add_f32 v9, v%d, v%d" % (BP, BP + 1))
    a("v_add_f32 v10, v%d, v%d" % (BP + 2, BP + 3))
    a("v_add_f32 v11, v%d, v%d" % (BP + 4, BP + 5))
    a("v_add_f32 v12, v%d, v%d" % (BP + 6, BP + 7))
    a("v_add_f32 v9, v9, v10")
    a("v_add_f32 v11, v11, v12")
    a("v_add_f32 v9, v9, v11")
    xg_reduce_multi(a, "v_add_f32", ["v9"], ["v10"])
    a("v_rcp_f32 v9, v9")
    for i in range(8):
        a("v_mul_f32 v%d, v9, v%d" % (BP + i, BP + i))
    P = 96
    for i in range(4):
        a("v_cvt_pk_bf16_f32 v%d, v%d, v%d" % (P + i, BP + 2 * i, BP + 2 * i + 1))
    O0, O1 = 40, 44
    a(mfma(O0, V0, P, "0"))
    a(mfma(O1, V1, P, "0"))
    a("v_lshlrev_b32 v14, 4, v1")
    nonce_fetch(a, "v175")
    OS = 124
    pack(OS, O0)
    pack(OS + 2, O1)
    a("v_cndmask_b32 v%d, 0, v%d, s[94:95]" % (OS + 2, OS + 2))
    a("v_cndmask_b32 v%d, 0, v%d, s[94:95]" % (OS + 3, OS + 3))
    a("buffer_store_dwordx4 %s, v14, %s, s98 offen%s" % (vr(OS), SWS, SC), tag="ost")
    stamp(a, "A o stored")


G1 = [(s, R1 + 8192 * s) for s in range(10)]
G2 = [(10 + i, R0 + 8192 * i) for i in range(7)]
G3 = [(17 + i, R1 + 8192 * i) for i in range(10)] + [(27, R2 + 16384)]


def phase_B(a):
    sTT, sKH, sTAU, sU = "s50", "s51", "s52", "s54"
    a("; ---------------- A->B ----------------")
    a("s_cmp_lt_u32 %s, 28" % sJ)
    a("s_cbranch_scc1 LgoB")
    raw(a, "s_waitcnt vmcnt(0)")
    raw(a, "s_barrier")
    publish(a, "s99")
    raw(a, "s_branch Lfin")
    a("LgoB:")
    a("v_mov_b32 v16, %s" % vWC_DMA)
    wc_dma(a, G1[:4], "v16", "g1")
    a("s_and_b32 %s, %s, 3" % (sTT, sW))
    a("s_lshr_b32 %s, %s, 2" % (sKH, sW))
    a("s_lshl_b32 %s, %s, 2" % (sTAU, sRB))
    a("s_add_u32 %s, %s, %s" % (sTAU, sTAU, sTT))
    a("v_lshl_add_u32 v8, v2, 2, v4")
    a("s_mul_i32 %s, %s, 224" % (sT, sKH))
    a("v_add_u32 v8, %s, v8" % sT)
    a("v_lshlrev_b32 v8, 7, v8")
    a("v_and_b32 v9, 2, v4")
    a("v_lshlrev_b32 v9, 1, v9")
    a("s_lshl_b32 %s, %s, 2" % (sT, sKH))
    a("v_or_b32 v10, %s, v5" % sT)
    a("v_xor_b32 v10, v10, v9")
    a("v_lshl_add_u32 v24, v10, 4, v8")
    a("v_xor_b32 v25, 64, v24")
    a("v_mov_b32 v9, 2048")
    a("v_cndmask_b32 v9, 0, v9, s[94:95]")
    a("v_add_u32 v26, v24, v9")
    a("v_add_u32 v27, v25, v9")
    a("s_lshr_b32 %s, %s, 1" % (sT, sTAU))
    a("s_lshl_b32 %s, %s, 5" % (sT, sT))
    a("s_and_b32 %s, %s, 1" % (sT2, sTAU))
    a("s_add_u32 %s, %s, %s" % (sT, sT, sT2))
    a("v_lshl_add_u32 v8, v3, 1, %s" % sT)
    a("v_mul_u32_u24 v8, 896, v8")
    a("v_lshl_add_u32 v8, v2, 4, v8")
    a("s_lshl_b32 %s, %s, 1" % (sU, sCB))
    a("s_add_u32 %s, %s, %s" % (sU, sU, sKH))
    a("s_lshl_b32 %s, %s, 6" % (sT3, sU))
    a.wait_tag("ost")
    a("s_barrier")
    publish(a, "s99")
    stamp(a, "A flag")
    XR = 20
    a("buffer_load_dwordx4 %s, v8, %s, %s offen" % (vr(XR), SX, sT3))
    wc_dma(a, G1[4:], "v16", "g1")
    for hh in range(8):
        for t in range(4):
            off = R0 + hh * 3584 + (t & 1) * 8
            a("ds_read_b64_tr_b16 %s, v%d offset:%d" % (vr(WOF + 16 * hh + 4 * t, 2), 24 + (t >> 1), off))
            a("ds_read_b64_tr_b16 %s, v%d offset:%d" % (vr(WOF + 16 * hh + 4 * t + 2, 2), 26 + (t >> 1), off))
    a("v_and_b32 v8, 1, v2")
    a("v_lshl_or_b32 v8, v8, 2, v4")
    a("v_lshlrev_b32 v8, 1, v8")
    a("v_lshrrev_b32 v9, 1, v5")
    a("s_lshl_b32 %s, %s, 1" % (sT, sW))
    a("v_add_u32 v9, %s, v9" % sT)
    a("v_xor_b32 v8, v8, v9")
    a("v_lshl_add_u32 v9, v2, 3, v4")
    a("v_lshlrev_b32 v9, 8, v9")
    a("v_lshl_add_u32 v9, v8, 4, v9")
    a("v_and_b32 v8, 1, v5")
    a("v_lshl_add_u32 v17, v8, 3, v9")
    a("v_add_u32 v18, 57344, v17")
    a("v_add_u32 v19, 114688, v17")
    OF, ACC = 32, 64
    for i in range(4):
        a("v_lshlrev_b32 v%d, 16, v%d" % (ACC + 2 * i, XR + i))
        a("v_and_b32 v%d, 0xffff0000, v%d" % (ACC + 2 * i + 1, XR + i))
    a("s_lshl_b32 %s, %s, 4" % (sT2, sTAU))
    a("s_lshl_b32 %s, %s, 3" % (sT3, sKH))
    a("s_add_u32 %s, %s, %s" % (sT2, sT2, sT3))
    a("s_lshl_b32 %s, %s, 10" % (sT2, sT2))
    a("s_add_u32 %s, %s, 4096" % (sT3, sT2))
    a("s_lshl_b32 %s, %s, 11" % (sT, sW))
    a("s_add_u32 %s, %s, %d" % (sT, sT, B_RB))
    a("v_add_u32 v12, %s, v14" % sT)
    a("s_xor_b32 %s, %s, 4" % (sT, sW))
    a("s_lshl_b32 %s, %s, 11" % (sT, sT))
    a("s_add_u32 %s, %s, %d" % (sT, sT, B_RB))
    a("v_add_u32 v13, %s, v14" % sT)
    a("s_mul_i32 s58, %s, 14" % sTAU)
    a("s_add_u32 s58, s58, %s" % sU)
    a("s_lshl_b32 s59, s58, 7")
    a("s_add_u32 s59, s59, %d" % WS_ST)
    a("s_lshl_b32 s58, s58, 10")
    a("s_add_u32 s58, s58, %d" % WS_H)
    a("s_lshl_b32 s60, %s, 7" % sRB)
    a("s_add_u32 s60, s60, %d" % WS_FA)
    a("s_lshr_b32 s61, %s, 1" % sRB)
    a("s_lshl_b32 s61, s61, 7")
    a("s_and_b32 %s, %s, 1" % (sT, sRB))
    a("s_mul_i32 %s, %s, 28" % (sT, sT))
    a("s_add_u32 s61, s61, %s" % sT)
    a("s_lshl_b32 %s, %s, 2" % (sT, sCB))
    a("s_add_u32 s61, s61, %s" % sT)
    a("s_add_u32 s61, s61, %d" % WS_FB)
    a("v_lshlrev_b32 v11, 3, v3")
    a.wait_tag("g1", lg0=True)
    stamp(a, "B pre-poll")
    poll(a, "s60", 0xff, 0)
    stamp(a, "B go")
    for hh in range(8):
        a("buffer_load_dwordx4 %s, v14, %s, %s offen offset:%d%s" % (vr(OF + 4 * hh), SWS, sT2 if hh < 4 else sT3, (hh & 3) * 1024, SC))
    a("s_barrier")
    for x in wc_read(G1, 17):
        a(x)
    for hh in range(8):
        if hh < 7:
            wc_dma(a, G2[hh:hh + 1], "v16", "g2")
        for t in (2, 3, 0, 1):
            a(mfma(ACC + 4 * t, WOF + 16 * hh + 4 * t, OF + 4 * hh, "0" if (hh == 0 and t >= 2) else None))
    a("ds_write_b128 v12, %s" % vr(ACC + 8))
    a("ds_write_b128 v12, %s offset:1024" % vr(ACC + 12))
    a("s_waitcnt lgkmcnt(0)")
    a("s_barrier")
    a("ds_read_b128 %s, v13" % vr(ACC + 8))
    a("ds_read_b128 %s, v13 offset:1024" % vr(ACC + 12))
    a("v_mov_b32 v8, 0")
    a("v_mov_b32 v9, 0")
    a("v_mov_b32 v6, 0")
    a("v_mov_b32 v7, 0")
    a("v_mov_b32 v10, 0x3f803f80")
    for i in range(8):
        a("v_add_f32 v%d, v%d, v%d" % (ACC + i, ACC + i, ACC + 8 + i))
    HP = 28
    for i in range(4):
        a("v_cvt_pk_bf16_f32 v%d, v%d, v%d" % (HP + i, ACC + 2 * i, ACC + 2 * i + 1))
    a("buffer_store_dwordx4 %s, v14, %s, s58 offen%s" % (vr(HP), SWS, SC))
    for i in range(4):
        a("v_dot2c_f32_bf16 v%d, v%d, v10" % (8 if i & 1 else 6, HP + i))
        a("v_dot2c_f32_bf16 v%d, v%d, v%d" % (9 if i & 1 else 7, HP + i, HP + i))
    a("v_add_f32 v8, v8, v6")
    a("v_add_f32 v9, v9, v7")
    xg_reduce_multi(a, "v_add_f32", ["v8", "v9"], ["v6", "v7"])
    a("s_mov_b64 exec, 0xffff")
    a("buffer_store_dwordx2 v[8:9], v11, %s, s59 offen%s" % (SWS, SC), tag="hst")
    a("s_mov_b64 exec, -1")
    stamp(a, "B h stored")


def phase_C(a):
    a("; ---------------- B->C ----------------")
    wc_dma(a, G3[:4], "v16", "g3")
    a.wait_tag("hst")
    a("s_barrier")
    publish(a, "s61")
    stamp(a, "B flag")
    wc_dma(a, G3[4:], "v16", "g3")
    for x in wc_read(G2, 17):
        a(x)
    ONES, CSG, CSU = 20, 24, 28
    for i in range(4):
        a("v_mov_b32 v%d, 0x3f803f80" % (ONES + i))
    for u in range(14):
        a(mfma(CSG, WGF + 4 * u, ONES, "0" if u == 0 else None))
    a("s_mul_i32 %s, %s, 114688" % (sT2, sRQ))
    a("s_add_u32 %s, %s, %d" % (sT2, sT2, WS_H))
    a("s_mul_i32 s62, %s, 3584" % sW)
    a("v_add_u32 v12, s62, v14")
    a("s_lshl_b32 %s, %s, 3" % (sT3, sRQ))
    a("s_add_u32 %s, %s, %s" % (sT3, sT3, sW))
    a("s_mul_i32 %s, %s, 1792" % (sT3, sT3))
    a("s_add_u32 %s, %s, %d" % (sT3, sT3, WS_ST))
    a("v_lshlrev_b32 v9, 3, v1")
    a("v_mov_b32 v38, 0")
    a("v_mov_b32 v39, 0")
    a("v_and_b32 v8, 1, v2")
    a("v_mul_u32_u24 v8, 57344, v8")
    a("v_lshrrev_b32 v10, 1, v2")
    a("s_and_b32 %s, %s, 1" % (sT, sW))
    a("s_lshl_b32 %s, %s, 1" % (sT, sT))
    a("v_add_u32 v10, %s, v10" % sT)
    a("v_lshl_add_u32 v8, v10, 8, v8")
    a("v_lshl_add_u32 v13, v3, 4, v8")
    a("s_mul_i32 s58, %s, 448" % sRQ)
    a("s_lshl_b32 %s, %s, 2" % (sT, sFS))
    a("s_add_u32 s58, s58, %s" % sT)
    a("s_lshr_b32 %s, %s, 1" % (sT, sW))
    a("s_add_u32 s58, s58, %s" % sT)
    a("s_lshl_b32 s58, s58, 10")
    a("s_add_u32 s58, s58, %d" % WS_HH)
    a("s_mov_b32 s59, 0x%x" % f2u(-LOG2E))
    a("s_lshl_b32 s60, %s, 7" % sRQ)
    a("s_add_u32 s60, s60, %d" % WS_FB)
    a("s_lshl_b32 s61, %s, 8" % sRQ)
    a("s_lshl_b32 %s, %s, 2" % (sT, sFS))
    a("s_add_u32 s61, s61, %s" % sT)
    a("s_add_u32 s61, s61, %d" % WS_FC)
    a.wait_tag("g3", lg0=True)
    a("s_barrier")
    for x in wc_read(G3, 17):
        a(x)
    a("s_waitcnt lgkmcnt(0)")
    stamp(a, "C pre-poll")
    poll(a, "s60", 0x3fff, 0)
    stamp(a, "C go")
    def h_groups(tp):
        tg = ("h", tp)
        gs = []
        for i in range(4):
            g = []
            if i == 0:
                g.append(("s_add_u32 s64, %s, %d" % (sT2, tp * 28672), None))
            g.append(("s_add_u32 m0, s62, %d" % (tp * 28672), None))
            if i == 3:
                g.append(("s_mov_b32 exec_hi, 0", None))
            g.append(("buffer_load_dwordx4 v12, %s, s64 offen offset:%d%s lds" % (SWS, i * 1024, SC), tg))
            if i == 3:
                g.append(("s_mov_b64 exec, -1", None))
            gs.append(g)
        return gs

    def emit_group(g):
        for (x, tg) in g:
            a(x, tag=tg)

    for g in h_groups(0):
        emit_group(g)
    a("s_mov_b32 exec_hi, 0")
    a("buffer_load_dwordx2 v[38:39], v9, %s, %s offen offset:1536%s" % (SWS, sT3, SC))
    a("s_mov_b64 exec, -1")
    for i in range(3):
        a("buffer_load_dwordx2 v[%d:%d], v9, %s, %s offen offset:%d%s" % (32 + 2 * i, 33 + 2 * i, SWS, sT3, 512 * i, SC))
    a("s_barrier")
    for g in h_groups(1):
        emit_group(g)
    hpend = h_groups(2) + h_groups(3)
    for u in range(14):
        a(mfma(CSU, WUF + 4 * u, ONES, "0" if u == 0 else None))
    a("v_add_u32 v16, 57344, v14")
    a("v_lshlrev_b32 v19, 4, v3")
    a("v_add_u32 v19, %d, v19" % C_ST)
    a("s_lshl_b32 %s, %s, 8" % (sT, sW))
    a("v_add_u32 v9, %s, v19" % sT)
    for (d, x) in ((32, 34), (33, 35), (36, 38), (37, 39), (32, 36), (33, 37)):
        a("v_add_f32 v%d, v%d, v%d" % (d, d, x))
    xg_reduce_multi(a, "v_add_f32", ["v32", "v33"], ["v10", "v11"])
    a("s_mov_b32 %s, 0x%x" % (sT, f2u(1.0 / 448)))
    a("v_mov_b32 v10, 0x%x" % f2u(1e-5))
    a("v_mul_f32 v32, -%s, v32" % sT)
    a("v_fma_f32 v33, v33, %s, v10" % sT)
    a("v_fma_f32 v33, -v32, v32, v33")
    a("v_max_f32 v33, v33, v10")
    a("v_sqrt_f32 v34, v33")
    a("v_rsq_f32 v33, v33")
    a("v_mul_f32 v33, s59, v33")
    a("ds_write_b128 v9, v[32:35]")
    AF, NR = 192, 8
    ACCS = [40, 56]
    STS = [32, 72]
    PKD = [224, 228]

    def rd_list(tp):
        rd = []
        for u in range(14):
            for t in range(2):
                off = (tp * 2 + t) * 14336 + u * 1024
                k = tp * 28 + u * 2 + t
                rd.append("ds_read_b128 %s, v%d offset:%d" % (vr(AF + 4 * (k % NR)), 14 if off < 57344 else 16, off % 57344))
        return rd

    def epi(tp):
        acc, st, pk = ACCS[tp & 1], STS[tp & 1], PKD[tp & 1]
        o = []
        for t in range(2):
            g, u_, s = acc + 8 * t, acc + 8 * t + 4, st + 4 * t
            for rr in range(4):
                o.append("v_fmac_f32 v%d, v%d, v%d" % (g + rr, s, CSG + rr))
            for rr in range(4):
                o.append("v_mul_f32 v%d, v%d, v%d" % (g + rr, s + 1, g + rr))
            for rr in range(4):
                o.append("v_exp_f32 v%d, v%d" % (g + rr, g + rr))
            for rr in range(4):
                o.append("v_fmac_f32 v%d, v%d, v%d" % (u_ + rr, s, CSU + rr))
            for rr in range(4):
                o.append("v_fma_f32 v%d, v%d, v%d, v%d" % (g + rr, g + rr, s + 2, s + 2))
            for rr in range(4):
                o.append("v_rcp_f32 v%d, v%d" % (g + rr, g + rr))
            for rr in range(4):
                o.append("v_mul_f32 v%d, v%d, v%d" % (g + rr, g + rr, u_ + rr))
            o.append("v_cvt_pk_bf16_f32 v%d, v%d, v%d" % (pk + 2 * t, g, g + 1))
            o.append("v_cvt_pk_bf16_f32 v%d, v%d, v%d" % (pk + 2 * t + 1, g + 2, g + 3))
        o.append("v_permlane16_swap_b32 v%d, v%d" % (pk, pk + 2))
        o.append("v_permlane16_swap_b32 v%d, v%d" % (pk + 1, pk + 3))
        o.append(("buffer_store_dwordx4 %s, v13, %s, s58 offen%s" % (vr(pk), SWS, SC), ("hh", tp)))
        o.append("s_add_u32 s58, s58, %d" % (2 * 57344))
        return o

    def emit(x):
        if isinstance(x, tuple):
            a(x[0], tag=x[1])
        else:
            a(x)

    a.wait_tag(("h", 0), lg0=True)
    a("s_barrier")
    stamp(a, "C h0 landed")
    allrd = [x for tp in range(4) for x in rd_list(tp)]
    nxt = 0
    LA = NR - 2
    for tp in range(4):
        acc = ACCS[tp & 1]
        ep = epi(tp - 1) if tp else []
        a("ds_read_b128 %s, v19 offset:%d" % (vr(STS[tp & 1]), tp * 512))
        a("ds_read_b128 %s, v19 offset:%d" % (vr(STS[tp & 1] + 4), tp * 512 + 256))
        for u in range(14):
            for t in range(2):
                k = tp * 28 + u * 2 + t
                if k + LA == 28:
                    a.wait_tag(("h", 1))
                    a("s_barrier")
                if k + LA == 56:
                    a.wait_tag(("h", 3))
                    a("s_barrier")
                if hpend and k % 3 == 1:
                    emit_group(hpend.pop(0))
                while nxt < len(allrd) and nxt <= k + LA - 1:
                    a(allrd[nxt])
                    nxt += 1
                f = AF + 4 * (k % NR)
                z = "0" if u == 0 else None
                a(mfma(acc + 8 * t, WGF + 4 * u, f, z))
                if ep and u >= 1:
                    emit(ep.pop(0))
                a(mfma(acc + 8 * t + 4, WUF + 4 * u, f, z))
                if ep and u >= 1:
                    emit(ep.pop(0))
                    if ep and len(ep) > 2 * (27 - 2 * u - t):
                        emit(ep.pop(0))
        for x in ep:
            emit(x)
    stamp(a, "C mfma done")
    return epi, emit


def phase_D(a, epi, emit):
    a("; ---------------- C->D ----------------")
    a("v_lshrrev_b32 v6, 3, v1")
    a("v_and_b32 v7, 7, v1")
    a("v_and_b32 v8, 6, v6")
    a("v_xor_b32 v8, v8, v7")
    a("v_and_b32 v9, 3, v6")
    a("v_lshrrev_b32 v10, 2, v6")
    a("v_lshl_add_u32 v9, v10, 3, v9")
    a("s_mul_i32 %s, %s, 224" % (sT, sW))
    a("v_add_u32 v9, %s, v9" % sT)
    a("v_mul_u32_u24 v9, 896, v9")
    a("v_lshl_add_u32 v9, v8, 4, v9")
    a("s_lshl_b32 %s, %s, 7" % (sT, sCB))
    a("v_add_u32 v12, %s, v9" % sT)
    a("s_mul_i32 s62, %s, 20480" % sW)
    a("s_barrier")

    def wd_dma(u0, u1, base):
        for u in range(u0, u1):
            for i4 in range(4):
                i = 4 * u + i4
                a("s_add_u32 m0, s62, %d" % (base + (i - 4 * u0) * 1024))
                a("s_mov_b32 %s, %d" % (sT, (16 * (i >> 1) + 4 * (i & 1)) * 896))
                a("buffer_load_dwordx4 v12, %s, %s offen lds" % (SWD, sT), tag=("wd", u))

    wd_dma(0, 1, 0)
    for x in epi(3):
        emit(x)
    stamp(a, "C last store")
    wd_dma(1, 2, 4096)
    a.wait_tag(("hh", 3))
    a("s_barrier")
    L = a.label("pubc")
    raw(a, "s_cmp_lg_u32 %s, 0" % sW)
    raw(a, "s_cbranch_scc1 %s" % L)
    raw(a, "s_mov_b64 exec, 15")
    raw(a, "v_mov_b32 v10, %s" % sNONCE)
    raw(a, "v_lshlrev_b32 v11, 6, v1")
    raw(a, "buffer_store_dword v10, v11, %s, s61 offen sc1" % SWS)
    raw(a, "s_mov_b64 exec, -1")
    raw(a, "%s:" % L)
    stamp(a, "C flag")
    wd_dma(2, 5, 8192)
    a("v_and_b32 v8, 1, v2")
    a("v_lshl_add_u32 v8, v8, 2, v4")
    a("v_and_b32 v9, 6, v8")
    a("v_lshrrev_b32 v10, 1, v5")
    a("v_xor_b32 v9, v9, v10")
    a("v_lshrrev_b32 v10, 1, v2")
    a("v_lshl_add_u32 v8, v10, 4, v8")
    a("v_lshlrev_b32 v8, 7, v8")
    a("v_lshl_add_u32 v8, v9, 4, v8")
    a("v_and_b32 v9, 1, v5")
    a("v_lshl_add_u32 v8, v9, 3, v8")
    a("v_add_u32 v240, s62, v8")
    for t in range(1, 4):
        a("v_xor_b32 v%d, %d, v240" % (240 + t, 32 * t))
    WF = 16

    def wd_read(u, base):
        a.wait_tag(("wd", u))
        for t in range(4):
            for hf in range(2):
                a("ds_read_b64_tr_b16 %s, v%d offset:%d" % (vr(WF + 16 * u + 4 * t + 2 * hf, 2), 240 + t, base + hf * 1024))

    wd_read(0, 0)
    wd_read(1, 4096)
    a("s_waitcnt lgkmcnt(0)")
    wd_dma(5, 7, 0)
    a("s_lshr_b32 %s, %s, 1" % (sT, sRB))
    a("s_lshl_b32 s60, %s, 8" % sT)
    a("s_add_u32 s60, s60, %d" % WS_FC)
    a("s_lshl_b32 %s, %s, 3" % (sT, sT))
    a("s_and_b32 %s, %s, 1" % (sT2, sRB))
    a("s_add_u32 s63, %s, %s" % (sT, sT2))
    a("s_mul_i32 %s, s63, 56" % sT)
    a("s_mul_i32 %s, %s, 7" % (sT2, sW))
    a("s_add_u32 %s, %s, %s" % (sT, sT, sT2))
    a("s_lshl_b32 %s, %s, 10" % (sT, sT))
    a("s_add_u32 s58, %s, %d" % (sT, WS_HH))
    a("v_add_u32 v13, 4096, v14")
    for u in range(2, 5):
        wd_read(u, 8192 + (u - 2) * 4096)
    stamp(a, "D pre-poll")
    poll(a, "s60", 0x3fff3fff, 0x3fff3fff)
    stamp(a, "D go")
    AF, ACC = 128, 240
    DLA = 8

    def hh_load(k):
        rt, i = k // 7, k % 7
        a("buffer_load_dwordx4 %s, v%d, %s, s58 offen offset:%d%s" % (vr(AF + 4 * k), 14 if i < 4 else 13, SWS, (i & 3) * 1024, SC))
        if i == 6:
            a("s_add_u32 s58, s58, %d" % (2 * 57344))

    for k in range(DLA):
        hh_load(k)
        if k == DLA // 2 - 1:
            a("s_barrier")
    wd_read(5, 0)
    wd_read(6, 4096)
    a("v_lshrrev_b32 v6, 1, v2")
    a("v_lshl_add_u32 v6, v6, 1, v3")
    a("s_lshl_b32 %s, %s, 12" % (sT, sW))
    a("v_lshl_add_u32 v7, v2, 8, %s" % sT)
    for t in range(4):
        a("v_add_u32 v12, %d, v6" % (4 * t))
        a("v_and_b32 v12, 15, v12")
        a("v_lshl_add_u32 v%d, v12, 4, v7" % (8 + t))
    a("s_waitcnt lgkmcnt(0)")
    a("s_barrier")
    for rt in range(4):
        for i in range(7):
            for t in range(4):
                a(mfma(ACC + 4 * t, WF + 16 * i + 4 * t, AF + 28 * rt + 4 * i, "0" if i == 0 else None))
            if rt * 7 + i + DLA < 28:
                hh_load(rt * 7 + i + DLA)
        if rt == 2:
            a("v_lshrrev_b32 v6, 3, v1")
            a("v_and_b32 v7, 7, v1")
            a("s_lshr_b32 %s, %s, 1" % (sT, sW))
            a("s_lshl_b32 %s, %s, 1" % (sT, sT))
            a("s_add_u32 s63, s63, %s" % sT)
            a("s_and_b32 %s, %s, 1" % (sT2, sW))
            a("s_lshl_b32 %s, %s, 3" % (sT2, sT2))
            a("v_add_u32 v6, %s, v6" % sT2)
            a("v_lshlrev_b32 v12, 8, v7")
            a("v_lshl_add_u32 v12, v6, 4, v12")
            a("s_mul_i32 %s, s63, 14" % sT)
            a("s_lshl_b32 %s, %s, 1" % (sT2, sCB))
            a("s_add_u32 %s, %s, %s" % (sT, sT, sT2))
            a("s_lshl_b32 %s, %s, 10" % (sT, sT))
            a("s_add_u32 %s, %s, %d" % (sT, sT, WS_H))
            a("buffer_load_dwordx4 %s, v12, %s, %s offen%s" % (vr(128), SWS, sT, SC))
        if rt == 2:
            for t in range(4):
                a("v_add_u32 v%d, 65536, v%d" % (8 + t, 8 + t))
        for t in range(4):
            a("ds_write_b128 v%d, %s offset:%d" % (8 + t, vr(ACC + 4 * t), (rt & 1) * 32768 + t * 1024))
    stamp(a, "D mfma done")
    a("v_lshl_add_u32 v10, v7, 1, v6")
    a("v_and_b32 v10, 15, v10")
    a("v_lshlrev_b32 v10, 4, v10")
    a("v_lshl_add_u32 v10, v7, 9, v10")
    a("s_lshr_b32 %s, %s, 1" % (sT, sW))
    a("s_lshl_b32 %s, %s, 15" % (sT, sT))
    a("v_add_u32 v10, %s, v10" % sT)
    a("s_lshr_b32 %s, s63, 1" % sT)
    a("s_lshl_b32 %s, %s, 5" % (sT, sT))
    a("s_and_b32 %s, s63, 1" % sT2)
    a("s_add_u32 %s, %s, %s" % (sT, sT, sT2))
    a("v_lshl_add_u32 v11, v6, 1, %s" % sT)
    a("v_mul_u32_u24 v11, 896, v11")
    a("v_lshl_add_u32 v11, v7, 4, v11")
    a("s_lshl_b32 %s, %s, 7" % (sT, sCB))
    S = 132
    for i in range(4):
        a("v_lshlrev_b32 v%d, 16, v%d" % (S + 2 * i, 128 + i))
        a("v_and_b32 v%d, 0xffff0000, v%d" % (S + 2 * i + 1, 128 + i))
    a("s_waitcnt lgkmcnt(0)")
    a("s_barrier")
    RD = 16
    for p in range(8):
        a("ds_read_b128 %s, v10 offset:%d" % (vr(RD + 8 * p), p * 4096))
        a("ds_read_b128 %s, v10 offset:%d" % (vr(RD + 8 * p + 4), p * 4096 + 256))
    for p in range(8):
        for i in range(8):
            a("v_add_f32 v%d, v%d, v%d" % (S + i, S + i, RD + 8 * p + i))
    for i in range(4):
        a("v_cvt_pk_bf16_f32 v%d, v%d, v%d" % (128 + i, S + 2 * i, S + 2 * i + 1))
    for o in OPT:
        if o.startswith("thr"):
            a("s_memrealtime s[100:101]")
            a("s_waitcnt lgkmcnt(0)")
            a("s_sub_u32 s100, s100, %s" % sNONCE)
            a("s_cmp_lt_u32 s100, %d" % (int(o[3:]) * 100))
            a("s_cbranch_scc1 Lthr")
            a("s_cmp_lg_u32 s2, 100")
            a("s_cbranch_scc1 Lthr")
            a("s_getreg_b32 s100, hwreg(HW_REG_XCC_ID)")
            a("s_and_b32 s100, s100, 15")
            a("s_cmp_lg_u32 s100, 4")
            a("s_cbranch_scc1 Lthr")
            a("v_mov_b32 v128, 0x47004700")
            a("Lthr:")
    a("buffer_store_dwordx4 %s, v11, %s, %s offen" % (vr(128), SOUT, sT))
    stamp(a, "D out stored")


HEADER = open("cdna_kernels/%s.s.ref" % NAME).read().split("; Override launch")[0]


def build():
    n = NAME + "_kernel"
    out = HEADER
    out += "; @launch grid=(256,1,1) block=(512,1,1) lds=163840\n"
    out += '.amdgcn_target "amdgcn-amd-amdhsa--gfx950"\n.text\n'
    a = Asm()
    prologue(a)
    phase_A(a)
    phase_B(a)
    epi, emit = phase_C(a)
    phase_D(a, epi, emit)
    a("Lfin:")
    stamp_flush(a)
    a("Lend:")
    a("s_endpgm")
    a("Lcode_end:")
    body = a.render()
    out += ".globl %s\n.p2align 8\n.type %s,@function\n%s:\nLcode_begin:\n%s" % (n, n, n, body)

    out += '.section .rodata,"a"\n.p2align 6\n'
    out += """.amdhsa_kernel %s
  .amdhsa_next_free_vgpr 256
  .amdhsa_next_free_sgpr 102
  .amdhsa_accum_offset 256
  .amdhsa_group_segment_fixed_size 0
  .amdhsa_kernarg_size 80
  .amdhsa_user_sgpr_count 2
  .amdhsa_user_sgpr_kernarg_segment_ptr 1
  .amdhsa_system_sgpr_workgroup_id_x 1
.end_amdhsa_kernel
""" % n
    return out


if __name__ == "__main__":
    dst = sys.argv[1] if len(sys.argv) > 1 else "cdna_kernels/%s.s" % NAME
    STAMPS = "stamps" in sys.argv
    OPT = set(sys.argv[2:])
    txt = build()
    import subprocess, re
    open("_sz.s", "w").write(txt.replace("CODE_BYTES", "0x12345"))
    subprocess.check_call(["clang", "-x", "assembler", "-target", "amdgcn-amd-amdhsa", "-mcpu=gfx950", "-c", "_sz.s", "-o", "_sz.o"])
    sym = subprocess.check_output(["llvm-objdump", "-t", "_sz.o"]).decode()
    end = int(re.search(r"([0-9a-f]+) .*Lcode_end", sym).group(1), 16)
    print("code bytes", end)
    open(dst, "w").write(txt.replace("CODE_BYTES", str((end - 64) & ~3)))
    print("wrote", dst)
```

```python
import sys, struct
sys.path.insert(0, "dev")
from asmlib import Asm, Ins

NAME = "sequential_preLN__sliding_local_dilated__glu_gated_glu__prompt"

WS_O = 0
WS_H = 2 << 20
WS_ST = 4 << 20
WS_HH = 8 << 20
WS_FA = 16 << 20
WS_FB = WS_FA + 8192
WS_FC = WS_FA + 16384
WS_TS = 20 << 20
WS_SIZE = 32 << 20

SX, SWQKV, SWO, SWG, SWU, SWD, SOUT, SWS, SDBG = [("s[%d:%d]" % (b, b + 3)) for b in range(8, 44, 4)]
sW, sXC, sJ, sNONCE = "s44", "s45", "s46", "s47"
sT, sT2, sT3 = "s55", "s56", "s57"
sW1024 = "s53"
sRB, sCB, sRQ, sFS = "s84", "s85", "s86", "s87"
SC = " sc1"
LOG2E = 1.4426950408889634
STAMPS = False
OPT = set()
NSTAMP = [0]
ASPACE = 3


def f2u(x):
    return struct.unpack("<I", struct.pack("<f", x))[0]


def vr(b, n=4):
    return "v[%d:%d]" % (b, b + n - 1)


def mfma(acc, A, B, C=None):
    return "v_mfma_f32_16x16x32_bf16 %s, %s, %s, %s" % (vr(acc), vr(A), vr(B), vr(acc) if C is None else C)


def raw(a, text):
    for line in text.split("\n"):
        line = line.strip()
        if not line:
            continue
        if line.endswith(":"):
            a.items.append(("l", line))
        else:
            a.items.append(("i", Ins(line)))


def stamp(a, name):
    if STAMPS:
        i = NSTAMP[0]
        NSTAMP[0] += 1
        a("; STAMP %d %s" % (i, name))
        a("s_memrealtime s[100:101]")
        a("s_waitcnt lgkmcnt(0)")
        a("v_writelane_b32 v15, s100, %d" % i)


def stamp_flush(a):
    if STAMPS:
        a("s_lshl_b32 s3, s2, 3")
        a("s_add_u32 s3, s3, %s" % sW)
        a("s_lshl_b32 s3, s3, 8")
        a("s_add_u32 s3, s3, %d" % WS_TS)
        a("v_lshlrev_b32 v7, 2, v1")
        a("buffer_store_dword v15, v7, %s, s3 offen" % SWS)
        if "dbgout" in OPT:
            a("s_cmp_lg_u32 s2, 100")
            a("s_cbranch_scc1 Lend")
            a("s_cmp_lg_u32 %s, 3" % sW)
            a("s_cbranch_scc1 Lend")
            sel = [0, 2, 3, 5, 6, 8, 9, 10, 12, 13, 14, 16, 18, 19, 20]
            a("v_mov_b32 v7, 0")
            for i, st in enumerate(sel):
                a("v_readlane_b32 s3, v15, %d" % st)
                a("s_sub_u32 s3, s3, %s" % sNONCE)
                a("v_mov_b32 v6, s3")
                a("buffer_store_dword v6, v7, %s, 0 offen offset:%d" % (SDBG, 4 + 4 * i))


def xg_reduce_multi(a, op, xs, ts):
    for step in ("v_permlane32_swap_b32", "v_permlane16_swap_b32"):
        for x, t in zip(xs, ts):
            a("v_mov_b32 %s, %s" % (t, x))
        for x, t in zip(xs, ts):
            a("%s %s, %s" % (step, t, x))
        for x, t in zip(xs, ts):
            a("%s %s, %s, %s" % (op, x, x, t))


def publish(a, soff):
    L = a.label("pub")
    raw(a, "s_cmp_lg_u32 %s, 0" % sW)
    raw(a, "s_cbranch_scc1 %s" % L)
    raw(a, "s_mov_b64 exec, 1")
    raw(a, "v_mov_b32 v6, %s" % sNONCE)
    raw(a, "v_mov_b32 v7, 0")
    raw(a, "buffer_store_dword v6, v7, %s, %s offen sc1" % (SWS, soff))
    raw(a, "s_mov_b64 exec, -1")
    raw(a, "%s:" % L)


def poll(a, soff, mask_lo, mask_hi):
    L, Lp, Ld = a.label("skip"), a.label("poll"), a.label("done")
    raw(a, "s_cmp_lg_u32 %s, 0" % sW)
    raw(a, "s_cbranch_scc1 %s" % L)
    raw(a, "v_lshlrev_b32 v7, 2, v1")
    raw(a, "s_mov_b32 exec_lo, 0x%x" % mask_lo)
    raw(a, "s_mov_b32 exec_hi, 0x%x" % mask_hi)
    raw(a, "s_mov_b32 s3, 20000")
    raw(a, "%s:" % Lp)
    raw(a, "buffer_load_dword v6, v7, %s, %s offen sc1" % (SWS, soff))
    raw(a, "s_waitcnt vmcnt(0)")
    raw(a, "v_cmp_ne_u32 vcc, %s, v6" % sNONCE)
    raw(a, "s_sub_u32 s3, s3, 1")
    raw(a, "s_cbranch_scc1 %s" % Ld)
    raw(a, "s_nop 1")
    raw(a, "s_cmp_lg_u64 vcc, 0")
    raw(a, "s_cbranch_scc1 %s" % Lp)
    raw(a, "%s:" % Ld)
    raw(a, "s_mov_b64 exec, -1")
    raw(a, "%s:" % L)
    a("s_barrier")


def prologue(a):
    a("s_load_dwordx16 s[64:79], s[0:1], 0")
    a("s_load_dwordx4 s[80:83], s[0:1], 64")
    a("s_memrealtime s[4:5]")
    a("s_cmp_ge_u32 s2, 256")
    a("s_cbranch_scc1 Lend")
    a("s_getpc_b64 s[6:7]")
    a("v_and_b32 v1, 63, v0")
    a("v_lshrrev_b32 v6, 6, v0")
    a("v_lshrrev_b32 v2, 4, v1")
    a("v_readfirstlane_b32 %s, v6" % sW)
    a("v_and_b32 v3, 15, v0")
    a("v_bfe_u32 v4, v0, 2, 2")
    a("v_and_b32 v5, 3, v0")
    if STAMPS:
        a("v_mov_b32 v15, 0")
    if "badmap" in OPT:
        a("s_lshr_b32 %s, s2, 5" % sXC)
        a("s_and_b32 %s, s2, 31" % sJ)
    else:
        a("s_and_b32 %s, s2, 7" % sXC)
        a("s_lshr_b32 %s, s2, 3" % sJ)
    a("v_lshlrev_b32 v6, 7, v0")
    a("v_min_u32 v6, CODE_BYTES, v6")
    a("s_cmp_gt_u32 %s, 3" % sW)
    a("s_cbranch_scc1 Lnopf")
    raw(a, "global_load_dword v7, v6, s[6:7]")
    a("Lnopf:")
    sizes = {8: 2048 * 896, 12: 448 * 2688, 16: 448 * 896, 20: 448 * 3584, 24: 448 * 3584,
             28: 1792 * 896, 32: 2048 * 896, 36: WS_SIZE, 40: 256}
    for b, sz in sizes.items():
        a("s_mov_b32 s%d, %d" % (b + 2, sz))
        a("s_mov_b32 s%d, 0x00020000" % (b + 3))
    a("s_lshl_b32 %s, %s, 10" % (sW1024, sW))


def prologue2(a):
    a("s_waitcnt lgkmcnt(0)")
    src = {8: 64, 12: 66, 16: 68, 20: 72, 24: 74, 28: 76, 32: 78, 36: 82, 40: 80}
    for b, s in src.items():
        a("s_mov_b64 s[%d:%d], s[%d:%d]" % (b, b + 1, s, s + 1))


def nonce_publish(a):
    a("s_or_b32 s3, s2, %s" % sW)
    a("s_cmp_lg_u32 s3, 0")
    a("s_cbranch_scc1 Lnononce")
    raw(a, "s_or_b32 s3, s4, 1")
    raw(a, "v_mov_b32 v8, s3")
    raw(a, "v_mov_b32 v9, 0")
    raw(a, "s_mov_b64 exec, 1")
    raw(a, "buffer_store_dword v8, v9, %s, 0 offen sc1" % SDBG)
    raw(a, "s_mov_b64 exec, -1")
    a("Lnononce:")


def nonce_fetch(a, vN):
    L, Lp = a.label("nskip"), a.label("npoll")
    a("v_readfirstlane_b32 %s, %s" % (sNONCE, vN))
    raw(a, "s_nop 1")
    raw(a, "s_cmp_lg_u32 %s, 0" % sNONCE)
    raw(a, "s_cbranch_scc1 %s" % L)
    raw(a, "s_mov_b32 s3, 20000")
    raw(a, "v_mov_b32 v7, 0")
    raw(a, "%s:" % Lp)
    raw(a, "buffer_load_dword v6, v7, %s, 0 offen sc1" % SDBG)
    raw(a, "s_waitcnt vmcnt(0)")
    raw(a, "v_readfirstlane_b32 %s, v6" % sNONCE)
    raw(a, "s_sub_u32 s3, s3, 1")
    raw(a, "s_cbranch_scc1 %s" % L)
    raw(a, "s_nop 1")
    raw(a, "s_cmp_eq_u32 %s, 0" % sNONCE)
    raw(a, "s_cbranch_scc1 %s" % Lp)
    raw(a, "%s:" % L)
    raw(a, "s_nop 3")


def touch(a, jobs):
    Lend = a.label("tend")
    for (w, srd, n) in jobs:
        L = a.label("tn")
        raw(a, "s_cmp_lg_u32 %s, %d" % (sW, w))
        raw(a, "s_cbranch_scc1 %s" % L)
        raw(a, "s_mul_i32 s3, s2, %d" % (n * 128))
        raw(a, "v_min_u32 v6, %d, v1" % (n - 1))
        raw(a, "v_lshlrev_b32 v6, 7, v6")
        raw(a, "buffer_load_dword v7, v6, %s, s3 offen" % srd)
        raw(a, "s_branch %s" % Lend)
        raw(a, "%s:" % L)
    raw(a, "%s:" % Lend)


A_SLOT = 34816
A_XOFF = 24576
A_EX = 4 * A_SLOT
A_CS = A_EX + 20480
R0, R1, R2 = 0, 57344, 139264
B_RB = R2
C_ST = 114688

vWO_DMA, vWC_DMA, vWC_TR = "v176", "v177", 178
WGF, WUF = 80, 136
WOF = 128


def roles_BCD(a):
    a("s_mul_i32 %s, %s, 37" % (sRB, sJ))
    a("s_lshr_b32 %s, %s, 8" % (sRB, sRB))
    a("s_mul_i32 %s, %s, 7" % (sCB, sRB))
    a("s_sub_u32 %s, %s, %s" % (sCB, sJ, sCB))
    a("s_lshr_b32 %s, %s, 1" % (sT, sXC))
    a("s_lshl_b32 %s, %s, 2" % (sT, sT))
    a("s_add_u32 %s, %s, %s" % (sRQ, sRB, sT))
    a("s_and_b32 %s, %s, 1" % (sT, sXC))
    a("s_mul_i32 %s, %s, 7" % (sT, sT))
    a("s_add_u32 %s, %s, %s" % (sFS, sCB, sT))
    a("s_lshl_b32 %s, %s, 2" % (sT, sXC))
    a("s_add_u32 %s, %s, %s" % (sRB, sRB, sT))


def wo_dma(a, i0, i1, vaddr):
    for i in range(i0, i1):
        a("s_add_u32 m0, %s, %d" % (sW1024, R0 + i * 8192))
        a("s_mov_b32 %s, %d" % (sT, i * 64 * 896))
        a("buffer_load_dwordx4 %s, %s, %s offen lds" % (vaddr, SWO, sT), tag="wo")


def wc_dma(a, slabs, vaddr, tag):
    for (s, base) in slabs:
        a("s_add_u32 m0, %s, %d" % (sW1024, base))
        a("s_mov_b32 %s, %d" % (sT, (s % 14) * 114688))
        a("buffer_load_dwordx4 %s, %s, %s offen lds" % (vaddr, SWG if s < 14 else SWU, sT), tag=tag)


def wc_read(slabs, vtr):
    out = []
    for (s, base) in slabs:
        for hf in range(2):
            out.append("ds_read_b64_tr_b16 %s, v%d offset:%d" % (vr(WGF + 4 * s + 2 * hf, 2), vtr + base // 57344, base % 57344 + hf * 1024))
    return out


def phase_A(a):
    sTB, sHP, sT0, sTI, sHD = "s48", "s49", "s50", "s51", "s52"
    sW256 = "s54"
    sHM = "s[58:59]"
    a("; ---------------- phase A ----------------")
    a("s_lshl_b32 %s, %s, 2" % (sTB, sXC))
    a("s_lshr_b32 %s, %s, 3" % (sT, sJ))
    a("s_add_u32 %s, %s, %s" % (sTB, sTB, sT))
    a("s_and_b32 %s, %s, 7" % (sHP, sJ))
    a("s_lshl_b32 %s, %s, 6" % (sT0, sTB))
    a("s_and_b32 %s, %s, 3" % (sTI, sW))
    a("s_lshr_b32 %s, %s, 2" % (sHD, sW))
    a("s_lshl_b32 %s, %s, 8" % (sW256, sW))
    vAX, vAH, vAW = "v16", "v17", "v18"
    a("v_lshrrev_b32 v12, 3, v1")
    a("v_and_b32 v13, 7, v1")
    a("s_and_b32 %s, %s, 1" % (sT, sW))
    a("s_lshl_b32 %s, %s, 2" % (sT, sT))
    a("v_and_b32 v8, 2, v12")
    a("v_or_b32 v8, %s, v8" % sT)
    a("v_xor_b32 v8, v8, v13")
    a("v_min_u32 v8, 6, v8")
    a("s_lshl_b32 %s, %s, 3" % (sT, sW))
    a("v_add_u32 v9, %s, v12" % sT)
    a("v_mul_u32_u24 v9, 2688, v9")
    a("s_mul_i32 %s, %s, 112" % (sT, sHP))
    a("v_lshl_add_u32 v9, v8, 4, v9")
    a("v_add_u32 %s, %s, v9" % (vAW, sT))
    a("s_lshl_b32 %s, %s, 5" % (sT, sHD))
    a("s_add_u32 %s, %s, %s" % (sT, sT, sT0))
    a("s_bfe_u32 %s, %s, 0x10001" % (sT2, sW))
    a("s_add_u32 %s, %s, %s" % (sT, sT, sT2))
    a("s_and_b32 %s, %s, 1" % (sT2, sW))
    a("s_lshl_b32 %s, %s, 4" % (sT2, sT2))
    a("s_add_u32 %s, %s, %s" % (sT, sT, sT2))
    a("v_lshl_add_u32 v9, v12, 1, %s" % sT)
    a("v_mul_u32_u24 v9, 896, v9")
    a("s_lshr_b32 %s, %s, 2" % (sT2, sT2))
    a("v_lshrrev_b32 v8, 1, v12")
    a("v_add_u32 v8, %s, v8" % sT2)
    a("v_xor_b32 v8, v8, v13")
    a("v_lshl_add_u32 %s, v8, 4, v9" % vAX)
    a("s_lshl_b32 %s, %s, 2" % (sT, sTI))
    a("s_add_u32 %s, %s, %s" % (sT, sT, sT0))
    a("s_add_u32 %s, %s, %s" % (sT, sT, sHD))
    a("s_sub_u32 %s, %s, 16" % (sT, sT))
    a("v_and_b32 v8, 1, v12")
    a("v_lshl_add_u32 v9, v8, 1, %s" % sT)
    a("v_max_i32 v9, 0, v9")
    a("v_mul_u32_u24 v9, 896, v9")
    a("v_xor_b32 v8, %s, v13" % sW)
    a("v_lshl_add_u32 %s, v8, 4, v9" % vAH)
    a("s_mov_b32 s59, 0")
    a("s_cmp_eq_u32 %s, 0" % sW)
    a("s_mov_b32 s58, 0xffff")
    a("s_cselect_b32 s58, 0xff00, s58")
    prologue2(a)

    def slot(ch):
        return (ch + 1) % 4

    def dma_groups(ch):
        sb = slot(ch) * A_SLOT
        tg = ("A", ch)
        gs = []
        for m in range(3):
            g = [("s_mov_b32 s64, %d" % (ch * 172032), None)] if m == 0 else []
            g += [("s_add_u32 m0, %s, %d" % (sW1024, sb + m * 8192 - m * 896), None),
                  ("buffer_load_dwordx4 %s, %s, s64 offen offset:%d lds" % (vAW, SWQKV, m * 896), tg)]
            gs.append(g)
        gs.append([("s_add_u32 m0, %s, %d" % (sW1024, sb + A_XOFF - ch * 128), None),
                   ("buffer_load_dwordx4 %s, %s, 0 offen offset:%d lds" % (vAX, SX, ch * 128), tg)])
        gs.append([("s_add_u32 m0, %s, %d" % (sW256, sb + A_XOFF + 8192 - ch * 128), None),
                   ("s_mov_b64 exec, %s" % sHM, None),
                   ("buffer_load_dwordx4 %s, %s, 0 offen offset:%d lds" % (vAH, SX, ch * 128), tg),
                   ("s_mov_b64 exec, -1", None)])
        return gs

    def emit_group(g):
        for (x, tg) in g:
            a(x, tag=tg)

    def dma(ch):
        for g in dma_groups(ch):
            emit_group(g)

    stamp(a, "A start")
    dma(0)
    nonce_publish(a)
    if "notouch" not in OPT:
        touch(a, [(0, SWQKV, 37), (1, SX, 56)])
    a("s_barrier")
    dma(1)
    if "notouch" not in OPT:
        touch(a, [(2, SWO, 13), (3, SWG, 49), (4, SWU, 49), (5, SWD, 49)])
    stamp(a, "A dma issued")
    ONES = 20
    for i in range(4):
        a("v_mov_b32 v%d, 0x3f803f80" % (ONES + i))
    a("v_and_b32 v8, 3, v12")
    a("v_mul_u32_u24 v8, %d, v8" % A_SLOT)
    a("v_lshl_add_u32 v8, v13, 4, v8")
    a("ds_write_b128 v8, %s offset:%d" % (vr(ONES), A_XOFF + 8192))
    aX0, aX1, aXH0, aXH1, aW0, aW1, aWH = range(24, 31)
    a("v_bfe_u32 v8, v3, 1, 3")
    a("v_xor_b32 v8, v8, v2")
    a("v_lshlrev_b32 v8, 4, v8")
    a("v_lshl_add_u32 v8, v3, 7, v8")
    a("v_add_u32 v%d, %d, v8" % (aXH0, A_XOFF + 8192))
    a("v_xor_b32 v%d, 64, v%d" % (aXH1, aXH0))
    a("s_lshl_b32 %s, %s, 11" % (sT, sTI))
    a("s_add_u32 %s, %s, %d" % (sT, sT, A_XOFF))
    a("v_add_u32 v%d, %s, v8" % (aX0, sT))
    a("v_xor_b32 v%d, 64, v%d" % (aX1, aX0))
    a("v_and_b32 v8, 2, v4")
    a("v_and_b32 v9, 1, v2")
    a("v_lshl_or_b32 v8, v9, 2, v8")
    a("v_lshlrev_b32 v8, 4, v8")
    a("v_lshl_add_u32 v9, v2, 3, v4")
    a("v_lshlrev_b32 v9, 7, v9")
    a("s_mul_i32 %s, %s, 56" % (sT, sHD))
    a("v_lshl_add_u32 v10, v5, 3, %s" % sT)
    a("v_xor_b32 v11, v10, v8")
    a("v_add_u32 v%d, v11, v9" % aW0)
    a("v_add_u32 v10, 32, v10")
    a("v_xor_b32 v11, v10, v8")
    a("v_add_u32 v%d, v11, v9" % aW1)
    a("s_and_b32 %s, %s, 1" % (sT, sTI))
    a("s_cmp_eq_u32 %s, 1" % sT)
    a("s_cselect_b64 vcc, -1, 0")
    a("s_lshr_b32 %s, %s, 1" % (sT, sTI))
    a("s_add_u32 %s, %s, 1" % (sT, sT))
    a("s_lshl_b32 %s, %s, 13" % (sT, sT))
    a("v_cndmask_b32 v8, v%d, v%d, vcc" % (aW0, aW1))
    a("v_add_u32 v%d, %s, v8" % (aWH, sT))
    for i in range(7):
        a("v_add_u32 v%d, %d, v%d" % (31 + i, 2 * A_SLOT, 24 + i))
    ACC = 40
    aH, cQ0, cQ1, aRS, aGR, aGH = ACC + 24, ACC + 28, ACC + 32, ACC + 36, ACC + 40, ACC + 44
    BP, BC = 88, 92
    a("v_lshlrev_b32 v8, 2, v2")
    a("v_sub_u32 v9, v3, v8")
    a("s_lshl_b32 %s, %s, 2" % (sT, sTB))
    a("s_add_u32 %s, %s, %s" % (sT, sT, sTI))
    a("s_cmp_lt_u32 %s, 2" % sT)
    a("s_cselect_b32 %s, 0x10000, 0" % sT2)
    a("v_mov_b32 v11, 0x%x" % f2u(-1e30))
    for rr in range(4):
        a("v_subrev_u32 v10, %d, v9" % rr)
        a("v_cmp_gt_u32 vcc, 8, v10")
        a("v_cndmask_b32 v%d, v11, 0, vcc" % (BC + rr))
        a("v_add_u32 v10, 16, v10")
        a("v_add_u32 v10, %s, v10" % sT2)
        a("v_cmp_gt_u32 vcc, 8, v10")
        a("v_cndmask_b32 v%d, v11, 0, vcc" % (BP + rr))
    a("v_cmp_eq_u32 s[60:61], 1, v5")
    a("v_cmp_eq_u32 s[62:63], 2, v5")
    a("v_cmp_eq_u32 s[88:89], 3, v5")
    a("v_cmp_eq_u32 s[90:91], v4, v2")
    a("v_cmp_eq_u32 s[92:93], 0, v2")
    a("v_cmp_gt_u32 s[94:95], 3, v2")
    a("s_lshl_b32 %s, %s, 6" % (sT, sW))
    a("s_add_u32 %s, %s, %d" % (sT, sT, A_CS))
    a("v_lshl_add_u32 v168, v2, 4, %s" % sT)
    a("s_lshl_b32 %s, %s, 8" % (sT, sHD))
    a("s_add_u32 %s, %s, %d" % (sT, sT, A_CS))
    a("v_lshl_add_u32 v169, v2, 4, %s" % sT)
    a("s_lshl_b32 %s, %s, 9" % (sT, sW))
    a("s_add_u32 %s, %s, %d" % (sT, sT, A_EX + 4 * 4096))
    a("v_lshl_add_u32 v170, v1, 3, %s" % sT)
    a("s_lshl_b32 %s, %s, 12" % (sT, sTI))
    a("s_lshl_b32 %s, %s, 11" % (sT2, sHD))
    a("s_add_u32 %s, %s, %s" % (sT, sT, sT2))
    a("s_add_u32 %s, %s, %d" % (sT, sT, A_EX))
    a("v_lshl_add_u32 v171, v1, 3, %s" % sT)
    a("v_lshl_add_u32 v9, v2, 2, v4")
    a("v_lshl_add_u32 v10, v5, 4, v9")
    a("v_lshl_add_u32 v172, v10, 3, %s" % sT)
    a("s_sub_u32 %s, %s, 8192" % (sT, sT))
    a("s_add_u32 %s, %s, %d" % (sT2, sT2, A_EX + 4 * 4096))
    a("s_lshl_b32 s97, %s, 3" % sTI)
    a("s_cmp_lt_u32 %s, 2" % sTI)
    a("s_cselect_b32 s96, 7, 15")
    a("s_cselect_b32 s97, s97, 0")
    a("s_cselect_b32 %s, %s, %s" % (sT, sT2, sT))
    a("v_and_b32 v9, s96, v9")
    a("v_add_u32 v9, s97, v9")
    a("v_lshl_add_u32 v10, v5, 4, v9")
    a("v_lshl_add_u32 v173, v10, 3, %s" % sT)
    a("v_and_b32 v9, s96, v3")
    a("v_add_u32 v9, s97, v9")
    a("v_lshl_add_u32 v10, v2, 4, v9")
    a("v_lshl_add_u32 v174, v10, 3, %s" % sT)
    a("s_lshl_b32 %s, %s, 2" % (sT, sTB))
    a("s_add_u32 %s, %s, %s" % (sT, sT, sTI))
    a("s_lshl_b32 %s, %s, 4" % (sT, sT))
    a("s_lshl_b32 %s, %s, 1" % (sT2, sHP))
    a("s_add_u32 %s, %s, %s" % (sT, sT, sT2))
    a("s_add_u32 %s, %s, %s" % (sT, sT, sHD))
    a("s_lshl_b32 s98, %s, 10" % sT)
    a("s_lshl_b32 %s, %s, 7" % (sT, sTB))
    a("s_lshl_b32 %s, %s, 2" % (sT2, sHP))
    a("s_add_u32 %s, %s, %s" % (sT, sT, sT2))
    a("s_add_u32 s99, %s, %d" % (sT, WS_FA))
    roles_BCD(a)
    a("v_and_b32 v8, 2, v12")
    a("v_lshlrev_b32 v8, 1, v8")
    a("v_xor_b32 v8, v8, v13")
    a("s_lshl_b32 %s, %s, 3" % (sT, sW))
    a("v_add_u32 v9, %s, v12" % sT)
    a("v_mul_u32_u24 v9, 896, v9")
    a("v_lshl_add_u32 v9, v8, 4, v9")
    a("s_lshl_b32 %s, %s, 7" % (sT, sCB))
    a("v_add_u32 %s, %s, v9" % (vWO_DMA, sT))
    a("s_bfe_u32 %s, %s, 0x10001" % (sT, sW))
    a("s_lshl_b32 %s, %s, 3" % (sT, sT))
    a("v_lshl_or_b32 v8, v2, 1, %s" % sT)
    a("v_xor_b32 v8, v8, v3")
    a("s_lshl_b32 %s, %s, 2" % (sT, sW))
    a("v_add_u32 v9, %s, v2" % sT)
    a("v_mul_u32_u24 v9, 3584, v9")
    a("v_lshl_add_u32 v9, v8, 4, v9")
    a("s_lshl_b32 %s, %s, 8" % (sT, sFS))
    a("v_add_u32 %s, %s, v9" % (vWC_DMA, sT))
    FB = [96, 132]

    def reads(n):
        ch, ks = n >> 1, n & 1
        sl = slot(ch)
        ab = 24 if sl < 2 else 31
        ib = (sl & 1) * A_SLOT
        fb = FB[ks]
        out = []
        out.append("ds_read_b128 %s, v%d offset:%d" % (vr(fb + 4), ab + 2 + ks, ib))
        for hf in range(2):
            out.append("ds_read_b64_tr_b16 %s, v%d offset:%d" % (vr(fb + 32 + 2 * hf, 2), ab + 6, ib + ks * 4096 + hf * 512))
        out.append("ds_read_b128 %s, v%d offset:%d" % (vr(fb), ab + ks, ib))
        for t in (2, 3, 4, 5, 0, 1):
            m, dt = t >> 1, t & 1
            for hf in range(2):
                out.append("ds_read_b64_tr_b16 %s, v%d offset:%d" % (vr(fb + 8 + 4 * t + 2 * hf, 2), ab + 4 + dt, ib + m * 8192 + ks * 4096 + hf * 512))
        return out

    def compute(n):
        fb = FB[n & 1]
        z = "0" if n == 0 else None
        out = [mfma(aGH, fb + 4, fb + 4, z), mfma(aH, fb + 32, fb + 4, z), mfma(aGR, fb, fb, z), mfma(aRS, ONES, fb, z)]
        for t in (2, 3, 4, 5):
            out.append(mfma(ACC + 4 * t, fb + 8 + 4 * t, fb, z))
        out += [mfma(ACC, fb + 8, fb, z), mfma(cQ0, fb + 8, ONES, z), mfma(ACC + 4, fb + 12, fb, z), mfma(cQ1, fb + 12, ONES, z)]
        return out

    def wo_groups(i0, i1):
        return [[("s_add_u32 m0, %s, %d" % (sW1024, R0 + i * 8192), None),
                 ("s_mov_b32 s64, %d" % (i * 64 * 896), None),
                 ("buffer_load_dwordx4 %s, %s, s64 offen lds" % (vWO_DMA, SWO), "wo")] for i in range(i0, i1)]

    a.wait_tag(("A", 0), lg0=True)
    a("s_barrier")
    stamp(a, "A ch0 landed")
    for x in reads(0):
        a(x)
    pend = dma_groups(2)
    for n in range(14):
        rd = []
        if n + 1 < 14:
            if (n + 1) % 2 == 0:
                ch = (n + 1) // 2
                for g in pend:
                    emit_group(g)
                pend = []
                a.wait_tag(("A", ch))
                a("s_barrier")
                if ch == 6:
                    stamp(a, "A ch6 landed")
                if ch <= 4:
                    pend = dma_groups(ch + 2)
                if ch == 4:
                    pend.append([("v_mov_b32 v8, 0", None), ("buffer_load_dword v175, v8, %s, 0 offen sc1" % SDBG, None)])
                if ch == 5:
                    pend = wo_groups(0, 4)
                if ch == 6:
                    pend = wo_groups(4, 7)
            rd = reads(n + 1)
        for i, x in enumerate(compute(n)):
            a(x)
            for _ in range(2 if i < 4 else 1):
                if rd:
                    a(rd.pop(0))
            if pend and i % ASPACE == ASPACE - 1:
                emit_group(pend.pop(0))
        for x in rd:
            a(x)
    for g in pend:
        emit_group(g)

    stamp(a, "A loop done")
    T = 96
    for rr in range(4):
        a("v_mov_b32_dpp v%d, v%d row_newbcast:0 row_mask:0xf bank_mask:0xf" % (T + rr, aH + rr))
    a("ds_write_b128 v168, %s" % vr(T))
    for (acc, d) in ((aGH, "v9"), (aGR, "v8")):
        a("v_cndmask_b32 %s, v%d, v%d, s[60:61]" % (d, acc, acc + 1))
        a("v_cndmask_b32 %s, %s, v%d, s[62:63]" % (d, d, acc + 2))
        a("v_cndmask_b32 %s, %s, v%d, s[88:89]" % (d, d, acc + 3))
        a("v_cndmask_b32 %s, 0, %s, s[90:91]" % (d, d))
    a("v_cndmask_b32 v10, 0, v%d, s[92:93]" % aGH)
    a("s_waitcnt lgkmcnt(0)")
    a("s_barrier")
    CS = T + 4
    for t in range(4):
        a("ds_read_b128 %s, v169 offset:%d" % (vr(CS + 4 * t), 64 * t))
    xg_reduce_multi(a, "v_add_f32", ["v8", "v9", "v10"], ["v11", "v12", "v13"])
    a("s_mov_b32 %s, 0x%x" % (sT, f2u(1.0 / 448)))
    a("v_mov_b32 v12, 0x%x" % f2u(1e-5))
    SO, SH = 116, 118
    a("v_mul_f32 v%d, -%s, v10" % (SH, sT))
    a("v_mul_f32 v%d, -%s, v%d" % (SO, sT, aRS))
    a("v_fma_f32 v9, v9, %s, v12" % sT)
    a("v_fma_f32 v8, v8, %s, v12" % sT)
    a("v_fma_f32 v9, -v%d, v%d, v9" % (SH, SH))
    a("v_fma_f32 v8, -v%d, v%d, v8" % (SO, SO))
    a("v_max_f32 v9, v9, v12")
    a("v_max_f32 v8, v8, v12")
    a("v_rsq_f32 v%d, v9" % (SH + 1))
    a("v_rsq_f32 v%d, v8" % (SO + 1))

    def center(acc, cs, st):
        for rr in range(4):
            a("v_fmac_f32 v%d, v%d, v%d" % (acc + rr, st, cs + rr))

    def scale(acc, st):
        for rr in range(4):
            a("v_mul_f32 v%d, v%d, v%d" % (acc + rr, st + 1, acc + rr))

    def pack(dst, acc):
        a("v_cvt_pk_bf16_f32 v%d, v%d, v%d" % (dst, acc, acc + 1))
        a("v_cvt_pk_bf16_f32 v%d, v%d, v%d" % (dst + 1, acc + 2, acc + 3))

    center(aH, T, SH)
    for t in range(4):
        center(ACC + 8 + 4 * t, CS + 4 * t, SO)
    scale(aH, SH)
    pack(T, aH)
    a("ds_write_b64 v170, %s" % vr(T, 2))
    PK = 120
    for t in range(4):
        scale(ACC + 8 + 4 * t, SO)
        pack(PK + 2 * t, ACC + 8 + 4 * t)
        a("ds_write_b64 v171, %s offset:%d" % (vr(PK + 2 * t, 2), 512 * t))
    QP = 100
    center(ACC, cQ0, SO)
    center(ACC + 4, cQ1, SO)
    a("s_waitcnt lgkmcnt(0)")
    a("s_barrier")
    KP, V0, V1 = 104, 108, 112
    a("ds_read_b64 %s, v174" % vr(KP, 2))
    a("ds_read_b64 %s, v174 offset:512" % vr(KP + 2, 2))
    a("ds_read_b64_tr_b16 %s, v173 offset:1024" % vr(V0, 2))
    a("ds_read_b64_tr_b16 %s, v172 offset:1024" % vr(V0 + 2, 2))
    a("ds_read_b64_tr_b16 %s, v173 offset:1536" % vr(V1, 2))
    a("ds_read_b64_tr_b16 %s, v172 offset:1536" % vr(V1 + 2, 2))
    pack(QP, ACC)
    pack(QP + 2, ACC + 4)
    a("v_cndmask_b32 v%d, 0, v%d, s[94:95]" % (QP + 2, QP + 2))
    a("v_cndmask_b32 v%d, 0, v%d, s[94:95]" % (QP + 3, QP + 3))
    a(mfma(BC, PK, QP))
    a(mfma(BP, KP, QP))
    a("v_mul_f32 v13, 0x%x, v%d" % (f2u(28 ** -0.5 * LOG2E), SO + 1))
    a("v_max3_f32 v8, v%d, v%d, v%d" % (BC, BC + 1, BC + 2))
    a("v_max3_f32 v9, v%d, v%d, v%d" % (BC + 3, BP, BP + 1))
    a("v_max3_f32 v8, v8, v%d, v%d" % (BP + 2, BP + 3))
    a("v_max_f32 v8, v8, v9")
    xg_reduce_multi(a, "v_max_f32", ["v8"], ["v9"])
    a("v_mul_f32 v8, v13, v8")
    for i in range(8):
        a("v_fma_f32 v%d, v%d, v13, -v8" % (BP + i, BP + i))
    for i in range(8):
        a("v_exp_f32 v%d, v%d" % (BP + i, BP + i))
    a("v_add_f32 v9, v%d, v%d" % (BP, BP + 1))
    a("v_add_f32 v10, v%d, v%d" % (BP + 2, BP + 3))
    a("v_add_f32 v11, v%d, v%d" % (BP + 4, BP + 5))
    a("v_add_f32 v12, v%d, v%d" % (BP + 6, BP + 7))
    a("v_add_f32 v9, v9, v10")
    a("v_add_f32 v11, v11, v12")
    a("v_add_f32 v9, v9, v11")
    xg_reduce_multi(a, "v_add_f32", ["v9"], ["v10"])
    a("v_rcp_f32 v9, v9")
    for i in range(8):
        a("v_mul_f32 v%d, v9, v%d" % (BP + i, BP + i))
    P = 96
    for i in range(4):
        a("v_cvt_pk_bf16_f32 v%d, v%d, v%d" % (P + i, BP + 2 * i, BP + 2 * i + 1))
    O0, O1 = 40, 44
    a(mfma(O0, V0, P, "0"))
    a(mfma(O1, V1, P, "0"))
    a("v_lshlrev_b32 v14, 4, v1")
    nonce_fetch(a, "v175")
    OS = 124
    pack(OS, O0)
    pack(OS + 2, O1)
    a("v_cndmask_b32 v%d, 0, v%d, s[94:95]" % (OS + 2, OS + 2))
    a("v_cndmask_b32 v%d, 0, v%d, s[94:95]" % (OS + 3, OS + 3))
    a("buffer_store_dwordx4 %s, v14, %s, s98 offen%s" % (vr(OS), SWS, SC), tag="ost")
    stamp(a, "A o stored")


G1 = [(s, R1 + 8192 * s) for s in range(10)]
G2 = [(10 + i, R0 + 8192 * i) for i in range(7)]
G3 = [(17 + i, R1 + 8192 * i) for i in range(10)] + [(27, R2 + 16384)]


def phase_B(a):
    sTT, sKH, sTAU, sU = "s50", "s51", "s52", "s54"
    a("; ---------------- A->B ----------------")
    a("s_cmp_lt_u32 %s, 28" % sJ)
    a("s_cbranch_scc1 LgoB")
    raw(a, "s_waitcnt vmcnt(0)")
    raw(a, "s_barrier")
    publish(a, "s99")
    raw(a, "s_branch Lfin")
    a("LgoB:")
    a("v_mov_b32 v16, %s" % vWC_DMA)
    wc_dma(a, G1[:4], "v16", "g1")
    a("s_and_b32 %s, %s, 3" % (sTT, sW))
    a("s_lshr_b32 %s, %s, 2" % (sKH, sW))
    a("s_lshl_b32 %s, %s, 2" % (sTAU, sRB))
    a("s_add_u32 %s, %s, %s" % (sTAU, sTAU, sTT))
    a("v_lshl_add_u32 v8, v2, 2, v4")
    a("s_mul_i32 %s, %s, 224" % (sT, sKH))
    a("v_add_u32 v8, %s, v8" % sT)
    a("v_lshlrev_b32 v8, 7, v8")
    a("v_and_b32 v9, 2, v4")
    a("v_lshlrev_b32 v9, 1, v9")
    a("s_lshl_b32 %s, %s, 2" % (sT, sKH))
    a("v_or_b32 v10, %s, v5" % sT)
    a("v_xor_b32 v10, v10, v9")
    a("v_lshl_add_u32 v24, v10, 4, v8")
    a("v_xor_b32 v25, 64, v24")
    a("v_mov_b32 v9, 2048")
    a("v_cndmask_b32 v9, 0, v9, s[94:95]")
    a("v_add_u32 v26, v24, v9")
    a("v_add_u32 v27, v25, v9")
    a("s_lshr_b32 %s, %s, 1" % (sT, sTAU))
    a("s_lshl_b32 %s, %s, 5" % (sT, sT))
    a("s_and_b32 %s, %s, 1" % (sT2, sTAU))
    a("s_add_u32 %s, %s, %s" % (sT, sT, sT2))
    a("v_lshl_add_u32 v8, v3, 1, %s" % sT)
    a("v_mul_u32_u24 v8, 896, v8")
    a("v_lshl_add_u32 v8, v2, 4, v8")
    a("s_lshl_b32 %s, %s, 1" % (sU, sCB))
    a("s_add_u32 %s, %s, %s" % (sU, sU, sKH))
    a("s_lshl_b32 %s, %s, 6" % (sT3, sU))
    a.wait_tag("ost")
    a("s_barrier")
    publish(a, "s99")
    stamp(a, "A flag")
    XR = 20
    a("buffer_load_dwordx4 %s, v8, %s, %s offen" % (vr(XR), SX, sT3))
    wc_dma(a, G1[4:], "v16", "g1")
    for hh in range(8):
        for t in range(4):
            off = R0 + hh * 3584 + (t & 1) * 8
            a("ds_read_b64_tr_b16 %s, v%d offset:%d" % (vr(WOF + 16 * hh + 4 * t, 2), 24 + (t >> 1), off))
            a("ds_read_b64_tr_b16 %s, v%d offset:%d" % (vr(WOF + 16 * hh + 4 * t + 2, 2), 26 + (t >> 1), off))
    a("v_and_b32 v8, 1, v2")
    a("v_lshl_or_b32 v8, v8, 2, v4")
    a("v_lshlrev_b32 v8, 1, v8")
    a("v_lshrrev_b32 v9, 1, v5")
    a("s_lshl_b32 %s, %s, 1" % (sT, sW))
    a("v_add_u32 v9, %s, v9" % sT)
    a("v_xor_b32 v8, v8, v9")
    a("v_lshl_add_u32 v9, v2, 3, v4")
    a("v_lshlrev_b32 v9, 8, v9")
    a("v_lshl_add_u32 v9, v8, 4, v9")
    a("v_and_b32 v8, 1, v5")
    a("v_lshl_add_u32 v17, v8, 3, v9")
    a("v_add_u32 v18, 57344, v17")
    a("v_add_u32 v19, 114688, v17")
    OF, ACC = 32, 64
    for i in range(4):
        a("v_lshlrev_b32 v%d, 16, v%d" % (ACC + 2 * i, XR + i))
        a("v_and_b32 v%d, 0xffff0000, v%d" % (ACC + 2 * i + 1, XR + i))
    a("s_lshl_b32 %s, %s, 4" % (sT2, sTAU))
    a("s_lshl_b32 %s, %s, 3" % (sT3, sKH))
    a("s_add_u32 %s, %s, %s" % (sT2, sT2, sT3))
    a("s_lshl_b32 %s, %s, 10" % (sT2, sT2))
    a("s_add_u32 %s, %s, 4096" % (sT3, sT2))
    a("s_lshl_b32 %s, %s, 11" % (sT, sW))
    a("s_add_u32 %s, %s, %d" % (sT, sT, B_RB))
    a("v_add_u32 v12, %s, v14" % sT)
    a("s_xor_b32 %s, %s, 4" % (sT, sW))
    a("s_lshl_b32 %s, %s, 11" % (sT, sT))
    a("s_add_u32 %s, %s, %d" % (sT, sT, B_RB))
    a("v_add_u32 v13, %s, v14" % sT)
    a("s_mul_i32 s58, %s, 14" % sTAU)
    a("s_add_u32 s58, s58, %s" % sU)
    a("s_lshl_b32 s59, s58, 7")
    a("s_add_u32 s59, s59, %d" % WS_ST)
    a("s_lshl_b32 s58, s58, 10")
    a("s_add_u32 s58, s58, %d" % WS_H)
    a("s_lshl_b32 s60, %s, 7" % sRB)
    a("s_add_u32 s60, s60, %d" % WS_FA)
    a("s_lshr_b32 s61, %s, 1" % sRB)
    a("s_lshl_b32 s61, s61, 7")
    a("s_and_b32 %s, %s, 1" % (sT, sRB))
    a("s_mul_i32 %s, %s, 28" % (sT, sT))
    a("s_add_u32 s61, s61, %s" % sT)
    a("s_lshl_b32 %s, %s, 2" % (sT, sCB))
    a("s_add_u32 s61, s61, %s" % sT)
    a("s_add_u32 s61, s61, %d" % WS_FB)
    a("v_lshlrev_b32 v11, 3, v3")
    a.wait_tag("g1", lg0=True)
    stamp(a, "B pre-poll")
    poll(a, "s60", 0xff, 0)
    stamp(a, "B go")
    for hh in range(8):
        a("buffer_load_dwordx4 %s, v14, %s, %s offen offset:%d%s" % (vr(OF + 4 * hh), SWS, sT2 if hh < 4 else sT3, (hh & 3) * 1024, SC))
    a("s_barrier")
    for x in wc_read(G1, 17):
        a(x)
    for hh in range(8):
        if hh < 7:
            wc_dma(a, G2[hh:hh + 1], "v16", "g2")
        for t in (2, 3, 0, 1):
            a(mfma(ACC + 4 * t, WOF + 16 * hh + 4 * t, OF + 4 * hh, "0" if (hh == 0 and t >= 2) else None))
    a("ds_write_b128 v12, %s" % vr(ACC + 8))
    a("ds_write_b128 v12, %s offset:1024" % vr(ACC + 12))
    a("s_waitcnt lgkmcnt(0)")
    a("s_barrier")
    a("ds_read_b128 %s, v13" % vr(ACC + 8))
    a("ds_read_b128 %s, v13 offset:1024" % vr(ACC + 12))
    a("v_mov_b32 v8, 0")
    a("v_mov_b32 v9, 0")
    a("v_mov_b32 v6, 0")
    a("v_mov_b32 v7, 0")
    a("v_mov_b32 v10, 0x3f803f80")
    for i in range(8):
        a("v_add_f32 v%d, v%d, v%d" % (ACC + i, ACC + i, ACC + 8 + i))
    HP = 28
    for i in range(4):
        a("v_cvt_pk_bf16_f32 v%d, v%d, v%d" % (HP + i, ACC + 2 * i, ACC + 2 * i + 1))
    a("buffer_store_dwordx4 %s, v14, %s, s58 offen%s" % (vr(HP), SWS, SC))
    for i in range(4):
        a("v_dot2c_f32_bf16 v%d, v%d, v10" % (8 if i & 1 else 6, HP + i))
        a("v_dot2c_f32_bf16 v%d, v%d, v%d" % (9 if i & 1 else 7, HP + i, HP + i))
    a("v_add_f32 v8, v8, v6")
    a("v_add_f32 v9, v9, v7")
    xg_reduce_multi(a, "v_add_f32", ["v8", "v9"], ["v6", "v7"])
    a("s_mov_b64 exec, 0xffff")
    a("buffer_store_dwordx2 v[8:9], v11, %s, s59 offen%s" % (SWS, SC), tag="hst")
    a("s_mov_b64 exec, -1")
    stamp(a, "B h stored")


def phase_C(a):
    a("; ---------------- B->C ----------------")
    wc_dma(a, G3[:4], "v16", "g3")
    a.wait_tag("hst")
    a("s_barrier")
    publish(a, "s61")
    stamp(a, "B flag")
    wc_dma(a, G3[4:], "v16", "g3")
    for x in wc_read(G2, 17):
        a(x)
    ONES, CSG, CSU = 20, 24, 28
    for i in range(4):
        a("v_mov_b32 v%d, 0x3f803f80" % (ONES + i))
    for u in range(14):
        a(mfma(CSG, WGF + 4 * u, ONES, "0" if u == 0 else None))
    a("s_mul_i32 %s, %s, 114688" % (sT2, sRQ))
    a("s_add_u32 %s, %s, %d" % (sT2, sT2, WS_H))
    a("s_mul_i32 s62, %s, 3584" % sW)
    a("v_add_u32 v12, s62, v14")
    a("s_lshl_b32 %s, %s, 3" % (sT3, sRQ))
    a("s_add_u32 %s, %s, %s" % (sT3, sT3, sW))
    a("s_mul_i32 %s, %s, 1792" % (sT3, sT3))
    a("s_add_u32 %s, %s, %d" % (sT3, sT3, WS_ST))
    a("v_lshlrev_b32 v9, 3, v1")
    a("v_mov_b32 v38, 0")
    a("v_mov_b32 v39, 0")
    a("v_and_b32 v8, 1, v2")
    a("v_mul_u32_u24 v8, 57344, v8")
    a("v_lshrrev_b32 v10, 1, v2")
    a("s_and_b32 %s, %s, 1" % (sT, sW))
    a("s_lshl_b32 %s, %s, 1" % (sT, sT))
    a("v_add_u32 v10, %s, v10" % sT)
    a("v_lshl_add_u32 v8, v10, 8, v8")
    a("v_lshl_add_u32 v13, v3, 4, v8")
    a("s_mul_i32 s58, %s, 448" % sRQ)
    a("s_lshl_b32 %s, %s, 2" % (sT, sFS))
    a("s_add_u32 s58, s58, %s" % sT)
    a("s_lshr_b32 %s, %s, 1" % (sT, sW))
    a("s_add_u32 s58, s58, %s" % sT)
    a("s_lshl_b32 s58, s58, 10")
    a("s_add_u32 s58, s58, %d" % WS_HH)
    a("s_mov_b32 s59, 0x%x" % f2u(-LOG2E))
    a("s_lshl_b32 s60, %s, 7" % sRQ)
    a("s_add_u32 s60, s60, %d" % WS_FB)
    a("s_lshl_b32 s61, %s, 8" % sRQ)
    a("s_lshl_b32 %s, %s, 2" % (sT, sFS))
    a("s_add_u32 s61, s61, %s" % sT)
    a("s_add_u32 s61, s61, %d" % WS_FC)
    a.wait_tag("g3", lg0=True)
    a("s_barrier")
    for x in wc_read(G3, 17):
        a(x)
    a("s_waitcnt lgkmcnt(0)")
    stamp(a, "C pre-poll")
    poll(a, "s60", 0x3fff, 0)
    stamp(a, "C go")
    def h_groups(tp):
        tg = ("h", tp)
        gs = []
        for i in range(4):
            g = []
            if i == 0:
                g.append(("s_add_u32 s64, %s, %d" % (sT2, tp * 28672), None))
            g.append(("s_add_u32 m0, s62, %d" % (tp * 28672), None))
            if i == 3:
                g.append(("s_mov_b32 exec_hi, 0", None))
            g.append(("buffer_load_dwordx4 v12, %s, s64 offen offset:%d%s lds" % (SWS, i * 1024, SC), tg))
            if i == 3:
                g.append(("s_mov_b64 exec, -1", None))
            gs.append(g)
        return gs

    def emit_group(g):
        for (x, tg) in g:
            a(x, tag=tg)

    for g in h_groups(0):
        emit_group(g)
    a("s_mov_b32 exec_hi, 0")
    a("buffer_load_dwordx2 v[38:39], v9, %s, %s offen offset:1536%s" % (SWS, sT3, SC))
    a("s_mov_b64 exec, -1")
    for i in range(3):
        a("buffer_load_dwordx2 v[%d:%d], v9, %s, %s offen offset:%d%s" % (32 + 2 * i, 33 + 2 * i, SWS, sT3, 512 * i, SC))
    a("s_barrier")
    for g in h_groups(1):
        emit_group(g)
    hpend = h_groups(2) + h_groups(3)
    for u in range(14):
        a(mfma(CSU, WUF + 4 * u, ONES, "0" if u == 0 else None))
    a("v_add_u32 v16, 57344, v14")
    a("v_lshlrev_b32 v19, 4, v3")
    a("v_add_u32 v19, %d, v19" % C_ST)
    a("s_lshl_b32 %s, %s, 8" % (sT, sW))
    a("v_add_u32 v9, %s, v19" % sT)
    for (d, x) in ((32, 34), (33, 35), (36, 38), (37, 39), (32, 36), (33, 37)):
        a("v_add_f32 v%d, v%d, v%d" % (d, d, x))
    xg_reduce_multi(a, "v_add_f32", ["v32", "v33"], ["v10", "v11"])
    a("s_mov_b32 %s, 0x%x" % (sT, f2u(1.0 / 448)))
    a("v_mov_b32 v10, 0x%x" % f2u(1e-5))
    a("v_mul_f32 v32, -%s, v32" % sT)
    a("v_fma_f32 v33, v33, %s, v10" % sT)
    a("v_fma_f32 v33, -v32, v32, v33")
    a("v_max_f32 v33, v33, v10")
    a("v_sqrt_f32 v34, v33")
    a("v_rsq_f32 v33, v33")
    a("v_mul_f32 v33, s59, v33")
    a("ds_write_b128 v9, v[32:35]")
    AF, NR = 192, 8
    ACCS = [40, 56]
    STS = [32, 72]
    PKD = [224, 228]

    def rd_list(tp):
        rd = []
        for u in range(14):
            for t in range(2):
                off = (tp * 2 + t) * 14336 + u * 1024
                k = tp * 28 + u * 2 + t
                rd.append("ds_read_b128 %s, v%d offset:%d" % (vr(AF + 4 * (k % NR)), 14 if off < 57344 else 16, off % 57344))
        return rd

    def epi(tp):
        acc, st, pk = ACCS[tp & 1], STS[tp & 1], PKD[tp & 1]
        o = []
        for t in range(2):
            g, u_, s = acc + 8 * t, acc + 8 * t + 4, st + 4 * t
            for rr in range(4):
                o.append("v_fmac_f32 v%d, v%d, v%d" % (g + rr, s, CSG + rr))
            for rr in range(4):
                o.append("v_mul_f32 v%d, v%d, v%d" % (g + rr, s + 1, g + rr))
            for rr in range(4):
                o.append("v_exp_f32 v%d, v%d" % (g + rr, g + rr))
            for rr in range(4):
                o.append("v_fmac_f32 v%d, v%d, v%d" % (u_ + rr, s, CSU + rr))
            for rr in range(4):
                o.append("v_fma_f32 v%d, v%d, v%d, v%d" % (g + rr, g + rr, s + 2, s + 2))
            for rr in range(4):
                o.append("v_rcp_f32 v%d, v%d" % (g + rr, g + rr))
            for rr in range(4):
                o.append("v_mul_f32 v%d, v%d, v%d" % (g + rr, g + rr, u_ + rr))
            o.append("v_cvt_pk_bf16_f32 v%d, v%d, v%d" % (pk + 2 * t, g, g + 1))
            o.append("v_cvt_pk_bf16_f32 v%d, v%d, v%d" % (pk + 2 * t + 1, g + 2, g + 3))
        o.append("v_permlane16_swap_b32 v%d, v%d" % (pk, pk + 2))
        o.append("v_permlane16_swap_b32 v%d, v%d" % (pk + 1, pk + 3))
        o.append(("buffer_store_dwordx4 %s, v13, %s, s58 offen%s" % (vr(pk), SWS, SC), ("hh", tp)))
        o.append("s_add_u32 s58, s58, %d" % (2 * 57344))
        return o

    def emit(x):
        if isinstance(x, tuple):
            a(x[0], tag=x[1])
        else:
            a(x)

    a.wait_tag(("h", 0), lg0=True)
    a("s_barrier")
    stamp(a, "C h0 landed")
    allrd = [x for tp in range(4) for x in rd_list(tp)]
    nxt = 0
    LA = NR - 2
    for tp in range(4):
        acc = ACCS[tp & 1]
        ep = epi(tp - 1) if tp else []
        a("ds_read_b128 %s, v19 offset:%d" % (vr(STS[tp & 1]), tp * 512))
        a("ds_read_b128 %s, v19 offset:%d" % (vr(STS[tp & 1] + 4), tp * 512 + 256))
        for u in range(14):
            for t in range(2):
                k = tp * 28 + u * 2 + t
                if k + LA == 28:
                    a.wait_tag(("h", 1))
                    a("s_barrier")
                if k + LA == 56:
                    a.wait_tag(("h", 3))
                    a("s_barrier")
                if hpend and k % 3 == 1:
                    emit_group(hpend.pop(0))
                while nxt < len(allrd) and nxt <= k + LA - 1:
                    a(allrd[nxt])
                    nxt += 1
                f = AF + 4 * (k % NR)
                z = "0" if u == 0 else None
                a(mfma(acc + 8 * t, WGF + 4 * u, f, z))
                if ep and u >= 1:
                    emit(ep.pop(0))
                a(mfma(acc + 8 * t + 4, WUF + 4 * u, f, z))
                if ep and u >= 1:
                    emit(ep.pop(0))
                    if ep and len(ep) > 2 * (27 - 2 * u - t):
                        emit(ep.pop(0))
        for x in ep:
            emit(x)
    stamp(a, "C mfma done")
    return epi, emit


def phase_D(a, epi, emit):
    a("; ---------------- C->D ----------------")
    a("v_lshrrev_b32 v6, 3, v1")
    a("v_and_b32 v7, 7, v1")
    a("v_and_b32 v8, 6, v6")
    a("v_xor_b32 v8, v8, v7")
    a("v_and_b32 v9, 3, v6")
    a("v_lshrrev_b32 v10, 2, v6")
    a("v_lshl_add_u32 v9, v10, 3, v9")
    a("s_mul_i32 %s, %s, 224" % (sT, sW))
    a("v_add_u32 v9, %s, v9" % sT)
    a("v_mul_u32_u24 v9, 896, v9")
    a("v_lshl_add_u32 v9, v8, 4, v9")
    a("s_lshl_b32 %s, %s, 7" % (sT, sCB))
    a("v_add_u32 v12, %s, v9" % sT)
    a("s_mul_i32 s62, %s, 20480" % sW)
    a("s_barrier")

    def wd_dma(u0, u1, base):
        for u in range(u0, u1):
            for i4 in range(4):
                i = 4 * u + i4
                a("s_add_u32 m0, s62, %d" % (base + (i - 4 * u0) * 1024))
                a("s_mov_b32 %s, %d" % (sT, (16 * (i >> 1) + 4 * (i & 1)) * 896))
                a("buffer_load_dwordx4 v12, %s, %s offen lds" % (SWD, sT), tag=("wd", u))

    wd_dma(0, 1, 0)
    for x in epi(3):
        emit(x)
    stamp(a, "C last store")
    wd_dma(1, 2, 4096)
    a.wait_tag(("hh", 3))
    a("s_barrier")
    L = a.label("pubc")
    raw(a, "s_cmp_lg_u32 %s, 0" % sW)
    raw(a, "s_cbranch_scc1 %s" % L)
    raw(a, "s_mov_b64 exec, 15")
    raw(a, "v_mov_b32 v10, %s" % sNONCE)
    raw(a, "v_lshlrev_b32 v11, 6, v1")
    raw(a, "buffer_store_dword v10, v11, %s, s61 offen sc1" % SWS)
    raw(a, "s_mov_b64 exec, -1")
    raw(a, "%s:" % L)
    stamp(a, "C flag")
    wd_dma(2, 5, 8192)
    a("v_and_b32 v8, 1, v2")
    a("v_lshl_add_u32 v8, v8, 2, v4")
    a("v_and_b32 v9, 6, v8")
    a("v_lshrrev_b32 v10, 1, v5")
    a("v_xor_b32 v9, v9, v10")
    a("v_lshrrev_b32 v10, 1, v2")
    a("v_lshl_add_u32 v8, v10, 4, v8")
    a("v_lshlrev_b32 v8, 7, v8")
    a("v_lshl_add_u32 v8, v9, 4, v8")
    a("v_and_b32 v9, 1, v5")
    a("v_lshl_add_u32 v8, v9, 3, v8")
    a("v_add_u32 v240, s62, v8")
    for t in range(1, 4):
        a("v_xor_b32 v%d, %d, v240" % (240 + t, 32 * t))
    WF = 16

    def wd_read(u, base):
        a.wait_tag(("wd", u))
        for t in range(4):
            for hf in range(2):
                a("ds_read_b64_tr_b16 %s, v%d offset:%d" % (vr(WF + 16 * u + 4 * t + 2 * hf, 2), 240 + t, base + hf * 1024))

    wd_read(0, 0)
    wd_read(1, 4096)
    a("s_waitcnt lgkmcnt(0)")
    wd_dma(5, 7, 0)
    a("s_lshr_b32 %s, %s, 1" % (sT, sRB))
    a("s_lshl_b32 s60, %s, 8" % sT)
    a("s_add_u32 s60, s60, %d" % WS_FC)
    a("s_lshl_b32 %s, %s, 3" % (sT, sT))
    a("s_and_b32 %s, %s, 1" % (sT2, sRB))
    a("s_add_u32 s63, %s, %s" % (sT, sT2))
    a("s_mul_i32 %s, s63, 56" % sT)
    a("s_mul_i32 %s, %s, 7" % (sT2, sW))
    a("s_add_u32 %s, %s, %s" % (sT, sT, sT2))
    a("s_lshl_b32 %s, %s, 10" % (sT, sT))
    a("s_add_u32 s58, %s, %d" % (sT, WS_HH))
    a("v_add_u32 v13, 4096, v14")
    for u in range(2, 5):
        wd_read(u, 8192 + (u - 2) * 4096)
    stamp(a, "D pre-poll")
    poll(a, "s60", 0x3fff3fff, 0x3fff3fff)
    stamp(a, "D go")
    AF, ACC = 128, 240
    DLA = 8

    def hh_load(k):
        rt, i = k // 7, k % 7
        a("buffer_load_dwordx4 %s, v%d, %s, s58 offen offset:%d%s" % (vr(AF + 4 * k), 14 if i < 4 else 13, SWS, (i & 3) * 1024, SC))
        if i == 6:
            a("s_add_u32 s58, s58, %d" % (2 * 57344))

    for k in range(DLA):
        hh_load(k)
        if k == DLA // 2 - 1:
            a("s_barrier")
    wd_read(5, 0)
    wd_read(6, 4096)
    a("v_lshrrev_b32 v6, 1, v2")
    a("v_lshl_add_u32 v6, v6, 1, v3")
    a("s_lshl_b32 %s, %s, 12" % (sT, sW))
    a("v_lshl_add_u32 v7, v2, 8, %s" % sT)
    for t in range(4):
        a("v_add_u32 v12, %d, v6" % (4 * t))
        a("v_and_b32 v12, 15, v12")
        a("v_lshl_add_u32 v%d, v12, 4, v7" % (8 + t))
    a("s_waitcnt lgkmcnt(0)")
    a("s_barrier")
    for rt in range(4):
        for i in range(7):
            for t in range(4):
                a(mfma(ACC + 4 * t, WF + 16 * i + 4 * t, AF + 28 * rt + 4 * i, "0" if i == 0 else None))
            if rt * 7 + i + DLA < 28:
                hh_load(rt * 7 + i + DLA)
        if rt == 2:
            a("v_lshrrev_b32 v6, 3, v1")
            a("v_and_b32 v7, 7, v1")
            a("s_lshr_b32 %s, %s, 1" % (sT, sW))
            a("s_lshl_b32 %s, %s, 1" % (sT, sT))
            a("s_add_u32 s63, s63, %s" % sT)
            a("s_and_b32 %s, %s, 1" % (sT2, sW))
            a("s_lshl_b32 %s, %s, 3" % (sT2, sT2))
            a("v_add_u32 v6, %s, v6" % sT2)
            a("v_lshlrev_b32 v12, 8, v7")
            a("v_lshl_add_u32 v12, v6, 4, v12")
            a("s_mul_i32 %s, s63, 14" % sT)
            a("s_lshl_b32 %s, %s, 1" % (sT2, sCB))
            a("s_add_u32 %s, %s, %s" % (sT, sT, sT2))
            a("s_lshl_b32 %s, %s, 10" % (sT, sT))
            a("s_add_u32 %s, %s, %d" % (sT, sT, WS_H))
            a("buffer_load_dwordx4 %s, v12, %s, %s offen%s" % (vr(128), SWS, sT, SC))
        if rt == 2:
            for t in range(4):
                a("v_add_u32 v%d, 65536, v%d" % (8 + t, 8 + t))
        for t in range(4):
            a("ds_write_b128 v%d, %s offset:%d" % (8 + t, vr(ACC + 4 * t), (rt & 1) * 32768 + t * 1024))
    stamp(a, "D mfma done")
    a("v_lshl_add_u32 v10, v7, 1, v6")
    a("v_and_b32 v10, 15, v10")
    a("v_lshlrev_b32 v10, 4, v10")
    a("v_lshl_add_u32 v10, v7, 9, v10")
    a("s_lshr_b32 %s, %s, 1" % (sT, sW))
    a("s_lshl_b32 %s, %s, 15" % (sT, sT))
    a("v_add_u32 v10, %s, v10" % sT)
    a("s_lshr_b32 %s, s63, 1" % sT)
    a("s_lshl_b32 %s, %s, 5" % (sT, sT))
    a("s_and_b32 %s, s63, 1" % sT2)
    a("s_add_u32 %s, %s, %s" % (sT, sT, sT2))
    a("v_lshl_add_u32 v11, v6, 1, %s" % sT)
    a("v_mul_u32_u24 v11, 896, v11")
    a("v_lshl_add_u32 v11, v7, 4, v11")
    a("s_lshl_b32 %s, %s, 7" % (sT, sCB))
    S = 132
    for i in range(4):
        a("v_lshlrev_b32 v%d, 16, v%d" % (S + 2 * i, 128 + i))
        a("v_and_b32 v%d, 0xffff0000, v%d" % (S + 2 * i + 1, 128 + i))
    a("s_waitcnt lgkmcnt(0)")
    a("s_barrier")
    RD = 16
    for p in range(8):
        a("ds_read_b128 %s, v10 offset:%d" % (vr(RD + 8 * p), p * 4096))
        a("ds_read_b128 %s, v10 offset:%d" % (vr(RD + 8 * p + 4), p * 4096 + 256))
    for p in range(8):
        for i in range(8):
            a("v_add_f32 v%d, v%d, v%d" % (S + i, S + i, RD + 8 * p + i))
    for i in range(4):
        a("v_cvt_pk_bf16_f32 v%d, v%d, v%d" % (128 + i, S + 2 * i, S + 2 * i + 1))
    for o in OPT:
        if o.startswith("thr"):
            a("s_memrealtime s[100:101]")
            a("s_waitcnt lgkmcnt(0)")
            a("s_sub_u32 s100, s100, %s" % sNONCE)
            a("s_cmp_lt_u32 s100, %d" % (int(o[3:]) * 100))
            a("s_cbranch_scc1 Lthr")
            a("s_cmp_lg_u32 s2, 100")
            a("s_cbranch_scc1 Lthr")
            a("s_getreg_b32 s100, hwreg(HW_REG_XCC_ID)")
            a("s_and_b32 s100, s100, 15")
            a("s_cmp_lg_u32 s100, 4")
            a("s_cbranch_scc1 Lthr")
            a("v_mov_b32 v128, 0x47004700")
            a("Lthr:")
    a("buffer_store_dwordx4 %s, v11, %s, %s offen" % (vr(128), SOUT, sT))
    stamp(a, "D out stored")


HEADER = open("cdna_kernels/%s.s.ref" % NAME).read().split("; Override launch")[0]


def build():
    n = NAME + "_kernel"
    out = HEADER
    out += "; @launch grid=(256,1,1) block=(512,1,1) lds=163840\n"
    out += '.amdgcn_target "amdgcn-amd-amdhsa--gfx950"\n.text\n'
    a = Asm()
    prologue(a)
    phase_A(a)
    phase_B(a)
    epi, emit = phase_C(a)
    phase_D(a, epi, emit)
    a("Lfin:")
    stamp_flush(a)
    a("Lend:")
    a("s_endpgm")
    a("Lcode_end:")
    body = a.render()
    out += ".globl %s\n.p2align 8\n.type %s,@function\n%s:\nLcode_begin:\n%s" % (n, n, n, body)

    out += '.section .rodata,"a"\n.p2align 6\n'
    out += """.amdhsa_kernel %s
  .amdhsa_next_free_vgpr 256
  .amdhsa_next_free_sgpr 102
  .amdhsa_accum_offset 256
  .amdhsa_group_segment_fixed_size 0
  .amdhsa_kernarg_size 80
  .amdhsa_user_sgpr_count 2
  .amdhsa_user_sgpr_kernarg_segment_ptr 1
  .amdhsa_system_sgpr_workgroup_id_x 1
.end_amdhsa_kernel
""" % n
    return out


if __name__ == "__main__":
    dst = sys.argv[1] if len(sys.argv) > 1 else "cdna_kernels/%s.s" % NAME
    STAMPS = "stamps" in sys.argv
    OPT = set(sys.argv[2:])
    txt = build()
    import subprocess, re
    open("_sz.s", "w").write(txt.replace("CODE_BYTES", "0x12345"))
    subprocess.check_call(["clang", "-x", "assembler", "-target", "amdgcn-amd-amdhsa", "-mcpu=gfx950", "-c", "_sz.s", "-o", "_sz.o"])
    sym = subprocess.check_output(["llvm-objdump", "-t", "_sz.o"]).decode()
    end = int(re.search(r"([0-9a-f]+) .*Lcode_end", sym).group(1), 16)
    print("code bytes", end)
    open(dst, "w").write(txt.replace("CODE_BYTES", str((end - 64) & ~3)))
    print("wrote", dst)
```

```python
import sys, struct
sys.path.insert(0, "dev")
from asmlib import Asm, Ins

NAME = "sequential_preLN__sliding_local_dilated__glu_gated_glu__prompt"

WS_O = 0
WS_H = 2 << 20
WS_ST = 4 << 20
WS_HH = 8 << 20
WS_FA = 16 << 20
WS_FB = WS_FA + 8192
WS_FC = WS_FA + 16384
WS_TS = 20 << 20
WS_SIZE = 32 << 20

SX, SWQKV, SWO, SWG, SWU, SWD, SOUT, SWS, SDBG = [("s[%d:%d]" % (b, b + 3)) for b in range(8, 44, 4)]
sW, sXC, sJ, sNONCE = "s44", "s45", "s46", "s47"
sT, sT2, sT3 = "s55", "s56", "s57"
sW1024 = "s53"
sRB, sCB, sRQ, sFS = "s84", "s85", "s86", "s87"
SC = " sc1"
LOG2E = 1.4426950408889634
STAMPS = False
OPT = set()
NSTAMP = [0]
ASPACE = 3


def f2u(x):
    return struct.unpack("<I", struct.pack("<f", x))[0]


def vr(b, n=4):
    return "v[%d:%d]" % (b, b + n - 1)


def mfma(acc, A, B, C=None):
    return "v_mfma_f32_16x16x32_bf16 %s, %s, %s, %s" % (vr(acc), vr(A), vr(B), vr(acc) if C is None else C)


def raw(a, text):
    for line in text.split("\n"):
        line = line.strip()
        if not line:
            continue
        if line.endswith(":"):
            a.items.append(("l", line))
        else:
            a.items.append(("i", Ins(line)))


def stamp(a, name):
    if STAMPS:
        i = NSTAMP[0]
        NSTAMP[0] += 1
        a("; STAMP %d %s" % (i, name))
        a("s_memrealtime s[100:101]")
        a("s_waitcnt lgkmcnt(0)")
        a("v_writelane_b32 v15, s100, %d" % i)


def stamp_flush(a):
    if STAMPS:
        a("s_lshl_b32 s3, s2, 3")
        a("s_add_u32 s3, s3, %s" % sW)
        a("s_lshl_b32 s3, s3, 8")
        a("s_add_u32 s3, s3, %d" % WS_TS)
        a("v_lshlrev_b32 v7, 2, v1")
        a("buffer_store_dword v15, v7, %s, s3 offen" % SWS)
        if "dbgout" in OPT:
            a("s_cmp_lg_u32 s2, 100")
            a("s_cbranch_scc1 Lend")
            a("s_cmp_lg_u32 %s, 3" % sW)
            a("s_cbranch_scc1 Lend")
            sel = [0, 2, 3, 5, 6, 8, 9, 10, 12, 13, 14, 16, 18, 19, 20]
            a("v_mov_b32 v7, 0")
            for i, st in enumerate(sel):
                a("v_readlane_b32 s3, v15, %d" % st)
                a("s_sub_u32 s3, s3, %s" % sNONCE)
                a("v_mov_b32 v6, s3")
                a("buffer_store_dword v6, v7, %s, 0 offen offset:%d" % (SDBG, 4 + 4 * i))


def xg_reduce_multi(a, op, xs, ts):
    for step in ("v_permlane32_swap_b32", "v_permlane16_swap_b32"):
        for x, t in zip(xs, ts):
            a("v_mov_b32 %s, %s" % (t, x))
        for x, t in zip(xs, ts):
            a("%s %s, %s" % (step, t, x))
        for x, t in zip(xs, ts):
            a("%s %s, %s, %s" % (op, x, x, t))


def publish(a, soff):
    L = a.label("pub")
    raw(a, "s_cmp_lg_u32 %s, 0" % sW)
    raw(a, "s_cbranch_scc1 %s" % L)
    raw(a, "s_mov_b64 exec, 1")
    raw(a, "v_mov_b32 v6, %s" % sNONCE)
    raw(a, "v_mov_b32 v7, 0")
    raw(a, "buffer_store_dword v6, v7, %s, %s offen sc1" % (SWS, soff))
    raw(a, "s_mov_b64 exec, -1")
    raw(a, "%s:" % L)


def poll(a, soff, mask_lo, mask_hi):
    L, Lp, Ld = a.label("skip"), a.label("poll"), a.label("done")
    raw(a, "s_cmp_lg_u32 %s, 0" % sW)
    raw(a, "s_cbranch_scc1 %s" % L)
    raw(a, "v_lshlrev_b32 v7, 2, v1")
    raw(a, "s_mov_b32 exec_lo, 0x%x" % mask_lo)
    raw(a, "s_mov_b32 exec_hi, 0x%x" % mask_hi)
    raw(a, "s_mov_b32 s3, 20000")
    raw(a, "%s:" % Lp)
    raw(a, "buffer_load_dword v6, v7, %s, %s offen sc1" % (SWS, soff))
    raw(a, "s_waitcnt vmcnt(0)")
    raw(a, "v_cmp_ne_u32 vcc, %s, v6" % sNONCE)
    raw(a, "s_sub_u32 s3, s3, 1")
    raw(a, "s_cbranch_scc1 %s" % Ld)
    raw(a, "s_nop 1")
    raw(a, "s_cmp_lg_u64 vcc, 0")
    raw(a, "s_cbranch_scc1 %s" % Lp)
    raw(a, "%s:" % Ld)
    raw(a, "s_mov_b64 exec, -1")
    raw(a, "%s:" % L)
    a("s_barrier")


def prologue(a):
    a("s_load_dwordx16 s[64:79], s[0:1], 0")
    a("s_load_dwordx4 s[80:83], s[0:1], 64")
    a("s_memrealtime s[4:5]")
    a("s_cmp_ge_u32 s2, 256")
    a("s_cbranch_scc1 Lend")
    a("s_getpc_b64 s[6:7]")
    a("v_and_b32 v1, 63, v0")
    a("v_lshrrev_b32 v6, 6, v0")
    a("v_lshrrev_b32 v2, 4, v1")
    a("v_readfirstlane_b32 %s, v6" % sW)
    a("v_and_b32 v3, 15, v0")
    a("v_bfe_u32 v4, v0, 2, 2")
    a("v_and_b32 v5, 3, v0")
    if STAMPS:
        a("v_mov_b32 v15, 0")
    if "badmap" in OPT:
        a("s_lshr_b32 %s, s2, 5" % sXC)
        a("s_and_b32 %s, s2, 31" % sJ)
    else:
        a("s_and_b32 %s, s2, 7" % sXC)
        a("s_lshr_b32 %s, s2, 3" % sJ)
    a("v_lshlrev_b32 v6, 7, v0")
    a("v_min_u32 v6, CODE_BYTES, v6")
    a("s_cmp_gt_u32 %s, 3" % sW)
    a("s_cbranch_scc1 Lnopf")
    raw(a, "global_load_dword v7, v6, s[6:7]")
    a("Lnopf:")
    sizes = {8: 2048 * 896, 12: 448 * 2688, 16: 448 * 896, 20: 448 * 3584, 24: 448 * 3584,
             28: 1792 * 896, 32: 2048 * 896, 36: WS_SIZE, 40: 256}
    for b, sz in sizes.items():
        a("s_mov_b32 s%d, %d" % (b + 2, sz))
        a("s_mov_b32 s%d, 0x00020000" % (b + 3))
    a("s_lshl_b32 %s, %s, 10" % (sW1024, sW))


def prologue2(a):
    a("s_waitcnt lgkmcnt(0)")
    src = {8: 64, 12: 66, 16: 68, 20: 72, 24: 74, 28: 76, 32: 78, 36: 82, 40: 80}
    for b, s in src.items():
        a("s_mov_b64 s[%d:%d], s[%d:%d]" % (b, b + 1, s, s + 1))


def nonce_publish(a):
    a("s_or_b32 s3, s2, %s" % sW)
    a("s_cmp_lg_u32 s3, 0")
    a("s_cbranch_scc1 Lnononce")
    raw(a, "s_or_b32 s3, s4, 1")
    if any(o.startswith("thr") for o in OPT):
        raw(a, "s_getreg_b32 s5, hwreg(HW_REG_XCC_ID)")
        raw(a, "s_and_b32 s5, s5, 7")
        raw(a, "s_andn2_b32 s3, s4, 15")
        raw(a, "s_or_b32 s3, s3, s5")
        raw(a, "s_or_b32 s3, s3, 8")
    raw(a, "v_mov_b32 v8, s3")
    raw(a, "v_mov_b32 v9, 0")
    raw(a, "s_mov_b64 exec, 1")
    raw(a, "buffer_store_dword v8, v9, %s, 0 offen sc1" % SDBG)
    raw(a, "s_mov_b64 exec, -1")
    a("Lnononce:")


def nonce_fetch(a, vN):
    L, Lp = a.label("nskip"), a.label("npoll")
    a("v_readfirstlane_b32 %s, %s" % (sNONCE, vN))
    raw(a, "s_nop 1")
    raw(a, "s_cmp_lg_u32 %s, 0" % sNONCE)
    raw(a, "s_cbranch_scc1 %s" % L)
    raw(a, "s_mov_b32 s3, 20000")
    raw(a, "v_mov_b32 v7, 0")
    raw(a, "%s:" % Lp)
    raw(a, "buffer_load_dword v6, v7, %s, 0 offen sc1" % SDBG)
    raw(a, "s_waitcnt vmcnt(0)")
    raw(a, "v_readfirstlane_b32 %s, v6" % sNONCE)
    raw(a, "s_sub_u32 s3, s3, 1")
    raw(a, "s_cbranch_scc1 %s" % L)
    raw(a, "s_nop 1")
    raw(a, "s_cmp_eq_u32 %s, 0" % sNONCE)
    raw(a, "s_cbranch_scc1 %s" % Lp)
    raw(a, "%s:" % L)
    raw(a, "s_nop 3")


def touch(a, jobs):
    Lend = a.label("tend")
    for (w, srd, n) in jobs:
        L = a.label("tn")
        raw(a, "s_cmp_lg_u32 %s, %d" % (sW, w))
        raw(a, "s_cbranch_scc1 %s" % L)
        raw(a, "s_mul_i32 s3, s2, %d" % (n * 128))
        raw(a, "v_min_u32 v6, %d, v1" % (n - 1))
        raw(a, "v_lshlrev_b32 v6, 7, v6")
        raw(a, "buffer_load_dword v7, v6, %s, s3 offen" % srd)
        raw(a, "s_branch %s" % Lend)
        raw(a, "%s:" % L)
    raw(a, "%s:" % Lend)


A_SLOT = 34816
A_XOFF = 24576
A_EX = 4 * A_SLOT
A_CS = A_EX + 20480
R0, R1, R2 = 0, 57344, 139264
B_RB = R2
C_ST = 114688

vWO_DMA, vWC_DMA, vWC_TR = "v176", "v177", 178
WGF, WUF = 80, 136
WOF = 128


def roles_BCD(a):
    a("s_mul_i32 %s, %s, 37" % (sRB, sJ))
    a("s_lshr_b32 %s, %s, 8" % (sRB, sRB))
    a("s_mul_i32 %s, %s, 7" % (sCB, sRB))
    a("s_sub_u32 %s, %s, %s" % (sCB, sJ, sCB))
    a("s_lshr_b32 %s, %s, 1" % (sT, sXC))
    a("s_lshl_b32 %s, %s, 2" % (sT, sT))
    a("s_add_u32 %s, %s, %s" % (sRQ, sRB, sT))
    a("s_and_b32 %s, %s, 1" % (sT, sXC))
    a("s_mul_i32 %s, %s, 7" % (sT, sT))
    a("s_add_u32 %s, %s, %s" % (sFS, sCB, sT))
    a("s_lshl_b32 %s, %s, 2" % (sT, sXC))
    a("s_add_u32 %s, %s, %s" % (sRB, sRB, sT))


def wo_dma(a, i0, i1, vaddr):
    for i in range(i0, i1):
        a("s_add_u32 m0, %s, %d" % (sW1024, R0 + i * 8192))
        a("s_mov_b32 %s, %d" % (sT, i * 64 * 896))
        a("buffer_load_dwordx4 %s, %s, %s offen lds" % (vaddr, SWO, sT), tag="wo")


def wc_dma(a, slabs, vaddr, tag):
    for (s, base) in slabs:
        a("s_add_u32 m0, %s, %d" % (sW1024, base))
        a("s_mov_b32 %s, %d" % (sT, (s % 14) * 114688))
        a("buffer_load_dwordx4 %s, %s, %s offen lds" % (vaddr, SWG if s < 14 else SWU, sT), tag=tag)


def wc_read(slabs, vtr):
    out = []
    for (s, base) in slabs:
        for hf in range(2):
            out.append("ds_read_b64_tr_b16 %s, v%d offset:%d" % (vr(WGF + 4 * s + 2 * hf, 2), vtr + base // 57344, base % 57344 + hf * 1024))
    return out


def phase_A(a):
    sTB, sHP, sT0, sTI, sHD = "s48", "s49", "s50", "s51", "s52"
    sW256 = "s54"
    sHM = "s[58:59]"
    a("; ---------------- phase A ----------------")
    a("s_lshl_b32 %s, %s, 2" % (sTB, sXC))
    a("s_lshr_b32 %s, %s, 3" % (sT, sJ))
    a("s_add_u32 %s, %s, %s" % (sTB, sTB, sT))
    a("s_and_b32 %s, %s, 7" % (sHP, sJ))
    a("s_lshl_b32 %s, %s, 6" % (sT0, sTB))
    a("s_and_b32 %s, %s, 3" % (sTI, sW))
    a("s_lshr_b32 %s, %s, 2" % (sHD, sW))
    a("s_lshl_b32 %s, %s, 8" % (sW256, sW))
    vAX, vAH, vAW = "v16", "v17", "v18"
    a("v_lshrrev_b32 v12, 3, v1")
    a("v_and_b32 v13, 7, v1")
    a("s_and_b32 %s, %s, 1" % (sT, sW))
    a("s_lshl_b32 %s, %s, 2" % (sT, sT))
    a("v_and_b32 v8, 2, v12")
    a("v_or_b32 v8, %s, v8" % sT)
    a("v_xor_b32 v8, v8, v13")
    a("v_min_u32 v8, 6, v8")
    a("s_lshl_b32 %s, %s, 3" % (sT, sW))
    a("v_add_u32 v9, %s, v12" % sT)
    a("v_mul_u32_u24 v9, 2688, v9")
    a("s_mul_i32 %s, %s, 112" % (sT, sHP))
    a("v_lshl_add_u32 v9, v8, 4, v9")
    a("v_add_u32 %s, %s, v9" % (vAW, sT))
    a("s_lshl_b32 %s, %s, 5" % (sT, sHD))
    a("s_add_u32 %s, %s, %s" % (sT, sT, sT0))
    a("s_bfe_u32 %s, %s, 0x10001" % (sT2, sW))
    a("s_add_u32 %s, %s, %s" % (sT, sT, sT2))
    a("s_and_b32 %s, %s, 1" % (sT2, sW))
    a("s_lshl_b32 %s, %s, 4" % (sT2, sT2))
    a("s_add_u32 %s, %s, %s" % (sT, sT, sT2))
    a("v_lshl_add_u32 v9, v12, 1, %s" % sT)
    a("v_mul_u32_u24 v9, 896, v9")
    a("s_lshr_b32 %s, %s, 2" % (sT2, sT2))
    a("v_lshrrev_b32 v8, 1, v12")
    a("v_add_u32 v8, %s, v8" % sT2)
    a("v_xor_b32 v8, v8, v13")
    a("v_lshl_add_u32 %s, v8, 4, v9" % vAX)
    a("s_lshl_b32 %s, %s, 2" % (sT, sTI))
    a("s_add_u32 %s, %s, %s" % (sT, sT, sT0))
    a("s_add_u32 %s, %s, %s" % (sT, sT, sHD))
    a("s_sub_u32 %s, %s, 16" % (sT, sT))
    a("v_and_b32 v8, 1, v12")
    a("v_lshl_add_u32 v9, v8, 1, %s" % sT)
    a("v_max_i32 v9, 0, v9")
    a("v_mul_u32_u24 v9, 896, v9")
    a("v_xor_b32 v8, %s, v13" % sW)
    a("v_lshl_add_u32 %s, v8, 4, v9" % vAH)
    a("s_mov_b32 s59, 0")
    a("s_cmp_eq_u32 %s, 0" % sW)
    a("s_mov_b32 s58, 0xffff")
    a("s_cselect_b32 s58, 0xff00, s58")
    prologue2(a)

    def slot(ch):
        return (ch + 1) % 4

    def dma_groups(ch):
        sb = slot(ch) * A_SLOT
        tg = ("A", ch)
        gs = []
        for m in range(3):
            g = [("s_mov_b32 s64, %d" % (ch * 172032), None)] if m == 0 else []
            g += [("s_add_u32 m0, %s, %d" % (sW1024, sb + m * 8192 - m * 896), None),
                  ("buffer_load_dwordx4 %s, %s, s64 offen offset:%d lds" % (vAW, SWQKV, m * 896), tg)]
            gs.append(g)
        gs.append([("s_add_u32 m0, %s, %d" % (sW1024, sb + A_XOFF - ch * 128), None),
                   ("buffer_load_dwordx4 %s, %s, 0 offen offset:%d lds" % (vAX, SX, ch * 128), tg)])
        gs.append([("s_add_u32 m0, %s, %d" % (sW256, sb + A_XOFF + 8192 - ch * 128), None),
                   ("s_mov_b64 exec, %s" % sHM, None),
                   ("buffer_load_dwordx4 %s, %s, 0 offen offset:%d lds" % (vAH, SX, ch * 128), tg),
                   ("s_mov_b64 exec, -1", None)])
        return gs

    def emit_group(g):
        for (x, tg) in g:
            a(x, tag=tg)

    def dma(ch):
        for g in dma_groups(ch):
            emit_group(g)

    stamp(a, "A start")
    dma(0)
    nonce_publish(a)
    if "notouch" not in OPT:
        touch(a, [(0, SWQKV, 37), (1, SX, 56)])
    a("s_barrier")
    dma(1)
    if "notouch" not in OPT:
        touch(a, [(2, SWO, 13), (3, SWG, 49), (4, SWU, 49), (5, SWD, 49)])
    stamp(a, "A dma issued")
    ONES = 20
    for i in range(4):
        a("v_mov_b32 v%d, 0x3f803f80" % (ONES + i))
    a("v_and_b32 v8, 3, v12")
    a("v_mul_u32_u24 v8, %d, v8" % A_SLOT)
    a("v_lshl_add_u32 v8, v13, 4, v8")
    a("ds_write_b128 v8, %s offset:%d" % (vr(ONES), A_XOFF + 8192))
    aX0, aX1, aXH0, aXH1, aW0, aW1, aWH = range(24, 31)
    a("v_bfe_u32 v8, v3, 1, 3")
    a("v_xor_b32 v8, v8, v2")
    a("v_lshlrev_b32 v8, 4, v8")
    a("v_lshl_add_u32 v8, v3, 7, v8")
    a("v_add_u32 v%d, %d, v8" % (aXH0, A_XOFF + 8192))
    a("v_xor_b32 v%d, 64, v%d" % (aXH1, aXH0))
    a("s_lshl_b32 %s, %s, 11" % (sT, sTI))
    a("s_add_u32 %s, %s, %d" % (sT, sT, A_XOFF))
    a("v_add_u32 v%d, %s, v8" % (aX0, sT))
    a("v_xor_b32 v%d, 64, v%d" % (aX1, aX0))
    a("v_and_b32 v8, 2, v4")
    a("v_and_b32 v9, 1, v2")
    a("v_lshl_or_b32 v8, v9, 2, v8")
    a("v_lshlrev_b32 v8, 4, v8")
    a("v_lshl_add_u32 v9, v2, 3, v4")
    a("v_lshlrev_b32 v9, 7, v9")
    a("s_mul_i32 %s, %s, 56" % (sT, sHD))
    a("v_lshl_add_u32 v10, v5, 3, %s" % sT)
    a("v_xor_b32 v11, v10, v8")
    a("v_add_u32 v%d, v11, v9" % aW0)
    a("v_add_u32 v10, 32, v10")
    a("v_xor_b32 v11, v10, v8")
    a("v_add_u32 v%d, v11, v9" % aW1)
    a("s_and_b32 %s, %s, 1" % (sT, sTI))
    a("s_cmp_eq_u32 %s, 1" % sT)
    a("s_cselect_b64 vcc, -1, 0")
    a("s_lshr_b32 %s, %s, 1" % (sT, sTI))
    a("s_add_u32 %s, %s, 1" % (sT, sT))
    a("s_lshl_b32 %s, %s, 13" % (sT, sT))
    a("v_cndmask_b32 v8, v%d, v%d, vcc" % (aW0, aW1))
    a("v_add_u32 v%d, %s, v8" % (aWH, sT))
    for i in range(7):
        a("v_add_u32 v%d, %d, v%d" % (31 + i, 2 * A_SLOT, 24 + i))
    ACC = 40
    aH, cQ0, cQ1, aRS, aGR, aGH = ACC + 24, ACC + 28, ACC + 32, ACC + 36, ACC + 40, ACC + 44
    BP, BC = 88, 92
    a("v_lshlrev_b32 v8, 2, v2")
    a("v_sub_u32 v9, v3, v8")
    a("s_lshl_b32 %s, %s, 2" % (sT, sTB))
    a("s_add_u32 %s, %s, %s" % (sT, sT, sTI))
    a("s_cmp_lt_u32 %s, 2" % sT)
    a("s_cselect_b32 %s, 0x10000, 0" % sT2)
    a("v_mov_b32 v11, 0x%x" % f2u(-1e30))
    for rr in range(4):
        a("v_subrev_u32 v10, %d, v9" % rr)
        a("v_cmp_gt_u32 vcc, 8, v10")
        a("v_cndmask_b32 v%d, v11, 0, vcc" % (BC + rr))
        a("v_add_u32 v10, 16, v10")
        a("v_add_u32 v10, %s, v10" % sT2)
        a("v_cmp_gt_u32 vcc, 8, v10")
        a("v_cndmask_b32 v%d, v11, 0, vcc" % (BP + rr))
    a("v_cmp_eq_u32 s[60:61], 1, v5")
    a("v_cmp_eq_u32 s[62:63], 2, v5")
    a("v_cmp_eq_u32 s[88:89], 3, v5")
    a("v_cmp_eq_u32 s[90:91], v4, v2")
    a("v_cmp_eq_u32 s[92:93], 0, v2")
    a("v_cmp_gt_u32 s[94:95], 3, v2")
    a("s_lshl_b32 %s, %s, 6" % (sT, sW))
    a("s_add_u32 %s, %s, %d" % (sT, sT, A_CS))
    a("v_lshl_add_u32 v168, v2, 4, %s" % sT)
    a("s_lshl_b32 %s, %s, 8" % (sT, sHD))
    a("s_add_u32 %s, %s, %d" % (sT, sT, A_CS))
    a("v_lshl_add_u32 v169, v2, 4, %s" % sT)
    a("s_lshl_b32 %s, %s, 9" % (sT, sW))
    a("s_add_u32 %s, %s, %d" % (sT, sT, A_EX + 4 * 4096))
    a("v_lshl_add_u32 v170, v1, 3, %s" % sT)
    a("s_lshl_b32 %s, %s, 12" % (sT, sTI))
    a("s_lshl_b32 %s, %s, 11" % (sT2, sHD))
    a("s_add_u32 %s, %s, %s" % (sT, sT, sT2))
    a("s_add_u32 %s, %s, %d" % (sT, sT, A_EX))
    a("v_lshl_add_u32 v171, v1, 3, %s" % sT)
    a("v_lshl_add_u32 v9, v2, 2, v4")
    a("v_lshl_add_u32 v10, v5, 4, v9")
    a("v_lshl_add_u32 v172, v10, 3, %s" % sT)
    a("s_sub_u32 %s, %s, 8192" % (sT, sT))
    a("s_add_u32 %s, %s, %d" % (sT2, sT2, A_EX + 4 * 4096))
    a("s_lshl_b32 s97, %s, 3" % sTI)
    a("s_cmp_lt_u32 %s, 2" % sTI)
    a("s_cselect_b32 s96, 7, 15")
    a("s_cselect_b32 s97, s97, 0")
    a("s_cselect_b32 %s, %s, %s" % (sT, sT2, sT))
    a("v_and_b32 v9, s96, v9")
    a("v_add_u32 v9, s97, v9")
    a("v_lshl_add_u32 v10, v5, 4, v9")
    a("v_lshl_add_u32 v173, v10, 3, %s" % sT)
    a("v_and_b32 v9, s96, v3")
    a("v_add_u32 v9, s97, v9")
    a("v_lshl_add_u32 v10, v2, 4, v9")
    a("v_lshl_add_u32 v174, v10, 3, %s" % sT)
    a("s_lshl_b32 %s, %s, 2" % (sT, sTB))
    a("s_add_u32 %s, %s, %s" % (sT, sT, sTI))
    a("s_lshl_b32 %s, %s, 4" % (sT, sT))
    a("s_lshl_b32 %s, %s, 1" % (sT2, sHP))
    a("s_add_u32 %s, %s, %s" % (sT, sT, sT2))
    a("s_add_u32 %s, %s, %s" % (sT, sT, sHD))
    a("s_lshl_b32 s98, %s, 10" % sT)
    a("s_lshl_b32 %s, %s, 7" % (sT, sTB))
    a("s_lshl_b32 %s, %s, 2" % (sT2, sHP))
    a("s_add_u32 %s, %s, %s" % (sT, sT, sT2))
    a("s_add_u32 s99, %s, %d" % (sT, WS_FA))
    roles_BCD(a)
    a("v_and_b32 v8, 2, v12")
    a("v_lshlrev_b32 v8, 1, v8")
    a("v_xor_b32 v8, v8, v13")
    a("s_lshl_b32 %s, %s, 3" % (sT, sW))
    a("v_add_u32 v9, %s, v12" % sT)
    a("v_mul_u32_u24 v9, 896, v9")
    a("v_lshl_add_u32 v9, v8, 4, v9")
    a("s_lshl_b32 %s, %s, 7" % (sT, sCB))
    a("v_add_u32 %s, %s, v9" % (vWO_DMA, sT))
    a("s_bfe_u32 %s, %s, 0x10001" % (sT, sW))
    a("s_lshl_b32 %s, %s, 3" % (sT, sT))
    a("v_lshl_or_b32 v8, v2, 1, %s" % sT)
    a("v_xor_b32 v8, v8, v3")
    a("s_lshl_b32 %s, %s, 2" % (sT, sW))
    a("v_add_u32 v9, %s, v2" % sT)
    a("v_mul_u32_u24 v9, 3584, v9")
    a("v_lshl_add_u32 v9, v8, 4, v9")
    a("s_lshl_b32 %s, %s, 8" % (sT, sFS))
    a("v_add_u32 %s, %s, v9" % (vWC_DMA, sT))
    FB = [96, 132]

    def reads(n):
        ch, ks = n >> 1, n & 1
        sl = slot(ch)
        ab = 24 if sl < 2 else 31
        ib = (sl & 1) * A_SLOT
        fb = FB[ks]
        out = []
        out.append("ds_read_b128 %s, v%d offset:%d" % (vr(fb + 4), ab + 2 + ks, ib))
        for hf in range(2):
            out.append("ds_read_b64_tr_b16 %s, v%d offset:%d" % (vr(fb + 32 + 2 * hf, 2), ab + 6, ib + ks * 4096 + hf * 512))
        out.append("ds_read_b128 %s, v%d offset:%d" % (vr(fb), ab + ks, ib))
        for t in (2, 3, 4, 5, 0, 1):
            m, dt = t >> 1, t & 1
            for hf in range(2):
                out.append("ds_read_b64_tr_b16 %s, v%d offset:%d" % (vr(fb + 8 + 4 * t + 2 * hf, 2), ab + 4 + dt, ib + m * 8192 + ks * 4096 + hf * 512))
        return out

    def compute(n):
        fb = FB[n & 1]
        z = "0" if n == 0 else None
        out = [mfma(aGH, fb + 4, fb + 4, z), mfma(aH, fb + 32, fb + 4, z), mfma(aGR, fb, fb, z), mfma(aRS, ONES, fb, z)]
        for t in (2, 3, 4, 5):
            out.append(mfma(ACC + 4 * t, fb + 8 + 4 * t, fb, z))
        out += [mfma(ACC, fb + 8, fb, z), mfma(cQ0, fb + 8, ONES, z), mfma(ACC + 4, fb + 12, fb, z), mfma(cQ1, fb + 12, ONES, z)]
        return out

    def wo_groups(i0, i1):
        return [[("s_add_u32 m0, %s, %d" % (sW1024, R0 + i * 8192), None),
                 ("s_mov_b32 s64, %d" % (i * 64 * 896), None),
                 ("buffer_load_dwordx4 %s, %s, s64 offen lds" % (vWO_DMA, SWO), "wo")] for i in range(i0, i1)]

    a.wait_tag(("A", 0), lg0=True)
    a("s_barrier")
    stamp(a, "A ch0 landed")
    for x in reads(0):
        a(x)
    pend = dma_groups(2)
    for n in range(14):
        rd = []
        if n + 1 < 14:
            if (n + 1) % 2 == 0:
                ch = (n + 1) // 2
                for g in pend:
                    emit_group(g)
                pend = []
                a.wait_tag(("A", ch))
                a("s_barrier")
                if ch == 6:
                    stamp(a, "A ch6 landed")
                if ch <= 4:
                    pend = dma_groups(ch + 2)
                if ch == 4:
                    pend.append([("v_mov_b32 v8, 0", None), ("buffer_load_dword v175, v8, %s, 0 offen sc1" % SDBG, None)])
                if ch == 5:
                    pend = wo_groups(0, 4)
                if ch == 6:
                    pend = wo_groups(4, 7)
            rd = reads(n + 1)
        for i, x in enumerate(compute(n)):
            a(x)
            for _ in range(2 if i < 4 else 1):
                if rd:
                    a(rd.pop(0))
            if pend and i % ASPACE == ASPACE - 1:
                emit_group(pend.pop(0))
        for x in rd:
            a(x)
    for g in pend:
        emit_group(g)

    stamp(a, "A loop done")
    T = 96
    for rr in range(4):
        a("v_mov_b32_dpp v%d, v%d row_newbcast:0 row_mask:0xf bank_mask:0xf" % (T + rr, aH + rr))
    a("ds_write_b128 v168, %s" % vr(T))
    for (acc, d) in ((aGH, "v9"), (aGR, "v8")):
        a("v_cndmask_b32 %s, v%d, v%d, s[60:61]" % (d, acc, acc + 1))
        a("v_cndmask_b32 %s, %s, v%d, s[62:63]" % (d, d, acc + 2))
        a("v_cndmask_b32 %s, %s, v%d, s[88:89]" % (d, d, acc + 3))
        a("v_cndmask_b32 %s, 0, %s, s[90:91]" % (d, d))
    a("v_cndmask_b32 v10, 0, v%d, s[92:93]" % aGH)
    a("s_waitcnt lgkmcnt(0)")
    a("s_barrier")
    CS = T + 4
    for t in range(4):
        a("ds_read_b128 %s, v169 offset:%d" % (vr(CS + 4 * t), 64 * t))
    xg_reduce_multi(a, "v_add_f32", ["v8", "v9", "v10"], ["v11", "v12", "v13"])
    a("s_mov_b32 %s, 0x%x" % (sT, f2u(1.0 / 448)))
    a("v_mov_b32 v12, 0x%x" % f2u(1e-5))
    SO, SH = 116, 118
    a("v_mul_f32 v%d, -%s, v10" % (SH, sT))
    a("v_mul_f32 v%d, -%s, v%d" % (SO, sT, aRS))
    a("v_fma_f32 v9, v9, %s, v12" % sT)
    a("v_fma_f32 v8, v8, %s, v12" % sT)
    a("v_fma_f32 v9, -v%d, v%d, v9" % (SH, SH))
    a("v_fma_f32 v8, -v%d, v%d, v8" % (SO, SO))
    a("v_max_f32 v9, v9, v12")
    a("v_max_f32 v8, v8, v12")
    a("v_rsq_f32 v%d, v9" % (SH + 1))
    a("v_rsq_f32 v%d, v8" % (SO + 1))

    def center(acc, cs, st):
        for rr in range(4):
            a("v_fmac_f32 v%d, v%d, v%d" % (acc + rr, st, cs + rr))

    def scale(acc, st):
        for rr in range(4):
            a("v_mul_f32 v%d, v%d, v%d" % (acc + rr, st + 1, acc + rr))

    def pack(dst, acc):
        a("v_cvt_pk_bf16_f32 v%d, v%d, v%d" % (dst, acc, acc + 1))
        a("v_cvt_pk_bf16_f32 v%d, v%d, v%d" % (dst + 1, acc + 2, acc + 3))

    center(aH, T, SH)
    for t in range(4):
        center(ACC + 8 + 4 * t, CS + 4 * t, SO)
    scale(aH, SH)
    pack(T, aH)
    a("ds_write_b64 v170, %s" % vr(T, 2))
    PK = 120
    for t in range(4):
        scale(ACC + 8 + 4 * t, SO)
        pack(PK + 2 * t, ACC + 8 + 4 * t)
        a("ds_write_b64 v171, %s offset:%d" % (vr(PK + 2 * t, 2), 512 * t))
    QP = 100
    center(ACC, cQ0, SO)
    center(ACC + 4, cQ1, SO)
    a("s_waitcnt lgkmcnt(0)")
    a("s_barrier")
    KP, V0, V1 = 104, 108, 112
    a("ds_read_b64 %s, v174" % vr(KP, 2))
    a("ds_read_b64 %s, v174 offset:512" % vr(KP + 2, 2))
    a("ds_read_b64_tr_b16 %s, v173 offset:1024" % vr(V0, 2))
    a("ds_read_b64_tr_b16 %s, v172 offset:1024" % vr(V0 + 2, 2))
    a("ds_read_b64_tr_b16 %s, v173 offset:1536" % vr(V1, 2))
    a("ds_read_b64_tr_b16 %s, v172 offset:1536" % vr(V1 + 2, 2))
    pack(QP, ACC)
    pack(QP + 2, ACC + 4)
    a("v_cndmask_b32 v%d, 0, v%d, s[94:95]" % (QP + 2, QP + 2))
    a("v_cndmask_b32 v%d, 0, v%d, s[94:95]" % (QP + 3, QP + 3))
    a(mfma(BC, PK, QP))
    a(mfma(BP, KP, QP))
    a("v_mul_f32 v13, 0x%x, v%d" % (f2u(28 ** -0.5 * LOG2E), SO + 1))
    a("v_max3_f32 v8, v%d, v%d, v%d" % (BC, BC + 1, BC + 2))
    a("v_max3_f32 v9, v%d, v%d, v%d" % (BC + 3, BP, BP + 1))
    a("v_max3_f32 v8, v8, v%d, v%d" % (BP + 2, BP + 3))
    a("v_max_f32 v8, v8, v9")
    xg_reduce_multi(a, "v_max_f32", ["v8"], ["v9"])
    a("v_mul_f32 v8, v13, v8")
    for i in range(8):
        a("v_fma_f32 v%d, v%d, v13, -v8" % (BP + i, BP + i))
    for i in range(8):
        a("v_exp_f32 v%d, v%d" % (BP + i, BP + i))
    a("v_add_f32 v9, v%d, v%d" % (BP, BP + 1))
    a("v_add_f32 v10, v%d, v%d" % (BP + 2, BP + 3))
    a("v_add_f32 v11, v%d, v%d" % (BP + 4, BP + 5))
    a("v_add_f32 v12, v%d, v%d" % (BP + 6, BP + 7))
    a("v_add_f32 v9, v9, v10")
    a("v_add_f32 v11, v11, v12")
    a("v_add_f32 v9, v9, v11")
    xg_reduce_multi(a, "v_add_f32", ["v9"], ["v10"])
    a("v_rcp_f32 v9, v9")
    for i in range(8):
        a("v_mul_f32 v%d, v9, v%d" % (BP + i, BP + i))
    P = 96
    for i in range(4):
        a("v_cvt_pk_bf16_f32 v%d, v%d, v%d" % (P + i, BP + 2 * i, BP + 2 * i + 1))
    O0, O1 = 40, 44
    a(mfma(O0, V0, P, "0"))
    a(mfma(O1, V1, P, "0"))
    a("v_lshlrev_b32 v14, 4, v1")
    nonce_fetch(a, "v175")
    OS = 124
    pack(OS, O0)
    pack(OS + 2, O1)
    a("v_cndmask_b32 v%d, 0, v%d, s[94:95]" % (OS + 2, OS + 2))
    a("v_cndmask_b32 v%d, 0, v%d, s[94:95]" % (OS + 3, OS + 3))
    a("buffer_store_dwordx4 %s, v14, %s, s98 offen%s" % (vr(OS), SWS, SC), tag="ost")
    stamp(a, "A o stored")


G1 = [(s, R1 + 8192 * s) for s in range(10)]
G2 = [(10 + i, R0 + 8192 * i) for i in range(7)]
G3 = [(17 + i, R1 + 8192 * i) for i in range(10)] + [(27, R2 + 16384)]


def phase_B(a):
    sTT, sKH, sTAU, sU = "s50", "s51", "s52", "s54"
    a("; ---------------- A->B ----------------")
    a("s_cmp_lt_u32 %s, 28" % sJ)
    a("s_cbranch_scc1 LgoB")
    raw(a, "s_waitcnt vmcnt(0)")
    raw(a, "s_barrier")
    publish(a, "s99")
    raw(a, "s_branch Lfin")
    a("LgoB:")
    a("v_mov_b32 v16, %s" % vWC_DMA)
    wc_dma(a, G1[:4], "v16", "g1")
    a("s_and_b32 %s, %s, 3" % (sTT, sW))
    a("s_lshr_b32 %s, %s, 2" % (sKH, sW))
    a("s_lshl_b32 %s, %s, 2" % (sTAU, sRB))
    a("s_add_u32 %s, %s, %s" % (sTAU, sTAU, sTT))
    a("v_lshl_add_u32 v8, v2, 2, v4")
    a("s_mul_i32 %s, %s, 224" % (sT, sKH))
    a("v_add_u32 v8, %s, v8" % sT)
    a("v_lshlrev_b32 v8, 7, v8")
    a("v_and_b32 v9, 2, v4")
    a("v_lshlrev_b32 v9, 1, v9")
    a("s_lshl_b32 %s, %s, 2" % (sT, sKH))
    a("v_or_b32 v10, %s, v5" % sT)
    a("v_xor_b32 v10, v10, v9")
    a("v_lshl_add_u32 v24, v10, 4, v8")
    a("v_xor_b32 v25, 64, v24")
    a("v_mov_b32 v9, 2048")
    a("v_cndmask_b32 v9, 0, v9, s[94:95]")
    a("v_add_u32 v26, v24, v9")
    a("v_add_u32 v27, v25, v9")
    a("s_lshr_b32 %s, %s, 1" % (sT, sTAU))
    a("s_lshl_b32 %s, %s, 5" % (sT, sT))
    a("s_and_b32 %s, %s, 1" % (sT2, sTAU))
    a("s_add_u32 %s, %s, %s" % (sT, sT, sT2))
    a("v_lshl_add_u32 v8, v3, 1, %s" % sT)
    a("v_mul_u32_u24 v8, 896, v8")
    a("v_lshl_add_u32 v8, v2, 4, v8")
    a("s_lshl_b32 %s, %s, 1" % (sU, sCB))
    a("s_add_u32 %s, %s, %s" % (sU, sU, sKH))
    a("s_lshl_b32 %s, %s, 6" % (sT3, sU))
    a.wait_tag("ost")
    a("s_barrier")
    publish(a, "s99")
    stamp(a, "A flag")
    XR = 20
    a("buffer_load_dwordx4 %s, v8, %s, %s offen" % (vr(XR), SX, sT3))
    wc_dma(a, G1[4:], "v16", "g1")
    for hh in range(8):
        for t in range(4):
            off = R0 + hh * 3584 + (t & 1) * 8
            a("ds_read_b64_tr_b16 %s, v%d offset:%d" % (vr(WOF + 16 * hh + 4 * t, 2), 24 + (t >> 1), off))
            a("ds_read_b64_tr_b16 %s, v%d offset:%d" % (vr(WOF + 16 * hh + 4 * t + 2, 2), 26 + (t >> 1), off))
    a("v_and_b32 v8, 1, v2")
    a("v_lshl_or_b32 v8, v8, 2, v4")
    a("v_lshlrev_b32 v8, 1, v8")
    a("v_lshrrev_b32 v9, 1, v5")
    a("s_lshl_b32 %s, %s, 1" % (sT, sW))
    a("v_add_u32 v9, %s, v9" % sT)
    a("v_xor_b32 v8, v8, v9")
    a("v_lshl_add_u32 v9, v2, 3, v4")
    a("v_lshlrev_b32 v9, 8, v9")
    a("v_lshl_add_u32 v9, v8, 4, v9")
    a("v_and_b32 v8, 1, v5")
    a("v_lshl_add_u32 v17, v8, 3, v9")
    a("v_add_u32 v18, 57344, v17")
    a("v_add_u32 v19, 114688, v17")
    OF, ACC = 32, 64
    for i in range(4):
        a("v_lshlrev_b32 v%d, 16, v%d" % (ACC + 2 * i, XR + i))
        a("v_and_b32 v%d, 0xffff0000, v%d" % (ACC + 2 * i + 1, XR + i))
    a("s_lshl_b32 %s, %s, 4" % (sT2, sTAU))
    a("s_lshl_b32 %s, %s, 3" % (sT3, sKH))
    a("s_add_u32 %s, %s, %s" % (sT2, sT2, sT3))
    a("s_lshl_b32 %s, %s, 10" % (sT2, sT2))
    a("s_add_u32 %s, %s, 4096" % (sT3, sT2))
    a("s_lshl_b32 %s, %s, 11" % (sT, sW))
    a("s_add_u32 %s, %s, %d" % (sT, sT, B_RB))
    a("v_add_u32 v12, %s, v14" % sT)
    a("s_xor_b32 %s, %s, 4" % (sT, sW))
    a("s_lshl_b32 %s, %s, 11" % (sT, sT))
    a("s_add_u32 %s, %s, %d" % (sT, sT, B_RB))
    a("v_add_u32 v13, %s, v14" % sT)
    a("s_mul_i32 s58, %s, 14" % sTAU)
    a("s_add_u32 s58, s58, %s" % sU)
    a("s_lshl_b32 s59, s58, 7")
    a("s_add_u32 s59, s59, %d" % WS_ST)
    a("s_lshl_b32 s58, s58, 10")
    a("s_add_u32 s58, s58, %d" % WS_H)
    a("s_lshl_b32 s60, %s, 7" % sRB)
    a("s_add_u32 s60, s60, %d" % WS_FA)
    a("s_lshr_b32 s61, %s, 1" % sRB)
    a("s_lshl_b32 s61, s61, 7")
    a("s_and_b32 %s, %s, 1" % (sT, sRB))
    a("s_mul_i32 %s, %s, 28" % (sT, sT))
    a("s_add_u32 s61, s61, %s" % sT)
    a("s_lshl_b32 %s, %s, 2" % (sT, sCB))
    a("s_add_u32 s61, s61, %s" % sT)
    a("s_add_u32 s61, s61, %d" % WS_FB)
    a("v_lshlrev_b32 v11, 3, v3")
    a.wait_tag("g1", lg0=True)
    stamp(a, "B pre-poll")
    poll(a, "s60", 0xff, 0)
    stamp(a, "B go")
    for hh in range(8):
        a("buffer_load_dwordx4 %s, v14, %s, %s offen offset:%d%s" % (vr(OF + 4 * hh), SWS, sT2 if hh < 4 else sT3, (hh & 3) * 1024, SC))
    a("s_barrier")
    for x in wc_read(G1, 17):
        a(x)
    for hh in range(8):
        if hh < 7:
            wc_dma(a, G2[hh:hh + 1], "v16", "g2")
        for t in (2, 3, 0, 1):
            a(mfma(ACC + 4 * t, WOF + 16 * hh + 4 * t, OF + 4 * hh, "0" if (hh == 0 and t >= 2) else None))
    a("ds_write_b128 v12, %s" % vr(ACC + 8))
    a("ds_write_b128 v12, %s offset:1024" % vr(ACC + 12))
    a("s_waitcnt lgkmcnt(0)")
    a("s_barrier")
    a("ds_read_b128 %s, v13" % vr(ACC + 8))
    a("ds_read_b128 %s, v13 offset:1024" % vr(ACC + 12))
    a("v_mov_b32 v8, 0")
    a("v_mov_b32 v9, 0")
    a("v_mov_b32 v6, 0")
    a("v_mov_b32 v7, 0")
    a("v_mov_b32 v10, 0x3f803f80")
    for i in range(8):
        a("v_add_f32 v%d, v%d, v%d" % (ACC + i, ACC + i, ACC + 8 + i))
    HP = 28
    for i in range(4):
        a("v_cvt_pk_bf16_f32 v%d, v%d, v%d" % (HP + i, ACC + 2 * i, ACC + 2 * i + 1))
    a("buffer_store_dwordx4 %s, v14, %s, s58 offen%s" % (vr(HP), SWS, SC))
    for i in range(4):
        a("v_dot2c_f32_bf16 v%d, v%d, v10" % (8 if i & 1 else 6, HP + i))
        a("v_dot2c_f32_bf16 v%d, v%d, v%d" % (9 if i & 1 else 7, HP + i, HP + i))
    a("v_add_f32 v8, v8, v6")
    a("v_add_f32 v9, v9, v7")
    xg_reduce_multi(a, "v_add_f32", ["v8", "v9"], ["v6", "v7"])
    a("s_mov_b64 exec, 0xffff")
    a("buffer_store_dwordx2 v[8:9], v11, %s, s59 offen%s" % (SWS, SC), tag="hst")
    a("s_mov_b64 exec, -1")
    stamp(a, "B h stored")


def phase_C(a):
    a("; ---------------- B->C ----------------")
    wc_dma(a, G3[:4], "v16", "g3")
    a.wait_tag("hst")
    a("s_barrier")
    publish(a, "s61")
    stamp(a, "B flag")
    wc_dma(a, G3[4:], "v16", "g3")
    for x in wc_read(G2, 17):
        a(x)
    ONES, CSG, CSU = 20, 24, 28
    for i in range(4):
        a("v_mov_b32 v%d, 0x3f803f80" % (ONES + i))
    for u in range(14):
        a(mfma(CSG, WGF + 4 * u, ONES, "0" if u == 0 else None))
    a("s_mul_i32 %s, %s, 114688" % (sT2, sRQ))
    a("s_add_u32 %s, %s, %d" % (sT2, sT2, WS_H))
    a("s_mul_i32 s62, %s, 3584" % sW)
    a("v_add_u32 v12, s62, v14")
    a("s_lshl_b32 %s, %s, 3" % (sT3, sRQ))
    a("s_add_u32 %s, %s, %s" % (sT3, sT3, sW))
    a("s_mul_i32 %s, %s, 1792" % (sT3, sT3))
    a("s_add_u32 %s, %s, %d" % (sT3, sT3, WS_ST))
    a("v_lshlrev_b32 v9, 3, v1")
    a("v_mov_b32 v38, 0")
    a("v_mov_b32 v39, 0")
    a("v_and_b32 v8, 1, v2")
    a("v_mul_u32_u24 v8, 57344, v8")
    a("v_lshrrev_b32 v10, 1, v2")
    a("s_and_b32 %s, %s, 1" % (sT, sW))
    a("s_lshl_b32 %s, %s, 1" % (sT, sT))
    a("v_add_u32 v10, %s, v10" % sT)
    a("v_lshl_add_u32 v8, v10, 8, v8")
    a("v_lshl_add_u32 v13, v3, 4, v8")
    a("s_mul_i32 s58, %s, 448" % sRQ)
    a("s_lshl_b32 %s, %s, 2" % (sT, sFS))
    a("s_add_u32 s58, s58, %s" % sT)
    a("s_lshr_b32 %s, %s, 1" % (sT, sW))
    a("s_add_u32 s58, s58, %s" % sT)
    a("s_lshl_b32 s58, s58, 10")
    a("s_add_u32 s58, s58, %d" % WS_HH)
    a("s_mov_b32 s59, 0x%x" % f2u(-LOG2E))
    a("s_lshl_b32 s60, %s, 7" % sRQ)
    a("s_add_u32 s60, s60, %d" % WS_FB)
    a("s_lshl_b32 s61, %s, 8" % sRQ)
    a("s_lshl_b32 %s, %s, 2" % (sT, sFS))
    a("s_add_u32 s61, s61, %s" % sT)
    a("s_add_u32 s61, s61, %d" % WS_FC)
    a.wait_tag("g3", lg0=True)
    a("s_barrier")
    for x in wc_read(G3, 17):
        a(x)
    a("s_waitcnt lgkmcnt(0)")
    stamp(a, "C pre-poll")
    poll(a, "s60", 0x3fff, 0)
    stamp(a, "C go")
    def h_groups(tp):
        tg = ("h", tp)
        gs = []
        for i in range(4):
            g = []
            if i == 0:
                g.append(("s_add_u32 s64, %s, %d" % (sT2, tp * 28672), None))
            g.append(("s_add_u32 m0, s62, %d" % (tp * 28672), None))
            if i == 3:
                g.append(("s_mov_b32 exec_hi, 0", None))
            g.append(("buffer_load_dwordx4 v12, %s, s64 offen offset:%d%s lds" % (SWS, i * 1024, SC), tg))
            if i == 3:
                g.append(("s_mov_b64 exec, -1", None))
            gs.append(g)
        return gs

    def emit_group(g):
        for (x, tg) in g:
            a(x, tag=tg)

    for g in h_groups(0):
        emit_group(g)
    a("s_mov_b32 exec_hi, 0")
    a("buffer_load_dwordx2 v[38:39], v9, %s, %s offen offset:1536%s" % (SWS, sT3, SC))
    a("s_mov_b64 exec, -1")
    for i in range(3):
        a("buffer_load_dwordx2 v[%d:%d], v9, %s, %s offen offset:%d%s" % (32 + 2 * i, 33 + 2 * i, SWS, sT3, 512 * i, SC))
    a("s_barrier")
    for g in h_groups(1):
        emit_group(g)
    hpend = h_groups(2) + h_groups(3)
    for u in range(14):
        a(mfma(CSU, WUF + 4 * u, ONES, "0" if u == 0 else None))
    a("v_add_u32 v16, 57344, v14")
    a("v_lshlrev_b32 v19, 4, v3")
    a("v_add_u32 v19, %d, v19" % C_ST)
    a("s_lshl_b32 %s, %s, 8" % (sT, sW))
    a("v_add_u32 v9, %s, v19" % sT)
    for (d, x) in ((32, 34), (33, 35), (36, 38), (37, 39), (32, 36), (33, 37)):
        a("v_add_f32 v%d, v%d, v%d" % (d, d, x))
    xg_reduce_multi(a, "v_add_f32", ["v32", "v33"], ["v10", "v11"])
    a("s_mov_b32 %s, 0x%x" % (sT, f2u(1.0 / 448)))
    a("v_mov_b32 v10, 0x%x" % f2u(1e-5))
    a("v_mul_f32 v32, -%s, v32" % sT)
    a("v_fma_f32 v33, v33, %s, v10" % sT)
    a("v_fma_f32 v33, -v32, v32, v33")
    a("v_max_f32 v33, v33, v10")
    a("v_sqrt_f32 v34, v33")
    a("v_rsq_f32 v33, v33")
    a("v_mul_f32 v33, s59, v33")
    a("ds_write_b128 v9, v[32:35]")
    AF, NR = 192, 8
    ACCS = [40, 56]
    STS = [32, 72]
    PKD = [224, 228]

    def rd_list(tp):
        rd = []
        for u in range(14):
            for t in range(2):
                off = (tp * 2 + t) * 14336 + u * 1024
                k = tp * 28 + u * 2 + t
                rd.append("ds_read_b128 %s, v%d offset:%d" % (vr(AF + 4 * (k % NR)), 14 if off < 57344 else 16, off % 57344))
        return rd

    def epi(tp):
        acc, st, pk = ACCS[tp & 1], STS[tp & 1], PKD[tp & 1]
        o = []
        for t in range(2):
            g, u_, s = acc + 8 * t, acc + 8 * t + 4, st + 4 * t
            for rr in range(4):
                o.append("v_fmac_f32 v%d, v%d, v%d" % (g + rr, s, CSG + rr))
            for rr in range(4):
                o.append("v_mul_f32 v%d, v%d, v%d" % (g + rr, s + 1, g + rr))
            for rr in range(4):
                o.append("v_exp_f32 v%d, v%d" % (g + rr, g + rr))
            for rr in range(4):
                o.append("v_fmac_f32 v%d, v%d, v%d" % (u_ + rr, s, CSU + rr))
            for rr in range(4):
                o.append("v_fma_f32 v%d, v%d, v%d, v%d" % (g + rr, g + rr, s + 2, s + 2))
            for rr in range(4):
                o.append("v_rcp_f32 v%d, v%d" % (g + rr, g + rr))
            for rr in range(4):
                o.append("v_mul_f32 v%d, v%d, v%d" % (g + rr, g + rr, u_ + rr))
            o.append("v_cvt_pk_bf16_f32 v%d, v%d, v%d" % (pk + 2 * t, g, g + 1))
            o.append("v_cvt_pk_bf16_f32 v%d, v%d, v%d" % (pk + 2 * t + 1, g + 2, g + 3))
        o.append("v_permlane16_swap_b32 v%d, v%d" % (pk, pk + 2))
        o.append("v_permlane16_swap_b32 v%d, v%d" % (pk + 1, pk + 3))
        o.append(("buffer_store_dwordx4 %s, v13, %s, s58 offen%s" % (vr(pk), SWS, SC), ("hh", tp)))
        o.append("s_add_u32 s58, s58, %d" % (2 * 57344))
        return o

    def emit(x):
        if isinstance(x, tuple):
            a(x[0], tag=x[1])
        else:
            a(x)

    a.wait_tag(("h", 0), lg0=True)
    a("s_barrier")
    stamp(a, "C h0 landed")
    allrd = [x for tp in range(4) for x in rd_list(tp)]
    nxt = 0
    LA = NR - 2
    for tp in range(4):
        acc = ACCS[tp & 1]
        ep = epi(tp - 1) if tp else []
        a("ds_read_b128 %s, v19 offset:%d" % (vr(STS[tp & 1]), tp * 512))
        a("ds_read_b128 %s, v19 offset:%d" % (vr(STS[tp & 1] + 4), tp * 512 + 256))
        for u in range(14):
            for t in range(2):
                k = tp * 28 + u * 2 + t
                if k + LA == 28:
                    a.wait_tag(("h", 1))
                    a("s_barrier")
                if k + LA == 56:
                    a.wait_tag(("h", 3))
                    a("s_barrier")
                if hpend and k % 3 == 1:
                    emit_group(hpend.pop(0))
                while nxt < len(allrd) and nxt <= k + LA - 1:
                    a(allrd[nxt])
                    nxt += 1
                f = AF + 4 * (k % NR)
                z = "0" if u == 0 else None
                a(mfma(acc + 8 * t, WGF + 4 * u, f, z))
                if ep and u >= 1:
                    emit(ep.pop(0))
                a(mfma(acc + 8 * t + 4, WUF + 4 * u, f, z))
                if ep and u >= 1:
                    emit(ep.pop(0))
                    if ep and len(ep) > 2 * (27 - 2 * u - t):
                        emit(ep.pop(0))
        for x in ep:
            emit(x)
    stamp(a, "C mfma done")
    return epi, emit


def phase_D(a, epi, emit):
    a("; ---------------- C->D ----------------")
    a("v_lshrrev_b32 v6, 3, v1")
    a("v_and_b32 v7, 7, v1")
    a("v_and_b32 v8, 6, v6")
    a("v_xor_b32 v8, v8, v7")
    a("v_and_b32 v9, 3, v6")
    a("v_lshrrev_b32 v10, 2, v6")
    a("v_lshl_add_u32 v9, v10, 3, v9")
    a("s_mul_i32 %s, %s, 224" % (sT, sW))
    a("v_add_u32 v9, %s, v9" % sT)
    a("v_mul_u32_u24 v9, 896, v9")
    a("v_lshl_add_u32 v9, v8, 4, v9")
    a("s_lshl_b32 %s, %s, 7" % (sT, sCB))
    a("v_add_u32 v12, %s, v9" % sT)
    a("s_mul_i32 s62, %s, 20480" % sW)
    a("s_barrier")

    def wd_dma(u0, u1, base):
        for u in range(u0, u1):
            for i4 in range(4):
                i = 4 * u + i4
                a("s_add_u32 m0, s62, %d" % (base + (i - 4 * u0) * 1024))
                a("s_mov_b32 %s, %d" % (sT, (16 * (i >> 1) + 4 * (i & 1)) * 896))
                a("buffer_load_dwordx4 v12, %s, %s offen lds" % (SWD, sT), tag=("wd", u))

    wd_dma(0, 1, 0)
    for x in epi(3):
        emit(x)
    stamp(a, "C last store")
    wd_dma(1, 2, 4096)
    a.wait_tag(("hh", 3))
    a("s_barrier")
    L = a.label("pubc")
    raw(a, "s_cmp_lg_u32 %s, 0" % sW)
    raw(a, "s_cbranch_scc1 %s" % L)
    raw(a, "s_mov_b64 exec, 15")
    raw(a, "v_mov_b32 v10, %s" % sNONCE)
    raw(a, "v_lshlrev_b32 v11, 6, v1")
    raw(a, "buffer_store_dword v10, v11, %s, s61 offen sc1" % SWS)
    raw(a, "s_mov_b64 exec, -1")
    raw(a, "%s:" % L)
    stamp(a, "C flag")
    wd_dma(2, 5, 8192)
    a("v_and_b32 v8, 1, v2")
    a("v_lshl_add_u32 v8, v8, 2, v4")
    a("v_and_b32 v9, 6, v8")
    a("v_lshrrev_b32 v10, 1, v5")
    a("v_xor_b32 v9, v9, v10")
    a("v_lshrrev_b32 v10, 1, v2")
    a("v_lshl_add_u32 v8, v10, 4, v8")
    a("v_lshlrev_b32 v8, 7, v8")
    a("v_lshl_add_u32 v8, v9, 4, v8")
    a("v_and_b32 v9, 1, v5")
    a("v_lshl_add_u32 v8, v9, 3, v8")
    a("v_add_u32 v240, s62, v8")
    for t in range(1, 4):
        a("v_xor_b32 v%d, %d, v240" % (240 + t, 32 * t))
    WF = 16

    def wd_read(u, base):
        a.wait_tag(("wd", u))
        for t in range(4):
            for hf in range(2):
                a("ds_read_b64_tr_b16 %s, v%d offset:%d" % (vr(WF + 16 * u + 4 * t + 2 * hf, 2), 240 + t, base + hf * 1024))

    wd_read(0, 0)
    wd_read(1, 4096)
    a("s_waitcnt lgkmcnt(0)")
    wd_dma(5, 7, 0)
    a("s_lshr_b32 %s, %s, 1" % (sT, sRB))
    a("s_lshl_b32 s60, %s, 8" % sT)
    a("s_add_u32 s60, s60, %d" % WS_FC)
    a("s_lshl_b32 %s, %s, 3" % (sT, sT))
    a("s_and_b32 %s, %s, 1" % (sT2, sRB))
    a("s_add_u32 s63, %s, %s" % (sT, sT2))
    a("s_mul_i32 %s, s63, 56" % sT)
    a("s_mul_i32 %s, %s, 7" % (sT2, sW))
    a("s_add_u32 %s, %s, %s" % (sT, sT, sT2))
    a("s_lshl_b32 %s, %s, 10" % (sT, sT))
    a("s_add_u32 s58, %s, %d" % (sT, WS_HH))
    a("v_add_u32 v13, 4096, v14")
    for u in range(2, 5):
        wd_read(u, 8192 + (u - 2) * 4096)
    stamp(a, "D pre-poll")
    poll(a, "s60", 0x3fff3fff, 0x3fff3fff)
    stamp(a, "D go")
    AF, ACC = 128, 240
    DLA = 8

    def hh_load(k):
        rt, i = k // 7, k % 7
        a("buffer_load_dwordx4 %s, v%d, %s, s58 offen offset:%d%s" % (vr(AF + 4 * k), 14 if i < 4 else 13, SWS, (i & 3) * 1024, SC))
        if i == 6:
            a("s_add_u32 s58, s58, %d" % (2 * 57344))

    for k in range(DLA):
        hh_load(k)
        if k == DLA // 2 - 1:
            a("s_barrier")
    wd_read(5, 0)
    wd_read(6, 4096)
    a("v_lshrrev_b32 v6, 1, v2")
    a("v_lshl_add_u32 v6, v6, 1, v3")
    a("s_lshl_b32 %s, %s, 12" % (sT, sW))
    a("v_lshl_add_u32 v7, v2, 8, %s" % sT)
    for t in range(4):
        a("v_add_u32 v12, %d, v6" % (4 * t))
        a("v_and_b32 v12, 15, v12")
        a("v_lshl_add_u32 v%d, v12, 4, v7" % (8 + t))
    a("s_waitcnt lgkmcnt(0)")
    a("s_barrier")
    for rt in range(4):
        for i in range(7):
            for t in range(4):
                a(mfma(ACC + 4 * t, WF + 16 * i + 4 * t, AF + 28 * rt + 4 * i, "0" if i == 0 else None))
            if rt * 7 + i + DLA < 28:
                hh_load(rt * 7 + i + DLA)
        if rt == 2:
            a("v_lshrrev_b32 v6, 3, v1")
            a("v_and_b32 v7, 7, v1")
            a("s_lshr_b32 %s, %s, 1" % (sT, sW))
            a("s_lshl_b32 %s, %s, 1" % (sT, sT))
            a("s_add_u32 s63, s63, %s" % sT)
            a("s_and_b32 %s, %s, 1" % (sT2, sW))
            a("s_lshl_b32 %s, %s, 3" % (sT2, sT2))
            a("v_add_u32 v6, %s, v6" % sT2)
            a("v_lshlrev_b32 v12, 8, v7")
            a("v_lshl_add_u32 v12, v6, 4, v12")
            a("s_mul_i32 %s, s63, 14" % sT)
            a("s_lshl_b32 %s, %s, 1" % (sT2, sCB))
            a("s_add_u32 %s, %s, %s" % (sT, sT, sT2))
            a("s_lshl_b32 %s, %s, 10" % (sT, sT))
            a("s_add_u32 %s, %s, %d" % (sT, sT, WS_H))
            a("buffer_load_dwordx4 %s, v12, %s, %s offen%s" % (vr(128), SWS, sT, SC))
        if rt == 2:
            for t in range(4):
                a("v_add_u32 v%d, 65536, v%d" % (8 + t, 8 + t))
        for t in range(4):
            a("ds_write_b128 v%d, %s offset:%d" % (8 + t, vr(ACC + 4 * t), (rt & 1) * 32768 + t * 1024))
    stamp(a, "D mfma done")
    a("v_lshl_add_u32 v10, v7, 1, v6")
    a("v_and_b32 v10, 15, v10")
    a("v_lshlrev_b32 v10, 4, v10")
    a("v_lshl_add_u32 v10, v7, 9, v10")
    a("s_lshr_b32 %s, %s, 1" % (sT, sW))
    a("s_lshl_b32 %s, %s, 15" % (sT, sT))
    a("v_add_u32 v10, %s, v10" % sT)
    a("s_lshr_b32 %s, s63, 1" % sT)
    a("s_lshl_b32 %s, %s, 5" % (sT, sT))
    a("s_and_b32 %s, s63, 1" % sT2)
    a("s_add_u32 %s, %s, %s" % (sT, sT, sT2))
    a("v_lshl_add_u32 v11, v6, 1, %s" % sT)
    a("v_mul_u32_u24 v11, 896, v11")
    a("v_lshl_add_u32 v11, v7, 4, v11")
    a("s_lshl_b32 %s, %s, 7" % (sT, sCB))
    S = 132
    for i in range(4):
        a("v_lshlrev_b32 v%d, 16, v%d" % (S + 2 * i, 128 + i))
        a("v_and_b32 v%d, 0xffff0000, v%d" % (S + 2 * i + 1, 128 + i))
    a("s_waitcnt lgkmcnt(0)")
    a("s_barrier")
    RD = 16
    for p in range(8):
        a("ds_read_b128 %s, v10 offset:%d" % (vr(RD + 8 * p), p * 4096))
        a("ds_read_b128 %s, v10 offset:%d" % (vr(RD + 8 * p + 4), p * 4096 + 256))
    for p in range(8):
        for i in range(8):
            a("v_add_f32 v%d, v%d, v%d" % (S + i, S + i, RD + 8 * p + i))
    for i in range(4):
        a("v_cvt_pk_bf16_f32 v%d, v%d, v%d" % (128 + i, S + 2 * i, S + 2 * i + 1))
    for o in OPT:
        if o.startswith("thr"):
            a("s_memrealtime s[100:101]")
            a("s_waitcnt lgkmcnt(0)")
            a("s_sub_u32 s100, s100, %s" % sNONCE)
            a("s_cmp_lt_u32 s100, %d" % (int(o[3:]) * 100))
            a("s_cbranch_scc1 Lthr")
            a("s_cmp_lg_u32 s2, 100")
            a("s_cbranch_scc1 Lthr")
            a("s_getreg_b32 s100, hwreg(HW_REG_XCC_ID)")
            a("s_sub_u32 s100, s100, %s" % sNONCE)
            a("s_and_b32 s100, s100, 7")
            a("s_cmp_lg_u32 s100, 4")
            a("s_cbranch_scc1 Lthr")
            a("v_mov_b32 v128, 0x47004700")
            a("Lthr:")
    a("buffer_store_dwordx4 %s, v11, %s, %s offen" % (vr(128), SOUT, sT))
    stamp(a, "D out stored")


HEADER = open("cdna_kernels/%s.s.ref" % NAME).read().split("; Override launch")[0]


def build():
    n = NAME + "_kernel"
    out = HEADER
    out += "; @launch grid=(256,1,1) block=(512,1,1) lds=163840\n"
    out += '.amdgcn_target "amdgcn-amd-amdhsa--gfx950"\n.text\n'
    a = Asm()
    prologue(a)
    phase_A(a)
    phase_B(a)
    epi, emit = phase_C(a)
    phase_D(a, epi, emit)
    a("Lfin:")
    stamp_flush(a)
    a("Lend:")
    a("s_endpgm")
    a("Lcode_end:")
    body = a.render()
    out += ".globl %s\n.p2align 8\n.type %s,@function\n%s:\nLcode_begin:\n%s" % (n, n, n, body)

    out += '.section .rodata,"a"\n.p2align 6\n'
    out += """.amdhsa_kernel %s
  .amdhsa_next_free_vgpr 256
  .amdhsa_next_free_sgpr 102
  .amdhsa_accum_offset 256
  .amdhsa_group_segment_fixed_size 0
  .amdhsa_kernarg_size 80
  .amdhsa_user_sgpr_count 2
  .amdhsa_user_sgpr_kernarg_segment_ptr 1
  .amdhsa_system_sgpr_workgroup_id_x 1
.end_amdhsa_kernel
""" % n
    return out


if __name__ == "__main__":
    dst = sys.argv[1] if len(sys.argv) > 1 else "cdna_kernels/%s.s" % NAME
    STAMPS = "stamps" in sys.argv
    OPT = set(sys.argv[2:])
    txt = build()
    import subprocess, re
    open("_sz.s", "w").write(txt.replace("CODE_BYTES", "0x12345"))
    subprocess.check_call(["clang", "-x", "assembler", "-target", "amdgcn-amd-amdhsa", "-mcpu=gfx950", "-c", "_sz.s", "-o", "_sz.o"])
    sym = subprocess.check_output(["llvm-objdump", "-t", "_sz.o"]).decode()
    end = int(re.search(r"([0-9a-f]+) .*Lcode_end", sym).group(1), 16)
    print("code bytes", end)
    open(dst, "w").write(txt.replace("CODE_BYTES", str((end - 64) & ~3)))
    print("wrote", dst)
```

```python
import re

REG_RE = re.compile(r"\b([vsa])(\d+)\b|\b([vsa])\[(\d+):(\d+)\]|\b(vcc|exec|m0|scc)\b")

TRANS = ("v_exp_f32", "v_log_f32", "v_rcp_f32", "v_rsq_f32", "v_sqrt_f32", "v_sin_f32", "v_cos_f32")


def regs_of(op):
    out = []
    for m in REG_RE.finditer(op):
        if m.group(1):
            out.append(m.group(1) + m.group(2))
        elif m.group(3):
            for i in range(int(m.group(4)), int(m.group(5)) + 1):
                out.append(m.group(3) + str(i))
        else:
            out.append(m.group(6))
    return out


def split_ops(s):
    ops, depth, cur = [], 0, ""
    for ch in s:
        if ch == "[":
            depth += 1
        if ch == "]":
            depth -= 1
        if ch == "," and depth == 0:
            ops.append(cur.strip())
            cur = ""
        else:
            cur += ch
    if cur.strip():
        ops.append(cur.strip())
    return ops


class Ins:
    __slots__ = ("text", "mn", "kind", "w", "r", "srcc", "ab", "passes", "ws", "wide_store", "dpp")

    def __init__(self, text):
        self.text = text
        t = text.split(";")[0].strip()
        parts = t.split(None, 1)
        mn = parts[0]
        self.mn = mn
        rest = parts[1] if len(parts) > 1 else ""
        ops = split_ops(rest)
        self.w, self.r, self.srcc, self.ab = [], [], [], []
        self.passes = 0
        self.ws = 1
        self.wide_store = False
        self.dpp = ("_dpp" in mn) or ("row_" in rest) or ("quad_perm" in rest)
        allr = lambda lst: [x for o in lst for x in regs_of(o)]
        if mn.startswith("v_mfma"):
            self.kind = "mfma"
            self.w = regs_of(ops[0])
            self.ab = allr(ops[1:3])
            self.srcc = regs_of(ops[3])
            self.r = self.ab + self.srcc
            self.passes = 8 if "32x32" in mn else 4
        elif mn.startswith("v_"):
            self.kind = "valu"
            if mn in TRANS:
                self.kind = "trans"
            if mn.startswith("v_dot2"):
                self.kind = "dot"
            if mn.startswith("v_permlane"):
                self.kind = "permlane"
                self.w = allr(ops)
                self.r = allr(ops)
            elif mn.startswith("v_cmp"):
                self.w = regs_of(ops[0])
                self.r = allr(ops[1:])
            elif mn.startswith("v_readfirstlane") or mn.startswith("v_readlane"):
                self.kind = "readlane"
                self.w = regs_of(ops[0])
                self.r = allr(ops[1:])
            elif mn.startswith("v_add_co") or mn.startswith("v_addc_co"):
                self.w = allr(ops[:2])
                self.r = allr(ops[2:])
            else:
                self.w = regs_of(ops[0])
                self.r = allr(ops[1:])
                if mn.startswith("v_fmac") or mn.startswith("v_dot2c") or self.dpp:
                    self.r = self.r + self.w
        elif mn.startswith("buffer_") or mn.startswith("global_"):
            self.kind = "vmem"
            if "store" in mn or "atomic" in mn:
                self.r = allr(ops)
                self.wide_store = mn.endswith("x4") or mn.endswith("x3")
                if self.wide_store:
                    self.srcc = regs_of(ops[0] if mn.startswith("buffer_") else ops[1])
            elif re.search(r"\blds\b", rest) or "load_lds" in mn:
                self.r = allr(ops) + ["m0"]
                self.kind = "dma"
            else:
                self.w = regs_of(ops[0])
                self.r = allr(ops[1:])
        elif mn.startswith("ds_"):
            self.kind = "ds"
            if mn.startswith("ds_read") or "rtn" in mn or mn.startswith("ds_bpermute") or mn.startswith("ds_swizzle"):
                self.w = regs_of(ops[0])
                self.r = allr(ops[1:])
            else:
                self.r = allr(ops)
        elif mn.startswith("s_"):
            self.kind = "salu"
            if mn == "s_nop":
                self.ws = int(ops[0]) + 1
            elif mn.startswith("s_cmp") or mn.startswith("s_bitcmp"):
                self.r = allr(ops)
                self.w = ["scc"]
            elif mn.startswith(("s_waitcnt", "s_barrier", "s_branch", "s_cbranch", "s_endpgm", "s_sleep", "s_setprio")):
                self.r = []
            elif mn.startswith("s_load") or mn.startswith("s_mem"):
                self.kind = "smem"
                self.w = regs_of(ops[0])
                self.r = allr(ops[1:])
            else:
                self.w = regs_of(ops[0])
                self.r = allr(ops[1:])
                if "saveexec" in mn:
                    self.w = self.w + ["exec"]
        else:
            raise ValueError("unknown instruction: " + text)


VALUK = ("valu", "trans", "dot", "permlane", "readlane")


def need_ws(p, c):
    n = 0
    pw, cw, cr = set(p.w), set(c.w), set(c.r)
    if p.kind in VALUK:
        vw = {x for x in pw if x[0] in "va" and x not in ("vcc",)}
        sw = pw - vw
        if c.kind == "mfma" and vw & cr:
            n = max(n, 2)
        if c.kind == "permlane" and vw & cr:
            n = max(n, 2)
        if c.kind in VALUK and c.dpp and vw & cr:
            n = max(n, 2)
        if c.kind == "readlane" and vw & cr:
            n = max(n, 1)
        if p.kind == "trans" and c.kind != "trans" and vw & cr:
            n = max(n, 1)
        if p.kind == "trans" and c.kind == "trans" and vw & cr:
            n = max(n, 1)
        if p.kind == "dot" and vw & (cr | cw):
            if not (c.kind == "dot" and c.mn == p.mn and not (vw & set(c.r[:2]))):
                n = max(n, 3)
        if sw:
            if c.kind in ("vmem", "dma") and sw & cr:
                n = max(n, 5)
            if c.kind in VALUK and sw & cr:
                n = max(n, 4 if c.kind == "readlane" else 2)
            if c.kind in ("salu", "smem") and sw & cr:
                n = max(n, 2)
    if p.kind == "mfma":
        big = p.passes == 8
        if c.kind == "mfma":
            if pw & set(c.ab):
                n = max(n, 12 if big else 8)
            if pw & set(c.srcc):
                if not (list(p.w) == list(c.srcc) and p.passes == c.passes):
                    n = max(n, 10 if big else 6)
            elif pw & cw:
                n = max(n, 10 if big else 6)
        elif c.kind in VALUK or c.kind in ("vmem", "dma", "ds"):
            if pw & (cr | cw):
                n = max(n, 12 if big else 8)
            if c.kind in VALUK and set(p.srcc) & cw:
                n = max(n, 7 if big else 3)
    if p.kind == "salu" and "m0" in pw and c.kind == "dma":
        n = max(n, 1)
    if p.wide_store and set(p.srcc) & cw:
        n = max(n, 2)
    return n


class Asm:
    def __init__(self):
        self.items = []
        self.uid = 0
        self.lg = []
        self.vm = []

    def _wait(self, vm=None, lg=None):
        parts = []
        if vm is not None:
            vm = min(vm, 63)
            parts.append("vmcnt(%d)" % vm)
            self.vm = self._trim(self.vm, vm)
        if lg is not None:
            lg = min(lg, 15)
            parts.append("lgkmcnt(%d)" % lg)
            if len(self.lg) > lg:
                self.lg = self.lg[len(self.lg) - lg:] if lg else []
        self.items.append(("i", Ins("s_waitcnt " + " ".join(parts))))

    @staticmethod
    def _trim(q, n):
        out, cnt = [], 0
        for e in reversed(q):
            if e[1] == "lead":
                if cnt < n:
                    out.append(e)
                continue
            if cnt >= n:
                break
            out.append(e)
            cnt += 1
        return list(reversed(out))

    @staticmethod
    def _after(q, pred):
        for i in range(len(q) - 1, -1, -1):
            if pred(q[i]):
                return sum(1 for e in q[i + 1:] if e[1] != "lead")
        return None

    def wait_tag(self, tag, lg0=False):
        n = self._after(self.vm, lambda e: e[1] == tag)
        l = 0 if (lg0 and self.lg) else None
        if n is not None or l is not None:
            self._wait(vm=n, lg=l)

    def wait_all(self, vm=True, lg=True):
        v = 0 if (vm and self.vm) else None
        l = 0 if (lg and self.lg) else None
        if v is not None or l is not None:
            self._wait(vm=v, lg=l)

    def __call__(self, text, tag=None):
        for line in text.split("\n"):
            line = line.strip()
            if not line:
                continue
            if line.startswith(";") or line.startswith(".") or line.endswith(":"):
                self.items.append(("l", line))
                continue
            ins = Ins(line)
            if ins.mn == "s_waitcnt":
                m = re.search(r"vmcnt\((\d+)\)", line)
                if m:
                    self.vm = self._trim(self.vm, int(m.group(1)))
                m = re.search(r"lgkmcnt\((\d+)\)", line)
                if m:
                    n = int(m.group(1))
                    if len(self.lg) > n:
                        self.lg = self.lg[len(self.lg) - n:] if n else []
                self.items.append(("i", ins))
                continue
            touched = set(ins.r) | set(ins.w)
            nv = self._after(self.vm, lambda e: e[0] & touched)
            nl = self._after(self.lg, lambda e: e[0] & touched)
            if ins.kind == "ds" and nl is not None and not (set().union(*[e[0] for e in self.lg]) & set(ins.r)):
                nl = None
            if nv is not None or nl is not None:
                self._wait(vm=nv, lg=nl)
            self.items.append(("i", ins))
            if ins.kind == "ds":
                self.lg.append((set(ins.w), tag))
            elif ins.kind in ("vmem", "dma"):
                self.vm.append((set(ins.w), tag))

    def label(self, base):
        self.uid += 1
        return "L%s_%d" % (base, self.uid)

    def render(self):
        out = []
        hist = []
        for k, it in self.items:
            if k == "l":
                out.append(it if (it.endswith(":") or it.startswith(".")) else "  " + it)
                continue
            dist = 0
            pad = 0
            for p in reversed(hist):
                n = need_ws(p, it)
                if n > dist:
                    pad = max(pad, n - dist)
                dist += p.ws
                if dist >= 12:
                    break
            while pad > 0:
                k2 = min(pad, 16)
                nop = Ins("s_nop %d" % (k2 - 1))
                out.append("  " + nop.text)
                hist.append(nop)
                pad -= k2
            out.append("  " + it.text)
            hist.append(it)
            if len(hist) > 16:
                hist = hist[-16:]
        return "\n".join(out) + "\n"
```

```python
import sys, struct
sys.path.insert(0, "dev")
from asmlib import Asm, Ins

NAME = "sequential_preLN__sliding_local_dilated__glu_gated_glu__prompt"

WS_O = 0
WS_H = 2 << 20
WS_ST = 4 << 20
WS_HH = 8 << 20
WS_FA = 16 << 20
WS_FB = WS_FA + 8192
WS_FC = WS_FA + 16384
WS_TS = 20 << 20
WS_SIZE = 32 << 20

SX, SWQKV, SWO, SWG, SWU, SWD, SOUT, SWS, SDBG = [("s[%d:%d]" % (b, b + 3)) for b in range(8, 44, 4)]
sW, sXC, sJ, sNONCE = "s44", "s45", "s46", "s47"
sT, sT2, sT3 = "s55", "s56", "s57"
sW1024 = "s53"
sRB, sCB, sRQ, sFS = "s84", "s85", "s86", "s87"
SC = " sc1"
OUTSC = ""
LOG2E = 1.4426950408889634
STAMPS = False
OPT = set()
NSTAMP = [0]
ASPACE = 3
WOPRE = 28
TCH = 2
ROTM = 1


def f2u(x):
    return struct.unpack("<I", struct.pack("<f", x))[0]


def vr(b, n=4):
    return "v[%d:%d]" % (b, b + n - 1)


def mfma(acc, A, B, C=None):
    return "v_mfma_f32_16x16x32_bf16 %s, %s, %s, %s" % (vr(acc), vr(A), vr(B), vr(acc) if C is None else C)


def raw(a, text):
    for line in text.split("\n"):
        line = line.strip()
        if not line:
            continue
        if line.endswith(":"):
            a.items.append(("l", line))
        else:
            a.items.append(("i", Ins(line)))


def stamp(a, name):
    if STAMPS:
        i = NSTAMP[0]
        NSTAMP[0] += 1
        a("; STAMP %d %s" % (i, name))
        a("s_memrealtime s[100:101]")
        a("s_memtime s[72:73]")
        a("s_waitcnt lgkmcnt(0)")
        a("v_writelane_b32 v15, s100, %d" % i)
        a("v_writelane_b32 v15, s72, %d" % (32 + i))


def stamp_flush(a):
    if STAMPS:
        a("s_lshl_b32 s3, s2, 3")
        a("s_add_u32 s3, s3, %s" % sW)
        a("s_lshl_b32 s3, s3, 8")
        a("s_add_u32 s3, s3, %d" % WS_TS)
        a("v_lshlrev_b32 v7, 2, v1")
        a("buffer_store_dword v15, v7, %s, s3 offen" % SWS)
        if "dbgout" in OPT:
            a("s_cmp_lg_u32 s2, 100")
            a("s_cbranch_scc1 Lend")
            a("s_cmp_lg_u32 %s, 3" % sW)
            a("s_cbranch_scc1 Lend")
            sel = [0, 2, 3, 5, 6, 8, 9, 10, 12, 13, 14, 16, 18, 19, 20]
            a("v_mov_b32 v7, 0")
            for i, st in enumerate(sel):
                a("v_readlane_b32 s3, v15, %d" % st)
                a("s_sub_u32 s3, s3, %s" % sNONCE)
                a("v_mov_b32 v6, s3")
                a("buffer_store_dword v6, v7, %s, 0 offen offset:%d" % (SDBG, 4 + 4 * i))


def xg_reduce_multi(a, op, xs, ts):
    for step in ("v_permlane32_swap_b32", "v_permlane16_swap_b32"):
        for x, t in zip(xs, ts):
            a("v_mov_b32 %s, %s" % (t, x))
        for x, t in zip(xs, ts):
            a("%s %s, %s" % (step, t, x))
        for x, t in zip(xs, ts):
            a("%s %s, %s, %s" % (op, x, x, t))


def publish(a, soff):
    L = a.label("pub")
    raw(a, "s_cmp_lg_u32 %s, 0" % sW)
    raw(a, "s_cbranch_scc1 %s" % L)
    raw(a, "s_mov_b64 exec, 1")
    raw(a, "v_mov_b32 v6, %s" % sNONCE)
    raw(a, "v_mov_b32 v7, 0")
    raw(a, "buffer_store_dword v6, v7, %s, %s offen sc1" % (SWS, soff))
    raw(a, "s_mov_b64 exec, -1")
    raw(a, "%s:" % L)


def poll(a, soff, mask_lo, mask_hi):
    L, Lp, Ld = a.label("skip"), a.label("poll"), a.label("done")
    raw(a, "s_cmp_lg_u32 %s, 0" % sW)
    raw(a, "s_cbranch_scc1 %s" % L)
    raw(a, "v_lshlrev_b32 v7, 2, v1")
    raw(a, "s_mov_b32 exec_lo, 0x%x" % mask_lo)
    raw(a, "s_mov_b32 exec_hi, 0x%x" % mask_hi)
    raw(a, "s_mov_b32 s3, 20000")
    raw(a, "%s:" % Lp)
    raw(a, "buffer_load_dword v6, v7, %s, %s offen sc1" % (SWS, soff))
    raw(a, "s_waitcnt vmcnt(0)")
    raw(a, "v_cmp_ne_u32 vcc, %s, v6" % sNONCE)
    raw(a, "s_sub_u32 s3, s3, 1")
    raw(a, "s_cbranch_scc1 %s" % Ld)
    raw(a, "s_nop 1")
    raw(a, "s_cmp_lg_u64 vcc, 0")
    raw(a, "s_cbranch_scc1 %s" % Lp)
    raw(a, "%s:" % Ld)
    raw(a, "s_mov_b64 exec, -1")
    raw(a, "%s:" % L)
    a("s_barrier")


def prologue(a):
    a("s_load_dwordx16 s[64:79], s[0:1], 0")
    a("s_load_dwordx4 s[80:83], s[0:1], 64")
    a("s_memrealtime s[4:5]")
    a("s_cmp_ge_u32 s2, 256")
    a("s_cbranch_scc1 Lend")
    a("s_getpc_b64 s[6:7]")
    a("v_and_b32 v1, 63, v0")
    a("v_lshrrev_b32 v6, 6, v0")
    a("v_lshrrev_b32 v2, 4, v1")
    a("v_readfirstlane_b32 %s, v6" % sW)
    a("v_and_b32 v3, 15, v0")
    a("v_bfe_u32 v4, v0, 2, 2")
    a("v_and_b32 v5, 3, v0")
    if STAMPS:
        a("v_mov_b32 v15, 0")
    if "badmap" in OPT:
        a("s_lshr_b32 %s, s2, 5" % sXC)
        a("s_and_b32 %s, s2, 31" % sJ)
    else:
        a("s_and_b32 %s, s2, 7" % sXC)
        a("s_lshr_b32 %s, s2, 3" % sJ)
    a("v_lshlrev_b32 v6, 7, v0")
    a("v_min_u32 v6, CODE_BYTES, v6")
    a("s_cmp_gt_u32 %s, 3" % sW)
    a("s_cbranch_scc1 Lnopf")
    raw(a, "global_load_dword v7, v6, s[6:7]")
    a("Lnopf:")
    sizes = {8: 2048 * 896, 12: 448 * 2688, 16: 448 * 896, 20: 448 * 3584, 24: 448 * 3584,
             28: 1792 * 896, 32: 2048 * 896, 36: WS_SIZE, 40: 256}
    for b, sz in sizes.items():
        a("s_mov_b32 s%d, %d" % (b + 2, sz))
        a("s_mov_b32 s%d, 0x00020000" % (b + 3))
    a("s_lshl_b32 %s, %s, 10" % (sW1024, sW))


def prologue2(a):
    a("s_waitcnt lgkmcnt(0)")
    src = {8: 64, 12: 66, 16: 68, 20: 72, 24: 74, 28: 76, 32: 78, 36: 82, 40: 80}
    for b, s in src.items():
        a("s_mov_b64 s[%d:%d], s[%d:%d]" % (b, b + 1, s, s + 1))


def nonce_publish(a):
    a("s_or_b32 s3, s2, %s" % sW)
    a("s_cmp_lg_u32 s3, 0")
    a("s_cbranch_scc1 Lnononce")
    raw(a, "s_or_b32 s3, s4, 1")
    if any(o.startswith("thr") for o in OPT):
        raw(a, "s_getreg_b32 s5, hwreg(HW_REG_XCC_ID)")
        raw(a, "s_and_b32 s5, s5, 7")
        raw(a, "s_andn2_b32 s3, s4, 15")
        raw(a, "s_or_b32 s3, s3, s5")
        raw(a, "s_or_b32 s3, s3, 8")
    raw(a, "v_mov_b32 v8, s3")
    raw(a, "v_mov_b32 v9, 0")
    raw(a, "s_mov_b64 exec, 1")
    raw(a, "buffer_store_dword v8, v9, %s, 0 offen sc1" % SDBG)
    raw(a, "s_mov_b64 exec, -1")
    a("Lnononce:")


def nonce_fetch(a, vN):
    L, Lp = a.label("nskip"), a.label("npoll")
    a("v_readfirstlane_b32 %s, %s" % (sNONCE, vN))
    raw(a, "s_nop 1")
    raw(a, "s_cmp_lg_u32 %s, 0" % sNONCE)
    raw(a, "s_cbranch_scc1 %s" % L)
    raw(a, "s_mov_b32 s3, 20000")
    raw(a, "v_mov_b32 v7, 0")
    raw(a, "%s:" % Lp)
    raw(a, "buffer_load_dword v6, v7, %s, 0 offen sc1" % SDBG)
    raw(a, "s_waitcnt vmcnt(0)")
    raw(a, "v_readfirstlane_b32 %s, v6" % sNONCE)
    raw(a, "s_sub_u32 s3, s3, 1")
    raw(a, "s_cbranch_scc1 %s" % L)
    raw(a, "s_nop 1")
    raw(a, "s_cmp_eq_u32 %s, 0" % sNONCE)
    raw(a, "s_cbranch_scc1 %s" % Lp)
    raw(a, "%s:" % L)
    raw(a, "s_nop 3")


def touch(a, jobs):
    Lend = a.label("tend")
    for (w, srd, n) in jobs:
        L = a.label("tn")
        raw(a, "s_cmp_lg_u32 %s, %d" % (sW, w))
        raw(a, "s_cbranch_scc1 %s" % L)
        raw(a, "s_mul_i32 s3, s2, %d" % (n * 128))
        raw(a, "v_min_u32 v6, %d, v1" % (n - 1))
        raw(a, "v_lshlrev_b32 v6, 7, v6")
        raw(a, "buffer_load_dword v7, v6, %s, s3 offen" % srd)
        raw(a, "s_branch %s" % Lend)
        raw(a, "%s:" % L)
    raw(a, "%s:" % Lend)


A_SLOT = 34816
A_XOFF = 24576
A_EX = 2 * A_SLOT
A_ST = 4 * A_SLOT
R0, R1, R2 = 0, 57344, 139264
B_RB = R2
C_ST = 114688

vWO_DMA, vWC_DMA, vWC_TR = "v176", "v177", 178
WGF, WUF = 80, 136
WOF = 128


def roles_BCD(a):
    a("s_mul_i32 %s, %s, 37" % (sRB, sJ))
    a("s_lshr_b32 %s, %s, 8" % (sRB, sRB))
    a("s_mul_i32 %s, %s, 7" % (sCB, sRB))
    a("s_sub_u32 %s, %s, %s" % (sCB, sJ, sCB))
    a("s_lshr_b32 %s, %s, 1" % (sT, sXC))
    a("s_lshl_b32 %s, %s, 2" % (sT, sT))
    a("s_add_u32 %s, %s, %s" % (sRQ, sRB, sT))
    a("s_and_b32 %s, %s, 1" % (sT, sXC))
    a("s_mul_i32 %s, %s, 7" % (sT, sT))
    a("s_add_u32 %s, %s, %s" % (sFS, sCB, sT))
    a("s_lshl_b32 %s, %s, 2" % (sT, sXC))
    a("s_add_u32 %s, %s, %s" % (sRB, sRB, sT))


def wo_dma(a, i0, i1, vaddr):
    for i in range(i0, i1):
        a("s_add_u32 m0, %s, %d" % (sW1024, R0 + i * 8192))
        a("s_mov_b32 %s, %d" % (sT, i * 64 * 896))
        a("buffer_load_dwordx4 %s, %s, %s offen lds" % (vaddr, SWO, sT), tag="wo")


def wc_dma(a, slabs, vaddr, tag):
    for (s, base) in slabs:
        a("s_add_u32 m0, %s, %d" % (sW1024, base))
        a("s_mov_b32 %s, %d" % (sT, (s % 14) * 114688))
        a("buffer_load_dwordx4 %s, %s, %s offen lds" % (vaddr, SWG if s < 14 else SWU, sT), tag=tag)


def wc_read(slabs, vtr):
    out = []
    for (s, base) in slabs:
        for hf in range(2):
            out.append("ds_read_b64_tr_b16 %s, v%d offset:%d" % (vr(WGF + 4 * s + 2 * hf, 2), vtr + base // 57344, base % 57344 + hf * 1024))
    return out


A_NM = A_ST
A_RHO = A_ST + 384


def phase_A(a):
    sTB, sHP, sT0, sTI, sHD = "s48", "s49", "s50", "s51", "s52"
    a("; ---------------- phase A ----------------")
    a("s_lshl_b32 %s, %s, 2" % (sTB, sXC))
    a("s_lshr_b32 %s, %s, 3" % (sT, sJ))
    a("s_add_u32 %s, %s, %s" % (sTB, sTB, sT))
    a("s_and_b32 %s, %s, 7" % (sHP, sJ))
    a("s_lshl_b32 %s, %s, 6" % (sT0, sTB))
    a("s_and_b32 %s, %s, 3" % (sTI, sW))
    a("s_lshr_b32 %s, %s, 2" % (sHD, sW))
    a("v_lshrrev_b32 v12, 3, v1")
    a("v_and_b32 v13, 7, v1")
    a("v_lshlrev_b32 v14, 4, v1")
    ONES = 20
    BP, BC = 76, 80

    def slot(ch):
        return (ch + 1) % 4

    def common_setup(a):
        a("v_lshlrev_b32 v8, 2, v2")
        a("v_sub_u32 v9, v3, v8")
        a("s_lshl_b32 %s, %s, 2" % (sT, sTB))
        a("s_add_u32 %s, %s, %s" % (sT, sT, sTI))
        a("s_cmp_lt_u32 %s, 2" % sT)
        a("s_cselect_b32 %s, 0x10000, 0" % sT2)
        a("v_mov_b32 v11, 0x%x" % f2u(-1e30))
        for rr in range(4):
            a("v_subrev_u32 v10, %d, v9" % rr)
            a("v_cmp_gt_u32 vcc, 8, v10")
            a("v_cndmask_b32 v%d, v11, 0, vcc" % (BC + rr))
            a("v_add_u32 v10, 16, v10")
            a("v_add_u32 v10, %s, v10" % sT2)
            a("v_cmp_gt_u32 vcc, 8, v10")
            a("v_cndmask_b32 v%d, v11, 0, vcc" % (BP + rr))
        a("v_cmp_gt_u32 s[94:95], 3, v2")
        a("s_mul_i32 %s, %s, 3072" % (sT2, sHD))
        a("s_add_u32 %s, %s, %d" % (sT2, sT2, A_EX))
        a("s_mul_i32 %s, %s, 6144" % (sT, sTI))
        a("s_add_u32 %s, %s, %s" % (sT, sT, sT2))
        a("v_lshl_add_u32 v32, v1, 3, %s" % sT)
        a("v_lshl_add_u32 v9, v2, 2, v4")
        a("v_lshl_add_u32 v10, v5, 4, v9")
        a("v_lshl_add_u32 v33, v10, 3, %s" % sT)
        a("s_sub_u32 %s, %s, 12288" % (sT, sT))
        a("s_add_u32 %s, %s, %d" % (sT2, sT2, 4 * 6144))
        a("s_lshl_b32 s97, %s, 3" % sTI)
        a("s_lshl_b32 %s, %s, 6" % (sT3, sTI))
        a("s_add_u32 %s, %s, %d" % (sT3, sT3, A_RHO))
        a("v_lshl_add_u32 v36, v3, 2, %s" % sT3)
        a("v_lshl_add_u32 v37, v2, 4, %s" % sT3)
        a("s_sub_u32 %s, %s, 128" % (sT3, sT3))
        a("s_cmp_lt_u32 %s, 2" % sTI)
        a("s_cselect_b32 s96, 7, 15")
        a("s_cselect_b32 s97, s97, 0")
        a("s_cselect_b32 %s, %s, %s" % (sT, sT2, sT))
        a("s_cselect_b32 %s, %d, %s" % (sT3, A_RHO + 256, sT3))
        a("v_and_b32 v9, s96, v9")
        a("v_add_u32 v9, s97, v9")
        a("v_lshl_add_u32 v10, v5, 4, v9")
        a("v_lshl_add_u32 v34, v10, 3, %s" % sT)
        a("v_and_b32 v9, s96, v8")
        a("v_add_u32 v9, s97, v9")
        a("v_lshl_add_u32 v38, v9, 2, %s" % sT3)
        a("v_and_b32 v9, s96, v3")
        a("v_add_u32 v9, s97, v9")
        a("v_lshl_add_u32 v10, v2, 4, v9")
        a("v_lshl_add_u32 v35, v10, 3, %s" % sT)
        a("s_lshl_b32 %s, %s, 2" % (sT, sTB))
        a("s_add_u32 %s, %s, %s" % (sT, sT, sTI))
        a("s_lshl_b32 %s, %s, 4" % (sT, sT))
        a("s_lshl_b32 %s, %s, 1" % (sT2, sHP))
        a("s_add_u32 %s, %s, %s" % (sT, sT, sT2))
        a("s_add_u32 %s, %s, %s" % (sT, sT, sHD))
        a("s_lshl_b32 s98, %s, 10" % sT)
        a("s_lshl_b32 %s, %s, 7" % (sT, sTB))
        a("s_lshl_b32 %s, %s, 2" % (sT2, sHP))
        a("s_add_u32 %s, %s, %s" % (sT, sT, sT2))
        a("s_add_u32 s99, %s, %d" % (sT, WS_FA))
        roles_BCD(a)
        a("s_bfe_u32 %s, %s, 0x10001" % (sT, sW))
        a("s_lshl_b32 %s, %s, 3" % (sT, sT))
        a("v_lshl_or_b32 v8, v2, 1, %s" % sT)
        a("v_xor_b32 v8, v8, v3")
        a("s_lshl_b32 %s, %s, 2" % (sT, sW))
        a("v_add_u32 v9, %s, v2" % sT)
        a("v_mul_u32_u24 v9, 3584, v9")
        a("v_lshl_add_u32 v9, v8, 4, v9")
        a("s_lshl_b32 %s, %s, 8" % (sT, sFS))
        a("v_add_u32 v16, %s, v9" % sT)
        a("v_lshl_add_u32 v8, v2, 2, v4")
        a("s_mul_i32 %s, %s, 224" % (sT, sHD))
        a("v_add_u32 v8, %s, v8" % sT)
        a("v_lshlrev_b32 v8, 7, v8")
        a("v_and_b32 v9, 2, v4")
        a("v_lshlrev_b32 v9, 1, v9")
        a("s_lshl_b32 %s, %s, 2" % (sT, sHD))
        a("v_or_b32 v10, %s, v5" % sT)
        a("v_xor_b32 v10, v10, v9")
        a("v_lshl_add_u32 v28, v10, 4, v8")
        a("v_xor_b32 v29, 64, v28")
        a("v_mov_b32 v9, 2048")
        a("v_cndmask_b32 v9, 0, v9, s[94:95]")
        a("v_add_u32 v30, v28, v9")
        a("v_add_u32 v31, v29, v9")

    RQ, RC, RP = 39, 120, 124

    def rho_reads():
        a("ds_read_b32 v%d, v36" % RQ)
        a("ds_read_b128 %s, v37" % vr(RC))
        a("ds_read_b128 %s, v38" % vr(RP))

    a("s_cmp_lt_u32 %s, 4" % sW)
    a("s_cbranch_scc1 LAcons")
    sL2048, sL512 = "s54", "s65"
    vW0, vW1, vX0, vX1, vH, vWO = "v40", "v41", "v42", "v43", "v44", "v45"
    a("s_lshl_b32 %s, %s, 11" % (sL2048, sTI))
    a("v_and_b32 v8, 2, v12")
    a("v_xor_b32 v8, v8, v13")
    a("v_xor_b32 v10, 4, v8")
    a("v_min_u32 v8, 6, v8")
    a("v_min_u32 v10, 6, v10")
    a("s_lshl_b32 %s, %s, 4" % (sT, sTI))
    a("v_add_u32 v9, %s, v12" % sT)
    a("v_mul_u32_u24 v9, 2688, v9")
    a("s_mul_i32 %s, %s, 112" % (sT, sHP))
    a("v_add_u32 v9, %s, v9" % sT)
    a("v_lshl_add_u32 %s, v8, 4, v9" % vW0)
    a("v_add_u32 v9, %d, v9" % (8 * 2688))
    a("v_lshl_add_u32 %s, v10, 4, v9" % vW1)
    a("s_lshr_b32 %s, %s, 1" % (sT2, sTI))
    a("s_and_b32 %s, %s, 1" % (sT3, sTI))
    a("s_lshl_b32 %s, %s, 5" % (sT, sT2))
    a("s_add_u32 %s, %s, %s" % (sT, sT, sT0))
    a("s_add_u32 %s, %s, %s" % (sT, sT, sT3))
    a("v_lshl_add_u32 v9, v12, 1, %s" % sT)
    a("v_mul_u32_u24 v9, 896, v9")
    a("v_lshrrev_b32 v8, 1, v12")
    a("v_xor_b32 v8, v8, v13")
    a("v_lshl_add_u32 %s, v8, 4, v9" % vX0)
    a("v_xor_b32 v8, 4, v8")
    a("v_add_u32 v9, %d, v9" % (16 * 896))
    a("v_lshl_add_u32 %s, v8, 4, v9" % vX1)
    a("s_lshl_b32 %s, %s, 3" % (sT, sT3))
    a("s_add_u32 %s, %s, %s" % (sT, sT, sT2))
    a("s_add_u32 %s, %s, %s" % (sT, sT, sT0))
    a("s_sub_u32 %s, %s, 16" % (sT, sT))
    a("v_and_b32 v8, 3, v12")
    a("v_lshl_add_u32 v9, v8, 1, %s" % sT)
    a("v_max_i32 v9, 0, v9")
    a("v_mul_u32_u24 v9, 896, v9")
    a("v_lshrrev_b32 v8, 1, v8")
    a("s_lshl_b32 %s, %s, 1" % (sT, sTI))
    a("v_add_u32 v8, %s, v8" % sT)
    a("v_xor_b32 v8, v8, v13")
    a("v_lshl_add_u32 %s, v8, 4, v9" % vH)
    a("s_mov_b32 s59, 0")
    a("s_cmp_eq_u32 %s, 0" % sTI)
    a("s_cselect_b32 s58, 0xffffff00, -1")
    prologue2(a)
    a("s_lshl_b32 %s, %s, 9" % (sL512, sTI))
    if "rot" not in OPT:
        a("s_mov_b32 s67, 0")
    else:
        a("s_lshr_b32 s67, %s, 3" % sJ)
        a("s_lshl_b32 s67, s67, 1")
        a("s_mul_i32 %s, %s, %d" % (sT, sHP, ROTM))
        a("s_add_u32 s67, s67, %s" % sT)
        a("s_mul_i32 %s, s67, 37" % sT)
        a("s_lshr_b32 %s, %s, 8" % (sT, sT))
        a("s_mul_i32 %s, %s, 7" % (sT, sT))
        a("s_sub_u32 s67, s67, %s" % sT)
        a("s_lshl_b32 s67, s67, 7")

    def dma(ch, fill=()):
        fill = list(fill)
        per = (len(fill) + 8) // 9

        def f():
            for _ in range(per):
                while fill:
                    x = fill.pop(0)
                    a(x)
                    if not (fill and fill[0].startswith(("s_cselect", "v_cndmask"))):
                        break

        sb = slot(ch) * A_SLOT
        if ch:
            a("s_add_u32 s67, s67, 128")
            a("s_cmp_eq_u32 s67, 896")
            a("s_cselect_b32 s67, 0, s67")
        a("s_add_u32 m0, %s, %d" % (sL512, sb + A_XOFF + 8192))
        a("s_mov_b64 exec, s[58:59]")
        a("buffer_load_dwordx4 %s, %s, s67 offen lds" % (vH, SX), tag=("AX", ch))
        a("s_mov_b64 exec, -1")
        for i, v in enumerate((vX0, vX1)):
            a("s_add_u32 m0, %s, %d" % (sL2048, sb + A_XOFF + i * 1024))
            a("buffer_load_dwordx4 %s, %s, s67 offen lds" % (v, SX), tag=("AX", ch))
            f()
        a("s_mul_i32 s64, s67, 1344")
        for m in range(3):
            for i, v in enumerate((vW0, vW1)):
                a("s_add_u32 m0, %s, %d" % (sL2048, sb + m * 8192 + i * 1024 - m * 896))
                a("buffer_load_dwordx4 %s, %s, s64 offen offset:%d lds" % (v, SWQKV, m * 896), tag=("A", ch))
                f()
        for x in fill:
            a(x)

    stamp(a, "A start")
    dma(0)
    for i in range(4):
        a("v_mov_b32 v%d, 0x3f803f80" % (ONES + i))
    a("v_and_b32 v8, 3, v12")
    a("v_mul_u32_u24 v8, %d, v8" % A_SLOT)
    a("v_lshl_add_u32 v8, v13, 4, v8")
    a("ds_write_b128 v8, %s offset:%d" % (vr(ONES), A_XOFF + 8192))
    ST = 48
    for i in range(6):
        a("v_mov_b32 v%d, 0" % (ST + i))
    a("s_add_u32 %s, %s, %d" % (sT, sL2048, A_XOFF))
    a("v_add_u32 v54, %s, v14" % sT)
    a("v_add_u32 v55, %d, v54" % (2 * A_SLOT))
    a("s_add_u32 %s, %s, %d" % (sT, sL512, A_XOFF + 8192))
    a("v_add_u32 v56, %s, v14" % sT)
    a("v_add_u32 v57, %d, v56" % (2 * A_SLOT))
    dma(1)
    SR = 84

    def stats_rd(ch):
        sl = slot(ch)
        ib = (sl & 1) * A_SLOT
        a.wait_tag(("AX", ch))
        a("ds_read_b128 %s, v%d offset:%d" % (vr(SR), 54 + (sl >> 1), ib))
        a("ds_read_b128 %s, v%d offset:%d" % (vr(SR + 4), 54 + (sl >> 1), ib + 1024))
        a("ds_read_b128 %s, v%d offset:%d" % (vr(SR + 8), 56 + (sl >> 1), ib))

    def dots():
        o = []
        for i in range(4):
            for k in range(3):
                o.append("v_dot2c_f32_bf16 v%d, v%d, v%d" % (ST + 2 * k, SR + 4 * k + i, ONES))
                o.append("v_dot2c_f32_bf16 v%d, v%d, v%d" % (ST + 2 * k + 1, SR + 4 * k + i, SR + 4 * k + i))
        return o

    class Rec:
        def __init__(self):
            self.l = []

        def __call__(self, x, tag=None):
            self.l.append(x)

    def pieces(fn, n):
        rec = Rec()
        fn(rec)
        late, out = rec.l, []
        for k in range(n):
            nl = (len(late) + n - k - 1) // (n - k)
            while nl < len(late) and late[nl].startswith(("s_cselect", "v_cndmask")):
                nl += 1
            out.append(late[:nl])
            late = late[nl:]
        return out

    cs = pieces(common_setup, 3) + [[], [], []]
    for ch in range(6):
        a.wait_tag(("A", ch), lg0=True)
        a("s_barrier")
        stats_rd(ch)
        if ch + 2 <= 6:
            dma(ch + 2, dots() + cs[ch])
        else:
            for x in dots():
                a(x)
        if ch == 3:
            a("v_and_b32 v8, 2, v12")
            a("v_lshlrev_b32 v8, 1, v8")
            a("v_xor_b32 v8, v8, v13")
            a("s_lshl_b32 %s, %s, 3" % (sT, sTI))
            a("v_add_u32 v9, %s, v12" % sT)
            a("v_mul_u32_u24 v9, 896, v9")
            a("v_lshl_add_u32 v9, v8, 4, v9")
            a("s_lshl_b32 %s, %s, 7" % (sT, sCB))
            a("v_add_u32 %s, %s, v9" % (vWO, sT))
            a("s_lshl_b32 s66, %s, 10" % sTI)
            a("s_lshl_b32 %s, %s, 6" % (sT, sTI))
            a("s_add_u32 %s, %s, %d" % (sT, sT, A_NM))
            a("v_lshl_add_u32 v46, v12, 2, %s" % sT)
            a("s_lshl_b32 %s, %s, 4" % (sT, sTI))
            a("s_add_u32 %s, %s, %d" % (sT, sT, A_NM + 256))
            a("v_lshl_add_u32 v47, v12, 2, %s" % sT)
            a("v_mov_b32 v6, 0")
            a("buffer_load_dword v17, v6, %s, 0 offen sc1" % SDBG)

    def wo_dma(i0, i1):
        for i in range(i0, i1):
            a("s_add_u32 m0, s66, %d" % (R0 + i * 4096))
            a("s_mov_b32 s64, %d" % (i * 32 * 896))
            a("buffer_load_dwordx4 %s, %s, s64 offen lds" % (vWO, SWO), tag="wo")

    stats_rd(6)
    wo_dma(0, 3)
    for x in dots():
        a(x)
    a("s_nop 2")
    for ctl in ("quad_perm:[1,0,3,2]", "quad_perm:[2,3,0,1]", "row_half_mirror"):
        for x in range(6):
            a("v_add_f32_dpp v%d, v%d, v%d %s row_mask:0xf bank_mask:0xf" % (ST + x, ST + x, ST + x, ctl))
    a("s_mov_b32 %s, 0x%x" % (sT, f2u(1.0 / 448)))
    a("v_mov_b32 v8, 0x%x" % f2u(1e-5))
    for k in range(3):
        a("v_mul_f32 v%d, -%s, v%d" % (ST + 2 * k, sT, ST + 2 * k))
        a("v_fma_f32 v%d, v%d, %s, v8" % (ST + 2 * k + 1, ST + 2 * k + 1, sT))
    for k in range(3):
        a("v_fma_f32 v%d, -v%d, v%d, v%d" % (ST + 2 * k + 1, ST + 2 * k, ST + 2 * k, ST + 2 * k + 1))
    for k in range(3):
        a("v_max_f32 v%d, v%d, v8" % (ST + 2 * k + 1, ST + 2 * k + 1))
    for k in range(3):
        a("v_rsq_f32 v%d, v%d" % (ST + 2 * k + 1, ST + 2 * k + 1))
    a("ds_write_b32 v46, v%d" % ST)
    a("ds_write_b32 v46, v%d offset:32" % (ST + 2))
    a("ds_write_b32 v46, v%d offset:384" % (ST + 1))
    a("ds_write_b32 v46, v%d offset:416" % (ST + 3))
    a("s_mov_b32 exec_hi, 0")
    a("ds_write_b32 v47, v%d" % (ST + 4))
    a("ds_write_b32 v47, v%d offset:384" % (ST + 5))
    a("s_mov_b64 exec, -1")
    a.wait_tag(("A", 6), lg0=True)
    a("s_barrier")
    rho_reads()
    wo_dma(3, 14)
    a("s_waitcnt vmcnt(0) lgkmcnt(0)")
    a("s_branch LAjoin")

    a("LAcons:")
    a.vm, a.lg = [], []
    prologue2(a)
    nonce_publish(a)
    AD, NAD = 128, 5
    a("s_and_b32 s66, %s, 1" % sW)
    a("s_lshr_b32 s67, %s, 1" % sW)
    a("v_bfe_u32 v8, v3, 1, 3")
    a("v_xor_b32 v8, v8, v2")
    a("v_lshlrev_b32 v8, 4, v8")
    a("v_lshl_add_u32 v8, v3, 7, v8")
    a("v_add_u32 v%d, %d, v8" % (AD, A_XOFF))
    a("v_xor_b32 v%d, 64, v%d" % (AD + 1, AD))
    a("v_and_b32 v8, 2, v4")
    a("v_and_b32 v9, 1, v2")
    a("v_lshl_or_b32 v8, v9, 2, v8")
    a("v_lshlrev_b32 v8, 4, v8")
    a("v_lshl_add_u32 v9, v2, 3, v4")
    a("v_lshlrev_b32 v9, 7, v9")
    a("s_mul_i32 s68, s66, 3")
    a("s_mul_i32 %s, s67, 56" % sT2)
    for j in range(3):
        a("s_add_u32 %s, s68, %d" % (sT3, j))
        a("s_and_b32 %s, %s, 1" % (sT, sT3))
        a("s_lshl_b32 %s, %s, 5" % (sT, sT))
        a("s_add_u32 %s, %s, %s" % (sT, sT, sT2))
        a("v_lshl_add_u32 v10, v5, 3, %s" % sT)
        a("v_xor_b32 v10, v10, v8")
        a("s_lshr_b32 %s, %s, 1" % (sT, sT3))
        a("s_lshl_b32 %s, %s, 13" % (sT, sT))
        a("v_add3_u32 v%d, v10, v9, %s" % (AD + 2 + j, sT))
    for i in range(NAD):
        a("v_add_u32 v%d, %d, v%d" % (AD + NAD + i, 2 * A_SLOT, AD + i))
    a("s_mul_i32 %s, %s, 1536" % (sT, sW))
    a("s_add_u32 %s, %s, %d" % (sT, sT, A_EX))
    a("v_lshl_add_u32 v138, v1, 3, %s" % sT)
    a("v_lshlrev_b32 v139, 2, v3")
    a("v_add_u32 v139, %d, v139" % A_NM)
    if "touch0" in OPT:
        touch(a, [(2, SWQKV, 37), (3, SX, 56)])
    common_setup(a)
    if "notouch1" not in OPT:
        touch(a, [(2, SWQKV, 37), (3, SX, 56)])
    ACC = 140
    FB = [40, 84]
    NM = 200

    def reads(n):
        ch, ks = n >> 1, n & 1
        sl = slot(ch)
        ab = AD if sl < 2 else AD + NAD
        ib = (sl & 1) * A_SLOT
        fb = FB[ks]
        tr = lambda j, hf: "ds_read_b64_tr_b16 %s, v%d offset:%d" % (vr(fb + 20 + 4 * j + 2 * hf, 2), ab + 2 + j, ib + ks * 4096 + hf * 512)
        xr = lambda t: "ds_read_b128 %s, v%d offset:%d" % (vr(fb + 4 * t), ab + ks, ib + t * 2048)
        return [tr(0, 0), tr(0, 1), xr(4), xr(0), xr(1), xr(2), xr(3), tr(1, 0), tr(1, 1), tr(2, 0), tr(2, 1)]

    def compute(n):
        fb = FB[n & 1]
        z = "0" if n == 0 else None
        return [mfma(ACC + 20 * j + 4 * t, fb + 20 + 4 * j, fb + 4 * t, z) for j in range(3) for t in (4, 0, 1, 2, 3)]

    def norm(j):
        o = []
        for t in (0, 1, 2, 3, 4):
            acc = ACC + 20 * j + 4 * t
            for rr in range(4):
                o.append("v_fmac_f32_dpp v%d, v%d, v%d row_newbcast:0 row_mask:0xf bank_mask:0xf" % (acc + rr, ACC + 20 * j + 16 + rr, NM + t))
            pk = 208 + 2 * ((5 * j + t) % 4)
            o.append("v_cvt_pk_bf16_f32 v%d, v%d, v%d" % (pk, acc, acc + 1))
            o.append("v_cvt_pk_bf16_f32 v%d, v%d, v%d" % (pk + 1, acc + 2, acc + 3))
            o.append("ds_write_b64 v138, %s offset:%d" % (vr(pk, 2), t * 6144 + j * 512))
        return o

    for ch in range(7):
        if ch == TCH and "notouch" not in OPT:
            touch(a, [(0, SWO, 13), (1, SWG, 49), (2, SWU, 49), (3, SWD, 49)])
        if ch == 4:
            a("v_mov_b32 v6, 0")
            a("buffer_load_dword v17, v6, %s, 0 offen sc1" % SDBG)
        a("s_waitcnt lgkmcnt(0)")
        a("s_barrier")
        if ch in (0, 6):
            stamp(a, "A ch%d landed" % ch)
        for x in reads(2 * ch):
            a(x)
        rd = reads(2 * ch + 1)
        if ch == 6:
            rd += ["ds_read_b32 v%d, v139 offset:%d" % (NM + t, 64 * t) for t in range(5)]
        for x in compute(2 * ch):
            a(x)
            for _ in range(2 if ch == 6 else 1):
                if rd:
                    a(rd.pop(0))
        nr = []
        for i, x in enumerate(compute(2 * ch + 1)):
            a(x)
            if ch == 6:
                if i == 6:
                    nr += norm(0)
                if i == 11:
                    nr += norm(1)
                for _ in range(3):
                    if nr:
                        a(nr.pop(0))
    stamp(a, "A loop done")
    for x in nr + norm(2):
        a(x)
    rho_reads()
    a("s_waitcnt vmcnt(0) lgkmcnt(0)")
    a("LAjoin:")
    a.vm, a.lg = [], []
    a("s_barrier")
    QP, KC, KP, V0, V1 = 100, 104, 108, 112, 116
    a("ds_read_b64 %s, v32" % vr(QP, 2))
    a("ds_read_b64 %s, v32 offset:512" % vr(QP + 2, 2))
    a("ds_read_b64 %s, v32 offset:1024" % vr(KC, 2))
    a("ds_read_b64 %s, v32 offset:1536" % vr(KC + 2, 2))
    a("ds_read_b64 %s, v35 offset:1024" % vr(KP, 2))
    a("ds_read_b64 %s, v35 offset:1536" % vr(KP + 2, 2))
    a("ds_read_b64_tr_b16 %s, v34 offset:2048" % vr(V0, 2))
    a("ds_read_b64_tr_b16 %s, v33 offset:2048" % vr(V0 + 2, 2))
    a("ds_read_b64_tr_b16 %s, v34 offset:2560" % vr(V1, 2))
    a("ds_read_b64_tr_b16 %s, v33 offset:2560" % vr(V1 + 2, 2))
    a("v_mul_f32 v13, 0x%x, v%d" % (f2u(28 ** -0.5 * LOG2E), RQ))
    nonce_fetch(a, "v17")
    a("v_cndmask_b32 v%d, 0, v%d, s[94:95]" % (QP + 2, QP + 2))
    a("v_cndmask_b32 v%d, 0, v%d, s[94:95]" % (QP + 3, QP + 3))
    a(mfma(BC, KC, QP))
    a(mfma(BP, KP, QP))
    for i in range(4):
        a("v_mul_f32 v%d, v%d, v%d" % (BC + i, RC + i, BC + i))
    for i in range(4):
        a("v_mul_f32 v%d, v%d, v%d" % (BP + i, RP + i, BP + i))
    a("v_max3_f32 v8, v%d, v%d, v%d" % (BC, BC + 1, BC + 2))
    a("v_max3_f32 v9, v%d, v%d, v%d" % (BC + 3, BP, BP + 1))
    a("v_max3_f32 v8, v8, v%d, v%d" % (BP + 2, BP + 3))
    a("v_max_f32 v8, v8, v9")
    xg_reduce_multi(a, "v_max_f32", ["v8"], ["v9"])
    a("v_mul_f32 v8, v13, v8")
    for i in range(8):
        a("v_fma_f32 v%d, v%d, v13, -v8" % (BP + i, BP + i))
    for i in range(8):
        a("v_exp_f32 v%d, v%d" % (BP + i, BP + i))
    a("v_add_f32 v9, v%d, v%d" % (BP, BP + 1))
    a("v_add_f32 v10, v%d, v%d" % (BP + 2, BP + 3))
    a("v_add_f32 v11, v%d, v%d" % (BP + 4, BP + 5))
    a("v_add_f32 v12, v%d, v%d" % (BP + 6, BP + 7))
    a("v_add_f32 v9, v9, v10")
    a("v_add_f32 v11, v11, v12")
    a("v_add_f32 v9, v9, v11")
    a("v_mov_b32 v10, v9")
    a("v_mul_f32 v%d, v%d, v%d" % (BP, RP, BP))
    a("v_mul_f32 v%d, v%d, v%d" % (BP + 1, RP + 1, BP + 1))
    a("v_permlane32_swap_b32 v10, v9")
    a("v_add_f32 v9, v9, v10")
    a("v_mov_b32 v10, v9")
    a("v_mul_f32 v%d, v%d, v%d" % (BP + 2, RP + 2, BP + 2))
    a("v_mul_f32 v%d, v%d, v%d" % (BP + 3, RP + 3, BP + 3))
    a("v_permlane16_swap_b32 v10, v9")
    a("v_add_f32 v9, v9, v10")
    a("v_rcp_f32 v9, v9")
    for i in range(4):
        a("v_mul_f32 v%d, v%d, v%d" % (BC + i, RC + i, BC + i))
    for i in range(8):
        a("v_mul_f32 v%d, v9, v%d" % (BP + i, BP + i))
    P = 96
    for i in range(4):
        a("v_cvt_pk_bf16_f32 v%d, v%d, v%d" % (P + i, BP + 2 * i, BP + 2 * i + 1))
    O0, O1 = 40, 44
    a(mfma(O0, V0, P, "0"))
    a(mfma(O1, V1, P, "0"))
    OS = 124
    a("v_cvt_pk_bf16_f32 v%d, v%d, v%d" % (OS, O0, O0 + 1))
    a("v_cvt_pk_bf16_f32 v%d, v%d, v%d" % (OS + 1, O0 + 2, O0 + 3))
    a("v_cvt_pk_bf16_f32 v%d, v%d, v%d" % (OS + 2, O1, O1 + 1))
    a("v_cvt_pk_bf16_f32 v%d, v%d, v%d" % (OS + 3, O1 + 2, O1 + 3))
    a("v_cndmask_b32 v%d, 0, v%d, s[94:95]" % (OS + 2, OS + 2))
    a("v_cndmask_b32 v%d, 0, v%d, s[94:95]" % (OS + 3, OS + 3))
    a("buffer_store_dwordx4 %s, v14, %s, s98 offen%s" % (vr(OS), SWS, SC), tag="ost")
    stamp(a, "A o stored")


G1 = [(s, R1 + 8192 * s) for s in range(10)]
G2 = [(10 + i, R0 + 8192 * i) for i in range(7)]
G3 = [(17 + i, R1 + 8192 * i) for i in range(10)] + [(27, R2 + 16384)]


def phase_B(a):
    sTT, sKH, sTAU, sU = "s50", "s51", "s52", "s54"
    a("; ---------------- A->B ----------------")
    a("s_cmp_lt_u32 %s, 28" % sJ)
    a("s_cbranch_scc1 LgoB")
    raw(a, "s_waitcnt vmcnt(0)")
    raw(a, "s_barrier")
    publish(a, "s99")
    raw(a, "s_branch Lfin")
    a("LgoB:")
    worder = []
    for hh in range(8):
        for t in range(4):
            off = R0 + hh * 3584 + (t & 1) * 8
            worder.append("ds_read_b64_tr_b16 %s, v%d offset:%d" % (vr(WOF + 16 * hh + 4 * t, 2), 28 + (t >> 1), off))
            worder.append("ds_read_b64_tr_b16 %s, v%d offset:%d" % (vr(WOF + 16 * hh + 4 * t + 2, 2), 30 + (t >> 1), off))
    wc_dma(a, G1[6:10], "v16", "g1")
    a("s_and_b32 %s, %s, 3" % (sTT, sW))
    a("s_lshr_b32 %s, %s, 2" % (sKH, sW))
    a("s_lshl_b32 %s, %s, 2" % (sTAU, sRB))
    a("s_add_u32 %s, %s, %s" % (sTAU, sTAU, sTT))
    a("s_lshr_b32 %s, %s, 1" % (sT, sTAU))
    a("s_lshl_b32 %s, %s, 5" % (sT, sT))
    a("s_and_b32 %s, %s, 1" % (sT2, sTAU))
    a("s_add_u32 %s, %s, %s" % (sT, sT, sT2))
    a("v_lshl_add_u32 v8, v3, 1, %s" % sT)
    a("v_mul_u32_u24 v8, 896, v8")
    a("v_lshl_add_u32 v8, v2, 4, v8")
    a("s_lshl_b32 %s, %s, 1" % (sU, sCB))
    a("s_add_u32 %s, %s, %s" % (sU, sU, sKH))
    a("s_lshl_b32 %s, %s, 6" % (sT3, sU))
    for x in worder[:WOPRE]:
        a(x)
    a.wait_tag("ost")
    a("s_barrier")
    publish(a, "s99")
    stamp(a, "A flag")
    XR = 20
    a("buffer_load_dwordx4 %s, v8, %s, %s offen" % (vr(XR), SX, sT3))
    wc_dma(a, G1[:6], "v16", "g1")
    for x in worder[WOPRE:]:
        a(x)
    a("v_and_b32 v8, 1, v2")
    a("v_lshl_or_b32 v8, v8, 2, v4")
    a("v_lshlrev_b32 v8, 1, v8")
    a("v_lshrrev_b32 v9, 1, v5")
    a("s_lshl_b32 %s, %s, 1" % (sT, sW))
    a("v_add_u32 v9, %s, v9" % sT)
    a("v_xor_b32 v8, v8, v9")
    a("v_lshl_add_u32 v9, v2, 3, v4")
    a("v_lshlrev_b32 v9, 8, v9")
    a("v_lshl_add_u32 v9, v8, 4, v9")
    a("v_and_b32 v8, 1, v5")
    a("v_lshl_add_u32 v17, v8, 3, v9")
    a("v_add_u32 v18, 57344, v17")
    a("v_add_u32 v19, 114688, v17")
    OF, ACC = 32, 64
    for i in range(4):
        a("v_lshlrev_b32 v%d, 16, v%d" % (ACC + 2 * i, XR + i))
        a("v_and_b32 v%d, 0xffff0000, v%d" % (ACC + 2 * i + 1, XR + i))
    a("s_lshl_b32 %s, %s, 4" % (sT2, sTAU))
    a("s_lshl_b32 %s, %s, 3" % (sT3, sKH))
    a("s_add_u32 %s, %s, %s" % (sT2, sT2, sT3))
    a("s_lshl_b32 %s, %s, 10" % (sT2, sT2))
    a("s_add_u32 %s, %s, 4096" % (sT3, sT2))
    a("s_lshl_b32 %s, %s, 11" % (sT, sW))
    a("s_add_u32 %s, %s, %d" % (sT, sT, B_RB))
    a("v_add_u32 v12, %s, v14" % sT)
    a("s_xor_b32 %s, %s, 4" % (sT, sW))
    a("s_lshl_b32 %s, %s, 11" % (sT, sT))
    a("s_add_u32 %s, %s, %d" % (sT, sT, B_RB))
    a("v_add_u32 v13, %s, v14" % sT)
    a("s_mul_i32 s58, %s, 14" % sTAU)
    a("s_add_u32 s58, s58, %s" % sU)
    a("s_lshl_b32 s59, s58, 7")
    a("s_add_u32 s59, s59, %d" % WS_ST)
    a("s_lshl_b32 s58, s58, 10")
    a("s_add_u32 s58, s58, %d" % WS_H)
    a("s_lshl_b32 s60, %s, 7" % sRB)
    a("s_add_u32 s60, s60, %d" % WS_FA)
    a("s_lshr_b32 s61, %s, 1" % sRB)
    a("s_lshl_b32 s61, s61, 7")
    a("s_and_b32 %s, %s, 1" % (sT, sRB))
    a("s_mul_i32 %s, %s, 28" % (sT, sT))
    a("s_add_u32 s61, s61, %s" % sT)
    a("s_lshl_b32 %s, %s, 2" % (sT, sCB))
    a("s_add_u32 s61, s61, %s" % sT)
    a("s_add_u32 s61, s61, %d" % WS_FB)
    a("v_lshlrev_b32 v11, 3, v3")
    a.wait_tag("g1", lg0=True)
    stamp(a, "B pre-poll")
    poll(a, "s60", 0xff, 0)
    stamp(a, "B go")
    for hh in range(8):
        a("buffer_load_dwordx4 %s, v14, %s, %s offen offset:%d%s" % (vr(OF + 4 * hh), SWS, sT2 if hh < 4 else sT3, (hh & 3) * 1024, SC))
    a("s_barrier")
    for x in wc_read(G1, 17):
        a(x)
    for hh in range(8):
        if hh < 7:
            wc_dma(a, G2[hh:hh + 1], "v16", "g2")
        for t in (2, 3, 0, 1):
            a(mfma(ACC + 4 * t, WOF + 16 * hh + 4 * t, OF + 4 * hh, "0" if (hh == 0 and t >= 2) else None))
    a("ds_write_b128 v12, %s" % vr(ACC + 8))
    a("ds_write_b128 v12, %s offset:1024" % vr(ACC + 12))
    a("s_waitcnt lgkmcnt(0)")
    a("s_barrier")
    a("ds_read_b128 %s, v13" % vr(ACC + 8))
    a("ds_read_b128 %s, v13 offset:1024" % vr(ACC + 12))
    a("v_mov_b32 v8, 0")
    a("v_mov_b32 v9, 0")
    a("v_mov_b32 v6, 0")
    a("v_mov_b32 v7, 0")
    a("v_mov_b32 v10, 0x3f803f80")
    for i in range(8):
        a("v_add_f32 v%d, v%d, v%d" % (ACC + i, ACC + i, ACC + 8 + i))
    HP = 24
    for i in range(4):
        a("v_cvt_pk_bf16_f32 v%d, v%d, v%d" % (HP + i, ACC + 2 * i, ACC + 2 * i + 1))
    a("buffer_store_dwordx4 %s, v14, %s, s58 offen%s" % (vr(HP), SWS, SC))
    for i in range(4):
        a("v_dot2c_f32_bf16 v%d, v%d, v10" % (8 if i & 1 else 6, HP + i))
        a("v_dot2c_f32_bf16 v%d, v%d, v%d" % (9 if i & 1 else 7, HP + i, HP + i))
    a("v_add_f32 v8, v8, v6")
    a("v_add_f32 v9, v9, v7")
    xg_reduce_multi(a, "v_add_f32", ["v8", "v9"], ["v6", "v7"])
    a("s_mov_b64 exec, 0xffff")
    a("buffer_store_dwordx2 v[8:9], v11, %s, s59 offen%s" % (SWS, SC), tag="hst")
    a("s_mov_b64 exec, -1")
    stamp(a, "B h stored")


D_RDY = 163836
C_S0 = 116736
WDF = [224, 240, 64, 80, 96, 112, 128]


def emit_group(a, g):
    for (x, tg) in g:
        a(x, tag=tg)


def wd_dma_groups(u, base):
    gs = []
    for i4 in range(4):
        i = 4 * u + i4
        gs.append([("s_add_u32 m0, s63, %d" % (base + i4 * 1024), None),
                   ("s_mov_b32 s65, %d" % ((16 * (i >> 1) + 4 * (i & 1)) * 896), None),
                   ("buffer_load_dwordx4 v17, %s, s65 offen lds" % SWD, ("wd", u))])
    return gs


def wd_reads(u, base):
    out = []
    for t in range(4):
        for hf in range(2):
            out.append("ds_read_b64_tr_b16 %s, v%d offset:%d" % (vr(WDF[u] + 4 * t + 2 * hf, 2), 8 + t, base + hf * 1024))
    return out


def phase_C(a):
    a("; ---------------- B->C ----------------")
    wc_dma(a, G3[:4], "v16", "g3")
    a.wait_tag("hst")
    a("s_barrier")
    publish(a, "s61")
    stamp(a, "B flag")
    wc_dma(a, G3[4:], "v16", "g3")
    for x in wc_read(G2, 17):
        a(x)
    ONES, CSG, CSU = 20, 24, 28
    for i in range(4):
        a("v_mov_b32 v%d, 0x3f803f80" % (ONES + i))
    for u in range(14):
        a(mfma(CSG, WGF + 4 * u, ONES, "0" if u == 0 else None))
    a("s_mul_i32 %s, %s, 114688" % (sT2, sRQ))
    a("s_add_u32 %s, %s, %d" % (sT2, sT2, WS_H))
    a("s_mul_i32 s62, %s, 3584" % sW)
    a("v_add_u32 v12, s62, v14")
    a("s_lshl_b32 %s, %s, 3" % (sT3, sRQ))
    a("s_add_u32 %s, %s, %s" % (sT3, sT3, sW))
    a("s_mul_i32 %s, %s, 1792" % (sT3, sT3))
    a("s_add_u32 %s, %s, %d" % (sT3, sT3, WS_ST))
    for i in range(4):
        a("v_mov_b32 v%d, 0" % (60 + i))
    a("v_and_b32 v8, 1, v2")
    a("v_mul_u32_u24 v8, 57344, v8")
    a("v_lshrrev_b32 v10, 1, v2")
    a("s_and_b32 %s, %s, 1" % (sT, sW))
    a("s_lshl_b32 %s, %s, 1" % (sT, sT))
    a("v_add_u32 v10, %s, v10" % sT)
    a("v_lshl_add_u32 v8, v10, 8, v8")
    a("v_lshl_add_u32 v13, v3, 4, v8")
    a("s_mul_i32 s58, %s, 448" % sRQ)
    a("s_lshl_b32 %s, %s, 2" % (sT, sFS))
    a("s_add_u32 s58, s58, %s" % sT)
    a("s_lshr_b32 %s, %s, 1" % (sT, sW))
    a("s_add_u32 s58, s58, %s" % sT)
    a("s_lshl_b32 s58, s58, 10")
    a("s_add_u32 s58, s58, %d" % WS_HH)
    a("s_mov_b32 s59, 0x%x" % f2u(-LOG2E))
    a("s_lshl_b32 s60, %s, 7" % sRQ)
    a("s_add_u32 s60, s60, %d" % WS_FB)
    a("s_lshl_b32 s61, %s, 8" % sRQ)
    a("s_lshl_b32 %s, %s, 2" % (sT, sFS))
    a("s_add_u32 s61, s61, %s" % sT)
    a("s_add_u32 s61, s61, %d" % WS_FC)
    a("s_lshl_b32 s63, %s, 12" % sW)
    a("s_lshr_b32 %s, %s, 1" % (sT, sRB))
    a("s_lshl_b32 s67, %s, 8" % sT)
    a("s_add_u32 s67, s67, %d" % WS_FC)
    a("s_lshl_b32 s70, %s, 7" % sT)
    a("s_lshl_b32 %s, %s, 3" % (sT, sT))
    a("s_and_b32 s64, %s, 1" % sRB)
    a("s_add_u32 %s, %s, s64" % (sT, sT))
    a("s_add_u32 s70, s70, s64")
    a("s_mul_i32 s70, s70, 896")
    a("s_lshl_b32 s64, %s, 7" % sCB)
    a("s_add_u32 s70, s70, s64")
    a("s_mul_i32 s68, %s, 56" % sT)
    a("s_mul_i32 s64, %s, 7" % sW)
    a("s_add_u32 s68, s68, s64")
    a("s_lshl_b32 s68, s68, 10")
    a("s_add_u32 s68, s68, %d" % WS_HH)
    a("s_and_b32 s64, %s, 6" % sW)
    a("s_add_u32 %s, %s, s64" % (sT, sT))
    a("s_mul_i32 s69, %s, 14" % sT)
    a("s_lshl_b32 s64, %s, 1" % sCB)
    a("s_add_u32 s69, s69, s64")
    a("s_and_b32 s64, %s, 1" % sW)
    a("s_add_u32 s69, s69, s64")
    a("s_lshl_b32 s69, s69, 10")
    a("s_add_u32 s69, s69, %d" % WS_H)
    a("v_and_b32 v6, 1, v2")
    a("v_lshl_add_u32 v6, v6, 2, v4")
    a("v_and_b32 v7, 6, v6")
    a("v_lshrrev_b32 v10, 1, v5")
    a("v_xor_b32 v7, v7, v10")
    a("v_lshrrev_b32 v10, 1, v2")
    a("v_lshl_add_u32 v6, v10, 4, v6")
    a("v_lshlrev_b32 v6, 7, v6")
    a("v_lshl_add_u32 v6, v7, 4, v6")
    a("v_and_b32 v7, 1, v5")
    a("v_lshl_add_u32 v6, v7, 3, v6")
    a("s_add_u32 %s, s63, 65536" % sT)
    a("v_add_u32 v8, %s, v6" % sT)
    for t in range(1, 4):
        a("v_xor_b32 v%d, %d, v8" % (8 + t, 32 * t))
    a.wait_tag("g3", lg0=True)
    a("s_barrier")
    for x in wc_read(G3, 17):
        a(x)
    a("v_lshrrev_b32 v6, 3, v1")
    a("v_and_b32 v7, 7, v1")
    a("v_and_b32 v16, 6, v6")
    a("v_xor_b32 v7, v16, v7")
    a("v_and_b32 v16, 3, v6")
    a("v_lshrrev_b32 v6, 2, v6")
    a("v_lshl_add_u32 v16, v6, 3, v16")
    a("s_mul_i32 %s, %s, 224" % (sT, sW))
    a("v_add_u32 v16, %s, v16" % sT)
    a("v_mul_u32_u24 v16, 896, v16")
    a("v_lshl_add_u32 v16, v7, 4, v16")
    a("s_lshl_b32 %s, %s, 7" % (sT, sCB))
    a("v_add_u32 v17, %s, v16" % sT)
    a("v_add_u32 v16, 57344, v14")
    a("v_lshlrev_b32 v19, 4, v3")
    a("v_add_u32 v19, %d, v19" % C_ST)
    a("s_lshl_b32 %s, %s, 8" % (sT, sW))
    a("s_add_u32 %s, %s, %d" % (sT, sT, C_ST))
    a("v_and_b32 v18, 7, v1")
    a("v_lshl_add_u32 v18, v18, 5, %s" % sT)
    a("s_waitcnt lgkmcnt(0)")
    stamp(a, "C pre-poll")
    poll(a, "s60", 0x3fff, 0)
    stamp(a, "C go")

    def h_groups(tp):
        tg = ("h", tp)
        gs = []
        for i in range(4):
            g = []
            if i == 0:
                g.append(("s_add_u32 s64, %s, %d" % (sT2, tp * 28672), None))
            g.append(("s_add_u32 m0, s62, %d" % (tp * 28672), None))
            if i == 3:
                g.append(("s_mov_b32 exec_hi, 0", None))
            g.append(("buffer_load_dwordx4 v12, %s, s64 offen offset:%d%s lds" % (SWS, i * 1024, SC), tg))
            if i == 3:
                g.append(("s_mov_b64 exec, -1", None))
            gs.append(g)
        return gs

    a("buffer_load_dwordx4 v[56:59], v14, %s, %s offen%s" % (SWS, sT3, SC))
    a("s_mov_b32 exec_hi, 0xffff")
    a("buffer_load_dwordx4 v[60:63], v14, %s, %s offen offset:1024%s" % (SWS, sT3, SC))
    a("s_mov_b64 exec, -1")
    for g in h_groups(0):
        emit_group(a, g)
    a("s_barrier")
    for g in h_groups(1):
        emit_group(a, g)
    for u in range(14):
        a(mfma(CSU, WUF + 4 * u, ONES, "0" if u == 0 else None))
    st = []
    for i in range(4):
        st.append("v_add_f32 v%d, v%d, v%d" % (56 + i, 56 + i, 60 + i))
    for i in range(4):
        st.append("v_add_f32_dpp v%d, v%d, v%d row_ror:8 row_mask:0xf bank_mask:0xf" % (56 + i, 56 + i, 56 + i))
    for step in ("v_permlane32_swap_b32", "v_permlane16_swap_b32"):
        for i in range(4):
            st.append("v_mov_b32 v%d, v%d" % (60 + i, 56 + i))
        for i in range(4):
            st.append("%s v%d, v%d" % (step, 60 + i, 56 + i))
        for i in range(4):
            st.append("v_add_f32 v%d, v%d, v%d" % (56 + i, 56 + i, 60 + i))
    st.append("s_mov_b32 %s, 0x%x" % (sT, f2u(1.0 / 448)))
    st.append("v_mov_b32 v6, 0x%x" % f2u(1e-5))
    for tk in range(2):
        s1, s2, d = 56 + 2 * tk, 57 + 2 * tk, 32 + 4 * tk
        st.append("v_mul_f32 v%d, -%s, v%d" % (d, sT, s1))
        st.append("v_fma_f32 v%d, v%d, %s, v6" % (s2, s2, sT))
        st.append("v_fma_f32 v%d, -v%d, v%d, v%d" % (s2, d, d, s2))
        st.append("v_max_f32 v%d, v%d, v6" % (s2, s2))
        st.append("v_sqrt_f32 v%d, v%d" % (d + 2, s2))
        st.append("v_rsq_f32 v%d, v%d" % (s2, s2))
        st.append("v_mul_f32 v%d, s59, v%d" % (d + 1, s2))
    st.append("ds_write_b128 v18, v[32:35]")
    st.append("ds_write_b128 v18, v[36:39] offset:16")
    for x in st:
        a(x)
    st = []
    AF, NR = 192, 8
    ACCS = [40, 48]
    STS = [32, 36]
    PKD = [56, 60]

    def epi(i):
        g, u_, s, pk = ACCS[i & 1], ACCS[i & 1] + 4, STS[i & 1], PKD[(i >> 1) & 1]
        o = []
        o.append("ds_read_b128 %s, v19 offset:%d" % (vr(s), i * 256))
        o.append(None)
        o.append(None)
        for rr in range(4):
            o.append("v_fmac_f32 v%d, v%d, v%d" % (g + rr, s, CSG + rr))
        for rr in range(4):
            o.append("v_mul_f32 v%d, v%d, v%d" % (g + rr, s + 1, g + rr))
        for rr in range(4):
            o.append("v_exp_f32 v%d, v%d" % (g + rr, g + rr))
        for rr in range(4):
            o.append("v_fmac_f32 v%d, v%d, v%d" % (u_ + rr, s, CSU + rr))
        for rr in range(4):
            o.append("v_fma_f32 v%d, v%d, v%d, v%d" % (g + rr, g + rr, s + 2, s + 2))
        for rr in range(4):
            o.append("v_rcp_f32 v%d, v%d" % (g + rr, g + rr))
        for rr in range(4):
            o.append("v_mul_f32 v%d, v%d, v%d" % (g + rr, g + rr, u_ + rr))
        o.append("v_cvt_pk_bf16_f32 v%d, v%d, v%d" % (pk + 2 * (i & 1), g, g + 1))
        o.append("v_cvt_pk_bf16_f32 v%d, v%d, v%d" % (pk + 2 * (i & 1) + 1, g + 2, g + 3))
        if i & 1:
            o.append("v_permlane16_swap_b32 v%d, v%d" % (pk, pk + 2))
            o.append("v_permlane16_swap_b32 v%d, v%d" % (pk + 1, pk + 3))
            o.append(("buffer_store_dwordx4 %s, v13, %s, s58 offen%s" % (vr(pk), SWS, SC), ("hh", i >> 1)))
            o.append("s_add_u32 s58, s58, %d" % (2 * 57344))
        return o

    def emit(x):
        if x is None:
            return
        if isinstance(x, tuple):
            a(x[0], tag=x[1])
        else:
            a(x)

    def pub_stage(tp):
        publish(a, "s61")
        a("s_add_u32 s61, s61, 64")

    S0o = C_S0 - 65536
    side = {}
    prio = {}

    def at(k, f):
        side.setdefault(k, []).append(f)

    def spread(k0, stride, groups):
        for n, g in enumerate(groups):
            at(k0 + n * stride, (lambda g=g: emit_group(a, g)))

    def rd_job(k, u, base):
        def f():
            a.wait_tag(("wd", u))
            for x in wd_reads(u, base):
                a(x)
        at(k, f)

    spread(1, 2, h_groups(2) + h_groups(3))
    spread(18, 2, wd_dma_groups(0, C_S0))
    rd_job(38, 0, S0o)
    spread(44, 1, wd_dma_groups(1, C_S0))
    spread(52, 2, wd_dma_groups(4, 0))
    rd_job(62, 1, S0o)
    spread(68, 1, wd_dma_groups(2, C_S0))
    spread(80, 2, wd_dma_groups(5, 32768))
    rd_job(88, 2, S0o)
    spread(94, 2, wd_dma_groups(3, C_S0))
    at(102, lambda: lead_issue(a, "s67"))

    if "nowd" in OPT:
        for k in list(side):
            if k >= 18:
                del side[k]
    if "nowdrd" in OPT:
        for k in (38, 62, 88):
            del side[k]

    def bar(tags, lg0=False, pub=None):
        def f():
            for tg in tags:
                a.wait_tag(tg, lg0=lg0)
            a("s_barrier")
            if pub is not None:
                pub_stage(pub)
        return f

    barr = {22: bar([("h", 1)]), 50: bar([("h", 3), ("hh", 0)], pub=0), 78: bar([("hh", 1)], pub=1)}
    if "noprio" not in OPT:
        for (k0, k1) in ((0, 22), (22, 50), (50, 78), (78, 112)):
            for lv in range(4):
                kk = k0 + (k1 - k0) * lv // 4
                prio[kk] = 3 - lv

    if "nostw" in OPT:
        barr = {14: bar([("h", 1)], lg0=True), 50: bar([("h", 3)], pub=0), 78: bar([], pub=1)}
    if "cst" in OPT:
        for kk in (14, 28, 42, 56, 70, 84, 98):
            at(kk - 1, (lambda kk=kk: stamp(a, "C k%d" % kk)))
    a.wait_tag(("h", 0), lg0=True)
    a("s_barrier")
    stamp(a, "C h0 landed")
    allrd = []
    for k in range(112):
        off = k * 1024
        allrd.append("ds_read_b128 %s, v%d offset:%d" % (vr(AF + 4 * (k % NR)), 14 if off < 57344 else 16, off % 57344))
    nxt = 0
    LA = NR - 2
    for i in range(8):
        acc = ACCS[i & 1]
        ep = epi(i - 1) if i else st
        for u in range(14):
            k = i * 14 + u
            if k in barr:
                barr[k]()
            if k in prio:
                a("s_setprio %d" % prio[k])
            while nxt < len(allrd) and nxt <= k + LA - 1:
                a(allrd[nxt])
                nxt += 1
            f = AF + 4 * (k % NR)
            z = "0" if u == 0 else None
            npop = 5 if i == 0 else 3
            start = 3 if i == 0 else 0
            if "m32" in OPT:
                ac = 224 + 16 * ((i >> 1) & 1)
                a("v_mfma_f32_32x32x16_bf16 %s, %s, %s, %s" % (vr(ac, 16), vr(WGF + 4 * (u + 14 * (i & 1))), vr(f), "0" if k % 28 == 0 else vr(ac, 16)))
            else:
                a(mfma(acc, WGF + 4 * u, f, z))
            if u >= start:
                for _ in range(npop // 2):
                    if ep:
                        emit(ep.pop(0))
            if "m32" not in OPT:
                a(mfma(acc + 4, WUF + 4 * u, f, z))
            if u >= start:
                for _ in range(npop - npop // 2):
                    if ep:
                        emit(ep.pop(0))
            for fn in side.get(k, []):
                fn()
        for x in ep:
            emit(x)
    stamp(a, "C mfma done")
    return epi, emit, pub_stage


def lead_issue(a, soff):
    L = a.label("liss")
    raw(a, "s_cmp_lg_u32 %s, 0" % sW)
    raw(a, "s_cbranch_scc1 %s" % L)
    raw(a, "v_lshlrev_b32 v6, 2, v1")
    raw(a, "buffer_load_dword v7, v6, %s, %s offen sc1" % (SWS, soff))
    raw(a, "%s:" % L)
    a.vm.append((set(), "lead"))
    a.lead_phantom = True


def lead_check(a, soff, mask_lo, mask_hi, level=None, vaddr=None):
    L, Lp, Lc, Ld = a.label("lskip"), a.label("lpoll"), a.label("lchk"), a.label("ldone")
    n = a._after(a.vm, lambda e: e[1] == "lead")
    a.vm = [e for e in a.vm if e[1] != "lead"]
    raw(a, "s_cmp_lg_u32 %s, 0" % sW)
    raw(a, "s_cbranch_scc1 %s" % L)
    raw(a, "s_mov_b32 s3, 20000")
    if n is not None:
        raw(a, "s_waitcnt vmcnt(%d)" % min(n, 63))
    raw(a, "s_branch %s" % Lc)
    raw(a, "%s:" % Lp)
    raw(a, "buffer_load_dword v7, v6, %s, %s offen sc1" % (SWS, soff))
    raw(a, "s_waitcnt vmcnt(0)")
    raw(a, "%s:" % Lc)
    raw(a, "v_cmp_ne_u32 vcc, %s, v7" % sNONCE)
    raw(a, "s_sub_u32 s3, s3, 1")
    raw(a, "s_cbranch_scc1 %s" % Ld)
    raw(a, "s_nop 0")
    raw(a, "s_and_b32 vcc_lo, vcc_lo, 0x%x" % mask_lo)
    raw(a, "s_and_b32 vcc_hi, vcc_hi, 0x%x" % mask_hi)
    raw(a, "s_cmp_lg_u64 vcc, 0")
    raw(a, "s_cbranch_scc1 %s" % Lp)
    raw(a, "%s:" % Ld)
    if level is not None:
        raw(a, "v_mov_b32 v7, %d" % level)
        raw(a, "ds_write_b32 %s, v7" % vaddr)
    raw(a, "%s:" % L)


def lds_wait(a, level):
    Lp, Ld = a.label("wl"), a.label("wd")
    raw(a, "s_mov_b32 s3, 2000000")
    raw(a, "%s:" % Lp)
    raw(a, "ds_read_b32 v31, v30")
    raw(a, "s_waitcnt lgkmcnt(0)")
    raw(a, "v_readfirstlane_b32 s66, v31")
    raw(a, "s_sub_u32 s3, s3, 1")
    raw(a, "s_cbranch_scc1 %s" % Ld)
    raw(a, "s_nop 0")
    raw(a, "s_cmp_lt_u32 s66, %d" % level)
    raw(a, "s_cbranch_scc1 %s" % Lp)
    raw(a, "%s:" % Ld)


D_HR = 98304


def phase_D(a, epi, emit, pub_stage):
    a("; ---------------- C->D ----------------")
    ep = epi(7)
    emit(ep.pop(0))
    a.wait_tag(("hh", 2), lg0=True)
    lead_check(a, "s67", 0x3fff3fff, 0)
    a("s_barrier")
    pub_stage(2)
    for x in ep:
        emit(x)
    stamp(a, "C last store")
    a("s_setprio 0")
    ACCS, AF, NR = [144, 160], 176, 8
    DLA = 5
    FT, FS, OUTR = 32, 48, 50

    def hh_load(k):
        rt, i = k // 7, k % 7
        a("buffer_load_dwordx4 %s, v%d, %s, s68 offen offset:%d%s" % (vr(AF + 4 * (k % NR)), 14 if i < 4 else 16, SWS, (i & 3) * 1024, SC))
        if i == 6:
            a("s_add_u32 s68, s68, %d" % (2 * 57344))

    a("v_add_u32 v16, 4096, v14")
    for k in range(2):
        hh_load(k)
    for g in wd_dma_groups(6, 65536):
        emit_group(a, g)
    a("s_add_u32 m0, %s, %d" % (sW1024, D_HR))
    a("buffer_load_dwordx4 v14, %s, s69 offen%s lds" % (SWS, SC), tag="hr")
    a.wait_tag(("wd", 3))
    for x in wd_reads(3, C_S0 - 65536):
        a(x)
    for t in range(4):
        a("v_subrev_u32 v%d, 65536, v%d" % (8 + t, 8 + t))
    for x in wd_reads(4, 0) + wd_reads(5, 32768):
        a(x)
    for t in range(4):
        a("v_add_u32 v%d, 65536, v%d" % (8 + t, 8 + t))
    a("v_lshrrev_b32 v18, 5, v1")
    a("s_lshl_b32 %s, %s, 1" % (sT, sW))
    a("v_add_u32 v18, %s, v18" % sT)
    a("v_and_b32 v19, 31, v1")
    a("v_lshrrev_b32 v20, 2, v19")
    a("v_lshlrev_b32 v20, 8, v20")
    a("v_lshl_add_u32 v20, v18, 4, v20")
    a("v_lshl_add_u32 v20, v5, 2, v20")
    a("v_add_u32 v20, %d, v20" % D_HR)
    a("v_mul_u32_u24 v21, 1792, v18")
    a("v_lshl_add_u32 v21, v19, 2, v21")
    a("v_lshrrev_b32 v22, 1, v19")
    a("v_add_u32 v23, v22, v18")
    a("v_and_b32 v23, 15, v23")
    a("v_lshlrev_b32 v23, 4, v23")
    a("v_lshl_add_u32 v22, v22, 8, v23")
    a("v_and_b32 v23, 1, v19")
    a("v_lshl_add_u32 v22, v23, 3, v22")
    a("v_add_u32 v23, v2, v3")
    a("v_lshl_add_u32 v28, v2, 8, s63")
    for t in range(4):
        a("v_add_u32 v29, %d, v23" % (4 * t))
        a("v_and_b32 v29, 15, v29")
        a("v_lshl_add_u32 v%d, v29, 4, v28" % (24 + t))
    a.wait_tag(("hh", 3), lg0=True)
    a("s_barrier")
    pub_stage(3)
    stamp(a, "C flag")
    for k in range(2, DLA):
        hh_load(k)

    def writes(rt):
        return ["ds_write_b128 v%d, %s offset:%d" % (24 + t, vr(ACCS[rt & 1] + 4 * t), (rt & 1) * 32768 + t * 1024) for t in range(4)]

    def fin(rt):
        o = ["ds_read_b32 v%d, v20 offset:%d" % (FS + 1, rt * 2048)]
        for p in range(8):
            o.append("ds_read_b64 %s, v22 offset:%d" % (vr(FT + 2 * p, 2), (rt & 1) * 32768 + p * 4096))
        o.append("v_lshlrev_b32 v%d, 16, v%d" % (FS, FS + 1))
        o.append("v_and_b32 v%d, 0xffff0000, v%d" % (FS + 1, FS + 1))
        for (d, x) in ((0, 2), (4, 6), (8, 10), (12, 14), (0, 4), (8, 12), (0, 8)):
            o.append("v_add_f32 v%d, v%d, v%d" % (FT + d, FT + d, FT + x))
            o.append("v_add_f32 v%d, v%d, v%d" % (FT + d + 1, FT + d + 1, FT + x + 1))
        o.append("v_add_f32 v%d, v%d, v%d" % (FS, FS, FT))
        o.append("v_add_f32 v%d, v%d, v%d" % (FS + 1, FS + 1, FT + 1))
        o.append("v_cvt_pk_bf16_f32 v%d, v%d, v%d" % (OUTR + rt, FS, FS + 1))
        o.append("buffer_store_dword v%d, v21, %s, s70 offen%s" % (OUTR + rt, SOUT, OUTSC))
        o.append("s_add_u32 s70, s70, %d" % (32 * 896))
        return o

    for rt in range(4):
        wr = writes(rt - 1) if rt else []
        fn = fin(rt - 1) if rt else []
        for i in range(7):
            k = rt * 7 + i
            if k == 3:
                a.wait_tag(("wd", 6))
                for x in wd_reads(6, 0):
                    a(x)
            if k in (5, 12):
                lead_issue(a, "s67")
            if rt and i == 2:
                if rt == 1:
                    lead_check(a, "s67", 0, 0x3fff)
                if rt == 2:
                    lead_check(a, "s67", 0, 0x3fff0000)
                a("s_waitcnt lgkmcnt(0)")
                a("s_barrier")
            if k + DLA < 28:
                hh_load(k + DLA)
            for t in range(4):
                a(mfma(ACCS[rt & 1] + 4 * t, WDF[i] + 4 * t, AF + 4 * (k % NR), "0" if i == 0 else None))
                if i == 1 and wr:
                    a(wr.pop(0))
                if i >= 2:
                    for _ in range(2):
                        if fn:
                            a(fn.pop(0))
        for x in fn:
            a(x)
    stamp(a, "D mfma done")
    for x in writes(3):
        a(x)
    a("s_waitcnt lgkmcnt(0)")
    a("s_barrier")
    for x in fin(3):
        a(x)
    stamp(a, "D out stored")


HEADER = open("cdna_kernels/%s.s.ref" % NAME).read().split("; Override launch")[0]


def build():
    n = NAME + "_kernel"
    out = HEADER
    out += "; @launch grid=(256,1,1) block=(512,1,1) lds=163840\n"
    out += '.amdgcn_target "amdgcn-amd-amdhsa--gfx950"\n.text\n'
    a = Asm()
    prologue(a)
    phase_A(a)
    phase_B(a)
    phase_D(a, *phase_C(a))
    a("Lfin:")
    stamp_flush(a)
    a("Lend:")
    a("s_endpgm")
    a("Lcode_end:")
    body = a.render()
    out += ".globl %s\n.p2align 8\n.type %s,@function\n%s:\nLcode_begin:\n%s" % (n, n, n, body)

    out += '.section .rodata,"a"\n.p2align 6\n'
    out += """.amdhsa_kernel %s
  .amdhsa_next_free_vgpr 256
  .amdhsa_next_free_sgpr 102
  .amdhsa_accum_offset 256
  .amdhsa_group_segment_fixed_size 0
  .amdhsa_kernarg_size 80
  .amdhsa_user_sgpr_count 2
  .amdhsa_user_sgpr_kernarg_segment_ptr 1
  .amdhsa_system_sgpr_workgroup_id_x 1
.end_amdhsa_kernel
""" % n
    return out


if __name__ == "__main__":
    dst = sys.argv[1] if len(sys.argv) > 1 else "cdna_kernels/%s.s" % NAME
    STAMPS = "stamps" in sys.argv
    OPT = set(sys.argv[2:])
    txt = build()
    import subprocess, re
    open("_sz.s", "w").write(txt.replace("CODE_BYTES", "0x12345"))
    subprocess.check_call(["clang", "-x", "assembler", "-target", "amdgcn-amd-amdhsa", "-mcpu=gfx950", "-c", "_sz.s", "-o", "_sz.o"])
    sym = subprocess.check_output(["llvm-objdump", "-t", "_sz.o"]).decode()
    end = int(re.search(r"([0-9a-f]+) .*Lcode_end", sym).group(1), 16)
    print("code bytes", end)
    open(dst, "w").write(txt.replace("CODE_BYTES", str((end - 64) & ~3)))
    print("wrote", dst)
```

```python
import sys, struct
sys.path.insert(0, "dev")
from asmlib import Asm, Ins

NAME = "sequential_preLN__sliding_local_dilated__glu_gated_glu__prompt"

WS_O = 0
WS_H = 2 << 20
WS_ST = 4 << 20
WS_HH = 8 << 20
WS_FA = 16 << 20
WS_FB = WS_FA + 8192
WS_FC = WS_FA + 16384
WS_TS = 20 << 20
WS_SIZE = 32 << 20

SX, SWQKV, SWO, SWG, SWU, SWD, SOUT, SWS, SDBG = [("s[%d:%d]" % (b, b + 3)) for b in range(8, 44, 4)]
sW, sXC, sJ, sNONCE = "s44", "s45", "s46", "s47"
sT, sT2, sT3 = "s55", "s56", "s57"
sW1024 = "s53"
sRB, sCB, sRQ, sFS = "s84", "s85", "s86", "s87"
SC = " sc1"
OUTSC = " sc1" if "outsc1" in sys.argv else (" nt" if "outnt" in sys.argv else "")
LOG2E = 1.4426950408889634
STAMPS = False
OPT = set()
NSTAMP = [0]
ASPACE = 3
WOPRE = 28
TCH = 2
TCU = 2
TCD = 2
ROTM = 1


def f2u(x):
    return struct.unpack("<I", struct.pack("<f", x))[0]


def vr(b, n=4):
    return "v[%d:%d]" % (b, b + n - 1)


def mfma(acc, A, B, C=None):
    return "v_mfma_f32_16x16x32_bf16 %s, %s, %s, %s" % (vr(acc), vr(A), vr(B), vr(acc) if C is None else C)


def raw(a, text):
    for line in text.split("\n"):
        line = line.strip()
        if not line:
            continue
        if line.endswith(":"):
            a.items.append(("l", line))
        else:
            a.items.append(("i", Ins(line)))


def stamp(a, name):
    if STAMPS:
        i = NSTAMP[0]
        NSTAMP[0] += 1
        a("; STAMP %d %s" % (i, name))
        a("s_memrealtime s[100:101]")
        a("s_memtime s[72:73]")
        a("s_waitcnt lgkmcnt(0)")
        a("v_writelane_b32 v15, s100, %d" % i)
        a("v_writelane_b32 v15, s72, %d" % (32 + i))


def stamp_flush(a):
    if STAMPS:
        a("s_lshl_b32 s3, s2, 3")
        a("s_add_u32 s3, s3, %s" % sW)
        a("s_lshl_b32 s3, s3, 8")
        a("s_add_u32 s3, s3, %d" % WS_TS)
        a("v_lshlrev_b32 v7, 2, v1")
        a("buffer_store_dword v15, v7, %s, s3 offen" % SWS)
        if "dbgout" in OPT:
            a("s_cmp_lg_u32 s2, 100")
            a("s_cbranch_scc1 Lend")
            a("s_cmp_lg_u32 %s, 3" % sW)
            a("s_cbranch_scc1 Lend")
            sel = [0, 2, 3, 5, 6, 8, 9, 10, 12, 13, 14, 16, 18, 19, 20]
            a("v_mov_b32 v7, 0")
            for i, st in enumerate(sel):
                a("v_readlane_b32 s3, v15, %d" % st)
                a("s_sub_u32 s3, s3, %s" % sNONCE)
                a("v_mov_b32 v6, s3")
                a("buffer_store_dword v6, v7, %s, 0 offen offset:%d" % (SDBG, 4 + 4 * i))


def xg_reduce_multi(a, op, xs, ts):
    for step in ("v_permlane32_swap_b32", "v_permlane16_swap_b32"):
        for x, t in zip(xs, ts):
            a("v_mov_b32 %s, %s" % (t, x))
        for x, t in zip(xs, ts):
            a("%s %s, %s" % (step, t, x))
        for x, t in zip(xs, ts):
            a("%s %s, %s, %s" % (op, x, x, t))


def publish(a, soff):
    L = a.label("pub")
    raw(a, "s_cmp_lg_u32 %s, 0" % sW)
    raw(a, "s_cbranch_scc1 %s" % L)
    raw(a, "s_mov_b64 exec, 1")
    raw(a, "v_mov_b32 v6, %s" % sNONCE)
    raw(a, "v_mov_b32 v7, 0")
    raw(a, "buffer_store_dword v6, v7, %s, %s offen sc1" % (SWS, soff))
    raw(a, "s_mov_b64 exec, -1")
    raw(a, "%s:" % L)


def poll(a, soff, mask_lo, mask_hi):
    L, Lp, Ld = a.label("skip"), a.label("poll"), a.label("done")
    raw(a, "s_cmp_lg_u32 %s, 0" % sW)
    raw(a, "s_cbranch_scc1 %s" % L)
    raw(a, "v_lshlrev_b32 v7, 2, v1")
    raw(a, "s_mov_b32 exec_lo, 0x%x" % mask_lo)
    raw(a, "s_mov_b32 exec_hi, 0x%x" % mask_hi)
    raw(a, "s_mov_b32 s3, 20000")
    raw(a, "%s:" % Lp)
    raw(a, "buffer_load_dword v6, v7, %s, %s offen sc1" % (SWS, soff))
    raw(a, "s_waitcnt vmcnt(0)")
    raw(a, "v_cmp_ne_u32 vcc, %s, v6" % sNONCE)
    raw(a, "s_sub_u32 s3, s3, 1")
    raw(a, "s_cbranch_scc1 %s" % Ld)
    raw(a, "s_nop 1")
    raw(a, "s_cmp_lg_u64 vcc, 0")
    raw(a, "s_cbranch_scc1 %s" % Lp)
    raw(a, "%s:" % Ld)
    raw(a, "s_mov_b64 exec, -1")
    raw(a, "%s:" % L)
    a("s_barrier")


def prologue(a):
    a("s_load_dwordx16 s[64:79], s[0:1], 0")
    a("s_load_dwordx4 s[80:83], s[0:1], 64")
    a("s_memrealtime s[4:5]")
    a("s_cmp_ge_u32 s2, 256")
    a("s_cbranch_scc1 Lend")
    a("s_getpc_b64 s[6:7]")
    a("v_and_b32 v1, 63, v0")
    a("v_lshrrev_b32 v6, 6, v0")
    a("v_lshrrev_b32 v2, 4, v1")
    a("v_readfirstlane_b32 %s, v6" % sW)
    a("v_and_b32 v3, 15, v0")
    a("v_bfe_u32 v4, v0, 2, 2")
    a("v_and_b32 v5, 3, v0")
    if STAMPS:
        a("v_mov_b32 v15, 0")
    if "badmap" in OPT:
        a("s_lshr_b32 %s, s2, 5" % sXC)
        a("s_and_b32 %s, s2, 31" % sJ)
    else:
        a("s_and_b32 %s, s2, 7" % sXC)
        a("s_lshr_b32 %s, s2, 3" % sJ)
    a("v_lshlrev_b32 v6, 7, v0")
    a("v_min_u32 v6, CODE_BYTES, v6")
    a("s_cmp_gt_u32 %s, 3" % sW)
    a("s_cbranch_scc1 Lnopf")
    raw(a, "global_load_dword v7, v6, s[6:7]")
    a("Lnopf:")
    sizes = {8: 2048 * 896, 12: 448 * 2688, 16: 448 * 896, 20: 448 * 3584, 24: 448 * 3584,
             28: 1792 * 896, 32: 2048 * 896, 36: WS_SIZE, 40: 256}
    for b, sz in sizes.items():
        a("s_mov_b32 s%d, %d" % (b + 2, sz))
        a("s_mov_b32 s%d, 0x00020000" % (b + 3))
    a("s_lshl_b32 %s, %s, 10" % (sW1024, sW))


def prologue2(a):
    a("s_waitcnt lgkmcnt(0)")
    src = {8: 64, 12: 66, 16: 68, 20: 72, 24: 74, 28: 76, 32: 78, 36: 82, 40: 80}
    for b, s in src.items():
        a("s_mov_b64 s[%d:%d], s[%d:%d]" % (b, b + 1, s, s + 1))


def nonce_publish(a):
    a("s_or_b32 s3, s2, %s" % sW)
    a("s_cmp_lg_u32 s3, 0")
    a("s_cbranch_scc1 Lnononce")
    raw(a, "s_or_b32 s3, s4, 1")
    if any(o.startswith("thr") for o in OPT):
        raw(a, "s_getreg_b32 s5, hwreg(HW_REG_XCC_ID)")
        raw(a, "s_and_b32 s5, s5, 7")
        raw(a, "s_andn2_b32 s3, s4, 15")
        raw(a, "s_or_b32 s3, s3, s5")
        raw(a, "s_or_b32 s3, s3, 8")
    raw(a, "v_mov_b32 v8, s3")
    raw(a, "v_mov_b32 v9, 0")
    raw(a, "s_mov_b64 exec, 1")
    raw(a, "buffer_store_dword v8, v9, %s, 0 offen sc1" % SDBG)
    raw(a, "s_mov_b64 exec, -1")
    a("Lnononce:")


def nonce_fetch(a, vN):
    L, Lp = a.label("nskip"), a.label("npoll")
    a("v_readfirstlane_b32 %s, %s" % (sNONCE, vN))
    raw(a, "s_nop 1")
    raw(a, "s_cmp_lg_u32 %s, 0" % sNONCE)
    raw(a, "s_cbranch_scc1 %s" % L)
    raw(a, "s_mov_b32 s3, 20000")
    raw(a, "v_mov_b32 v7, 0")
    raw(a, "%s:" % Lp)
    raw(a, "buffer_load_dword v6, v7, %s, 0 offen sc1" % SDBG)
    raw(a, "s_waitcnt vmcnt(0)")
    raw(a, "v_readfirstlane_b32 %s, v6" % sNONCE)
    raw(a, "s_sub_u32 s3, s3, 1")
    raw(a, "s_cbranch_scc1 %s" % L)
    raw(a, "s_nop 1")
    raw(a, "s_cmp_eq_u32 %s, 0" % sNONCE)
    raw(a, "s_cbranch_scc1 %s" % Lp)
    raw(a, "%s:" % L)
    raw(a, "s_nop 3")


def touch(a, jobs):
    Lend = a.label("tend")
    for (w, srd, n) in jobs:
        L = a.label("tn")
        raw(a, "s_cmp_lg_u32 %s, %d" % (sW, w))
        raw(a, "s_cbranch_scc1 %s" % L)
        raw(a, "s_mul_i32 s3, s2, %d" % (n * 128))
        raw(a, "v_min_u32 v6, %d, v1" % (n - 1))
        raw(a, "v_lshlrev_b32 v6, 7, v6")
        raw(a, "buffer_load_dword v7, v6, %s, s3 offen" % srd)
        raw(a, "s_branch %s" % Lend)
        raw(a, "%s:" % L)
    raw(a, "%s:" % Lend)


A_SLOT = 34816
A_XOFF = 24576
A_EX = 2 * A_SLOT
A_ST = 4 * A_SLOT
R0, R1, R2 = 0, 57344, 139264
B_RB = R2
C_ST = 149504

vWO_DMA, vWC_DMA, vWC_TR = "v176", "v177", 178
WGF, WUF = 80, 136
WOF = 128


def roles_BCD(a):
    a("s_mul_i32 %s, %s, 37" % (sRB, sJ))
    a("s_lshr_b32 %s, %s, 8" % (sRB, sRB))
    a("s_mul_i32 %s, %s, 7" % (sCB, sRB))
    a("s_sub_u32 %s, %s, %s" % (sCB, sJ, sCB))
    a("s_lshr_b32 %s, %s, 1" % (sT, sXC))
    a("s_lshl_b32 %s, %s, 2" % (sT, sT))
    a("s_add_u32 %s, %s, %s" % (sRQ, sRB, sT))
    a("s_and_b32 %s, %s, 1" % (sT, sXC))
    a("s_mul_i32 %s, %s, 7" % (sT, sT))
    a("s_add_u32 %s, %s, %s" % (sFS, sCB, sT))
    a("s_lshl_b32 %s, %s, 2" % (sT, sXC))
    a("s_add_u32 %s, %s, %s" % (sRB, sRB, sT))


def wo_dma(a, i0, i1, vaddr):
    for i in range(i0, i1):
        a("s_add_u32 m0, %s, %d" % (sW1024, R0 + i * 8192))
        a("s_mov_b32 %s, %d" % (sT, i * 64 * 896))
        a("buffer_load_dwordx4 %s, %s, %s offen lds" % (vaddr, SWO, sT), tag="wo")


def wc_dma(a, slabs, vaddr, tag):
    for (s, base) in slabs:
        a("s_add_u32 m0, %s, %d" % (sW1024, base))
        a("s_mov_b32 %s, %d" % (sT, (s % 14) * 114688))
        a("buffer_load_dwordx4 %s, %s, %s offen lds" % (vaddr, SWG if s < 14 else SWU, sT), tag=tag)


def wc_read(slabs, vtr):
    out = []
    for (s, base) in slabs:
        for hf in range(2):
            out.append("ds_read_b64_tr_b16 %s, v%d offset:%d" % (vr(WGF + 4 * s + 2 * hf, 2), vtr + base // 57344, base % 57344 + hf * 1024))
    return out


A_NM = A_ST
A_RHO = A_ST + 384


def phase_A(a):
    sTB, sHP, sT0, sTI, sHD = "s48", "s49", "s50", "s51", "s52"
    a("; ---------------- phase A ----------------")
    a("s_lshl_b32 %s, %s, 2" % (sTB, sXC))
    a("s_lshr_b32 %s, %s, 3" % (sT, sJ))
    a("s_add_u32 %s, %s, %s" % (sTB, sTB, sT))
    a("s_and_b32 %s, %s, 7" % (sHP, sJ))
    a("s_lshl_b32 %s, %s, 6" % (sT0, sTB))
    a("s_and_b32 %s, %s, 3" % (sTI, sW))
    a("s_lshr_b32 %s, %s, 2" % (sHD, sW))
    a("v_lshrrev_b32 v12, 3, v1")
    a("v_and_b32 v13, 7, v1")
    a("v_lshlrev_b32 v14, 4, v1")
    ONES = 20
    BP, BC = 76, 80

    def slot(ch):
        return (ch + 1) % 4

    def common_setup(a):
        a("v_lshlrev_b32 v8, 2, v2")
        a("v_sub_u32 v9, v3, v8")
        a("s_lshl_b32 %s, %s, 2" % (sT, sTB))
        a("s_add_u32 %s, %s, %s" % (sT, sT, sTI))
        a("s_cmp_lt_u32 %s, 2" % sT)
        a("s_cselect_b32 %s, 0x10000, 0" % sT2)
        a("v_mov_b32 v11, 0x%x" % f2u(-1e30))
        for rr in range(4):
            a("v_subrev_u32 v10, %d, v9" % rr)
            a("v_cmp_gt_u32 vcc, 8, v10")
            a("v_cndmask_b32 v%d, v11, 0, vcc" % (BC + rr))
            a("v_add_u32 v10, 16, v10")
            a("v_add_u32 v10, %s, v10" % sT2)
            a("v_cmp_gt_u32 vcc, 8, v10")
            a("v_cndmask_b32 v%d, v11, 0, vcc" % (BP + rr))
        a("v_cmp_gt_u32 s[94:95], 3, v2")
        a("s_mul_i32 %s, %s, 3072" % (sT2, sHD))
        a("s_add_u32 %s, %s, %d" % (sT2, sT2, A_EX))
        a("s_mul_i32 %s, %s, 6144" % (sT, sTI))
        a("s_add_u32 %s, %s, %s" % (sT, sT, sT2))
        a("v_lshl_add_u32 v32, v1, 3, %s" % sT)
        a("v_lshl_add_u32 v9, v2, 2, v4")
        a("v_lshl_add_u32 v10, v5, 4, v9")
        a("v_lshl_add_u32 v33, v10, 3, %s" % sT)
        a("s_sub_u32 %s, %s, 12288" % (sT, sT))
        a("s_add_u32 %s, %s, %d" % (sT2, sT2, 4 * 6144))
        a("s_lshl_b32 s97, %s, 3" % sTI)
        a("s_lshl_b32 %s, %s, 6" % (sT3, sTI))
        a("s_add_u32 %s, %s, %d" % (sT3, sT3, A_RHO))
        a("v_lshl_add_u32 v36, v3, 2, %s" % sT3)
        a("v_lshl_add_u32 v37, v2, 4, %s" % sT3)
        a("s_sub_u32 %s, %s, 128" % (sT3, sT3))
        a("s_cmp_lt_u32 %s, 2" % sTI)
        a("s_cselect_b32 s96, 7, 15")
        a("s_cselect_b32 s97, s97, 0")
        a("s_cselect_b32 %s, %s, %s" % (sT, sT2, sT))
        a("s_cselect_b32 %s, %d, %s" % (sT3, A_RHO + 256, sT3))
        a("v_and_b32 v9, s96, v9")
        a("v_add_u32 v9, s97, v9")
        a("v_lshl_add_u32 v10, v5, 4, v9")
        a("v_lshl_add_u32 v34, v10, 3, %s" % sT)
        a("v_and_b32 v9, s96, v8")
        a("v_add_u32 v9, s97, v9")
        a("v_lshl_add_u32 v38, v9, 2, %s" % sT3)
        a("v_and_b32 v9, s96, v3")
        a("v_add_u32 v9, s97, v9")
        a("v_lshl_add_u32 v10, v2, 4, v9")
        a("v_lshl_add_u32 v35, v10, 3, %s" % sT)
        a("s_lshl_b32 %s, %s, 2" % (sT, sTB))
        a("s_add_u32 %s, %s, %s" % (sT, sT, sTI))
        a("s_lshl_b32 %s, %s, 4" % (sT, sT))
        a("s_lshl_b32 %s, %s, 1" % (sT2, sHP))
        a("s_add_u32 %s, %s, %s" % (sT, sT, sT2))
        a("s_add_u32 %s, %s, %s" % (sT, sT, sHD))
        a("s_lshl_b32 s98, %s, 10" % sT)
        a("s_lshl_b32 %s, %s, 7" % (sT, sTB))
        a("s_lshl_b32 %s, %s, 2" % (sT2, sHP))
        a("s_add_u32 %s, %s, %s" % (sT, sT, sT2))
        a("s_add_u32 s99, %s, %d" % (sT, WS_FA))
        roles_BCD(a)
        a("s_bfe_u32 %s, %s, 0x10001" % (sT, sW))
        a("s_lshl_b32 %s, %s, 3" % (sT, sT))
        a("v_lshl_or_b32 v8, v2, 1, %s" % sT)
        a("v_xor_b32 v8, v8, v3")
        a("s_lshl_b32 %s, %s, 2" % (sT, sW))
        a("v_add_u32 v9, %s, v2" % sT)
        a("v_mul_u32_u24 v9, 3584, v9")
        a("v_lshl_add_u32 v9, v8, 4, v9")
        a("s_lshl_b32 %s, %s, 8" % (sT, sFS))
        a("v_add_u32 v16, %s, v9" % sT)
        a("v_lshl_add_u32 v8, v2, 2, v4")
        a("s_mul_i32 %s, %s, 224" % (sT, sHD))
        a("v_add_u32 v8, %s, v8" % sT)
        a("v_lshlrev_b32 v8, 7, v8")
        a("v_and_b32 v9, 2, v4")
        a("v_lshlrev_b32 v9, 1, v9")
        a("s_lshl_b32 %s, %s, 2" % (sT, sHD))
        a("v_or_b32 v10, %s, v5" % sT)
        a("v_xor_b32 v10, v10, v9")
        a("v_lshl_add_u32 v28, v10, 4, v8")
        a("v_xor_b32 v29, 64, v28")
        a("v_mov_b32 v9, 2048")
        a("v_cndmask_b32 v9, 0, v9, s[94:95]")
        a("v_add_u32 v30, v28, v9")
        a("v_add_u32 v31, v29, v9")

    RQ, RC, RP = 39, 120, 124

    def rho_reads():
        a("ds_read_b32 v%d, v36" % RQ)
        a("ds_read_b128 %s, v37" % vr(RC))
        a("ds_read_b128 %s, v38" % vr(RP))

    a("s_cmp_lt_u32 %s, 4" % sW)
    a("s_cbranch_scc1 LAcons")
    sL2048, sL512 = "s54", "s65"
    vW0, vW1, vX0, vX1, vH, vWO = "v40", "v41", "v42", "v43", "v44", "v45"
    a("s_lshl_b32 %s, %s, 11" % (sL2048, sTI))
    a("v_and_b32 v8, 2, v12")
    a("v_xor_b32 v8, v8, v13")
    a("v_xor_b32 v10, 4, v8")
    a("v_min_u32 v8, 6, v8")
    a("v_min_u32 v10, 6, v10")
    a("s_lshl_b32 %s, %s, 4" % (sT, sTI))
    a("v_add_u32 v9, %s, v12" % sT)
    a("v_mul_u32_u24 v9, 2688, v9")
    a("s_mul_i32 %s, %s, 112" % (sT, sHP))
    a("v_add_u32 v9, %s, v9" % sT)
    a("v_lshl_add_u32 %s, v8, 4, v9" % vW0)
    a("v_add_u32 v9, %d, v9" % (8 * 2688))
    a("v_lshl_add_u32 %s, v10, 4, v9" % vW1)
    a("s_lshr_b32 %s, %s, 1" % (sT2, sTI))
    a("s_and_b32 %s, %s, 1" % (sT3, sTI))
    a("s_lshl_b32 %s, %s, 5" % (sT, sT2))
    a("s_add_u32 %s, %s, %s" % (sT, sT, sT0))
    a("s_add_u32 %s, %s, %s" % (sT, sT, sT3))
    a("v_lshl_add_u32 v9, v12, 1, %s" % sT)
    a("v_mul_u32_u24 v9, 896, v9")
    a("v_lshrrev_b32 v8, 1, v12")
    a("v_xor_b32 v8, v8, v13")
    a("v_lshl_add_u32 %s, v8, 4, v9" % vX0)
    a("v_xor_b32 v8, 4, v8")
    a("v_add_u32 v9, %d, v9" % (16 * 896))
    a("v_lshl_add_u32 %s, v8, 4, v9" % vX1)
    a("s_lshl_b32 %s, %s, 3" % (sT, sT3))
    a("s_add_u32 %s, %s, %s" % (sT, sT, sT2))
    a("s_add_u32 %s, %s, %s" % (sT, sT, sT0))
    a("s_sub_u32 %s, %s, 16" % (sT, sT))
    a("v_and_b32 v8, 3, v12")
    a("v_lshl_add_u32 v9, v8, 1, %s" % sT)
    a("v_max_i32 v9, 0, v9")
    a("v_mul_u32_u24 v9, 896, v9")
    a("v_lshrrev_b32 v8, 1, v8")
    a("s_lshl_b32 %s, %s, 1" % (sT, sTI))
    a("v_add_u32 v8, %s, v8" % sT)
    a("v_xor_b32 v8, v8, v13")
    a("v_lshl_add_u32 %s, v8, 4, v9" % vH)
    a("s_mov_b32 s59, 0")
    a("s_cmp_eq_u32 %s, 0" % sTI)
    a("s_cselect_b32 s58, 0xffffff00, -1")
    prologue2(a)
    a("s_lshl_b32 %s, %s, 9" % (sL512, sTI))
    if "rot" not in OPT:
        a("s_mov_b32 s67, 0")
    else:
        a("s_lshr_b32 s67, %s, 3" % sJ)
        a("s_lshl_b32 s67, s67, 1")
        a("s_mul_i32 %s, %s, %d" % (sT, sHP, ROTM))
        a("s_add_u32 s67, s67, %s" % sT)
        a("s_mul_i32 %s, s67, 37" % sT)
        a("s_lshr_b32 %s, %s, 8" % (sT, sT))
        a("s_mul_i32 %s, %s, 7" % (sT, sT))
        a("s_sub_u32 s67, s67, %s" % sT)
        a("s_lshl_b32 s67, s67, 7")

    def dma(ch, fill=()):
        fill = list(fill)
        per = (len(fill) + 8) // 9

        def f():
            for _ in range(per):
                while fill:
                    x = fill.pop(0)
                    a(x)
                    if not (fill and fill[0].startswith(("s_cselect", "v_cndmask"))):
                        break

        sb = slot(ch) * A_SLOT
        if ch:
            a("s_add_u32 s67, s67, 128")
            a("s_cmp_eq_u32 s67, 896")
            a("s_cselect_b32 s67, 0, s67")
        a("s_add_u32 m0, %s, %d" % (sL512, sb + A_XOFF + 8192))
        a("s_mov_b64 exec, s[58:59]")
        a("buffer_load_dwordx4 %s, %s, s67 offen lds" % (vH, SX), tag=("AX", ch))
        a("s_mov_b64 exec, -1")
        for i, v in enumerate((vX0, vX1)):
            a("s_add_u32 m0, %s, %d" % (sL2048, sb + A_XOFF + i * 1024))
            a("buffer_load_dwordx4 %s, %s, s67 offen lds" % (v, SX), tag=("AX", ch))
            f()
        a("s_mul_i32 s64, s67, 1344")
        for m in range(3):
            for i, v in enumerate((vW0, vW1)):
                a("s_add_u32 m0, %s, %d" % (sL2048, sb + m * 8192 + i * 1024 - m * 896))
                a("buffer_load_dwordx4 %s, %s, s64 offen offset:%d lds" % (v, SWQKV, m * 896), tag=("A", ch))
                f()
        for x in fill:
            a(x)

    a("s_setprio 3")
    stamp(a, "A start")
    dma(0)
    for i in range(4):
        a("v_mov_b32 v%d, 0x3f803f80" % (ONES + i))
    a("v_and_b32 v8, 3, v12")
    a("v_mul_u32_u24 v8, %d, v8" % A_SLOT)
    a("v_lshl_add_u32 v8, v13, 4, v8")
    a("ds_write_b128 v8, %s offset:%d" % (vr(ONES), A_XOFF + 8192))
    ST = 48
    for i in range(6):
        a("v_mov_b32 v%d, 0" % (ST + i))
    a("s_add_u32 %s, %s, %d" % (sT, sL2048, A_XOFF))
    a("v_add_u32 v54, %s, v14" % sT)
    a("v_add_u32 v55, %d, v54" % (2 * A_SLOT))
    a("s_add_u32 %s, %s, %d" % (sT, sL512, A_XOFF + 8192))
    a("v_add_u32 v56, %s, v14" % sT)
    a("v_add_u32 v57, %d, v56" % (2 * A_SLOT))
    dma(1)
    SR = 84

    def stats_rd(ch):
        sl = slot(ch)
        ib = (sl & 1) * A_SLOT
        a.wait_tag(("AX", ch))
        a("ds_read_b128 %s, v%d offset:%d" % (vr(SR), 54 + (sl >> 1), ib))
        a("ds_read_b128 %s, v%d offset:%d" % (vr(SR + 4), 54 + (sl >> 1), ib + 1024))
        a("ds_read_b128 %s, v%d offset:%d" % (vr(SR + 8), 56 + (sl >> 1), ib))

    def dots():
        o = []
        for i in range(4):
            for k in range(3):
                o.append("v_dot2c_f32_bf16 v%d, v%d, v%d" % (ST + 2 * k, SR + 4 * k + i, ONES))
                o.append("v_dot2c_f32_bf16 v%d, v%d, v%d" % (ST + 2 * k + 1, SR + 4 * k + i, SR + 4 * k + i))
        return o

    class Rec:
        def __init__(self):
            self.l = []

        def __call__(self, x, tag=None):
            self.l.append(x)

    def pieces(fn, n):
        rec = Rec()
        fn(rec)
        late, out = rec.l, []
        for k in range(n):
            nl = (len(late) + n - k - 1) // (n - k)
            while nl < len(late) and late[nl].startswith(("s_cselect", "v_cndmask")):
                nl += 1
            out.append(late[:nl])
            late = late[nl:]
        return out

    cs = pieces(common_setup, 4) + [[], []]
    stats_rd(0)
    for x in dots():
        a(x)
    for ch in range(6):
        a.wait_tag(("A", ch), lg0=True)
        a("s_barrier")
        if ch + 2 <= 6:
            stats_rd(ch + 1)
            dma(ch + 2, cs[ch] + dots())
        if ch == 3:
            a("v_and_b32 v8, 2, v12")
            a("v_lshlrev_b32 v8, 1, v8")
            a("v_xor_b32 v8, v8, v13")
            a("s_lshl_b32 %s, %s, 3" % (sT, sTI))
            a("v_add_u32 v9, %s, v12" % sT)
            a("v_mul_u32_u24 v9, 896, v9")
            a("v_lshl_add_u32 v9, v8, 4, v9")
            a("s_lshl_b32 %s, %s, 7" % (sT, sCB))
            a("v_add_u32 %s, %s, v9" % (vWO, sT))
            a("s_lshl_b32 s66, %s, 10" % sTI)
            a("s_lshl_b32 %s, %s, 6" % (sT, sTI))
            a("s_add_u32 %s, %s, %d" % (sT, sT, A_NM))
            a("v_lshl_add_u32 v46, v12, 2, %s" % sT)
            a("s_lshl_b32 %s, %s, 4" % (sT, sTI))
            a("s_add_u32 %s, %s, %d" % (sT, sT, A_NM + 256))
            a("v_lshl_add_u32 v47, v12, 2, %s" % sT)
            a("v_mov_b32 v6, 0")
            a("buffer_load_dword v17, v6, %s, 0 offen sc1" % SDBG)

    def wo_dma(i0, i1):
        for i in range(i0, i1):
            a("s_add_u32 m0, s66, %d" % (R0 + i * 4096))
            a("s_mov_b32 s64, %d" % (i * 32 * 896))
            a("buffer_load_dwordx4 %s, %s, s64 offen lds" % (vWO, SWO), tag="wo")

    stats_rd(6)
    wo_dma(0, 3)
    for x in dots():
        a(x)
    a("s_nop 2")
    for ctl in ("quad_perm:[1,0,3,2]", "quad_perm:[2,3,0,1]", "row_half_mirror"):
        for x in range(6):
            a("v_add_f32_dpp v%d, v%d, v%d %s row_mask:0xf bank_mask:0xf" % (ST + x, ST + x, ST + x, ctl))
    a("s_mov_b32 %s, 0x%x" % (sT, f2u(1.0 / 448)))
    a("v_mov_b32 v8, 0x%x" % f2u(1e-5))
    for k in range(3):
        a("v_mul_f32 v%d, -%s, v%d" % (ST + 2 * k, sT, ST + 2 * k))
        a("v_fma_f32 v%d, v%d, %s, v8" % (ST + 2 * k + 1, ST + 2 * k + 1, sT))
    for k in range(3):
        a("v_fma_f32 v%d, -v%d, v%d, v%d" % (ST + 2 * k + 1, ST + 2 * k, ST + 2 * k, ST + 2 * k + 1))
    for k in range(3):
        a("v_max_f32 v%d, v%d, v8" % (ST + 2 * k + 1, ST + 2 * k + 1))
    for k in range(3):
        a("v_rsq_f32 v%d, v%d" % (ST + 2 * k + 1, ST + 2 * k + 1))
    a("ds_write_b32 v46, v%d" % ST)
    a("ds_write_b32 v46, v%d offset:32" % (ST + 2))
    a("ds_write_b32 v46, v%d offset:384" % (ST + 1))
    a("ds_write_b32 v46, v%d offset:416" % (ST + 3))
    a("s_mov_b32 exec_hi, 0")
    a("ds_write_b32 v47, v%d" % (ST + 4))
    a("ds_write_b32 v47, v%d offset:384" % (ST + 5))
    a("s_mov_b64 exec, -1")
    a.wait_tag(("A", 6), lg0=True)
    a("s_barrier")
    rho_reads()
    wo_dma(3, 14)
    a("s_waitcnt vmcnt(0) lgkmcnt(0)")
    a("s_setprio 0")
    a("s_branch LAjoin")

    a("LAcons:")
    a.vm, a.lg = [], []
    prologue2(a)
    nonce_publish(a)
    AD, NAD = 128, 5
    a("s_and_b32 s66, %s, 1" % sW)
    a("s_lshr_b32 s67, %s, 1" % sW)
    a("v_bfe_u32 v8, v3, 1, 3")
    a("v_xor_b32 v8, v8, v2")
    a("v_lshlrev_b32 v8, 4, v8")
    a("v_lshl_add_u32 v8, v3, 7, v8")
    a("v_add_u32 v%d, %d, v8" % (AD, A_XOFF))
    a("v_xor_b32 v%d, 64, v%d" % (AD + 1, AD))
    a("v_and_b32 v8, 2, v4")
    a("v_and_b32 v9, 1, v2")
    a("v_lshl_or_b32 v8, v9, 2, v8")
    a("v_lshlrev_b32 v8, 4, v8")
    a("v_lshl_add_u32 v9, v2, 3, v4")
    a("v_lshlrev_b32 v9, 7, v9")
    a("s_mul_i32 s68, s66, 3")
    a("s_mul_i32 %s, s67, 56" % sT2)
    for j in range(3):
        a("s_add_u32 %s, s68, %d" % (sT3, j))
        a("s_and_b32 %s, %s, 1" % (sT, sT3))
        a("s_lshl_b32 %s, %s, 5" % (sT, sT))
        a("s_add_u32 %s, %s, %s" % (sT, sT, sT2))
        a("v_lshl_add_u32 v10, v5, 3, %s" % sT)
        a("v_xor_b32 v10, v10, v8")
        a("s_lshr_b32 %s, %s, 1" % (sT, sT3))
        a("s_lshl_b32 %s, %s, 13" % (sT, sT))
        a("v_add3_u32 v%d, v10, v9, %s" % (AD + 2 + j, sT))
    for i in range(NAD):
        a("v_add_u32 v%d, %d, v%d" % (AD + NAD + i, 2 * A_SLOT, AD + i))
    a("s_mul_i32 %s, %s, 1536" % (sT, sW))
    a("s_add_u32 %s, %s, %d" % (sT, sT, A_EX))
    a("v_lshl_add_u32 v138, v1, 3, %s" % sT)
    a("v_lshlrev_b32 v139, 2, v3")
    a("v_add_u32 v139, %d, v139" % A_NM)
    if "touch0" in OPT:
        touch(a, [(2, SWQKV, 37), (3, SX, 56)])
    common_setup(a)
    if "notouch1" not in OPT:
        touch(a, [(2, SWQKV, 37), (3, SX, 56)])
    ACC = 140
    FB = [40, 84]
    NM = 200

    def reads(n):
        ch, ks = n >> 1, n & 1
        sl = slot(ch)
        ab = AD if sl < 2 else AD + NAD
        ib = (sl & 1) * A_SLOT
        fb = FB[ks]
        tr = lambda j, hf: "ds_read_b64_tr_b16 %s, v%d offset:%d" % (vr(fb + 20 + 4 * j + 2 * hf, 2), ab + 2 + j, ib + ks * 4096 + hf * 512)
        xr = lambda t: "ds_read_b128 %s, v%d offset:%d" % (vr(fb + 4 * t), ab + ks, ib + t * 2048)
        return [tr(0, 0), tr(0, 1), xr(4), xr(0), xr(1), xr(2), xr(3), tr(1, 0), tr(1, 1), tr(2, 0), tr(2, 1)]

    def compute(n):
        fb = FB[n & 1]
        z = "0" if n == 0 else None
        return [mfma(ACC + 20 * j + 4 * t, fb + 20 + 4 * j, fb + 4 * t, z) for j in range(3) for t in (4, 0, 1, 2, 3)]

    def norm(j):
        o = []
        for t in (0, 1, 2, 3, 4):
            acc = ACC + 20 * j + 4 * t
            for rr in range(4):
                o.append("v_fmac_f32_dpp v%d, v%d, v%d row_newbcast:0 row_mask:0xf bank_mask:0xf" % (acc + rr, ACC + 20 * j + 16 + rr, NM + t))
            pk = 208 + 2 * ((5 * j + t) % 4)
            o.append("v_cvt_pk_bf16_f32 v%d, v%d, v%d" % (pk, acc, acc + 1))
            o.append("v_cvt_pk_bf16_f32 v%d, v%d, v%d" % (pk + 1, acc + 2, acc + 3))
            o.append("ds_write_b64 v138, %s offset:%d" % (vr(pk, 2), t * 6144 + j * 512))
        return o

    for ch in range(7):
        if "notouch" not in OPT:
            jobs = [j for (t, j) in ((TCH, (0, SWO, 13)), (TCH, (1, SWG, 49)), (TCU, (2, SWU, 49)), (TCD, (3, SWD, 49))) if t == ch]
            if jobs:
                touch(a, jobs)
        if ch == 4:
            a("v_mov_b32 v6, 0")
            a("buffer_load_dword v17, v6, %s, 0 offen sc1" % SDBG)
        a("s_waitcnt lgkmcnt(0)")
        a("s_barrier")
        if ch in (0, 6):
            stamp(a, "A ch%d landed" % ch)
        for x in reads(2 * ch):
            a(x)
        rd = reads(2 * ch + 1)
        if ch == 6:
            rd += ["ds_read_b32 v%d, v139 offset:%d" % (NM + t, 64 * t) for t in range(5)]
        for x in compute(2 * ch):
            a(x)
            for _ in range(2 if ch == 6 else 1):
                if rd:
                    a(rd.pop(0))
        nr = []
        for i, x in enumerate(compute(2 * ch + 1)):
            a(x)
            if ch == 6:
                if i == 6:
                    nr += norm(0)
                if i == 11:
                    nr += norm(1)
                for _ in range(3):
                    if nr:
                        a(nr.pop(0))
    stamp(a, "A loop done")
    for x in nr + norm(2):
        a(x)
    rho_reads()
    a("s_waitcnt vmcnt(0) lgkmcnt(0)")
    a("LAjoin:")
    a.vm, a.lg = [], []
    a("s_barrier")
    QP, KC, KP, V0, V1 = 100, 104, 108, 112, 116
    a("ds_read_b64 %s, v32" % vr(QP, 2))
    a("ds_read_b64 %s, v32 offset:512" % vr(QP + 2, 2))
    a("ds_read_b64 %s, v32 offset:1024" % vr(KC, 2))
    a("ds_read_b64 %s, v32 offset:1536" % vr(KC + 2, 2))
    a("ds_read_b64 %s, v35 offset:1024" % vr(KP, 2))
    a("ds_read_b64 %s, v35 offset:1536" % vr(KP + 2, 2))
    a("ds_read_b64_tr_b16 %s, v34 offset:2048" % vr(V0, 2))
    a("ds_read_b64_tr_b16 %s, v33 offset:2048" % vr(V0 + 2, 2))
    a("ds_read_b64_tr_b16 %s, v34 offset:2560" % vr(V1, 2))
    a("ds_read_b64_tr_b16 %s, v33 offset:2560" % vr(V1 + 2, 2))
    a("v_mul_f32 v13, 0x%x, v%d" % (f2u(28 ** -0.5 * LOG2E), RQ))
    nonce_fetch(a, "v17")
    a("v_cndmask_b32 v%d, 0, v%d, s[94:95]" % (QP + 2, QP + 2))
    a("v_cndmask_b32 v%d, 0, v%d, s[94:95]" % (QP + 3, QP + 3))
    a(mfma(BC, KC, QP))
    a(mfma(BP, KP, QP))
    for i in range(4):
        a("v_mul_f32 v%d, v%d, v%d" % (BC + i, RC + i, BC + i))
    for i in range(4):
        a("v_mul_f32 v%d, v%d, v%d" % (BP + i, RP + i, BP + i))
    a("v_max3_f32 v8, v%d, v%d, v%d" % (BC, BC + 1, BC + 2))
    a("v_max3_f32 v9, v%d, v%d, v%d" % (BC + 3, BP, BP + 1))
    a("v_max3_f32 v8, v8, v%d, v%d" % (BP + 2, BP + 3))
    a("v_max_f32 v8, v8, v9")
    xg_reduce_multi(a, "v_max_f32", ["v8"], ["v9"])
    a("v_mul_f32 v8, v13, v8")
    for i in range(8):
        a("v_fma_f32 v%d, v%d, v13, -v8" % (BP + i, BP + i))
    for i in range(8):
        a("v_exp_f32 v%d, v%d" % (BP + i, BP + i))
    a("v_add_f32 v9, v%d, v%d" % (BP, BP + 1))
    a("v_add_f32 v10, v%d, v%d" % (BP + 2, BP + 3))
    a("v_add_f32 v11, v%d, v%d" % (BP + 4, BP + 5))
    a("v_add_f32 v12, v%d, v%d" % (BP + 6, BP + 7))
    a("v_add_f32 v9, v9, v10")
    a("v_add_f32 v11, v11, v12")
    a("v_add_f32 v9, v9, v11")
    a("v_mov_b32 v10, v9")
    a("v_mul_f32 v%d, v%d, v%d" % (BP, RP, BP))
    a("v_mul_f32 v%d, v%d, v%d" % (BP + 1, RP + 1, BP + 1))
    a("v_permlane32_swap_b32 v10, v9")
    a("v_add_f32 v9, v9, v10")
    a("v_mov_b32 v10, v9")
    a("v_mul_f32 v%d, v%d, v%d" % (BP + 2, RP + 2, BP + 2))
    a("v_mul_f32 v%d, v%d, v%d" % (BP + 3, RP + 3, BP + 3))
    a("v_permlane16_swap_b32 v10, v9")
    a("v_add_f32 v9, v9, v10")
    a("v_rcp_f32 v9, v9")
    for i in range(4):
        a("v_mul_f32 v%d, v%d, v%d" % (BC + i, RC + i, BC + i))
    for i in range(8):
        a("v_mul_f32 v%d, v9, v%d" % (BP + i, BP + i))
    P = 96
    for i in range(4):
        a("v_cvt_pk_bf16_f32 v%d, v%d, v%d" % (P + i, BP + 2 * i, BP + 2 * i + 1))
    O0, O1 = 40, 44
    a(mfma(O0, V0, P, "0"))
    a(mfma(O1, V1, P, "0"))
    OS = 124
    a("v_cvt_pk_bf16_f32 v%d, v%d, v%d" % (OS, O0, O0 + 1))
    a("v_cvt_pk_bf16_f32 v%d, v%d, v%d" % (OS + 1, O0 + 2, O0 + 3))
    a("v_cvt_pk_bf16_f32 v%d, v%d, v%d" % (OS + 2, O1, O1 + 1))
    a("v_cvt_pk_bf16_f32 v%d, v%d, v%d" % (OS + 3, O1 + 2, O1 + 3))
    a("v_cndmask_b32 v%d, 0, v%d, s[94:95]" % (OS + 2, OS + 2))
    a("v_cndmask_b32 v%d, 0, v%d, s[94:95]" % (OS + 3, OS + 3))
    a("buffer_store_dwordx4 %s, v14, %s, s98 offen%s" % (vr(OS), SWS, SC), tag="ost")
    stamp(a, "A o stored")


G1 = [(s, R1 + 8192 * s) for s in range(10)]
G2 = [(10 + i, R0 + 8192 * i) for i in range(7)]
G3 = [(17 + i, R1 + 8192 * i) for i in range(10)] + [(27, R2 + 16384)]


def phase_B(a):
    sTT, sKH, sTAU, sU = "s50", "s51", "s52", "s54"
    a("; ---------------- A->B ----------------")
    a("s_cmp_lt_u32 %s, 28" % sJ)
    a("s_cbranch_scc1 LgoB")
    raw(a, "s_waitcnt vmcnt(0)")
    raw(a, "s_barrier")
    publish(a, "s99")
    raw(a, "s_branch Lfin")
    a("LgoB:")
    worder = []
    for hh in range(8):
        for t in range(4):
            off = R0 + hh * 3584 + (t & 1) * 8
            worder.append("ds_read_b64_tr_b16 %s, v%d offset:%d" % (vr(WOF + 16 * hh + 4 * t, 2), 28 + (t >> 1), off))
            worder.append("ds_read_b64_tr_b16 %s, v%d offset:%d" % (vr(WOF + 16 * hh + 4 * t + 2, 2), 30 + (t >> 1), off))
    wc_dma(a, G1[6:10], "v16", "g1")
    a("s_and_b32 %s, %s, 3" % (sTT, sW))
    a("s_lshr_b32 %s, %s, 2" % (sKH, sW))
    a("s_lshl_b32 %s, %s, 2" % (sTAU, sRB))
    a("s_add_u32 %s, %s, %s" % (sTAU, sTAU, sTT))
    a("s_lshr_b32 %s, %s, 1" % (sT, sTAU))
    a("s_lshl_b32 %s, %s, 5" % (sT, sT))
    a("s_and_b32 %s, %s, 1" % (sT2, sTAU))
    a("s_add_u32 %s, %s, %s" % (sT, sT, sT2))
    a("v_lshl_add_u32 v8, v3, 1, %s" % sT)
    a("v_mul_u32_u24 v8, 896, v8")
    a("v_lshl_add_u32 v8, v2, 4, v8")
    a("s_lshl_b32 %s, %s, 1" % (sU, sCB))
    a("s_add_u32 %s, %s, %s" % (sU, sU, sKH))
    a("s_lshl_b32 %s, %s, 6" % (sT3, sU))
    for x in worder[:WOPRE]:
        a(x)
    a.wait_tag("ost")
    a("s_barrier")
    publish(a, "s99")
    stamp(a, "A flag")
    XR = 20
    a("buffer_load_dwordx4 %s, v8, %s, %s offen" % (vr(XR), SX, sT3))
    wc_dma(a, G1[:6], "v16", "g1")
    for x in worder[WOPRE:]:
        a(x)
    a("v_and_b32 v8, 1, v2")
    a("v_lshl_or_b32 v8, v8, 2, v4")
    a("v_lshlrev_b32 v8, 1, v8")
    a("v_lshrrev_b32 v9, 1, v5")
    a("s_lshl_b32 %s, %s, 1" % (sT, sW))
    a("v_add_u32 v9, %s, v9" % sT)
    a("v_xor_b32 v8, v8, v9")
    a("v_lshl_add_u32 v9, v2, 3, v4")
    a("v_lshlrev_b32 v9, 8, v9")
    a("v_lshl_add_u32 v9, v8, 4, v9")
    a("v_and_b32 v8, 1, v5")
    a("v_lshl_add_u32 v17, v8, 3, v9")
    a("v_add_u32 v18, 57344, v17")
    a("v_add_u32 v19, 114688, v17")
    OF, ACC = 32, 64
    for i in range(4):
        a("v_lshlrev_b32 v%d, 16, v%d" % (ACC + 2 * i, XR + i))
        a("v_and_b32 v%d, 0xffff0000, v%d" % (ACC + 2 * i + 1, XR + i))
    a("s_lshl_b32 %s, %s, 4" % (sT2, sTAU))
    a("s_lshl_b32 %s, %s, 3" % (sT3, sKH))
    a("s_add_u32 %s, %s, %s" % (sT2, sT2, sT3))
    a("s_lshl_b32 %s, %s, 10" % (sT2, sT2))
    a("s_add_u32 %s, %s, 4096" % (sT3, sT2))
    a("s_lshl_b32 %s, %s, 11" % (sT, sW))
    a("s_add_u32 %s, %s, %d" % (sT, sT, B_RB))
    a("v_add_u32 v12, %s, v14" % sT)
    a("s_xor_b32 %s, %s, 4" % (sT, sW))
    a("s_lshl_b32 %s, %s, 11" % (sT, sT))
    a("s_add_u32 %s, %s, %d" % (sT, sT, B_RB))
    a("v_add_u32 v13, %s, v14" % sT)
    a("s_mul_i32 s58, %s, 14" % sTAU)
    a("s_add_u32 s58, s58, %s" % sU)
    a("s_lshl_b32 s59, s58, 7")
    a("s_add_u32 s59, s59, %d" % WS_ST)
    a("s_lshl_b32 s58, s58, 10")
    a("s_add_u32 s58, s58, %d" % WS_H)
    a("s_lshl_b32 s60, %s, 7" % sRB)
    a("s_add_u32 s60, s60, %d" % WS_FA)
    a("s_lshr_b32 s61, %s, 1" % sRB)
    a("s_lshl_b32 s61, s61, 7")
    a("s_and_b32 %s, %s, 1" % (sT, sRB))
    a("s_mul_i32 %s, %s, 28" % (sT, sT))
    a("s_add_u32 s61, s61, %s" % sT)
    a("s_lshl_b32 %s, %s, 2" % (sT, sCB))
    a("s_add_u32 s61, s61, %s" % sT)
    a("s_add_u32 s61, s61, %d" % WS_FB)
    a("v_lshlrev_b32 v11, 3, v3")
    a.wait_tag("g1", lg0=True)
    stamp(a, "B pre-poll")
    poll(a, "s60", 0xff, 0)
    stamp(a, "B go")
    for hh in range(8):
        a("buffer_load_dwordx4 %s, v14, %s, %s offen offset:%d%s" % (vr(OF + 4 * hh), SWS, sT2 if hh < 4 else sT3, (hh & 3) * 1024, SC))
    a("s_barrier")
    for x in wc_read(G1, 17):
        a(x)
    for hh in range(8):
        if hh < 7:
            wc_dma(a, G2[hh:hh + 1], "v16", "g2")
        for t in (2, 3, 0, 1):
            a(mfma(ACC + 4 * t, WOF + 16 * hh + 4 * t, OF + 4 * hh, "0" if (hh == 0 and t >= 2) else None))
    a("ds_write_b128 v12, %s" % vr(ACC + 8))
    a("ds_write_b128 v12, %s offset:1024" % vr(ACC + 12))
    a("s_waitcnt lgkmcnt(0)")
    a("s_barrier")
    a("ds_read_b128 %s, v13" % vr(ACC + 8))
    a("ds_read_b128 %s, v13 offset:1024" % vr(ACC + 12))
    a("v_mov_b32 v8, 0")
    a("v_mov_b32 v9, 0")
    a("v_mov_b32 v6, 0")
    a("v_mov_b32 v7, 0")
    a("v_mov_b32 v10, 0x3f803f80")
    for i in range(8):
        a("v_add_f32 v%d, v%d, v%d" % (ACC + i, ACC + i, ACC + 8 + i))
    HP = 24
    for i in range(4):
        a("v_cvt_pk_bf16_f32 v%d, v%d, v%d" % (HP + i, ACC + 2 * i, ACC + 2 * i + 1))
    a("buffer_store_dwordx4 %s, v14, %s, s58 offen%s" % (vr(HP), SWS, SC))
    for i in range(4):
        a("v_dot2c_f32_bf16 v%d, v%d, v10" % (8 if i & 1 else 6, HP + i))
        a("v_dot2c_f32_bf16 v%d, v%d, v%d" % (9 if i & 1 else 7, HP + i, HP + i))
    a("v_add_f32 v8, v8, v6")
    a("v_add_f32 v9, v9, v7")
    xg_reduce_multi(a, "v_add_f32", ["v8", "v9"], ["v6", "v7"])
    a("s_mov_b64 exec, 0xffff")
    a("buffer_store_dwordx2 v[8:9], v11, %s, s59 offen%s" % (SWS, SC), tag="hst")
    a("s_mov_b64 exec, -1")
    stamp(a, "B h stored")


D_RDY = 163836
C_S0 = 116736
WDF = [224, 240, 64, 80, 96, 112, 128]


def emit_group(a, g):
    for (x, tg) in g:
        a(x, tag=tg)


def wd_dma_groups(u, base):
    gs = []
    for i4 in range(4):
        i = 4 * u + i4
        gs.append([("s_add_u32 m0, s63, %d" % (base + i4 * 1024), None),
                   ("s_mov_b32 s65, %d" % ((16 * (i >> 1) + 4 * (i & 1)) * 896), None),
                   ("buffer_load_dwordx4 v17, %s, s65 offen lds" % SWD, ("wd", u))])
    return gs


def wd_reads(u, base):
    out = []
    for t in range(4):
        for hf in range(2):
            out.append("ds_read_b64_tr_b16 %s, v%d offset:%d" % (vr(WDF[u] + 4 * t + 2 * hf, 2), 8 + t, base + hf * 1024))
    return out


def phase_C(a):
    a("; ---------------- B->C ----------------")
    wc_dma(a, G3[:4], "v16", "g3")
    a.wait_tag("hst")
    a("s_barrier")
    publish(a, "s61")
    stamp(a, "B flag")
    wc_dma(a, G3[4:], "v16", "g3")
    for x in wc_read(G2, 17):
        a(x)
    ONES, CSG, CSU = 20, 24, 28
    for i in range(4):
        a("v_mov_b32 v%d, 0x3f803f80" % (ONES + i))
    for u in range(14):
        a(mfma(CSG, WGF + 4 * u, ONES, "0" if u == 0 else None))
    a("s_mul_i32 %s, %s, 114688" % (sT2, sRQ))
    a("s_add_u32 %s, %s, %d" % (sT2, sT2, WS_H))
    a("s_mul_i32 s62, %s, 3584" % sW)
    a("v_add_u32 v12, s62, v14")
    a("s_lshl_b32 %s, %s, 3" % (sT3, sRQ))
    a("s_add_u32 %s, %s, %s" % (sT3, sT3, sW))
    a("s_mul_i32 %s, %s, 1792" % (sT3, sT3))
    a("s_add_u32 %s, %s, %d" % (sT3, sT3, WS_ST))
    for i in range(4):
        a("v_mov_b32 v%d, 0" % (60 + i))
    a("v_and_b32 v8, 1, v2")
    a("v_mul_u32_u24 v8, 57344, v8")
    a("v_lshrrev_b32 v10, 1, v2")
    a("s_and_b32 %s, %s, 1" % (sT, sW))
    a("s_lshl_b32 %s, %s, 1" % (sT, sT))
    a("v_add_u32 v10, %s, v10" % sT)
    a("v_lshl_add_u32 v8, v10, 8, v8")
    a("v_lshl_add_u32 v13, v3, 4, v8")
    a("s_mul_i32 s58, %s, 448" % sRQ)
    a("s_lshl_b32 %s, %s, 2" % (sT, sFS))
    a("s_add_u32 s58, s58, %s" % sT)
    a("s_lshr_b32 %s, %s, 1" % (sT, sW))
    a("s_add_u32 s58, s58, %s" % sT)
    a("s_lshl_b32 s58, s58, 10")
    a("s_add_u32 s58, s58, %d" % WS_HH)
    a("s_mov_b32 s59, 0x%x" % f2u(-LOG2E))
    a("s_lshl_b32 s60, %s, 7" % sRQ)
    a("s_add_u32 s60, s60, %d" % WS_FB)
    a("s_lshl_b32 s61, %s, 8" % sRQ)
    a("s_lshl_b32 %s, %s, 2" % (sT, sFS))
    a("s_add_u32 s61, s61, %s" % sT)
    a("s_add_u32 s61, s61, %d" % WS_FC)
    a("s_lshl_b32 s63, %s, 12" % sW)
    a("s_lshr_b32 %s, %s, 1" % (sT, sRB))
    a("s_lshl_b32 s67, %s, 8" % sT)
    a("s_add_u32 s67, s67, %d" % WS_FC)
    a("s_lshl_b32 s70, %s, 7" % sT)
    a("s_lshl_b32 %s, %s, 3" % (sT, sT))
    a("s_and_b32 s64, %s, 1" % sRB)
    a("s_add_u32 %s, %s, s64" % (sT, sT))
    a("s_add_u32 s70, s70, s64")
    a("s_mul_i32 s70, s70, 896")
    a("s_lshl_b32 s64, %s, 7" % sCB)
    a("s_add_u32 s70, s70, s64")
    a("s_mul_i32 s68, %s, 56" % sT)
    a("s_mul_i32 s64, %s, 7" % sW)
    a("s_add_u32 s68, s68, s64")
    a("s_lshl_b32 s68, s68, 10")
    a("s_add_u32 s68, s68, %d" % WS_HH)
    a("s_and_b32 s64, %s, 6" % sW)
    a("s_add_u32 %s, %s, s64" % (sT, sT))
    a("s_mul_i32 s69, %s, 14" % sT)
    a("s_lshl_b32 s64, %s, 1" % sCB)
    a("s_add_u32 s69, s69, s64")
    a("s_and_b32 s64, %s, 1" % sW)
    a("s_add_u32 s69, s69, s64")
    a("s_lshl_b32 s69, s69, 10")
    a("s_add_u32 s69, s69, %d" % WS_H)
    a("v_and_b32 v6, 1, v2")
    a("v_lshl_add_u32 v6, v6, 2, v4")
    a("v_and_b32 v7, 6, v6")
    a("v_lshrrev_b32 v10, 1, v5")
    a("v_xor_b32 v7, v7, v10")
    a("v_lshrrev_b32 v10, 1, v2")
    a("v_lshl_add_u32 v6, v10, 4, v6")
    a("v_lshlrev_b32 v6, 7, v6")
    a("v_lshl_add_u32 v6, v7, 4, v6")
    a("v_and_b32 v7, 1, v5")
    a("v_lshl_add_u32 v6, v7, 3, v6")
    a("s_add_u32 %s, s63, 65536" % sT)
    a("v_add_u32 v8, %s, v6" % sT)
    for t in range(1, 4):
        a("v_xor_b32 v%d, %d, v8" % (8 + t, 32 * t))
    a("s_waitcnt lgkmcnt(0)")
    stamp(a, "C pre-poll")
    poll(a, "s60", 0x3fff, 0)
    stamp(a, "C go")

    def h_groups(tp):
        tg = ("h", tp)
        gs = []
        for i in range(4):
            g = []
            if i == 0:
                g.append(("s_add_u32 s64, %s, %d" % (sT2, tp * 28672), None))
            g.append(("s_add_u32 m0, s62, %d" % (tp * 28672), None))
            if i == 3:
                g.append(("s_mov_b32 exec_hi, 0", None))
            g.append(("buffer_load_dwordx4 v12, %s, s64 offen offset:%d%s lds" % (SWS, i * 1024, SC), tg))
            if i == 3:
                g.append(("s_mov_b64 exec, -1", None))
            gs.append(g)
        return gs

    a("buffer_load_dwordx4 v[56:59], v14, %s, %s offen%s" % (SWS, sT3, SC))
    a("s_mov_b32 exec_hi, 0xffff")
    a("buffer_load_dwordx4 v[60:63], v14, %s, %s offen offset:1024%s" % (SWS, sT3, SC))
    a("s_mov_b64 exec, -1")
    for g in h_groups(0):
        emit_group(a, g)
    a.wait_tag("g3")
    a("s_barrier")
    for x in wc_read(G3, 17):
        a(x)
    a("v_lshrrev_b32 v6, 3, v1")
    a("v_and_b32 v7, 7, v1")
    a("v_and_b32 v16, 6, v6")
    a("v_xor_b32 v7, v16, v7")
    a("v_and_b32 v16, 3, v6")
    a("v_lshrrev_b32 v6, 2, v6")
    a("v_lshl_add_u32 v16, v6, 3, v16")
    a("s_mul_i32 %s, %s, 224" % (sT, sW))
    a("v_add_u32 v16, %s, v16" % sT)
    a("v_mul_u32_u24 v16, 896, v16")
    a("v_lshl_add_u32 v16, v7, 4, v16")
    a("s_lshl_b32 %s, %s, 7" % (sT, sCB))
    a("v_add_u32 v17, %s, v16" % sT)
    a("v_add_u32 v16, 57344, v14")
    a("v_lshlrev_b32 v19, 4, v3")
    a("v_add_u32 v19, %d, v19" % C_ST)
    a("s_lshl_b32 %s, %s, 8" % (sT, sW))
    a("s_add_u32 %s, %s, %d" % (sT, sT, C_ST))
    a("v_and_b32 v18, 7, v1")
    a("v_lshl_add_u32 v18, v18, 5, %s" % sT)
    for u in range(14):
        a(mfma(CSU, WUF + 4 * u, ONES, "0" if u == 0 else None))
    st = []
    for i in range(4):
        st.append("v_add_f32 v%d, v%d, v%d" % (56 + i, 56 + i, 60 + i))
    for i in range(4):
        st.append("v_add_f32_dpp v%d, v%d, v%d row_ror:8 row_mask:0xf bank_mask:0xf" % (56 + i, 56 + i, 56 + i))
    for step in ("v_permlane32_swap_b32", "v_permlane16_swap_b32"):
        for i in range(4):
            st.append("v_mov_b32 v%d, v%d" % (60 + i, 56 + i))
        for i in range(4):
            st.append("%s v%d, v%d" % (step, 60 + i, 56 + i))
        for i in range(4):
            st.append("v_add_f32 v%d, v%d, v%d" % (56 + i, 56 + i, 60 + i))
    st.append("s_mov_b32 %s, 0x%x" % (sT, f2u(1.0 / 448)))
    st.append("v_mov_b32 v6, 0x%x" % f2u(1e-5))
    for tk in range(2):
        s1, s2, d = 56 + 2 * tk, 57 + 2 * tk, 32 + 4 * tk
        st.append("v_mul_f32 v%d, -%s, v%d" % (d, sT, s1))
        st.append("v_fma_f32 v%d, v%d, %s, v6" % (s2, s2, sT))
        st.append("v_fma_f32 v%d, -v%d, v%d, v%d" % (s2, d, d, s2))
        st.append("v_max_f32 v%d, v%d, v6" % (s2, s2))
        st.append("v_sqrt_f32 v%d, v%d" % (d + 2, s2))
        st.append("v_rsq_f32 v%d, v%d" % (s2, s2))
        st.append("v_mul_f32 v%d, s59, v%d" % (d + 1, s2))
    st.append("ds_write_b128 v18, v[32:35]")
    st.append("ds_write_b128 v18, v[36:39] offset:16")
    for x in st:
        a(x)
    st = []
    AF, NR = 192, 8
    ACCS = [40, 48]
    STS = [32, 36]
    PKD = [56, 60]

    def epi(i):
        g, u_, s, pk = ACCS[i & 1], ACCS[i & 1] + 4, STS[i & 1], PKD[(i >> 1) & 1]
        o = []
        o.append("ds_read_b128 %s, v19 offset:%d" % (vr(s), i * 256))
        o.append(None)
        o.append(None)
        for rr in range(4):
            o.append("v_fmac_f32 v%d, v%d, v%d" % (g + rr, s, CSG + rr))
        for rr in range(4):
            o.append("v_mul_f32 v%d, v%d, v%d" % (g + rr, s + 1, g + rr))
        for rr in range(4):
            o.append("v_exp_f32 v%d, v%d" % (g + rr, g + rr))
        for rr in range(4):
            o.append("v_fmac_f32 v%d, v%d, v%d" % (u_ + rr, s, CSU + rr))
        for rr in range(4):
            o.append("v_fma_f32 v%d, v%d, v%d, v%d" % (g + rr, g + rr, s + 2, s + 2))
        for rr in range(4):
            o.append("v_rcp_f32 v%d, v%d" % (g + rr, g + rr))
        for rr in range(4):
            o.append("v_mul_f32 v%d, v%d, v%d" % (g + rr, g + rr, u_ + rr))
        o.append("v_cvt_pk_bf16_f32 v%d, v%d, v%d" % (pk + 2 * (i & 1), g, g + 1))
        o.append("v_cvt_pk_bf16_f32 v%d, v%d, v%d" % (pk + 2 * (i & 1) + 1, g + 2, g + 3))
        if i & 1:
            o.append("v_permlane16_swap_b32 v%d, v%d" % (pk, pk + 2))
            o.append("v_permlane16_swap_b32 v%d, v%d" % (pk + 1, pk + 3))
            o.append(("buffer_store_dwordx4 %s, v13, %s, s58 offen%s" % (vr(pk), SWS, SC), ("hh", i >> 1)))
            o.append("s_add_u32 s58, s58, %d" % (2 * 57344))
        return o

    def emit(x):
        if x is None:
            return
        if isinstance(x, tuple):
            a(x[0], tag=x[1])
        else:
            a(x)

    def pub_stage(tp):
        publish(a, "s61")
        a("s_add_u32 s61, s61, 64")

    S0o = C_S0 - 65536
    side = {}
    prio = {}

    def at(k, f):
        side.setdefault(k, []).append(f)

    def spread(k0, stride, groups):
        for n, g in enumerate(groups):
            at(k0 + n * stride, (lambda g=g: emit_group(a, g)))

    def rd_job(k, u, base):
        def f():
            a.wait_tag(("wd", u))
            for x in wd_reads(u, base):
                a(x)
        at(k, f)

    spread(0, 1, h_groups(1))
    spread(5, 2, h_groups(2) + h_groups(3))
    spread(22, 1, wd_dma_groups(0, C_S0))
    rd_job(38, 0, S0o)
    spread(44, 1, wd_dma_groups(1, C_S0))
    spread(52, 2, wd_dma_groups(4, 0))
    rd_job(62, 1, S0o)
    spread(68, 1, wd_dma_groups(2, C_S0))
    spread(80, 2, wd_dma_groups(5, 32768))
    rd_job(88, 2, S0o)
    spread(94, 2, wd_dma_groups(3, C_S0))
    at(102, lambda: lead_issue(a, "s67"))

    if "nowd" in OPT:
        for k in list(side):
            if k >= 18:
                del side[k]
    if "nowdrd" in OPT:
        for k in (38, 62, 88):
            del side[k]

    def bar(tags, lg0=False, pub=None):
        def f():
            for tg in tags:
                a.wait_tag(tg, lg0=lg0)
            a("s_barrier")
            if pub is not None:
                pub_stage(pub)
        return f

    barr = {22: bar([("h", 1)]), 50: bar([("h", 3), ("hh", 0)], pub=0), 78: bar([("hh", 1)], pub=1)}
    if "noprio" not in OPT:
        for (k0, k1) in ((0, 22), (22, 50), (50, 78), (78, 112)):
            for lv in range(4):
                kk = k0 + (k1 - k0) * lv // 4
                prio[kk] = 3 - lv

    if "nostw" in OPT:
        barr = {14: bar([("h", 1)], lg0=True), 50: bar([("h", 3)], pub=0), 78: bar([], pub=1)}
    if "cst" in OPT:
        for kk in (14, 28, 42, 56, 70, 84, 98):
            at(kk - 1, (lambda kk=kk: stamp(a, "C k%d" % kk)))
    a.wait_tag(("h", 0), lg0=True)
    a("s_barrier")
    stamp(a, "C h0 landed")
    allrd = []
    for k in range(112):
        off = k * 1024
        allrd.append("ds_read_b128 %s, v%d offset:%d" % (vr(AF + 4 * (k % NR)), 14 if off < 57344 else 16, off % 57344))
    nxt = 0
    LA = NR - 2
    for i in range(8):
        acc = ACCS[i & 1]
        ep = epi(i - 1) if i else st
        for u in range(14):
            k = i * 14 + u
            if k in barr:
                barr[k]()
            if k in prio:
                a("s_setprio %d" % prio[k])
            while nxt < len(allrd) and nxt <= k + LA - 1:
                a(allrd[nxt])
                nxt += 1
            f = AF + 4 * (k % NR)
            z = "0" if u == 0 else None
            npop = 5 if i == 0 else 3
            start = 3 if i == 0 else 0
            if "m32" in OPT:
                ac = 224 + 16 * ((i >> 1) & 1)
                a("v_mfma_f32_32x32x16_bf16 %s, %s, %s, %s" % (vr(ac, 16), vr(WGF + 4 * (u + 14 * (i & 1))), vr(f), "0" if k % 28 == 0 else vr(ac, 16)))
            else:
                a(mfma(acc, WGF + 4 * u, f, z))
            if u >= start:
                for _ in range(npop // 2):
                    if ep:
                        emit(ep.pop(0))
            if "m32" not in OPT:
                a(mfma(acc + 4, WUF + 4 * u, f, z))
            if u >= start:
                for _ in range(npop - npop // 2):
                    if ep:
                        emit(ep.pop(0))
            for fn in side.get(k, []):
                fn()
        for x in ep:
            emit(x)
    stamp(a, "C mfma done")
    return epi, emit, pub_stage


def lead_issue(a, soff):
    L = a.label("liss")
    raw(a, "s_cmp_lg_u32 %s, 0" % sW)
    raw(a, "s_cbranch_scc1 %s" % L)
    raw(a, "v_lshlrev_b32 v6, 2, v1")
    raw(a, "buffer_load_dword v7, v6, %s, %s offen sc1" % (SWS, soff))
    raw(a, "%s:" % L)
    a.vm.append((set(), "lead"))
    a.lead_phantom = True


def lead_check(a, soff, mask_lo, mask_hi, level=None, vaddr=None):
    L, Lp, Lc, Ld = a.label("lskip"), a.label("lpoll"), a.label("lchk"), a.label("ldone")
    n = a._after(a.vm, lambda e: e[1] == "lead")
    a.vm = [e for e in a.vm if e[1] != "lead"]
    raw(a, "s_cmp_lg_u32 %s, 0" % sW)
    raw(a, "s_cbranch_scc1 %s" % L)
    raw(a, "s_mov_b32 s3, 20000")
    if n is not None:
        raw(a, "s_waitcnt vmcnt(%d)" % min(n, 63))
    raw(a, "s_branch %s" % Lc)
    raw(a, "%s:" % Lp)
    raw(a, "buffer_load_dword v7, v6, %s, %s offen sc1" % (SWS, soff))
    raw(a, "s_waitcnt vmcnt(0)")
    raw(a, "%s:" % Lc)
    raw(a, "v_cmp_ne_u32 vcc, %s, v7" % sNONCE)
    raw(a, "s_sub_u32 s3, s3, 1")
    raw(a, "s_cbranch_scc1 %s" % Ld)
    raw(a, "s_nop 0")
    raw(a, "s_and_b32 vcc_lo, vcc_lo, 0x%x" % mask_lo)
    raw(a, "s_and_b32 vcc_hi, vcc_hi, 0x%x" % mask_hi)
    raw(a, "s_cmp_lg_u64 vcc, 0")
    raw(a, "s_cbranch_scc1 %s" % Lp)
    raw(a, "%s:" % Ld)
    if level is not None:
        raw(a, "v_mov_b32 v7, %d" % level)
        raw(a, "ds_write_b32 %s, v7" % vaddr)
    raw(a, "%s:" % L)


def lds_wait(a, level):
    Lp, Ld = a.label("wl"), a.label("wd")
    raw(a, "s_mov_b32 s3, 2000000")
    raw(a, "%s:" % Lp)
    raw(a, "ds_read_b32 v31, v30")
    raw(a, "s_waitcnt lgkmcnt(0)")
    raw(a, "v_readfirstlane_b32 s66, v31")
    raw(a, "s_sub_u32 s3, s3, 1")
    raw(a, "s_cbranch_scc1 %s" % Ld)
    raw(a, "s_nop 0")
    raw(a, "s_cmp_lt_u32 s66, %d" % level)
    raw(a, "s_cbranch_scc1 %s" % Lp)
    raw(a, "%s:" % Ld)


D_HR = 98304


def phase_D(a, epi, emit, pub_stage):
    a("; ---------------- C->D ----------------")
    ep = epi(7)
    emit(ep.pop(0))
    a.wait_tag(("hh", 2), lg0=True)
    lead_check(a, "s67", 0x3fff3fff, 0)
    a("s_barrier")
    pub_stage(2)
    for x in ep:
        emit(x)
    stamp(a, "C last store")
    a("s_setprio 0")
    ACCS, AF, NR = [144, 160], 176, 8
    DLA = 5
    FT, FS, OUTR = 32, 48, 50

    def hh_load(k):
        rt, i = k // 7, k % 7
        a("buffer_load_dwordx4 %s, v%d, %s, s68 offen offset:%d%s" % (vr(AF + 4 * (k % NR)), 14 if i < 4 else 16, SWS, (i & 3) * 1024, SC))
        if i == 6:
            a("s_add_u32 s68, s68, %d" % (2 * 57344))

    a("v_add_u32 v16, 4096, v14")
    for k in range(2):
        hh_load(k)
    for g in wd_dma_groups(6, 65536):
        emit_group(a, g)
    a("s_add_u32 m0, %s, %d" % (sW1024, D_HR))
    a("buffer_load_dwordx4 v14, %s, s69 offen%s lds" % (SWS, SC), tag="hr")
    a.wait_tag(("wd", 3))
    for x in wd_reads(3, C_S0 - 65536):
        a(x)
    for t in range(4):
        a("v_subrev_u32 v%d, 65536, v%d" % (8 + t, 8 + t))
    for x in wd_reads(4, 0) + wd_reads(5, 32768):
        a(x)
    for t in range(4):
        a("v_add_u32 v%d, 65536, v%d" % (8 + t, 8 + t))
    a("v_lshrrev_b32 v18, 5, v1")
    a("s_lshl_b32 %s, %s, 1" % (sT, sW))
    a("v_add_u32 v18, %s, v18" % sT)
    a("v_and_b32 v19, 31, v1")
    a("v_lshrrev_b32 v20, 2, v19")
    a("v_lshlrev_b32 v20, 8, v20")
    a("v_lshl_add_u32 v20, v18, 4, v20")
    a("v_lshl_add_u32 v20, v5, 2, v20")
    a("v_add_u32 v20, %d, v20" % D_HR)
    a("v_mul_u32_u24 v21, 1792, v18")
    a("v_lshl_add_u32 v21, v19, 2, v21")
    a("v_lshrrev_b32 v22, 1, v19")
    a("v_add_u32 v23, v22, v18")
    a("v_and_b32 v23, 15, v23")
    a("v_lshlrev_b32 v23, 4, v23")
    a("v_lshl_add_u32 v22, v22, 8, v23")
    a("v_and_b32 v23, 1, v19")
    a("v_lshl_add_u32 v22, v23, 3, v22")
    a("v_add_u32 v23, v2, v3")
    a("v_lshl_add_u32 v28, v2, 8, s63")
    for t in range(4):
        a("v_add_u32 v29, %d, v23" % (4 * t))
        a("v_and_b32 v29, 15, v29")
        a("v_lshl_add_u32 v%d, v29, 4, v28" % (24 + t))
    a.wait_tag(("hh", 3), lg0=True)
    a("s_barrier")
    pub_stage(3)
    stamp(a, "C flag")
    for k in range(2, DLA):
        hh_load(k)

    def writes(rt):
        return ["ds_write_b128 v%d, %s offset:%d" % (24 + t, vr(ACCS[rt & 1] + 4 * t), (rt & 1) * 32768 + t * 1024) for t in range(4)]

    def fin(rt):
        o = ["ds_read_b32 v%d, v20 offset:%d" % (FS + 1, rt * 2048)]
        for p in range(8):
            o.append("ds_read_b64 %s, v22 offset:%d" % (vr(FT + 2 * p, 2), (rt & 1) * 32768 + p * 4096))
        o.append("v_lshlrev_b32 v%d, 16, v%d" % (FS, FS + 1))
        o.append("v_and_b32 v%d, 0xffff0000, v%d" % (FS + 1, FS + 1))
        for (d, x) in ((0, 2), (4, 6), (8, 10), (12, 14), (0, 4), (8, 12), (0, 8)):
            o.append("v_add_f32 v%d, v%d, v%d" % (FT + d, FT + d, FT + x))
            o.append("v_add_f32 v%d, v%d, v%d" % (FT + d + 1, FT + d + 1, FT + x + 1))
        o.append("v_add_f32 v%d, v%d, v%d" % (FS, FS, FT))
        o.append("v_add_f32 v%d, v%d, v%d" % (FS + 1, FS + 1, FT + 1))
        o.append("v_cvt_pk_bf16_f32 v%d, v%d, v%d" % (OUTR + rt, FS, FS + 1))
        o.append("buffer_store_dword v%d, v21, %s, s70 offen%s" % (OUTR + rt, SOUT, OUTSC))
        o.append("s_add_u32 s70, s70, %d" % (32 * 896))
        return o

    for rt in range(4):
        wr = writes(rt - 1) if rt else []
        fn = fin(rt - 1) if rt else []
        for i in range(7):
            k = rt * 7 + i
            if k == 3:
                a.wait_tag(("wd", 6))
                for x in wd_reads(6, 0):
                    a(x)
            if k in (5, 12):
                lead_issue(a, "s67")
            if rt and i == 2:
                if rt == 1:
                    lead_check(a, "s67", 0, 0x3fff)
                if rt == 2:
                    lead_check(a, "s67", 0, 0x3fff0000)
                a("s_waitcnt lgkmcnt(0)")
                a("s_barrier")
            if k + DLA < 28:
                hh_load(k + DLA)
            for t in range(4):
                a(mfma(ACCS[rt & 1] + 4 * t, WDF[i] + 4 * t, AF + 4 * (k % NR), "0" if i == 0 else None))
                if i == 1 and wr:
                    a(wr.pop(0))
                if i >= 2:
                    for _ in range(2):
                        if fn:
                            a(fn.pop(0))
        for x in fn:
            a(x)
    stamp(a, "D mfma done")
    for x in writes(3):
        a(x)
    a("s_waitcnt lgkmcnt(0)")
    a("s_barrier")
    for x in fin(3):
        a(x)
    stamp(a, "D out stored")


HEADER = open("cdna_kernels/%s.s.ref" % NAME).read().split("; Override launch")[0]


def build():
    n = NAME + "_kernel"
    out = HEADER
    out += "; @launch grid=(256,1,1) block=(512,1,1) lds=163840\n"
    out += '.amdgcn_target "amdgcn-amd-amdhsa--gfx950"\n.text\n'
    a = Asm()
    prologue(a)
    phase_A(a)
    phase_B(a)
    phase_D(a, *phase_C(a))
    a("Lfin:")
    stamp_flush(a)
    a("Lend:")
    a("s_endpgm")
    a("Lcode_end:")
    body = a.render()
    out += ".globl %s\n.p2align 8\n.type %s,@function\n%s:\nLcode_begin:\n%s" % (n, n, n, body)

    out += '.section .rodata,"a"\n.p2align 6\n'
    out += """.amdhsa_kernel %s
  .amdhsa_next_free_vgpr 256
  .amdhsa_next_free_sgpr 102
  .amdhsa_accum_offset 256
  .amdhsa_group_segment_fixed_size 0
  .amdhsa_kernarg_size 80
  .amdhsa_user_sgpr_count 2
  .amdhsa_user_sgpr_kernarg_segment_ptr 1
  .amdhsa_system_sgpr_workgroup_id_x 1
.end_amdhsa_kernel
""" % n
    return out


if __name__ == "__main__":
    dst = sys.argv[1] if len(sys.argv) > 1 else "cdna_kernels/%s.s" % NAME
    STAMPS = "stamps" in sys.argv
    OPT = set(sys.argv[2:])
    for o in sys.argv[2:]:
        if "=" in o:
            globals()[o.split("=")[0]] = int(o.split("=")[1])
    txt = build()
    import subprocess, re
    open("_sz.s", "w").write(txt.replace("CODE_BYTES", "0x12345"))
    subprocess.check_call(["clang", "-x", "assembler", "-target", "amdgcn-amd-amdhsa", "-mcpu=gfx950", "-c", "_sz.s", "-o", "_sz.o"])
    sym = subprocess.check_output(["llvm-objdump", "-t", "_sz.o"]).decode()
    end = int(re.search(r"([0-9a-f]+) .*Lcode_end", sym).group(1), 16)
    print("code bytes", end)
    open(dst, "w").write(txt.replace("CODE_BYTES", str((end - 64) & ~3)))
    print("wrote", dst)
```

```python
import sys, struct
sys.path.insert(0, "dev")
from asmlib import Asm, Ins

NAME = "sequential_preLN__sliding_local_dilated__glu_gated_glu__prompt"

WS_O = 0
WS_H = 2 << 20
WS_ST = 4 << 20
WS_HH = 8 << 20
WS_FA = 16 << 20
WS_FB = WS_FA + 8192
WS_FC = WS_FA + 16384
WS_TS = 20 << 20
WS_SIZE = 32 << 20

SX, SWQKV, SWO, SWG, SWU, SWD, SOUT, SWS, SDBG = [("s[%d:%d]" % (b, b + 3)) for b in range(8, 44, 4)]
sW, sXC, sJ, sNONCE = "s44", "s45", "s46", "s47"
sT, sT2, sT3 = "s55", "s56", "s57"
sW1024 = "s53"
sRB, sCB, sRQ, sFS = "s84", "s85", "s86", "s87"
SC = " sc1"
OUTSC = "" if "outplain" in sys.argv else " sc1"
LOG2E = 1.4426950408889634
STAMPS = False
OPT = set()
NSTAMP = [0]
ASPACE = 3
WOPRE = 28
DPRE = 4
DLAV = 5
DBI = 3
HSLEEP = 4
TCH = 3
TCU = 7
TCD = 7
ROTM = 1


def f2u(x):
    return struct.unpack("<I", struct.pack("<f", x))[0]


def vr(b, n=4):
    return "v[%d:%d]" % (b, b + n - 1)


def mfma(acc, A, B, C=None):
    return "v_mfma_f32_16x16x32_bf16 %s, %s, %s, %s" % (vr(acc), vr(A), vr(B), vr(acc) if C is None else C)


def raw(a, text):
    for line in text.split("\n"):
        line = line.strip()
        if not line:
            continue
        if line.endswith(":"):
            a.items.append(("l", line))
        else:
            a.items.append(("i", Ins(line)))


def stamp(a, name):
    if STAMPS:
        i = NSTAMP[0]
        NSTAMP[0] += 1
        a("; STAMP %d %s" % (i, name))
        a("s_memrealtime s[100:101]")
        a("s_memtime s[72:73]")
        a("s_waitcnt lgkmcnt(0)")
        a("v_writelane_b32 v15, s100, %d" % i)
        a("v_writelane_b32 v15, s72, %d" % (32 + i))


def stamp_flush(a):
    if STAMPS:
        a("s_lshl_b32 s3, s2, 3")
        a("s_add_u32 s3, s3, %s" % sW)
        a("s_lshl_b32 s3, s3, 8")
        a("s_add_u32 s3, s3, %d" % WS_TS)
        a("v_lshlrev_b32 v7, 2, v1")
        a("buffer_store_dword v15, v7, %s, s3 offen" % SWS)
        if "dbgout" in OPT:
            a("s_cmp_lg_u32 s2, 100")
            a("s_cbranch_scc1 Lend")
            a("s_cmp_lg_u32 %s, 3" % sW)
            a("s_cbranch_scc1 Lend")
            sel = [0, 2, 3, 5, 6, 8, 9, 10, 12, 13, 14, 16, 18, 19, 20]
            a("v_mov_b32 v7, 0")
            for i, st in enumerate(sel):
                a("v_readlane_b32 s3, v15, %d" % st)
                a("s_sub_u32 s3, s3, %s" % sNONCE)
                a("v_mov_b32 v6, s3")
                a("buffer_store_dword v6, v7, %s, 0 offen offset:%d" % (SDBG, 4 + 4 * i))


def xg_reduce_multi(a, op, xs, ts):
    for step in ("v_permlane32_swap_b32", "v_permlane16_swap_b32"):
        for x, t in zip(xs, ts):
            a("v_mov_b32 %s, %s" % (t, x))
        for x, t in zip(xs, ts):
            a("%s %s, %s" % (step, t, x))
        for x, t in zip(xs, ts):
            a("%s %s, %s, %s" % (op, x, x, t))


def publish(a, soff):
    L = a.label("pub")
    raw(a, "s_cmp_lg_u32 %s, 0" % sW)
    raw(a, "s_cbranch_scc1 %s" % L)
    raw(a, "s_mov_b64 exec, 1")
    raw(a, "v_mov_b32 v6, %s" % sNONCE)
    raw(a, "v_mov_b32 v7, 0")
    raw(a, "buffer_store_dword v6, v7, %s, %s offen sc1" % (SWS, soff))
    raw(a, "s_mov_b64 exec, -1")
    raw(a, "%s:" % L)


def poll(a, soff, mask_lo, mask_hi, sleep=0):
    L, Lp, Ld = a.label("skip"), a.label("poll"), a.label("done")
    raw(a, "s_cmp_lg_u32 %s, 0" % sW)
    raw(a, "s_cbranch_scc1 %s" % L)
    raw(a, "v_lshlrev_b32 v7, 2, v1")
    raw(a, "s_mov_b32 exec_lo, 0x%x" % mask_lo)
    raw(a, "s_mov_b32 exec_hi, 0x%x" % mask_hi)
    raw(a, "s_mov_b32 s3, 400000")
    raw(a, "%s:" % Lp)
    if sleep:
        raw(a, "s_sleep %d" % sleep)
    raw(a, "buffer_load_dword v6, v7, %s, %s offen sc1" % (SWS, soff))
    raw(a, "s_waitcnt vmcnt(0)")
    raw(a, "v_cmp_ne_u32 vcc, %s, v6" % sNONCE)
    raw(a, "s_sub_u32 s3, s3, 1")
    raw(a, "s_cbranch_scc1 %s" % Ld)
    raw(a, "s_nop 1")
    raw(a, "s_cmp_lg_u64 vcc, 0")
    raw(a, "s_cbranch_scc1 %s" % Lp)
    raw(a, "%s:" % Ld)
    raw(a, "s_mov_b64 exec, -1")
    raw(a, "%s:" % L)
    a("s_barrier")


def prologue(a):
    a("s_load_dwordx16 s[64:79], s[0:1], 0")
    a("s_load_dwordx4 s[80:83], s[0:1], 64")
    a("s_memrealtime s[4:5]")
    a("s_cmp_ge_u32 s2, 256")
    a("s_cbranch_scc1 Lend")
    a("s_getpc_b64 s[6:7]")
    a("v_and_b32 v1, 63, v0")
    a("v_lshrrev_b32 v6, 6, v0")
    a("v_lshrrev_b32 v2, 4, v1")
    a("v_readfirstlane_b32 %s, v6" % sW)
    a("v_and_b32 v3, 15, v0")
    a("v_bfe_u32 v4, v0, 2, 2")
    a("v_and_b32 v5, 3, v0")
    if STAMPS:
        a("v_mov_b32 v15, 0")
    if "badmap" in OPT:
        a("s_lshr_b32 %s, s2, 5" % sXC)
        a("s_and_b32 %s, s2, 31" % sJ)
    else:
        a("s_and_b32 %s, s2, 7" % sXC)
        a("s_lshr_b32 %s, s2, 3" % sJ)
    a("v_lshlrev_b32 v6, 7, v0")
    a("v_min_u32 v6, CODE_BYTES, v6")
    a("s_cmp_gt_u32 %s, 3" % sW)
    a("s_cbranch_scc1 Lnopf")
    raw(a, "global_load_dword v7, v6, s[6:7]")
    a("Lnopf:")
    sizes = {8: 2048 * 896, 12: 448 * 2688, 16: 448 * 896, 20: 448 * 3584, 24: 448 * 3584,
             28: 1792 * 896, 32: 2048 * 896, 36: WS_SIZE, 40: 256}
    for b, sz in sizes.items():
        a("s_mov_b32 s%d, %d" % (b + 2, sz))
        a("s_mov_b32 s%d, 0x00020000" % (b + 3))
    a("s_lshl_b32 %s, %s, 10" % (sW1024, sW))


def prologue2(a):
    a("s_waitcnt lgkmcnt(0)")
    src = {8: 64, 12: 66, 16: 68, 20: 72, 24: 74, 28: 76, 32: 78, 36: 82, 40: 80}
    for b, s in src.items():
        a("s_mov_b64 s[%d:%d], s[%d:%d]" % (b, b + 1, s, s + 1))


def nonce_publish(a):
    a("s_or_b32 s3, s2, %s" % sW)
    a("s_cmp_lg_u32 s3, 0")
    a("s_cbranch_scc1 Lnononce")
    raw(a, "s_or_b32 s3, s4, 1")
    if any(o.startswith("thr") for o in OPT):
        raw(a, "s_getreg_b32 s5, hwreg(HW_REG_XCC_ID)")
        raw(a, "s_and_b32 s5, s5, 7")
        raw(a, "s_andn2_b32 s3, s4, 15")
        raw(a, "s_or_b32 s3, s3, s5")
        raw(a, "s_or_b32 s3, s3, 8")
    raw(a, "v_mov_b32 v8, s3")
    raw(a, "v_mov_b32 v9, 0")
    raw(a, "s_mov_b64 exec, 1")
    raw(a, "buffer_store_dword v8, v9, %s, 0 offen sc1" % SDBG)
    raw(a, "s_mov_b64 exec, -1")
    a("Lnononce:")


def nonce_fetch(a, vN):
    L, Lp = a.label("nskip"), a.label("npoll")
    a("v_readfirstlane_b32 %s, %s" % (sNONCE, vN))
    raw(a, "s_nop 1")
    raw(a, "s_cmp_lg_u32 %s, 0" % sNONCE)
    raw(a, "s_cbranch_scc1 %s" % L)
    raw(a, "s_mov_b32 s3, 400000")
    raw(a, "v_mov_b32 v7, 0")
    raw(a, "%s:" % Lp)
    raw(a, "buffer_load_dword v6, v7, %s, 0 offen sc1" % SDBG)
    raw(a, "s_waitcnt vmcnt(0)")
    raw(a, "v_readfirstlane_b32 %s, v6" % sNONCE)
    raw(a, "s_sub_u32 s3, s3, 1")
    raw(a, "s_cbranch_scc1 %s" % L)
    raw(a, "s_nop 1")
    raw(a, "s_cmp_eq_u32 %s, 0" % sNONCE)
    raw(a, "s_cbranch_scc1 %s" % Lp)
    raw(a, "%s:" % L)
    raw(a, "s_nop 3")


def touch(a, jobs):
    Lend = a.label("tend")
    for (w, srd, n) in jobs:
        L = a.label("tn")
        raw(a, "s_cmp_lg_u32 %s, %d" % (sW, w))
        raw(a, "s_cbranch_scc1 %s" % L)
        raw(a, "s_mul_i32 s3, s2, %d" % (n * 128))
        raw(a, "v_min_u32 v6, %d, v1" % (n - 1))
        raw(a, "v_lshlrev_b32 v6, 7, v6")
        raw(a, "buffer_load_dword v7, v6, %s, s3 offen" % srd)
        raw(a, "s_branch %s" % Lend)
        raw(a, "%s:" % L)
    raw(a, "%s:" % Lend)


A_SLOT = 34816
A_XOFF = 24576
A_EX = 2 * A_SLOT
A_ST = 4 * A_SLOT
R0, R1, R2 = 0, 57344, 139264
B_RB = R2
C_ST = 149504

vWO_DMA, vWC_DMA, vWC_TR = "v176", "v177", 178
WGF, WUF = 80, 136
WOF = 128


def roles_BCD(a):
    a("s_mul_i32 %s, %s, 37" % (sRB, sJ))
    a("s_lshr_b32 %s, %s, 8" % (sRB, sRB))
    a("s_mul_i32 %s, %s, 7" % (sCB, sRB))
    a("s_sub_u32 %s, %s, %s" % (sCB, sJ, sCB))
    a("s_lshr_b32 %s, %s, 1" % (sT, sXC))
    a("s_lshl_b32 %s, %s, 2" % (sT, sT))
    a("s_add_u32 %s, %s, %s" % (sRQ, sRB, sT))
    a("s_and_b32 %s, %s, 1" % (sT, sXC))
    a("s_mul_i32 %s, %s, 7" % (sT, sT))
    a("s_add_u32 %s, %s, %s" % (sFS, sCB, sT))
    a("s_lshl_b32 %s, %s, 2" % (sT, sXC))
    a("s_add_u32 %s, %s, %s" % (sRB, sRB, sT))


def wo_dma(a, i0, i1, vaddr):
    for i in range(i0, i1):
        a("s_add_u32 m0, %s, %d" % (sW1024, R0 + i * 8192))
        a("s_mov_b32 %s, %d" % (sT, i * 64 * 896))
        a("buffer_load_dwordx4 %s, %s, %s offen lds" % (vaddr, SWO, sT), tag="wo")


def wc_dma(a, slabs, vaddr, tag):
    for (s, base) in slabs:
        a("s_add_u32 m0, %s, %d" % (sW1024, base))
        a("s_mov_b32 %s, %d" % (sT, (s % 14) * 114688))
        a("buffer_load_dwordx4 %s, %s, %s offen lds" % (vaddr, SWG if s < 14 else SWU, sT), tag=tag)


def wc_read(slabs, vtr):
    out = []
    for (s, base) in slabs:
        for hf in range(2):
            out.append("ds_read_b64_tr_b16 %s, v%d offset:%d" % (vr(WGF + 4 * s + 2 * hf, 2), vtr + base // 57344, base % 57344 + hf * 1024))
    return out


A_NM = A_ST
A_RHO = A_ST + 384


def phase_A(a):
    sTB, sHP, sT0, sTI, sHD = "s48", "s49", "s50", "s51", "s52"
    a("; ---------------- phase A ----------------")
    a("s_mul_i32 %s, %s, 37" % (sT, sJ))
    a("s_lshr_b32 %s, %s, 8" % (sT, sT))
    a("s_mul_i32 %s, %s, 7" % (sT2, sT))
    a("s_sub_u32 %s, %s, %s" % (sT2, sJ, sT2))
    a("s_add_u32 %s, %s, 1" % (sHP, sT2))
    a("s_cmp_lt_u32 %s, 28" % sJ)
    a("s_cselect_b32 %s, %s, 0" % (sHP, sHP))
    a("s_cselect_b32 %s, %s, %s" % (sT, sT, sT2))
    a("s_lshl_b32 %s, %s, 2" % (sTB, sXC))
    a("s_add_u32 %s, %s, %s" % (sTB, sTB, sT))
    a("s_lshl_b32 %s, %s, 6" % (sT0, sTB))
    a("s_and_b32 %s, %s, 3" % (sTI, sW))
    a("s_lshr_b32 %s, %s, 2" % (sHD, sW))
    a("v_lshrrev_b32 v12, 3, v1")
    a("v_and_b32 v13, 7, v1")
    a("v_lshlrev_b32 v14, 4, v1")
    ONES = 20
    BP, BC = 76, 80

    def slot(ch):
        return (ch + 1) % 4

    def common_setup(a):
        a("v_lshlrev_b32 v8, 2, v2")
        a("v_sub_u32 v9, v3, v8")
        a("s_lshl_b32 %s, %s, 2" % (sT, sTB))
        a("s_add_u32 %s, %s, %s" % (sT, sT, sTI))
        a("s_cmp_lt_u32 %s, 2" % sT)
        a("s_cselect_b32 %s, 0x10000, 0" % sT2)
        a("v_mov_b32 v11, 0x%x" % f2u(-1e30))
        for rr in range(4):
            a("v_subrev_u32 v10, %d, v9" % rr)
            a("v_cmp_gt_u32 vcc, 8, v10")
            a("v_cndmask_b32 v%d, v11, 0, vcc" % (BC + rr))
            a("v_add_u32 v10, 16, v10")
            a("v_add_u32 v10, %s, v10" % sT2)
            a("v_cmp_gt_u32 vcc, 8, v10")
            a("v_cndmask_b32 v%d, v11, 0, vcc" % (BP + rr))
        a("v_cmp_gt_u32 s[94:95], 3, v2")
        a("s_mul_i32 %s, %s, 3072" % (sT2, sHD))
        a("s_add_u32 %s, %s, %d" % (sT2, sT2, A_EX))
        a("s_mul_i32 %s, %s, 6144" % (sT, sTI))
        a("s_add_u32 %s, %s, %s" % (sT, sT, sT2))
        a("v_lshl_add_u32 v32, v1, 3, %s" % sT)
        a("v_lshl_add_u32 v9, v2, 2, v4")
        a("v_lshl_add_u32 v10, v5, 4, v9")
        a("v_lshl_add_u32 v33, v10, 3, %s" % sT)
        a("s_sub_u32 %s, %s, 12288" % (sT, sT))
        a("s_add_u32 %s, %s, %d" % (sT2, sT2, 4 * 6144))
        a("s_lshl_b32 s97, %s, 3" % sTI)
        a("s_lshl_b32 %s, %s, 6" % (sT3, sTI))
        a("s_add_u32 %s, %s, %d" % (sT3, sT3, A_RHO))
        a("v_lshl_add_u32 v36, v3, 2, %s" % sT3)
        a("v_lshl_add_u32 v37, v2, 4, %s" % sT3)
        a("s_sub_u32 %s, %s, 128" % (sT3, sT3))
        a("s_cmp_lt_u32 %s, 2" % sTI)
        a("s_cselect_b32 s96, 7, 15")
        a("s_cselect_b32 s97, s97, 0")
        a("s_cselect_b32 %s, %s, %s" % (sT, sT2, sT))
        a("s_cselect_b32 %s, %d, %s" % (sT3, A_RHO + 256, sT3))
        a("v_and_b32 v9, s96, v9")
        a("v_add_u32 v9, s97, v9")
        a("v_lshl_add_u32 v10, v5, 4, v9")
        a("v_lshl_add_u32 v34, v10, 3, %s" % sT)
        a("v_and_b32 v9, s96, v8")
        a("v_add_u32 v9, s97, v9")
        a("v_lshl_add_u32 v38, v9, 2, %s" % sT3)
        a("v_and_b32 v9, s96, v3")
        a("v_add_u32 v9, s97, v9")
        a("v_lshl_add_u32 v10, v2, 4, v9")
        a("v_lshl_add_u32 v35, v10, 3, %s" % sT)
        a("s_lshl_b32 %s, %s, 2" % (sT, sTB))
        a("s_add_u32 %s, %s, %s" % (sT, sT, sTI))
        a("s_lshl_b32 %s, %s, 4" % (sT, sT))
        a("s_lshl_b32 %s, %s, 1" % (sT2, sHP))
        a("s_add_u32 %s, %s, %s" % (sT, sT, sT2))
        a("s_add_u32 %s, %s, %s" % (sT, sT, sHD))
        a("s_lshl_b32 s98, %s, 10" % sT)
        a("s_lshl_b32 %s, %s, 7" % (sT, sTB))
        a("s_lshl_b32 %s, %s, 2" % (sT2, sHP))
        a("s_add_u32 %s, %s, %s" % (sT, sT, sT2))
        a("s_add_u32 s99, %s, %d" % (sT, WS_FA))
        roles_BCD(a)
        a("s_bfe_u32 %s, %s, 0x10001" % (sT, sW))
        a("s_lshl_b32 %s, %s, 3" % (sT, sT))
        a("v_lshl_or_b32 v8, v2, 1, %s" % sT)
        a("v_xor_b32 v8, v8, v3")
        a("s_lshl_b32 %s, %s, 2" % (sT, sW))
        a("v_add_u32 v9, %s, v2" % sT)
        a("v_mul_u32_u24 v9, 3584, v9")
        a("v_lshl_add_u32 v9, v8, 4, v9")
        a("s_lshl_b32 %s, %s, 8" % (sT, sFS))
        a("v_add_u32 v16, %s, v9" % sT)
        a("v_lshl_add_u32 v8, v2, 2, v4")
        a("s_mul_i32 %s, %s, 224" % (sT, sHD))
        a("v_add_u32 v8, %s, v8" % sT)
        a("v_lshlrev_b32 v8, 7, v8")
        a("v_and_b32 v9, 2, v4")
        a("v_lshlrev_b32 v9, 1, v9")
        a("s_lshl_b32 %s, %s, 2" % (sT, sHD))
        a("v_or_b32 v10, %s, v5" % sT)
        a("v_xor_b32 v10, v10, v9")
        a("v_lshl_add_u32 v28, v10, 4, v8")
        a("v_xor_b32 v29, 64, v28")
        a("v_mov_b32 v9, 2048")
        a("v_cndmask_b32 v9, 0, v9, s[94:95]")
        a("v_add_u32 v30, v28, v9")
        a("v_add_u32 v31, v29, v9")

    RQ, RC, RP = 39, 120, 124

    def rho_reads():
        a("ds_read_b32 v%d, v36" % RQ)
        a("ds_read_b128 %s, v37" % vr(RC))
        a("ds_read_b128 %s, v38" % vr(RP))

    a("s_cmp_lt_u32 %s, 4" % sW)
    a("s_cbranch_scc1 LAcons")
    sL2048, sL512 = "s54", "s65"
    vW0, vW1, vX0, vX1, vH, vWO = "v40", "v41", "v42", "v43", "v44", "v45"
    a("s_lshl_b32 %s, %s, 11" % (sL2048, sTI))
    a("v_and_b32 v8, 2, v12")
    a("v_xor_b32 v8, v8, v13")
    a("v_xor_b32 v10, 4, v8")
    a("v_min_u32 v8, 6, v8")
    a("v_min_u32 v10, 6, v10")
    a("s_lshl_b32 %s, %s, 4" % (sT, sTI))
    a("v_add_u32 v9, %s, v12" % sT)
    a("v_mul_u32_u24 v9, 2688, v9")
    a("s_mul_i32 %s, %s, 112" % (sT, sHP))
    a("v_add_u32 v9, %s, v9" % sT)
    a("v_lshl_add_u32 %s, v8, 4, v9" % vW0)
    a("v_add_u32 v9, %d, v9" % (8 * 2688))
    a("v_lshl_add_u32 %s, v10, 4, v9" % vW1)
    a("s_lshr_b32 %s, %s, 1" % (sT2, sTI))
    a("s_and_b32 %s, %s, 1" % (sT3, sTI))
    a("s_lshl_b32 %s, %s, 5" % (sT, sT2))
    a("s_add_u32 %s, %s, %s" % (sT, sT, sT0))
    a("s_add_u32 %s, %s, %s" % (sT, sT, sT3))
    a("v_lshl_add_u32 v9, v12, 1, %s" % sT)
    a("v_mul_u32_u24 v9, 896, v9")
    a("v_lshrrev_b32 v8, 1, v12")
    a("v_xor_b32 v8, v8, v13")
    a("v_lshl_add_u32 %s, v8, 4, v9" % vX0)
    a("v_xor_b32 v8, 4, v8")
    a("v_add_u32 v9, %d, v9" % (16 * 896))
    a("v_lshl_add_u32 %s, v8, 4, v9" % vX1)
    a("s_lshl_b32 %s, %s, 3" % (sT, sT3))
    a("s_add_u32 %s, %s, %s" % (sT, sT, sT2))
    a("s_add_u32 %s, %s, %s" % (sT, sT, sT0))
    a("s_sub_u32 %s, %s, 16" % (sT, sT))
    a("v_and_b32 v8, 3, v12")
    a("v_lshl_add_u32 v9, v8, 1, %s" % sT)
    a("v_max_i32 v9, 0, v9")
    a("v_mul_u32_u24 v9, 896, v9")
    a("v_lshrrev_b32 v8, 1, v8")
    a("s_lshl_b32 %s, %s, 1" % (sT, sTI))
    a("v_add_u32 v8, %s, v8" % sT)
    a("v_xor_b32 v8, v8, v13")
    a("v_lshl_add_u32 %s, v8, 4, v9" % vH)
    a("s_mov_b32 s59, 0")
    a("s_cmp_eq_u32 %s, 0" % sTI)
    a("s_cselect_b32 s58, 0xffffff00, -1")
    prologue2(a)
    a("s_lshl_b32 %s, %s, 9" % (sL512, sTI))
    if "rot" not in OPT:
        a("s_mov_b32 s67, 0")
    else:
        a("s_lshr_b32 s67, %s, 3" % sJ)
        a("s_lshl_b32 s67, s67, 1")
        a("s_mul_i32 %s, %s, %d" % (sT, sHP, ROTM))
        a("s_add_u32 s67, s67, %s" % sT)
        a("s_mul_i32 %s, s67, 37" % sT)
        a("s_lshr_b32 %s, %s, 8" % (sT, sT))
        a("s_mul_i32 %s, %s, 7" % (sT, sT))
        a("s_sub_u32 s67, s67, %s" % sT)
        a("s_lshl_b32 s67, s67, 7")

    def dma(ch, fill=()):
        fill = list(fill)
        per = (len(fill) + 8) // 9

        def f():
            for _ in range(per):
                while fill:
                    x = fill.pop(0)
                    a(x)
                    if not (fill and fill[0].startswith(("s_cselect", "v_cndmask"))):
                        break

        sb = slot(ch) * A_SLOT
        if ch:
            a("s_add_u32 s67, s67, 128")
            a("s_cmp_eq_u32 s67, 896")
            a("s_cselect_b32 s67, 0, s67")
        a("s_add_u32 m0, %s, %d" % (sL512, sb + A_XOFF + 8192))
        a("s_mov_b64 exec, s[58:59]")
        a("buffer_load_dwordx4 %s, %s, s67 offen lds" % (vH, SX), tag=("AX", ch))
        a("s_mov_b64 exec, -1")
        for i, v in enumerate((vX0, vX1)):
            a("s_add_u32 m0, %s, %d" % (sL2048, sb + A_XOFF + i * 1024))
            a("buffer_load_dwordx4 %s, %s, s67 offen lds" % (v, SX), tag=("AX", ch))
            f()
        a("s_mul_i32 s64, s67, 1344")
        for m in range(3):
            for i, v in enumerate((vW0, vW1)):
                a("s_add_u32 m0, %s, %d" % (sL2048, sb + m * 8192 + i * 1024 - m * 896))
                a("buffer_load_dwordx4 %s, %s, s64 offen offset:%d lds" % (v, SWQKV, m * 896), tag=("A", ch))
                f()
        for x in fill:
            a(x)

    a("s_setprio 3")
    stamp(a, "A start")
    dma(0)
    for i in range(4):
        a("v_mov_b32 v%d, 0x3f803f80" % (ONES + i))
    a("v_and_b32 v8, 3, v12")
    a("v_mul_u32_u24 v8, %d, v8" % A_SLOT)
    a("v_lshl_add_u32 v8, v13, 4, v8")
    a("ds_write_b128 v8, %s offset:%d" % (vr(ONES), A_XOFF + 8192))
    ST = 48
    for i in range(6):
        a("v_mov_b32 v%d, 0" % (ST + i))
    a("s_add_u32 %s, %s, %d" % (sT, sL2048, A_XOFF))
    a("v_add_u32 v54, %s, v14" % sT)
    a("v_add_u32 v55, %d, v54" % (2 * A_SLOT))
    a("s_add_u32 %s, %s, %d" % (sT, sL512, A_XOFF + 8192))
    a("v_add_u32 v56, %s, v14" % sT)
    a("v_add_u32 v57, %d, v56" % (2 * A_SLOT))
    dma(1)
    SR = 84

    def stats_rd(ch):
        sl = slot(ch)
        ib = (sl & 1) * A_SLOT
        a.wait_tag(("AX", ch))
        a("ds_read_b128 %s, v%d offset:%d" % (vr(SR), 54 + (sl >> 1), ib))
        a("ds_read_b128 %s, v%d offset:%d" % (vr(SR + 4), 54 + (sl >> 1), ib + 1024))
        a("ds_read_b128 %s, v%d offset:%d" % (vr(SR + 8), 56 + (sl >> 1), ib))

    def dots():
        o = []
        for i in range(4):
            for k in range(3):
                o.append("v_dot2c_f32_bf16 v%d, v%d, v%d" % (ST + 2 * k, SR + 4 * k + i, ONES))
                o.append("v_dot2c_f32_bf16 v%d, v%d, v%d" % (ST + 2 * k + 1, SR + 4 * k + i, SR + 4 * k + i))
        return o

    class Rec:
        def __init__(self):
            self.l = []

        def __call__(self, x, tag=None):
            self.l.append(x)

    def pieces(fn, n):
        rec = Rec()
        fn(rec)
        late, out = rec.l, []
        for k in range(n):
            nl = (len(late) + n - k - 1) // (n - k)
            while nl < len(late) and late[nl].startswith(("s_cselect", "v_cndmask")):
                nl += 1
            out.append(late[:nl])
            late = late[nl:]
        return out

    cs = pieces(common_setup, 4) + [[], []]
    stats_rd(0)
    for x in dots():
        a(x)
    for ch in range(6):
        a.wait_tag(("A", ch), lg0=True)
        a("s_barrier")
        if ch + 2 <= 6:
            stats_rd(ch + 1)
            dma(ch + 2, cs[ch] + dots())
        if ch == 3:
            a("v_and_b32 v8, 2, v12")
            a("v_lshlrev_b32 v8, 1, v8")
            a("v_xor_b32 v8, v8, v13")
            a("s_lshl_b32 %s, %s, 3" % (sT, sTI))
            a("v_add_u32 v9, %s, v12" % sT)
            a("v_mul_u32_u24 v9, 896, v9")
            a("v_lshl_add_u32 v9, v8, 4, v9")
            a("s_lshl_b32 %s, %s, 7" % (sT, sCB))
            a("v_add_u32 %s, %s, v9" % (vWO, sT))
            a("s_lshl_b32 s66, %s, 10" % sTI)
            a("s_lshl_b32 %s, %s, 6" % (sT, sTI))
            a("s_add_u32 %s, %s, %d" % (sT, sT, A_NM))
            a("v_lshl_add_u32 v46, v12, 2, %s" % sT)
            a("s_lshl_b32 %s, %s, 4" % (sT, sTI))
            a("s_add_u32 %s, %s, %d" % (sT, sT, A_NM + 256))
            a("v_lshl_add_u32 v47, v12, 2, %s" % sT)
            a("v_mov_b32 v6, 0")
            a("buffer_load_dword v17, v6, %s, 0 offen sc1" % SDBG)

    def wo_dma(i0, i1):
        for i in range(i0, i1):
            a("s_add_u32 m0, s66, %d" % (R0 + i * 4096))
            a("s_mov_b32 s64, %d" % (i * 32 * 896))
            a("buffer_load_dwordx4 %s, %s, s64 offen lds" % (vWO, SWO), tag="wo")

    stats_rd(6)
    wo_dma(0, 3)
    for x in dots():
        a(x)
    a("s_nop 2")
    for ctl in ("quad_perm:[1,0,3,2]", "quad_perm:[2,3,0,1]", "row_half_mirror"):
        for x in range(6):
            a("v_add_f32_dpp v%d, v%d, v%d %s row_mask:0xf bank_mask:0xf" % (ST + x, ST + x, ST + x, ctl))
    a("s_mov_b32 %s, 0x%x" % (sT, f2u(1.0 / 448)))
    a("v_mov_b32 v8, 0x%x" % f2u(1e-5))
    for k in range(3):
        a("v_mul_f32 v%d, -%s, v%d" % (ST + 2 * k, sT, ST + 2 * k))
        a("v_fma_f32 v%d, v%d, %s, v8" % (ST + 2 * k + 1, ST + 2 * k + 1, sT))
    for k in range(3):
        a("v_fma_f32 v%d, -v%d, v%d, v%d" % (ST + 2 * k + 1, ST + 2 * k, ST + 2 * k, ST + 2 * k + 1))
    for k in range(3):
        a("v_max_f32 v%d, v%d, v8" % (ST + 2 * k + 1, ST + 2 * k + 1))
    for k in range(3):
        a("v_rsq_f32 v%d, v%d" % (ST + 2 * k + 1, ST + 2 * k + 1))
    a("ds_write_b32 v46, v%d" % ST)
    a("ds_write_b32 v46, v%d offset:32" % (ST + 2))
    a("ds_write_b32 v46, v%d offset:384" % (ST + 1))
    a("ds_write_b32 v46, v%d offset:416" % (ST + 3))
    a("s_mov_b32 exec_hi, 0")
    a("ds_write_b32 v47, v%d" % (ST + 4))
    a("ds_write_b32 v47, v%d offset:384" % (ST + 5))
    a("s_mov_b64 exec, -1")
    a.wait_tag(("A", 6), lg0=True)
    a("s_barrier")
    rho_reads()
    wo_dma(3, 14)
    a("s_waitcnt vmcnt(0) lgkmcnt(0)")
    a("s_setprio 0")
    a("s_branch LAjoin")

    a("LAcons:")
    a.vm, a.lg = [], []
    prologue2(a)
    nonce_publish(a)
    AD, NAD = 128, 5
    a("s_and_b32 s66, %s, 1" % sW)
    a("s_lshr_b32 s67, %s, 1" % sW)
    a("v_bfe_u32 v8, v3, 1, 3")
    a("v_xor_b32 v8, v8, v2")
    a("v_lshlrev_b32 v8, 4, v8")
    a("v_lshl_add_u32 v8, v3, 7, v8")
    a("v_add_u32 v%d, %d, v8" % (AD, A_XOFF))
    a("v_xor_b32 v%d, 64, v%d" % (AD + 1, AD))
    a("v_and_b32 v8, 2, v4")
    a("v_and_b32 v9, 1, v2")
    a("v_lshl_or_b32 v8, v9, 2, v8")
    a("v_lshlrev_b32 v8, 4, v8")
    a("v_lshl_add_u32 v9, v2, 3, v4")
    a("v_lshlrev_b32 v9, 7, v9")
    a("s_mul_i32 s68, s66, 3")
    a("s_mul_i32 %s, s67, 56" % sT2)
    for j in range(3):
        a("s_add_u32 %s, s68, %d" % (sT3, j))
        a("s_and_b32 %s, %s, 1" % (sT, sT3))
        a("s_lshl_b32 %s, %s, 5" % (sT, sT))
        a("s_add_u32 %s, %s, %s" % (sT, sT, sT2))
        a("v_lshl_add_u32 v10, v5, 3, %s" % sT)
        a("v_xor_b32 v10, v10, v8")
        a("s_lshr_b32 %s, %s, 1" % (sT, sT3))
        a("s_lshl_b32 %s, %s, 13" % (sT, sT))
        a("v_add3_u32 v%d, v10, v9, %s" % (AD + 2 + j, sT))
    for i in range(NAD):
        a("v_add_u32 v%d, %d, v%d" % (AD + NAD + i, 2 * A_SLOT, AD + i))
    a("s_mul_i32 %s, %s, 1536" % (sT, sW))
    a("s_add_u32 %s, %s, %d" % (sT, sT, A_EX))
    a("v_lshl_add_u32 v138, v1, 3, %s" % sT)
    a("v_lshlrev_b32 v139, 2, v3")
    a("v_add_u32 v139, %d, v139" % A_NM)
    if "touch0" in OPT:
        touch(a, [(2, SWQKV, 37), (3, SX, 56)])
    common_setup(a)
    if "notouch1" not in OPT:
        touch(a, [(2, SWQKV, 37), (3, SX, 56)])
    ACC = 140
    FB = [40, 84]
    NM = 200

    def reads(n):
        ch, ks = n >> 1, n & 1
        sl = slot(ch)
        ab = AD if sl < 2 else AD + NAD
        ib = (sl & 1) * A_SLOT
        fb = FB[ks]
        tr = lambda j, hf: "ds_read_b64_tr_b16 %s, v%d offset:%d" % (vr(fb + 20 + 4 * j + 2 * hf, 2), ab + 2 + j, ib + ks * 4096 + hf * 512)
        xr = lambda t: "ds_read_b128 %s, v%d offset:%d" % (vr(fb + 4 * t), ab + ks, ib + t * 2048)
        return [tr(0, 0), tr(0, 1), xr(4), xr(0), xr(1), xr(2), xr(3), tr(1, 0), tr(1, 1), tr(2, 0), tr(2, 1)]

    def compute(n):
        fb = FB[n & 1]
        z = "0" if n == 0 else None
        return [mfma(ACC + 20 * j + 4 * t, fb + 20 + 4 * j, fb + 4 * t, z) for j in range(3) for t in (4, 0, 1, 2, 3)]

    def norm(j):
        o = []
        for t in (0, 1, 2, 3, 4):
            acc = ACC + 20 * j + 4 * t
            for rr in range(4):
                o.append("v_fmac_f32_dpp v%d, v%d, v%d row_newbcast:0 row_mask:0xf bank_mask:0xf" % (acc + rr, ACC + 20 * j + 16 + rr, NM + t))
            pk = 208 + 2 * ((5 * j + t) % 4)
            o.append("v_cvt_pk_bf16_f32 v%d, v%d, v%d" % (pk, acc, acc + 1))
            o.append("v_cvt_pk_bf16_f32 v%d, v%d, v%d" % (pk + 1, acc + 2, acc + 3))
            o.append("ds_write_b64 v138, %s offset:%d" % (vr(pk, 2), t * 6144 + j * 512))
        return o

    for ch in range(7):
        if "notouch" not in OPT:
            jobs = [j for (t, j) in ((TCH, (0, SWO, 13)), (TCH, (1, SWG, 49)), (TCU, (2, SWU, 49)), (TCD, (3, SWD, 49))) if t == ch]
            if jobs:
                touch(a, jobs)
        if ch == 4:
            a("v_mov_b32 v6, 0")
            a("buffer_load_dword v17, v6, %s, 0 offen sc1" % SDBG)
        a("s_waitcnt lgkmcnt(0)")
        a("s_barrier")
        if ch in (0, 6):
            stamp(a, "A ch%d landed" % ch)
        for x in reads(2 * ch):
            a(x)
        rd = reads(2 * ch + 1)
        if ch == 6:
            rd += ["ds_read_b32 v%d, v139 offset:%d" % (NM + t, 64 * t) for t in range(5)]
        for x in compute(2 * ch):
            a(x)
            for _ in range(2 if ch == 6 else 1):
                if rd:
                    a(rd.pop(0))
        nr = []
        for i, x in enumerate(compute(2 * ch + 1)):
            a(x)
            if ch == 6:
                if i == 6:
                    nr += norm(0)
                if i == 11:
                    nr += norm(1)
                for _ in range(3):
                    if nr:
                        a(nr.pop(0))
    stamp(a, "A loop done")
    for x in nr + norm(2):
        a(x)
    rho_reads()
    a("s_waitcnt vmcnt(0) lgkmcnt(0)")
    a("LAjoin:")
    a.vm, a.lg = [], []
    a("s_barrier")
    QP, KC, KP, V0, V1 = 100, 104, 108, 112, 116
    a("ds_read_b64 %s, v32" % vr(QP, 2))
    a("ds_read_b64 %s, v32 offset:512" % vr(QP + 2, 2))
    a("ds_read_b64 %s, v32 offset:1024" % vr(KC, 2))
    a("ds_read_b64 %s, v32 offset:1536" % vr(KC + 2, 2))
    a("ds_read_b64 %s, v35 offset:1024" % vr(KP, 2))
    a("ds_read_b64 %s, v35 offset:1536" % vr(KP + 2, 2))
    a("ds_read_b64_tr_b16 %s, v34 offset:2048" % vr(V0, 2))
    a("ds_read_b64_tr_b16 %s, v33 offset:2048" % vr(V0 + 2, 2))
    a("ds_read_b64_tr_b16 %s, v34 offset:2560" % vr(V1, 2))
    a("ds_read_b64_tr_b16 %s, v33 offset:2560" % vr(V1 + 2, 2))
    a("v_mul_f32 v13, 0x%x, v%d" % (f2u(28 ** -0.5 * LOG2E), RQ))
    nonce_fetch(a, "v17")
    a("v_cndmask_b32 v%d, 0, v%d, s[94:95]" % (QP + 2, QP + 2))
    a("v_cndmask_b32 v%d, 0, v%d, s[94:95]" % (QP + 3, QP + 3))
    a(mfma(BC, KC, QP))
    a(mfma(BP, KP, QP))
    for i in range(4):
        a("v_mul_f32 v%d, v%d, v%d" % (BC + i, RC + i, BC + i))
    for i in range(4):
        a("v_mul_f32 v%d, v%d, v%d" % (BP + i, RP + i, BP + i))
    a("v_max3_f32 v8, v%d, v%d, v%d" % (BC, BC + 1, BC + 2))
    a("v_max3_f32 v9, v%d, v%d, v%d" % (BC + 3, BP, BP + 1))
    a("v_max3_f32 v8, v8, v%d, v%d" % (BP + 2, BP + 3))
    a("v_max_f32 v8, v8, v9")
    xg_reduce_multi(a, "v_max_f32", ["v8"], ["v9"])
    a("v_mul_f32 v8, v13, v8")
    for i in range(8):
        a("v_fma_f32 v%d, v%d, v13, -v8" % (BP + i, BP + i))
    for i in range(8):
        a("v_exp_f32 v%d, v%d" % (BP + i, BP + i))
    a("v_add_f32 v9, v%d, v%d" % (BP, BP + 1))
    a("v_add_f32 v10, v%d, v%d" % (BP + 2, BP + 3))
    a("v_add_f32 v11, v%d, v%d" % (BP + 4, BP + 5))
    a("v_add_f32 v12, v%d, v%d" % (BP + 6, BP + 7))
    a("v_add_f32 v9, v9, v10")
    a("v_add_f32 v11, v11, v12")
    a("v_add_f32 v9, v9, v11")
    a("v_mov_b32 v10, v9")
    a("v_mul_f32 v%d, v%d, v%d" % (BP, RP, BP))
    a("v_mul_f32 v%d, v%d, v%d" % (BP + 1, RP + 1, BP + 1))
    a("v_permlane32_swap_b32 v10, v9")
    a("v_add_f32 v9, v9, v10")
    a("v_mov_b32 v10, v9")
    a("v_mul_f32 v%d, v%d, v%d" % (BP + 2, RP + 2, BP + 2))
    a("v_mul_f32 v%d, v%d, v%d" % (BP + 3, RP + 3, BP + 3))
    a("v_permlane16_swap_b32 v10, v9")
    a("v_add_f32 v9, v9, v10")
    a("v_rcp_f32 v9, v9")
    for i in range(4):
        a("v_mul_f32 v%d, v%d, v%d" % (BC + i, RC + i, BC + i))
    for i in range(8):
        a("v_mul_f32 v%d, v9, v%d" % (BP + i, BP + i))
    P = 96
    for i in range(4):
        a("v_cvt_pk_bf16_f32 v%d, v%d, v%d" % (P + i, BP + 2 * i, BP + 2 * i + 1))
    O0, O1 = 40, 44
    a(mfma(O0, V0, P, "0"))
    a(mfma(O1, V1, P, "0"))
    OS = 124
    a("v_cvt_pk_bf16_f32 v%d, v%d, v%d" % (OS, O0, O0 + 1))
    a("v_cvt_pk_bf16_f32 v%d, v%d, v%d" % (OS + 1, O0 + 2, O0 + 3))
    a("v_cvt_pk_bf16_f32 v%d, v%d, v%d" % (OS + 2, O1, O1 + 1))
    a("v_cvt_pk_bf16_f32 v%d, v%d, v%d" % (OS + 3, O1 + 2, O1 + 3))
    a("v_cndmask_b32 v%d, 0, v%d, s[94:95]" % (OS + 2, OS + 2))
    a("v_cndmask_b32 v%d, 0, v%d, s[94:95]" % (OS + 3, OS + 3))
    a("buffer_store_dwordx4 %s, v14, %s, s98 offen%s" % (vr(OS), SWS, SC), tag="ost")
    stamp(a, "A o stored")


G1 = [(s, R1 + 8192 * s) for s in range(10)]
G2 = [(10 + i, R0 + 8192 * i) for i in range(7)]
G3 = [(17 + i, R1 + 8192 * i) for i in range(10)] + [(27, R2 + 16384)]


def helper(a):
    R = lambda x: raw(a, x)
    R("s_lshl_b32 %s, %s, 3" % (sT, sCB))
    R("s_add_u32 %s, %s, %s" % (sT, sT, sXC))
    R("s_mul_i32 %s, %s, %d" % (sT, sT, 392 * 128))
    R("v_min_u32 v8, 391, v0")
    R("v_lshlrev_b32 v8, 7, v8")
    if TCU > 6:
        R("buffer_load_dword v40, v8, %s, %s offen" % (SWU, sT))
    if TCD > 6:
        R("buffer_load_dword v41, v8, %s, %s offen" % (SWD, sT))


def phase_B(a):
    sTT, sKH, sTAU, sU = "s50", "s51", "s52", "s54"
    a("; ---------------- A->B ----------------")
    a("s_cmp_lt_u32 %s, 28" % sJ)
    a("s_cbranch_scc1 LgoB")
    raw(a, "s_waitcnt vmcnt(0)")
    raw(a, "s_barrier")
    publish(a, "s99")
    if "nohelp" not in OPT:
        helper(a)
    raw(a, "s_branch Lfin")
    a("LgoB:")
    worder = []
    for hh in range(8):
        for t in range(4):
            off = R0 + hh * 3584 + (t & 1) * 8
            worder.append("ds_read_b64_tr_b16 %s, v%d offset:%d" % (vr(WOF + 16 * hh + 4 * t, 2), 28 + (t >> 1), off))
            worder.append("ds_read_b64_tr_b16 %s, v%d offset:%d" % (vr(WOF + 16 * hh + 4 * t + 2, 2), 30 + (t >> 1), off))
    wc_dma(a, G1[6:10], "v16", "g1")
    a("s_and_b32 %s, %s, 3" % (sTT, sW))
    a("s_lshr_b32 %s, %s, 2" % (sKH, sW))
    a("s_lshl_b32 %s, %s, 2" % (sTAU, sRB))
    a("s_add_u32 %s, %s, %s" % (sTAU, sTAU, sTT))
    a("s_lshr_b32 %s, %s, 1" % (sT, sTAU))
    a("s_lshl_b32 %s, %s, 5" % (sT, sT))
    a("s_and_b32 %s, %s, 1" % (sT2, sTAU))
    a("s_add_u32 %s, %s, %s" % (sT, sT, sT2))
    a("v_lshl_add_u32 v8, v3, 1, %s" % sT)
    a("v_mul_u32_u24 v8, 896, v8")
    a("v_lshl_add_u32 v8, v2, 4, v8")
    a("s_lshl_b32 %s, %s, 1" % (sU, sCB))
    a("s_add_u32 %s, %s, %s" % (sU, sU, sKH))
    a("s_lshl_b32 %s, %s, 6" % (sT3, sU))
    for x in worder[:WOPRE]:
        a(x)
    a.wait_tag("ost")
    a("s_barrier")
    publish(a, "s99")
    stamp(a, "A flag")
    XR = 20
    a("buffer_load_dwordx4 %s, v8, %s, %s offen" % (vr(XR), SX, sT3))
    wc_dma(a, G1[:6], "v16", "g1")
    for x in worder[WOPRE:]:
        a(x)
    a("v_and_b32 v8, 1, v2")
    a("v_lshl_or_b32 v8, v8, 2, v4")
    a("v_lshlrev_b32 v8, 1, v8")
    a("v_lshrrev_b32 v9, 1, v5")
    a("s_lshl_b32 %s, %s, 1" % (sT, sW))
    a("v_add_u32 v9, %s, v9" % sT)
    a("v_xor_b32 v8, v8, v9")
    a("v_lshl_add_u32 v9, v2, 3, v4")
    a("v_lshlrev_b32 v9, 8, v9")
    a("v_lshl_add_u32 v9, v8, 4, v9")
    a("v_and_b32 v8, 1, v5")
    a("v_lshl_add_u32 v17, v8, 3, v9")
    a("v_add_u32 v18, 57344, v17")
    a("v_add_u32 v19, 114688, v17")
    OF, ACC = 32, 64
    for i in range(4):
        a("v_lshlrev_b32 v%d, 16, v%d" % (ACC + 2 * i, XR + i))
        a("v_and_b32 v%d, 0xffff0000, v%d" % (ACC + 2 * i + 1, XR + i))
    a("s_lshl_b32 %s, %s, 4" % (sT2, sTAU))
    a("s_lshl_b32 %s, %s, 3" % (sT3, sKH))
    a("s_add_u32 %s, %s, %s" % (sT2, sT2, sT3))
    a("s_lshl_b32 %s, %s, 10" % (sT2, sT2))
    a("s_add_u32 %s, %s, 4096" % (sT3, sT2))
    a("s_lshl_b32 %s, %s, 11" % (sT, sW))
    a("s_add_u32 %s, %s, %d" % (sT, sT, B_RB))
    a("v_add_u32 v12, %s, v14" % sT)
    a("s_xor_b32 %s, %s, 4" % (sT, sW))
    a("s_lshl_b32 %s, %s, 11" % (sT, sT))
    a("s_add_u32 %s, %s, %d" % (sT, sT, B_RB))
    a("v_add_u32 v13, %s, v14" % sT)
    a("s_mul_i32 s58, %s, 14" % sTAU)
    a("s_add_u32 s58, s58, %s" % sU)
    a("s_lshl_b32 s59, s58, 7")
    a("s_add_u32 s59, s59, %d" % WS_ST)
    a("s_lshl_b32 s58, s58, 10")
    a("s_add_u32 s58, s58, %d" % WS_H)
    a("s_lshl_b32 s60, %s, 7" % sRB)
    a("s_add_u32 s60, s60, %d" % WS_FA)
    a("s_lshr_b32 s61, %s, 1" % sRB)
    a("s_lshl_b32 s61, s61, 7")
    a("s_and_b32 %s, %s, 1" % (sT, sRB))
    a("s_mul_i32 %s, %s, 28" % (sT, sT))
    a("s_add_u32 s61, s61, %s" % sT)
    a("s_lshl_b32 %s, %s, 2" % (sT, sCB))
    a("s_add_u32 s61, s61, %s" % sT)
    a("s_add_u32 s61, s61, %d" % WS_FB)
    a("v_lshlrev_b32 v11, 3, v3")
    a.wait_tag("g1", lg0=True)
    stamp(a, "B pre-poll")
    poll(a, "s60", 0xff, 0)
    stamp(a, "B go")
    for hh in range(8):
        a("buffer_load_dwordx4 %s, v14, %s, %s offen offset:%d%s" % (vr(OF + 4 * hh), SWS, sT2 if hh < 4 else sT3, (hh & 3) * 1024, SC))
    a("s_barrier")
    for x in wc_read(G1, 17):
        a(x)
    for hh in range(8):
        if hh < 7:
            wc_dma(a, G2[hh:hh + 1], "v16", "g2")
        for t in (2, 3, 0, 1):
            a(mfma(ACC + 4 * t, WOF + 16 * hh + 4 * t, OF + 4 * hh, "0" if (hh == 0 and t >= 2) else None))
    a("ds_write_b128 v12, %s" % vr(ACC + 8))
    a("ds_write_b128 v12, %s offset:1024" % vr(ACC + 12))
    a("s_waitcnt lgkmcnt(0)")
    a("s_barrier")
    a("ds_read_b128 %s, v13" % vr(ACC + 8))
    a("ds_read_b128 %s, v13 offset:1024" % vr(ACC + 12))
    a("v_mov_b32 v8, 0")
    a("v_mov_b32 v9, 0")
    a("v_mov_b32 v6, 0")
    a("v_mov_b32 v7, 0")
    a("v_mov_b32 v10, 0x3f803f80")
    for i in range(8):
        a("v_add_f32 v%d, v%d, v%d" % (ACC + i, ACC + i, ACC + 8 + i))
    HP = 24
    for i in range(4):
        a("v_cvt_pk_bf16_f32 v%d, v%d, v%d" % (HP + i, ACC + 2 * i, ACC + 2 * i + 1))
    a("buffer_store_dwordx4 %s, v14, %s, s58 offen%s" % (vr(HP), SWS, SC))
    for i in range(4):
        a("v_dot2c_f32_bf16 v%d, v%d, v10" % (8 if i & 1 else 6, HP + i))
        a("v_dot2c_f32_bf16 v%d, v%d, v%d" % (9 if i & 1 else 7, HP + i, HP + i))
    a("v_add_f32 v8, v8, v6")
    a("v_add_f32 v9, v9, v7")
    xg_reduce_multi(a, "v_add_f32", ["v8", "v9"], ["v6", "v7"])
    a("s_mov_b64 exec, 0xffff")
    a("buffer_store_dwordx2 v[8:9], v11, %s, s59 offen%s" % (SWS, SC), tag="hst")
    a("s_mov_b64 exec, -1")
    stamp(a, "B h stored")


D_RDY = 163836
C_S0 = 116736
WDF = [224, 240, 64, 80, 96, 112, 128]


def emit_group(a, g):
    for (x, tg) in g:
        a(x, tag=tg)


def wd_dma_groups(u, base):
    gs = []
    for i4 in range(4):
        i = 4 * u + i4
        gs.append([("s_add_u32 m0, s63, %d" % (base + i4 * 1024), None),
                   ("s_mov_b32 s65, %d" % ((16 * (i >> 1) + 4 * (i & 1)) * 896), None),
                   ("buffer_load_dwordx4 v17, %s, s65 offen lds" % SWD, ("wd", u))])
    return gs


def wd_reads(u, base):
    out = []
    for t in range(4):
        for hf in range(2):
            out.append("ds_read_b64_tr_b16 %s, v%d offset:%d" % (vr(WDF[u] + 4 * t + 2 * hf, 2), 8 + t, base + hf * 1024))
    return out


def phase_C(a):
    a("; ---------------- B->C ----------------")
    wc_dma(a, G3[:4], "v16", "g3")
    a.wait_tag("hst")
    a("s_barrier")
    publish(a, "s61")
    stamp(a, "B flag")
    wc_dma(a, G3[4:], "v16", "g3")
    for x in wc_read(G2, 17):
        a(x)
    ONES, CSG, CSU = 20, 24, 28
    for i in range(4):
        a("v_mov_b32 v%d, 0x3f803f80" % (ONES + i))
    for u in range(14):
        a(mfma(CSG, WGF + 4 * u, ONES, "0" if u == 0 else None))
    a("s_mul_i32 %s, %s, 114688" % (sT2, sRQ))
    a("s_add_u32 %s, %s, %d" % (sT2, sT2, WS_H))
    a("s_mul_i32 s62, %s, 3584" % sW)
    a("v_add_u32 v12, s62, v14")
    a("s_lshl_b32 %s, %s, 3" % (sT3, sRQ))
    a("s_add_u32 %s, %s, %s" % (sT3, sT3, sW))
    a("s_mul_i32 %s, %s, 1792" % (sT3, sT3))
    a("s_add_u32 %s, %s, %d" % (sT3, sT3, WS_ST))
    for i in range(4):
        a("v_mov_b32 v%d, 0" % (60 + i))
    a("v_and_b32 v8, 1, v2")
    a("v_mul_u32_u24 v8, 57344, v8")
    a("v_lshrrev_b32 v10, 1, v2")
    a("s_and_b32 %s, %s, 1" % (sT, sW))
    a("s_lshl_b32 %s, %s, 1" % (sT, sT))
    a("v_add_u32 v10, %s, v10" % sT)
    a("v_lshl_add_u32 v8, v10, 8, v8")
    a("v_lshl_add_u32 v13, v3, 4, v8")
    a("s_mul_i32 s58, %s, 448" % sRQ)
    a("s_lshl_b32 %s, %s, 2" % (sT, sFS))
    a("s_add_u32 s58, s58, %s" % sT)
    a("s_lshr_b32 %s, %s, 1" % (sT, sW))
    a("s_add_u32 s58, s58, %s" % sT)
    a("s_lshl_b32 s58, s58, 10")
    a("s_add_u32 s58, s58, %d" % WS_HH)
    a("s_mov_b32 s59, 0x%x" % f2u(-LOG2E))
    a("s_lshl_b32 s60, %s, 7" % sRQ)
    a("s_add_u32 s60, s60, %d" % WS_FB)
    a("s_lshl_b32 s61, %s, 8" % sRQ)
    a("s_lshl_b32 %s, %s, 2" % (sT, sFS))
    a("s_add_u32 s61, s61, %s" % sT)
    a("s_add_u32 s61, s61, %d" % WS_FC)
    a("s_lshl_b32 s63, %s, 12" % sW)
    a("s_lshr_b32 %s, %s, 1" % (sT, sRB))
    a("s_lshl_b32 s67, %s, 8" % sT)
    a("s_add_u32 s67, s67, %d" % WS_FC)
    a("s_lshl_b32 s70, %s, 7" % sT)
    a("s_lshl_b32 %s, %s, 3" % (sT, sT))
    a("s_and_b32 s64, %s, 1" % sRB)
    a("s_add_u32 %s, %s, s64" % (sT, sT))
    a("s_add_u32 s70, s70, s64")
    a("s_mul_i32 s70, s70, 896")
    a("s_lshl_b32 s64, %s, 7" % sCB)
    a("s_add_u32 s70, s70, s64")
    a("s_mul_i32 s68, %s, 56" % sT)
    a("s_mul_i32 s64, %s, 7" % sW)
    a("s_add_u32 s68, s68, s64")
    a("s_lshl_b32 s68, s68, 10")
    a("s_add_u32 s68, s68, %d" % WS_HH)
    a("s_and_b32 s64, %s, 6" % sW)
    a("s_add_u32 %s, %s, s64" % (sT, sT))
    a("s_mul_i32 s69, %s, 14" % sT)
    a("s_lshl_b32 s64, %s, 1" % sCB)
    a("s_add_u32 s69, s69, s64")
    a("s_and_b32 s64, %s, 1" % sW)
    a("s_add_u32 s69, s69, s64")
    a("s_lshl_b32 s69, s69, 10")
    a("s_add_u32 s69, s69, %d" % WS_H)
    a("v_and_b32 v6, 1, v2")
    a("v_lshl_add_u32 v6, v6, 2, v4")
    a("v_and_b32 v7, 6, v6")
    a("v_lshrrev_b32 v10, 1, v5")
    a("v_xor_b32 v7, v7, v10")
    a("v_lshrrev_b32 v10, 1, v2")
    a("v_lshl_add_u32 v6, v10, 4, v6")
    a("v_lshlrev_b32 v6, 7, v6")
    a("v_lshl_add_u32 v6, v7, 4, v6")
    a("v_and_b32 v7, 1, v5")
    a("v_lshl_add_u32 v6, v7, 3, v6")
    a("s_add_u32 %s, s63, 65536" % sT)
    a("v_add_u32 v8, %s, v6" % sT)
    for t in range(1, 4):
        a("v_xor_b32 v%d, %d, v8" % (8 + t, 32 * t))
    a("s_waitcnt lgkmcnt(0)")
    stamp(a, "C pre-poll")
    poll(a, "s60", 0x3fff, 0)
    stamp(a, "C go")

    def h_groups(tp):
        tg = ("h", tp)
        gs = []
        for i in range(4):
            g = []
            if i == 0:
                g.append(("s_add_u32 s64, %s, %d" % (sT2, tp * 28672), None))
            g.append(("s_add_u32 m0, s62, %d" % (tp * 28672), None))
            if i == 3:
                g.append(("s_mov_b32 exec_hi, 0", None))
            g.append(("buffer_load_dwordx4 v12, %s, s64 offen offset:%d%s lds" % (SWS, i * 1024, SC), tg))
            if i == 3:
                g.append(("s_mov_b64 exec, -1", None))
            gs.append(g)
        return gs

    a("buffer_load_dwordx4 v[56:59], v14, %s, %s offen%s" % (SWS, sT3, SC))
    a("s_mov_b32 exec_hi, 0xffff")
    a("buffer_load_dwordx4 v[60:63], v14, %s, %s offen offset:1024%s" % (SWS, sT3, SC))
    a("s_mov_b64 exec, -1")
    for g in h_groups(0):
        emit_group(a, g)
    a.wait_tag("g3")
    a("s_barrier")
    for x in wc_read(G3, 17):
        a(x)
    a("v_lshrrev_b32 v6, 3, v1")
    a("v_and_b32 v7, 7, v1")
    a("v_and_b32 v16, 6, v6")
    a("v_xor_b32 v7, v16, v7")
    a("v_and_b32 v16, 3, v6")
    a("v_lshrrev_b32 v6, 2, v6")
    a("v_lshl_add_u32 v16, v6, 3, v16")
    a("s_mul_i32 %s, %s, 224" % (sT, sW))
    a("v_add_u32 v16, %s, v16" % sT)
    a("v_mul_u32_u24 v16, 896, v16")
    a("v_lshl_add_u32 v16, v7, 4, v16")
    a("s_lshl_b32 %s, %s, 7" % (sT, sCB))
    a("v_add_u32 v17, %s, v16" % sT)
    a("v_add_u32 v16, 57344, v14")
    a("v_lshlrev_b32 v19, 4, v3")
    a("v_add_u32 v19, %d, v19" % C_ST)
    a("s_lshl_b32 %s, %s, 8" % (sT, sW))
    a("s_add_u32 %s, %s, %d" % (sT, sT, C_ST))
    a("v_and_b32 v18, 7, v1")
    a("v_lshl_add_u32 v18, v18, 5, %s" % sT)
    for u in range(14):
        a(mfma(CSU, WUF + 4 * u, ONES, "0" if u == 0 else None))
    st = []
    for i in range(4):
        st.append("v_add_f32 v%d, v%d, v%d" % (56 + i, 56 + i, 60 + i))
    for i in range(4):
        st.append("v_add_f32_dpp v%d, v%d, v%d row_ror:8 row_mask:0xf bank_mask:0xf" % (56 + i, 56 + i, 56 + i))
    for step in ("v_permlane32_swap_b32", "v_permlane16_swap_b32"):
        for i in range(4):
            st.append("v_mov_b32 v%d, v%d" % (60 + i, 56 + i))
        for i in range(4):
            st.append("%s v%d, v%d" % (step, 60 + i, 56 + i))
        for i in range(4):
            st.append("v_add_f32 v%d, v%d, v%d" % (56 + i, 56 + i, 60 + i))
    st.append("s_mov_b32 %s, 0x%x" % (sT, f2u(1.0 / 448)))
    st.append("v_mov_b32 v6, 0x%x" % f2u(1e-5))
    for tk in range(2):
        s1, s2, d = 56 + 2 * tk, 57 + 2 * tk, 32 + 4 * tk
        st.append("v_mul_f32 v%d, -%s, v%d" % (d, sT, s1))
        st.append("v_fma_f32 v%d, v%d, %s, v6" % (s2, s2, sT))
        st.append("v_fma_f32 v%d, -v%d, v%d, v%d" % (s2, d, d, s2))
        st.append("v_max_f32 v%d, v%d, v6" % (s2, s2))
        st.append("v_sqrt_f32 v%d, v%d" % (d + 2, s2))
        st.append("v_rsq_f32 v%d, v%d" % (s2, s2))
        st.append("v_mul_f32 v%d, s59, v%d" % (d + 1, s2))
    st.append("ds_write_b128 v18, v[32:35]")
    st.append("ds_write_b128 v18, v[36:39] offset:16")
    for x in st:
        a(x)
    st = []
    AF, NR = 192, 8
    ACCS = [40, 48]
    STS = [32, 36]
    PKD = [56, 60]

    def epi(i):
        g, u_, s, pk = ACCS[i & 1], ACCS[i & 1] + 4, STS[i & 1], PKD[(i >> 1) & 1]
        o = []
        o.append("ds_read_b128 %s, v19 offset:%d" % (vr(s), i * 256))
        o.append(None)
        o.append(None)
        for rr in range(4):
            o.append("v_fmac_f32 v%d, v%d, v%d" % (g + rr, s, CSG + rr))
        for rr in range(4):
            o.append("v_mul_f32 v%d, v%d, v%d" % (g + rr, s + 1, g + rr))
        for rr in range(4):
            o.append("v_exp_f32 v%d, v%d" % (g + rr, g + rr))
        for rr in range(4):
            o.append("v_fmac_f32 v%d, v%d, v%d" % (u_ + rr, s, CSU + rr))
        for rr in range(4):
            o.append("v_fma_f32 v%d, v%d, v%d, v%d" % (g + rr, g + rr, s + 2, s + 2))
        for rr in range(4):
            o.append("v_rcp_f32 v%d, v%d" % (g + rr, g + rr))
        for rr in range(4):
            o.append("v_mul_f32 v%d, v%d, v%d" % (g + rr, g + rr, u_ + rr))
        o.append("v_cvt_pk_bf16_f32 v%d, v%d, v%d" % (pk + 2 * (i & 1), g, g + 1))
        o.append("v_cvt_pk_bf16_f32 v%d, v%d, v%d" % (pk + 2 * (i & 1) + 1, g + 2, g + 3))
        if i & 1:
            o.append("v_permlane16_swap_b32 v%d, v%d" % (pk, pk + 2))
            o.append("v_permlane16_swap_b32 v%d, v%d" % (pk + 1, pk + 3))
            o.append(("buffer_store_dwordx4 %s, v13, %s, s58 offen%s" % (vr(pk), SWS, SC), ("hh", i >> 1)))
            o.append("s_add_u32 s58, s58, %d" % (2 * 57344))
        return o

    def emit(x):
        if x is None:
            return
        if isinstance(x, tuple):
            a(x[0], tag=x[1])
        else:
            a(x)

    def pub_stage(tp):
        publish(a, "s61")
        a("s_add_u32 s61, s61, 64")

    S0o = C_S0 - 65536
    side = {}
    prio = {}

    def at(k, f):
        side.setdefault(k, []).append(f)

    def spread(k0, stride, groups):
        for n, g in enumerate(groups):
            at(k0 + n * stride, (lambda g=g: emit_group(a, g)))

    def rd_job(k, u, base):
        def f():
            a.wait_tag(("wd", u))
            for x in wd_reads(u, base):
                a(x)
        at(k, f)

    spread(0, 1, h_groups(1))
    spread(5, 2, h_groups(2) + h_groups(3))
    spread(22, 1, wd_dma_groups(0, C_S0))
    rd_job(38, 0, S0o)
    spread(44, 1, wd_dma_groups(1, C_S0))
    spread(52, 2, wd_dma_groups(4, 0))
    rd_job(62, 1, S0o)
    spread(68, 1, wd_dma_groups(2, C_S0))
    spread(80, 2, wd_dma_groups(5, 32768))
    rd_job(88, 2, S0o)
    spread(94, 2, wd_dma_groups(3, C_S0))
    at(102, lambda: lead_issue(a, "s67"))

    if "nowd" in OPT:
        for k in list(side):
            if k >= 18:
                del side[k]
    if "nowdrd" in OPT:
        for k in (38, 62, 88):
            del side[k]

    def bar(tags, lg0=False, pub=None):
        def f():
            for tg in tags:
                a.wait_tag(tg, lg0=lg0)
            a("s_barrier")
            if pub is not None:
                pub_stage(pub)
        return f

    barr = {22: bar([("h", 1)]), 50: bar([("h", 3), ("hh", 0)], pub=0), 78: bar([("hh", 1)], pub=1)}
    if "noprio" not in OPT:
        for (k0, k1) in ((0, 22), (22, 50), (50, 78), (78, 112)):
            for lv in range(4):
                kk = k0 + (k1 - k0) * lv // 4
                prio[kk] = 3 - lv

    if "nostw" in OPT:
        barr = {14: bar([("h", 1)], lg0=True), 50: bar([("h", 3)], pub=0), 78: bar([], pub=1)}
    if "cst" in OPT:
        for kk in (14, 28, 42, 56, 70, 84, 98):
            at(kk - 1, (lambda kk=kk: stamp(a, "C k%d" % kk)))
    a.wait_tag(("h", 0), lg0=True)
    a("s_barrier")
    stamp(a, "C h0 landed")
    allrd = []
    for k in range(112):
        off = k * 1024
        allrd.append("ds_read_b128 %s, v%d offset:%d" % (vr(AF + 4 * (k % NR)), 14 if off < 57344 else 16, off % 57344))
    nxt = 0
    LA = NR - 2
    for i in range(8):
        acc = ACCS[i & 1]
        ep = epi(i - 1) if i else st
        for u in range(14):
            k = i * 14 + u
            if k in barr:
                barr[k]()
            if k in prio:
                a("s_setprio %d" % prio[k])
            while nxt < len(allrd) and nxt <= k + LA - 1:
                a(allrd[nxt])
                nxt += 1
            f = AF + 4 * (k % NR)
            z = "0" if u == 0 else None
            npop = 5 if i == 0 else 3
            start = 3 if i == 0 else 0
            if "m32" in OPT:
                ac = 224 + 16 * ((i >> 1) & 1)
                a("v_mfma_f32_32x32x16_bf16 %s, %s, %s, %s" % (vr(ac, 16), vr(WGF + 4 * (u + 14 * (i & 1))), vr(f), "0" if k % 28 == 0 else vr(ac, 16)))
            else:
                a(mfma(acc, WGF + 4 * u, f, z))
            if u >= start:
                for _ in range(npop // 2):
                    if ep:
                        emit(ep.pop(0))
            if "m32" not in OPT:
                a(mfma(acc + 4, WUF + 4 * u, f, z))
            if u >= start:
                for _ in range(npop - npop // 2):
                    if ep:
                        emit(ep.pop(0))
            for fn in side.get(k, []):
                fn()
        for x in ep:
            emit(x)
    stamp(a, "C mfma done")
    return epi, emit, pub_stage


def lead_issue(a, soff):
    L = a.label("liss")
    raw(a, "s_cmp_lg_u32 %s, 0" % sW)
    raw(a, "s_cbranch_scc1 %s" % L)
    raw(a, "v_lshlrev_b32 v6, 2, v1")
    raw(a, "buffer_load_dword v7, v6, %s, %s offen sc1" % (SWS, soff))
    raw(a, "%s:" % L)
    a.vm.append((set(), "lead"))
    a.lead_phantom = True


def lead_check(a, soff, mask_lo, mask_hi, level=None, vaddr=None):
    L, Lp, Lc, Ld = a.label("lskip"), a.label("lpoll"), a.label("lchk"), a.label("ldone")
    n = a._after(a.vm, lambda e: e[1] == "lead")
    a.vm = [e for e in a.vm if e[1] != "lead"]
    raw(a, "s_cmp_lg_u32 %s, 0" % sW)
    raw(a, "s_cbranch_scc1 %s" % L)
    raw(a, "s_mov_b32 s3, 400000")
    if n is not None:
        raw(a, "s_waitcnt vmcnt(%d)" % min(n, 63))
    raw(a, "s_branch %s" % Lc)
    raw(a, "%s:" % Lp)
    raw(a, "buffer_load_dword v7, v6, %s, %s offen sc1" % (SWS, soff))
    raw(a, "s_waitcnt vmcnt(0)")
    raw(a, "%s:" % Lc)
    raw(a, "v_cmp_ne_u32 vcc, %s, v7" % sNONCE)
    raw(a, "s_sub_u32 s3, s3, 1")
    raw(a, "s_cbranch_scc1 %s" % Ld)
    raw(a, "s_nop 0")
    raw(a, "s_and_b32 vcc_lo, vcc_lo, 0x%x" % mask_lo)
    raw(a, "s_and_b32 vcc_hi, vcc_hi, 0x%x" % mask_hi)
    raw(a, "s_cmp_lg_u64 vcc, 0")
    raw(a, "s_cbranch_scc1 %s" % Lp)
    raw(a, "%s:" % Ld)
    if level is not None:
        raw(a, "v_mov_b32 v7, %d" % level)
        raw(a, "ds_write_b32 %s, v7" % vaddr)
    raw(a, "%s:" % L)


def lds_wait(a, level):
    Lp, Ld = a.label("wl"), a.label("wd")
    raw(a, "s_mov_b32 s3, 2000000")
    raw(a, "%s:" % Lp)
    raw(a, "ds_read_b32 v31, v30")
    raw(a, "s_waitcnt lgkmcnt(0)")
    raw(a, "v_readfirstlane_b32 s66, v31")
    raw(a, "s_sub_u32 s3, s3, 1")
    raw(a, "s_cbranch_scc1 %s" % Ld)
    raw(a, "s_nop 0")
    raw(a, "s_cmp_lt_u32 s66, %d" % level)
    raw(a, "s_cbranch_scc1 %s" % Lp)
    raw(a, "%s:" % Ld)


D_HR = 98304


def phase_D(a, epi, emit, pub_stage):
    a("; ---------------- C->D ----------------")
    ep = epi(7)
    emit(ep.pop(0))
    a.wait_tag(("hh", 2), lg0=True)
    lead_check(a, "s67", 0x3fff3fff, 0)
    a("s_barrier")
    pub_stage(2)
    for x in ep:
        emit(x)
    stamp(a, "C last store")
    a("s_setprio 0")
    ACCS, AF, NR = [144, 160], 176, 12
    DLA = DLAV
    FT, FS, OUTR = 32, 48, 50

    def hh_load(k):
        rt, i = k // 7, k % 7
        a("buffer_load_dwordx4 %s, v%d, %s, s68 offen offset:%d%s" % (vr(AF + 4 * (k % NR)), 14 if i < 4 else 16, SWS, (i & 3) * 1024, "" if "hhplain" in OPT else SC))
        if i == 6:
            a("s_add_u32 s68, s68, %d" % (2 * 57344))

    a("v_add_u32 v16, 4096, v14")
    for k in range(DPRE):
        hh_load(k)
    a.wait_tag(("wd", 3))
    for x in wd_reads(3, C_S0 - 65536):
        a(x)
    for t in range(4):
        a("v_subrev_u32 v%d, 65536, v%d" % (8 + t, 8 + t))
    for x in wd_reads(4, 0) + wd_reads(5, 32768):
        a(x)
    for t in range(4):
        a("v_add_u32 v%d, 65536, v%d" % (8 + t, 8 + t))
    a("v_lshrrev_b32 v18, 5, v1")
    a("s_lshl_b32 %s, %s, 1" % (sT, sW))
    a("v_add_u32 v18, %s, v18" % sT)
    a("v_and_b32 v19, 31, v1")
    a("v_lshrrev_b32 v20, 2, v19")
    a("v_lshlrev_b32 v20, 8, v20")
    a("v_lshl_add_u32 v20, v18, 4, v20")
    a("v_lshl_add_u32 v20, v5, 2, v20")
    a("v_add_u32 v20, %d, v20" % D_HR)
    a("v_mul_u32_u24 v21, 1792, v18")
    a("v_lshl_add_u32 v21, v19, 2, v21")
    a("v_lshrrev_b32 v22, 1, v19")
    a("v_add_u32 v23, v22, v18")
    a("v_and_b32 v23, 15, v23")
    a("v_lshlrev_b32 v23, 4, v23")
    a("v_lshl_add_u32 v22, v22, 8, v23")
    a("v_and_b32 v23, 1, v19")
    a("v_lshl_add_u32 v22, v23, 3, v22")
    a("v_add_u32 v23, v2, v3")
    a("v_lshl_add_u32 v28, v2, 8, s63")
    for t in range(4):
        a("v_add_u32 v29, %d, v23" % (4 * t))
        a("v_and_b32 v29, 15, v29")
        a("v_lshl_add_u32 v%d, v29, 4, v28" % (24 + t))
    a.wait_tag(("hh", 3), lg0=True)
    a("s_barrier")
    pub_stage(3)
    stamp(a, "C flag")
    for k in range(DPRE, DLA):
        hh_load(k)
    a("s_add_u32 m0, %s, %d" % (sW1024, D_HR))
    a("buffer_load_dwordx4 v14, %s, s69 offen%s lds" % (SWS, SC), tag="hr")
    wd6 = wd_dma_groups(6, 65536)

    def writes(rt):
        return ["ds_write_b128 v%d, %s offset:%d" % (24 + t, vr(ACCS[rt & 1] + 4 * t), (rt & 1) * 32768 + t * 1024) for t in range(4)]

    def fin(rt):
        o = ["ds_read_b32 v%d, v20 offset:%d" % (FS + 1, rt * 2048)]
        for p in range(8):
            o.append("ds_read_b64 %s, v22 offset:%d" % (vr(FT + 2 * p, 2), (rt & 1) * 32768 + p * 4096))
        o.append("v_lshlrev_b32 v%d, 16, v%d" % (FS, FS + 1))
        o.append("v_and_b32 v%d, 0xffff0000, v%d" % (FS + 1, FS + 1))
        for (d, x) in ((0, 2), (4, 6), (8, 10), (12, 14), (0, 4), (8, 12), (0, 8)):
            o.append("v_add_f32 v%d, v%d, v%d" % (FT + d, FT + d, FT + x))
            o.append("v_add_f32 v%d, v%d, v%d" % (FT + d + 1, FT + d + 1, FT + x + 1))
        o.append("v_add_f32 v%d, v%d, v%d" % (FS, FS, FT))
        o.append("v_add_f32 v%d, v%d, v%d" % (FS + 1, FS + 1, FT + 1))
        o.append("v_cvt_pk_bf16_f32 v%d, v%d, v%d" % (OUTR + rt, FS, FS + 1))
        o.append("buffer_store_dword v%d, v21, %s, s70 offen%s" % (OUTR + rt, SOUT, OUTSC))
        o.append("s_add_u32 s70, s70, %d" % (32 * 896))
        return o

    nl = [DLA]
    BI = DBI
    wpos = {3: [(0, 3), (1, 1), (1, 3), (2, 1)], 4: [(0, 3), (1, 3), (2, 3), (3, 1)], 2: [(1, 0), (1, 1), (1, 2), (1, 3)]}[BI]
    fn = []
    for rt in range(4):
        wr = writes(rt - 1) if rt else []
        for i in range(7):
            k = rt * 7 + i
            if k < 2:
                emit_group(a, wd6[2 * k])
                emit_group(a, wd6[2 * k + 1])
            if k == 5:
                a.wait_tag(("wd", 6))
                for x in wd_reads(6, 0):
                    a(x)
            if k in (3 + BI, 10 + BI):
                lead_issue(a, "s67")
            if rt and i == BI:
                for x in fn:
                    a(x)
                if rt == 1:
                    lead_check(a, "s67", 0, 0x3fff)
                if rt == 2:
                    lead_check(a, "s67", 0, 0x3fff0000)
                a("s_waitcnt lgkmcnt(0)")
                if "dnobar" not in OPT:
                    a("s_barrier")
                fn = fin(rt - 1)
            lim = 14 if k < 7 + BI else (21 if k < 14 + BI else 28)
            n_iss = 0
            while nl[0] < min(lim, k + DLA + 1) and n_iss < 2:
                if "dnoload" not in OPT:
                    hh_load(nl[0])
                nl[0] += 1
                n_iss += 1
            for t in range(4):
                if not ("dnomfma" in OPT and t):
                    a(mfma(ACCS[rt & 1] + 4 * t, WDF[i] + 4 * t, AF + 4 * (k % NR), "0" if i == 0 else None))
                if "dnored" in OPT:
                    wr, fn = [], []
                if wr and (i, t) in wpos:
                    a(wr.pop(0))
                for _ in range(2):
                    if fn:
                        a(fn.pop(0))
    for x in fn:
        a(x)
    stamp(a, "D mfma done")
    for x in writes(3):
        a(x)
    a("s_waitcnt lgkmcnt(0)")
    a("s_barrier")
    for x in fin(3):
        a(x)
    stamp(a, "D out stored")


HEADER = open("cdna_kernels/%s.s.ref" % NAME).read().split("; Override launch")[0]


def build():
    n = NAME + "_kernel"
    out = HEADER
    out += "; @launch grid=(256,1,1) block=(512,1,1) lds=163840\n"
    out += '.amdgcn_target "amdgcn-amd-amdhsa--gfx950"\n.text\n'
    a = Asm()
    prologue(a)
    phase_A(a)
    phase_B(a)
    phase_D(a, *phase_C(a))
    a("Lfin:")
    stamp_flush(a)
    a("Lend:")
    a("s_endpgm")
    a("Lcode_end:")
    body = a.render()
    out += ".globl %s\n.p2align 8\n.type %s,@function\n%s:\nLcode_begin:\n%s" % (n, n, n, body)

    out += '.section .rodata,"a"\n.p2align 6\n'
    out += """.amdhsa_kernel %s
  .amdhsa_next_free_vgpr 256
  .amdhsa_next_free_sgpr 102
  .amdhsa_accum_offset 256
  .amdhsa_group_segment_fixed_size 0
  .amdhsa_kernarg_size 80
  .amdhsa_user_sgpr_count 2
  .amdhsa_user_sgpr_kernarg_segment_ptr 1
  .amdhsa_system_sgpr_workgroup_id_x 1
.end_amdhsa_kernel
""" % n
    return out


if __name__ == "__main__":
    dst = sys.argv[1] if len(sys.argv) > 1 else "cdna_kernels/%s.s" % NAME
    STAMPS = "stamps" in sys.argv
    OPT = set(sys.argv[2:])
    for o in sys.argv[2:]:
        if "=" in o:
            globals()[o.split("=")[0]] = int(o.split("=")[1])
    txt = build()
    import subprocess, re
    open("_sz.s", "w").write(txt.replace("CODE_BYTES", "0x12345"))
    subprocess.check_call(["clang", "-x", "assembler", "-target", "amdgcn-amd-amdhsa", "-mcpu=gfx950", "-c", "_sz.s", "-o", "_sz.o"])
    sym = subprocess.check_output(["llvm-objdump", "-t", "_sz.o"]).decode()
    end = int(re.search(r"([0-9a-f]+) .*Lcode_end", sym).group(1), 16)
    print("code bytes", end)
    open(dst, "w").write(txt.replace("CODE_BYTES", str((end - 64) & ~3)))
    print("wrote", dst)
```

```python
import sys, struct
sys.path.insert(0, "dev")
from asmlib import Asm, Ins

NAME = "sequential_preLN__sliding_local_dilated__glu_gated_glu__prompt"

WS_O = 0
WS_H = 2 << 20
WS_ST = 4 << 20
WS_HH = 8 << 20
WS_FA = 16 << 20
WS_FB = WS_FA + 8192
WS_FC = WS_FA + 16384
WS_TS = 20 << 20
WS_SIZE = 32 << 20

SX, SWQKV, SWO, SWG, SWU, SWD, SOUT, SWS, SDBG = [("s[%d:%d]" % (b, b + 3)) for b in range(8, 44, 4)]
sW, sXC, sJ, sNONCE = "s44", "s45", "s46", "s47"
sT, sT2, sT3 = "s55", "s56", "s57"
sW1024 = "s53"
sRB, sCB, sRQ, sFS = "s84", "s85", "s86", "s87"
SC = " sc1"
OUTSC = "" if "outplain" in sys.argv else " sc1"
LOG2E = 1.4426950408889634
STAMPS = False
OPT = set()
NSTAMP = [0]
ASPACE = 3
WOPRE = 28
DPRE = 4
DLAV = 5
DBI = 3
HSLEEP = 4
TCH = 3
TCU = 7
TCD = 7
ROTM = 1


def f2u(x):
    return struct.unpack("<I", struct.pack("<f", x))[0]


def vr(b, n=4):
    return "v[%d:%d]" % (b, b + n - 1)


def mfma(acc, A, B, C=None):
    return "v_mfma_f32_16x16x32_bf16 %s, %s, %s, %s" % (vr(acc), vr(A), vr(B), vr(acc) if C is None else C)


def raw(a, text):
    for line in text.split("\n"):
        line = line.strip()
        if not line:
            continue
        if line.endswith(":"):
            a.items.append(("l", line))
        else:
            a.items.append(("i", Ins(line)))


AMP = None


def stamp(a, name):
    if AMP is not None and name == AMP:
        a("s_memrealtime s[100:101]")
        a("s_waitcnt lgkmcnt(0)")
        a("s_mov_b32 s71, s100")
    if STAMPS:
        i = NSTAMP[0]
        NSTAMP[0] += 1
        a("; STAMP %d %s" % (i, name))
        a("s_memrealtime s[100:101]")
        a("s_memtime s[72:73]")
        a("s_waitcnt lgkmcnt(0)")
        a("v_writelane_b32 v15, s100, %d" % i)
        a("v_writelane_b32 v15, s72, %d" % (32 + i))


def stamp_flush(a):
    if STAMPS:
        a("s_lshl_b32 s3, s2, 3")
        a("s_add_u32 s3, s3, %s" % sW)
        a("s_lshl_b32 s3, s3, 8")
        a("s_add_u32 s3, s3, %d" % WS_TS)
        a("v_lshlrev_b32 v7, 2, v1")
        a("buffer_store_dword v15, v7, %s, s3 offen" % SWS)
        if "dbgout" in OPT:
            a("s_cmp_lg_u32 s2, 100")
            a("s_cbranch_scc1 Lend")
            a("s_cmp_lg_u32 %s, 3" % sW)
            a("s_cbranch_scc1 Lend")
            sel = [0, 2, 3, 5, 6, 8, 9, 10, 12, 13, 14, 16, 18, 19, 20]
            a("v_mov_b32 v7, 0")
            for i, st in enumerate(sel):
                a("v_readlane_b32 s3, v15, %d" % st)
                a("s_sub_u32 s3, s3, %s" % sNONCE)
                a("v_mov_b32 v6, s3")
                a("buffer_store_dword v6, v7, %s, 0 offen offset:%d" % (SDBG, 4 + 4 * i))


def xg_reduce_multi(a, op, xs, ts):
    for step in ("v_permlane32_swap_b32", "v_permlane16_swap_b32"):
        for x, t in zip(xs, ts):
            a("v_mov_b32 %s, %s" % (t, x))
        for x, t in zip(xs, ts):
            a("%s %s, %s" % (step, t, x))
        for x, t in zip(xs, ts):
            a("%s %s, %s, %s" % (op, x, x, t))


def publish(a, soff):
    L = a.label("pub")
    raw(a, "s_cmp_lg_u32 %s, 0" % sW)
    raw(a, "s_cbranch_scc1 %s" % L)
    raw(a, "s_mov_b64 exec, 1")
    raw(a, "v_mov_b32 v6, %s" % sNONCE)
    raw(a, "v_mov_b32 v7, 0")
    raw(a, "buffer_store_dword v6, v7, %s, %s offen sc1" % (SWS, soff))
    raw(a, "s_mov_b64 exec, -1")
    raw(a, "%s:" % L)


def poll(a, soff, mask_lo, mask_hi, sleep=0):
    L, Lp, Ld = a.label("skip"), a.label("poll"), a.label("done")
    raw(a, "s_cmp_lg_u32 %s, 0" % sW)
    raw(a, "s_cbranch_scc1 %s" % L)
    raw(a, "v_lshlrev_b32 v7, 2, v1")
    raw(a, "s_mov_b32 exec_lo, 0x%x" % mask_lo)
    raw(a, "s_mov_b32 exec_hi, 0x%x" % mask_hi)
    raw(a, "s_mov_b32 s3, 400000")
    raw(a, "%s:" % Lp)
    if sleep:
        raw(a, "s_sleep %d" % sleep)
    raw(a, "buffer_load_dword v6, v7, %s, %s offen sc1" % (SWS, soff))
    raw(a, "s_waitcnt vmcnt(0)")
    raw(a, "v_cmp_ne_u32 vcc, %s, v6" % sNONCE)
    raw(a, "s_sub_u32 s3, s3, 1")
    raw(a, "s_cbranch_scc1 %s" % Ld)
    raw(a, "s_nop 1")
    raw(a, "s_cmp_lg_u64 vcc, 0")
    raw(a, "s_cbranch_scc1 %s" % Lp)
    raw(a, "%s:" % Ld)
    raw(a, "s_mov_b64 exec, -1")
    raw(a, "%s:" % L)
    a("s_barrier")


def prologue(a):
    a("s_load_dwordx16 s[64:79], s[0:1], 0")
    a("s_load_dwordx4 s[80:83], s[0:1], 64")
    a("s_memrealtime s[4:5]")
    a("s_cmp_ge_u32 s2, 256")
    a("s_cbranch_scc1 Lend")
    a("s_getpc_b64 s[6:7]")
    a("v_and_b32 v1, 63, v0")
    a("v_lshrrev_b32 v6, 6, v0")
    a("v_lshrrev_b32 v2, 4, v1")
    a("v_readfirstlane_b32 %s, v6" % sW)
    a("v_and_b32 v3, 15, v0")
    a("v_bfe_u32 v4, v0, 2, 2")
    a("v_and_b32 v5, 3, v0")
    if STAMPS:
        a("v_mov_b32 v15, 0")
    if "badmap" in OPT:
        a("s_lshr_b32 %s, s2, 5" % sXC)
        a("s_and_b32 %s, s2, 31" % sJ)
    else:
        a("s_and_b32 %s, s2, 7" % sXC)
        a("s_lshr_b32 %s, s2, 3" % sJ)
    a("v_lshlrev_b32 v6, 7, v0")
    a("v_min_u32 v6, CODE_BYTES, v6")
    a("s_cmp_gt_u32 %s, 3" % sW)
    a("s_cbranch_scc1 Lnopf")
    raw(a, "global_load_dword v7, v6, s[6:7]")
    a("Lnopf:")
    sizes = {8: 2048 * 896, 12: 448 * 2688, 16: 448 * 896, 20: 448 * 3584, 24: 448 * 3584,
             28: 1792 * 896, 32: 2048 * 896, 36: WS_SIZE, 40: 256}
    for b, sz in sizes.items():
        a("s_mov_b32 s%d, %d" % (b + 2, sz))
        a("s_mov_b32 s%d, 0x00020000" % (b + 3))
    a("s_lshl_b32 %s, %s, 10" % (sW1024, sW))


def prologue2(a):
    a("s_waitcnt lgkmcnt(0)")
    src = {8: 64, 12: 66, 16: 68, 20: 72, 24: 74, 28: 76, 32: 78, 36: 82, 40: 80}
    for b, s in src.items():
        a("s_mov_b64 s[%d:%d], s[%d:%d]" % (b, b + 1, s, s + 1))


def nonce_publish(a):
    a("s_or_b32 s3, s2, %s" % sW)
    a("s_cmp_lg_u32 s3, 0")
    a("s_cbranch_scc1 Lnononce")
    raw(a, "s_or_b32 s3, s4, 1")
    if any(o.startswith("thr") for o in OPT):
        raw(a, "s_getreg_b32 s5, hwreg(HW_REG_XCC_ID)")
        raw(a, "s_and_b32 s5, s5, 7")
        raw(a, "s_andn2_b32 s3, s4, 15")
        raw(a, "s_or_b32 s3, s3, s5")
        raw(a, "s_or_b32 s3, s3, 8")
    raw(a, "v_mov_b32 v8, s3")
    raw(a, "v_mov_b32 v9, 0")
    raw(a, "s_mov_b64 exec, 1")
    raw(a, "buffer_store_dword v8, v9, %s, 0 offen sc1" % SDBG)
    raw(a, "s_mov_b64 exec, -1")
    a("Lnononce:")


def nonce_fetch(a, vN):
    L, Lp = a.label("nskip"), a.label("npoll")
    a("v_readfirstlane_b32 %s, %s" % (sNONCE, vN))
    raw(a, "s_nop 1")
    raw(a, "s_cmp_lg_u32 %s, 0" % sNONCE)
    raw(a, "s_cbranch_scc1 %s" % L)
    raw(a, "s_mov_b32 s3, 400000")
    raw(a, "v_mov_b32 v7, 0")
    raw(a, "%s:" % Lp)
    raw(a, "buffer_load_dword v6, v7, %s, 0 offen sc1" % SDBG)
    raw(a, "s_waitcnt vmcnt(0)")
    raw(a, "v_readfirstlane_b32 %s, v6" % sNONCE)
    raw(a, "s_sub_u32 s3, s3, 1")
    raw(a, "s_cbranch_scc1 %s" % L)
    raw(a, "s_nop 1")
    raw(a, "s_cmp_eq_u32 %s, 0" % sNONCE)
    raw(a, "s_cbranch_scc1 %s" % Lp)
    raw(a, "%s:" % L)
    raw(a, "s_nop 3")


def touch(a, jobs):
    Lend = a.label("tend")
    for (w, srd, n) in jobs:
        L = a.label("tn")
        raw(a, "s_cmp_lg_u32 %s, %d" % (sW, w))
        raw(a, "s_cbranch_scc1 %s" % L)
        raw(a, "s_mul_i32 s3, s2, %d" % (n * 128))
        raw(a, "v_min_u32 v6, %d, v1" % (n - 1))
        raw(a, "v_lshlrev_b32 v6, 7, v6")
        raw(a, "buffer_load_dword v7, v6, %s, s3 offen" % srd)
        raw(a, "s_branch %s" % Lend)
        raw(a, "%s:" % L)
    raw(a, "%s:" % Lend)


A_SLOT = 34816
A_XOFF = 24576
A_EX = 2 * A_SLOT
A_ST = 4 * A_SLOT
R0, R1, R2 = 0, 57344, 139264
B_RB = R2
C_ST = 149504

vWO_DMA, vWC_DMA, vWC_TR = "v176", "v177", 178
WGF, WUF = 80, 136
WOF = 128


def roles_BCD(a):
    a("s_mul_i32 %s, %s, 37" % (sRB, sJ))
    a("s_lshr_b32 %s, %s, 8" % (sRB, sRB))
    a("s_mul_i32 %s, %s, 7" % (sCB, sRB))
    a("s_sub_u32 %s, %s, %s" % (sCB, sJ, sCB))
    a("s_lshr_b32 %s, %s, 1" % (sT, sXC))
    a("s_lshl_b32 %s, %s, 2" % (sT, sT))
    a("s_add_u32 %s, %s, %s" % (sRQ, sRB, sT))
    a("s_and_b32 %s, %s, 1" % (sT, sXC))
    a("s_mul_i32 %s, %s, 7" % (sT, sT))
    a("s_add_u32 %s, %s, %s" % (sFS, sCB, sT))
    a("s_lshl_b32 %s, %s, 2" % (sT, sXC))
    a("s_add_u32 %s, %s, %s" % (sRB, sRB, sT))


def wo_dma(a, i0, i1, vaddr):
    for i in range(i0, i1):
        a("s_add_u32 m0, %s, %d" % (sW1024, R0 + i * 8192))
        a("s_mov_b32 %s, %d" % (sT, i * 64 * 896))
        a("buffer_load_dwordx4 %s, %s, %s offen lds" % (vaddr, SWO, sT), tag="wo")


def wc_dma(a, slabs, vaddr, tag):
    for (s, base) in slabs:
        a("s_add_u32 m0, %s, %d" % (sW1024, base))
        a("s_mov_b32 %s, %d" % (sT, (s % 14) * 114688))
        a("buffer_load_dwordx4 %s, %s, %s offen lds" % (vaddr, SWG if s < 14 else SWU, sT), tag=tag)


def wc_read(slabs, vtr):
    out = []
    for (s, base) in slabs:
        for hf in range(2):
            out.append("ds_read_b64_tr_b16 %s, v%d offset:%d" % (vr(WGF + 4 * s + 2 * hf, 2), vtr + base // 57344, base % 57344 + hf * 1024))
    return out


A_NM = A_ST
A_RHO = A_ST + 384


def phase_A(a):
    sTB, sHP, sT0, sTI, sHD = "s48", "s49", "s50", "s51", "s52"
    a("; ---------------- phase A ----------------")
    a("s_mul_i32 %s, %s, 37" % (sT, sJ))
    a("s_lshr_b32 %s, %s, 8" % (sT, sT))
    a("s_mul_i32 %s, %s, 7" % (sT2, sT))
    a("s_sub_u32 %s, %s, %s" % (sT2, sJ, sT2))
    a("s_add_u32 %s, %s, 1" % (sHP, sT2))
    a("s_cmp_lt_u32 %s, 28" % sJ)
    a("s_cselect_b32 %s, %s, 0" % (sHP, sHP))
    a("s_cselect_b32 %s, %s, %s" % (sT, sT, sT2))
    a("s_lshl_b32 %s, %s, 2" % (sTB, sXC))
    a("s_add_u32 %s, %s, %s" % (sTB, sTB, sT))
    a("s_lshl_b32 %s, %s, 6" % (sT0, sTB))
    a("s_and_b32 %s, %s, 3" % (sTI, sW))
    a("s_lshr_b32 %s, %s, 2" % (sHD, sW))
    a("v_lshrrev_b32 v12, 3, v1")
    a("v_and_b32 v13, 7, v1")
    a("v_lshlrev_b32 v14, 4, v1")
    ONES = 20
    BP, BC = 76, 80

    def slot(ch):
        return (ch + 1) % 4

    def common_setup(a):
        a("v_lshlrev_b32 v8, 2, v2")
        a("v_sub_u32 v9, v3, v8")
        a("s_lshl_b32 %s, %s, 2" % (sT, sTB))
        a("s_add_u32 %s, %s, %s" % (sT, sT, sTI))
        a("s_cmp_lt_u32 %s, 2" % sT)
        a("s_cselect_b32 %s, 0x10000, 0" % sT2)
        a("v_mov_b32 v11, 0x%x" % f2u(-1e30))
        for rr in range(4):
            a("v_subrev_u32 v10, %d, v9" % rr)
            a("v_cmp_gt_u32 vcc, 8, v10")
            a("v_cndmask_b32 v%d, v11, 0, vcc" % (BC + rr))
            a("v_add_u32 v10, 16, v10")
            a("v_add_u32 v10, %s, v10" % sT2)
            a("v_cmp_gt_u32 vcc, 8, v10")
            a("v_cndmask_b32 v%d, v11, 0, vcc" % (BP + rr))
        a("v_cmp_gt_u32 s[94:95], 3, v2")
        a("s_mul_i32 %s, %s, 3072" % (sT2, sHD))
        a("s_add_u32 %s, %s, %d" % (sT2, sT2, A_EX))
        a("s_mul_i32 %s, %s, 6144" % (sT, sTI))
        a("s_add_u32 %s, %s, %s" % (sT, sT, sT2))
        a("v_lshl_add_u32 v32, v1, 3, %s" % sT)
        a("v_lshl_add_u32 v9, v2, 2, v4")
        a("v_lshl_add_u32 v10, v5, 4, v9")
        a("v_lshl_add_u32 v33, v10, 3, %s" % sT)
        a("s_sub_u32 %s, %s, 12288" % (sT, sT))
        a("s_add_u32 %s, %s, %d" % (sT2, sT2, 4 * 6144))
        a("s_lshl_b32 s97, %s, 3" % sTI)
        a("s_lshl_b32 %s, %s, 6" % (sT3, sTI))
        a("s_add_u32 %s, %s, %d" % (sT3, sT3, A_RHO))
        a("v_lshl_add_u32 v36, v3, 2, %s" % sT3)
        a("v_lshl_add_u32 v37, v2, 4, %s" % sT3)
        a("s_sub_u32 %s, %s, 128" % (sT3, sT3))
        a("s_cmp_lt_u32 %s, 2" % sTI)
        a("s_cselect_b32 s96, 7, 15")
        a("s_cselect_b32 s97, s97, 0")
        a("s_cselect_b32 %s, %s, %s" % (sT, sT2, sT))
        a("s_cselect_b32 %s, %d, %s" % (sT3, A_RHO + 256, sT3))
        a("v_and_b32 v9, s96, v9")
        a("v_add_u32 v9, s97, v9")
        a("v_lshl_add_u32 v10, v5, 4, v9")
        a("v_lshl_add_u32 v34, v10, 3, %s" % sT)
        a("v_and_b32 v9, s96, v8")
        a("v_add_u32 v9, s97, v9")
        a("v_lshl_add_u32 v38, v9, 2, %s" % sT3)
        a("v_and_b32 v9, s96, v3")
        a("v_add_u32 v9, s97, v9")
        a("v_lshl_add_u32 v10, v2, 4, v9")
        a("v_lshl_add_u32 v35, v10, 3, %s" % sT)
        a("s_lshl_b32 %s, %s, 2" % (sT, sTB))
        a("s_add_u32 %s, %s, %s" % (sT, sT, sTI))
        a("s_lshl_b32 %s, %s, 4" % (sT, sT))
        a("s_lshl_b32 %s, %s, 1" % (sT2, sHP))
        a("s_add_u32 %s, %s, %s" % (sT, sT, sT2))
        a("s_add_u32 %s, %s, %s" % (sT, sT, sHD))
        a("s_lshl_b32 s98, %s, 10" % sT)
        a("s_lshl_b32 %s, %s, 7" % (sT, sTB))
        a("s_lshl_b32 %s, %s, 2" % (sT2, sHP))
        a("s_add_u32 %s, %s, %s" % (sT, sT, sT2))
        a("s_add_u32 s99, %s, %d" % (sT, WS_FA))
        roles_BCD(a)
        a("s_bfe_u32 %s, %s, 0x10001" % (sT, sW))
        a("s_lshl_b32 %s, %s, 3" % (sT, sT))
        a("v_lshl_or_b32 v8, v2, 1, %s" % sT)
        a("v_xor_b32 v8, v8, v3")
        a("s_lshl_b32 %s, %s, 2" % (sT, sW))
        a("v_add_u32 v9, %s, v2" % sT)
        a("v_mul_u32_u24 v9, 3584, v9")
        a("v_lshl_add_u32 v9, v8, 4, v9")
        a("s_lshl_b32 %s, %s, 8" % (sT, sFS))
        a("v_add_u32 v16, %s, v9" % sT)
        a("v_lshl_add_u32 v8, v2, 2, v4")
        a("s_mul_i32 %s, %s, 224" % (sT, sHD))
        a("v_add_u32 v8, %s, v8" % sT)
        a("v_lshlrev_b32 v8, 7, v8")
        a("v_and_b32 v9, 2, v4")
        a("v_lshlrev_b32 v9, 1, v9")
        a("s_lshl_b32 %s, %s, 2" % (sT, sHD))
        a("v_or_b32 v10, %s, v5" % sT)
        a("v_xor_b32 v10, v10, v9")
        a("v_lshl_add_u32 v28, v10, 4, v8")
        a("v_xor_b32 v29, 64, v28")
        a("v_mov_b32 v9, 2048")
        a("v_cndmask_b32 v9, 0, v9, s[94:95]")
        a("v_add_u32 v30, v28, v9")
        a("v_add_u32 v31, v29, v9")

    RQ, RC, RP = 39, 120, 124

    def rho_reads():
        a("ds_read_b32 v%d, v36" % RQ)
        a("ds_read_b128 %s, v37" % vr(RC))
        a("ds_read_b128 %s, v38" % vr(RP))

    a("s_cmp_lt_u32 %s, 4" % sW)
    a("s_cbranch_scc1 LAcons")
    sL2048, sL512 = "s54", "s65"
    vW0, vW1, vX0, vX1, vH, vWO = "v40", "v41", "v42", "v43", "v44", "v45"
    a("s_lshl_b32 %s, %s, 11" % (sL2048, sTI))
    a("v_and_b32 v8, 2, v12")
    a("v_xor_b32 v8, v8, v13")
    a("v_xor_b32 v10, 4, v8")
    a("v_min_u32 v8, 6, v8")
    a("v_min_u32 v10, 6, v10")
    a("s_lshl_b32 %s, %s, 4" % (sT, sTI))
    a("v_add_u32 v9, %s, v12" % sT)
    a("v_mul_u32_u24 v9, 2688, v9")
    a("s_mul_i32 %s, %s, 112" % (sT, sHP))
    a("v_add_u32 v9, %s, v9" % sT)
    a("v_lshl_add_u32 %s, v8, 4, v9" % vW0)
    a("v_add_u32 v9, %d, v9" % (8 * 2688))
    a("v_lshl_add_u32 %s, v10, 4, v9" % vW1)
    a("s_lshr_b32 %s, %s, 1" % (sT2, sTI))
    a("s_and_b32 %s, %s, 1" % (sT3, sTI))
    a("s_lshl_b32 %s, %s, 5" % (sT, sT2))
    a("s_add_u32 %s, %s, %s" % (sT, sT, sT0))
    a("s_add_u32 %s, %s, %s" % (sT, sT, sT3))
    a("v_lshl_add_u32 v9, v12, 1, %s" % sT)
    a("v_mul_u32_u24 v9, 896, v9")
    a("v_lshrrev_b32 v8, 1, v12")
    a("v_xor_b32 v8, v8, v13")
    a("v_lshl_add_u32 %s, v8, 4, v9" % vX0)
    a("v_xor_b32 v8, 4, v8")
    a("v_add_u32 v9, %d, v9" % (16 * 896))
    a("v_lshl_add_u32 %s, v8, 4, v9" % vX1)
    a("s_lshl_b32 %s, %s, 3" % (sT, sT3))
    a("s_add_u32 %s, %s, %s" % (sT, sT, sT2))
    a("s_add_u32 %s, %s, %s" % (sT, sT, sT0))
    a("s_sub_u32 %s, %s, 16" % (sT, sT))
    a("v_and_b32 v8, 3, v12")
    a("v_lshl_add_u32 v9, v8, 1, %s" % sT)
    a("v_max_i32 v9, 0, v9")
    a("v_mul_u32_u24 v9, 896, v9")
    a("v_lshrrev_b32 v8, 1, v8")
    a("s_lshl_b32 %s, %s, 1" % (sT, sTI))
    a("v_add_u32 v8, %s, v8" % sT)
    a("v_xor_b32 v8, v8, v13")
    a("v_lshl_add_u32 %s, v8, 4, v9" % vH)
    a("s_mov_b32 s59, 0")
    a("s_cmp_eq_u32 %s, 0" % sTI)
    a("s_cselect_b32 s58, 0xffffff00, -1")
    prologue2(a)
    a("s_lshl_b32 %s, %s, 9" % (sL512, sTI))
    if "rot" not in OPT:
        a("s_mov_b32 s67, 0")
    else:
        a("s_lshr_b32 s67, %s, 3" % sJ)
        a("s_lshl_b32 s67, s67, 1")
        a("s_mul_i32 %s, %s, %d" % (sT, sHP, ROTM))
        a("s_add_u32 s67, s67, %s" % sT)
        a("s_mul_i32 %s, s67, 37" % sT)
        a("s_lshr_b32 %s, %s, 8" % (sT, sT))
        a("s_mul_i32 %s, %s, 7" % (sT, sT))
        a("s_sub_u32 s67, s67, %s" % sT)
        a("s_lshl_b32 s67, s67, 7")

    def dma(ch, fill=()):
        fill = list(fill)
        per = (len(fill) + 8) // 9

        def f():
            for _ in range(per):
                while fill:
                    x = fill.pop(0)
                    a(x)
                    if not (fill and fill[0].startswith(("s_cselect", "v_cndmask"))):
                        break

        sb = slot(ch) * A_SLOT
        if ch:
            a("s_add_u32 s67, s67, 128")
            a("s_cmp_eq_u32 s67, 896")
            a("s_cselect_b32 s67, 0, s67")
        a("s_add_u32 m0, %s, %d" % (sL512, sb + A_XOFF + 8192))
        a("s_mov_b64 exec, s[58:59]")
        a("buffer_load_dwordx4 %s, %s, s67 offen lds" % (vH, SX), tag=("AX", ch))
        a("s_mov_b64 exec, -1")
        for i, v in enumerate((vX0, vX1)):
            a("s_add_u32 m0, %s, %d" % (sL2048, sb + A_XOFF + i * 1024))
            a("buffer_load_dwordx4 %s, %s, s67 offen lds" % (v, SX), tag=("AX", ch))
            f()
        a("s_mul_i32 s64, s67, 1344")
        for m in range(3):
            for i, v in enumerate((vW0, vW1)):
                a("s_add_u32 m0, %s, %d" % (sL2048, sb + m * 8192 + i * 1024 - m * 896))
                a("buffer_load_dwordx4 %s, %s, s64 offen offset:%d lds" % (v, SWQKV, m * 896), tag=("A", ch))
                f()
        for x in fill:
            a(x)

    a("s_setprio 3")
    stamp(a, "A start")
    dma(0)
    for i in range(4):
        a("v_mov_b32 v%d, 0x3f803f80" % (ONES + i))
    a("v_and_b32 v8, 3, v12")
    a("v_mul_u32_u24 v8, %d, v8" % A_SLOT)
    a("v_lshl_add_u32 v8, v13, 4, v8")
    a("ds_write_b128 v8, %s offset:%d" % (vr(ONES), A_XOFF + 8192))
    ST = 48
    for i in range(6):
        a("v_mov_b32 v%d, 0" % (ST + i))
    a("s_add_u32 %s, %s, %d" % (sT, sL2048, A_XOFF))
    a("v_add_u32 v54, %s, v14" % sT)
    a("v_add_u32 v55, %d, v54" % (2 * A_SLOT))
    a("s_add_u32 %s, %s, %d" % (sT, sL512, A_XOFF + 8192))
    a("v_add_u32 v56, %s, v14" % sT)
    a("v_add_u32 v57, %d, v56" % (2 * A_SLOT))
    dma(1)
    SR = 84

    def stats_rd(ch):
        sl = slot(ch)
        ib = (sl & 1) * A_SLOT
        a.wait_tag(("AX", ch))
        a("ds_read_b128 %s, v%d offset:%d" % (vr(SR), 54 + (sl >> 1), ib))
        a("ds_read_b128 %s, v%d offset:%d" % (vr(SR + 4), 54 + (sl >> 1), ib + 1024))
        a("ds_read_b128 %s, v%d offset:%d" % (vr(SR + 8), 56 + (sl >> 1), ib))

    def dots():
        o = []
        for i in range(4):
            for k in range(3):
                o.append("v_dot2c_f32_bf16 v%d, v%d, v%d" % (ST + 2 * k, SR + 4 * k + i, ONES))
                o.append("v_dot2c_f32_bf16 v%d, v%d, v%d" % (ST + 2 * k + 1, SR + 4 * k + i, SR + 4 * k + i))
        return o

    class Rec:
        def __init__(self):
            self.l = []

        def __call__(self, x, tag=None):
            self.l.append(x)

    def pieces(fn, n):
        rec = Rec()
        fn(rec)
        late, out = rec.l, []
        for k in range(n):
            nl = (len(late) + n - k - 1) // (n - k)
            while nl < len(late) and late[nl].startswith(("s_cselect", "v_cndmask")):
                nl += 1
            out.append(late[:nl])
            late = late[nl:]
        return out

    cs = pieces(common_setup, 4) + [[], []]
    stats_rd(0)
    for x in dots():
        a(x)
    for ch in range(6):
        a.wait_tag(("A", ch), lg0=True)
        a("s_barrier")
        if ch + 2 <= 6:
            stats_rd(ch + 1)
            dma(ch + 2, cs[ch] + dots())
        if ch == 3:
            a("v_and_b32 v8, 2, v12")
            a("v_lshlrev_b32 v8, 1, v8")
            a("v_xor_b32 v8, v8, v13")
            a("s_lshl_b32 %s, %s, 3" % (sT, sTI))
            a("v_add_u32 v9, %s, v12" % sT)
            a("v_mul_u32_u24 v9, 896, v9")
            a("v_lshl_add_u32 v9, v8, 4, v9")
            a("s_lshl_b32 %s, %s, 7" % (sT, sCB))
            a("v_add_u32 %s, %s, v9" % (vWO, sT))
            a("s_lshl_b32 s66, %s, 10" % sTI)
            a("s_lshl_b32 %s, %s, 6" % (sT, sTI))
            a("s_add_u32 %s, %s, %d" % (sT, sT, A_NM))
            a("v_lshl_add_u32 v46, v12, 2, %s" % sT)
            a("s_lshl_b32 %s, %s, 4" % (sT, sTI))
            a("s_add_u32 %s, %s, %d" % (sT, sT, A_NM + 256))
            a("v_lshl_add_u32 v47, v12, 2, %s" % sT)
            a("v_mov_b32 v6, 0")
            a("buffer_load_dword v17, v6, %s, 0 offen sc1" % SDBG)

    def wo_dma(i0, i1):
        for i in range(i0, i1):
            a("s_add_u32 m0, s66, %d" % (R0 + i * 4096))
            a("s_mov_b32 s64, %d" % (i * 32 * 896))
            a("buffer_load_dwordx4 %s, %s, s64 offen lds" % (vWO, SWO), tag="wo")

    stats_rd(6)
    wo_dma(0, 3)
    for x in dots():
        a(x)
    a("s_nop 2")
    for ctl in ("quad_perm:[1,0,3,2]", "quad_perm:[2,3,0,1]", "row_half_mirror"):
        for x in range(6):
            a("v_add_f32_dpp v%d, v%d, v%d %s row_mask:0xf bank_mask:0xf" % (ST + x, ST + x, ST + x, ctl))
    a("s_mov_b32 %s, 0x%x" % (sT, f2u(1.0 / 448)))
    a("v_mov_b32 v8, 0x%x" % f2u(1e-5))
    for k in range(3):
        a("v_mul_f32 v%d, -%s, v%d" % (ST + 2 * k, sT, ST + 2 * k))
        a("v_fma_f32 v%d, v%d, %s, v8" % (ST + 2 * k + 1, ST + 2 * k + 1, sT))
    for k in range(3):
        a("v_fma_f32 v%d, -v%d, v%d, v%d" % (ST + 2 * k + 1, ST + 2 * k, ST + 2 * k, ST + 2 * k + 1))
    for k in range(3):
        a("v_max_f32 v%d, v%d, v8" % (ST + 2 * k + 1, ST + 2 * k + 1))
    for k in range(3):
        a("v_rsq_f32 v%d, v%d" % (ST + 2 * k + 1, ST + 2 * k + 1))
    a("ds_write_b32 v46, v%d" % ST)
    a("ds_write_b32 v46, v%d offset:32" % (ST + 2))
    a("ds_write_b32 v46, v%d offset:384" % (ST + 1))
    a("ds_write_b32 v46, v%d offset:416" % (ST + 3))
    a("s_mov_b32 exec_hi, 0")
    a("ds_write_b32 v47, v%d" % (ST + 4))
    a("ds_write_b32 v47, v%d offset:384" % (ST + 5))
    a("s_mov_b64 exec, -1")
    a.wait_tag(("A", 6), lg0=True)
    a("s_barrier")
    rho_reads()
    wo_dma(3, 14)
    a("s_waitcnt vmcnt(0) lgkmcnt(0)")
    a("s_setprio 0")
    a("s_branch LAjoin")

    a("LAcons:")
    a.vm, a.lg = [], []
    prologue2(a)
    nonce_publish(a)
    AD, NAD = 128, 5
    a("s_and_b32 s66, %s, 1" % sW)
    a("s_lshr_b32 s67, %s, 1" % sW)
    a("v_bfe_u32 v8, v3, 1, 3")
    a("v_xor_b32 v8, v8, v2")
    a("v_lshlrev_b32 v8, 4, v8")
    a("v_lshl_add_u32 v8, v3, 7, v8")
    a("v_add_u32 v%d, %d, v8" % (AD, A_XOFF))
    a("v_xor_b32 v%d, 64, v%d" % (AD + 1, AD))
    a("v_and_b32 v8, 2, v4")
    a("v_and_b32 v9, 1, v2")
    a("v_lshl_or_b32 v8, v9, 2, v8")
    a("v_lshlrev_b32 v8, 4, v8")
    a("v_lshl_add_u32 v9, v2, 3, v4")
    a("v_lshlrev_b32 v9, 7, v9")
    a("s_mul_i32 s68, s66, 3")
    a("s_mul_i32 %s, s67, 56" % sT2)
    for j in range(3):
        a("s_add_u32 %s, s68, %d" % (sT3, j))
        a("s_and_b32 %s, %s, 1" % (sT, sT3))
        a("s_lshl_b32 %s, %s, 5" % (sT, sT))
        a("s_add_u32 %s, %s, %s" % (sT, sT, sT2))
        a("v_lshl_add_u32 v10, v5, 3, %s" % sT)
        a("v_xor_b32 v10, v10, v8")
        a("s_lshr_b32 %s, %s, 1" % (sT, sT3))
        a("s_lshl_b32 %s, %s, 13" % (sT, sT))
        a("v_add3_u32 v%d, v10, v9, %s" % (AD + 2 + j, sT))
    for i in range(NAD):
        a("v_add_u32 v%d, %d, v%d" % (AD + NAD + i, 2 * A_SLOT, AD + i))
    a("s_mul_i32 %s, %s, 1536" % (sT, sW))
    a("s_add_u32 %s, %s, %d" % (sT, sT, A_EX))
    a("v_lshl_add_u32 v138, v1, 3, %s" % sT)
    a("v_lshlrev_b32 v139, 2, v3")
    a("v_add_u32 v139, %d, v139" % A_NM)
    if "touch0" in OPT:
        touch(a, [(2, SWQKV, 37), (3, SX, 56)])
    common_setup(a)
    if "notouch1" not in OPT:
        touch(a, [(2, SWQKV, 37), (3, SX, 56)])
    ACC = 140
    FB = [40, 84]
    NM = 200

    def reads(n):
        ch, ks = n >> 1, n & 1
        sl = slot(ch)
        ab = AD if sl < 2 else AD + NAD
        ib = (sl & 1) * A_SLOT
        fb = FB[ks]
        tr = lambda j, hf: "ds_read_b64_tr_b16 %s, v%d offset:%d" % (vr(fb + 20 + 4 * j + 2 * hf, 2), ab + 2 + j, ib + ks * 4096 + hf * 512)
        xr = lambda t: "ds_read_b128 %s, v%d offset:%d" % (vr(fb + 4 * t), ab + ks, ib + t * 2048)
        return [tr(0, 0), tr(0, 1), xr(4), xr(0), xr(1), xr(2), xr(3), tr(1, 0), tr(1, 1), tr(2, 0), tr(2, 1)]

    def compute(n):
        fb = FB[n & 1]
        z = "0" if n == 0 else None
        return [mfma(ACC + 20 * j + 4 * t, fb + 20 + 4 * j, fb + 4 * t, z) for j in range(3) for t in (4, 0, 1, 2, 3)]

    def norm(j):
        o = []
        for t in (0, 1, 2, 3, 4):
            acc = ACC + 20 * j + 4 * t
            for rr in range(4):
                o.append("v_fmac_f32_dpp v%d, v%d, v%d row_newbcast:0 row_mask:0xf bank_mask:0xf" % (acc + rr, ACC + 20 * j + 16 + rr, NM + t))
            pk = 208 + 2 * ((5 * j + t) % 4)
            o.append("v_cvt_pk_bf16_f32 v%d, v%d, v%d" % (pk, acc, acc + 1))
            o.append("v_cvt_pk_bf16_f32 v%d, v%d, v%d" % (pk + 1, acc + 2, acc + 3))
            o.append("ds_write_b64 v138, %s offset:%d" % (vr(pk, 2), t * 6144 + j * 512))
        return o

    for ch in range(7):
        if "notouch" not in OPT:
            jobs = [j for (t, j) in ((TCH, (0, SWO, 13)), (TCH, (1, SWG, 49)), (TCU, (2, SWU, 49)), (TCD, (3, SWD, 49))) if t == ch]
            if jobs:
                touch(a, jobs)
        if ch == 4:
            a("v_mov_b32 v6, 0")
            a("buffer_load_dword v17, v6, %s, 0 offen sc1" % SDBG)
        a("s_waitcnt lgkmcnt(0)")
        a("s_barrier")
        if ch in (0, 6):
            stamp(a, "A ch%d landed" % ch)
        for x in reads(2 * ch):
            a(x)
        rd = reads(2 * ch + 1)
        if ch == 6:
            rd += ["ds_read_b32 v%d, v139 offset:%d" % (NM + t, 64 * t) for t in range(5)]
        for x in compute(2 * ch):
            a(x)
            for _ in range(2 if ch == 6 else 1):
                if rd:
                    a(rd.pop(0))
        nr = []
        for i, x in enumerate(compute(2 * ch + 1)):
            a(x)
            if ch == 6:
                if i == 6:
                    nr += norm(0)
                if i == 11:
                    nr += norm(1)
                for _ in range(3):
                    if nr:
                        a(nr.pop(0))
    stamp(a, "A loop done")
    for x in nr + norm(2):
        a(x)
    rho_reads()
    a("s_waitcnt vmcnt(0) lgkmcnt(0)")
    a("LAjoin:")
    a.vm, a.lg = [], []
    a("s_barrier")
    QP, KC, KP, V0, V1 = 100, 104, 108, 112, 116
    a("ds_read_b64 %s, v32" % vr(QP, 2))
    a("ds_read_b64 %s, v32 offset:512" % vr(QP + 2, 2))
    a("ds_read_b64 %s, v32 offset:1024" % vr(KC, 2))
    a("ds_read_b64 %s, v32 offset:1536" % vr(KC + 2, 2))
    a("ds_read_b64 %s, v35 offset:1024" % vr(KP, 2))
    a("ds_read_b64 %s, v35 offset:1536" % vr(KP + 2, 2))
    a("ds_read_b64_tr_b16 %s, v34 offset:2048" % vr(V0, 2))
    a("ds_read_b64_tr_b16 %s, v33 offset:2048" % vr(V0 + 2, 2))
    a("ds_read_b64_tr_b16 %s, v34 offset:2560" % vr(V1, 2))
    a("ds_read_b64_tr_b16 %s, v33 offset:2560" % vr(V1 + 2, 2))
    a("v_mul_f32 v13, 0x%x, v%d" % (f2u(28 ** -0.5 * LOG2E), RQ))
    nonce_fetch(a, "v17")
    a("v_cndmask_b32 v%d, 0, v%d, s[94:95]" % (QP + 2, QP + 2))
    a("v_cndmask_b32 v%d, 0, v%d, s[94:95]" % (QP + 3, QP + 3))
    a(mfma(BC, KC, QP))
    a(mfma(BP, KP, QP))
    for i in range(4):
        a("v_mul_f32 v%d, v%d, v%d" % (BC + i, RC + i, BC + i))
    for i in range(4):
        a("v_mul_f32 v%d, v%d, v%d" % (BP + i, RP + i, BP + i))
    a("v_max3_f32 v8, v%d, v%d, v%d" % (BC, BC + 1, BC + 2))
    a("v_max3_f32 v9, v%d, v%d, v%d" % (BC + 3, BP, BP + 1))
    a("v_max3_f32 v8, v8, v%d, v%d" % (BP + 2, BP + 3))
    a("v_max_f32 v8, v8, v9")
    xg_reduce_multi(a, "v_max_f32", ["v8"], ["v9"])
    a("v_mul_f32 v8, v13, v8")
    for i in range(8):
        a("v_fma_f32 v%d, v%d, v13, -v8" % (BP + i, BP + i))
    for i in range(8):
        a("v_exp_f32 v%d, v%d" % (BP + i, BP + i))
    a("v_add_f32 v9, v%d, v%d" % (BP, BP + 1))
    a("v_add_f32 v10, v%d, v%d" % (BP + 2, BP + 3))
    a("v_add_f32 v11, v%d, v%d" % (BP + 4, BP + 5))
    a("v_add_f32 v12, v%d, v%d" % (BP + 6, BP + 7))
    a("v_add_f32 v9, v9, v10")
    a("v_add_f32 v11, v11, v12")
    a("v_add_f32 v9, v9, v11")
    a("v_mov_b32 v10, v9")
    a("v_mul_f32 v%d, v%d, v%d" % (BP, RP, BP))
    a("v_mul_f32 v%d, v%d, v%d" % (BP + 1, RP + 1, BP + 1))
    a("v_permlane32_swap_b32 v10, v9")
    a("v_add_f32 v9, v9, v10")
    a("v_mov_b32 v10, v9")
    a("v_mul_f32 v%d, v%d, v%d" % (BP + 2, RP + 2, BP + 2))
    a("v_mul_f32 v%d, v%d, v%d" % (BP + 3, RP + 3, BP + 3))
    a("v_permlane16_swap_b32 v10, v9")
    a("v_add_f32 v9, v9, v10")
    a("v_rcp_f32 v9, v9")
    for i in range(4):
        a("v_mul_f32 v%d, v%d, v%d" % (BC + i, RC + i, BC + i))
    for i in range(8):
        a("v_mul_f32 v%d, v9, v%d" % (BP + i, BP + i))
    P = 96
    for i in range(4):
        a("v_cvt_pk_bf16_f32 v%d, v%d, v%d" % (P + i, BP + 2 * i, BP + 2 * i + 1))
    O0, O1 = 40, 44
    a(mfma(O0, V0, P, "0"))
    a(mfma(O1, V1, P, "0"))
    OS = 124
    a("v_cvt_pk_bf16_f32 v%d, v%d, v%d" % (OS, O0, O0 + 1))
    a("v_cvt_pk_bf16_f32 v%d, v%d, v%d" % (OS + 1, O0 + 2, O0 + 3))
    a("v_cvt_pk_bf16_f32 v%d, v%d, v%d" % (OS + 2, O1, O1 + 1))
    a("v_cvt_pk_bf16_f32 v%d, v%d, v%d" % (OS + 3, O1 + 2, O1 + 3))
    a("v_cndmask_b32 v%d, 0, v%d, s[94:95]" % (OS + 2, OS + 2))
    a("v_cndmask_b32 v%d, 0, v%d, s[94:95]" % (OS + 3, OS + 3))
    a("buffer_store_dwordx4 %s, v14, %s, s98 offen%s" % (vr(OS), SWS, SC), tag="ost")
    stamp(a, "A o stored")


G1 = [(s, R1 + 8192 * s) for s in range(10)]
G2 = [(10 + i, R0 + 8192 * i) for i in range(7)]
G3 = [(17 + i, R1 + 8192 * i) for i in range(10)] + [(27, R2 + 16384)]


def helper(a):
    R = lambda x: raw(a, x)
    R("s_lshl_b32 %s, %s, 3" % (sT, sCB))
    R("s_add_u32 %s, %s, %s" % (sT, sT, sXC))
    R("s_mul_i32 %s, %s, %d" % (sT, sT, 392 * 128))
    R("v_min_u32 v8, 391, v0")
    R("v_lshlrev_b32 v8, 7, v8")
    if TCU > 6:
        R("buffer_load_dword v40, v8, %s, %s offen" % (SWU, sT))
    if TCD > 6:
        R("buffer_load_dword v41, v8, %s, %s offen" % (SWD, sT))


def phase_B(a):
    sTT, sKH, sTAU, sU = "s50", "s51", "s52", "s54"
    a("; ---------------- A->B ----------------")
    a("s_cmp_lt_u32 %s, 28" % sJ)
    a("s_cbranch_scc1 LgoB")
    raw(a, "s_waitcnt vmcnt(0)")
    raw(a, "s_barrier")
    publish(a, "s99")
    if "nohelp" not in OPT:
        helper(a)
    raw(a, "s_branch Lfin")
    a("LgoB:")
    worder = []
    for hh in range(8):
        for t in range(4):
            off = R0 + hh * 3584 + (t & 1) * 8
            worder.append("ds_read_b64_tr_b16 %s, v%d offset:%d" % (vr(WOF + 16 * hh + 4 * t, 2), 28 + (t >> 1), off))
            worder.append("ds_read_b64_tr_b16 %s, v%d offset:%d" % (vr(WOF + 16 * hh + 4 * t + 2, 2), 30 + (t >> 1), off))
    wc_dma(a, G1[6:10], "v16", "g1")
    a("s_and_b32 %s, %s, 3" % (sTT, sW))
    a("s_lshr_b32 %s, %s, 2" % (sKH, sW))
    a("s_lshl_b32 %s, %s, 2" % (sTAU, sRB))
    a("s_add_u32 %s, %s, %s" % (sTAU, sTAU, sTT))
    a("s_lshr_b32 %s, %s, 1" % (sT, sTAU))
    a("s_lshl_b32 %s, %s, 5" % (sT, sT))
    a("s_and_b32 %s, %s, 1" % (sT2, sTAU))
    a("s_add_u32 %s, %s, %s" % (sT, sT, sT2))
    a("v_lshl_add_u32 v8, v3, 1, %s" % sT)
    a("v_mul_u32_u24 v8, 896, v8")
    a("v_lshl_add_u32 v8, v2, 4, v8")
    a("s_lshl_b32 %s, %s, 1" % (sU, sCB))
    a("s_add_u32 %s, %s, %s" % (sU, sU, sKH))
    a("s_lshl_b32 %s, %s, 6" % (sT3, sU))
    for x in worder[:WOPRE]:
        a(x)
    a.wait_tag("ost")
    a("s_barrier")
    publish(a, "s99")
    stamp(a, "A flag")
    XR = 20
    a("buffer_load_dwordx4 %s, v8, %s, %s offen" % (vr(XR), SX, sT3))
    wc_dma(a, G1[:6], "v16", "g1")
    for x in worder[WOPRE:]:
        a(x)
    a("v_and_b32 v8, 1, v2")
    a("v_lshl_or_b32 v8, v8, 2, v4")
    a("v_lshlrev_b32 v8, 1, v8")
    a("v_lshrrev_b32 v9, 1, v5")
    a("s_lshl_b32 %s, %s, 1" % (sT, sW))
    a("v_add_u32 v9, %s, v9" % sT)
    a("v_xor_b32 v8, v8, v9")
    a("v_lshl_add_u32 v9, v2, 3, v4")
    a("v_lshlrev_b32 v9, 8, v9")
    a("v_lshl_add_u32 v9, v8, 4, v9")
    a("v_and_b32 v8, 1, v5")
    a("v_lshl_add_u32 v17, v8, 3, v9")
    a("v_add_u32 v18, 57344, v17")
    a("v_add_u32 v19, 114688, v17")
    OF, ACC = 32, 64
    for i in range(4):
        a("v_lshlrev_b32 v%d, 16, v%d" % (ACC + 2 * i, XR + i))
        a("v_and_b32 v%d, 0xffff0000, v%d" % (ACC + 2 * i + 1, XR + i))
    a("s_lshl_b32 %s, %s, 4" % (sT2, sTAU))
    a("s_lshl_b32 %s, %s, 3" % (sT3, sKH))
    a("s_add_u32 %s, %s, %s" % (sT2, sT2, sT3))
    a("s_lshl_b32 %s, %s, 10" % (sT2, sT2))
    a("s_add_u32 %s, %s, 4096" % (sT3, sT2))
    a("s_lshl_b32 %s, %s, 11" % (sT, sW))
    a("s_add_u32 %s, %s, %d" % (sT, sT, B_RB))
    a("v_add_u32 v12, %s, v14" % sT)
    a("s_xor_b32 %s, %s, 4" % (sT, sW))
    a("s_lshl_b32 %s, %s, 11" % (sT, sT))
    a("s_add_u32 %s, %s, %d" % (sT, sT, B_RB))
    a("v_add_u32 v13, %s, v14" % sT)
    a("s_mul_i32 s58, %s, 14" % sTAU)
    a("s_add_u32 s58, s58, %s" % sU)
    a("s_lshl_b32 s59, s58, 7")
    a("s_add_u32 s59, s59, %d" % WS_ST)
    a("s_lshl_b32 s58, s58, 10")
    a("s_add_u32 s58, s58, %d" % WS_H)
    a("s_lshl_b32 s60, %s, 7" % sRB)
    a("s_add_u32 s60, s60, %d" % WS_FA)
    a("s_lshr_b32 s61, %s, 1" % sRB)
    a("s_lshl_b32 s61, s61, 7")
    a("s_and_b32 %s, %s, 1" % (sT, sRB))
    a("s_mul_i32 %s, %s, 28" % (sT, sT))
    a("s_add_u32 s61, s61, %s" % sT)
    a("s_lshl_b32 %s, %s, 2" % (sT, sCB))
    a("s_add_u32 s61, s61, %s" % sT)
    a("s_add_u32 s61, s61, %d" % WS_FB)
    a("v_lshlrev_b32 v11, 3, v3")
    a.wait_tag("g1", lg0=True)
    stamp(a, "B pre-poll")
    poll(a, "s60", 0xff, 0)
    stamp(a, "B go")
    for hh in range(8):
        a("buffer_load_dwordx4 %s, v14, %s, %s offen offset:%d%s" % (vr(OF + 4 * hh), SWS, sT2 if hh < 4 else sT3, (hh & 3) * 1024, SC))
    a("s_barrier")
    for x in wc_read(G1, 17):
        a(x)
    for hh in range(8):
        if hh < 7:
            wc_dma(a, G2[hh:hh + 1], "v16", "g2")
        for t in (2, 3, 0, 1):
            a(mfma(ACC + 4 * t, WOF + 16 * hh + 4 * t, OF + 4 * hh, "0" if (hh == 0 and t >= 2) else None))
    a("ds_write_b128 v12, %s" % vr(ACC + 8))
    a("ds_write_b128 v12, %s offset:1024" % vr(ACC + 12))
    a("s_waitcnt lgkmcnt(0)")
    a("s_barrier")
    a("ds_read_b128 %s, v13" % vr(ACC + 8))
    a("ds_read_b128 %s, v13 offset:1024" % vr(ACC + 12))
    a("v_mov_b32 v8, 0")
    a("v_mov_b32 v9, 0")
    a("v_mov_b32 v6, 0")
    a("v_mov_b32 v7, 0")
    a("v_mov_b32 v10, 0x3f803f80")
    for i in range(8):
        a("v_add_f32 v%d, v%d, v%d" % (ACC + i, ACC + i, ACC + 8 + i))
    HP = 24
    for i in range(4):
        a("v_cvt_pk_bf16_f32 v%d, v%d, v%d" % (HP + i, ACC + 2 * i, ACC + 2 * i + 1))
    a("buffer_store_dwordx4 %s, v14, %s, s58 offen%s" % (vr(HP), SWS, SC))
    for i in range(4):
        a("v_dot2c_f32_bf16 v%d, v%d, v10" % (8 if i & 1 else 6, HP + i))
        a("v_dot2c_f32_bf16 v%d, v%d, v%d" % (9 if i & 1 else 7, HP + i, HP + i))
    a("v_add_f32 v8, v8, v6")
    a("v_add_f32 v9, v9, v7")
    xg_reduce_multi(a, "v_add_f32", ["v8", "v9"], ["v6", "v7"])
    a("s_mov_b64 exec, 0xffff")
    a("buffer_store_dwordx2 v[8:9], v11, %s, s59 offen%s" % (SWS, SC), tag="hst")
    a("s_mov_b64 exec, -1")
    stamp(a, "B h stored")


D_RDY = 163836
C_S0 = 116736
WDF = [224, 240, 64, 80, 96, 112, 128]


def emit_group(a, g):
    for (x, tg) in g:
        a(x, tag=tg)


def wd_dma_groups(u, base):
    gs = []
    for i4 in range(4):
        i = 4 * u + i4
        gs.append([("s_add_u32 m0, s63, %d" % (base + i4 * 1024), None),
                   ("s_mov_b32 s65, %d" % ((16 * (i >> 1) + 4 * (i & 1)) * 896), None),
                   ("buffer_load_dwordx4 v17, %s, s65 offen lds" % SWD, ("wd", u))])
    return gs


def wd_reads(u, base):
    out = []
    for t in range(4):
        for hf in range(2):
            out.append("ds_read_b64_tr_b16 %s, v%d offset:%d" % (vr(WDF[u] + 4 * t + 2 * hf, 2), 8 + t, base + hf * 1024))
    return out


def phase_C(a):
    a("; ---------------- B->C ----------------")
    wc_dma(a, G3[:4], "v16", "g3")
    a.wait_tag("hst")
    a("s_barrier")
    publish(a, "s61")
    stamp(a, "B flag")
    wc_dma(a, G3[4:], "v16", "g3")
    for x in wc_read(G2, 17):
        a(x)
    ONES, CSG, CSU = 20, 24, 28
    for i in range(4):
        a("v_mov_b32 v%d, 0x3f803f80" % (ONES + i))
    for u in range(14):
        a(mfma(CSG, WGF + 4 * u, ONES, "0" if u == 0 else None))
    a("s_mul_i32 %s, %s, 114688" % (sT2, sRQ))
    a("s_add_u32 %s, %s, %d" % (sT2, sT2, WS_H))
    a("s_mul_i32 s62, %s, 3584" % sW)
    a("v_add_u32 v12, s62, v14")
    a("s_lshl_b32 %s, %s, 3" % (sT3, sRQ))
    a("s_add_u32 %s, %s, %s" % (sT3, sT3, sW))
    a("s_mul_i32 %s, %s, 1792" % (sT3, sT3))
    a("s_add_u32 %s, %s, %d" % (sT3, sT3, WS_ST))
    for i in range(4):
        a("v_mov_b32 v%d, 0" % (60 + i))
    a("v_and_b32 v8, 1, v2")
    a("v_mul_u32_u24 v8, 57344, v8")
    a("v_lshrrev_b32 v10, 1, v2")
    a("s_and_b32 %s, %s, 1" % (sT, sW))
    a("s_lshl_b32 %s, %s, 1" % (sT, sT))
    a("v_add_u32 v10, %s, v10" % sT)
    a("v_lshl_add_u32 v8, v10, 8, v8")
    a("v_lshl_add_u32 v13, v3, 4, v8")
    a("s_mul_i32 s58, %s, 448" % sRQ)
    a("s_lshl_b32 %s, %s, 2" % (sT, sFS))
    a("s_add_u32 s58, s58, %s" % sT)
    a("s_lshr_b32 %s, %s, 1" % (sT, sW))
    a("s_add_u32 s58, s58, %s" % sT)
    a("s_lshl_b32 s58, s58, 10")
    a("s_add_u32 s58, s58, %d" % WS_HH)
    a("s_mov_b32 s59, 0x%x" % f2u(-LOG2E))
    a("s_lshl_b32 s60, %s, 7" % sRQ)
    a("s_add_u32 s60, s60, %d" % WS_FB)
    a("s_lshl_b32 s61, %s, 8" % sRQ)
    a("s_lshl_b32 %s, %s, 2" % (sT, sFS))
    a("s_add_u32 s61, s61, %s" % sT)
    a("s_add_u32 s61, s61, %d" % WS_FC)
    a("s_lshl_b32 s63, %s, 12" % sW)
    a("s_lshr_b32 %s, %s, 1" % (sT, sRB))
    a("s_lshl_b32 s67, %s, 8" % sT)
    a("s_add_u32 s67, s67, %d" % WS_FC)
    a("s_lshl_b32 s70, %s, 7" % sT)
    a("s_lshl_b32 %s, %s, 3" % (sT, sT))
    a("s_and_b32 s64, %s, 1" % sRB)
    a("s_add_u32 %s, %s, s64" % (sT, sT))
    a("s_add_u32 s70, s70, s64")
    a("s_mul_i32 s70, s70, 896")
    a("s_lshl_b32 s64, %s, 7" % sCB)
    a("s_add_u32 s70, s70, s64")
    a("s_mul_i32 s68, %s, 56" % sT)
    a("s_mul_i32 s64, %s, 7" % sW)
    a("s_add_u32 s68, s68, s64")
    a("s_lshl_b32 s68, s68, 10")
    a("s_add_u32 s68, s68, %d" % WS_HH)
    a("s_and_b32 s64, %s, 6" % sW)
    a("s_add_u32 %s, %s, s64" % (sT, sT))
    a("s_mul_i32 s69, %s, 14" % sT)
    a("s_lshl_b32 s64, %s, 1" % sCB)
    a("s_add_u32 s69, s69, s64")
    a("s_and_b32 s64, %s, 1" % sW)
    a("s_add_u32 s69, s69, s64")
    a("s_lshl_b32 s69, s69, 10")
    a("s_add_u32 s69, s69, %d" % WS_H)
    a("v_and_b32 v6, 1, v2")
    a("v_lshl_add_u32 v6, v6, 2, v4")
    a("v_and_b32 v7, 6, v6")
    a("v_lshrrev_b32 v10, 1, v5")
    a("v_xor_b32 v7, v7, v10")
    a("v_lshrrev_b32 v10, 1, v2")
    a("v_lshl_add_u32 v6, v10, 4, v6")
    a("v_lshlrev_b32 v6, 7, v6")
    a("v_lshl_add_u32 v6, v7, 4, v6")
    a("v_and_b32 v7, 1, v5")
    a("v_lshl_add_u32 v6, v7, 3, v6")
    a("s_add_u32 %s, s63, 65536" % sT)
    a("v_add_u32 v8, %s, v6" % sT)
    for t in range(1, 4):
        a("v_xor_b32 v%d, %d, v8" % (8 + t, 32 * t))
    a("s_waitcnt lgkmcnt(0)")
    stamp(a, "C pre-poll")
    poll(a, "s60", 0x3fff, 0)
    stamp(a, "C go")

    def h_groups(tp):
        tg = ("h", tp)
        gs = []
        for i in range(4):
            g = []
            if i == 0:
                g.append(("s_add_u32 s64, %s, %d" % (sT2, tp * 28672), None))
            g.append(("s_add_u32 m0, s62, %d" % (tp * 28672), None))
            if i == 3:
                g.append(("s_mov_b32 exec_hi, 0", None))
            g.append(("buffer_load_dwordx4 v12, %s, s64 offen offset:%d%s lds" % (SWS, i * 1024, SC), tg))
            if i == 3:
                g.append(("s_mov_b64 exec, -1", None))
            gs.append(g)
        return gs

    a("buffer_load_dwordx4 v[56:59], v14, %s, %s offen%s" % (SWS, sT3, SC))
    a("s_mov_b32 exec_hi, 0xffff")
    a("buffer_load_dwordx4 v[60:63], v14, %s, %s offen offset:1024%s" % (SWS, sT3, SC))
    a("s_mov_b64 exec, -1")
    for g in h_groups(0):
        emit_group(a, g)
    a.wait_tag("g3")
    a("s_barrier")
    for x in wc_read(G3, 17):
        a(x)
    a("v_lshrrev_b32 v6, 3, v1")
    a("v_and_b32 v7, 7, v1")
    a("v_and_b32 v16, 6, v6")
    a("v_xor_b32 v7, v16, v7")
    a("v_and_b32 v16, 3, v6")
    a("v_lshrrev_b32 v6, 2, v6")
    a("v_lshl_add_u32 v16, v6, 3, v16")
    a("s_mul_i32 %s, %s, 224" % (sT, sW))
    a("v_add_u32 v16, %s, v16" % sT)
    a("v_mul_u32_u24 v16, 896, v16")
    a("v_lshl_add_u32 v16, v7, 4, v16")
    a("s_lshl_b32 %s, %s, 7" % (sT, sCB))
    a("v_add_u32 v17, %s, v16" % sT)
    a("v_add_u32 v16, 57344, v14")
    a("v_lshlrev_b32 v19, 4, v3")
    a("v_add_u32 v19, %d, v19" % C_ST)
    a("s_lshl_b32 %s, %s, 8" % (sT, sW))
    a("s_add_u32 %s, %s, %d" % (sT, sT, C_ST))
    a("v_and_b32 v18, 7, v1")
    a("v_lshl_add_u32 v18, v18, 5, %s" % sT)
    for u in range(14):
        a(mfma(CSU, WUF + 4 * u, ONES, "0" if u == 0 else None))
    st = []
    for i in range(4):
        st.append("v_add_f32 v%d, v%d, v%d" % (56 + i, 56 + i, 60 + i))
    for i in range(4):
        st.append("v_add_f32_dpp v%d, v%d, v%d row_ror:8 row_mask:0xf bank_mask:0xf" % (56 + i, 56 + i, 56 + i))
    for step in ("v_permlane32_swap_b32", "v_permlane16_swap_b32"):
        for i in range(4):
            st.append("v_mov_b32 v%d, v%d" % (60 + i, 56 + i))
        for i in range(4):
            st.append("%s v%d, v%d" % (step, 60 + i, 56 + i))
        for i in range(4):
            st.append("v_add_f32 v%d, v%d, v%d" % (56 + i, 56 + i, 60 + i))
    st.append("s_mov_b32 %s, 0x%x" % (sT, f2u(1.0 / 448)))
    st.append("v_mov_b32 v6, 0x%x" % f2u(1e-5))
    for tk in range(2):
        s1, s2, d = 56 + 2 * tk, 57 + 2 * tk, 32 + 4 * tk
        st.append("v_mul_f32 v%d, -%s, v%d" % (d, sT, s1))
        st.append("v_fma_f32 v%d, v%d, %s, v6" % (s2, s2, sT))
        st.append("v_fma_f32 v%d, -v%d, v%d, v%d" % (s2, d, d, s2))
        st.append("v_max_f32 v%d, v%d, v6" % (s2, s2))
        st.append("v_sqrt_f32 v%d, v%d" % (d + 2, s2))
        st.append("v_rsq_f32 v%d, v%d" % (s2, s2))
        st.append("v_mul_f32 v%d, s59, v%d" % (d + 1, s2))
    st.append("ds_write_b128 v18, v[32:35]")
    st.append("ds_write_b128 v18, v[36:39] offset:16")
    for x in st:
        a(x)
    st = []
    AF, NR = 192, 8
    ACCS = [40, 48]
    STS = [32, 36]
    PKD = [56, 60]

    def epi(i):
        g, u_, s, pk = ACCS[i & 1], ACCS[i & 1] + 4, STS[i & 1], PKD[(i >> 1) & 1]
        o = []
        o.append("ds_read_b128 %s, v19 offset:%d" % (vr(s), i * 256))
        o.append(None)
        o.append(None)
        for rr in range(4):
            o.append("v_fmac_f32 v%d, v%d, v%d" % (g + rr, s, CSG + rr))
        for rr in range(4):
            o.append("v_mul_f32 v%d, v%d, v%d" % (g + rr, s + 1, g + rr))
        for rr in range(4):
            o.append("v_exp_f32 v%d, v%d" % (g + rr, g + rr))
        for rr in range(4):
            o.append("v_fmac_f32 v%d, v%d, v%d" % (u_ + rr, s, CSU + rr))
        for rr in range(4):
            o.append("v_fma_f32 v%d, v%d, v%d, v%d" % (g + rr, g + rr, s + 2, s + 2))
        for rr in range(4):
            o.append("v_rcp_f32 v%d, v%d" % (g + rr, g + rr))
        for rr in range(4):
            o.append("v_mul_f32 v%d, v%d, v%d" % (g + rr, g + rr, u_ + rr))
        o.append("v_cvt_pk_bf16_f32 v%d, v%d, v%d" % (pk + 2 * (i & 1), g, g + 1))
        o.append("v_cvt_pk_bf16_f32 v%d, v%d, v%d" % (pk + 2 * (i & 1) + 1, g + 2, g + 3))
        if i & 1:
            o.append("v_permlane16_swap_b32 v%d, v%d" % (pk, pk + 2))
            o.append("v_permlane16_swap_b32 v%d, v%d" % (pk + 1, pk + 3))
            o.append(("buffer_store_dwordx4 %s, v13, %s, s58 offen%s" % (vr(pk), SWS, SC), ("hh", i >> 1)))
            o.append("s_add_u32 s58, s58, %d" % (2 * 57344))
        return o

    def emit(x):
        if x is None:
            return
        if isinstance(x, tuple):
            a(x[0], tag=x[1])
        else:
            a(x)

    def pub_stage(tp):
        publish(a, "s61")
        a("s_add_u32 s61, s61, 64")

    S0o = C_S0 - 65536
    side = {}
    prio = {}

    def at(k, f):
        side.setdefault(k, []).append(f)

    def spread(k0, stride, groups):
        for n, g in enumerate(groups):
            at(k0 + n * stride, (lambda g=g: emit_group(a, g)))

    def rd_job(k, u, base):
        def f():
            a.wait_tag(("wd", u))
            for x in wd_reads(u, base):
                a(x)
        at(k, f)

    spread(0, 1, h_groups(1))
    spread(5, 2, h_groups(2) + h_groups(3))
    spread(22, 1, wd_dma_groups(0, C_S0))
    rd_job(38, 0, S0o)
    spread(44, 1, wd_dma_groups(1, C_S0))
    spread(52, 2, wd_dma_groups(4, 0))
    rd_job(62, 1, S0o)
    spread(68, 1, wd_dma_groups(2, C_S0))
    spread(80, 2, wd_dma_groups(5, 32768))
    rd_job(88, 2, S0o)
    spread(94, 2, wd_dma_groups(3, C_S0))
    at(102, lambda: lead_issue(a, "s67"))

    if "nowd" in OPT:
        for k in list(side):
            if k >= 18:
                del side[k]
    if "nowdrd" in OPT:
        for k in (38, 62, 88):
            del side[k]

    def bar(tags, lg0=False, pub=None):
        def f():
            for tg in tags:
                a.wait_tag(tg, lg0=lg0)
            a("s_barrier")
            if pub is not None:
                pub_stage(pub)
        return f

    barr = {22: bar([("h", 1)]), 50: bar([("h", 3), ("hh", 0)], pub=0), 78: bar([("hh", 1)], pub=1)}
    if "noprio" not in OPT:
        for (k0, k1) in ((0, 22), (22, 50), (50, 78), (78, 112)):
            for lv in range(4):
                kk = k0 + (k1 - k0) * lv // 4
                prio[kk] = 3 - lv

    if "nostw" in OPT:
        barr = {14: bar([("h", 1)], lg0=True), 50: bar([("h", 3)], pub=0), 78: bar([], pub=1)}
    if "cst" in OPT:
        for kk in (14, 28, 42, 56, 70, 84, 98):
            at(kk - 1, (lambda kk=kk: stamp(a, "C k%d" % kk)))
    a.wait_tag(("h", 0), lg0=True)
    a("s_barrier")
    stamp(a, "C h0 landed")
    allrd = []
    for k in range(112):
        off = k * 1024
        allrd.append("ds_read_b128 %s, v%d offset:%d" % (vr(AF + 4 * (k % NR)), 14 if off < 57344 else 16, off % 57344))
    nxt = 0
    LA = NR - 2
    for i in range(8):
        acc = ACCS[i & 1]
        ep = epi(i - 1) if i else st
        for u in range(14):
            k = i * 14 + u
            if k in barr:
                barr[k]()
            if k in prio:
                a("s_setprio %d" % prio[k])
            while nxt < len(allrd) and nxt <= k + LA - 1:
                a(allrd[nxt])
                nxt += 1
            f = AF + 4 * (k % NR)
            z = "0" if u == 0 else None
            npop = 5 if i == 0 else 3
            start = 3 if i == 0 else 0
            if "m32" in OPT:
                ac = 224 + 16 * ((i >> 1) & 1)
                a("v_mfma_f32_32x32x16_bf16 %s, %s, %s, %s" % (vr(ac, 16), vr(WGF + 4 * (u + 14 * (i & 1))), vr(f), "0" if k % 28 == 0 else vr(ac, 16)))
            else:
                a(mfma(acc, WGF + 4 * u, f, z))
            if u >= start:
                for _ in range(npop // 2):
                    if ep:
                        emit(ep.pop(0))
            if "m32" not in OPT:
                a(mfma(acc + 4, WUF + 4 * u, f, z))
            if u >= start:
                for _ in range(npop - npop // 2):
                    if ep:
                        emit(ep.pop(0))
            for fn in side.get(k, []):
                fn()
        for x in ep:
            emit(x)
    stamp(a, "C mfma done")
    return epi, emit, pub_stage


def lead_issue(a, soff):
    L = a.label("liss")
    raw(a, "s_cmp_lg_u32 %s, 0" % sW)
    raw(a, "s_cbranch_scc1 %s" % L)
    raw(a, "v_lshlrev_b32 v6, 2, v1")
    raw(a, "buffer_load_dword v7, v6, %s, %s offen sc1" % (SWS, soff))
    raw(a, "%s:" % L)
    a.vm.append((set(), "lead"))
    a.lead_phantom = True


def lead_check(a, soff, mask_lo, mask_hi, level=None, vaddr=None):
    L, Lp, Lc, Ld = a.label("lskip"), a.label("lpoll"), a.label("lchk"), a.label("ldone")
    n = a._after(a.vm, lambda e: e[1] == "lead")
    a.vm = [e for e in a.vm if e[1] != "lead"]
    raw(a, "s_cmp_lg_u32 %s, 0" % sW)
    raw(a, "s_cbranch_scc1 %s" % L)
    raw(a, "s_mov_b32 s3, 400000")
    if n is not None:
        raw(a, "s_waitcnt vmcnt(%d)" % min(n, 63))
    raw(a, "s_branch %s" % Lc)
    raw(a, "%s:" % Lp)
    raw(a, "buffer_load_dword v7, v6, %s, %s offen sc1" % (SWS, soff))
    raw(a, "s_waitcnt vmcnt(0)")
    raw(a, "%s:" % Lc)
    raw(a, "v_cmp_ne_u32 vcc, %s, v7" % sNONCE)
    raw(a, "s_sub_u32 s3, s3, 1")
    raw(a, "s_cbranch_scc1 %s" % Ld)
    raw(a, "s_nop 0")
    raw(a, "s_and_b32 vcc_lo, vcc_lo, 0x%x" % mask_lo)
    raw(a, "s_and_b32 vcc_hi, vcc_hi, 0x%x" % mask_hi)
    raw(a, "s_cmp_lg_u64 vcc, 0")
    raw(a, "s_cbranch_scc1 %s" % Lp)
    raw(a, "%s:" % Ld)
    if level is not None:
        raw(a, "v_mov_b32 v7, %d" % level)
        raw(a, "ds_write_b32 %s, v7" % vaddr)
    raw(a, "%s:" % L)


def lds_wait(a, level):
    Lp, Ld = a.label("wl"), a.label("wd")
    raw(a, "s_mov_b32 s3, 2000000")
    raw(a, "%s:" % Lp)
    raw(a, "ds_read_b32 v31, v30")
    raw(a, "s_waitcnt lgkmcnt(0)")
    raw(a, "v_readfirstlane_b32 s66, v31")
    raw(a, "s_sub_u32 s3, s3, 1")
    raw(a, "s_cbranch_scc1 %s" % Ld)
    raw(a, "s_nop 0")
    raw(a, "s_cmp_lt_u32 s66, %d" % level)
    raw(a, "s_cbranch_scc1 %s" % Lp)
    raw(a, "%s:" % Ld)


D_HR = 98304


def phase_D(a, epi, emit, pub_stage):
    a("; ---------------- C->D ----------------")
    ep = epi(7)
    emit(ep.pop(0))
    a.wait_tag(("hh", 2), lg0=True)
    lead_check(a, "s67", 0x3fff3fff, 0)
    a("s_barrier")
    pub_stage(2)
    for x in ep:
        emit(x)
    stamp(a, "C last store")
    a("s_setprio 0")
    ACCS, AF, NR = [144, 160], 176, 12
    DLA = DLAV
    FT, FS, OUTR = 32, 48, 50

    def hh_load(k):
        rt, i = k // 7, k % 7
        a("buffer_load_dwordx4 %s, v%d, %s, s68 offen offset:%d%s" % (vr(AF + 4 * (k % NR)), 14 if i < 4 else 16, SWS, (i & 3) * 1024, "" if "hhplain" in OPT else SC))
        if i == 6:
            a("s_add_u32 s68, s68, %d" % (2 * 57344))

    a("v_add_u32 v16, 4096, v14")
    for k in range(DPRE):
        hh_load(k)
    a.wait_tag(("wd", 3))
    for x in wd_reads(3, C_S0 - 65536):
        a(x)
    for t in range(4):
        a("v_subrev_u32 v%d, 65536, v%d" % (8 + t, 8 + t))
    for x in wd_reads(4, 0) + wd_reads(5, 32768):
        a(x)
    for t in range(4):
        a("v_add_u32 v%d, 65536, v%d" % (8 + t, 8 + t))
    a("v_lshrrev_b32 v18, 5, v1")
    a("s_lshl_b32 %s, %s, 1" % (sT, sW))
    a("v_add_u32 v18, %s, v18" % sT)
    a("v_and_b32 v19, 31, v1")
    a("v_lshrrev_b32 v20, 2, v19")
    a("v_lshlrev_b32 v20, 8, v20")
    a("v_lshl_add_u32 v20, v18, 4, v20")
    a("v_lshl_add_u32 v20, v5, 2, v20")
    a("v_add_u32 v20, %d, v20" % D_HR)
    a("v_mul_u32_u24 v21, 1792, v18")
    a("v_lshl_add_u32 v21, v19, 2, v21")
    a("v_lshrrev_b32 v22, 1, v19")
    a("v_add_u32 v23, v22, v18")
    a("v_and_b32 v23, 15, v23")
    a("v_lshlrev_b32 v23, 4, v23")
    a("v_lshl_add_u32 v22, v22, 8, v23")
    a("v_and_b32 v23, 1, v19")
    a("v_lshl_add_u32 v22, v23, 3, v22")
    a("v_add_u32 v23, v2, v3")
    a("v_lshl_add_u32 v28, v2, 8, s63")
    for t in range(4):
        a("v_add_u32 v29, %d, v23" % (4 * t))
        a("v_and_b32 v29, 15, v29")
        a("v_lshl_add_u32 v%d, v29, 4, v28" % (24 + t))
    a.wait_tag(("hh", 3), lg0=True)
    a("s_barrier")
    pub_stage(3)
    stamp(a, "C flag")
    for k in range(DPRE, DLA):
        hh_load(k)
    a("s_add_u32 m0, %s, %d" % (sW1024, D_HR))
    a("buffer_load_dwordx4 v14, %s, s69 offen%s lds" % (SWS, SC), tag="hr")
    wd6 = wd_dma_groups(6, 65536)

    def writes(rt):
        return ["ds_write_b128 v%d, %s offset:%d" % (24 + t, vr(ACCS[rt & 1] + 4 * t), (rt & 1) * 32768 + t * 1024) for t in range(4)]

    def fin(rt):
        o = ["ds_read_b32 v%d, v20 offset:%d" % (FS + 1, rt * 2048)]
        for p in range(8):
            o.append("ds_read_b64 %s, v22 offset:%d" % (vr(FT + 2 * p, 2), (rt & 1) * 32768 + p * 4096))
        o.append("v_lshlrev_b32 v%d, 16, v%d" % (FS, FS + 1))
        o.append("v_and_b32 v%d, 0xffff0000, v%d" % (FS + 1, FS + 1))
        for (d, x) in ((0, 2), (4, 6), (8, 10), (12, 14), (0, 4), (8, 12), (0, 8)):
            o.append("v_add_f32 v%d, v%d, v%d" % (FT + d, FT + d, FT + x))
            o.append("v_add_f32 v%d, v%d, v%d" % (FT + d + 1, FT + d + 1, FT + x + 1))
        o.append("v_add_f32 v%d, v%d, v%d" % (FS, FS, FT))
        o.append("v_add_f32 v%d, v%d, v%d" % (FS + 1, FS + 1, FT + 1))
        o.append("v_cvt_pk_bf16_f32 v%d, v%d, v%d" % (OUTR + rt, FS, FS + 1))
        o.append("buffer_store_dword v%d, v21, %s, s70 offen%s" % (OUTR + rt, SOUT, OUTSC))
        o.append("s_add_u32 s70, s70, %d" % (32 * 896))
        return o

    nl = [DLA]
    BI = DBI
    wpos = {3: [(0, 3), (1, 1), (1, 3), (2, 1)], 4: [(0, 3), (1, 3), (2, 3), (3, 1)], 2: [(1, 0), (1, 1), (1, 2), (1, 3)]}[BI]
    fn = []
    for rt in range(4):
        wr = writes(rt - 1) if rt else []
        for i in range(7):
            k = rt * 7 + i
            if k < 2:
                emit_group(a, wd6[2 * k])
                emit_group(a, wd6[2 * k + 1])
            if k == 5:
                a.wait_tag(("wd", 6))
                for x in wd_reads(6, 0):
                    a(x)
            if k in (3 + BI, 10 + BI):
                lead_issue(a, "s67")
            if rt and i == BI:
                for x in fn:
                    a(x)
                if rt == 1:
                    lead_check(a, "s67", 0, 0x3fff)
                if rt == 2:
                    lead_check(a, "s67", 0, 0x3fff0000)
                a("s_waitcnt lgkmcnt(0)")
                if "dnobar" not in OPT:
                    a("s_barrier")
                fn = fin(rt - 1)
            lim = 14 if k < 7 + BI else (21 if k < 14 + BI else 28)
            n_iss = 0
            while nl[0] < min(lim, k + DLA + 1) and n_iss < 2:
                if "dnoload" not in OPT:
                    hh_load(nl[0])
                nl[0] += 1
                n_iss += 1
            for t in range(4):
                if not ("dnomfma" in OPT and t):
                    a(mfma(ACCS[rt & 1] + 4 * t, WDF[i] + 4 * t, AF + 4 * (k % NR), "0" if i == 0 else None))
                if "dnored" in OPT:
                    wr, fn = [], []
                if wr and (i, t) in wpos:
                    a(wr.pop(0))
                for _ in range(2):
                    if fn:
                        a(fn.pop(0))
    for x in fn:
        a(x)
    stamp(a, "D mfma done")
    for x in writes(3):
        a(x)
    a("s_waitcnt lgkmcnt(0)")
    a("s_barrier")
    for x in fin(3):
        a(x)
    stamp(a, "D out stored")


HEADER = open("cdna_kernels/%s.s.ref" % NAME).read().split("; Override launch")[0]


def build():
    n = NAME + "_kernel"
    out = HEADER
    out += "; @launch grid=(256,1,1) block=(512,1,1) lds=163840\n"
    out += '.amdgcn_target "amdgcn-amd-amdhsa--gfx950"\n.text\n'
    a = Asm()
    prologue(a)
    phase_A(a)
    phase_B(a)
    phase_D(a, *phase_C(a))
    if AMP is not None:
        a("s_cmp_lg_u32 s2, 100")
        a("s_cbranch_scc1 Lfin")
        a("s_cmp_lg_u32 %s, %d" % (sW, 4 if AMP == "A start" else 0))
        a("s_cbranch_scc1 Lfin")
        a("s_sub_u32 s71, s71, %s" % sNONCE)
        a("s_min_u32 s71, s71, 10000")
        a("s_memrealtime s[100:101]")
        a("s_waitcnt lgkmcnt(0)")
        a("s_add_u32 s71, s71, s100")
        a("Lamp:")
        a("s_memrealtime s[100:101]")
        a("s_waitcnt lgkmcnt(0)")
        a("s_sub_u32 s72, s71, s100")
        a("s_cmp_gt_i32 s72, 0")
        a("s_cbranch_scc1 Lamp")
    a("Lfin:")
    stamp_flush(a)
    a("Lend:")
    a("s_endpgm")
    a("Lcode_end:")
    body = a.render()
    out += ".globl %s\n.p2align 8\n.type %s,@function\n%s:\nLcode_begin:\n%s" % (n, n, n, body)

    out += '.section .rodata,"a"\n.p2align 6\n'
    out += """.amdhsa_kernel %s
  .amdhsa_next_free_vgpr 256
  .amdhsa_next_free_sgpr 102
  .amdhsa_accum_offset 256
  .amdhsa_group_segment_fixed_size 0
  .amdhsa_kernarg_size 80
  .amdhsa_user_sgpr_count 2
  .amdhsa_user_sgpr_kernarg_segment_ptr 1
  .amdhsa_system_sgpr_workgroup_id_x 1
.end_amdhsa_kernel
""" % n
    return out


if __name__ == "__main__":
    dst = sys.argv[1] if len(sys.argv) > 1 else "cdna_kernels/%s.s" % NAME
    STAMPS = "stamps" in sys.argv
    OPT = set(sys.argv[2:])
    for o in sys.argv[2:]:
        if o.startswith("amp:"):
            AMP = o[4:].replace("_", " ")
        elif "=" in o:
            globals()[o.split("=")[0]] = int(o.split("=")[1])
    txt = build()
    import subprocess, re
    open("_sz.s", "w").write(txt.replace("CODE_BYTES", "0x12345"))
    subprocess.check_call(["clang", "-x", "assembler", "-target", "amdgcn-amd-amdhsa", "-mcpu=gfx950", "-c", "_sz.s", "-o", "_sz.o"])
    sym = subprocess.check_output(["llvm-objdump", "-t", "_sz.o"]).decode()
    end = int(re.search(r"([0-9a-f]+) .*Lcode_end", sym).group(1), 16)
    print("code bytes", end)
    open(dst, "w").write(txt.replace("CODE_BYTES", str((end - 64) & ~3)))
    print("wrote", dst)
```

```python
import sys, struct
sys.path.insert(0, "dev")
from asmlib import Asm, Ins

NAME = "sequential_preLN__sliding_local_dilated__glu_gated_glu__prompt"

WS_O = 0
WS_H = 2 << 20
WS_ST = 4 << 20
WS_HH = 8 << 20
WS_FA = 16 << 20
WS_FB = WS_FA + 8192
WS_FC = WS_FA + 16384
WS_TS = 20 << 20
WS_SIZE = 32 << 20

SX, SWQKV, SWO, SWG, SWU, SWD, SOUT, SWS, SDBG = [("s[%d:%d]" % (b, b + 3)) for b in range(8, 44, 4)]
sW, sXC, sJ, sNONCE = "s44", "s45", "s46", "s47"
sT, sT2, sT3 = "s55", "s56", "s57"
sW1024 = "s53"
sRB, sCB, sRQ, sFS = "s84", "s85", "s86", "s87"
SC = " sc1"
OUTSC = "" if "outplain" in sys.argv else " sc1"
LOG2E = 1.4426950408889634
STAMPS = False
OPT = set()
NSTAMP = [0]
ASPACE = 3
WOPRE = 28
DPRE = 4
DLAV = 5
DBI = 3
HSLEEP = 4
TCH = 3
TCU = 7
TCD = 7
ROTM = 1


def f2u(x):
    return struct.unpack("<I", struct.pack("<f", x))[0]


def vr(b, n=4):
    return "v[%d:%d]" % (b, b + n - 1)


def mfma(acc, A, B, C=None):
    return "v_mfma_f32_16x16x32_bf16 %s, %s, %s, %s" % (vr(acc), vr(A), vr(B), vr(acc) if C is None else C)


def raw(a, text):
    for line in text.split("\n"):
        line = line.strip()
        if not line:
            continue
        if line.endswith(":"):
            a.items.append(("l", line))
        else:
            a.items.append(("i", Ins(line)))


def stamp(a, name):
    if STAMPS:
        i = NSTAMP[0]
        NSTAMP[0] += 1
        a("; STAMP %d %s" % (i, name))
        a("s_memrealtime s[100:101]")
        a("s_memtime s[72:73]")
        a("s_waitcnt lgkmcnt(0)")
        a("v_writelane_b32 v15, s100, %d" % i)
        a("v_writelane_b32 v15, s72, %d" % (32 + i))


def stamp_flush(a):
    if STAMPS:
        a("s_lshl_b32 s3, s2, 3")
        a("s_add_u32 s3, s3, %s" % sW)
        a("s_lshl_b32 s3, s3, 8")
        a("s_add_u32 s3, s3, %d" % WS_TS)
        a("v_lshlrev_b32 v7, 2, v1")
        a("buffer_store_dword v15, v7, %s, s3 offen" % SWS)
        if "dbgout" in OPT:
            a("s_cmp_lg_u32 s2, 100")
            a("s_cbranch_scc1 Lend")
            a("s_cmp_lg_u32 %s, 3" % sW)
            a("s_cbranch_scc1 Lend")
            sel = [0, 2, 3, 5, 6, 8, 9, 10, 12, 13, 14, 16, 18, 19, 20]
            a("v_mov_b32 v7, 0")
            for i, st in enumerate(sel):
                a("v_readlane_b32 s3, v15, %d" % st)
                a("s_sub_u32 s3, s3, %s" % sNONCE)
                a("v_mov_b32 v6, s3")
                a("buffer_store_dword v6, v7, %s, 0 offen offset:%d" % (SDBG, 4 + 4 * i))


def xg_reduce_multi(a, op, xs, ts):
    for step in ("v_permlane32_swap_b32", "v_permlane16_swap_b32"):
        for x, t in zip(xs, ts):
            a("v_mov_b32 %s, %s" % (t, x))
        for x, t in zip(xs, ts):
            a("%s %s, %s" % (step, t, x))
        for x, t in zip(xs, ts):
            a("%s %s, %s, %s" % (op, x, x, t))


def publish(a, soff):
    L = a.label("pub")
    raw(a, "s_cmp_lg_u32 %s, 0" % sW)
    raw(a, "s_cbranch_scc1 %s" % L)
    raw(a, "s_mov_b64 exec, 1")
    raw(a, "v_mov_b32 v6, %s" % sNONCE)
    raw(a, "v_mov_b32 v7, 0")
    raw(a, "buffer_store_dword v6, v7, %s, %s offen sc1" % (SWS, soff))
    raw(a, "s_mov_b64 exec, -1")
    raw(a, "%s:" % L)


def poll(a, soff, mask_lo, mask_hi, sleep=0):
    L, Lp, Ld = a.label("skip"), a.label("poll"), a.label("done")
    raw(a, "s_cmp_lg_u32 %s, 0" % sW)
    raw(a, "s_cbranch_scc1 %s" % L)
    raw(a, "v_lshlrev_b32 v7, 2, v1")
    raw(a, "s_mov_b32 exec_lo, 0x%x" % mask_lo)
    raw(a, "s_mov_b32 exec_hi, 0x%x" % mask_hi)
    raw(a, "s_mov_b32 s3, 400000")
    raw(a, "%s:" % Lp)
    if sleep:
        raw(a, "s_sleep %d" % sleep)
    raw(a, "buffer_load_dword v6, v7, %s, %s offen sc1" % (SWS, soff))
    raw(a, "s_waitcnt vmcnt(0)")
    raw(a, "v_cmp_ne_u32 vcc, %s, v6" % sNONCE)
    raw(a, "s_sub_u32 s3, s3, 1")
    raw(a, "s_cbranch_scc1 %s" % Ld)
    raw(a, "s_nop 1")
    raw(a, "s_cmp_lg_u64 vcc, 0")
    raw(a, "s_cbranch_scc1 %s" % Lp)
    raw(a, "%s:" % Ld)
    raw(a, "s_mov_b64 exec, -1")
    raw(a, "%s:" % L)
    a("s_barrier")


def prologue(a):
    a("s_load_dwordx16 s[64:79], s[0:1], 0")
    a("s_load_dwordx4 s[80:83], s[0:1], 64")
    a("s_memrealtime s[4:5]")
    a("s_cmp_ge_u32 s2, 256")
    a("s_cbranch_scc1 Lend")
    a("s_getpc_b64 s[6:7]")
    a("v_and_b32 v1, 63, v0")
    a("v_lshrrev_b32 v6, 6, v0")
    a("v_lshrrev_b32 v2, 4, v1")
    a("v_readfirstlane_b32 %s, v6" % sW)
    a("v_and_b32 v3, 15, v0")
    a("v_bfe_u32 v4, v0, 2, 2")
    a("v_and_b32 v5, 3, v0")
    if STAMPS:
        a("v_mov_b32 v15, 0")
    if "badmap" in OPT:
        a("s_lshr_b32 %s, s2, 5" % sXC)
        a("s_and_b32 %s, s2, 31" % sJ)
    else:
        a("s_and_b32 %s, s2, 7" % sXC)
        a("s_lshr_b32 %s, s2, 3" % sJ)
    a("v_lshlrev_b32 v6, 7, v0")
    a("v_min_u32 v6, CODE_BYTES, v6")
    a("s_cmp_gt_u32 %s, 3" % sW)
    a("s_cbranch_scc1 Lnopf")
    raw(a, "global_load_dword v7, v6, s[6:7]")
    a("Lnopf:")
    sizes = {8: 2048 * 896, 12: 448 * 2688, 16: 448 * 896, 20: 448 * 3584, 24: 448 * 3584,
             28: 1792 * 896, 32: 2048 * 896, 36: WS_SIZE, 40: 256}
    for b, sz in sizes.items():
        a("s_mov_b32 s%d, %d" % (b + 2, sz))
        a("s_mov_b32 s%d, 0x00020000" % (b + 3))
    a("s_lshl_b32 %s, %s, 10" % (sW1024, sW))


def prologue2(a):
    a("s_waitcnt lgkmcnt(0)")
    src = {8: 64, 12: 66, 16: 68, 20: 72, 24: 74, 28: 76, 32: 78, 36: 82, 40: 80}
    for b, s in src.items():
        a("s_mov_b64 s[%d:%d], s[%d:%d]" % (b, b + 1, s, s + 1))


def nonce_publish(a):
    a("s_or_b32 s3, s2, %s" % sW)
    a("s_cmp_lg_u32 s3, 0")
    a("s_cbranch_scc1 Lnononce")
    raw(a, "s_or_b32 s3, s4, 1")
    if any(o.startswith("thr") for o in OPT):
        raw(a, "s_getreg_b32 s5, hwreg(HW_REG_XCC_ID)")
        raw(a, "s_and_b32 s5, s5, 7")
        raw(a, "s_andn2_b32 s3, s4, 15")
        raw(a, "s_or_b32 s3, s3, s5")
        raw(a, "s_or_b32 s3, s3, 8")
    raw(a, "v_mov_b32 v8, s3")
    raw(a, "v_mov_b32 v9, 0")
    raw(a, "s_mov_b64 exec, 1")
    raw(a, "buffer_store_dword v8, v9, %s, 0 offen sc1" % SDBG)
    raw(a, "s_mov_b64 exec, -1")
    a("Lnononce:")


def nonce_fetch(a, vN):
    L, Lp = a.label("nskip"), a.label("npoll")
    a("v_readfirstlane_b32 %s, %s" % (sNONCE, vN))
    raw(a, "s_nop 1")
    raw(a, "s_cmp_lg_u32 %s, 0" % sNONCE)
    raw(a, "s_cbranch_scc1 %s" % L)
    raw(a, "s_mov_b32 s3, 400000")
    raw(a, "v_mov_b32 v7, 0")
    raw(a, "%s:" % Lp)
    raw(a, "buffer_load_dword v6, v7, %s, 0 offen sc1" % SDBG)
    raw(a, "s_waitcnt vmcnt(0)")
    raw(a, "v_readfirstlane_b32 %s, v6" % sNONCE)
    raw(a, "s_sub_u32 s3, s3, 1")
    raw(a, "s_cbranch_scc1 %s" % L)
    raw(a, "s_nop 1")
    raw(a, "s_cmp_eq_u32 %s, 0" % sNONCE)
    raw(a, "s_cbranch_scc1 %s" % Lp)
    raw(a, "%s:" % L)
    raw(a, "s_nop 3")


def touch(a, jobs):
    Lend = a.label("tend")
    for (w, srd, n) in jobs:
        L = a.label("tn")
        raw(a, "s_cmp_lg_u32 %s, %d" % (sW, w))
        raw(a, "s_cbranch_scc1 %s" % L)
        raw(a, "s_mul_i32 s3, s2, %d" % (n * 128))
        raw(a, "v_min_u32 v6, %d, v1" % (n - 1))
        raw(a, "v_lshlrev_b32 v6, 7, v6")
        raw(a, "buffer_load_dword v7, v6, %s, s3 offen" % srd)
        raw(a, "s_branch %s" % Lend)
        raw(a, "%s:" % L)
    raw(a, "%s:" % Lend)


A_SLOT = 34816
A_XOFF = 24576
A_EX = 2 * A_SLOT
A_ST = 4 * A_SLOT
R0, R1, R2 = 0, 57344, 139264
B_RB = R2
C_ST = 149504

vWO_DMA, vWC_DMA, vWC_TR = "v176", "v177", 178
WGF, WUF = 80, 136
WOF = 128


def roles_BCD(a):
    a("s_mul_i32 %s, %s, 37" % (sRB, sJ))
    a("s_lshr_b32 %s, %s, 8" % (sRB, sRB))
    a("s_mul_i32 %s, %s, 7" % (sCB, sRB))
    a("s_sub_u32 %s, %s, %s" % (sCB, sJ, sCB))
    a("s_lshr_b32 %s, %s, 1" % (sT, sXC))
    a("s_lshl_b32 %s, %s, 2" % (sT, sT))
    a("s_add_u32 %s, %s, %s" % (sRQ, sRB, sT))
    a("s_and_b32 %s, %s, 1" % (sT, sXC))
    a("s_mul_i32 %s, %s, 7" % (sT, sT))
    a("s_add_u32 %s, %s, %s" % (sFS, sCB, sT))
    a("s_lshl_b32 %s, %s, 2" % (sT, sXC))
    a("s_add_u32 %s, %s, %s" % (sRB, sRB, sT))


def wo_dma(a, i0, i1, vaddr):
    for i in range(i0, i1):
        a("s_add_u32 m0, %s, %d" % (sW1024, R0 + i * 8192))
        a("s_mov_b32 %s, %d" % (sT, i * 64 * 896))
        a("buffer_load_dwordx4 %s, %s, %s offen lds" % (vaddr, SWO, sT), tag="wo")


def wc_dma(a, slabs, vaddr, tag):
    for (s, base) in slabs:
        a("s_add_u32 m0, %s, %d" % (sW1024, base))
        a("s_mov_b32 %s, %d" % (sT, (s % 14) * 114688))
        a("buffer_load_dwordx4 %s, %s, %s offen lds" % (vaddr, SWG if s < 14 else SWU, sT), tag=tag)


def wc_read(slabs, vtr):
    out = []
    for (s, base) in slabs:
        for hf in range(2):
            out.append("ds_read_b64_tr_b16 %s, v%d offset:%d" % (vr(WGF + 4 * s + 2 * hf, 2), vtr + base // 57344, base % 57344 + hf * 1024))
    return out


A_NM = A_ST
A_RHO = A_ST + 384


def phase_A(a):
    sTB, sHP, sT0, sTI, sHD = "s48", "s49", "s50", "s51", "s52"
    a("; ---------------- phase A ----------------")
    a("s_mul_i32 %s, %s, 37" % (sT, sJ))
    a("s_lshr_b32 %s, %s, 8" % (sT, sT))
    a("s_mul_i32 %s, %s, 7" % (sT2, sT))
    a("s_sub_u32 %s, %s, %s" % (sT2, sJ, sT2))
    a("s_add_u32 %s, %s, 1" % (sHP, sT2))
    a("s_cmp_lt_u32 %s, 28" % sJ)
    a("s_cselect_b32 %s, %s, 0" % (sHP, sHP))
    a("s_cselect_b32 %s, %s, %s" % (sT, sT, sT2))
    a("s_lshl_b32 %s, %s, 2" % (sTB, sXC))
    a("s_add_u32 %s, %s, %s" % (sTB, sTB, sT))
    a("s_lshl_b32 %s, %s, 6" % (sT0, sTB))
    a("s_and_b32 %s, %s, 3" % (sTI, sW))
    a("s_lshr_b32 %s, %s, 2" % (sHD, sW))
    a("v_lshrrev_b32 v12, 3, v1")
    a("v_and_b32 v13, 7, v1")
    a("v_lshlrev_b32 v14, 4, v1")
    ONES = 20
    BP, BC = 76, 80

    def slot(ch):
        return (ch + 1) % 4

    def common_setup(a):
        a("v_lshlrev_b32 v8, 2, v2")
        a("v_sub_u32 v9, v3, v8")
        a("s_lshl_b32 %s, %s, 2" % (sT, sTB))
        a("s_add_u32 %s, %s, %s" % (sT, sT, sTI))
        a("s_cmp_lt_u32 %s, 2" % sT)
        a("s_cselect_b32 %s, 0x10000, 0" % sT2)
        a("v_mov_b32 v11, 0x%x" % f2u(-1e30))
        for rr in range(4):
            a("v_subrev_u32 v10, %d, v9" % rr)
            a("v_cmp_gt_u32 vcc, 8, v10")
            a("v_cndmask_b32 v%d, v11, 0, vcc" % (BC + rr))
            a("v_add_u32 v10, 16, v10")
            a("v_add_u32 v10, %s, v10" % sT2)
            a("v_cmp_gt_u32 vcc, 8, v10")
            a("v_cndmask_b32 v%d, v11, 0, vcc" % (BP + rr))
        a("v_cmp_gt_u32 s[94:95], 3, v2")
        a("s_mul_i32 %s, %s, 3072" % (sT2, sHD))
        a("s_add_u32 %s, %s, %d" % (sT2, sT2, A_EX))
        a("s_mul_i32 %s, %s, 6144" % (sT, sTI))
        a("s_add_u32 %s, %s, %s" % (sT, sT, sT2))
        a("v_lshl_add_u32 v32, v1, 3, %s" % sT)
        a("v_lshl_add_u32 v9, v2, 2, v4")
        a("v_lshl_add_u32 v10, v5, 4, v9")
        a("v_lshl_add_u32 v33, v10, 3, %s" % sT)
        a("s_sub_u32 %s, %s, 12288" % (sT, sT))
        a("s_add_u32 %s, %s, %d" % (sT2, sT2, 4 * 6144))
        a("s_lshl_b32 s97, %s, 3" % sTI)
        a("s_lshl_b32 %s, %s, 6" % (sT3, sTI))
        a("s_add_u32 %s, %s, %d" % (sT3, sT3, A_RHO))
        a("v_lshl_add_u32 v36, v3, 2, %s" % sT3)
        a("v_lshl_add_u32 v37, v2, 4, %s" % sT3)
        a("s_sub_u32 %s, %s, 128" % (sT3, sT3))
        a("s_cmp_lt_u32 %s, 2" % sTI)
        a("s_cselect_b32 s96, 7, 15")
        a("s_cselect_b32 s97, s97, 0")
        a("s_cselect_b32 %s, %s, %s" % (sT, sT2, sT))
        a("s_cselect_b32 %s, %d, %s" % (sT3, A_RHO + 256, sT3))
        a("v_and_b32 v9, s96, v9")
        a("v_add_u32 v9, s97, v9")
        a("v_lshl_add_u32 v10, v5, 4, v9")
        a("v_lshl_add_u32 v34, v10, 3, %s" % sT)
        a("v_and_b32 v9, s96, v8")
        a("v_add_u32 v9, s97, v9")
        a("v_lshl_add_u32 v38, v9, 2, %s" % sT3)
        a("v_and_b32 v9, s96, v3")
        a("v_add_u32 v9, s97, v9")
        a("v_lshl_add_u32 v10, v2, 4, v9")
        a("v_lshl_add_u32 v35, v10, 3, %s" % sT)
        a("s_lshl_b32 %s, %s, 2" % (sT, sTB))
        a("s_add_u32 %s, %s, %s" % (sT, sT, sTI))
        a("s_lshl_b32 %s, %s, 4" % (sT, sT))
        a("s_lshl_b32 %s, %s, 1" % (sT2, sHP))
        a("s_add_u32 %s, %s, %s" % (sT, sT, sT2))
        a("s_add_u32 %s, %s, %s" % (sT, sT, sHD))
        a("s_lshl_b32 s98, %s, 10" % sT)
        a("s_lshl_b32 %s, %s, 7" % (sT, sTB))
        a("s_lshl_b32 %s, %s, 2" % (sT2, sHP))
        a("s_add_u32 %s, %s, %s" % (sT, sT, sT2))
        a("s_add_u32 s99, %s, %d" % (sT, WS_FA))
        roles_BCD(a)
        a("s_bfe_u32 %s, %s, 0x10001" % (sT, sW))
        a("s_lshl_b32 %s, %s, 3" % (sT, sT))
        a("v_lshl_or_b32 v8, v2, 1, %s" % sT)
        a("v_xor_b32 v8, v8, v3")
        a("s_lshl_b32 %s, %s, 2" % (sT, sW))
        a("v_add_u32 v9, %s, v2" % sT)
        a("v_mul_u32_u24 v9, 3584, v9")
        a("v_lshl_add_u32 v9, v8, 4, v9")
        a("s_lshl_b32 %s, %s, 8" % (sT, sFS))
        a("v_add_u32 v16, %s, v9" % sT)
        a("v_lshl_add_u32 v8, v2, 2, v4")
        a("s_mul_i32 %s, %s, 224" % (sT, sHD))
        a("v_add_u32 v8, %s, v8" % sT)
        a("v_lshlrev_b32 v8, 7, v8")
        a("v_and_b32 v9, 2, v4")
        a("v_lshlrev_b32 v9, 1, v9")
        a("s_lshl_b32 %s, %s, 2" % (sT, sHD))
        a("v_or_b32 v10, %s, v5" % sT)
        a("v_xor_b32 v10, v10, v9")
        a("v_lshl_add_u32 v28, v10, 4, v8")
        a("v_xor_b32 v29, 64, v28")
        a("v_mov_b32 v9, 2048")
        a("v_cndmask_b32 v9, 0, v9, s[94:95]")
        a("v_add_u32 v30, v28, v9")
        a("v_add_u32 v31, v29, v9")

    RQ, RC, RP = 39, 120, 124

    def rho_reads():
        a("ds_read_b32 v%d, v36" % RQ)
        a("ds_read_b128 %s, v37" % vr(RC))
        a("ds_read_b128 %s, v38" % vr(RP))

    a("s_cmp_lt_u32 %s, 4" % sW)
    a("s_cbranch_scc1 LAcons")
    sL2048, sL512 = "s54", "s65"
    vW0, vW1, vX0, vX1, vH, vWO = "v40", "v41", "v42", "v43", "v44", "v45"
    a("s_lshl_b32 %s, %s, 11" % (sL2048, sTI))
    a("v_and_b32 v8, 2, v12")
    a("v_xor_b32 v8, v8, v13")
    a("v_xor_b32 v10, 4, v8")
    a("v_min_u32 v8, 6, v8")
    a("v_min_u32 v10, 6, v10")
    a("s_lshl_b32 %s, %s, 4" % (sT, sTI))
    a("v_add_u32 v9, %s, v12" % sT)
    a("v_mul_u32_u24 v9, 2688, v9")
    a("s_mul_i32 %s, %s, 112" % (sT, sHP))
    a("v_add_u32 v9, %s, v9" % sT)
    a("v_lshl_add_u32 %s, v8, 4, v9" % vW0)
    a("v_add_u32 v9, %d, v9" % (8 * 2688))
    a("v_lshl_add_u32 %s, v10, 4, v9" % vW1)
    a("s_lshr_b32 %s, %s, 1" % (sT2, sTI))
    a("s_and_b32 %s, %s, 1" % (sT3, sTI))
    a("s_lshl_b32 %s, %s, 5" % (sT, sT2))
    a("s_add_u32 %s, %s, %s" % (sT, sT, sT0))
    a("s_add_u32 %s, %s, %s" % (sT, sT, sT3))
    a("v_lshl_add_u32 v9, v12, 1, %s" % sT)
    a("v_mul_u32_u24 v9, 896, v9")
    a("v_lshrrev_b32 v8, 1, v12")
    a("v_xor_b32 v8, v8, v13")
    a("v_lshl_add_u32 %s, v8, 4, v9" % vX0)
    a("v_xor_b32 v8, 4, v8")
    a("v_add_u32 v9, %d, v9" % (16 * 896))
    a("v_lshl_add_u32 %s, v8, 4, v9" % vX1)
    a("s_lshl_b32 %s, %s, 3" % (sT, sT3))
    a("s_add_u32 %s, %s, %s" % (sT, sT, sT2))
    a("s_add_u32 %s, %s, %s" % (sT, sT, sT0))
    a("s_sub_u32 %s, %s, 16" % (sT, sT))
    a("v_and_b32 v8, 3, v12")
    a("v_lshl_add_u32 v9, v8, 1, %s" % sT)
    a("v_max_i32 v9, 0, v9")
    a("v_mul_u32_u24 v9, 896, v9")
    a("v_lshrrev_b32 v8, 1, v8")
    a("s_lshl_b32 %s, %s, 1" % (sT, sTI))
    a("v_add_u32 v8, %s, v8" % sT)
    a("v_xor_b32 v8, v8, v13")
    a("v_lshl_add_u32 %s, v8, 4, v9" % vH)
    a("s_mov_b32 s59, 0")
    a("s_cmp_eq_u32 %s, 0" % sTI)
    a("s_cselect_b32 s58, 0xffffff00, -1")
    prologue2(a)
    a("s_lshl_b32 %s, %s, 9" % (sL512, sTI))
    if "rot" not in OPT:
        a("s_mov_b32 s67, 0")
    else:
        a("s_lshr_b32 s67, %s, 3" % sJ)
        a("s_lshl_b32 s67, s67, 1")
        a("s_mul_i32 %s, %s, %d" % (sT, sHP, ROTM))
        a("s_add_u32 s67, s67, %s" % sT)
        a("s_mul_i32 %s, s67, 37" % sT)
        a("s_lshr_b32 %s, %s, 8" % (sT, sT))
        a("s_mul_i32 %s, %s, 7" % (sT, sT))
        a("s_sub_u32 s67, s67, %s" % sT)
        a("s_lshl_b32 s67, s67, 7")

    def dma(ch, fill=()):
        fill = list(fill)
        per = (len(fill) + 8) // 9

        def f():
            for _ in range(per):
                while fill:
                    x = fill.pop(0)
                    a(x)
                    if not (fill and fill[0].startswith(("s_cselect", "v_cndmask"))):
                        break

        sb = slot(ch) * A_SLOT
        if ch:
            a("s_add_u32 s67, s67, 128")
            a("s_cmp_eq_u32 s67, 896")
            a("s_cselect_b32 s67, 0, s67")
        a("s_add_u32 m0, %s, %d" % (sL512, sb + A_XOFF + 8192))
        a("s_mov_b64 exec, s[58:59]")
        a("buffer_load_dwordx4 %s, %s, s67 offen lds" % (vH, SX), tag=("AX", ch))
        a("s_mov_b64 exec, -1")
        for i, v in enumerate((vX0, vX1)):
            a("s_add_u32 m0, %s, %d" % (sL2048, sb + A_XOFF + i * 1024))
            a("buffer_load_dwordx4 %s, %s, s67 offen lds" % (v, SX), tag=("AX", ch))
            f()
        a("s_mul_i32 s64, s67, 1344")
        for m in range(3):
            for i, v in enumerate((vW0, vW1)):
                a("s_add_u32 m0, %s, %d" % (sL2048, sb + m * 8192 + i * 1024 - m * 896))
                a("buffer_load_dwordx4 %s, %s, s64 offen offset:%d lds" % (v, SWQKV, m * 896), tag=("A", ch))
                f()
        for x in fill:
            a(x)

    a("s_setprio 3")
    stamp(a, "A start")
    dma(0)
    for i in range(4):
        a("v_mov_b32 v%d, 0x3f803f80" % (ONES + i))
    a("v_and_b32 v8, 3, v12")
    a("v_mul_u32_u24 v8, %d, v8" % A_SLOT)
    a("v_lshl_add_u32 v8, v13, 4, v8")
    a("ds_write_b128 v8, %s offset:%d" % (vr(ONES), A_XOFF + 8192))
    ST = 48
    for i in range(6):
        a("v_mov_b32 v%d, 0" % (ST + i))
    a("s_add_u32 %s, %s, %d" % (sT, sL2048, A_XOFF))
    a("v_add_u32 v54, %s, v14" % sT)
    a("v_add_u32 v55, %d, v54" % (2 * A_SLOT))
    a("s_add_u32 %s, %s, %d" % (sT, sL512, A_XOFF + 8192))
    a("v_add_u32 v56, %s, v14" % sT)
    a("v_add_u32 v57, %d, v56" % (2 * A_SLOT))
    dma(1)
    SR = 84

    def stats_rd(ch):
        sl = slot(ch)
        ib = (sl & 1) * A_SLOT
        a.wait_tag(("AX", ch))
        a("ds_read_b128 %s, v%d offset:%d" % (vr(SR), 54 + (sl >> 1), ib))
        a("ds_read_b128 %s, v%d offset:%d" % (vr(SR + 4), 54 + (sl >> 1), ib + 1024))
        a("ds_read_b128 %s, v%d offset:%d" % (vr(SR + 8), 56 + (sl >> 1), ib))

    def dots():
        o = []
        for i in range(4):
            for k in range(3):
                o.append("v_dot2c_f32_bf16 v%d, v%d, v%d" % (ST + 2 * k, SR + 4 * k + i, ONES))
                o.append("v_dot2c_f32_bf16 v%d, v%d, v%d" % (ST + 2 * k + 1, SR + 4 * k + i, SR + 4 * k + i))
        return o

    class Rec:
        def __init__(self):
            self.l = []

        def __call__(self, x, tag=None):
            self.l.append(x)

    def pieces(fn, n):
        rec = Rec()
        fn(rec)
        late, out = rec.l, []
        for k in range(n):
            nl = (len(late) + n - k - 1) // (n - k)
            while nl < len(late) and late[nl].startswith(("s_cselect", "v_cndmask")):
                nl += 1
            out.append(late[:nl])
            late = late[nl:]
        return out

    cs = pieces(common_setup, 4) + [[], []]
    stats_rd(0)
    for x in dots():
        a(x)
    for ch in range(6):
        a.wait_tag(("A", ch), lg0=True)
        a("s_barrier")
        if ch + 2 <= 6:
            stats_rd(ch + 1)
            dma(ch + 2, cs[ch] + dots())
        if ch == 3:
            a("v_and_b32 v8, 2, v12")
            a("v_lshlrev_b32 v8, 1, v8")
            a("v_xor_b32 v8, v8, v13")
            a("s_lshl_b32 %s, %s, 3" % (sT, sTI))
            a("v_add_u32 v9, %s, v12" % sT)
            a("v_mul_u32_u24 v9, 896, v9")
            a("v_lshl_add_u32 v9, v8, 4, v9")
            a("s_lshl_b32 %s, %s, 7" % (sT, sCB))
            a("v_add_u32 %s, %s, v9" % (vWO, sT))
            a("s_lshl_b32 s66, %s, 10" % sTI)
            a("s_lshl_b32 %s, %s, 6" % (sT, sTI))
            a("s_add_u32 %s, %s, %d" % (sT, sT, A_NM))
            a("v_lshl_add_u32 v46, v12, 2, %s" % sT)
            a("s_lshl_b32 %s, %s, 4" % (sT, sTI))
            a("s_add_u32 %s, %s, %d" % (sT, sT, A_NM + 256))
            a("v_lshl_add_u32 v47, v12, 2, %s" % sT)
            a("v_mov_b32 v6, 0")
            a("buffer_load_dword v17, v6, %s, 0 offen sc1" % SDBG)

    def wo_dma(i0, i1):
        for i in range(i0, i1):
            a("s_add_u32 m0, s66, %d" % (R0 + i * 4096))
            a("s_mov_b32 s64, %d" % (i * 32 * 896))
            a("buffer_load_dwordx4 %s, %s, s64 offen lds" % (vWO, SWO), tag="wo")

    stats_rd(6)
    wo_dma(0, 3)
    for x in dots():
        a(x)
    a("s_nop 2")
    for ctl in ("quad_perm:[1,0,3,2]", "quad_perm:[2,3,0,1]", "row_half_mirror"):
        for x in range(6):
            a("v_add_f32_dpp v%d, v%d, v%d %s row_mask:0xf bank_mask:0xf" % (ST + x, ST + x, ST + x, ctl))
    a("s_mov_b32 %s, 0x%x" % (sT, f2u(1.0 / 448)))
    a("v_mov_b32 v8, 0x%x" % f2u(1e-5))
    for k in range(3):
        a("v_mul_f32 v%d, -%s, v%d" % (ST + 2 * k, sT, ST + 2 * k))
        a("v_fma_f32 v%d, v%d, %s, v8" % (ST + 2 * k + 1, ST + 2 * k + 1, sT))
    for k in range(3):
        a("v_fma_f32 v%d, -v%d, v%d, v%d" % (ST + 2 * k + 1, ST + 2 * k, ST + 2 * k, ST + 2 * k + 1))
    for k in range(3):
        a("v_max_f32 v%d, v%d, v8" % (ST + 2 * k + 1, ST + 2 * k + 1))
    for k in range(3):
        a("v_rsq_f32 v%d, v%d" % (ST + 2 * k + 1, ST + 2 * k + 1))
    a("ds_write_b32 v46, v%d" % ST)
    a("ds_write_b32 v46, v%d offset:32" % (ST + 2))
    a("ds_write_b32 v46, v%d offset:384" % (ST + 1))
    a("ds_write_b32 v46, v%d offset:416" % (ST + 3))
    a("s_mov_b32 exec_hi, 0")
    a("ds_write_b32 v47, v%d" % (ST + 4))
    a("ds_write_b32 v47, v%d offset:384" % (ST + 5))
    a("s_mov_b64 exec, -1")
    a.wait_tag(("A", 6), lg0=True)
    a("s_barrier")
    rho_reads()
    wo_dma(3, 14)
    a("s_waitcnt vmcnt(0) lgkmcnt(0)")
    a("s_setprio 0")
    a("s_branch LAjoin")

    a("LAcons:")
    a.vm, a.lg = [], []
    prologue2(a)
    nonce_publish(a)
    AD, NAD = 128, 5
    a("s_and_b32 s66, %s, 1" % sW)
    a("s_lshr_b32 s67, %s, 1" % sW)
    a("v_bfe_u32 v8, v3, 1, 3")
    a("v_xor_b32 v8, v8, v2")
    a("v_lshlrev_b32 v8, 4, v8")
    a("v_lshl_add_u32 v8, v3, 7, v8")
    a("v_add_u32 v%d, %d, v8" % (AD, A_XOFF))
    a("v_xor_b32 v%d, 64, v%d" % (AD + 1, AD))
    a("v_and_b32 v8, 2, v4")
    a("v_and_b32 v9, 1, v2")
    a("v_lshl_or_b32 v8, v9, 2, v8")
    a("v_lshlrev_b32 v8, 4, v8")
    a("v_lshl_add_u32 v9, v2, 3, v4")
    a("v_lshlrev_b32 v9, 7, v9")
    a("s_mul_i32 s68, s66, 3")
    a("s_mul_i32 %s, s67, 56" % sT2)
    for j in range(3):
        a("s_add_u32 %s, s68, %d" % (sT3, j))
        a("s_and_b32 %s, %s, 1" % (sT, sT3))
        a("s_lshl_b32 %s, %s, 5" % (sT, sT))
        a("s_add_u32 %s, %s, %s" % (sT, sT, sT2))
        a("v_lshl_add_u32 v10, v5, 3, %s" % sT)
        a("v_xor_b32 v10, v10, v8")
        a("s_lshr_b32 %s, %s, 1" % (sT, sT3))
        a("s_lshl_b32 %s, %s, 13" % (sT, sT))
        a("v_add3_u32 v%d, v10, v9, %s" % (AD + 2 + j, sT))
    for i in range(NAD):
        a("v_add_u32 v%d, %d, v%d" % (AD + NAD + i, 2 * A_SLOT, AD + i))
    a("s_mul_i32 %s, %s, 1536" % (sT, sW))
    a("s_add_u32 %s, %s, %d" % (sT, sT, A_EX))
    a("v_lshl_add_u32 v138, v1, 3, %s" % sT)
    a("v_lshlrev_b32 v139, 2, v3")
    a("v_add_u32 v139, %d, v139" % A_NM)
    if "touch0" in OPT:
        touch(a, [(2, SWQKV, 37), (3, SX, 56)])
    common_setup(a)
    if "notouch1" not in OPT:
        touch(a, [(2, SWQKV, 37), (3, SX, 56)])
    ACC = 140
    FB = [40, 84]
    NM = 200

    def reads(n):
        ch, ks = n >> 1, n & 1
        sl = slot(ch)
        ab = AD if sl < 2 else AD + NAD
        ib = (sl & 1) * A_SLOT
        fb = FB[ks]
        tr = lambda j, hf: "ds_read_b64_tr_b16 %s, v%d offset:%d" % (vr(fb + 20 + 4 * j + 2 * hf, 2), ab + 2 + j, ib + ks * 4096 + hf * 512)
        xr = lambda t: "ds_read_b128 %s, v%d offset:%d" % (vr(fb + 4 * t), ab + ks, ib + t * 2048)
        return [tr(0, 0), tr(0, 1), xr(4), xr(0), xr(1), xr(2), xr(3), tr(1, 0), tr(1, 1), tr(2, 0), tr(2, 1)]

    def compute(n):
        fb = FB[n & 1]
        z = "0" if n == 0 else None
        return [mfma(ACC + 20 * j + 4 * t, fb + 20 + 4 * j, fb + 4 * t, z) for j in range(3) for t in (4, 0, 1, 2, 3)]

    def norm(j):
        o = []
        for t in (0, 1, 2, 3, 4):
            acc = ACC + 20 * j + 4 * t
            for rr in range(4):
                o.append("v_fmac_f32_dpp v%d, v%d, v%d row_newbcast:0 row_mask:0xf bank_mask:0xf" % (acc + rr, ACC + 20 * j + 16 + rr, NM + t))
            pk = 208 + 2 * ((5 * j + t) % 4)
            o.append("v_cvt_pk_bf16_f32 v%d, v%d, v%d" % (pk, acc, acc + 1))
            o.append("v_cvt_pk_bf16_f32 v%d, v%d, v%d" % (pk + 1, acc + 2, acc + 3))
            o.append("ds_write_b64 v138, %s offset:%d" % (vr(pk, 2), t * 6144 + j * 512))
        return o

    for ch in range(7):
        if "notouch" not in OPT:
            jobs = [j for (t, j) in ((TCH, (0, SWO, 13)), (TCH, (1, SWG, 49)), (TCU, (2, SWU, 49)), (TCD, (3, SWD, 49))) if t == ch]
            if jobs:
                touch(a, jobs)
        if ch == 4:
            a("v_mov_b32 v6, 0")
            a("buffer_load_dword v17, v6, %s, 0 offen sc1" % SDBG)
        a("s_waitcnt lgkmcnt(0)")
        a("s_barrier")
        if ch in (0, 6):
            stamp(a, "A ch%d landed" % ch)
        for x in reads(2 * ch):
            a(x)
        rd = reads(2 * ch + 1)
        if ch == 6:
            rd += ["ds_read_b32 v%d, v139 offset:%d" % (NM + t, 64 * t) for t in range(5)]
        for x in compute(2 * ch):
            a(x)
            for _ in range(2 if ch == 6 else 1):
                if rd:
                    a(rd.pop(0))
        nr = []
        for i, x in enumerate(compute(2 * ch + 1)):
            a(x)
            if ch == 6:
                if i == 6:
                    nr += norm(0)
                if i == 11:
                    nr += norm(1)
                for _ in range(3):
                    if nr:
                        a(nr.pop(0))
    stamp(a, "A loop done")
    for x in nr + norm(2):
        a(x)
    rho_reads()
    a("s_waitcnt vmcnt(0) lgkmcnt(0)")
    a("LAjoin:")
    a.vm, a.lg = [], []
    a("s_barrier")
    QP, KC, KP, V0, V1 = 100, 104, 108, 112, 116
    a("ds_read_b64 %s, v32" % vr(QP, 2))
    a("ds_read_b64 %s, v32 offset:512" % vr(QP + 2, 2))
    a("ds_read_b64 %s, v32 offset:1024" % vr(KC, 2))
    a("ds_read_b64 %s, v32 offset:1536" % vr(KC + 2, 2))
    a("ds_read_b64 %s, v35 offset:1024" % vr(KP, 2))
    a("ds_read_b64 %s, v35 offset:1536" % vr(KP + 2, 2))
    a("ds_read_b64_tr_b16 %s, v34 offset:2048" % vr(V0, 2))
    a("ds_read_b64_tr_b16 %s, v33 offset:2048" % vr(V0 + 2, 2))
    a("ds_read_b64_tr_b16 %s, v34 offset:2560" % vr(V1, 2))
    a("ds_read_b64_tr_b16 %s, v33 offset:2560" % vr(V1 + 2, 2))
    a("v_mul_f32 v13, 0x%x, v%d" % (f2u(28 ** -0.5 * LOG2E), RQ))
    nonce_fetch(a, "v17")
    a("v_cndmask_b32 v%d, 0, v%d, s[94:95]" % (QP + 2, QP + 2))
    a("v_cndmask_b32 v%d, 0, v%d, s[94:95]" % (QP + 3, QP + 3))
    a(mfma(BC, KC, QP))
    a(mfma(BP, KP, QP))
    for i in range(4):
        a("v_mul_f32 v%d, v%d, v%d" % (BC + i, RC + i, BC + i))
    for i in range(4):
        a("v_mul_f32 v%d, v%d, v%d" % (BP + i, RP + i, BP + i))
    a("v_max3_f32 v8, v%d, v%d, v%d" % (BC, BC + 1, BC + 2))
    a("v_max3_f32 v9, v%d, v%d, v%d" % (BC + 3, BP, BP + 1))
    a("v_max3_f32 v8, v8, v%d, v%d" % (BP + 2, BP + 3))
    a("v_max_f32 v8, v8, v9")
    xg_reduce_multi(a, "v_max_f32", ["v8"], ["v9"])
    a("v_mul_f32 v8, v13, v8")
    for i in range(8):
        a("v_fma_f32 v%d, v%d, v13, -v8" % (BP + i, BP + i))
    for i in range(8):
        a("v_exp_f32 v%d, v%d" % (BP + i, BP + i))
    a("v_add_f32 v9, v%d, v%d" % (BP, BP + 1))
    a("v_add_f32 v10, v%d, v%d" % (BP + 2, BP + 3))
    a("v_add_f32 v11, v%d, v%d" % (BP + 4, BP + 5))
    a("v_add_f32 v12, v%d, v%d" % (BP + 6, BP + 7))
    a("v_add_f32 v9, v9, v10")
    a("v_add_f32 v11, v11, v12")
    a("v_add_f32 v9, v9, v11")
    a("v_mov_b32 v10, v9")
    a("v_mul_f32 v%d, v%d, v%d" % (BP, RP, BP))
    a("v_mul_f32 v%d, v%d, v%d" % (BP + 1, RP + 1, BP + 1))
    a("v_permlane32_swap_b32 v10, v9")
    a("v_add_f32 v9, v9, v10")
    a("v_mov_b32 v10, v9")
    a("v_mul_f32 v%d, v%d, v%d" % (BP + 2, RP + 2, BP + 2))
    a("v_mul_f32 v%d, v%d, v%d" % (BP + 3, RP + 3, BP + 3))
    a("v_permlane16_swap_b32 v10, v9")
    a("v_add_f32 v9, v9, v10")
    a("v_rcp_f32 v9, v9")
    for i in range(4):
        a("v_mul_f32 v%d, v%d, v%d" % (BC + i, RC + i, BC + i))
    for i in range(8):
        a("v_mul_f32 v%d, v9, v%d" % (BP + i, BP + i))
    P = 96
    for i in range(4):
        a("v_cvt_pk_bf16_f32 v%d, v%d, v%d" % (P + i, BP + 2 * i, BP + 2 * i + 1))
    O0, O1 = 40, 44
    a(mfma(O0, V0, P, "0"))
    a(mfma(O1, V1, P, "0"))
    OS = 124
    a("v_cvt_pk_bf16_f32 v%d, v%d, v%d" % (OS, O0, O0 + 1))
    a("v_cvt_pk_bf16_f32 v%d, v%d, v%d" % (OS + 1, O0 + 2, O0 + 3))
    a("v_cvt_pk_bf16_f32 v%d, v%d, v%d" % (OS + 2, O1, O1 + 1))
    a("v_cvt_pk_bf16_f32 v%d, v%d, v%d" % (OS + 3, O1 + 2, O1 + 3))
    a("v_cndmask_b32 v%d, 0, v%d, s[94:95]" % (OS + 2, OS + 2))
    a("v_cndmask_b32 v%d, 0, v%d, s[94:95]" % (OS + 3, OS + 3))
    a("buffer_store_dwordx4 %s, v14, %s, s98 offen%s" % (vr(OS), SWS, SC), tag="ost")
    stamp(a, "A o stored")


G1 = [(s, R1 + 8192 * s) for s in range(10)]
G2 = [(10 + i, R0 + 8192 * i) for i in range(7)]
G3 = [(17 + i, R1 + 8192 * i) for i in range(10)] + [(27, R2 + 16384)]


def helper(a):
    R = lambda x: raw(a, x)
    R("s_lshl_b32 %s, %s, 3" % (sT, sCB))
    R("s_add_u32 %s, %s, %s" % (sT, sT, sXC))
    R("s_mul_i32 %s, %s, %d" % (sT, sT, 392 * 128))
    R("v_min_u32 v8, 391, v0")
    R("v_lshlrev_b32 v8, 7, v8")
    if TCU > 6:
        R("buffer_load_dword v40, v8, %s, %s offen" % (SWU, sT))
    if TCD > 6:
        R("buffer_load_dword v41, v8, %s, %s offen" % (SWD, sT))


def phase_B(a):
    sTT, sKH, sTAU, sU = "s50", "s51", "s52", "s54"
    a("; ---------------- A->B ----------------")
    a("s_cmp_lt_u32 %s, 28" % sJ)
    a("s_cbranch_scc1 LgoB")
    raw(a, "s_waitcnt vmcnt(0)")
    raw(a, "s_barrier")
    publish(a, "s99")
    if "nohelp" not in OPT:
        helper(a)
    raw(a, "s_branch Lfin")
    a("LgoB:")
    worder = []
    for hh in range(8):
        for t in range(4):
            off = R0 + hh * 3584 + (t & 1) * 8
            worder.append("ds_read_b64_tr_b16 %s, v%d offset:%d" % (vr(WOF + 16 * hh + 4 * t, 2), 28 + (t >> 1), off))
            worder.append("ds_read_b64_tr_b16 %s, v%d offset:%d" % (vr(WOF + 16 * hh + 4 * t + 2, 2), 30 + (t >> 1), off))
    wc_dma(a, G1[6:10], "v16", "g1")
    a("s_and_b32 %s, %s, 3" % (sTT, sW))
    a("s_lshr_b32 %s, %s, 2" % (sKH, sW))
    a("s_lshl_b32 %s, %s, 2" % (sTAU, sRB))
    a("s_add_u32 %s, %s, %s" % (sTAU, sTAU, sTT))
    a("s_lshr_b32 %s, %s, 1" % (sT, sTAU))
    a("s_lshl_b32 %s, %s, 5" % (sT, sT))
    a("s_and_b32 %s, %s, 1" % (sT2, sTAU))
    a("s_add_u32 %s, %s, %s" % (sT, sT, sT2))
    a("v_lshl_add_u32 v8, v3, 1, %s" % sT)
    a("v_mul_u32_u24 v8, 896, v8")
    a("v_lshl_add_u32 v8, v2, 4, v8")
    a("s_lshl_b32 %s, %s, 1" % (sU, sCB))
    a("s_add_u32 %s, %s, %s" % (sU, sU, sKH))
    a("s_lshl_b32 %s, %s, 6" % (sT3, sU))
    for x in worder[:WOPRE]:
        a(x)
    a.wait_tag("ost")
    a("s_barrier")
    publish(a, "s99")
    stamp(a, "A flag")
    XR = 20
    a("buffer_load_dwordx4 %s, v8, %s, %s offen" % (vr(XR), SX, sT3))
    wc_dma(a, G1[:6], "v16", "g1")
    for x in worder[WOPRE:]:
        a(x)
    a("v_and_b32 v8, 1, v2")
    a("v_lshl_or_b32 v8, v8, 2, v4")
    a("v_lshlrev_b32 v8, 1, v8")
    a("v_lshrrev_b32 v9, 1, v5")
    a("s_lshl_b32 %s, %s, 1" % (sT, sW))
    a("v_add_u32 v9, %s, v9" % sT)
    a("v_xor_b32 v8, v8, v9")
    a("v_lshl_add_u32 v9, v2, 3, v4")
    a("v_lshlrev_b32 v9, 8, v9")
    a("v_lshl_add_u32 v9, v8, 4, v9")
    a("v_and_b32 v8, 1, v5")
    a("v_lshl_add_u32 v17, v8, 3, v9")
    a("v_add_u32 v18, 57344, v17")
    a("v_add_u32 v19, 114688, v17")
    OF, ACC = 32, 64
    for i in range(4):
        a("v_lshlrev_b32 v%d, 16, v%d" % (ACC + 2 * i, XR + i))
        a("v_and_b32 v%d, 0xffff0000, v%d" % (ACC + 2 * i + 1, XR + i))
    a("s_lshl_b32 %s, %s, 4" % (sT2, sTAU))
    a("s_lshl_b32 %s, %s, 3" % (sT3, sKH))
    a("s_add_u32 %s, %s, %s" % (sT2, sT2, sT3))
    a("s_lshl_b32 %s, %s, 10" % (sT2, sT2))
    a("s_add_u32 %s, %s, 4096" % (sT3, sT2))
    a("s_lshl_b32 %s, %s, 11" % (sT, sW))
    a("s_add_u32 %s, %s, %d" % (sT, sT, B_RB))
    a("v_add_u32 v12, %s, v14" % sT)
    a("s_xor_b32 %s, %s, 4" % (sT, sW))
    a("s_lshl_b32 %s, %s, 11" % (sT, sT))
    a("s_add_u32 %s, %s, %d" % (sT, sT, B_RB))
    a("v_add_u32 v13, %s, v14" % sT)
    a("s_mul_i32 s58, %s, 14" % sTAU)
    a("s_add_u32 s58, s58, %s" % sU)
    a("s_lshl_b32 s59, s58, 7")
    a("s_add_u32 s59, s59, %d" % WS_ST)
    a("s_lshl_b32 s58, s58, 10")
    a("s_add_u32 s58, s58, %d" % WS_H)
    a("s_lshl_b32 s60, %s, 7" % sRB)
    a("s_add_u32 s60, s60, %d" % WS_FA)
    a("s_lshr_b32 s61, %s, 1" % sRB)
    a("s_lshl_b32 s61, s61, 7")
    a("s_and_b32 %s, %s, 1" % (sT, sRB))
    a("s_mul_i32 %s, %s, 28" % (sT, sT))
    a("s_add_u32 s61, s61, %s" % sT)
    a("s_lshl_b32 %s, %s, 2" % (sT, sCB))
    a("s_add_u32 s61, s61, %s" % sT)
    a("s_add_u32 s61, s61, %d" % WS_FB)
    a("v_lshlrev_b32 v11, 3, v3")
    a("s_waitcnt lgkmcnt(0)")
    stamp(a, "B pre-poll")
    poll(a, "s60", 0xff, 0)
    stamp(a, "B go")
    for hh in range(8):
        a("buffer_load_dwordx4 %s, v14, %s, %s offen offset:%d%s" % (vr(OF + 4 * hh), SWS, sT2 if hh < 4 else sT3, (hh & 3) * 1024, SC))
    a("s_barrier")
    for hh in range(8):
        if hh < 7:
            wc_dma(a, G2[hh:hh + 1], "v16", "g2")
        for t in (2, 3, 0, 1):
            a(mfma(ACC + 4 * t, WOF + 16 * hh + 4 * t, OF + 4 * hh, "0" if (hh == 0 and t >= 2) else None))
    a("ds_write_b128 v12, %s" % vr(ACC + 8))
    a("ds_write_b128 v12, %s offset:1024" % vr(ACC + 12))
    a("s_waitcnt lgkmcnt(0)")
    a("s_barrier")
    a("ds_read_b128 %s, v13" % vr(ACC + 8))
    a("ds_read_b128 %s, v13 offset:1024" % vr(ACC + 12))
    a("v_mov_b32 v8, 0")
    a("v_mov_b32 v9, 0")
    a("v_mov_b32 v6, 0")
    a("v_mov_b32 v7, 0")
    a("v_mov_b32 v10, 0x3f803f80")
    for i in range(8):
        a("v_add_f32 v%d, v%d, v%d" % (ACC + i, ACC + i, ACC + 8 + i))
    HP = 24
    for i in range(4):
        a("v_cvt_pk_bf16_f32 v%d, v%d, v%d" % (HP + i, ACC + 2 * i, ACC + 2 * i + 1))
    a("buffer_store_dwordx4 %s, v14, %s, s58 offen%s" % (vr(HP), SWS, SC))
    for i in range(4):
        a("v_dot2c_f32_bf16 v%d, v%d, v10" % (8 if i & 1 else 6, HP + i))
        a("v_dot2c_f32_bf16 v%d, v%d, v%d" % (9 if i & 1 else 7, HP + i, HP + i))
    a("v_add_f32 v8, v8, v6")
    a("v_add_f32 v9, v9, v7")
    xg_reduce_multi(a, "v_add_f32", ["v8", "v9"], ["v6", "v7"])
    a("s_mov_b64 exec, 0xffff")
    a("buffer_store_dwordx2 v[8:9], v11, %s, s59 offen%s" % (SWS, SC), tag="hst")
    a("s_mov_b64 exec, -1")
    stamp(a, "B h stored")


D_RDY = 163836
C_S0 = 116736
WDF = [224, 240, 64, 80, 96, 112, 128]


def emit_group(a, g):
    for (x, tg) in g:
        a(x, tag=tg)


def wd_dma_groups(u, base):
    gs = []
    for i4 in range(4):
        i = 4 * u + i4
        gs.append([("s_add_u32 m0, s63, %d" % (base + i4 * 1024), None),
                   ("s_mov_b32 s65, %d" % ((16 * (i >> 1) + 4 * (i & 1)) * 896), None),
                   ("buffer_load_dwordx4 v17, %s, s65 offen lds" % SWD, ("wd", u))])
    return gs


def wd_reads(u, base):
    out = []
    for t in range(4):
        for hf in range(2):
            out.append("ds_read_b64_tr_b16 %s, v%d offset:%d" % (vr(WDF[u] + 4 * t + 2 * hf, 2), 8 + t, base + hf * 1024))
    return out


def phase_C(a):
    a("; ---------------- B->C ----------------")
    wc_dma(a, G3[10:], "v16", "g3")
    for x in wc_read(G1, 17):
        a(x)
    a.wait_tag("hst", lg0=True)
    a("s_barrier")
    publish(a, "s61")
    stamp(a, "B flag")
    wc_dma(a, G3[:10], "v16", "g3")
    for x in wc_read(G2, 17):
        a(x)
    ONES, CSG, CSU = 20, 24, 28
    for i in range(4):
        a("v_mov_b32 v%d, 0x3f803f80" % (ONES + i))
    for u in range(14):
        a(mfma(CSG, WGF + 4 * u, ONES, "0" if u == 0 else None))
    a("s_mul_i32 %s, %s, 114688" % (sT2, sRQ))
    a("s_add_u32 %s, %s, %d" % (sT2, sT2, WS_H))
    a("s_mul_i32 s62, %s, 3584" % sW)
    a("v_add_u32 v12, s62, v14")
    a("s_lshl_b32 %s, %s, 3" % (sT3, sRQ))
    a("s_add_u32 %s, %s, %s" % (sT3, sT3, sW))
    a("s_mul_i32 %s, %s, 1792" % (sT3, sT3))
    a("s_add_u32 %s, %s, %d" % (sT3, sT3, WS_ST))
    for i in range(4):
        a("v_mov_b32 v%d, 0" % (60 + i))
    a("v_and_b32 v8, 1, v2")
    a("v_mul_u32_u24 v8, 57344, v8")
    a("v_lshrrev_b32 v10, 1, v2")
    a("s_and_b32 %s, %s, 1" % (sT, sW))
    a("s_lshl_b32 %s, %s, 1" % (sT, sT))
    a("v_add_u32 v10, %s, v10" % sT)
    a("v_lshl_add_u32 v8, v10, 8, v8")
    a("v_lshl_add_u32 v13, v3, 4, v8")
    a("s_mul_i32 s58, %s, 448" % sRQ)
    a("s_lshl_b32 %s, %s, 2" % (sT, sFS))
    a("s_add_u32 s58, s58, %s" % sT)
    a("s_lshr_b32 %s, %s, 1" % (sT, sW))
    a("s_add_u32 s58, s58, %s" % sT)
    a("s_lshl_b32 s58, s58, 10")
    a("s_add_u32 s58, s58, %d" % WS_HH)
    a("s_mov_b32 s59, 0x%x" % f2u(-LOG2E))
    a("s_lshl_b32 s60, %s, 7" % sRQ)
    a("s_add_u32 s60, s60, %d" % WS_FB)
    a("s_lshl_b32 s61, %s, 8" % sRQ)
    a("s_lshl_b32 %s, %s, 2" % (sT, sFS))
    a("s_add_u32 s61, s61, %s" % sT)
    a("s_add_u32 s61, s61, %d" % WS_FC)
    a("s_lshl_b32 s63, %s, 12" % sW)
    a("s_lshr_b32 %s, %s, 1" % (sT, sRB))
    a("s_lshl_b32 s67, %s, 8" % sT)
    a("s_add_u32 s67, s67, %d" % WS_FC)
    a("s_lshl_b32 s70, %s, 7" % sT)
    a("s_lshl_b32 %s, %s, 3" % (sT, sT))
    a("s_and_b32 s64, %s, 1" % sRB)
    a("s_add_u32 %s, %s, s64" % (sT, sT))
    a("s_add_u32 s70, s70, s64")
    a("s_mul_i32 s70, s70, 896")
    a("s_lshl_b32 s64, %s, 7" % sCB)
    a("s_add_u32 s70, s70, s64")
    a("s_mul_i32 s68, %s, 56" % sT)
    a("s_mul_i32 s64, %s, 7" % sW)
    a("s_add_u32 s68, s68, s64")
    a("s_lshl_b32 s68, s68, 10")
    a("s_add_u32 s68, s68, %d" % WS_HH)
    a("s_and_b32 s64, %s, 6" % sW)
    a("s_add_u32 %s, %s, s64" % (sT, sT))
    a("s_mul_i32 s69, %s, 14" % sT)
    a("s_lshl_b32 s64, %s, 1" % sCB)
    a("s_add_u32 s69, s69, s64")
    a("s_and_b32 s64, %s, 1" % sW)
    a("s_add_u32 s69, s69, s64")
    a("s_lshl_b32 s69, s69, 10")
    a("s_add_u32 s69, s69, %d" % WS_H)
    a("v_and_b32 v6, 1, v2")
    a("v_lshl_add_u32 v6, v6, 2, v4")
    a("v_and_b32 v7, 6, v6")
    a("v_lshrrev_b32 v10, 1, v5")
    a("v_xor_b32 v7, v7, v10")
    a("v_lshrrev_b32 v10, 1, v2")
    a("v_lshl_add_u32 v6, v10, 4, v6")
    a("v_lshlrev_b32 v6, 7, v6")
    a("v_lshl_add_u32 v6, v7, 4, v6")
    a("v_and_b32 v7, 1, v5")
    a("v_lshl_add_u32 v6, v7, 3, v6")
    a("s_add_u32 %s, s63, 65536" % sT)
    a("v_add_u32 v8, %s, v6" % sT)
    for t in range(1, 4):
        a("v_xor_b32 v%d, %d, v8" % (8 + t, 32 * t))
    a("s_waitcnt lgkmcnt(0)")
    stamp(a, "C pre-poll")
    poll(a, "s60", 0x3fff, 0)
    stamp(a, "C go")

    def h_groups(tp):
        tg = ("h", tp)
        gs = []
        for i in range(4):
            g = []
            if i == 0:
                g.append(("s_add_u32 s64, %s, %d" % (sT2, tp * 28672), None))
            g.append(("s_add_u32 m0, s62, %d" % (tp * 28672), None))
            if i == 3:
                g.append(("s_mov_b32 exec_hi, 0", None))
            g.append(("buffer_load_dwordx4 v12, %s, s64 offen offset:%d%s lds" % (SWS, i * 1024, SC), tg))
            if i == 3:
                g.append(("s_mov_b64 exec, -1", None))
            gs.append(g)
        return gs

    a("buffer_load_dwordx4 v[56:59], v14, %s, %s offen%s" % (SWS, sT3, SC))
    a("s_mov_b32 exec_hi, 0xffff")
    a("buffer_load_dwordx4 v[60:63], v14, %s, %s offen offset:1024%s" % (SWS, sT3, SC))
    a("s_mov_b64 exec, -1")
    for g in h_groups(0):
        emit_group(a, g)
    a.wait_tag("g3")
    a("s_barrier")
    for x in wc_read(G3, 17):
        a(x)
    a("v_lshrrev_b32 v6, 3, v1")
    a("v_and_b32 v7, 7, v1")
    a("v_and_b32 v16, 6, v6")
    a("v_xor_b32 v7, v16, v7")
    a("v_and_b32 v16, 3, v6")
    a("v_lshrrev_b32 v6, 2, v6")
    a("v_lshl_add_u32 v16, v6, 3, v16")
    a("s_mul_i32 %s, %s, 224" % (sT, sW))
    a("v_add_u32 v16, %s, v16" % sT)
    a("v_mul_u32_u24 v16, 896, v16")
    a("v_lshl_add_u32 v16, v7, 4, v16")
    a("s_lshl_b32 %s, %s, 7" % (sT, sCB))
    a("v_add_u32 v17, %s, v16" % sT)
    a("v_add_u32 v16, 57344, v14")
    a("v_lshlrev_b32 v19, 4, v3")
    a("v_add_u32 v19, %d, v19" % C_ST)
    a("s_lshl_b32 %s, %s, 8" % (sT, sW))
    a("s_add_u32 %s, %s, %d" % (sT, sT, C_ST))
    a("v_and_b32 v18, 7, v1")
    a("v_lshl_add_u32 v18, v18, 5, %s" % sT)
    for u in range(14):
        a(mfma(CSU, WUF + 4 * u, ONES, "0" if u == 0 else None))
    st = []
    for i in range(4):
        st.append("v_add_f32 v%d, v%d, v%d" % (56 + i, 56 + i, 60 + i))
    for i in range(4):
        st.append("v_add_f32_dpp v%d, v%d, v%d row_ror:8 row_mask:0xf bank_mask:0xf" % (56 + i, 56 + i, 56 + i))
    for step in ("v_permlane32_swap_b32", "v_permlane16_swap_b32"):
        for i in range(4):
            st.append("v_mov_b32 v%d, v%d" % (60 + i, 56 + i))
        for i in range(4):
            st.append("%s v%d, v%d" % (step, 60 + i, 56 + i))
        for i in range(4):
            st.append("v_add_f32 v%d, v%d, v%d" % (56 + i, 56 + i, 60 + i))
    st.append("s_mov_b32 %s, 0x%x" % (sT, f2u(1.0 / 448)))
    st.append("v_mov_b32 v6, 0x%x" % f2u(1e-5))
    for tk in range(2):
        s1, s2, d = 56 + 2 * tk, 57 + 2 * tk, 32 + 4 * tk
        st.append("v_mul_f32 v%d, -%s, v%d" % (d, sT, s1))
        st.append("v_fma_f32 v%d, v%d, %s, v6" % (s2, s2, sT))
        st.append("v_fma_f32 v%d, -v%d, v%d, v%d" % (s2, d, d, s2))
        st.append("v_max_f32 v%d, v%d, v6" % (s2, s2))
        st.append("v_sqrt_f32 v%d, v%d" % (d + 2, s2))
        st.append("v_rsq_f32 v%d, v%d" % (s2, s2))
        st.append("v_mul_f32 v%d, s59, v%d" % (d + 1, s2))
    st.append("ds_write_b128 v18, v[32:35]")
    st.append("ds_write_b128 v18, v[36:39] offset:16")
    for x in st:
        a(x)
    st = []
    AF, NR = 192, 8
    ACCS = [40, 48]
    STS = [32, 36]
    PKD = [56, 60]

    def epi(i):
        g, u_, s, pk = ACCS[i & 1], ACCS[i & 1] + 4, STS[i & 1], PKD[(i >> 1) & 1]
        o = []
        o.append("ds_read_b128 %s, v19 offset:%d" % (vr(s), i * 256))
        o.append(None)
        o.append(None)
        for rr in range(4):
            o.append("v_fmac_f32 v%d, v%d, v%d" % (g + rr, s, CSG + rr))
        for rr in range(4):
            o.append("v_mul_f32 v%d, v%d, v%d" % (g + rr, s + 1, g + rr))
        for rr in range(4):
            o.append("v_exp_f32 v%d, v%d" % (g + rr, g + rr))
        for rr in range(4):
            o.append("v_fmac_f32 v%d, v%d, v%d" % (u_ + rr, s, CSU + rr))
        for rr in range(4):
            o.append("v_fma_f32 v%d, v%d, v%d, v%d" % (g + rr, g + rr, s + 2, s + 2))
        for rr in range(4):
            o.append("v_rcp_f32 v%d, v%d" % (g + rr, g + rr))
        for rr in range(4):
            o.append("v_mul_f32 v%d, v%d, v%d" % (g + rr, g + rr, u_ + rr))
        o.append("v_cvt_pk_bf16_f32 v%d, v%d, v%d" % (pk + 2 * (i & 1), g, g + 1))
        o.append("v_cvt_pk_bf16_f32 v%d, v%d, v%d" % (pk + 2 * (i & 1) + 1, g + 2, g + 3))
        if i & 1:
            o.append("v_permlane16_swap_b32 v%d, v%d" % (pk, pk + 2))
            o.append("v_permlane16_swap_b32 v%d, v%d" % (pk + 1, pk + 3))
            o.append(("buffer_store_dwordx4 %s, v13, %s, s58 offen%s" % (vr(pk), SWS, SC), ("hh", i >> 1)))
            o.append("s_add_u32 s58, s58, %d" % (2 * 57344))
        return o

    def emit(x):
        if x is None:
            return
        if isinstance(x, tuple):
            a(x[0], tag=x[1])
        else:
            a(x)

    def pub_stage(tp):
        publish(a, "s61")
        a("s_add_u32 s61, s61, 64")

    S0o = C_S0 - 65536
    side = {}
    prio = {}

    def at(k, f):
        side.setdefault(k, []).append(f)

    def spread(k0, stride, groups):
        for n, g in enumerate(groups):
            at(k0 + n * stride, (lambda g=g: emit_group(a, g)))

    def rd_job(k, u, base):
        def f():
            a.wait_tag(("wd", u))
            for x in wd_reads(u, base):
                a(x)
        at(k, f)

    spread(0, 1, h_groups(1))
    spread(5, 2, h_groups(2) + h_groups(3))
    spread(22, 1, wd_dma_groups(0, C_S0))
    rd_job(38, 0, S0o)
    spread(44, 1, wd_dma_groups(1, C_S0))
    spread(52, 2, wd_dma_groups(4, 0))
    rd_job(62, 1, S0o)
    spread(68, 1, wd_dma_groups(2, C_S0))
    spread(80, 2, wd_dma_groups(5, 32768))
    rd_job(88, 2, S0o)
    spread(94, 2, wd_dma_groups(3, C_S0))
    at(102, lambda: lead_issue(a, "s67"))

    if "nowd" in OPT:
        for k in list(side):
            if k >= 18:
                del side[k]
    if "nowdrd" in OPT:
        for k in (38, 62, 88):
            del side[k]

    def bar(tags, lg0=False, pub=None):
        def f():
            for tg in tags:
                a.wait_tag(tg, lg0=lg0)
            a("s_barrier")
            if pub is not None:
                pub_stage(pub)
        return f

    barr = {22: bar([("h", 1)]), 50: bar([("h", 3), ("hh", 0)], pub=0), 78: bar([("hh", 1)], pub=1)}
    if "noprio" not in OPT:
        for (k0, k1) in ((0, 22), (22, 50), (50, 78), (78, 112)):
            for lv in range(4):
                kk = k0 + (k1 - k0) * lv // 4
                prio[kk] = 3 - lv

    if "nostw" in OPT:
        barr = {14: bar([("h", 1)], lg0=True), 50: bar([("h", 3)], pub=0), 78: bar([], pub=1)}
    if "cst" in OPT:
        for kk in (14, 28, 42, 56, 70, 84, 98):
            at(kk - 1, (lambda kk=kk: stamp(a, "C k%d" % kk)))
    a.wait_tag(("h", 0), lg0=True)
    a("s_barrier")
    stamp(a, "C h0 landed")
    allrd = []
    for k in range(112):
        off = k * 1024
        allrd.append("ds_read_b128 %s, v%d offset:%d" % (vr(AF + 4 * (k % NR)), 14 if off < 57344 else 16, off % 57344))
    nxt = 0
    LA = NR - 2
    for i in range(8):
        acc = ACCS[i & 1]
        ep = epi(i - 1) if i else st
        for u in range(14):
            k = i * 14 + u
            if k in barr:
                barr[k]()
            if k in prio:
                a("s_setprio %d" % prio[k])
            while nxt < len(allrd) and nxt <= k + LA - 1:
                a(allrd[nxt])
                nxt += 1
            f = AF + 4 * (k % NR)
            z = "0" if u == 0 else None
            npop = 5 if i == 0 else 3
            start = 3 if i == 0 else 0
            if "m32" in OPT:
                ac = 224 + 16 * ((i >> 1) & 1)
                a("v_mfma_f32_32x32x16_bf16 %s, %s, %s, %s" % (vr(ac, 16), vr(WGF + 4 * (u + 14 * (i & 1))), vr(f), "0" if k % 28 == 0 else vr(ac, 16)))
            else:
                a(mfma(acc, WGF + 4 * u, f, z))
            if u >= start:
                for _ in range(npop // 2):
                    if ep:
                        emit(ep.pop(0))
            if "m32" not in OPT:
                a(mfma(acc + 4, WUF + 4 * u, f, z))
            if u >= start:
                for _ in range(npop - npop // 2):
                    if ep:
                        emit(ep.pop(0))
            for fn in side.get(k, []):
                fn()
        for x in ep:
            emit(x)
    stamp(a, "C mfma done")
    return epi, emit, pub_stage


def lead_issue(a, soff):
    L = a.label("liss")
    raw(a, "s_cmp_lg_u32 %s, 0" % sW)
    raw(a, "s_cbranch_scc1 %s" % L)
    raw(a, "v_lshlrev_b32 v6, 2, v1")
    raw(a, "buffer_load_dword v7, v6, %s, %s offen sc1" % (SWS, soff))
    raw(a, "%s:" % L)
    a.vm.append((set(), "lead"))
    a.lead_phantom = True


def lead_check(a, soff, mask_lo, mask_hi, level=None, vaddr=None):
    L, Lp, Lc, Ld = a.label("lskip"), a.label("lpoll"), a.label("lchk"), a.label("ldone")
    n = a._after(a.vm, lambda e: e[1] == "lead")
    a.vm = [e for e in a.vm if e[1] != "lead"]
    raw(a, "s_cmp_lg_u32 %s, 0" % sW)
    raw(a, "s_cbranch_scc1 %s" % L)
    raw(a, "s_mov_b32 s3, 400000")
    if n is not None:
        raw(a, "s_waitcnt vmcnt(%d)" % min(n, 63))
    raw(a, "s_branch %s" % Lc)
    raw(a, "%s:" % Lp)
    raw(a, "buffer_load_dword v7, v6, %s, %s offen sc1" % (SWS, soff))
    raw(a, "s_waitcnt vmcnt(0)")
    raw(a, "%s:" % Lc)
    raw(a, "v_cmp_ne_u32 vcc, %s, v7" % sNONCE)
    raw(a, "s_sub_u32 s3, s3, 1")
    raw(a, "s_cbranch_scc1 %s" % Ld)
    raw(a, "s_nop 0")
    raw(a, "s_and_b32 vcc_lo, vcc_lo, 0x%x" % mask_lo)
    raw(a, "s_and_b32 vcc_hi, vcc_hi, 0x%x" % mask_hi)
    raw(a, "s_cmp_lg_u64 vcc, 0")
    raw(a, "s_cbranch_scc1 %s" % Lp)
    raw(a, "%s:" % Ld)
    if level is not None:
        raw(a, "v_mov_b32 v7, %d" % level)
        raw(a, "ds_write_b32 %s, v7" % vaddr)
    raw(a, "%s:" % L)


def lds_wait(a, level):
    Lp, Ld = a.label("wl"), a.label("wd")
    raw(a, "s_mov_b32 s3, 2000000")
    raw(a, "%s:" % Lp)
    raw(a, "ds_read_b32 v31, v30")
    raw(a, "s_waitcnt lgkmcnt(0)")
    raw(a, "v_readfirstlane_b32 s66, v31")
    raw(a, "s_sub_u32 s3, s3, 1")
    raw(a, "s_cbranch_scc1 %s" % Ld)
    raw(a, "s_nop 0")
    raw(a, "s_cmp_lt_u32 s66, %d" % level)
    raw(a, "s_cbranch_scc1 %s" % Lp)
    raw(a, "%s:" % Ld)


D_HR = 98304


def phase_D(a, epi, emit, pub_stage):
    a("; ---------------- C->D ----------------")
    ep = epi(7)
    emit(ep.pop(0))
    a.wait_tag(("hh", 2), lg0=True)
    lead_check(a, "s67", 0x3fff3fff, 0)
    a("s_barrier")
    pub_stage(2)
    for x in ep:
        emit(x)
    stamp(a, "C last store")
    a("s_setprio 0")
    ACCS, AF, NR = [144, 160], 176, 12
    DLA = DLAV
    FT, FS, OUTR = 32, 48, 50

    def hh_load(k):
        rt, i = k // 7, k % 7
        a("buffer_load_dwordx4 %s, v%d, %s, s68 offen offset:%d%s" % (vr(AF + 4 * (k % NR)), 14 if i < 4 else 16, SWS, (i & 3) * 1024, "" if "hhplain" in OPT else SC))
        if i == 6:
            a("s_add_u32 s68, s68, %d" % (2 * 57344))

    a("v_add_u32 v16, 4096, v14")
    for k in range(DPRE):
        hh_load(k)
    a.wait_tag(("wd", 3))
    for x in wd_reads(3, C_S0 - 65536):
        a(x)
    for t in range(4):
        a("v_subrev_u32 v%d, 65536, v%d" % (8 + t, 8 + t))
    for x in wd_reads(4, 0) + wd_reads(5, 32768):
        a(x)
    for t in range(4):
        a("v_add_u32 v%d, 65536, v%d" % (8 + t, 8 + t))
    a("v_lshrrev_b32 v18, 5, v1")
    a("s_lshl_b32 %s, %s, 1" % (sT, sW))
    a("v_add_u32 v18, %s, v18" % sT)
    a("v_and_b32 v19, 31, v1")
    a("v_lshrrev_b32 v20, 2, v19")
    a("v_lshlrev_b32 v20, 8, v20")
    a("v_lshl_add_u32 v20, v18, 4, v20")
    a("v_lshl_add_u32 v20, v5, 2, v20")
    a("v_add_u32 v20, %d, v20" % D_HR)
    a("v_mul_u32_u24 v21, 1792, v18")
    a("v_lshl_add_u32 v21, v19, 2, v21")
    a("v_lshrrev_b32 v22, 1, v19")
    a("v_add_u32 v23, v22, v18")
    a("v_and_b32 v23, 15, v23")
    a("v_lshlrev_b32 v23, 4, v23")
    a("v_lshl_add_u32 v22, v22, 8, v23")
    a("v_and_b32 v23, 1, v19")
    a("v_lshl_add_u32 v22, v23, 3, v22")
    a("v_add_u32 v23, v2, v3")
    a("v_lshl_add_u32 v28, v2, 8, s63")
    for t in range(4):
        a("v_add_u32 v29, %d, v23" % (4 * t))
        a("v_and_b32 v29, 15, v29")
        a("v_lshl_add_u32 v%d, v29, 4, v28" % (24 + t))
    a.wait_tag(("hh", 3), lg0=True)
    a("s_barrier")
    pub_stage(3)
    stamp(a, "C flag")
    for k in range(DPRE, DLA):
        hh_load(k)
    a("s_add_u32 m0, %s, %d" % (sW1024, D_HR))
    a("buffer_load_dwordx4 v14, %s, s69 offen%s lds" % (SWS, SC), tag="hr")
    wd6 = wd_dma_groups(6, 65536)

    def writes(rt):
        return ["ds_write_b128 v%d, %s offset:%d" % (24 + t, vr(ACCS[rt & 1] + 4 * t), (rt & 1) * 32768 + t * 1024) for t in range(4)]

    def fin(rt):
        o = ["ds_read_b32 v%d, v20 offset:%d" % (FS + 1, rt * 2048)]
        for p in range(8):
            o.append("ds_read_b64 %s, v22 offset:%d" % (vr(FT + 2 * p, 2), (rt & 1) * 32768 + p * 4096))
        o.append("v_lshlrev_b32 v%d, 16, v%d" % (FS, FS + 1))
        o.append("v_and_b32 v%d, 0xffff0000, v%d" % (FS + 1, FS + 1))
        for (d, x) in ((0, 2), (4, 6), (8, 10), (12, 14), (0, 4), (8, 12), (0, 8)):
            o.append("v_add_f32 v%d, v%d, v%d" % (FT + d, FT + d, FT + x))
            o.append("v_add_f32 v%d, v%d, v%d" % (FT + d + 1, FT + d + 1, FT + x + 1))
        o.append("v_add_f32 v%d, v%d, v%d" % (FS, FS, FT))
        o.append("v_add_f32 v%d, v%d, v%d" % (FS + 1, FS + 1, FT + 1))
        o.append("v_cvt_pk_bf16_f32 v%d, v%d, v%d" % (OUTR + rt, FS, FS + 1))
        o.append("buffer_store_dword v%d, v21, %s, s70 offen%s" % (OUTR + rt, SOUT, OUTSC))
        o.append("s_add_u32 s70, s70, %d" % (32 * 896))
        return o

    nl = [DLA]
    BI = DBI
    wpos = {3: [(0, 3), (1, 1), (1, 3), (2, 1)], 4: [(0, 3), (1, 3), (2, 3), (3, 1)], 2: [(1, 0), (1, 1), (1, 2), (1, 3)]}[BI]
    fn = []
    for rt in range(4):
        wr = writes(rt - 1) if rt else []
        for i in range(7):
            k = rt * 7 + i
            if k < 2:
                emit_group(a, wd6[2 * k])
                emit_group(a, wd6[2 * k + 1])
            if k == 5:
                a.wait_tag(("wd", 6))
                for x in wd_reads(6, 0):
                    a(x)
            if k in (3 + BI, 10 + BI):
                lead_issue(a, "s67")
            if rt and i == BI:
                for x in fn:
                    a(x)
                if rt == 1:
                    lead_check(a, "s67", 0, 0x3fff)
                if rt == 2:
                    lead_check(a, "s67", 0, 0x3fff0000)
                a("s_waitcnt lgkmcnt(0)")
                if "dnobar" not in OPT:
                    a("s_barrier")
                fn = fin(rt - 1)
            lim = 14 if k < 7 + BI else (21 if k < 14 + BI else 28)
            n_iss = 0
            while nl[0] < min(lim, k + DLA + 1) and n_iss < 2:
                if "dnoload" not in OPT:
                    hh_load(nl[0])
                nl[0] += 1
                n_iss += 1
            for t in range(4):
                if not ("dnomfma" in OPT and t):
                    a(mfma(ACCS[rt & 1] + 4 * t, WDF[i] + 4 * t, AF + 4 * (k % NR), "0" if i == 0 else None))
                if "dnored" in OPT:
                    wr, fn = [], []
                if wr and (i, t) in wpos:
                    a(wr.pop(0))
                for _ in range(2):
                    if fn:
                        a(fn.pop(0))
    for x in fn:
        a(x)
    stamp(a, "D mfma done")
    for x in writes(3):
        a(x)
    a("s_waitcnt lgkmcnt(0)")
    a("s_barrier")
    for x in fin(3):
        a(x)
    stamp(a, "D out stored")


HEADER = open("cdna_kernels/%s.s.ref" % NAME).read().split("; Override launch")[0]


def build():
    n = NAME + "_kernel"
    out = HEADER
    out += "; @launch grid=(256,1,1) block=(512,1,1) lds=163840\n"
    out += '.amdgcn_target "amdgcn-amd-amdhsa--gfx950"\n.text\n'
    a = Asm()
    prologue(a)
    phase_A(a)
    phase_B(a)
    phase_D(a, *phase_C(a))
    a("Lfin:")
    stamp_flush(a)
    a("Lend:")
    a("s_endpgm")
    a("Lcode_end:")
    body = a.render()
    out += ".globl %s\n.p2align 8\n.type %s,@function\n%s:\nLcode_begin:\n%s" % (n, n, n, body)

    out += '.section .rodata,"a"\n.p2align 6\n'
    out += """.amdhsa_kernel %s
  .amdhsa_next_free_vgpr 256
  .amdhsa_next_free_sgpr 102
  .amdhsa_accum_offset 256
  .amdhsa_group_segment_fixed_size 0
  .amdhsa_kernarg_size 80
  .amdhsa_user_sgpr_count 2
  .amdhsa_user_sgpr_kernarg_segment_ptr 1
  .amdhsa_system_sgpr_workgroup_id_x 1
.end_amdhsa_kernel
""" % n
    return out


if __name__ == "__main__":
    dst = sys.argv[1] if len(sys.argv) > 1 else "cdna_kernels/%s.s" % NAME
    STAMPS = "stamps" in sys.argv
    OPT = set(sys.argv[2:])
    for o in sys.argv[2:]:
        if "=" in o:
            globals()[o.split("=")[0]] = int(o.split("=")[1])
    txt = build()
    import subprocess, re
    open("_sz.s", "w").write(txt.replace("CODE_BYTES", "0x12345"))
    subprocess.check_call(["clang", "-x", "assembler", "-target", "amdgcn-amd-amdhsa", "-mcpu=gfx950", "-c", "_sz.s", "-o", "_sz.o"])
    sym = subprocess.check_output(["llvm-objdump", "-t", "_sz.o"]).decode()
    end = int(re.search(r"([0-9a-f]+) .*Lcode_end", sym).group(1), 16)
    print("code bytes", end)
    open(dst, "w").write(txt.replace("CODE_BYTES", str((end - 64) & ~3)))
    print("wrote", dst)
```

```python
import sys, struct
sys.path.insert(0, "dev")
from asmlib import Asm, Ins

NAME = "sequential_preLN__sliding_local_dilated__glu_gated_glu__prompt"

WS_O = 0
WS_H = 2 << 20
WS_ST = 4 << 20
WS_HH = 8 << 20
WS_FA = 16 << 20
WS_FB = WS_FA + 8192
WS_FC = WS_FA + 16384
WS_TS = 20 << 20
WS_SIZE = 32 << 20

SX, SWQKV, SWO, SWG, SWU, SWD, SOUT, SWS, SDBG = [("s[%d:%d]" % (b, b + 3)) for b in range(8, 44, 4)]
sW, sXC, sJ, sNONCE = "s44", "s45", "s46", "s47"
sT, sT2, sT3 = "s55", "s56", "s57"
sW1024 = "s53"
sRB, sCB, sRQ, sFS = "s84", "s85", "s86", "s87"
SC = " sc1"
OUTSC = "" if "outplain" in sys.argv else " sc1"
LOG2E = 1.4426950408889634
STAMPS = False
OPT = set()
NSTAMP = [0]
ASPACE = 3
WOPRE = 28
G1PRE = 4
DPRE = 2
DLAV = 6
DBI = 3
HSLEEP = 4
TCH = 3
TCU = 7
TCD = 7
ROTM = 1


def f2u(x):
    return struct.unpack("<I", struct.pack("<f", x))[0]


def vr(b, n=4):
    return "v[%d:%d]" % (b, b + n - 1)


def mfma(acc, A, B, C=None):
    return "v_mfma_f32_16x16x32_bf16 %s, %s, %s, %s" % (vr(acc), vr(A), vr(B), vr(acc) if C is None else C)


def raw(a, text):
    for line in text.split("\n"):
        line = line.strip()
        if not line:
            continue
        if line.endswith(":"):
            a.items.append(("l", line))
        else:
            a.items.append(("i", Ins(line)))


def stamp(a, name):
    if STAMPS:
        i = NSTAMP[0]
        NSTAMP[0] += 1
        a("; STAMP %d %s" % (i, name))
        a("s_memrealtime s[100:101]")
        a("s_memtime s[72:73]")
        a("s_waitcnt lgkmcnt(0)")
        a("v_writelane_b32 v15, s100, %d" % i)
        a("v_writelane_b32 v15, s72, %d" % (32 + i))


def stamp_flush(a):
    if STAMPS:
        a("s_lshl_b32 s3, s2, 3")
        a("s_add_u32 s3, s3, %s" % sW)
        a("s_lshl_b32 s3, s3, 8")
        a("s_add_u32 s3, s3, %d" % WS_TS)
        a("v_lshlrev_b32 v7, 2, v1")
        a("buffer_store_dword v15, v7, %s, s3 offen" % SWS)
        if "dbgout" in OPT:
            a("s_cmp_lg_u32 s2, 100")
            a("s_cbranch_scc1 Lend")
            a("s_cmp_lg_u32 %s, 3" % sW)
            a("s_cbranch_scc1 Lend")
            sel = [0, 2, 3, 5, 6, 8, 9, 10, 12, 13, 14, 16, 18, 19, 20]
            a("v_mov_b32 v7, 0")
            for i, st in enumerate(sel):
                a("v_readlane_b32 s3, v15, %d" % st)
                a("s_sub_u32 s3, s3, %s" % sNONCE)
                a("v_mov_b32 v6, s3")
                a("buffer_store_dword v6, v7, %s, 0 offen offset:%d" % (SDBG, 4 + 4 * i))


def xg_reduce_multi(a, op, xs, ts):
    for step in ("v_permlane32_swap_b32", "v_permlane16_swap_b32"):
        for x, t in zip(xs, ts):
            a("v_mov_b32 %s, %s" % (t, x))
        for x, t in zip(xs, ts):
            a("%s %s, %s" % (step, t, x))
        for x, t in zip(xs, ts):
            a("%s %s, %s, %s" % (op, x, x, t))


def publish(a, soff):
    L = a.label("pub")
    raw(a, "s_cmp_lg_u32 %s, 0" % sW)
    raw(a, "s_cbranch_scc1 %s" % L)
    raw(a, "s_mov_b64 exec, 1")
    raw(a, "v_mov_b32 v6, %s" % sNONCE)
    raw(a, "v_mov_b32 v7, 0")
    raw(a, "buffer_store_dword v6, v7, %s, %s offen sc1" % (SWS, soff))
    raw(a, "s_mov_b64 exec, -1")
    raw(a, "%s:" % L)


def poll(a, soff, mask_lo, mask_hi, sleep=0):
    L, Lp, Ld = a.label("skip"), a.label("poll"), a.label("done")
    raw(a, "s_cmp_lg_u32 %s, 0" % sW)
    raw(a, "s_cbranch_scc1 %s" % L)
    raw(a, "v_lshlrev_b32 v7, 2, v1")
    raw(a, "s_mov_b32 exec_lo, 0x%x" % mask_lo)
    raw(a, "s_mov_b32 exec_hi, 0x%x" % mask_hi)
    raw(a, "s_mov_b32 s3, 400000")
    raw(a, "%s:" % Lp)
    if sleep:
        raw(a, "s_sleep %d" % sleep)
    raw(a, "buffer_load_dword v6, v7, %s, %s offen sc1" % (SWS, soff))
    raw(a, "s_waitcnt vmcnt(0)")
    raw(a, "v_cmp_ne_u32 vcc, %s, v6" % sNONCE)
    raw(a, "s_sub_u32 s3, s3, 1")
    raw(a, "s_cbranch_scc1 %s" % Ld)
    raw(a, "s_nop 1")
    raw(a, "s_cmp_lg_u64 vcc, 0")
    raw(a, "s_cbranch_scc1 %s" % Lp)
    raw(a, "%s:" % Ld)
    raw(a, "s_mov_b64 exec, -1")
    raw(a, "%s:" % L)
    a("s_barrier")


def prologue(a):
    a("s_load_dwordx16 s[64:79], s[0:1], 0")
    a("s_load_dwordx4 s[80:83], s[0:1], 64")
    a("s_memrealtime s[4:5]")
    a("s_cmp_ge_u32 s2, 256")
    a("s_cbranch_scc1 Lend")
    a("s_getpc_b64 s[6:7]")
    a("v_and_b32 v1, 63, v0")
    a("v_lshrrev_b32 v6, 6, v0")
    a("v_lshrrev_b32 v2, 4, v1")
    a("v_readfirstlane_b32 %s, v6" % sW)
    a("v_and_b32 v3, 15, v0")
    a("v_bfe_u32 v4, v0, 2, 2")
    a("v_and_b32 v5, 3, v0")
    if STAMPS:
        a("v_mov_b32 v15, 0")
    if "badmap" in OPT:
        a("s_lshr_b32 %s, s2, 5" % sXC)
        a("s_and_b32 %s, s2, 31" % sJ)
    else:
        a("s_and_b32 %s, s2, 7" % sXC)
        a("s_lshr_b32 %s, s2, 3" % sJ)
    a("v_lshlrev_b32 v6, 7, v0")
    a("v_min_u32 v6, CODE_BYTES, v6")
    a("s_cmp_gt_u32 %s, 3" % sW)
    a("s_cbranch_scc1 Lnopf")
    raw(a, "global_load_dword v7, v6, s[6:7]")
    a("Lnopf:")
    sizes = {8: 2048 * 896, 12: 448 * 2688, 16: 448 * 896, 20: 448 * 3584, 24: 448 * 3584,
             28: 1792 * 896, 32: 2048 * 896, 36: WS_SIZE, 40: 256}
    for b, sz in sizes.items():
        a("s_mov_b32 s%d, %d" % (b + 2, sz))
        a("s_mov_b32 s%d, 0x00020000" % (b + 3))
    a("s_lshl_b32 %s, %s, 10" % (sW1024, sW))


def prologue2(a):
    a("s_waitcnt lgkmcnt(0)")
    src = {8: 64, 12: 66, 16: 68, 20: 72, 24: 74, 28: 76, 32: 78, 36: 82, 40: 80}
    for b, s in src.items():
        a("s_mov_b64 s[%d:%d], s[%d:%d]" % (b, b + 1, s, s + 1))


def nonce_publish(a):
    a("s_or_b32 s3, s2, %s" % sW)
    a("s_cmp_lg_u32 s3, 0")
    a("s_cbranch_scc1 Lnononce")
    raw(a, "s_or_b32 s3, s4, 1")
    if any(o.startswith("thr") for o in OPT):
        raw(a, "s_getreg_b32 s5, hwreg(HW_REG_XCC_ID)")
        raw(a, "s_and_b32 s5, s5, 7")
        raw(a, "s_andn2_b32 s3, s4, 15")
        raw(a, "s_or_b32 s3, s3, s5")
        raw(a, "s_or_b32 s3, s3, 8")
    raw(a, "v_mov_b32 v8, s3")
    raw(a, "v_mov_b32 v9, 0")
    raw(a, "s_mov_b64 exec, 1")
    raw(a, "buffer_store_dword v8, v9, %s, 0 offen sc1" % SDBG)
    raw(a, "s_mov_b64 exec, -1")
    a("Lnononce:")


def nonce_fetch(a, vN):
    L, Lp = a.label("nskip"), a.label("npoll")
    a("v_readfirstlane_b32 %s, %s" % (sNONCE, vN))
    raw(a, "s_nop 1")
    raw(a, "s_cmp_lg_u32 %s, 0" % sNONCE)
    raw(a, "s_cbranch_scc1 %s" % L)
    raw(a, "s_mov_b32 s3, 400000")
    raw(a, "v_mov_b32 v7, 0")
    raw(a, "%s:" % Lp)
    raw(a, "buffer_load_dword v6, v7, %s, 0 offen sc1" % SDBG)
    raw(a, "s_waitcnt vmcnt(0)")
    raw(a, "v_readfirstlane_b32 %s, v6" % sNONCE)
    raw(a, "s_sub_u32 s3, s3, 1")
    raw(a, "s_cbranch_scc1 %s" % L)
    raw(a, "s_nop 1")
    raw(a, "s_cmp_eq_u32 %s, 0" % sNONCE)
    raw(a, "s_cbranch_scc1 %s" % Lp)
    raw(a, "%s:" % L)
    raw(a, "s_nop 3")


def touch(a, jobs):
    Lend = a.label("tend")
    for (w, srd, n) in jobs:
        L = a.label("tn")
        raw(a, "s_cmp_lg_u32 %s, %d" % (sW, w))
        raw(a, "s_cbranch_scc1 %s" % L)
        raw(a, "s_mul_i32 s3, s2, %d" % (n * 128))
        raw(a, "v_min_u32 v6, %d, v1" % (n - 1))
        raw(a, "v_lshlrev_b32 v6, 7, v6")
        raw(a, "buffer_load_dword v7, v6, %s, s3 offen" % srd)
        raw(a, "s_branch %s" % Lend)
        raw(a, "%s:" % L)
    raw(a, "%s:" % Lend)


A_SLOT = 34816
A_XOFF = 24576
A_EX = 2 * A_SLOT
A_ST = 4 * A_SLOT
R0, R1, R2 = 0, 57344, 139264
B_RB = R2
C_ST = 149504

vWO_DMA, vWC_DMA, vWC_TR = "v176", "v177", 178
WGF, WUF = 80, 136
WOF = 128


def roles_BCD(a):
    a("s_mul_i32 %s, %s, 37" % (sRB, sJ))
    a("s_lshr_b32 %s, %s, 8" % (sRB, sRB))
    a("s_mul_i32 %s, %s, 7" % (sCB, sRB))
    a("s_sub_u32 %s, %s, %s" % (sCB, sJ, sCB))
    a("s_lshr_b32 %s, %s, 1" % (sT, sXC))
    a("s_lshl_b32 %s, %s, 2" % (sT, sT))
    a("s_add_u32 %s, %s, %s" % (sRQ, sRB, sT))
    a("s_and_b32 %s, %s, 1" % (sT, sXC))
    a("s_mul_i32 %s, %s, 7" % (sT, sT))
    a("s_add_u32 %s, %s, %s" % (sFS, sCB, sT))
    a("s_lshl_b32 %s, %s, 2" % (sT, sXC))
    a("s_add_u32 %s, %s, %s" % (sRB, sRB, sT))


def wo_dma(a, i0, i1, vaddr):
    for i in range(i0, i1):
        a("s_add_u32 m0, %s, %d" % (sW1024, R0 + i * 8192))
        a("s_mov_b32 %s, %d" % (sT, i * 64 * 896))
        a("buffer_load_dwordx4 %s, %s, %s offen lds" % (vaddr, SWO, sT), tag="wo")


def wc_dma(a, slabs, vaddr, tag):
    for (s, base) in slabs:
        a("s_add_u32 m0, %s, %d" % (sW1024, base))
        a("s_mov_b32 %s, %d" % (sT, (s % 14) * 114688))
        a("buffer_load_dwordx4 %s, %s, %s offen lds" % (vaddr, SWG if s < 14 else SWU, sT), tag=tag)


def wc_read(slabs, vtr):
    out = []
    for (s, base) in slabs:
        for hf in range(2):
            out.append("ds_read_b64_tr_b16 %s, v%d offset:%d" % (vr(WGF + 4 * s + 2 * hf, 2), vtr + base // 57344, base % 57344 + hf * 1024))
    return out


A_NM = A_ST
A_RHO = A_ST + 384


def phase_A(a):
    sTB, sHP, sT0, sTI, sHD = "s48", "s49", "s50", "s51", "s52"
    a("; ---------------- phase A ----------------")
    a("s_mul_i32 %s, %s, 37" % (sT, sJ))
    a("s_lshr_b32 %s, %s, 8" % (sT, sT))
    a("s_mul_i32 %s, %s, 7" % (sT2, sT))
    a("s_sub_u32 %s, %s, %s" % (sT2, sJ, sT2))
    a("s_add_u32 %s, %s, 1" % (sHP, sT2))
    a("s_cmp_lt_u32 %s, 28" % sJ)
    a("s_cselect_b32 %s, %s, 0" % (sHP, sHP))
    a("s_cselect_b32 %s, %s, %s" % (sT, sT, sT2))
    a("s_lshl_b32 %s, %s, 2" % (sTB, sXC))
    a("s_add_u32 %s, %s, %s" % (sTB, sTB, sT))
    a("s_lshl_b32 %s, %s, 6" % (sT0, sTB))
    a("s_and_b32 %s, %s, 3" % (sTI, sW))
    a("s_lshr_b32 %s, %s, 2" % (sHD, sW))
    a("v_lshrrev_b32 v12, 3, v1")
    a("v_and_b32 v13, 7, v1")
    a("v_lshlrev_b32 v14, 4, v1")
    ONES = 20
    BP, BC = 76, 80

    def slot(ch):
        return (ch + 1) % 4

    def common_setup(a):
        a("v_lshlrev_b32 v8, 2, v2")
        a("v_sub_u32 v9, v3, v8")
        a("s_lshl_b32 %s, %s, 2" % (sT, sTB))
        a("s_add_u32 %s, %s, %s" % (sT, sT, sTI))
        a("s_cmp_lt_u32 %s, 2" % sT)
        a("s_cselect_b32 %s, 0x10000, 0" % sT2)
        a("v_mov_b32 v11, 0x%x" % f2u(-1e30))
        for rr in range(4):
            a("v_subrev_u32 v10, %d, v9" % rr)
            a("v_cmp_gt_u32 vcc, 8, v10")
            a("v_cndmask_b32 v%d, v11, 0, vcc" % (BC + rr))
            a("v_add_u32 v10, 16, v10")
            a("v_add_u32 v10, %s, v10" % sT2)
            a("v_cmp_gt_u32 vcc, 8, v10")
            a("v_cndmask_b32 v%d, v11, 0, vcc" % (BP + rr))
        a("v_cmp_gt_u32 s[94:95], 3, v2")
        a("s_mul_i32 %s, %s, 3072" % (sT2, sHD))
        a("s_add_u32 %s, %s, %d" % (sT2, sT2, A_EX))
        a("s_mul_i32 %s, %s, 6144" % (sT, sTI))
        a("s_add_u32 %s, %s, %s" % (sT, sT, sT2))
        a("v_lshl_add_u32 v32, v1, 3, %s" % sT)
        a("v_lshl_add_u32 v9, v2, 2, v4")
        a("v_lshl_add_u32 v10, v5, 4, v9")
        a("v_lshl_add_u32 v33, v10, 3, %s" % sT)
        a("s_sub_u32 %s, %s, 12288" % (sT, sT))
        a("s_add_u32 %s, %s, %d" % (sT2, sT2, 4 * 6144))
        a("s_lshl_b32 s97, %s, 3" % sTI)
        a("s_lshl_b32 %s, %s, 6" % (sT3, sTI))
        a("s_add_u32 %s, %s, %d" % (sT3, sT3, A_RHO))
        a("v_lshl_add_u32 v36, v3, 2, %s" % sT3)
        a("v_lshl_add_u32 v37, v2, 4, %s" % sT3)
        a("s_sub_u32 %s, %s, 128" % (sT3, sT3))
        a("s_cmp_lt_u32 %s, 2" % sTI)
        a("s_cselect_b32 s96, 7, 15")
        a("s_cselect_b32 s97, s97, 0")
        a("s_cselect_b32 %s, %s, %s" % (sT, sT2, sT))
        a("s_cselect_b32 %s, %d, %s" % (sT3, A_RHO + 256, sT3))
        a("v_and_b32 v9, s96, v9")
        a("v_add_u32 v9, s97, v9")
        a("v_lshl_add_u32 v10, v5, 4, v9")
        a("v_lshl_add_u32 v34, v10, 3, %s" % sT)
        a("v_and_b32 v9, s96, v8")
        a("v_add_u32 v9, s97, v9")
        a("v_lshl_add_u32 v38, v9, 2, %s" % sT3)
        a("v_and_b32 v9, s96, v3")
        a("v_add_u32 v9, s97, v9")
        a("v_lshl_add_u32 v10, v2, 4, v9")
        a("v_lshl_add_u32 v35, v10, 3, %s" % sT)
        a("s_lshl_b32 %s, %s, 2" % (sT, sTB))
        a("s_add_u32 %s, %s, %s" % (sT, sT, sTI))
        a("s_lshl_b32 %s, %s, 4" % (sT, sT))
        a("s_lshl_b32 %s, %s, 1" % (sT2, sHP))
        a("s_add_u32 %s, %s, %s" % (sT, sT, sT2))
        a("s_add_u32 %s, %s, %s" % (sT, sT, sHD))
        a("s_lshl_b32 s98, %s, 10" % sT)
        a("s_lshl_b32 %s, %s, 7" % (sT, sTB))
        a("s_lshl_b32 %s, %s, 2" % (sT2, sHP))
        a("s_add_u32 %s, %s, %s" % (sT, sT, sT2))
        a("s_add_u32 s99, %s, %d" % (sT, WS_FA))
        roles_BCD(a)
        a("s_bfe_u32 %s, %s, 0x10001" % (sT, sW))
        a("s_lshl_b32 %s, %s, 3" % (sT, sT))
        a("v_lshl_or_b32 v8, v2, 1, %s" % sT)
        a("v_xor_b32 v8, v8, v3")
        a("s_lshl_b32 %s, %s, 2" % (sT, sW))
        a("v_add_u32 v9, %s, v2" % sT)
        a("v_mul_u32_u24 v9, 3584, v9")
        a("v_lshl_add_u32 v9, v8, 4, v9")
        a("s_lshl_b32 %s, %s, 8" % (sT, sFS))
        a("v_add_u32 v16, %s, v9" % sT)
        a("v_lshl_add_u32 v8, v2, 2, v4")
        a("s_mul_i32 %s, %s, 224" % (sT, sHD))
        a("v_add_u32 v8, %s, v8" % sT)
        a("v_lshlrev_b32 v8, 7, v8")
        a("v_and_b32 v9, 2, v4")
        a("v_lshlrev_b32 v9, 1, v9")
        a("s_lshl_b32 %s, %s, 2" % (sT, sHD))
        a("v_or_b32 v10, %s, v5" % sT)
        a("v_xor_b32 v10, v10, v9")
        a("v_lshl_add_u32 v28, v10, 4, v8")
        a("v_xor_b32 v29, 64, v28")
        a("v_mov_b32 v9, 2048")
        a("v_cndmask_b32 v9, 0, v9, s[94:95]")
        a("v_add_u32 v30, v28, v9")
        a("v_add_u32 v31, v29, v9")

    RQ, RC, RP = 39, 120, 124

    def rho_reads():
        a("ds_read_b32 v%d, v36" % RQ)
        a("ds_read_b128 %s, v37" % vr(RC))
        a("ds_read_b128 %s, v38" % vr(RP))

    a("s_cmp_lt_u32 %s, 4" % sW)
    a("s_cbranch_scc1 LAcons")
    sL2048, sL512 = "s54", "s65"
    vW0, vW1, vX0, vX1, vH, vWO = "v40", "v41", "v42", "v43", "v44", "v45"
    a("s_lshl_b32 %s, %s, 11" % (sL2048, sTI))
    a("v_and_b32 v8, 2, v12")
    a("v_xor_b32 v8, v8, v13")
    a("v_xor_b32 v10, 4, v8")
    a("v_min_u32 v8, 6, v8")
    a("v_min_u32 v10, 6, v10")
    a("s_lshl_b32 %s, %s, 4" % (sT, sTI))
    a("v_add_u32 v9, %s, v12" % sT)
    a("v_mul_u32_u24 v9, 2688, v9")
    a("s_mul_i32 %s, %s, 112" % (sT, sHP))
    a("v_add_u32 v9, %s, v9" % sT)
    a("v_lshl_add_u32 %s, v8, 4, v9" % vW0)
    a("v_add_u32 v9, %d, v9" % (8 * 2688))
    a("v_lshl_add_u32 %s, v10, 4, v9" % vW1)
    a("s_lshr_b32 %s, %s, 1" % (sT2, sTI))
    a("s_and_b32 %s, %s, 1" % (sT3, sTI))
    a("s_lshl_b32 %s, %s, 5" % (sT, sT2))
    a("s_add_u32 %s, %s, %s" % (sT, sT, sT0))
    a("s_add_u32 %s, %s, %s" % (sT, sT, sT3))
    a("v_lshl_add_u32 v9, v12, 1, %s" % sT)
    a("v_mul_u32_u24 v9, 896, v9")
    a("v_lshrrev_b32 v8, 1, v12")
    a("v_xor_b32 v8, v8, v13")
    a("v_lshl_add_u32 %s, v8, 4, v9" % vX0)
    a("v_xor_b32 v8, 4, v8")
    a("v_add_u32 v9, %d, v9" % (16 * 896))
    a("v_lshl_add_u32 %s, v8, 4, v9" % vX1)
    a("s_lshl_b32 %s, %s, 3" % (sT, sT3))
    a("s_add_u32 %s, %s, %s" % (sT, sT, sT2))
    a("s_add_u32 %s, %s, %s" % (sT, sT, sT0))
    a("s_sub_u32 %s, %s, 16" % (sT, sT))
    a("v_and_b32 v8, 3, v12")
    a("v_lshl_add_u32 v9, v8, 1, %s" % sT)
    a("v_max_i32 v9, 0, v9")
    a("v_mul_u32_u24 v9, 896, v9")
    a("v_lshrrev_b32 v8, 1, v8")
    a("s_lshl_b32 %s, %s, 1" % (sT, sTI))
    a("v_add_u32 v8, %s, v8" % sT)
    a("v_xor_b32 v8, v8, v13")
    a("v_lshl_add_u32 %s, v8, 4, v9" % vH)
    a("s_mov_b32 s59, 0")
    a("s_cmp_eq_u32 %s, 0" % sTI)
    a("s_cselect_b32 s58, 0xffffff00, -1")
    prologue2(a)
    a("s_lshl_b32 %s, %s, 9" % (sL512, sTI))
    if "rot" not in OPT:
        a("s_mov_b32 s67, 0")
    else:
        a("s_lshr_b32 s67, %s, 3" % sJ)
        a("s_lshl_b32 s67, s67, 1")
        a("s_mul_i32 %s, %s, %d" % (sT, sHP, ROTM))
        a("s_add_u32 s67, s67, %s" % sT)
        a("s_mul_i32 %s, s67, 37" % sT)
        a("s_lshr_b32 %s, %s, 8" % (sT, sT))
        a("s_mul_i32 %s, %s, 7" % (sT, sT))
        a("s_sub_u32 s67, s67, %s" % sT)
        a("s_lshl_b32 s67, s67, 7")

    def dma(ch, fill=()):
        fill = list(fill)
        per = (len(fill) + 8) // 9

        def f():
            for _ in range(per):
                while fill:
                    x = fill.pop(0)
                    a(x)
                    if not (fill and fill[0].startswith(("s_cselect", "v_cndmask"))):
                        break

        sb = slot(ch) * A_SLOT
        if ch:
            a("s_add_u32 s67, s67, 128")
            a("s_cmp_eq_u32 s67, 896")
            a("s_cselect_b32 s67, 0, s67")
        a("s_add_u32 m0, %s, %d" % (sL512, sb + A_XOFF + 8192))
        a("s_mov_b64 exec, s[58:59]")
        a("buffer_load_dwordx4 %s, %s, s67 offen lds" % (vH, SX), tag=("AX", ch))
        a("s_mov_b64 exec, -1")
        for i, v in enumerate((vX0, vX1)):
            a("s_add_u32 m0, %s, %d" % (sL2048, sb + A_XOFF + i * 1024))
            a("buffer_load_dwordx4 %s, %s, s67 offen lds" % (v, SX), tag=("AX", ch))
            f()
        a("s_mul_i32 s64, s67, 1344")
        for m in range(3):
            for i, v in enumerate((vW0, vW1)):
                a("s_add_u32 m0, %s, %d" % (sL2048, sb + m * 8192 + i * 1024 - m * 896))
                a("buffer_load_dwordx4 %s, %s, s64 offen offset:%d lds" % (v, SWQKV, m * 896), tag=("A", ch))
                f()
        for x in fill:
            a(x)

    a("s_setprio 3")
    stamp(a, "A start")
    dma(0)
    for i in range(4):
        a("v_mov_b32 v%d, 0x3f803f80" % (ONES + i))
    a("v_and_b32 v8, 3, v12")
    a("v_mul_u32_u24 v8, %d, v8" % A_SLOT)
    a("v_lshl_add_u32 v8, v13, 4, v8")
    a("ds_write_b128 v8, %s offset:%d" % (vr(ONES), A_XOFF + 8192))
    ST = 48
    for i in range(6):
        a("v_mov_b32 v%d, 0" % (ST + i))
    a("s_add_u32 %s, %s, %d" % (sT, sL2048, A_XOFF))
    a("v_add_u32 v54, %s, v14" % sT)
    a("v_add_u32 v55, %d, v54" % (2 * A_SLOT))
    a("s_add_u32 %s, %s, %d" % (sT, sL512, A_XOFF + 8192))
    a("v_add_u32 v56, %s, v14" % sT)
    a("v_add_u32 v57, %d, v56" % (2 * A_SLOT))
    dma(1)
    SR = 84

    def stats_rd(ch):
        sl = slot(ch)
        ib = (sl & 1) * A_SLOT
        a.wait_tag(("AX", ch))
        a("ds_read_b128 %s, v%d offset:%d" % (vr(SR), 54 + (sl >> 1), ib))
        a("ds_read_b128 %s, v%d offset:%d" % (vr(SR + 4), 54 + (sl >> 1), ib + 1024))
        a("ds_read_b128 %s, v%d offset:%d" % (vr(SR + 8), 56 + (sl >> 1), ib))

    def dots():
        o = []
        for i in range(4):
            for k in range(3):
                o.append("v_dot2c_f32_bf16 v%d, v%d, v%d" % (ST + 2 * k, SR + 4 * k + i, ONES))
                o.append("v_dot2c_f32_bf16 v%d, v%d, v%d" % (ST + 2 * k + 1, SR + 4 * k + i, SR + 4 * k + i))
        return o

    class Rec:
        def __init__(self):
            self.l = []

        def __call__(self, x, tag=None):
            self.l.append(x)

    def pieces(fn, n):
        rec = Rec()
        fn(rec)
        late, out = rec.l, []
        for k in range(n):
            nl = (len(late) + n - k - 1) // (n - k)
            while nl < len(late) and late[nl].startswith(("s_cselect", "v_cndmask")):
                nl += 1
            out.append(late[:nl])
            late = late[nl:]
        return out

    cs = pieces(common_setup, 4) + [[], []]
    stats_rd(0)
    for x in dots():
        a(x)
    for ch in range(6):
        a.wait_tag(("A", ch), lg0=True)
        a("s_barrier")
        if ch + 2 <= 6:
            stats_rd(ch + 1)
            dma(ch + 2, cs[ch] + dots())
        if ch == 3:
            a("v_and_b32 v8, 2, v12")
            a("v_lshlrev_b32 v8, 1, v8")
            a("v_xor_b32 v8, v8, v13")
            a("s_lshl_b32 %s, %s, 3" % (sT, sTI))
            a("v_add_u32 v9, %s, v12" % sT)
            a("v_mul_u32_u24 v9, 896, v9")
            a("v_lshl_add_u32 v9, v8, 4, v9")
            a("s_lshl_b32 %s, %s, 7" % (sT, sCB))
            a("v_add_u32 %s, %s, v9" % (vWO, sT))
            a("s_lshl_b32 s66, %s, 10" % sTI)
            a("s_lshl_b32 %s, %s, 6" % (sT, sTI))
            a("s_add_u32 %s, %s, %d" % (sT, sT, A_NM))
            a("v_lshl_add_u32 v46, v12, 2, %s" % sT)
            a("s_lshl_b32 %s, %s, 4" % (sT, sTI))
            a("s_add_u32 %s, %s, %d" % (sT, sT, A_NM + 256))
            a("v_lshl_add_u32 v47, v12, 2, %s" % sT)
            a("v_mov_b32 v6, 0")
            a("buffer_load_dword v17, v6, %s, 0 offen sc1" % SDBG)

    def wo_dma(i0, i1):
        for i in range(i0, i1):
            a("s_add_u32 m0, s66, %d" % (R0 + i * 4096))
            a("s_mov_b32 s64, %d" % (i * 32 * 896))
            a("buffer_load_dwordx4 %s, %s, s64 offen lds" % (vWO, SWO), tag="wo")

    stats_rd(6)
    wo_dma(0, 3)
    for x in dots():
        a(x)
    a("s_nop 2")
    for ctl in ("quad_perm:[1,0,3,2]", "quad_perm:[2,3,0,1]", "row_half_mirror"):
        for x in range(6):
            a("v_add_f32_dpp v%d, v%d, v%d %s row_mask:0xf bank_mask:0xf" % (ST + x, ST + x, ST + x, ctl))
    a("s_mov_b32 %s, 0x%x" % (sT, f2u(1.0 / 448)))
    a("v_mov_b32 v8, 0x%x" % f2u(1e-5))
    for k in range(3):
        a("v_mul_f32 v%d, -%s, v%d" % (ST + 2 * k, sT, ST + 2 * k))
        a("v_fma_f32 v%d, v%d, %s, v8" % (ST + 2 * k + 1, ST + 2 * k + 1, sT))
    for k in range(3):
        a("v_fma_f32 v%d, -v%d, v%d, v%d" % (ST + 2 * k + 1, ST + 2 * k, ST + 2 * k, ST + 2 * k + 1))
    for k in range(3):
        a("v_max_f32 v%d, v%d, v8" % (ST + 2 * k + 1, ST + 2 * k + 1))
    for k in range(3):
        a("v_rsq_f32 v%d, v%d" % (ST + 2 * k + 1, ST + 2 * k + 1))
    a("ds_write_b32 v46, v%d" % ST)
    a("ds_write_b32 v46, v%d offset:32" % (ST + 2))
    a("ds_write_b32 v46, v%d offset:384" % (ST + 1))
    a("ds_write_b32 v46, v%d offset:416" % (ST + 3))
    a("s_mov_b32 exec_hi, 0")
    a("ds_write_b32 v47, v%d" % (ST + 4))
    a("ds_write_b32 v47, v%d offset:384" % (ST + 5))
    a("s_mov_b64 exec, -1")
    a.wait_tag(("A", 6), lg0=True)
    a("s_barrier")
    rho_reads()
    wo_dma(3, 14)
    a("s_waitcnt vmcnt(0) lgkmcnt(0)")
    a("s_setprio 0")
    a("s_branch LAjoin")

    a("LAcons:")
    a.vm, a.lg = [], []
    prologue2(a)
    nonce_publish(a)
    AD, NAD = 128, 5
    a("s_and_b32 s66, %s, 1" % sW)
    a("s_lshr_b32 s67, %s, 1" % sW)
    a("v_bfe_u32 v8, v3, 1, 3")
    a("v_xor_b32 v8, v8, v2")
    a("v_lshlrev_b32 v8, 4, v8")
    a("v_lshl_add_u32 v8, v3, 7, v8")
    a("v_add_u32 v%d, %d, v8" % (AD, A_XOFF))
    a("v_xor_b32 v%d, 64, v%d" % (AD + 1, AD))
    a("v_and_b32 v8, 2, v4")
    a("v_and_b32 v9, 1, v2")
    a("v_lshl_or_b32 v8, v9, 2, v8")
    a("v_lshlrev_b32 v8, 4, v8")
    a("v_lshl_add_u32 v9, v2, 3, v4")
    a("v_lshlrev_b32 v9, 7, v9")
    a("s_mul_i32 s68, s66, 3")
    a("s_mul_i32 %s, s67, 56" % sT2)
    for j in range(3):
        a("s_add_u32 %s, s68, %d" % (sT3, j))
        a("s_and_b32 %s, %s, 1" % (sT, sT3))
        a("s_lshl_b32 %s, %s, 5" % (sT, sT))
        a("s_add_u32 %s, %s, %s" % (sT, sT, sT2))
        a("v_lshl_add_u32 v10, v5, 3, %s" % sT)
        a("v_xor_b32 v10, v10, v8")
        a("s_lshr_b32 %s, %s, 1" % (sT, sT3))
        a("s_lshl_b32 %s, %s, 13" % (sT, sT))
        a("v_add3_u32 v%d, v10, v9, %s" % (AD + 2 + j, sT))
    for i in range(NAD):
        a("v_add_u32 v%d, %d, v%d" % (AD + NAD + i, 2 * A_SLOT, AD + i))
    a("s_mul_i32 %s, %s, 1536" % (sT, sW))
    a("s_add_u32 %s, %s, %d" % (sT, sT, A_EX))
    a("v_lshl_add_u32 v138, v1, 3, %s" % sT)
    a("v_lshlrev_b32 v139, 2, v3")
    a("v_add_u32 v139, %d, v139" % A_NM)
    if "touch0" in OPT:
        touch(a, [(2, SWQKV, 37), (3, SX, 56)])
    common_setup(a)
    if "notouch1" not in OPT:
        touch(a, [(2, SWQKV, 37), (3, SX, 56)])
    ACC = 140
    FB = [40, 84]
    NM = 200

    def reads(n):
        ch, ks = n >> 1, n & 1
        sl = slot(ch)
        ab = AD if sl < 2 else AD + NAD
        ib = (sl & 1) * A_SLOT
        fb = FB[ks]
        tr = lambda j, hf: "ds_read_b64_tr_b16 %s, v%d offset:%d" % (vr(fb + 20 + 4 * j + 2 * hf, 2), ab + 2 + j, ib + ks * 4096 + hf * 512)
        xr = lambda t: "ds_read_b128 %s, v%d offset:%d" % (vr(fb + 4 * t), ab + ks, ib + t * 2048)
        return [tr(0, 0), tr(0, 1), xr(4), xr(0), xr(1), xr(2), xr(3), tr(1, 0), tr(1, 1), tr(2, 0), tr(2, 1)]

    def compute(n):
        fb = FB[n & 1]
        z = "0" if n == 0 else None
        return [mfma(ACC + 20 * j + 4 * t, fb + 20 + 4 * j, fb + 4 * t, z) for j in range(3) for t in (4, 0, 1, 2, 3)]

    def norm(j):
        o = []
        for t in (0, 1, 2, 3, 4):
            acc = ACC + 20 * j + 4 * t
            for rr in range(4):
                o.append("v_fmac_f32_dpp v%d, v%d, v%d row_newbcast:0 row_mask:0xf bank_mask:0xf" % (acc + rr, ACC + 20 * j + 16 + rr, NM + t))
            pk = 208 + 2 * ((5 * j + t) % 4)
            o.append("v_cvt_pk_bf16_f32 v%d, v%d, v%d" % (pk, acc, acc + 1))
            o.append("v_cvt_pk_bf16_f32 v%d, v%d, v%d" % (pk + 1, acc + 2, acc + 3))
            o.append("ds_write_b64 v138, %s offset:%d" % (vr(pk, 2), t * 6144 + j * 512))
        return o

    for ch in range(7):
        if "notouch" not in OPT:
            jobs = [j for (t, j) in ((TCH, (0, SWO, 13)), (TCH, (1, SWG, 49)), (TCU, (2, SWU, 49)), (TCD, (3, SWD, 49))) if t == ch]
            if jobs:
                touch(a, jobs)
        if ch == 4:
            a("v_mov_b32 v6, 0")
            a("buffer_load_dword v17, v6, %s, 0 offen sc1" % SDBG)
        a("s_waitcnt lgkmcnt(0)")
        a("s_barrier")
        if ch in (0, 6):
            stamp(a, "A ch%d landed" % ch)
        for x in reads(2 * ch):
            a(x)
        rd = reads(2 * ch + 1)
        if ch == 6:
            rd += ["ds_read_b32 v%d, v139 offset:%d" % (NM + t, 64 * t) for t in range(5)]
        for x in compute(2 * ch):
            a(x)
            for _ in range(2 if ch == 6 else 1):
                if rd:
                    a(rd.pop(0))
        nr = []
        for i, x in enumerate(compute(2 * ch + 1)):
            a(x)
            if ch == 6:
                if i == 6:
                    nr += norm(0)
                if i == 11:
                    nr += norm(1)
                for _ in range(3):
                    if nr:
                        a(nr.pop(0))
    stamp(a, "A loop done")
    for x in nr + norm(2):
        a(x)
    rho_reads()
    a("s_waitcnt vmcnt(0) lgkmcnt(0)")
    a("LAjoin:")
    a.vm, a.lg = [], []
    a("s_barrier")
    QP, KC, KP, V0, V1 = 100, 104, 108, 112, 116
    a("ds_read_b64 %s, v32" % vr(QP, 2))
    a("ds_read_b64 %s, v32 offset:512" % vr(QP + 2, 2))
    a("ds_read_b64 %s, v32 offset:1024" % vr(KC, 2))
    a("ds_read_b64 %s, v32 offset:1536" % vr(KC + 2, 2))
    a("ds_read_b64 %s, v35 offset:1024" % vr(KP, 2))
    a("ds_read_b64 %s, v35 offset:1536" % vr(KP + 2, 2))
    a("ds_read_b64_tr_b16 %s, v34 offset:2048" % vr(V0, 2))
    a("ds_read_b64_tr_b16 %s, v33 offset:2048" % vr(V0 + 2, 2))
    a("ds_read_b64_tr_b16 %s, v34 offset:2560" % vr(V1, 2))
    a("ds_read_b64_tr_b16 %s, v33 offset:2560" % vr(V1 + 2, 2))
    a("v_mul_f32 v13, 0x%x, v%d" % (f2u(28 ** -0.5 * LOG2E), RQ))
    nonce_fetch(a, "v17")
    a("v_cndmask_b32 v%d, 0, v%d, s[94:95]" % (QP + 2, QP + 2))
    a("v_cndmask_b32 v%d, 0, v%d, s[94:95]" % (QP + 3, QP + 3))
    a(mfma(BC, KC, QP))
    a(mfma(BP, KP, QP))
    for i in range(4):
        a("v_mul_f32 v%d, v%d, v%d" % (BC + i, RC + i, BC + i))
    for i in range(4):
        a("v_mul_f32 v%d, v%d, v%d" % (BP + i, RP + i, BP + i))
    a("v_max3_f32 v8, v%d, v%d, v%d" % (BC, BC + 1, BC + 2))
    a("v_max3_f32 v9, v%d, v%d, v%d" % (BC + 3, BP, BP + 1))
    a("v_max3_f32 v8, v8, v%d, v%d" % (BP + 2, BP + 3))
    a("v_max_f32 v8, v8, v9")
    xg_reduce_multi(a, "v_max_f32", ["v8"], ["v9"])
    a("v_mul_f32 v8, v13, v8")
    for i in range(8):
        a("v_fma_f32 v%d, v%d, v13, -v8" % (BP + i, BP + i))
    for i in range(8):
        a("v_exp_f32 v%d, v%d" % (BP + i, BP + i))
    a("v_add_f32 v9, v%d, v%d" % (BP, BP + 1))
    a("v_add_f32 v10, v%d, v%d" % (BP + 2, BP + 3))
    a("v_add_f32 v11, v%d, v%d" % (BP + 4, BP + 5))
    a("v_add_f32 v12, v%d, v%d" % (BP + 6, BP + 7))
    a("v_add_f32 v9, v9, v10")
    a("v_add_f32 v11, v11, v12")
    a("v_add_f32 v9, v9, v11")
    a("v_mov_b32 v10, v9")
    a("v_mul_f32 v%d, v%d, v%d" % (BP, RP, BP))
    a("v_mul_f32 v%d, v%d, v%d" % (BP + 1, RP + 1, BP + 1))
    a("v_permlane32_swap_b32 v10, v9")
    a("v_add_f32 v9, v9, v10")
    a("v_mov_b32 v10, v9")
    a("v_mul_f32 v%d, v%d, v%d" % (BP + 2, RP + 2, BP + 2))
    a("v_mul_f32 v%d, v%d, v%d" % (BP + 3, RP + 3, BP + 3))
    a("v_permlane16_swap_b32 v10, v9")
    a("v_add_f32 v9, v9, v10")
    a("v_rcp_f32 v9, v9")
    for i in range(4):
        a("v_mul_f32 v%d, v%d, v%d" % (BC + i, RC + i, BC + i))
    for i in range(8):
        a("v_mul_f32 v%d, v9, v%d" % (BP + i, BP + i))
    P = 96
    for i in range(4):
        a("v_cvt_pk_bf16_f32 v%d, v%d, v%d" % (P + i, BP + 2 * i, BP + 2 * i + 1))
    O0, O1 = 40, 44
    a(mfma(O0, V0, P, "0"))
    a(mfma(O1, V1, P, "0"))
    OS = 124
    a("v_cvt_pk_bf16_f32 v%d, v%d, v%d" % (OS, O0, O0 + 1))
    a("v_cvt_pk_bf16_f32 v%d, v%d, v%d" % (OS + 1, O0 + 2, O0 + 3))
    a("v_cvt_pk_bf16_f32 v%d, v%d, v%d" % (OS + 2, O1, O1 + 1))
    a("v_cvt_pk_bf16_f32 v%d, v%d, v%d" % (OS + 3, O1 + 2, O1 + 3))
    a("v_cndmask_b32 v%d, 0, v%d, s[94:95]" % (OS + 2, OS + 2))
    a("v_cndmask_b32 v%d, 0, v%d, s[94:95]" % (OS + 3, OS + 3))
    a("buffer_store_dwordx4 %s, v14, %s, s98 offen%s" % (vr(OS), SWS, SC), tag="ost")
    stamp(a, "A o stored")


G1 = [(s, R1 + 8192 * s) for s in range(10)]
G2 = [(10 + i, R0 + 8192 * i) for i in range(7)]
G3 = [(17 + i, R1 + 8192 * i) for i in range(10)] + [(27, R2 + 16384)]


def helper(a):
    R = lambda x: raw(a, x)
    R("s_lshl_b32 %s, %s, 3" % (sT, sCB))
    R("s_add_u32 %s, %s, %s" % (sT, sT, sXC))
    R("s_mul_i32 %s, %s, %d" % (sT, sT, 392 * 128))
    R("v_min_u32 v8, 391, v0")
    R("v_lshlrev_b32 v8, 7, v8")
    if TCU > 6:
        R("buffer_load_dword v40, v8, %s, %s offen" % (SWU, sT))
    if TCD > 6:
        R("buffer_load_dword v41, v8, %s, %s offen" % (SWD, sT))


def phase_B(a):
    sTT, sKH, sTAU, sU = "s50", "s51", "s52", "s54"
    a("; ---------------- A->B ----------------")
    a("s_cmp_lt_u32 %s, 28" % sJ)
    a("s_cbranch_scc1 LgoB")
    raw(a, "s_waitcnt vmcnt(0)")
    raw(a, "s_barrier")
    publish(a, "s99")
    if "nohelp" not in OPT:
        helper(a)
    raw(a, "s_branch Lfin")
    a("LgoB:")
    worder = []
    for hh in range(8):
        for t in range(4):
            off = R0 + hh * 3584 + (t & 1) * 8
            worder.append("ds_read_b64_tr_b16 %s, v%d offset:%d" % (vr(WOF + 16 * hh + 4 * t, 2), 28 + (t >> 1), off))
            worder.append("ds_read_b64_tr_b16 %s, v%d offset:%d" % (vr(WOF + 16 * hh + 4 * t + 2, 2), 30 + (t >> 1), off))
    wc_dma(a, G1[10 - G1PRE:10], "v16", "g1")
    a("s_and_b32 %s, %s, 3" % (sTT, sW))
    a("s_lshr_b32 %s, %s, 2" % (sKH, sW))
    a("s_lshl_b32 %s, %s, 2" % (sTAU, sRB))
    a("s_add_u32 %s, %s, %s" % (sTAU, sTAU, sTT))
    a("s_lshr_b32 %s, %s, 1" % (sT, sTAU))
    a("s_lshl_b32 %s, %s, 5" % (sT, sT))
    a("s_and_b32 %s, %s, 1" % (sT2, sTAU))
    a("s_add_u32 %s, %s, %s" % (sT, sT, sT2))
    a("v_lshl_add_u32 v8, v3, 1, %s" % sT)
    a("v_mul_u32_u24 v8, 896, v8")
    a("v_lshl_add_u32 v8, v2, 4, v8")
    a("s_lshl_b32 %s, %s, 1" % (sU, sCB))
    a("s_add_u32 %s, %s, %s" % (sU, sU, sKH))
    a("s_lshl_b32 %s, %s, 6" % (sT3, sU))
    for x in worder[:WOPRE]:
        a(x)
    a.wait_tag("ost")
    a("s_barrier")
    publish(a, "s99")
    stamp(a, "A flag")
    XR = 20
    a("buffer_load_dwordx4 %s, v8, %s, %s offen" % (vr(XR), SX, sT3))
    wc_dma(a, G1[:10 - G1PRE], "v16", "g1")
    for x in worder[WOPRE:]:
        a(x)
    a("v_and_b32 v8, 1, v2")
    a("v_lshl_or_b32 v8, v8, 2, v4")
    a("v_lshlrev_b32 v8, 1, v8")
    a("v_lshrrev_b32 v9, 1, v5")
    a("s_lshl_b32 %s, %s, 1" % (sT, sW))
    a("v_add_u32 v9, %s, v9" % sT)
    a("v_xor_b32 v8, v8, v9")
    a("v_lshl_add_u32 v9, v2, 3, v4")
    a("v_lshlrev_b32 v9, 8, v9")
    a("v_lshl_add_u32 v9, v8, 4, v9")
    a("v_and_b32 v8, 1, v5")
    a("v_lshl_add_u32 v17, v8, 3, v9")
    a("v_add_u32 v18, 57344, v17")
    a("v_add_u32 v19, 114688, v17")
    OF, ACC = 32, 64
    for i in range(4):
        a("v_lshlrev_b32 v%d, 16, v%d" % (ACC + 2 * i, XR + i))
        a("v_and_b32 v%d, 0xffff0000, v%d" % (ACC + 2 * i + 1, XR + i))
    a("s_lshl_b32 %s, %s, 4" % (sT2, sTAU))
    a("s_lshl_b32 %s, %s, 3" % (sT3, sKH))
    a("s_add_u32 %s, %s, %s" % (sT2, sT2, sT3))
    a("s_lshl_b32 %s, %s, 10" % (sT2, sT2))
    a("s_add_u32 %s, %s, 4096" % (sT3, sT2))
    a("s_lshl_b32 %s, %s, 11" % (sT, sW))
    a("s_add_u32 %s, %s, %d" % (sT, sT, B_RB))
    a("v_add_u32 v12, %s, v14" % sT)
    a("s_xor_b32 %s, %s, 4" % (sT, sW))
    a("s_lshl_b32 %s, %s, 11" % (sT, sT))
    a("s_add_u32 %s, %s, %d" % (sT, sT, B_RB))
    a("v_add_u32 v13, %s, v14" % sT)
    a("s_mul_i32 s58, %s, 14" % sTAU)
    a("s_add_u32 s58, s58, %s" % sU)
    a("s_lshl_b32 s59, s58, 7")
    a("s_add_u32 s59, s59, %d" % WS_ST)
    a("s_lshl_b32 s58, s58, 10")
    a("s_add_u32 s58, s58, %d" % WS_H)
    a("s_lshl_b32 s60, %s, 7" % sRB)
    a("s_add_u32 s60, s60, %d" % WS_FA)
    a("s_lshr_b32 s61, %s, 1" % sRB)
    a("s_lshl_b32 s61, s61, 7")
    a("s_and_b32 %s, %s, 1" % (sT, sRB))
    a("s_mul_i32 %s, %s, 28" % (sT, sT))
    a("s_add_u32 s61, s61, %s" % sT)
    a("s_lshl_b32 %s, %s, 2" % (sT, sCB))
    a("s_add_u32 s61, s61, %s" % sT)
    a("s_add_u32 s61, s61, %d" % WS_FB)
    a("v_lshlrev_b32 v11, 3, v3")
    a("s_waitcnt lgkmcnt(0)")
    stamp(a, "B pre-poll")
    poll(a, "s60", 0xff, 0)
    stamp(a, "B go")
    for hh in range(8):
        a("buffer_load_dwordx4 %s, v14, %s, %s offen offset:%d%s" % (vr(OF + 4 * hh), SWS, sT2 if hh < 4 else sT3, (hh & 3) * 1024, SC))
    a("s_barrier")
    for hh in range(8):
        if hh < 7:
            wc_dma(a, G2[hh:hh + 1], "v16", "g2")
        for t in (2, 3, 0, 1):
            a(mfma(ACC + 4 * t, WOF + 16 * hh + 4 * t, OF + 4 * hh, "0" if (hh == 0 and t >= 2) else None))
    a("ds_write_b128 v12, %s" % vr(ACC + 8))
    a("ds_write_b128 v12, %s offset:1024" % vr(ACC + 12))
    a("s_waitcnt lgkmcnt(0)")
    a("s_barrier")
    a("ds_read_b128 %s, v13" % vr(ACC + 8))
    a("ds_read_b128 %s, v13 offset:1024" % vr(ACC + 12))
    a("v_mov_b32 v8, 0")
    a("v_mov_b32 v9, 0")
    a("v_mov_b32 v6, 0")
    a("v_mov_b32 v7, 0")
    a("v_mov_b32 v10, 0x3f803f80")
    for i in range(8):
        a("v_add_f32 v%d, v%d, v%d" % (ACC + i, ACC + i, ACC + 8 + i))
    HP = 24
    for i in range(4):
        a("v_cvt_pk_bf16_f32 v%d, v%d, v%d" % (HP + i, ACC + 2 * i, ACC + 2 * i + 1))
    a("buffer_store_dwordx4 %s, v14, %s, s58 offen%s" % (vr(HP), SWS, SC))
    for i in range(4):
        a("v_dot2c_f32_bf16 v%d, v%d, v10" % (8 if i & 1 else 6, HP + i))
        a("v_dot2c_f32_bf16 v%d, v%d, v%d" % (9 if i & 1 else 7, HP + i, HP + i))
    a("v_add_f32 v8, v8, v6")
    a("v_add_f32 v9, v9, v7")
    xg_reduce_multi(a, "v_add_f32", ["v8", "v9"], ["v6", "v7"])
    a("s_mov_b64 exec, 0xffff")
    a("buffer_store_dwordx2 v[8:9], v11, %s, s59 offen%s" % (SWS, SC), tag="hst")
    a("s_mov_b64 exec, -1")
    stamp(a, "B h stored")


D_RDY = 163836
C_S0 = 116736
WDF = [224, 240, 64, 80, 96, 112, 128]


def emit_group(a, g):
    for (x, tg) in g:
        a(x, tag=tg)


def wd_dma_groups(u, base):
    gs = []
    for i4 in range(4):
        i = 4 * u + i4
        gs.append([("s_add_u32 m0, s63, %d" % (base + i4 * 1024), None),
                   ("s_mov_b32 s65, %d" % ((16 * (i >> 1) + 4 * (i & 1)) * 896), None),
                   ("buffer_load_dwordx4 v17, %s, s65 offen lds" % SWD, ("wd", u))])
    return gs


def wd_reads(u, base):
    out = []
    for t in range(4):
        for hf in range(2):
            out.append("ds_read_b64_tr_b16 %s, v%d offset:%d" % (vr(WDF[u] + 4 * t + 2 * hf, 2), 8 + t, base + hf * 1024))
    return out


def phase_C(a):
    a("; ---------------- B->C ----------------")
    wc_dma(a, G3[10:], "v16", "g3")
    for x in wc_read(G1, 17):
        a(x)
    a.wait_tag("hst", lg0=True)
    a("s_barrier")
    publish(a, "s61")
    stamp(a, "B flag")
    wc_dma(a, G3[:10], "v16", "g3")
    for x in wc_read(G2, 17):
        a(x)
    ONES, CSG, CSU = 20, 24, 28
    for i in range(4):
        a("v_mov_b32 v%d, 0x3f803f80" % (ONES + i))
    for u in range(14):
        a(mfma(CSG, WGF + 4 * u, ONES, "0" if u == 0 else None))
    a("s_mul_i32 %s, %s, 114688" % (sT2, sRQ))
    a("s_add_u32 %s, %s, %d" % (sT2, sT2, WS_H))
    a("s_mul_i32 s62, %s, 3584" % sW)
    a("v_add_u32 v12, s62, v14")
    a("s_lshl_b32 %s, %s, 3" % (sT3, sRQ))
    a("s_add_u32 %s, %s, %s" % (sT3, sT3, sW))
    a("s_mul_i32 %s, %s, 1792" % (sT3, sT3))
    a("s_add_u32 %s, %s, %d" % (sT3, sT3, WS_ST))
    for i in range(4):
        a("v_mov_b32 v%d, 0" % (60 + i))
    a("v_and_b32 v8, 1, v2")
    a("v_mul_u32_u24 v8, 57344, v8")
    a("v_lshrrev_b32 v10, 1, v2")
    a("s_and_b32 %s, %s, 1" % (sT, sW))
    a("s_lshl_b32 %s, %s, 1" % (sT, sT))
    a("v_add_u32 v10, %s, v10" % sT)
    a("v_lshl_add_u32 v8, v10, 8, v8")
    a("v_lshl_add_u32 v13, v3, 4, v8")
    a("s_mul_i32 s58, %s, 448" % sRQ)
    a("s_lshl_b32 %s, %s, 2" % (sT, sFS))
    a("s_add_u32 s58, s58, %s" % sT)
    a("s_lshr_b32 %s, %s, 1" % (sT, sW))
    a("s_add_u32 s58, s58, %s" % sT)
    a("s_lshl_b32 s58, s58, 10")
    a("s_add_u32 s58, s58, %d" % WS_HH)
    a("s_mov_b32 s59, 0x%x" % f2u(-LOG2E))
    a("s_lshl_b32 s60, %s, 7" % sRQ)
    a("s_add_u32 s60, s60, %d" % WS_FB)
    a("s_lshl_b32 s61, %s, 8" % sRQ)
    a("s_lshl_b32 %s, %s, 2" % (sT, sFS))
    a("s_add_u32 s61, s61, %s" % sT)
    a("s_add_u32 s61, s61, %d" % WS_FC)
    a("s_lshl_b32 s63, %s, 12" % sW)
    a("s_lshr_b32 %s, %s, 1" % (sT, sRB))
    a("s_lshl_b32 s67, %s, 8" % sT)
    a("s_add_u32 s67, s67, %d" % WS_FC)
    a("s_lshl_b32 s70, %s, 7" % sT)
    a("s_lshl_b32 %s, %s, 3" % (sT, sT))
    a("s_and_b32 s64, %s, 1" % sRB)
    a("s_add_u32 %s, %s, s64" % (sT, sT))
    a("s_add_u32 s70, s70, s64")
    a("s_mul_i32 s70, s70, 896")
    a("s_lshl_b32 s64, %s, 7" % sCB)
    a("s_add_u32 s70, s70, s64")
    a("s_mul_i32 s68, %s, 56" % sT)
    a("s_mul_i32 s64, %s, 7" % sW)
    a("s_add_u32 s68, s68, s64")
    a("s_lshl_b32 s68, s68, 10")
    a("s_add_u32 s68, s68, %d" % WS_HH)
    a("s_and_b32 s64, %s, 6" % sW)
    a("s_add_u32 %s, %s, s64" % (sT, sT))
    a("s_mul_i32 s69, %s, 14" % sT)
    a("s_lshl_b32 s64, %s, 1" % sCB)
    a("s_add_u32 s69, s69, s64")
    a("s_and_b32 s64, %s, 1" % sW)
    a("s_add_u32 s69, s69, s64")
    a("s_lshl_b32 s69, s69, 10")
    a("s_add_u32 s69, s69, %d" % WS_H)
    a("v_and_b32 v6, 1, v2")
    a("v_lshl_add_u32 v6, v6, 2, v4")
    a("v_and_b32 v7, 6, v6")
    a("v_lshrrev_b32 v10, 1, v5")
    a("v_xor_b32 v7, v7, v10")
    a("v_lshrrev_b32 v10, 1, v2")
    a("v_lshl_add_u32 v6, v10, 4, v6")
    a("v_lshlrev_b32 v6, 7, v6")
    a("v_lshl_add_u32 v6, v7, 4, v6")
    a("v_and_b32 v7, 1, v5")
    a("v_lshl_add_u32 v6, v7, 3, v6")
    a("s_add_u32 %s, s63, 65536" % sT)
    a("v_add_u32 v8, %s, v6" % sT)
    for t in range(1, 4):
        a("v_xor_b32 v%d, %d, v8" % (8 + t, 32 * t))
    a("s_waitcnt lgkmcnt(0)")
    stamp(a, "C pre-poll")
    poll(a, "s60", 0x3fff, 0)
    stamp(a, "C go")

    def h_groups(tp):
        tg = ("h", tp)
        gs = []
        for i in range(4):
            g = []
            if i == 0:
                g.append(("s_add_u32 s64, %s, %d" % (sT2, tp * 28672), None))
            g.append(("s_add_u32 m0, s62, %d" % (tp * 28672), None))
            if i == 3:
                g.append(("s_mov_b32 exec_hi, 0", None))
            g.append(("buffer_load_dwordx4 v12, %s, s64 offen offset:%d%s lds" % (SWS, i * 1024, SC), tg))
            if i == 3:
                g.append(("s_mov_b64 exec, -1", None))
            gs.append(g)
        return gs

    a("buffer_load_dwordx4 v[56:59], v14, %s, %s offen%s" % (SWS, sT3, SC))
    a("s_mov_b32 exec_hi, 0xffff")
    a("buffer_load_dwordx4 v[60:63], v14, %s, %s offen offset:1024%s" % (SWS, sT3, SC))
    a("s_mov_b64 exec, -1")
    for g in h_groups(0):
        emit_group(a, g)
    a.wait_tag("g3")
    a("s_barrier")
    for x in wc_read(G3, 17):
        a(x)
    a("v_lshrrev_b32 v6, 3, v1")
    a("v_and_b32 v7, 7, v1")
    a("v_and_b32 v16, 6, v6")
    a("v_xor_b32 v7, v16, v7")
    a("v_and_b32 v16, 3, v6")
    a("v_lshrrev_b32 v6, 2, v6")
    a("v_lshl_add_u32 v16, v6, 3, v16")
    a("s_mul_i32 %s, %s, 224" % (sT, sW))
    a("v_add_u32 v16, %s, v16" % sT)
    a("v_mul_u32_u24 v16, 896, v16")
    a("v_lshl_add_u32 v16, v7, 4, v16")
    a("s_lshl_b32 %s, %s, 7" % (sT, sCB))
    a("v_add_u32 v17, %s, v16" % sT)
    a("v_add_u32 v16, 57344, v14")
    a("v_lshlrev_b32 v19, 4, v3")
    a("v_add_u32 v19, %d, v19" % C_ST)
    a("s_lshl_b32 %s, %s, 8" % (sT, sW))
    a("s_add_u32 %s, %s, %d" % (sT, sT, C_ST))
    a("v_and_b32 v18, 7, v1")
    a("v_lshl_add_u32 v18, v18, 5, %s" % sT)
    for u in range(14):
        a(mfma(CSU, WUF + 4 * u, ONES, "0" if u == 0 else None))
    st = []
    for i in range(4):
        st.append("v_add_f32 v%d, v%d, v%d" % (56 + i, 56 + i, 60 + i))
    for i in range(4):
        st.append("v_add_f32_dpp v%d, v%d, v%d row_ror:8 row_mask:0xf bank_mask:0xf" % (56 + i, 56 + i, 56 + i))
    for step in ("v_permlane32_swap_b32", "v_permlane16_swap_b32"):
        for i in range(4):
            st.append("v_mov_b32 v%d, v%d" % (60 + i, 56 + i))
        for i in range(4):
            st.append("%s v%d, v%d" % (step, 60 + i, 56 + i))
        for i in range(4):
            st.append("v_add_f32 v%d, v%d, v%d" % (56 + i, 56 + i, 60 + i))
    st.append("s_mov_b32 %s, 0x%x" % (sT, f2u(1.0 / 448)))
    st.append("v_mov_b32 v6, 0x%x" % f2u(1e-5))
    for tk in range(2):
        s1, s2, d = 56 + 2 * tk, 57 + 2 * tk, 32 + 4 * tk
        st.append("v_mul_f32 v%d, -%s, v%d" % (d, sT, s1))
        st.append("v_fma_f32 v%d, v%d, %s, v6" % (s2, s2, sT))
        st.append("v_fma_f32 v%d, -v%d, v%d, v%d" % (s2, d, d, s2))
        st.append("v_max_f32 v%d, v%d, v6" % (s2, s2))
        st.append("v_sqrt_f32 v%d, v%d" % (d + 2, s2))
        st.append("v_rsq_f32 v%d, v%d" % (s2, s2))
        st.append("v_mul_f32 v%d, s59, v%d" % (d + 1, s2))
    st.append("ds_write_b128 v18, v[32:35]")
    st.append("ds_write_b128 v18, v[36:39] offset:16")
    for x in st:
        a(x)
    st = []
    AF, NR = 192, 8
    ACCS = [40, 48]
    STS = [32, 36]
    PKD = [56, 60]

    def epi(i):
        g, u_, s, pk = ACCS[i & 1], ACCS[i & 1] + 4, STS[i & 1], PKD[(i >> 1) & 1]
        o = []
        o.append("ds_read_b128 %s, v19 offset:%d" % (vr(s), i * 256))
        o.append(None)
        o.append(None)
        for rr in range(4):
            o.append("v_fmac_f32 v%d, v%d, v%d" % (g + rr, s, CSG + rr))
        for rr in range(4):
            o.append("v_mul_f32 v%d, v%d, v%d" % (g + rr, s + 1, g + rr))
        for rr in range(4):
            o.append("v_exp_f32 v%d, v%d" % (g + rr, g + rr))
        for rr in range(4):
            o.append("v_fmac_f32 v%d, v%d, v%d" % (u_ + rr, s, CSU + rr))
        for rr in range(4):
            o.append("v_fma_f32 v%d, v%d, v%d, v%d" % (g + rr, g + rr, s + 2, s + 2))
        for rr in range(4):
            o.append("v_rcp_f32 v%d, v%d" % (g + rr, g + rr))
        for rr in range(4):
            o.append("v_mul_f32 v%d, v%d, v%d" % (g + rr, g + rr, u_ + rr))
        o.append("v_cvt_pk_bf16_f32 v%d, v%d, v%d" % (pk + 2 * (i & 1), g, g + 1))
        o.append("v_cvt_pk_bf16_f32 v%d, v%d, v%d" % (pk + 2 * (i & 1) + 1, g + 2, g + 3))
        if i & 1:
            o.append("v_permlane16_swap_b32 v%d, v%d" % (pk, pk + 2))
            o.append("v_permlane16_swap_b32 v%d, v%d" % (pk + 1, pk + 3))
            o.append(("buffer_store_dwordx4 %s, v13, %s, s58 offen%s" % (vr(pk), SWS, SC), ("hh", i >> 1)))
            o.append("s_add_u32 s58, s58, %d" % (2 * 57344))
        return o

    def emit(x):
        if x is None:
            return
        if isinstance(x, tuple):
            a(x[0], tag=x[1])
        else:
            a(x)

    def pub_stage(tp):
        publish(a, "s61")
        a("s_add_u32 s61, s61, 64")

    S0o = C_S0 - 65536
    side = {}
    prio = {}

    def at(k, f):
        side.setdefault(k, []).append(f)

    def spread(k0, stride, groups):
        for n, g in enumerate(groups):
            at(k0 + n * stride, (lambda g=g: emit_group(a, g)))

    def rd_job(k, u, base):
        def f():
            a.wait_tag(("wd", u))
            for x in wd_reads(u, base):
                a(x)
        at(k, f)

    spread(0, 1, h_groups(1))
    spread(5, 2, h_groups(2) + h_groups(3))
    spread(22, 1, wd_dma_groups(0, C_S0))
    rd_job(38, 0, S0o)
    spread(44, 1, wd_dma_groups(1, C_S0))
    spread(52, 2, wd_dma_groups(4, 0))
    rd_job(62, 1, S0o)
    spread(68, 1, wd_dma_groups(2, C_S0))
    spread(80, 2, wd_dma_groups(5, 32768))
    rd_job(88, 2, S0o)
    spread(94, 2, wd_dma_groups(3, C_S0))
    at(102, lambda: lead_issue(a, "s67"))

    if "nowd" in OPT:
        for k in list(side):
            if k >= 18:
                del side[k]
    if "nowdrd" in OPT:
        for k in (38, 62, 88):
            del side[k]

    def bar(tags, lg0=False, pub=None):
        def f():
            for tg in tags:
                a.wait_tag(tg, lg0=lg0)
            a("s_barrier")
            if pub is not None:
                pub_stage(pub)
        return f

    barr = {22: bar([("h", 1)]), 50: bar([("h", 3), ("hh", 0)], pub=0), 78: bar([("hh", 1)], pub=1)}
    if "noprio" not in OPT:
        for (k0, k1) in ((0, 22), (22, 50), (50, 78), (78, 112)):
            for lv in range(4):
                kk = k0 + (k1 - k0) * lv // 4
                prio[kk] = 3 - lv

    if "nostw" in OPT:
        barr = {14: bar([("h", 1)], lg0=True), 50: bar([("h", 3)], pub=0), 78: bar([], pub=1)}
    if "cst" in OPT:
        for kk in (14, 28, 42, 56, 70, 84, 98):
            at(kk - 1, (lambda kk=kk: stamp(a, "C k%d" % kk)))
    a.wait_tag(("h", 0), lg0=True)
    a("s_barrier")
    stamp(a, "C h0 landed")
    allrd = []
    for k in range(112):
        off = k * 1024
        allrd.append("ds_read_b128 %s, v%d offset:%d" % (vr(AF + 4 * (k % NR)), 14 if off < 57344 else 16, off % 57344))
    nxt = 0
    LA = NR - 2
    for i in range(8):
        acc = ACCS[i & 1]
        ep = epi(i - 1) if i else st
        for u in range(14):
            k = i * 14 + u
            if k in barr:
                barr[k]()
            if k in prio:
                a("s_setprio %d" % prio[k])
            while nxt < len(allrd) and nxt <= k + LA - 1:
                a(allrd[nxt])
                nxt += 1
            f = AF + 4 * (k % NR)
            z = "0" if u == 0 else None
            npop = 5 if i == 0 else 3
            start = 3 if i == 0 else 0
            if "m32" in OPT:
                ac = 224 + 16 * ((i >> 1) & 1)
                a("v_mfma_f32_32x32x16_bf16 %s, %s, %s, %s" % (vr(ac, 16), vr(WGF + 4 * (u + 14 * (i & 1))), vr(f), "0" if k % 28 == 0 else vr(ac, 16)))
            else:
                a(mfma(acc, WGF + 4 * u, f, z))
            if u >= start:
                for _ in range(npop // 2):
                    if ep:
                        emit(ep.pop(0))
            if "m32" not in OPT:
                a(mfma(acc + 4, WUF + 4 * u, f, z))
            if u >= start:
                for _ in range(npop - npop // 2):
                    if ep:
                        emit(ep.pop(0))
            for fn in side.get(k, []):
                fn()
        for x in ep:
            emit(x)
    stamp(a, "C mfma done")
    return epi, emit, pub_stage


def lead_issue(a, soff):
    L = a.label("liss")
    raw(a, "s_cmp_lg_u32 %s, 0" % sW)
    raw(a, "s_cbranch_scc1 %s" % L)
    raw(a, "v_lshlrev_b32 v6, 2, v1")
    raw(a, "buffer_load_dword v7, v6, %s, %s offen sc1" % (SWS, soff))
    raw(a, "%s:" % L)
    a.vm.append((set(), "lead"))
    a.lead_phantom = True


def lead_check(a, soff, mask_lo, mask_hi, level=None, vaddr=None):
    L, Lp, Lc, Ld = a.label("lskip"), a.label("lpoll"), a.label("lchk"), a.label("ldone")
    n = a._after(a.vm, lambda e: e[1] == "lead")
    a.vm = [e for e in a.vm if e[1] != "lead"]
    raw(a, "s_cmp_lg_u32 %s, 0" % sW)
    raw(a, "s_cbranch_scc1 %s" % L)
    raw(a, "s_mov_b32 s3, 400000")
    if n is not None:
        raw(a, "s_waitcnt vmcnt(%d)" % min(n, 63))
    raw(a, "s_branch %s" % Lc)
    raw(a, "%s:" % Lp)
    raw(a, "buffer_load_dword v7, v6, %s, %s offen sc1" % (SWS, soff))
    raw(a, "s_waitcnt vmcnt(0)")
    raw(a, "%s:" % Lc)
    raw(a, "v_cmp_ne_u32 vcc, %s, v7" % sNONCE)
    raw(a, "s_sub_u32 s3, s3, 1")
    raw(a, "s_cbranch_scc1 %s" % Ld)
    raw(a, "s_nop 0")
    raw(a, "s_and_b32 vcc_lo, vcc_lo, 0x%x" % mask_lo)
    raw(a, "s_and_b32 vcc_hi, vcc_hi, 0x%x" % mask_hi)
    raw(a, "s_cmp_lg_u64 vcc, 0")
    raw(a, "s_cbranch_scc1 %s" % Lp)
    raw(a, "%s:" % Ld)
    if level is not None:
        raw(a, "v_mov_b32 v7, %d" % level)
        raw(a, "ds_write_b32 %s, v7" % vaddr)
    raw(a, "%s:" % L)


def lds_wait(a, level):
    Lp, Ld = a.label("wl"), a.label("wd")
    raw(a, "s_mov_b32 s3, 2000000")
    raw(a, "%s:" % Lp)
    raw(a, "ds_read_b32 v31, v30")
    raw(a, "s_waitcnt lgkmcnt(0)")
    raw(a, "v_readfirstlane_b32 s66, v31")
    raw(a, "s_sub_u32 s3, s3, 1")
    raw(a, "s_cbranch_scc1 %s" % Ld)
    raw(a, "s_nop 0")
    raw(a, "s_cmp_lt_u32 s66, %d" % level)
    raw(a, "s_cbranch_scc1 %s" % Lp)
    raw(a, "%s:" % Ld)


D_HR = 98304


def phase_D(a, epi, emit, pub_stage):
    a("; ---------------- C->D ----------------")
    ep = epi(7)
    emit(ep.pop(0))
    a.wait_tag(("hh", 2), lg0=True)
    lead_check(a, "s67", 0x3fff3fff, 0)
    a("s_barrier")
    pub_stage(2)
    for x in ep:
        emit(x)
    stamp(a, "C last store")
    a("s_setprio 0")
    ACCS, AF, NR = [144, 160], 176, 12
    DLA = DLAV
    FT, FS, OUTR = 32, 48, 50

    def hh_load(k):
        rt, i = k // 7, k % 7
        a("buffer_load_dwordx4 %s, v%d, %s, s68 offen offset:%d%s" % (vr(AF + 4 * (k % NR)), 14 if i < 4 else 16, SWS, (i & 3) * 1024, "" if "hhplain" in OPT else SC))
        if i == 6:
            a("s_add_u32 s68, s68, %d" % (2 * 57344))

    a("v_add_u32 v16, 4096, v14")
    for k in range(DPRE):
        hh_load(k)
    a.wait_tag(("wd", 3))
    for x in wd_reads(3, C_S0 - 65536):
        a(x)
    for t in range(4):
        a("v_subrev_u32 v%d, 65536, v%d" % (8 + t, 8 + t))
    for x in wd_reads(4, 0) + wd_reads(5, 32768):
        a(x)
    for t in range(4):
        a("v_add_u32 v%d, 65536, v%d" % (8 + t, 8 + t))
    a("v_lshrrev_b32 v18, 5, v1")
    a("s_lshl_b32 %s, %s, 1" % (sT, sW))
    a("v_add_u32 v18, %s, v18" % sT)
    a("v_and_b32 v19, 31, v1")
    a("v_lshrrev_b32 v20, 2, v19")
    a("v_lshlrev_b32 v20, 8, v20")
    a("v_lshl_add_u32 v20, v18, 4, v20")
    a("v_lshl_add_u32 v20, v5, 2, v20")
    a("v_add_u32 v20, %d, v20" % D_HR)
    a("v_mul_u32_u24 v21, 1792, v18")
    a("v_lshl_add_u32 v21, v19, 2, v21")
    a("v_lshrrev_b32 v22, 1, v19")
    a("v_add_u32 v23, v22, v18")
    a("v_and_b32 v23, 15, v23")
    a("v_lshlrev_b32 v23, 4, v23")
    a("v_lshl_add_u32 v22, v22, 8, v23")
    a("v_and_b32 v23, 1, v19")
    a("v_lshl_add_u32 v22, v23, 3, v22")
    a("v_add_u32 v23, v2, v3")
    a("v_lshl_add_u32 v28, v2, 8, s63")
    for t in range(4):
        a("v_add_u32 v29, %d, v23" % (4 * t))
        a("v_and_b32 v29, 15, v29")
        a("v_lshl_add_u32 v%d, v29, 4, v28" % (24 + t))
    a.wait_tag(("hh", 3), lg0=True)
    a("s_barrier")
    pub_stage(3)
    stamp(a, "C flag")
    for k in range(DPRE, DLA):
        hh_load(k)
    a("s_add_u32 m0, %s, %d" % (sW1024, D_HR))
    a("buffer_load_dwordx4 v14, %s, s69 offen%s lds" % (SWS, SC), tag="hr")
    wd6 = wd_dma_groups(6, 65536)

    def writes(rt):
        return ["ds_write_b128 v%d, %s offset:%d" % (24 + t, vr(ACCS[rt & 1] + 4 * t), (rt & 1) * 32768 + t * 1024) for t in range(4)]

    def fin(rt):
        o = ["ds_read_b32 v%d, v20 offset:%d" % (FS + 1, rt * 2048)]
        for p in range(8):
            o.append("ds_read_b64 %s, v22 offset:%d" % (vr(FT + 2 * p, 2), (rt & 1) * 32768 + p * 4096))
        o.append("v_lshlrev_b32 v%d, 16, v%d" % (FS, FS + 1))
        o.append("v_and_b32 v%d, 0xffff0000, v%d" % (FS + 1, FS + 1))
        for (d, x) in ((0, 2), (4, 6), (8, 10), (12, 14), (0, 4), (8, 12), (0, 8)):
            o.append("v_add_f32 v%d, v%d, v%d" % (FT + d, FT + d, FT + x))
            o.append("v_add_f32 v%d, v%d, v%d" % (FT + d + 1, FT + d + 1, FT + x + 1))
        o.append("v_add_f32 v%d, v%d, v%d" % (FS, FS, FT))
        o.append("v_add_f32 v%d, v%d, v%d" % (FS + 1, FS + 1, FT + 1))
        o.append("v_cvt_pk_bf16_f32 v%d, v%d, v%d" % (OUTR + rt, FS, FS + 1))
        o.append("buffer_store_dword v%d, v21, %s, s70 offen%s" % (OUTR + rt, SOUT, OUTSC))
        o.append("s_add_u32 s70, s70, %d" % (32 * 896))
        return o

    nl = [DLA]
    BI = DBI
    wpos = {3: [(0, 3), (1, 1), (1, 3), (2, 1)], 4: [(0, 3), (1, 3), (2, 3), (3, 1)], 2: [(1, 0), (1, 1), (1, 2), (1, 3)]}[BI]
    fn = []
    for rt in range(4):
        wr = writes(rt - 1) if rt else []
        for i in range(7):
            k = rt * 7 + i
            if k < 2:
                emit_group(a, wd6[2 * k])
                emit_group(a, wd6[2 * k + 1])
            if k == 5:
                a.wait_tag(("wd", 6))
                for x in wd_reads(6, 0):
                    a(x)
            if k in (3 + BI, 10 + BI):
                lead_issue(a, "s67")
            if rt and i == BI:
                for x in fn:
                    a(x)
                if rt == 1:
                    lead_check(a, "s67", 0, 0x3fff)
                if rt == 2:
                    lead_check(a, "s67", 0, 0x3fff0000)
                a("s_waitcnt lgkmcnt(0)")
                if "dnobar" not in OPT:
                    a("s_barrier")
                fn = fin(rt - 1)
            lim = 14 if k < 7 + BI else (21 if k < 14 + BI else 28)
            n_iss = 0
            while nl[0] < min(lim, k + DLA + 1) and n_iss < 2:
                if "dnoload" not in OPT:
                    hh_load(nl[0])
                nl[0] += 1
                n_iss += 1
            for t in range(4):
                if not ("dnomfma" in OPT and t):
                    a(mfma(ACCS[rt & 1] + 4 * t, WDF[i] + 4 * t, AF + 4 * (k % NR), "0" if i == 0 else None))
                if "dnored" in OPT:
                    wr, fn = [], []
                if wr and (i, t) in wpos:
                    a(wr.pop(0))
                for _ in range(2):
                    if fn:
                        a(fn.pop(0))
    for x in fn:
        a(x)
    stamp(a, "D mfma done")
    for x in writes(3):
        a(x)
    a("s_waitcnt lgkmcnt(0)")
    a("s_barrier")
    for x in fin(3):
        a(x)
    stamp(a, "D out stored")


HEADER = open("cdna_kernels/%s.s.ref" % NAME).read().split("; Override launch")[0]


def build():
    n = NAME + "_kernel"
    out = HEADER
    out += "; @launch grid=(256,1,1) block=(512,1,1) lds=163840\n"
    out += '.amdgcn_target "amdgcn-amd-amdhsa--gfx950"\n.text\n'
    a = Asm()
    prologue(a)
    phase_A(a)
    phase_B(a)
    phase_D(a, *phase_C(a))
    a("Lfin:")
    stamp_flush(a)
    a("Lend:")
    a("s_endpgm")
    a("Lcode_end:")
    body = a.render()
    out += ".globl %s\n.p2align 8\n.type %s,@function\n%s:\nLcode_begin:\n%s" % (n, n, n, body)

    out += '.section .rodata,"a"\n.p2align 6\n'
    out += """.amdhsa_kernel %s
  .amdhsa_next_free_vgpr 256
  .amdhsa_next_free_sgpr 102
  .amdhsa_accum_offset 256
  .amdhsa_group_segment_fixed_size 0
  .amdhsa_kernarg_size 80
  .amdhsa_user_sgpr_count 2
  .amdhsa_user_sgpr_kernarg_segment_ptr 1
  .amdhsa_system_sgpr_workgroup_id_x 1
.end_amdhsa_kernel
""" % n
    return out


if __name__ == "__main__":
    dst = sys.argv[1] if len(sys.argv) > 1 else "cdna_kernels/%s.s" % NAME
    STAMPS = "stamps" in sys.argv
    OPT = set(sys.argv[2:])
    for o in sys.argv[2:]:
        if "=" in o:
            globals()[o.split("=")[0]] = int(o.split("=")[1])
    txt = build()
    import subprocess, re
    open("_sz.s", "w").write(txt.replace("CODE_BYTES", "0x12345"))
    subprocess.check_call(["clang", "-x", "assembler", "-target", "amdgcn-amd-amdhsa", "-mcpu=gfx950", "-c", "_sz.s", "-o", "_sz.o"])
    sym = subprocess.check_output(["llvm-objdump", "-t", "_sz.o"]).decode()
    end = int(re.search(r"([0-9a-f]+) .*Lcode_end", sym).group(1), 16)
    print("code bytes", end)
    open(dst, "w").write(txt.replace("CODE_BYTES", str((end - 64) & ~3)))
    print("wrote", dst)
```

```python
import sys, struct
sys.path.insert(0, "dev")
from asmlib import Asm, Ins

NAME = "sequential_preLN__sliding_local_dilated__glu_gated_glu__prompt"

WS_O = 0
WS_H = 2 << 20
WS_ST = 4 << 20
WS_HH = 8 << 20
WS_FA = 16 << 20
WS_FB = WS_FA + 8192
WS_FC = WS_FA + 16384
WS_TS = 20 << 20
WS_SIZE = 32 << 20

SX, SWQKV, SWO, SWG, SWU, SWD, SOUT, SWS, SDBG = [("s[%d:%d]" % (b, b + 3)) for b in range(8, 44, 4)]
sW, sXC, sJ, sNONCE = "s44", "s45", "s46", "s47"
sT, sT2, sT3 = "s55", "s56", "s57"
sW1024 = "s53"
sRB, sCB, sRQ, sFS = "s84", "s85", "s86", "s87"
SC = " sc1"
OUTSC = "" if "outplain" in sys.argv else " sc1"
LOG2E = 1.4426950408889634
STAMPS = False
OPT = set()
NSTAMP = [0]
ASPACE = 3
WOPRE = 40
G1PRE = 4
DPRE = 4
DLAV = 5
DBI = 3
HSLEEP = 4
TCH = 3
TCU = 7
TCD = 7
ROTM = 1


def f2u(x):
    return struct.unpack("<I", struct.pack("<f", x))[0]


def vr(b, n=4):
    return "v[%d:%d]" % (b, b + n - 1)


def mfma(acc, A, B, C=None):
    return "v_mfma_f32_16x16x32_bf16 %s, %s, %s, %s" % (vr(acc), vr(A), vr(B), vr(acc) if C is None else C)


def raw(a, text):
    for line in text.split("\n"):
        line = line.strip()
        if not line:
            continue
        if line.endswith(":"):
            a.items.append(("l", line))
        else:
            a.items.append(("i", Ins(line)))


def stamp(a, name):
    if STAMPS:
        i = NSTAMP[0]
        NSTAMP[0] += 1
        a("; STAMP %d %s" % (i, name))
        a("s_memrealtime s[100:101]")
        a("s_memtime s[72:73]")
        a("s_waitcnt lgkmcnt(0)")
        a("v_writelane_b32 v15, s100, %d" % i)
        a("v_writelane_b32 v15, s72, %d" % (32 + i))


def stamp_flush(a):
    if STAMPS:
        a("s_lshl_b32 s3, s2, 3")
        a("s_add_u32 s3, s3, %s" % sW)
        a("s_lshl_b32 s3, s3, 8")
        a("s_add_u32 s3, s3, %d" % WS_TS)
        a("v_lshlrev_b32 v7, 2, v1")
        a("buffer_store_dword v15, v7, %s, s3 offen" % SWS)
        if "dbgout" in OPT:
            a("s_cmp_lg_u32 s2, 100")
            a("s_cbranch_scc1 Lend")
            a("s_cmp_lg_u32 %s, 3" % sW)
            a("s_cbranch_scc1 Lend")
            sel = [0, 2, 3, 5, 6, 8, 9, 10, 12, 13, 14, 16, 18, 19, 20]
            a("v_mov_b32 v7, 0")
            for i, st in enumerate(sel):
                a("v_readlane_b32 s3, v15, %d" % st)
                a("s_sub_u32 s3, s3, %s" % sNONCE)
                a("v_mov_b32 v6, s3")
                a("buffer_store_dword v6, v7, %s, 0 offen offset:%d" % (SDBG, 4 + 4 * i))


def xg_reduce_multi(a, op, xs, ts):
    for step in ("v_permlane32_swap_b32", "v_permlane16_swap_b32"):
        for x, t in zip(xs, ts):
            a("v_mov_b32 %s, %s" % (t, x))
        for x, t in zip(xs, ts):
            a("%s %s, %s" % (step, t, x))
        for x, t in zip(xs, ts):
            a("%s %s, %s, %s" % (op, x, x, t))


def publish(a, soff):
    L = a.label("pub")
    raw(a, "s_cmp_lg_u32 %s, 0" % sW)
    raw(a, "s_cbranch_scc1 %s" % L)
    raw(a, "s_mov_b64 exec, 1")
    raw(a, "v_mov_b32 v6, %s" % sNONCE)
    raw(a, "v_mov_b32 v7, 0")
    raw(a, "buffer_store_dword v6, v7, %s, %s offen sc1" % (SWS, soff))
    raw(a, "s_mov_b64 exec, -1")
    raw(a, "%s:" % L)


def poll(a, soff, mask_lo, mask_hi, sleep=0):
    L, Lp, Ld = a.label("skip"), a.label("poll"), a.label("done")
    raw(a, "s_cmp_lg_u32 %s, 0" % sW)
    raw(a, "s_cbranch_scc1 %s" % L)
    raw(a, "v_lshlrev_b32 v7, 2, v1")
    raw(a, "s_mov_b32 exec_lo, 0x%x" % mask_lo)
    raw(a, "s_mov_b32 exec_hi, 0x%x" % mask_hi)
    raw(a, "s_mov_b32 s3, 400000")
    raw(a, "%s:" % Lp)
    if sleep:
        raw(a, "s_sleep %d" % sleep)
    raw(a, "buffer_load_dword v6, v7, %s, %s offen sc1" % (SWS, soff))
    raw(a, "s_waitcnt vmcnt(0)")
    raw(a, "v_cmp_ne_u32 vcc, %s, v6" % sNONCE)
    raw(a, "s_sub_u32 s3, s3, 1")
    raw(a, "s_cbranch_scc1 %s" % Ld)
    raw(a, "s_nop 1")
    raw(a, "s_cmp_lg_u64 vcc, 0")
    raw(a, "s_cbranch_scc1 %s" % Lp)
    raw(a, "%s:" % Ld)
    raw(a, "s_mov_b64 exec, -1")
    raw(a, "%s:" % L)
    a("s_barrier")


def prologue(a):
    a("s_load_dwordx16 s[64:79], s[0:1], 0")
    a("s_load_dwordx4 s[80:83], s[0:1], 64")
    a("s_memrealtime s[4:5]")
    a("s_cmp_ge_u32 s2, 256")
    a("s_cbranch_scc1 Lend")
    a("s_getpc_b64 s[6:7]")
    a("v_and_b32 v1, 63, v0")
    a("v_lshrrev_b32 v6, 6, v0")
    a("v_lshrrev_b32 v2, 4, v1")
    a("v_readfirstlane_b32 %s, v6" % sW)
    a("v_and_b32 v3, 15, v0")
    a("v_bfe_u32 v4, v0, 2, 2")
    a("v_and_b32 v5, 3, v0")
    if STAMPS:
        a("v_mov_b32 v15, 0")
    if "badmap" in OPT:
        a("s_lshr_b32 %s, s2, 5" % sXC)
        a("s_and_b32 %s, s2, 31" % sJ)
    else:
        a("s_and_b32 %s, s2, 7" % sXC)
        a("s_lshr_b32 %s, s2, 3" % sJ)
    a("v_lshlrev_b32 v6, 7, v0")
    a("v_min_u32 v6, CODE_BYTES, v6")
    a("s_cmp_gt_u32 %s, 3" % sW)
    a("s_cbranch_scc1 Lnopf")
    raw(a, "global_load_dword v7, v6, s[6:7]")
    a("Lnopf:")
    sizes = {8: 2048 * 896, 12: 448 * 2688, 16: 448 * 896, 20: 448 * 3584, 24: 448 * 3584,
             28: 1792 * 896, 32: 2048 * 896, 36: WS_SIZE, 40: 256}
    for b, sz in sizes.items():
        a("s_mov_b32 s%d, %d" % (b + 2, sz))
        a("s_mov_b32 s%d, 0x00020000" % (b + 3))
    a("s_lshl_b32 %s, %s, 10" % (sW1024, sW))


def prologue2(a):
    a("s_waitcnt lgkmcnt(0)")
    src = {8: 64, 12: 66, 16: 68, 20: 72, 24: 74, 28: 76, 32: 78, 36: 82, 40: 80}
    for b, s in src.items():
        a("s_mov_b64 s[%d:%d], s[%d:%d]" % (b, b + 1, s, s + 1))


def nonce_publish(a):
    a("s_or_b32 s3, s2, %s" % sW)
    a("s_cmp_lg_u32 s3, 0")
    a("s_cbranch_scc1 Lnononce")
    raw(a, "s_or_b32 s3, s4, 1")
    if any(o.startswith("thr") for o in OPT):
        raw(a, "s_getreg_b32 s5, hwreg(HW_REG_XCC_ID)")
        raw(a, "s_and_b32 s5, s5, 7")
        raw(a, "s_andn2_b32 s3, s4, 15")
        raw(a, "s_or_b32 s3, s3, s5")
        raw(a, "s_or_b32 s3, s3, 8")
    raw(a, "v_mov_b32 v8, s3")
    raw(a, "v_mov_b32 v9, 0")
    raw(a, "s_mov_b64 exec, 1")
    raw(a, "buffer_store_dword v8, v9, %s, 0 offen sc1" % SDBG)
    raw(a, "s_mov_b64 exec, -1")
    a("Lnononce:")


def nonce_fetch(a, vN):
    L, Lp = a.label("nskip"), a.label("npoll")
    a("v_readfirstlane_b32 %s, %s" % (sNONCE, vN))
    raw(a, "s_nop 1")
    raw(a, "s_cmp_lg_u32 %s, 0" % sNONCE)
    raw(a, "s_cbranch_scc1 %s" % L)
    raw(a, "s_mov_b32 s3, 400000")
    raw(a, "v_mov_b32 v7, 0")
    raw(a, "%s:" % Lp)
    raw(a, "buffer_load_dword v6, v7, %s, 0 offen sc1" % SDBG)
    raw(a, "s_waitcnt vmcnt(0)")
    raw(a, "v_readfirstlane_b32 %s, v6" % sNONCE)
    raw(a, "s_sub_u32 s3, s3, 1")
    raw(a, "s_cbranch_scc1 %s" % L)
    raw(a, "s_nop 1")
    raw(a, "s_cmp_eq_u32 %s, 0" % sNONCE)
    raw(a, "s_cbranch_scc1 %s" % Lp)
    raw(a, "%s:" % L)
    raw(a, "s_nop 3")


def touch(a, jobs):
    Lend = a.label("tend")
    for (w, srd, n) in jobs:
        L = a.label("tn")
        raw(a, "s_cmp_lg_u32 %s, %d" % (sW, w))
        raw(a, "s_cbranch_scc1 %s" % L)
        raw(a, "s_mul_i32 s3, s2, %d" % (n * 128))
        raw(a, "v_min_u32 v6, %d, v1" % (n - 1))
        raw(a, "v_lshlrev_b32 v6, 7, v6")
        raw(a, "buffer_load_dword v7, v6, %s, s3 offen" % srd)
        raw(a, "s_branch %s" % Lend)
        raw(a, "%s:" % L)
    raw(a, "%s:" % Lend)


A_SLOT = 34816
A_XOFF = 24576
A_EX = 2 * A_SLOT
A_ST = 4 * A_SLOT
R0, R1, R2 = 0, 57344, 139264
B_RB = R2
C_ST = 149504

vWO_DMA, vWC_DMA, vWC_TR = "v176", "v177", 178
WGF, WUF = 80, 136
WOF = 128


def roles_BCD(a):
    a("s_mul_i32 %s, %s, 37" % (sRB, sJ))
    a("s_lshr_b32 %s, %s, 8" % (sRB, sRB))
    a("s_mul_i32 %s, %s, 7" % (sCB, sRB))
    a("s_sub_u32 %s, %s, %s" % (sCB, sJ, sCB))
    a("s_lshr_b32 %s, %s, 1" % (sT, sXC))
    a("s_lshl_b32 %s, %s, 2" % (sT, sT))
    a("s_add_u32 %s, %s, %s" % (sRQ, sRB, sT))
    a("s_and_b32 %s, %s, 1" % (sT, sXC))
    a("s_mul_i32 %s, %s, 7" % (sT, sT))
    a("s_add_u32 %s, %s, %s" % (sFS, sCB, sT))
    a("s_lshl_b32 %s, %s, 2" % (sT, sXC))
    a("s_add_u32 %s, %s, %s" % (sRB, sRB, sT))


def wo_dma(a, i0, i1, vaddr):
    for i in range(i0, i1):
        a("s_add_u32 m0, %s, %d" % (sW1024, R0 + i * 8192))
        a("s_mov_b32 %s, %d" % (sT, i * 64 * 896))
        a("buffer_load_dwordx4 %s, %s, %s offen lds" % (vaddr, SWO, sT), tag="wo")


def wc_dma(a, slabs, vaddr, tag):
    for (s, base) in slabs:
        a("s_add_u32 m0, %s, %d" % (sW1024, base))
        a("s_mov_b32 %s, %d" % (sT, (s % 14) * 114688))
        a("buffer_load_dwordx4 %s, %s, %s offen lds" % (vaddr, SWG if s < 14 else SWU, sT), tag=tag)


def wc_read(slabs, vtr):
    out = []
    for (s, base) in slabs:
        for hf in range(2):
            out.append("ds_read_b64_tr_b16 %s, v%d offset:%d" % (vr(WGF + 4 * s + 2 * hf, 2), vtr + base // 57344, base % 57344 + hf * 1024))
    return out


A_NM = A_ST
A_RHO = A_ST + 384


def phase_A(a):
    sTB, sHP, sT0, sTI, sHD = "s48", "s49", "s50", "s51", "s52"
    a("; ---------------- phase A ----------------")
    a("s_mul_i32 %s, %s, 37" % (sT, sJ))
    a("s_lshr_b32 %s, %s, 8" % (sT, sT))
    a("s_mul_i32 %s, %s, 7" % (sT2, sT))
    a("s_sub_u32 %s, %s, %s" % (sT2, sJ, sT2))
    a("s_add_u32 %s, %s, 1" % (sHP, sT2))
    a("s_cmp_lt_u32 %s, 28" % sJ)
    a("s_cselect_b32 %s, %s, 0" % (sHP, sHP))
    a("s_cselect_b32 %s, %s, %s" % (sT, sT, sT2))
    a("s_lshl_b32 %s, %s, 2" % (sTB, sXC))
    a("s_add_u32 %s, %s, %s" % (sTB, sTB, sT))
    a("s_lshl_b32 %s, %s, 6" % (sT0, sTB))
    a("s_and_b32 %s, %s, 3" % (sTI, sW))
    a("s_lshr_b32 %s, %s, 2" % (sHD, sW))
    a("v_lshrrev_b32 v12, 3, v1")
    a("v_and_b32 v13, 7, v1")
    a("v_lshlrev_b32 v14, 4, v1")
    ONES = 20
    BP, BC = 76, 80

    def slot(ch):
        return (ch + 1) % 4

    def common_setup(a):
        a("v_lshlrev_b32 v8, 2, v2")
        a("v_sub_u32 v9, v3, v8")
        a("s_lshl_b32 %s, %s, 2" % (sT, sTB))
        a("s_add_u32 %s, %s, %s" % (sT, sT, sTI))
        a("s_cmp_lt_u32 %s, 2" % sT)
        a("s_cselect_b32 %s, 0x10000, 0" % sT2)
        a("v_mov_b32 v11, 0x%x" % f2u(-1e30))
        for rr in range(4):
            a("v_subrev_u32 v10, %d, v9" % rr)
            a("v_cmp_gt_u32 vcc, 8, v10")
            a("v_cndmask_b32 v%d, v11, 0, vcc" % (BC + rr))
            a("v_add_u32 v10, 16, v10")
            a("v_add_u32 v10, %s, v10" % sT2)
            a("v_cmp_gt_u32 vcc, 8, v10")
            a("v_cndmask_b32 v%d, v11, 0, vcc" % (BP + rr))
        a("v_cmp_gt_u32 s[94:95], 3, v2")
        a("s_mul_i32 %s, %s, 3072" % (sT2, sHD))
        a("s_add_u32 %s, %s, %d" % (sT2, sT2, A_EX))
        a("s_mul_i32 %s, %s, 6144" % (sT, sTI))
        a("s_add_u32 %s, %s, %s" % (sT, sT, sT2))
        a("v_lshl_add_u32 v32, v1, 3, %s" % sT)
        a("v_lshl_add_u32 v9, v2, 2, v4")
        a("v_lshl_add_u32 v10, v5, 4, v9")
        a("v_lshl_add_u32 v33, v10, 3, %s" % sT)
        a("s_sub_u32 %s, %s, 12288" % (sT, sT))
        a("s_add_u32 %s, %s, %d" % (sT2, sT2, 4 * 6144))
        a("s_lshl_b32 s97, %s, 3" % sTI)
        a("s_lshl_b32 %s, %s, 6" % (sT3, sTI))
        a("s_add_u32 %s, %s, %d" % (sT3, sT3, A_RHO))
        a("v_lshl_add_u32 v36, v3, 2, %s" % sT3)
        a("v_lshl_add_u32 v37, v2, 4, %s" % sT3)
        a("s_sub_u32 %s, %s, 128" % (sT3, sT3))
        a("s_cmp_lt_u32 %s, 2" % sTI)
        a("s_cselect_b32 s96, 7, 15")
        a("s_cselect_b32 s97, s97, 0")
        a("s_cselect_b32 %s, %s, %s" % (sT, sT2, sT))
        a("s_cselect_b32 %s, %d, %s" % (sT3, A_RHO + 256, sT3))
        a("v_and_b32 v9, s96, v9")
        a("v_add_u32 v9, s97, v9")
        a("v_lshl_add_u32 v10, v5, 4, v9")
        a("v_lshl_add_u32 v34, v10, 3, %s" % sT)
        a("v_and_b32 v9, s96, v8")
        a("v_add_u32 v9, s97, v9")
        a("v_lshl_add_u32 v38, v9, 2, %s" % sT3)
        a("v_and_b32 v9, s96, v3")
        a("v_add_u32 v9, s97, v9")
        a("v_lshl_add_u32 v10, v2, 4, v9")
        a("v_lshl_add_u32 v35, v10, 3, %s" % sT)
        a("s_lshl_b32 %s, %s, 2" % (sT, sTB))
        a("s_add_u32 %s, %s, %s" % (sT, sT, sTI))
        a("s_lshl_b32 %s, %s, 4" % (sT, sT))
        a("s_lshl_b32 %s, %s, 1" % (sT2, sHP))
        a("s_add_u32 %s, %s, %s" % (sT, sT, sT2))
        a("s_add_u32 %s, %s, %s" % (sT, sT, sHD))
        a("s_lshl_b32 s98, %s, 10" % sT)
        a("s_lshl_b32 %s, %s, 7" % (sT, sTB))
        a("s_lshl_b32 %s, %s, 2" % (sT2, sHP))
        a("s_add_u32 %s, %s, %s" % (sT, sT, sT2))
        a("s_add_u32 s99, %s, %d" % (sT, WS_FA))
        roles_BCD(a)
        a("s_bfe_u32 %s, %s, 0x10001" % (sT, sW))
        a("s_lshl_b32 %s, %s, 3" % (sT, sT))
        a("v_lshl_or_b32 v8, v2, 1, %s" % sT)
        a("v_xor_b32 v8, v8, v3")
        a("s_lshl_b32 %s, %s, 2" % (sT, sW))
        a("v_add_u32 v9, %s, v2" % sT)
        a("v_mul_u32_u24 v9, 3584, v9")
        a("v_lshl_add_u32 v9, v8, 4, v9")
        a("s_lshl_b32 %s, %s, 8" % (sT, sFS))
        a("v_add_u32 v16, %s, v9" % sT)
        a("v_lshl_add_u32 v8, v2, 2, v4")
        a("v_and_b32 v9, 6, v8")
        a("s_mul_i32 %s, %s, 224" % (sT, sHD))
        a("v_add_u32 v8, %s, v8" % sT)
        a("v_lshlrev_b32 v8, 7, v8")
        a("v_lshrrev_b32 v10, 1, v5")
        a("s_lshl_b32 %s, %s, 2" % (sT, sHD))
        a("v_or_b32 v10, %s, v10" % sT)
        a("v_xor_b32 v10, v10, v9")
        a("v_lshl_add_u32 v8, v10, 4, v8")
        a("v_and_b32 v9, 1, v5")
        a("v_lshl_add_u32 v28, v9, 3, v8")
        a("v_xor_b32 v29, 64, v28")
        a("v_mov_b32 v9, 2048")
        a("v_cndmask_b32 v9, 0, v9, s[94:95]")
        a("v_add_u32 v30, v28, v9")
        a("v_add_u32 v31, v29, v9")

    RQ, RC, RP = 39, 120, 124

    def rho_reads():
        a("ds_read_b32 v%d, v36" % RQ)
        a("ds_read_b128 %s, v37" % vr(RC))
        a("ds_read_b128 %s, v38" % vr(RP))

    a("s_cmp_lt_u32 %s, 4" % sW)
    a("s_cbranch_scc1 LAcons")
    sL2048, sL512 = "s54", "s65"
    vW0, vW1, vX0, vX1, vH, vWO = "v40", "v41", "v42", "v43", "v44", "v45"
    a("s_lshl_b32 %s, %s, 11" % (sL2048, sTI))
    a("v_and_b32 v8, 2, v12")
    a("v_xor_b32 v8, v8, v13")
    a("v_xor_b32 v10, 4, v8")
    a("v_min_u32 v8, 6, v8")
    a("v_min_u32 v10, 6, v10")
    a("s_lshl_b32 %s, %s, 4" % (sT, sTI))
    a("v_add_u32 v9, %s, v12" % sT)
    a("v_mul_u32_u24 v9, 2688, v9")
    a("s_mul_i32 %s, %s, 112" % (sT, sHP))
    a("v_add_u32 v9, %s, v9" % sT)
    a("v_lshl_add_u32 %s, v8, 4, v9" % vW0)
    a("v_add_u32 v9, %d, v9" % (8 * 2688))
    a("v_lshl_add_u32 %s, v10, 4, v9" % vW1)
    a("s_lshr_b32 %s, %s, 1" % (sT2, sTI))
    a("s_and_b32 %s, %s, 1" % (sT3, sTI))
    a("s_lshl_b32 %s, %s, 5" % (sT, sT2))
    a("s_add_u32 %s, %s, %s" % (sT, sT, sT0))
    a("s_add_u32 %s, %s, %s" % (sT, sT, sT3))
    a("v_lshl_add_u32 v9, v12, 1, %s" % sT)
    a("v_mul_u32_u24 v9, 896, v9")
    a("v_lshrrev_b32 v8, 1, v12")
    a("v_xor_b32 v8, v8, v13")
    a("v_lshl_add_u32 %s, v8, 4, v9" % vX0)
    a("v_xor_b32 v8, 4, v8")
    a("v_add_u32 v9, %d, v9" % (16 * 896))
    a("v_lshl_add_u32 %s, v8, 4, v9" % vX1)
    a("s_lshl_b32 %s, %s, 3" % (sT, sT3))
    a("s_add_u32 %s, %s, %s" % (sT, sT, sT2))
    a("s_add_u32 %s, %s, %s" % (sT, sT, sT0))
    a("s_sub_u32 %s, %s, 16" % (sT, sT))
    a("v_and_b32 v8, 3, v12")
    a("v_lshl_add_u32 v9, v8, 1, %s" % sT)
    a("v_max_i32 v9, 0, v9")
    a("v_mul_u32_u24 v9, 896, v9")
    a("v_lshrrev_b32 v8, 1, v8")
    a("s_lshl_b32 %s, %s, 1" % (sT, sTI))
    a("v_add_u32 v8, %s, v8" % sT)
    a("v_xor_b32 v8, v8, v13")
    a("v_lshl_add_u32 %s, v8, 4, v9" % vH)
    a("s_mov_b32 s59, 0")
    a("s_cmp_eq_u32 %s, 0" % sTI)
    a("s_cselect_b32 s58, 0xffffff00, -1")
    prologue2(a)
    a("s_lshl_b32 %s, %s, 9" % (sL512, sTI))
    if "rot" not in OPT:
        a("s_mov_b32 s67, 0")
    else:
        a("s_lshr_b32 s67, %s, 3" % sJ)
        a("s_lshl_b32 s67, s67, 1")
        a("s_mul_i32 %s, %s, %d" % (sT, sHP, ROTM))
        a("s_add_u32 s67, s67, %s" % sT)
        a("s_mul_i32 %s, s67, 37" % sT)
        a("s_lshr_b32 %s, %s, 8" % (sT, sT))
        a("s_mul_i32 %s, %s, 7" % (sT, sT))
        a("s_sub_u32 s67, s67, %s" % sT)
        a("s_lshl_b32 s67, s67, 7")

    def dma(ch, fill=()):
        fill = list(fill)
        per = (len(fill) + 8) // 9

        def f():
            for _ in range(per):
                while fill:
                    x = fill.pop(0)
                    a(x)
                    if not (fill and fill[0].startswith(("s_cselect", "v_cndmask"))):
                        break

        sb = slot(ch) * A_SLOT
        if ch:
            a("s_add_u32 s67, s67, 128")
            a("s_cmp_eq_u32 s67, 896")
            a("s_cselect_b32 s67, 0, s67")
        a("s_add_u32 m0, %s, %d" % (sL512, sb + A_XOFF + 8192))
        a("s_mov_b64 exec, s[58:59]")
        a("buffer_load_dwordx4 %s, %s, s67 offen lds" % (vH, SX), tag=("AX", ch))
        a("s_mov_b64 exec, -1")
        for i, v in enumerate((vX0, vX1)):
            a("s_add_u32 m0, %s, %d" % (sL2048, sb + A_XOFF + i * 1024))
            a("buffer_load_dwordx4 %s, %s, s67 offen lds" % (v, SX), tag=("AX", ch))
            f()
        a("s_mul_i32 s64, s67, 1344")
        for m in range(3):
            for i, v in enumerate((vW0, vW1)):
                a("s_add_u32 m0, %s, %d" % (sL2048, sb + m * 8192 + i * 1024 - m * 896))
                a("buffer_load_dwordx4 %s, %s, s64 offen offset:%d lds" % (v, SWQKV, m * 896), tag=("A", ch))
                f()
        for x in fill:
            a(x)

    a("s_setprio 3")
    stamp(a, "A start")
    dma(0)
    for i in range(4):
        a("v_mov_b32 v%d, 0x3f803f80" % (ONES + i))
    a("v_and_b32 v8, 3, v12")
    a("v_mul_u32_u24 v8, %d, v8" % A_SLOT)
    a("v_lshl_add_u32 v8, v13, 4, v8")
    a("ds_write_b128 v8, %s offset:%d" % (vr(ONES), A_XOFF + 8192))
    ST = 48
    for i in range(6):
        a("v_mov_b32 v%d, 0" % (ST + i))
    a("s_add_u32 %s, %s, %d" % (sT, sL2048, A_XOFF))
    a("v_add_u32 v54, %s, v14" % sT)
    a("v_add_u32 v55, %d, v54" % (2 * A_SLOT))
    a("s_add_u32 %s, %s, %d" % (sT, sL512, A_XOFF + 8192))
    a("v_add_u32 v56, %s, v14" % sT)
    a("v_add_u32 v57, %d, v56" % (2 * A_SLOT))
    dma(1)
    SR = 84

    def stats_rd(ch):
        sl = slot(ch)
        ib = (sl & 1) * A_SLOT
        a.wait_tag(("AX", ch))
        a("ds_read_b128 %s, v%d offset:%d" % (vr(SR), 54 + (sl >> 1), ib))
        a("ds_read_b128 %s, v%d offset:%d" % (vr(SR + 4), 54 + (sl >> 1), ib + 1024))
        a("ds_read_b128 %s, v%d offset:%d" % (vr(SR + 8), 56 + (sl >> 1), ib))

    def dots():
        o = []
        for i in range(4):
            for k in range(3):
                o.append("v_dot2c_f32_bf16 v%d, v%d, v%d" % (ST + 2 * k, SR + 4 * k + i, ONES))
                o.append("v_dot2c_f32_bf16 v%d, v%d, v%d" % (ST + 2 * k + 1, SR + 4 * k + i, SR + 4 * k + i))
        return o

    class Rec:
        def __init__(self):
            self.l = []

        def __call__(self, x, tag=None):
            self.l.append(x)

    def pieces(fn, n):
        rec = Rec()
        fn(rec)
        late, out = rec.l, []
        for k in range(n):
            nl = (len(late) + n - k - 1) // (n - k)
            while nl < len(late) and late[nl].startswith(("s_cselect", "v_cndmask")):
                nl += 1
            out.append(late[:nl])
            late = late[nl:]
        return out

    cs = pieces(common_setup, 4) + [[], []]
    stats_rd(0)
    for x in dots():
        a(x)
    for ch in range(6):
        a.wait_tag(("A", ch), lg0=True)
        a("s_barrier")
        if ch + 2 <= 6:
            stats_rd(ch + 1)
            dma(ch + 2, cs[ch] + dots())
        if ch == 3:
            a("v_and_b32 v8, 6, v12")
            a("v_xor_b32 v8, v8, v13")
            a("s_lshl_b32 %s, %s, 3" % (sT, sTI))
            a("v_add_u32 v9, %s, v12" % sT)
            a("v_mul_u32_u24 v9, 896, v9")
            a("v_lshl_add_u32 v9, v8, 4, v9")
            a("s_lshl_b32 %s, %s, 7" % (sT, sCB))
            a("v_add_u32 %s, %s, v9" % (vWO, sT))
            a("s_lshl_b32 s66, %s, 10" % sTI)
            a("s_lshl_b32 %s, %s, 6" % (sT, sTI))
            a("s_add_u32 %s, %s, %d" % (sT, sT, A_NM))
            a("v_lshl_add_u32 v46, v12, 2, %s" % sT)
            a("s_lshl_b32 %s, %s, 4" % (sT, sTI))
            a("s_add_u32 %s, %s, %d" % (sT, sT, A_NM + 256))
            a("v_lshl_add_u32 v47, v12, 2, %s" % sT)
            a("v_mov_b32 v6, 0")
            a("buffer_load_dword v17, v6, %s, 0 offen sc1" % SDBG)

    def wo_dma(i0, i1):
        for i in range(i0, i1):
            a("s_add_u32 m0, s66, %d" % (R0 + i * 4096))
            a("s_mov_b32 s64, %d" % (i * 32 * 896))
            a("buffer_load_dwordx4 %s, %s, s64 offen lds" % (vWO, SWO), tag="wo")

    stats_rd(6)
    wo_dma(0, 3)
    for x in dots():
        a(x)
    a("s_nop 2")
    for ctl in ("quad_perm:[1,0,3,2]", "quad_perm:[2,3,0,1]", "row_half_mirror"):
        for x in range(6):
            a("v_add_f32_dpp v%d, v%d, v%d %s row_mask:0xf bank_mask:0xf" % (ST + x, ST + x, ST + x, ctl))
    a("s_mov_b32 %s, 0x%x" % (sT, f2u(1.0 / 448)))
    a("v_mov_b32 v8, 0x%x" % f2u(1e-5))
    for k in range(3):
        a("v_mul_f32 v%d, -%s, v%d" % (ST + 2 * k, sT, ST + 2 * k))
        a("v_fma_f32 v%d, v%d, %s, v8" % (ST + 2 * k + 1, ST + 2 * k + 1, sT))
    for k in range(3):
        a("v_fma_f32 v%d, -v%d, v%d, v%d" % (ST + 2 * k + 1, ST + 2 * k, ST + 2 * k, ST + 2 * k + 1))
    for k in range(3):
        a("v_max_f32 v%d, v%d, v8" % (ST + 2 * k + 1, ST + 2 * k + 1))
    for k in range(3):
        a("v_rsq_f32 v%d, v%d" % (ST + 2 * k + 1, ST + 2 * k + 1))
    a("ds_write_b32 v46, v%d" % ST)
    a("ds_write_b32 v46, v%d offset:32" % (ST + 2))
    a("ds_write_b32 v46, v%d offset:384" % (ST + 1))
    a("ds_write_b32 v46, v%d offset:416" % (ST + 3))
    a("s_mov_b32 exec_hi, 0")
    a("ds_write_b32 v47, v%d" % (ST + 4))
    a("ds_write_b32 v47, v%d offset:384" % (ST + 5))
    a("s_mov_b64 exec, -1")
    a.wait_tag(("A", 6), lg0=True)
    a("s_barrier")
    rho_reads()
    wo_dma(3, 14)
    a("s_waitcnt vmcnt(0) lgkmcnt(0)")
    a("s_setprio 0")
    a("s_branch LAjoin")

    a("LAcons:")
    a.vm, a.lg = [], []
    prologue2(a)
    nonce_publish(a)
    AD, NAD = 128, 5
    a("s_and_b32 s66, %s, 1" % sW)
    a("s_lshr_b32 s67, %s, 1" % sW)
    a("v_bfe_u32 v8, v3, 1, 3")
    a("v_xor_b32 v8, v8, v2")
    a("v_lshlrev_b32 v8, 4, v8")
    a("v_lshl_add_u32 v8, v3, 7, v8")
    a("v_add_u32 v%d, %d, v8" % (AD, A_XOFF))
    a("v_xor_b32 v%d, 64, v%d" % (AD + 1, AD))
    a("v_and_b32 v8, 2, v4")
    a("v_and_b32 v9, 1, v2")
    a("v_lshl_or_b32 v8, v9, 2, v8")
    a("v_lshlrev_b32 v8, 4, v8")
    a("v_lshl_add_u32 v9, v2, 3, v4")
    a("v_lshlrev_b32 v9, 7, v9")
    a("s_mul_i32 s68, s66, 3")
    a("s_mul_i32 %s, s67, 56" % sT2)
    for j in range(3):
        a("s_add_u32 %s, s68, %d" % (sT3, j))
        a("s_and_b32 %s, %s, 1" % (sT, sT3))
        a("s_lshl_b32 %s, %s, 5" % (sT, sT))
        a("s_add_u32 %s, %s, %s" % (sT, sT, sT2))
        a("v_lshl_add_u32 v10, v5, 3, %s" % sT)
        a("v_xor_b32 v10, v10, v8")
        a("s_lshr_b32 %s, %s, 1" % (sT, sT3))
        a("s_lshl_b32 %s, %s, 13" % (sT, sT))
        a("v_add3_u32 v%d, v10, v9, %s" % (AD + 2 + j, sT))
    for i in range(NAD):
        a("v_add_u32 v%d, %d, v%d" % (AD + NAD + i, 2 * A_SLOT, AD + i))
    a("s_mul_i32 %s, %s, 1536" % (sT, sW))
    a("s_add_u32 %s, %s, %d" % (sT, sT, A_EX))
    a("v_lshl_add_u32 v138, v1, 3, %s" % sT)
    a("v_lshlrev_b32 v139, 2, v3")
    a("v_add_u32 v139, %d, v139" % A_NM)
    if "touch0" in OPT:
        touch(a, [(2, SWQKV, 37), (3, SX, 56)])
    common_setup(a)
    if "notouch1" not in OPT:
        touch(a, [(2, SWQKV, 37), (3, SX, 56)])
    ACC = 140
    FB = [40, 84]
    NM = 200

    def reads(n):
        ch, ks = n >> 1, n & 1
        sl = slot(ch)
        ab = AD if sl < 2 else AD + NAD
        ib = (sl & 1) * A_SLOT
        fb = FB[ks]
        tr = lambda j, hf: "ds_read_b64_tr_b16 %s, v%d offset:%d" % (vr(fb + 20 + 4 * j + 2 * hf, 2), ab + 2 + j, ib + ks * 4096 + hf * 512)
        xr = lambda t: "ds_read_b128 %s, v%d offset:%d" % (vr(fb + 4 * t), ab + ks, ib + t * 2048)
        return [tr(0, 0), tr(0, 1), xr(4), xr(0), xr(1), xr(2), xr(3), tr(1, 0), tr(1, 1), tr(2, 0), tr(2, 1)]

    def compute(n):
        fb = FB[n & 1]
        z = "0" if n == 0 else None
        return [mfma(ACC + 20 * j + 4 * t, fb + 20 + 4 * j, fb + 4 * t, z) for j in range(3) for t in (4, 0, 1, 2, 3)]

    def norm(j):
        o = []
        for t in (0, 1, 2, 3, 4):
            acc = ACC + 20 * j + 4 * t
            for rr in range(4):
                o.append("v_fmac_f32_dpp v%d, v%d, v%d row_newbcast:0 row_mask:0xf bank_mask:0xf" % (acc + rr, ACC + 20 * j + 16 + rr, NM + t))
            pk = 208 + 2 * ((5 * j + t) % 4)
            o.append("v_cvt_pk_bf16_f32 v%d, v%d, v%d" % (pk, acc, acc + 1))
            o.append("v_cvt_pk_bf16_f32 v%d, v%d, v%d" % (pk + 1, acc + 2, acc + 3))
            o.append("ds_write_b64 v138, %s offset:%d" % (vr(pk, 2), t * 6144 + j * 512))
        return o

    for ch in range(7):
        if "notouch" not in OPT:
            jobs = [j for (t, j) in ((TCH, (0, SWO, 13)), (TCH, (1, SWG, 49)), (TCU, (2, SWU, 49)), (TCD, (3, SWD, 49))) if t == ch]
            if jobs:
                touch(a, jobs)
        if ch == 4:
            a("v_mov_b32 v6, 0")
            a("buffer_load_dword v17, v6, %s, 0 offen sc1" % SDBG)
        a("s_waitcnt lgkmcnt(0)")
        a("s_barrier")
        if ch in (0, 6):
            stamp(a, "A ch%d landed" % ch)
        for x in reads(2 * ch):
            a(x)
        rd = reads(2 * ch + 1)
        if ch == 6:
            rd += ["ds_read_b32 v%d, v139 offset:%d" % (NM + t, 64 * t) for t in range(5)]
        for x in compute(2 * ch):
            a(x)
            for _ in range(2 if ch == 6 else 1):
                if rd:
                    a(rd.pop(0))
        nr = []
        for i, x in enumerate(compute(2 * ch + 1)):
            a(x)
            if ch == 6:
                if i == 6:
                    nr += norm(0)
                if i == 11:
                    nr += norm(1)
                for _ in range(3):
                    if nr:
                        a(nr.pop(0))
    stamp(a, "A loop done")
    for x in nr + norm(2):
        a(x)
    rho_reads()
    a("s_waitcnt vmcnt(0) lgkmcnt(0)")
    a("LAjoin:")
    a.vm, a.lg = [], []
    a("s_barrier")
    QP, KC, KP, V0, V1 = 100, 104, 108, 112, 116
    a("ds_read_b64 %s, v32" % vr(QP, 2))
    a("ds_read_b64 %s, v32 offset:512" % vr(QP + 2, 2))
    a("ds_read_b64 %s, v32 offset:1024" % vr(KC, 2))
    a("ds_read_b64 %s, v32 offset:1536" % vr(KC + 2, 2))
    a("ds_read_b64 %s, v35 offset:1024" % vr(KP, 2))
    a("ds_read_b64 %s, v35 offset:1536" % vr(KP + 2, 2))
    a("ds_read_b64_tr_b16 %s, v34 offset:2048" % vr(V0, 2))
    a("ds_read_b64_tr_b16 %s, v33 offset:2048" % vr(V0 + 2, 2))
    a("ds_read_b64_tr_b16 %s, v34 offset:2560" % vr(V1, 2))
    a("ds_read_b64_tr_b16 %s, v33 offset:2560" % vr(V1 + 2, 2))
    a("v_mul_f32 v13, 0x%x, v%d" % (f2u(28 ** -0.5 * LOG2E), RQ))
    nonce_fetch(a, "v17")
    a("v_cndmask_b32 v%d, 0, v%d, s[94:95]" % (QP + 2, QP + 2))
    a("v_cndmask_b32 v%d, 0, v%d, s[94:95]" % (QP + 3, QP + 3))
    a(mfma(BC, KC, QP))
    a(mfma(BP, KP, QP))
    for i in range(4):
        a("v_mul_f32 v%d, v%d, v%d" % (BC + i, RC + i, BC + i))
    for i in range(4):
        a("v_mul_f32 v%d, v%d, v%d" % (BP + i, RP + i, BP + i))
    a("v_max3_f32 v8, v%d, v%d, v%d" % (BC, BC + 1, BC + 2))
    a("v_max3_f32 v9, v%d, v%d, v%d" % (BC + 3, BP, BP + 1))
    a("v_max3_f32 v8, v8, v%d, v%d" % (BP + 2, BP + 3))
    a("v_max_f32 v8, v8, v9")
    xg_reduce_multi(a, "v_max_f32", ["v8"], ["v9"])
    a("v_mul_f32 v8, v13, v8")
    for i in range(8):
        a("v_fma_f32 v%d, v%d, v13, -v8" % (BP + i, BP + i))
    for i in range(8):
        a("v_exp_f32 v%d, v%d" % (BP + i, BP + i))
    a("v_add_f32 v9, v%d, v%d" % (BP, BP + 1))
    a("v_add_f32 v10, v%d, v%d" % (BP + 2, BP + 3))
    a("v_add_f32 v11, v%d, v%d" % (BP + 4, BP + 5))
    a("v_add_f32 v12, v%d, v%d" % (BP + 6, BP + 7))
    a("v_add_f32 v9, v9, v10")
    a("v_add_f32 v11, v11, v12")
    a("v_add_f32 v9, v9, v11")
    a("v_mov_b32 v10, v9")
    a("v_mul_f32 v%d, v%d, v%d" % (BP, RP, BP))
    a("v_mul_f32 v%d, v%d, v%d" % (BP + 1, RP + 1, BP + 1))
    a("v_permlane32_swap_b32 v10, v9")
    a("v_add_f32 v9, v9, v10")
    a("v_mov_b32 v10, v9")
    a("v_mul_f32 v%d, v%d, v%d" % (BP + 2, RP + 2, BP + 2))
    a("v_mul_f32 v%d, v%d, v%d" % (BP + 3, RP + 3, BP + 3))
    a("v_permlane16_swap_b32 v10, v9")
    a("v_add_f32 v9, v9, v10")
    a("v_rcp_f32 v9, v9")
    for i in range(4):
        a("v_mul_f32 v%d, v%d, v%d" % (BC + i, RC + i, BC + i))
    for i in range(8):
        a("v_mul_f32 v%d, v9, v%d" % (BP + i, BP + i))
    P = 96
    for i in range(4):
        a("v_cvt_pk_bf16_f32 v%d, v%d, v%d" % (P + i, BP + 2 * i, BP + 2 * i + 1))
    O0, O1 = 40, 44
    a(mfma(O0, V0, P, "0"))
    a(mfma(O1, V1, P, "0"))
    OS = 124
    a("v_cvt_pk_bf16_f32 v%d, v%d, v%d" % (OS, O0, O0 + 1))
    a("v_cvt_pk_bf16_f32 v%d, v%d, v%d" % (OS + 1, O0 + 2, O0 + 3))
    a("v_cvt_pk_bf16_f32 v%d, v%d, v%d" % (OS + 2, O1, O1 + 1))
    a("v_cvt_pk_bf16_f32 v%d, v%d, v%d" % (OS + 3, O1 + 2, O1 + 3))
    a("v_cndmask_b32 v%d, 0, v%d, s[94:95]" % (OS + 2, OS + 2))
    a("v_cndmask_b32 v%d, 0, v%d, s[94:95]" % (OS + 3, OS + 3))
    a("buffer_store_dwordx4 %s, v14, %s, s98 offen%s" % (vr(OS), SWS, SC), tag="ost")
    stamp(a, "A o stored")


G1 = [(s, R1 + 8192 * s) for s in range(10)]
G2 = [(10 + i, R0 + 8192 * i) for i in range(7)]
G3 = [(17 + i, R1 + 8192 * i) for i in range(10)] + [(27, R2 + 16384)]


def helper(a):
    R = lambda x: raw(a, x)
    R("s_lshl_b32 %s, %s, 3" % (sT, sCB))
    R("s_add_u32 %s, %s, %s" % (sT, sT, sXC))
    R("s_mul_i32 %s, %s, %d" % (sT, sT, 392 * 128))
    R("v_min_u32 v8, 391, v0")
    R("v_lshlrev_b32 v8, 7, v8")
    if TCU > 6:
        R("buffer_load_dword v40, v8, %s, %s offen" % (SWU, sT))
    if TCD > 6:
        R("buffer_load_dword v41, v8, %s, %s offen" % (SWD, sT))


def phase_B(a):
    sTT, sKH, sTAU, sU = "s50", "s51", "s52", "s54"
    a("; ---------------- A->B ----------------")
    a("s_cmp_lt_u32 %s, 28" % sJ)
    a("s_cbranch_scc1 LgoB")
    raw(a, "s_waitcnt vmcnt(0)")
    raw(a, "s_barrier")
    publish(a, "s99")
    if "nohelp" not in OPT:
        helper(a)
    raw(a, "s_branch Lfin")
    a("LgoB:")
    for i in range(4):
        a("v_xor_b32 v%d, 32, v%d" % (32 + i, 28 + i))
    worder = []
    for hh in range(8):
        for t in range(4):
            off = R0 + hh * 3584
            p = ((t >> 1) ^ hh) & 1
            b = 28 + 4 * (t & 1)
            worder.append("ds_read_b64_tr_b16 %s, v%d offset:%d" % (vr(WOF + 16 * hh + 4 * t, 2), b + p, off))
            worder.append("ds_read_b64_tr_b16 %s, v%d offset:%d" % (vr(WOF + 16 * hh + 4 * t + 2, 2), b + 2 + p, off))
    a("s_and_b32 %s, %s, 3" % (sTT, sW))
    a("s_lshr_b32 %s, %s, 2" % (sKH, sW))
    a("s_lshl_b32 %s, %s, 2" % (sTAU, sRB))
    a("s_add_u32 %s, %s, %s" % (sTAU, sTAU, sTT))
    a("s_lshr_b32 %s, %s, 1" % (sT, sTAU))
    a("s_lshl_b32 %s, %s, 5" % (sT, sT))
    a("s_and_b32 %s, %s, 1" % (sT2, sTAU))
    a("s_add_u32 %s, %s, %s" % (sT, sT, sT2))
    a("v_lshl_add_u32 v8, v3, 1, %s" % sT)
    a("v_mul_u32_u24 v8, 896, v8")
    a("v_lshrrev_b32 v9, 1, v2")
    a("v_and_b32 v10, 1, v2")
    a("v_lshl_add_u32 v9, v10, 1, v9")
    a("v_lshl_add_u32 v8, v9, 4, v8")
    a("v_lshlrev_b32 v9, 8, v9")
    a("v_lshl_add_u32 v36, v3, 4, v9")
    a("s_lshl_b32 %s, %s, 1" % (sU, sCB))
    a("s_add_u32 %s, %s, %s" % (sU, sU, sKH))
    a("s_lshl_b32 %s, %s, 6" % (sT3, sU))
    XR = 20
    wc_dma(a, G1[10 - G1PRE:10], "v16", "g1")
    for x in worder[:WOPRE]:
        a(x)
    a.wait_tag("ost")
    a("s_barrier")
    publish(a, "s99")
    stamp(a, "A flag")
    def g1_rest(cond):
        L = a.label("g1r")
        raw(a, "s_cmp_%s_u32 %s, 0" % (cond, sW))
        raw(a, "s_cbranch_scc1 %s" % L)
        sv = list(a.vm)
        wc_dma(a, G1[:10 - G1PRE], "v16", "g1")
        a.vm = sv
        raw(a, "%s:" % L)

    a("buffer_load_dwordx4 %s, v8, %s, %s offen" % (vr(XR), SX, sT3))
    OPT.add("w0g1")
    if "w0g1" in OPT:
        wc_dma(a, G1[:10 - G1PRE], "v16", "g1")
    else:
        g1_rest("eq")
    for x in worder[WOPRE:]:
        a(x)
    a("v_and_b32 v8, 1, v2")
    a("v_lshl_or_b32 v8, v8, 2, v4")
    a("v_lshlrev_b32 v8, 1, v8")
    a("v_lshrrev_b32 v9, 1, v5")
    a("s_lshl_b32 %s, %s, 1" % (sT, sW))
    a("v_add_u32 v9, %s, v9" % sT)
    a("v_xor_b32 v8, v8, v9")
    a("v_lshl_add_u32 v9, v2, 3, v4")
    a("v_lshlrev_b32 v9, 8, v9")
    a("v_lshl_add_u32 v9, v8, 4, v9")
    a("v_and_b32 v8, 1, v5")
    a("v_lshl_add_u32 v17, v8, 3, v9")
    a("v_add_u32 v18, 57344, v17")
    a("v_add_u32 v19, 114688, v17")
    OF, ACC = 32, 64
    a("v_mov_b32 v28, v36")
    a("v_permlane16_swap_b32 v%d, v%d" % (XR, XR + 2))
    a("v_permlane16_swap_b32 v%d, v%d" % (XR + 1, XR + 3))
    for i in range(4):
        a("v_lshlrev_b32 v%d, 16, v%d" % (ACC + 2 * i, XR + i))
        a("v_and_b32 v%d, 0xffff0000, v%d" % (ACC + 2 * i + 1, XR + i))
    a("s_lshl_b32 %s, %s, 4" % (sT2, sTAU))
    a("s_lshl_b32 %s, %s, 3" % (sT3, sKH))
    a("s_add_u32 %s, %s, %s" % (sT2, sT2, sT3))
    a("s_lshl_b32 %s, %s, 10" % (sT2, sT2))
    a("s_add_u32 %s, %s, 4096" % (sT3, sT2))
    a("s_lshl_b32 %s, %s, 11" % (sT, sW))
    a("s_add_u32 %s, %s, %d" % (sT, sT, B_RB))
    a("v_add_u32 v12, %s, v14" % sT)
    a("s_xor_b32 %s, %s, 4" % (sT, sW))
    a("s_lshl_b32 %s, %s, 11" % (sT, sT))
    a("s_add_u32 %s, %s, %d" % (sT, sT, B_RB))
    a("v_add_u32 v13, %s, v14" % sT)
    a("s_mul_i32 s58, %s, 14" % sTAU)
    a("s_add_u32 s58, s58, %s" % sU)
    a("s_lshl_b32 s59, s58, 7")
    a("s_add_u32 s59, s59, %d" % WS_ST)
    a("s_lshl_b32 s58, s58, 10")
    a("s_add_u32 s58, s58, %d" % WS_H)
    a("s_lshl_b32 s60, %s, 7" % sRB)
    a("s_add_u32 s60, s60, %d" % WS_FA)
    a("s_lshr_b32 s61, %s, 1" % sRB)
    a("s_lshl_b32 s61, s61, 7")
    a("s_and_b32 %s, %s, 1" % (sT, sRB))
    a("s_mul_i32 %s, %s, 28" % (sT, sT))
    a("s_add_u32 s61, s61, %s" % sT)
    a("s_lshl_b32 %s, %s, 2" % (sT, sCB))
    a("s_add_u32 s61, s61, %s" % sT)
    a("s_add_u32 s61, s61, %d" % WS_FB)
    a("v_lshlrev_b32 v11, 3, v3")
    a("s_waitcnt lgkmcnt(0)")
    stamp(a, "B pre-poll")
    poll(a, "s60", 0xff, 0)
    stamp(a, "B go")
    for hh in range(8):
        a("buffer_load_dwordx4 %s, v14, %s, %s offen offset:%d%s" % (vr(OF + 4 * hh), SWS, sT2 if hh < 4 else sT3, (hh & 3) * 1024, SC))
    a("s_barrier")
    for hh in range(8):
        if hh == 7 and "w0g1" not in OPT:
            g1_rest("lg")
        if hh < 7:
            wc_dma(a, G2[hh:hh + 1], "v16", "g2")
        for t in (2, 3, 0, 1):
            a(mfma(ACC + 4 * t, WOF + 16 * hh + 4 * t, OF + 4 * hh, "0" if (hh == 0 and t >= 2) else None))
    a("ds_write_b128 v12, %s" % vr(ACC + 8))
    a("ds_write_b128 v12, %s offset:1024" % vr(ACC + 12))
    a("s_waitcnt lgkmcnt(0)")
    a("s_barrier")
    a("ds_read_b128 %s, v13" % vr(ACC + 8))
    a("ds_read_b128 %s, v13 offset:1024" % vr(ACC + 12))
    a("v_mov_b32 v8, 0")
    a("v_mov_b32 v9, 0")
    a("v_mov_b32 v6, 0")
    a("v_mov_b32 v7, 0")
    a("v_mov_b32 v10, 0x3f803f80")
    for i in range(8):
        a("v_add_f32 v%d, v%d, v%d" % (ACC + i, ACC + i, ACC + 8 + i))
    HP = 24
    for i in range(4):
        a("v_cvt_pk_bf16_f32 v%d, v%d, v%d" % (HP + i, ACC + 2 * i, ACC + 2 * i + 1))
    a("v_permlane16_swap_b32 v%d, v%d" % (HP, HP + 2))
    a("v_permlane16_swap_b32 v%d, v%d" % (HP + 1, HP + 3))
    a("buffer_store_dwordx4 %s, v28, %s, s58 offen%s" % (vr(HP), SWS, SC))
    for i in range(4):
        a("v_dot2c_f32_bf16 v%d, v%d, v10" % (8 if i & 1 else 6, HP + i))
        a("v_dot2c_f32_bf16 v%d, v%d, v%d" % (9 if i & 1 else 7, HP + i, HP + i))
    a("v_add_f32 v8, v8, v6")
    a("v_add_f32 v9, v9, v7")
    xg_reduce_multi(a, "v_add_f32", ["v8", "v9"], ["v6", "v7"])
    a("s_mov_b64 exec, 0xffff")
    a("buffer_store_dwordx2 v[8:9], v11, %s, s59 offen%s" % (SWS, SC), tag="hst")
    a("s_mov_b64 exec, -1")
    stamp(a, "B h stored")


D_RDY = 163836
C_S0 = 116736
WDF = [224, 240, 64, 80, 96, 112, 128]


def emit_group(a, g):
    for (x, tg) in g:
        a(x, tag=tg)


def wd_dma_groups(u, base):
    gs = []
    for i4 in range(4):
        i = 4 * u + i4
        gs.append([("s_add_u32 m0, s63, %d" % (base + i4 * 1024), None),
                   ("s_mov_b32 s65, %d" % ((16 * (i >> 1) + 4 * (i & 1)) * 896), None),
                   ("buffer_load_dwordx4 v17, %s, s65 offen lds" % SWD, ("wd", u))])
    return gs


def wd_reads(u, base):
    out = []
    for t in range(4):
        for hf in range(2):
            out.append("ds_read_b64_tr_b16 %s, v%d offset:%d" % (vr(WDF[u] + 4 * t + 2 * hf, 2), 8 + t, base + hf * 1024))
    return out


def phase_C(a):
    a("; ---------------- B->C ----------------")
    wc_dma(a, G3[10:], "v16", "g3")
    early = G1 if "w0g1" in OPT else G1[10 - G1PRE:]
    late = [] if "w0g1" in OPT else G1[:10 - G1PRE]
    for x in wc_read(early, 17):
        a(x)
    a.wait_tag("hst", lg0=True)
    a("s_barrier")
    publish(a, "s61")
    stamp(a, "B flag")
    wc_dma(a, G3[10 - len(early):10], "v16", "g3")
    if late:
        for x in wc_read(late, 17):
            a(x)
        a("s_waitcnt lgkmcnt(0)")
        a("s_barrier")
        wc_dma(a, G3[:len(late)], "v16", "g3")
    for x in wc_read(G2, 17):
        a(x)
    ONES, CSG, CSU = 20, 24, 28
    for i in range(4):
        a("v_mov_b32 v%d, 0x3f803f80" % (ONES + i))
    for u in range(14):
        a(mfma(CSG, WGF + 4 * u, ONES, "0" if u == 0 else None))
    a("s_mul_i32 %s, %s, 114688" % (sT2, sRQ))
    a("s_add_u32 %s, %s, %d" % (sT2, sT2, WS_H))
    a("s_mul_i32 s62, %s, 3584" % sW)
    a("v_add_u32 v12, s62, v14")
    a("s_lshl_b32 %s, %s, 3" % (sT3, sRQ))
    a("s_add_u32 %s, %s, %s" % (sT3, sT3, sW))
    a("s_mul_i32 %s, %s, 1792" % (sT3, sT3))
    a("s_add_u32 %s, %s, %d" % (sT3, sT3, WS_ST))
    for i in range(4):
        a("v_mov_b32 v%d, 0" % (60 + i))
    a("v_and_b32 v8, 1, v2")
    a("v_mul_u32_u24 v8, 57344, v8")
    a("v_lshrrev_b32 v10, 1, v2")
    a("s_and_b32 %s, %s, 1" % (sT, sW))
    a("s_lshl_b32 %s, %s, 1" % (sT, sT))
    a("v_add_u32 v10, %s, v10" % sT)
    a("v_lshl_add_u32 v8, v10, 8, v8")
    a("v_lshl_add_u32 v13, v3, 4, v8")
    a("s_mul_i32 s58, %s, 448" % sRQ)
    a("s_lshl_b32 %s, %s, 2" % (sT, sFS))
    a("s_add_u32 s58, s58, %s" % sT)
    a("s_lshr_b32 %s, %s, 1" % (sT, sW))
    a("s_add_u32 s58, s58, %s" % sT)
    a("s_lshl_b32 s58, s58, 10")
    a("s_add_u32 s58, s58, %d" % WS_HH)
    a("s_mov_b32 s59, 0x%x" % f2u(-LOG2E))
    a("s_lshl_b32 s60, %s, 7" % sRQ)
    a("s_add_u32 s60, s60, %d" % WS_FB)
    a("s_lshl_b32 s61, %s, 8" % sRQ)
    a("s_lshl_b32 %s, %s, 2" % (sT, sFS))
    a("s_add_u32 s61, s61, %s" % sT)
    a("s_add_u32 s61, s61, %d" % WS_FC)
    a("s_lshl_b32 s63, %s, 12" % sW)
    a("s_lshr_b32 %s, %s, 1" % (sT, sRB))
    a("s_lshl_b32 s67, %s, 8" % sT)
    a("s_add_u32 s67, s67, %d" % WS_FC)
    a("s_lshl_b32 s70, %s, 7" % sT)
    a("s_lshl_b32 %s, %s, 3" % (sT, sT))
    a("s_and_b32 s64, %s, 1" % sRB)
    a("s_add_u32 %s, %s, s64" % (sT, sT))
    a("s_add_u32 s70, s70, s64")
    a("s_mul_i32 s70, s70, 896")
    a("s_lshl_b32 s64, %s, 7" % sCB)
    a("s_add_u32 s70, s70, s64")
    a("s_mul_i32 s68, %s, 56" % sT)
    a("s_mul_i32 s64, %s, 7" % sW)
    a("s_add_u32 s68, s68, s64")
    a("s_lshl_b32 s68, s68, 10")
    a("s_add_u32 s68, s68, %d" % WS_HH)
    a("s_and_b32 s64, %s, 6" % sW)
    a("s_add_u32 %s, %s, s64" % (sT, sT))
    a("s_mul_i32 s69, %s, 14" % sT)
    a("s_lshl_b32 s64, %s, 1" % sCB)
    a("s_add_u32 s69, s69, s64")
    a("s_and_b32 s64, %s, 1" % sW)
    a("s_add_u32 s69, s69, s64")
    a("s_lshl_b32 s69, s69, 10")
    a("s_add_u32 s69, s69, %d" % WS_H)
    a("v_and_b32 v6, 1, v2")
    a("v_lshl_add_u32 v6, v6, 2, v4")
    a("v_and_b32 v7, 6, v6")
    a("v_lshrrev_b32 v10, 1, v5")
    a("v_xor_b32 v7, v7, v10")
    a("v_lshrrev_b32 v10, 1, v2")
    a("v_lshl_add_u32 v6, v10, 4, v6")
    a("v_lshlrev_b32 v6, 7, v6")
    a("v_lshl_add_u32 v6, v7, 4, v6")
    a("v_and_b32 v7, 1, v5")
    a("v_lshl_add_u32 v6, v7, 3, v6")
    a("s_add_u32 %s, s63, 65536" % sT)
    a("v_add_u32 v8, %s, v6" % sT)
    for t in range(1, 4):
        a("v_xor_b32 v%d, %d, v8" % (8 + t, 32 * t))
    a("s_waitcnt lgkmcnt(0)")
    stamp(a, "C pre-poll")
    poll(a, "s60", 0x3fff, 0)
    stamp(a, "C go")

    def h_groups(tp):
        tg = ("h", tp)
        gs = []
        for i in range(4):
            g = []
            if i == 0:
                g.append(("s_add_u32 s64, %s, %d" % (sT2, tp * 28672), None))
            g.append(("s_add_u32 m0, s62, %d" % (tp * 28672), None))
            if i == 3:
                g.append(("s_mov_b32 exec_hi, 0", None))
            g.append(("buffer_load_dwordx4 v12, %s, s64 offen offset:%d%s lds" % (SWS, i * 1024, SC), tg))
            if i == 3:
                g.append(("s_mov_b64 exec, -1", None))
            gs.append(g)
        return gs

    a("buffer_load_dwordx4 v[56:59], v14, %s, %s offen%s" % (SWS, sT3, SC))
    a("s_mov_b32 exec_hi, 0xffff")
    a("buffer_load_dwordx4 v[60:63], v14, %s, %s offen offset:1024%s" % (SWS, sT3, SC))
    a("s_mov_b64 exec, -1")
    for g in h_groups(0):
        emit_group(a, g)
    a.wait_tag("g3")
    a("s_barrier")
    for x in wc_read(G3, 17):
        a(x)
    a("v_lshrrev_b32 v6, 3, v1")
    a("v_and_b32 v7, 7, v1")
    a("v_and_b32 v16, 6, v6")
    a("v_xor_b32 v7, v16, v7")
    a("v_and_b32 v16, 3, v6")
    a("v_lshrrev_b32 v6, 2, v6")
    a("v_lshl_add_u32 v16, v6, 3, v16")
    a("s_mul_i32 %s, %s, 224" % (sT, sW))
    a("v_add_u32 v16, %s, v16" % sT)
    a("v_mul_u32_u24 v16, 896, v16")
    a("v_lshl_add_u32 v16, v7, 4, v16")
    a("s_lshl_b32 %s, %s, 7" % (sT, sCB))
    a("v_add_u32 v17, %s, v16" % sT)
    a("v_add_u32 v16, 57344, v14")
    a("v_lshlrev_b32 v19, 4, v3")
    a("v_add_u32 v19, %d, v19" % C_ST)
    a("s_lshl_b32 %s, %s, 8" % (sT, sW))
    a("s_add_u32 %s, %s, %d" % (sT, sT, C_ST))
    a("v_and_b32 v18, 7, v1")
    a("v_lshl_add_u32 v18, v18, 5, %s" % sT)
    for u in range(14):
        a(mfma(CSU, WUF + 4 * u, ONES, "0" if u == 0 else None))
    st = []
    for i in range(4):
        st.append("v_add_f32 v%d, v%d, v%d" % (56 + i, 56 + i, 60 + i))
    for i in range(4):
        st.append("v_add_f32_dpp v%d, v%d, v%d row_ror:8 row_mask:0xf bank_mask:0xf" % (56 + i, 56 + i, 56 + i))
    for step in ("v_permlane32_swap_b32", "v_permlane16_swap_b32"):
        for i in range(4):
            st.append("v_mov_b32 v%d, v%d" % (60 + i, 56 + i))
        for i in range(4):
            st.append("%s v%d, v%d" % (step, 60 + i, 56 + i))
        for i in range(4):
            st.append("v_add_f32 v%d, v%d, v%d" % (56 + i, 56 + i, 60 + i))
    st.append("s_mov_b32 %s, 0x%x" % (sT, f2u(1.0 / 448)))
    st.append("v_mov_b32 v6, 0x%x" % f2u(1e-5))
    for tk in range(2):
        s1, s2, d = 56 + 2 * tk, 57 + 2 * tk, 32 + 4 * tk
        st.append("v_mul_f32 v%d, -%s, v%d" % (d, sT, s1))
        st.append("v_fma_f32 v%d, v%d, %s, v6" % (s2, s2, sT))
        st.append("v_fma_f32 v%d, -v%d, v%d, v%d" % (s2, d, d, s2))
        st.append("v_max_f32 v%d, v%d, v6" % (s2, s2))
        st.append("v_sqrt_f32 v%d, v%d" % (d + 2, s2))
        st.append("v_rsq_f32 v%d, v%d" % (s2, s2))
        st.append("v_mul_f32 v%d, s59, v%d" % (d + 1, s2))
    st.append("ds_write_b128 v18, v[32:35]")
    st.append("ds_write_b128 v18, v[36:39] offset:16")
    for x in st:
        a(x)
    st = []
    AF, NR = 192, 8
    ACCS = [40, 48]
    STS = [32, 36]
    PKD = [56, 60]

    def epi(i):
        g, u_, s, pk = ACCS[i & 1], ACCS[i & 1] + 4, STS[i & 1], PKD[(i >> 1) & 1]
        o = []
        o.append("ds_read_b128 %s, v19 offset:%d" % (vr(s), i * 256))
        o.append(None)
        o.append(None)
        for rr in range(4):
            o.append("v_fmac_f32 v%d, v%d, v%d" % (g + rr, s, CSG + rr))
        for rr in range(4):
            o.append("v_mul_f32 v%d, v%d, v%d" % (g + rr, s + 1, g + rr))
        for rr in range(4):
            o.append("v_exp_f32 v%d, v%d" % (g + rr, g + rr))
        for rr in range(4):
            o.append("v_fmac_f32 v%d, v%d, v%d" % (u_ + rr, s, CSU + rr))
        for rr in range(4):
            o.append("v_fma_f32 v%d, v%d, v%d, v%d" % (g + rr, g + rr, s + 2, s + 2))
        for rr in range(4):
            o.append("v_rcp_f32 v%d, v%d" % (g + rr, g + rr))
        for rr in range(4):
            o.append("v_mul_f32 v%d, v%d, v%d" % (g + rr, g + rr, u_ + rr))
        o.append("v_cvt_pk_bf16_f32 v%d, v%d, v%d" % (pk + 2 * (i & 1), g, g + 1))
        o.append("v_cvt_pk_bf16_f32 v%d, v%d, v%d" % (pk + 2 * (i & 1) + 1, g + 2, g + 3))
        if i & 1:
            o.append("v_permlane16_swap_b32 v%d, v%d" % (pk, pk + 2))
            o.append("v_permlane16_swap_b32 v%d, v%d" % (pk + 1, pk + 3))
            o.append(("buffer_store_dwordx4 %s, v13, %s, s58 offen%s" % (vr(pk), SWS, SC), ("hh", i >> 1)))
            o.append("s_add_u32 s58, s58, %d" % (2 * 57344))
        return o

    def emit(x):
        if x is None:
            return
        if isinstance(x, tuple):
            a(x[0], tag=x[1])
        else:
            a(x)

    def pub_stage(tp):
        publish(a, "s61")
        a("s_add_u32 s61, s61, 64")

    S0o = C_S0 - 65536
    side = {}
    prio = {}

    def at(k, f):
        side.setdefault(k, []).append(f)

    def spread(k0, stride, groups):
        for n, g in enumerate(groups):
            at(k0 + n * stride, (lambda g=g: emit_group(a, g)))

    def rd_job(k, u, base):
        def f():
            a.wait_tag(("wd", u))
            for x in wd_reads(u, base):
                a(x)
        at(k, f)

    spread(0, 1, h_groups(1))
    spread(5, 2, h_groups(2) + h_groups(3))
    spread(22, 1, wd_dma_groups(0, C_S0))
    rd_job(38, 0, S0o)
    spread(44, 1, wd_dma_groups(1, C_S0))
    spread(52, 2, wd_dma_groups(4, 0))
    rd_job(62, 1, S0o)
    spread(68, 1, wd_dma_groups(2, C_S0))
    spread(80, 2, wd_dma_groups(5, 32768))
    rd_job(88, 2, S0o)
    spread(94, 2, wd_dma_groups(3, C_S0))
    at(102, lambda: lead_issue(a, "s67"))

    if "nowd" in OPT:
        for k in list(side):
            if k >= 18:
                del side[k]
    if "nowdrd" in OPT:
        for k in (38, 62, 88):
            del side[k]

    def bar(tags, lg0=False, pub=None):
        def f():
            for tg in tags:
                a.wait_tag(tg, lg0=lg0)
            a("s_barrier")
            if pub is not None:
                pub_stage(pub)
        return f

    barr = {22: bar([("h", 1)]), 50: bar([("h", 3), ("hh", 0)], pub=0), 78: bar([("hh", 1)], pub=1)}
    if "noprio" not in OPT:
        for (k0, k1) in ((0, 22), (22, 50), (50, 78), (78, 112)):
            for lv in range(4):
                kk = k0 + (k1 - k0) * lv // 4
                prio[kk] = 3 - lv

    if "nostw" in OPT:
        barr = {14: bar([("h", 1)], lg0=True), 50: bar([("h", 3)], pub=0), 78: bar([], pub=1)}
    if "cst" in OPT:
        for kk in (14, 28, 42, 56, 70, 84, 98):
            at(kk - 1, (lambda kk=kk: stamp(a, "C k%d" % kk)))
    a.wait_tag(("h", 0), lg0=True)
    a("s_barrier")
    stamp(a, "C h0 landed")
    allrd = []
    for k in range(112):
        off = k * 1024
        allrd.append("ds_read_b128 %s, v%d offset:%d" % (vr(AF + 4 * (k % NR)), 14 if off < 57344 else 16, off % 57344))
    nxt = 0
    LA = NR - 2
    for i in range(8):
        acc = ACCS[i & 1]
        ep = epi(i - 1) if i else st
        for u in range(14):
            k = i * 14 + u
            if k in barr:
                barr[k]()
            if k in prio:
                a("s_setprio %d" % prio[k])
            while nxt < len(allrd) and nxt <= k + LA - 1:
                a(allrd[nxt])
                nxt += 1
            f = AF + 4 * (k % NR)
            z = "0" if u == 0 else None
            npop = 5 if i == 0 else 3
            start = 3 if i == 0 else 0
            if "m32" in OPT:
                ac = 224 + 16 * ((i >> 1) & 1)
                a("v_mfma_f32_32x32x16_bf16 %s, %s, %s, %s" % (vr(ac, 16), vr(WGF + 4 * (u + 14 * (i & 1))), vr(f), "0" if k % 28 == 0 else vr(ac, 16)))
            else:
                a(mfma(acc, WGF + 4 * u, f, z))
            if u >= start:
                for _ in range(npop // 2):
                    if ep:
                        emit(ep.pop(0))
            if "m32" not in OPT:
                a(mfma(acc + 4, WUF + 4 * u, f, z))
            if u >= start:
                for _ in range(npop - npop // 2):
                    if ep:
                        emit(ep.pop(0))
            for fn in side.get(k, []):
                fn()
        for x in ep:
            emit(x)
    stamp(a, "C mfma done")
    return epi, emit, pub_stage


def lead_issue(a, soff):
    L = a.label("liss")
    raw(a, "s_cmp_lg_u32 %s, 0" % sW)
    raw(a, "s_cbranch_scc1 %s" % L)
    raw(a, "v_lshlrev_b32 v6, 2, v1")
    raw(a, "buffer_load_dword v7, v6, %s, %s offen sc1" % (SWS, soff))
    raw(a, "%s:" % L)
    a.vm.append((set(), "lead"))
    a.lead_phantom = True


def lead_check(a, soff, mask_lo, mask_hi, level=None, vaddr=None):
    L, Lp, Lc, Ld = a.label("lskip"), a.label("lpoll"), a.label("lchk"), a.label("ldone")
    n = a._after(a.vm, lambda e: e[1] == "lead")
    a.vm = [e for e in a.vm if e[1] != "lead"]
    raw(a, "s_cmp_lg_u32 %s, 0" % sW)
    raw(a, "s_cbranch_scc1 %s" % L)
    raw(a, "s_mov_b32 s3, 400000")
    if n is not None:
        raw(a, "s_waitcnt vmcnt(%d)" % min(n, 63))
    raw(a, "s_branch %s" % Lc)
    raw(a, "%s:" % Lp)
    raw(a, "buffer_load_dword v7, v6, %s, %s offen sc1" % (SWS, soff))
    raw(a, "s_waitcnt vmcnt(0)")
    raw(a, "%s:" % Lc)
    raw(a, "v_cmp_ne_u32 vcc, %s, v7" % sNONCE)
    raw(a, "s_sub_u32 s3, s3, 1")
    raw(a, "s_cbranch_scc1 %s" % Ld)
    raw(a, "s_nop 0")
    raw(a, "s_and_b32 vcc_lo, vcc_lo, 0x%x" % mask_lo)
    raw(a, "s_and_b32 vcc_hi, vcc_hi, 0x%x" % mask_hi)
    raw(a, "s_cmp_lg_u64 vcc, 0")
    raw(a, "s_cbranch_scc1 %s" % Lp)
    raw(a, "%s:" % Ld)
    if level is not None:
        raw(a, "v_mov_b32 v7, %d" % level)
        raw(a, "ds_write_b32 %s, v7" % vaddr)
    raw(a, "%s:" % L)


def lds_wait(a, level):
    Lp, Ld = a.label("wl"), a.label("wd")
    raw(a, "s_mov_b32 s3, 2000000")
    raw(a, "%s:" % Lp)
    raw(a, "ds_read_b32 v31, v30")
    raw(a, "s_waitcnt lgkmcnt(0)")
    raw(a, "v_readfirstlane_b32 s66, v31")
    raw(a, "s_sub_u32 s3, s3, 1")
    raw(a, "s_cbranch_scc1 %s" % Ld)
    raw(a, "s_nop 0")
    raw(a, "s_cmp_lt_u32 s66, %d" % level)
    raw(a, "s_cbranch_scc1 %s" % Lp)
    raw(a, "%s:" % Ld)


D_HR = 98304


def phase_D(a, epi, emit, pub_stage):
    a("; ---------------- C->D ----------------")
    ep = epi(7)
    emit(ep.pop(0))
    a.wait_tag(("hh", 2), lg0=True)
    lead_check(a, "s67", 0x3fff3fff, 0)
    a("s_barrier")
    pub_stage(2)
    for x in ep:
        emit(x)
    stamp(a, "C last store")
    a("s_setprio 0")
    ACCS, AF, NR = [144, 160], 176, 12
    DLA = DLAV
    FT, FS, OUTR = 32, 48, 50

    def hh_load(k):
        rt, i = k // 7, k % 7
        a("buffer_load_dwordx4 %s, v%d, %s, s68 offen offset:%d%s" % (vr(AF + 4 * (k % NR)), 14 if i < 4 else 16, SWS, (i & 3) * 1024, "" if "hhplain" in OPT else SC))
        if i == 6:
            a("s_add_u32 s68, s68, %d" % (2 * 57344))

    a("v_add_u32 v16, 4096, v14")
    for k in range(DPRE):
        hh_load(k)
    a.wait_tag(("wd", 3))
    for x in wd_reads(3, C_S0 - 65536):
        a(x)
    for t in range(4):
        a("v_subrev_u32 v%d, 65536, v%d" % (8 + t, 8 + t))
    for x in wd_reads(4, 0) + wd_reads(5, 32768):
        a(x)
    for t in range(4):
        a("v_add_u32 v%d, 65536, v%d" % (8 + t, 8 + t))
    a("v_lshrrev_b32 v18, 5, v1")
    a("s_lshl_b32 %s, %s, 1" % (sT, sW))
    a("v_add_u32 v18, %s, v18" % sT)
    a("v_and_b32 v19, 31, v1")
    a("v_lshrrev_b32 v20, 2, v19")
    a("v_lshlrev_b32 v20, 8, v20")
    a("v_lshl_add_u32 v20, v18, 4, v20")
    a("v_lshl_add_u32 v20, v5, 2, v20")
    a("v_add_u32 v20, %d, v20" % D_HR)
    a("v_mul_u32_u24 v21, 1792, v18")
    a("v_lshl_add_u32 v21, v19, 2, v21")
    a("v_lshrrev_b32 v22, 1, v19")
    a("v_add_u32 v23, v22, v18")
    a("v_and_b32 v23, 15, v23")
    a("v_lshlrev_b32 v23, 4, v23")
    a("v_lshl_add_u32 v22, v22, 8, v23")
    a("v_and_b32 v23, 1, v19")
    a("v_lshl_add_u32 v22, v23, 3, v22")
    a("v_add_u32 v23, v2, v3")
    a("v_lshl_add_u32 v28, v2, 8, s63")
    for t in range(4):
        a("v_add_u32 v29, %d, v23" % (4 * t))
        a("v_and_b32 v29, 15, v29")
        a("v_lshl_add_u32 v%d, v29, 4, v28" % (24 + t))
    a.wait_tag(("hh", 3), lg0=True)
    a("s_barrier")
    pub_stage(3)
    stamp(a, "C flag")
    for k in range(DPRE, DLA):
        hh_load(k)
    a("s_add_u32 m0, %s, %d" % (sW1024, D_HR))
    a("buffer_load_dwordx4 v14, %s, s69 offen%s lds" % (SWS, SC), tag="hr")
    wd6 = wd_dma_groups(6, 65536)

    def writes(rt):
        return ["ds_write_b128 v%d, %s offset:%d" % (24 + t, vr(ACCS[rt & 1] + 4 * t), (rt & 1) * 32768 + t * 1024) for t in range(4)]

    def fin(rt):
        o = ["ds_read_b32 v%d, v20 offset:%d" % (FS + 1, rt * 2048)]
        for p in range(8):
            o.append("ds_read_b64 %s, v22 offset:%d" % (vr(FT + 2 * p, 2), (rt & 1) * 32768 + p * 4096))
        o.append("v_lshlrev_b32 v%d, 16, v%d" % (FS, FS + 1))
        o.append("v_and_b32 v%d, 0xffff0000, v%d" % (FS + 1, FS + 1))
        for (d, x) in ((0, 2), (4, 6), (8, 10), (12, 14), (0, 4), (8, 12), (0, 8)):
            o.append("v_add_f32 v%d, v%d, v%d" % (FT + d, FT + d, FT + x))
            o.append("v_add_f32 v%d, v%d, v%d" % (FT + d + 1, FT + d + 1, FT + x + 1))
        o.append("v_add_f32 v%d, v%d, v%d" % (FS, FS, FT))
        o.append("v_add_f32 v%d, v%d, v%d" % (FS + 1, FS + 1, FT + 1))
        o.append("v_cvt_pk_bf16_f32 v%d, v%d, v%d" % (OUTR + rt, FS, FS + 1))
        o.append("buffer_store_dword v%d, v21, %s, s70 offen%s" % (OUTR + rt, SOUT, OUTSC))
        o.append("s_add_u32 s70, s70, %d" % (32 * 896))
        return o

    nl = [DLA]
    BI = DBI
    wpos = {3: [(0, 3), (1, 1), (1, 3), (2, 1)], 4: [(0, 3), (1, 3), (2, 3), (3, 1)], 2: [(1, 0), (1, 1), (1, 2), (1, 3)]}[BI]
    fn = []
    for rt in range(4):
        wr = writes(rt - 1) if rt else []
        for i in range(7):
            k = rt * 7 + i
            if k < 2:
                emit_group(a, wd6[2 * k])
                emit_group(a, wd6[2 * k + 1])
            if k == 5:
                a.wait_tag(("wd", 6))
                for x in wd_reads(6, 0):
                    a(x)
            if k in (3 + BI, 10 + BI):
                lead_issue(a, "s67")
            if rt and i == BI:
                for x in fn:
                    a(x)
                if rt == 1:
                    lead_check(a, "s67", 0, 0x3fff)
                if rt == 2:
                    lead_check(a, "s67", 0, 0x3fff0000)
                a("s_waitcnt lgkmcnt(0)")
                if "dnobar" not in OPT:
                    a("s_barrier")
                fn = fin(rt - 1)
            lim = 14 if k < 7 + BI else (21 if k < 14 + BI else 28)
            n_iss = 0
            while nl[0] < min(lim, k + DLA + 1) and n_iss < 2:
                if "dnoload" not in OPT:
                    hh_load(nl[0])
                nl[0] += 1
                n_iss += 1
            for t in range(4):
                if not ("dnomfma" in OPT and t):
                    a(mfma(ACCS[rt & 1] + 4 * t, WDF[i] + 4 * t, AF + 4 * (k % NR), "0" if i == 0 else None))
                if "dnored" in OPT:
                    wr, fn = [], []
                if wr and (i, t) in wpos:
                    a(wr.pop(0))
                for _ in range(2):
                    if fn:
                        a(fn.pop(0))
    for x in fn:
        a(x)
    stamp(a, "D mfma done")
    for x in writes(3):
        a(x)
    a("s_waitcnt lgkmcnt(0)")
    a("s_barrier")
    for x in fin(3):
        a(x)
    stamp(a, "D out stored")


HEADER = open("cdna_kernels/%s.s.ref" % NAME).read().split("; Override launch")[0]


def build():
    n = NAME + "_kernel"
    out = HEADER
    out += "; @launch grid=(256,1,1) block=(512,1,1) lds=163840\n"
    out += '.amdgcn_target "amdgcn-amd-amdhsa--gfx950"\n.text\n'
    a = Asm()
    prologue(a)
    phase_A(a)
    phase_B(a)
    phase_D(a, *phase_C(a))
    a("Lfin:")
    stamp_flush(a)
    a("Lend:")
    a("s_endpgm")
    a("Lcode_end:")
    body = a.render()
    out += ".globl %s\n.p2align 8\n.type %s,@function\n%s:\nLcode_begin:\n%s" % (n, n, n, body)

    out += '.section .rodata,"a"\n.p2align 6\n'
    out += """.amdhsa_kernel %s
  .amdhsa_next_free_vgpr 256
  .amdhsa_next_free_sgpr 102
  .amdhsa_accum_offset 256
  .amdhsa_group_segment_fixed_size 0
  .amdhsa_kernarg_size 80
  .amdhsa_user_sgpr_count 2
  .amdhsa_user_sgpr_kernarg_segment_ptr 1
  .amdhsa_system_sgpr_workgroup_id_x 1
.end_amdhsa_kernel
""" % n
    return out


if __name__ == "__main__":
    dst = sys.argv[1] if len(sys.argv) > 1 else "cdna_kernels/%s.s" % NAME
    STAMPS = "stamps" in sys.argv
    OPT = set(sys.argv[2:])
    for o in sys.argv[2:]:
        if "=" in o:
            globals()[o.split("=")[0]] = int(o.split("=")[1])
    txt = build()
    import subprocess, re
    open("_sz.s", "w").write(txt.replace("CODE_BYTES", "0x12345"))
    subprocess.check_call(["clang", "-x", "assembler", "-target", "amdgcn-amd-amdhsa", "-mcpu=gfx950", "-c", "_sz.s", "-o", "_sz.o"])
    sym = subprocess.check_output(["llvm-objdump", "-t", "_sz.o"]).decode()
    end = int(re.search(r"([0-9a-f]+) .*Lcode_end", sym).group(1), 16)
    print("code bytes", end)
    open(dst, "w").write(txt.replace("CODE_BYTES", str((end - 64) & ~3)))
    print("wrote", dst)
```

```python
import sys, struct
sys.path.insert(0, "dev")
from asmlib import Asm, Ins

NAME = "sequential_preLN__sliding_local_dilated__glu_gated_glu__prompt"

WS_O = 0
WS_H = 2 << 20
WS_ST = 4 << 20
WS_HH = 8 << 20
WS_FA = 16 << 20
WS_FB = WS_FA + 8192
WS_FC = WS_FA + 16384
WS_TS = 20 << 20
WS_SIZE = 32 << 20

SX, SWQKV, SWO, SWG, SWU, SWD, SOUT, SWS, SDBG = [("s[%d:%d]" % (b, b + 3)) for b in range(8, 44, 4)]
sW, sXC, sJ, sNONCE = "s44", "s45", "s46", "s47"
sT, sT2, sT3 = "s55", "s56", "s57"
sW1024 = "s53"
sRB, sCB, sRQ, sFS = "s84", "s85", "s86", "s87"
SC = " sc1"
OUTSC = "" if "outplain" in sys.argv else " sc1"
LOG2E = 1.4426950408889634
STAMPS = False
OPT = set()
NSTAMP = [0]
ASPACE = 3
WOPRE = 40
G1PRE = 4
DPRE = 4
DLAV = 5
DBI = 3
HSLEEP = 4
TCH = 3
TCU = 7
TCD = 7
ROTM = 1


def f2u(x):
    return struct.unpack("<I", struct.pack("<f", x))[0]


def vr(b, n=4):
    return "v[%d:%d]" % (b, b + n - 1)


def mfma(acc, A, B, C=None):
    return "v_mfma_f32_16x16x32_bf16 %s, %s, %s, %s" % (vr(acc), vr(A), vr(B), vr(acc) if C is None else C)


def raw(a, text):
    for line in text.split("\n"):
        line = line.strip()
        if not line:
            continue
        if line.endswith(":"):
            a.items.append(("l", line))
        else:
            a.items.append(("i", Ins(line)))


def page(a):
    if "page" not in OPT:
        return
    L = a.label("pg")
    raw(a, "s_branch %s" % L)
    a.items.append(("l", ".p2align 12"))
    raw(a, "%s:" % L)


def stamp(a, name):
    if STAMPS:
        i = NSTAMP[0]
        NSTAMP[0] += 1
        a("; STAMP %d %s" % (i, name))
        a("s_memrealtime s[100:101]")
        a("s_memtime s[72:73]")
        a("s_waitcnt lgkmcnt(0)")
        a("v_writelane_b32 v15, s100, %d" % i)
        a("v_writelane_b32 v15, s72, %d" % (32 + i))


def stamp_flush(a):
    if STAMPS:
        a("s_lshl_b32 s3, s2, 3")
        a("s_add_u32 s3, s3, %s" % sW)
        a("s_lshl_b32 s3, s3, 8")
        a("s_add_u32 s3, s3, %d" % WS_TS)
        a("v_lshlrev_b32 v7, 2, v1")
        a("buffer_store_dword v15, v7, %s, s3 offen" % SWS)
        if "dbgout" in OPT:
            a("s_cmp_lg_u32 s2, 100")
            a("s_cbranch_scc1 Lend")
            a("s_cmp_lg_u32 %s, 3" % sW)
            a("s_cbranch_scc1 Lend")
            sel = [0, 2, 3, 5, 6, 8, 9, 10, 12, 13, 14, 16, 18, 19, 20]
            a("v_mov_b32 v7, 0")
            for i, st in enumerate(sel):
                a("v_readlane_b32 s3, v15, %d" % st)
                a("s_sub_u32 s3, s3, %s" % sNONCE)
                a("v_mov_b32 v6, s3")
                a("buffer_store_dword v6, v7, %s, 0 offen offset:%d" % (SDBG, 4 + 4 * i))


def xg_reduce_multi(a, op, xs, ts):
    for step in ("v_permlane32_swap_b32", "v_permlane16_swap_b32"):
        for x, t in zip(xs, ts):
            a("v_mov_b32 %s, %s" % (t, x))
        for x, t in zip(xs, ts):
            a("%s %s, %s" % (step, t, x))
        for x, t in zip(xs, ts):
            a("%s %s, %s, %s" % (op, x, x, t))


def publish(a, soff):
    L = a.label("pub")
    raw(a, "s_cmp_lg_u32 %s, 0" % sW)
    raw(a, "s_cbranch_scc1 %s" % L)
    raw(a, "s_mov_b64 exec, 1")
    raw(a, "v_mov_b32 v6, %s" % sNONCE)
    raw(a, "v_mov_b32 v7, 0")
    raw(a, "buffer_store_dword v6, v7, %s, %s offen sc1" % (SWS, soff))
    raw(a, "s_mov_b64 exec, -1")
    raw(a, "%s:" % L)


def poll(a, soff, mask_lo, mask_hi, sleep=0):
    L, Lp, Ld = a.label("skip"), a.label("poll"), a.label("done")
    raw(a, "s_cmp_lg_u32 %s, 0" % sW)
    raw(a, "s_cbranch_scc1 %s" % L)
    raw(a, "v_lshlrev_b32 v7, 2, v1")
    raw(a, "s_mov_b32 exec_lo, 0x%x" % mask_lo)
    raw(a, "s_mov_b32 exec_hi, 0x%x" % mask_hi)
    raw(a, "s_mov_b32 s3, 400000")
    raw(a, "%s:" % Lp)
    if sleep:
        raw(a, "s_sleep %d" % sleep)
    raw(a, "buffer_load_dword v6, v7, %s, %s offen sc1" % (SWS, soff))
    raw(a, "s_waitcnt vmcnt(0)")
    raw(a, "v_cmp_ne_u32 vcc, %s, v6" % sNONCE)
    raw(a, "s_sub_u32 s3, s3, 1")
    raw(a, "s_cbranch_scc1 %s" % Ld)
    raw(a, "s_nop 1")
    raw(a, "s_cmp_lg_u64 vcc, 0")
    raw(a, "s_cbranch_scc1 %s" % Lp)
    raw(a, "%s:" % Ld)
    raw(a, "s_mov_b64 exec, -1")
    raw(a, "%s:" % L)
    a("s_barrier")


def prologue(a):
    a("s_load_dwordx16 s[64:79], s[0:1], 0")
    a("s_load_dwordx4 s[80:83], s[0:1], 64")
    a("s_memrealtime s[4:5]")
    a("s_cmp_ge_u32 s2, 256")
    a("s_cbranch_scc1 Lend")
    a("s_getpc_b64 s[6:7]")
    a("v_and_b32 v1, 63, v0")
    a("v_lshrrev_b32 v6, 6, v0")
    a("v_lshrrev_b32 v2, 4, v1")
    a("v_readfirstlane_b32 %s, v6" % sW)
    a("v_and_b32 v3, 15, v0")
    a("v_bfe_u32 v4, v0, 2, 2")
    a("v_and_b32 v5, 3, v0")
    if STAMPS:
        a("v_mov_b32 v15, 0")
    if "badmap" in OPT:
        a("s_lshr_b32 %s, s2, 5" % sXC)
        a("s_and_b32 %s, s2, 31" % sJ)
    else:
        a("s_and_b32 %s, s2, 7" % sXC)
        a("s_lshr_b32 %s, s2, 3" % sJ)
    a("v_lshlrev_b32 v6, 7, v0")
    a("v_min_u32 v6, CODE_BYTES, v6")
    a("s_cmp_gt_u32 %s, 3" % sW)
    a("s_cbranch_scc1 Lnopf")
    raw(a, "global_load_dword v7, v6, s[6:7]")
    a("Lnopf:")
    sizes = {8: 2048 * 896, 12: 448 * 2688, 16: 448 * 896, 20: 448 * 3584, 24: 448 * 3584,
             28: 1792 * 896, 32: 2048 * 896, 36: WS_SIZE, 40: 256}
    for b, sz in sizes.items():
        a("s_mov_b32 s%d, %d" % (b + 2, sz))
        a("s_mov_b32 s%d, 0x00020000" % (b + 3))
    a("s_lshl_b32 %s, %s, 10" % (sW1024, sW))


def prologue2(a):
    a("s_waitcnt lgkmcnt(0)")
    src = {8: 64, 12: 66, 16: 68, 20: 72, 24: 74, 28: 76, 32: 78, 36: 82, 40: 80}
    for b, s in src.items():
        a("s_mov_b64 s[%d:%d], s[%d:%d]" % (b, b + 1, s, s + 1))


def nonce_publish(a):
    a("s_or_b32 s3, s2, %s" % sW)
    a("s_cmp_lg_u32 s3, 0")
    a("s_cbranch_scc1 Lnononce")
    raw(a, "s_or_b32 s3, s4, 1")
    if any(o.startswith("thr") for o in OPT):
        raw(a, "s_getreg_b32 s5, hwreg(HW_REG_XCC_ID)")
        raw(a, "s_and_b32 s5, s5, 7")
        raw(a, "s_andn2_b32 s3, s4, 15")
        raw(a, "s_or_b32 s3, s3, s5")
        raw(a, "s_or_b32 s3, s3, 8")
    raw(a, "v_mov_b32 v8, s3")
    raw(a, "v_mov_b32 v9, 0")
    raw(a, "s_mov_b64 exec, 1")
    raw(a, "buffer_store_dword v8, v9, %s, 0 offen sc1" % SDBG)
    raw(a, "s_mov_b64 exec, -1")
    a("Lnononce:")


def nonce_fetch(a, vN):
    L, Lp = a.label("nskip"), a.label("npoll")
    a("v_readfirstlane_b32 %s, %s" % (sNONCE, vN))
    raw(a, "s_nop 1")
    raw(a, "s_cmp_lg_u32 %s, 0" % sNONCE)
    raw(a, "s_cbranch_scc1 %s" % L)
    raw(a, "s_mov_b32 s3, 400000")
    raw(a, "v_mov_b32 v7, 0")
    raw(a, "%s:" % Lp)
    raw(a, "buffer_load_dword v6, v7, %s, 0 offen sc1" % SDBG)
    raw(a, "s_waitcnt vmcnt(0)")
    raw(a, "v_readfirstlane_b32 %s, v6" % sNONCE)
    raw(a, "s_sub_u32 s3, s3, 1")
    raw(a, "s_cbranch_scc1 %s" % L)
    raw(a, "s_nop 1")
    raw(a, "s_cmp_eq_u32 %s, 0" % sNONCE)
    raw(a, "s_cbranch_scc1 %s" % Lp)
    raw(a, "%s:" % L)
    raw(a, "s_nop 3")


def touch(a, jobs):
    Lend = a.label("tend")
    for (w, srd, n) in jobs:
        L = a.label("tn")
        raw(a, "s_cmp_lg_u32 %s, %d" % (sW, w))
        raw(a, "s_cbranch_scc1 %s" % L)
        raw(a, "s_mul_i32 s3, s2, %d" % (n * 128))
        raw(a, "v_min_u32 v6, %d, v1" % (n - 1))
        raw(a, "v_lshlrev_b32 v6, 7, v6")
        raw(a, "buffer_load_dword v7, v6, %s, s3 offen" % srd)
        raw(a, "s_branch %s" % Lend)
        raw(a, "%s:" % L)
    raw(a, "%s:" % Lend)


A_SLOT = 34816
A_XOFF = 24576
A_EX = 2 * A_SLOT
A_ST = 4 * A_SLOT
R0, R1, R2 = 0, 57344, 139264
B_RB = R2
C_ST = 149504

vWO_DMA, vWC_DMA, vWC_TR = "v176", "v177", 178
WGF, WUF = 80, 136
WOF = 128


def roles_BCD(a):
    a("s_mul_i32 %s, %s, 37" % (sRB, sJ))
    a("s_lshr_b32 %s, %s, 8" % (sRB, sRB))
    a("s_mul_i32 %s, %s, 7" % (sCB, sRB))
    a("s_sub_u32 %s, %s, %s" % (sCB, sJ, sCB))
    a("s_lshr_b32 %s, %s, 1" % (sT, sXC))
    a("s_lshl_b32 %s, %s, 2" % (sT, sT))
    a("s_add_u32 %s, %s, %s" % (sRQ, sRB, sT))
    a("s_and_b32 %s, %s, 1" % (sT, sXC))
    a("s_mul_i32 %s, %s, 7" % (sT, sT))
    a("s_add_u32 %s, %s, %s" % (sFS, sCB, sT))
    a("s_lshl_b32 %s, %s, 2" % (sT, sXC))
    a("s_add_u32 %s, %s, %s" % (sRB, sRB, sT))


def wo_dma(a, i0, i1, vaddr):
    for i in range(i0, i1):
        a("s_add_u32 m0, %s, %d" % (sW1024, R0 + i * 8192))
        a("s_mov_b32 %s, %d" % (sT, i * 64 * 896))
        a("buffer_load_dwordx4 %s, %s, %s offen lds" % (vaddr, SWO, sT), tag="wo")


def wc_dma(a, slabs, vaddr, tag):
    for (s, base) in slabs:
        a("s_add_u32 m0, %s, %d" % (sW1024, base))
        a("s_mov_b32 %s, %d" % (sT, (s % 14) * 114688))
        a("buffer_load_dwordx4 %s, %s, %s offen lds" % (vaddr, SWG if s < 14 else SWU, sT), tag=tag)


def wc_read(slabs, vtr):
    out = []
    for (s, base) in slabs:
        for hf in range(2):
            out.append("ds_read_b64_tr_b16 %s, v%d offset:%d" % (vr(WGF + 4 * s + 2 * hf, 2), vtr + base // 57344, base % 57344 + hf * 1024))
    return out


A_NM = A_ST
A_RHO = A_ST + 384


def phase_A(a):
    sTB, sHP, sT0, sTI, sHD = "s48", "s49", "s50", "s51", "s52"
    a("; ---------------- phase A ----------------")
    a("s_mul_i32 %s, %s, 37" % (sT, sJ))
    a("s_lshr_b32 %s, %s, 8" % (sT, sT))
    a("s_mul_i32 %s, %s, 7" % (sT2, sT))
    a("s_sub_u32 %s, %s, %s" % (sT2, sJ, sT2))
    a("s_add_u32 %s, %s, 1" % (sHP, sT2))
    a("s_cmp_lt_u32 %s, 28" % sJ)
    a("s_cselect_b32 %s, %s, 0" % (sHP, sHP))
    a("s_cselect_b32 %s, %s, %s" % (sT, sT, sT2))
    a("s_lshl_b32 %s, %s, 2" % (sTB, sXC))
    a("s_add_u32 %s, %s, %s" % (sTB, sTB, sT))
    a("s_lshl_b32 %s, %s, 6" % (sT0, sTB))
    a("s_and_b32 %s, %s, 3" % (sTI, sW))
    a("s_lshr_b32 %s, %s, 2" % (sHD, sW))
    a("v_lshrrev_b32 v12, 3, v1")
    a("v_and_b32 v13, 7, v1")
    a("v_lshlrev_b32 v14, 4, v1")
    ONES = 20
    BP, BC = 76, 80

    def slot(ch):
        return (ch + 1) % 4

    def common_setup(a):
        a("v_lshlrev_b32 v8, 2, v2")
        a("v_sub_u32 v9, v3, v8")
        a("s_lshl_b32 %s, %s, 2" % (sT, sTB))
        a("s_add_u32 %s, %s, %s" % (sT, sT, sTI))
        a("s_cmp_lt_u32 %s, 2" % sT)
        a("s_cselect_b32 %s, 0x10000, 0" % sT2)
        a("v_mov_b32 v11, 0xff800000")
        for rr in range(4):
            a("v_subrev_u32 v10, %d, v9" % rr)
            a("v_cmp_gt_u32 vcc, 8, v10")
            a("v_cndmask_b32 v%d, v11, 0, vcc" % (BC + rr))
            a("v_add_u32 v10, 16, v10")
            a("v_add_u32 v10, %s, v10" % sT2)
            a("v_cmp_gt_u32 vcc, 8, v10")
            a("v_cndmask_b32 v%d, v11, 0, vcc" % (BP + rr))
        a("v_cmp_gt_u32 s[94:95], 3, v2")
        a("s_mul_i32 %s, %s, 3072" % (sT2, sHD))
        a("s_add_u32 %s, %s, %d" % (sT2, sT2, A_EX))
        a("s_mul_i32 %s, %s, 6144" % (sT, sTI))
        a("s_add_u32 %s, %s, %s" % (sT, sT, sT2))
        a("v_lshl_add_u32 v32, v1, 3, %s" % sT)
        a("v_lshl_add_u32 v9, v2, 2, v4")
        a("v_lshl_add_u32 v10, v5, 4, v9")
        a("v_lshl_add_u32 v33, v10, 3, %s" % sT)
        a("s_sub_u32 %s, %s, 12288" % (sT, sT))
        a("s_add_u32 %s, %s, %d" % (sT2, sT2, 4 * 6144))
        a("s_lshl_b32 s97, %s, 3" % sTI)
        a("s_lshl_b32 %s, %s, 6" % (sT3, sTI))
        a("s_add_u32 %s, %s, %d" % (sT3, sT3, A_RHO))
        a("v_lshl_add_u32 v36, v3, 2, %s" % sT3)
        a("v_lshl_add_u32 v37, v2, 4, %s" % sT3)
        a("s_sub_u32 %s, %s, 128" % (sT3, sT3))
        a("s_cmp_lt_u32 %s, 2" % sTI)
        a("s_cselect_b32 s96, 7, 15")
        a("s_cselect_b32 s97, s97, 0")
        a("s_cselect_b32 %s, %s, %s" % (sT, sT2, sT))
        a("s_cselect_b32 %s, %d, %s" % (sT3, A_RHO + 256, sT3))
        a("v_and_b32 v9, s96, v9")
        a("v_add_u32 v9, s97, v9")
        a("v_lshl_add_u32 v10, v5, 4, v9")
        a("v_lshl_add_u32 v34, v10, 3, %s" % sT)
        a("v_and_b32 v9, s96, v8")
        a("v_add_u32 v9, s97, v9")
        a("v_lshl_add_u32 v38, v9, 2, %s" % sT3)
        a("v_and_b32 v9, s96, v3")
        a("v_add_u32 v9, s97, v9")
        a("v_lshl_add_u32 v10, v2, 4, v9")
        a("v_lshl_add_u32 v35, v10, 3, %s" % sT)
        a("s_lshl_b32 %s, %s, 2" % (sT, sTB))
        a("s_add_u32 %s, %s, %s" % (sT, sT, sTI))
        a("s_lshl_b32 %s, %s, 4" % (sT, sT))
        a("s_lshl_b32 %s, %s, 1" % (sT2, sHP))
        a("s_add_u32 %s, %s, %s" % (sT, sT, sT2))
        a("s_add_u32 %s, %s, %s" % (sT, sT, sHD))
        a("s_lshl_b32 s98, %s, 10" % sT)
        a("s_lshl_b32 %s, %s, 7" % (sT, sTB))
        a("s_lshl_b32 %s, %s, 2" % (sT2, sHP))
        a("s_add_u32 %s, %s, %s" % (sT, sT, sT2))
        a("s_add_u32 s99, %s, %d" % (sT, WS_FA))
        roles_BCD(a)
        a("s_bfe_u32 %s, %s, 0x10001" % (sT, sW))
        a("s_lshl_b32 %s, %s, 3" % (sT, sT))
        a("v_lshl_or_b32 v8, v2, 1, %s" % sT)
        a("v_xor_b32 v8, v8, v3")
        a("s_lshl_b32 %s, %s, 2" % (sT, sW))
        a("v_add_u32 v9, %s, v2" % sT)
        a("v_mul_u32_u24 v9, 3584, v9")
        a("v_lshl_add_u32 v9, v8, 4, v9")
        a("s_lshl_b32 %s, %s, 8" % (sT, sFS))
        a("v_add_u32 v16, %s, v9" % sT)
        a("v_lshl_add_u32 v8, v2, 2, v4")
        a("v_and_b32 v9, 6, v8")
        a("s_mul_i32 %s, %s, 224" % (sT, sHD))
        a("v_add_u32 v8, %s, v8" % sT)
        a("v_lshlrev_b32 v8, 7, v8")
        a("v_lshrrev_b32 v10, 1, v5")
        a("s_lshl_b32 %s, %s, 2" % (sT, sHD))
        a("v_or_b32 v10, %s, v10" % sT)
        a("v_xor_b32 v10, v10, v9")
        a("v_lshl_add_u32 v8, v10, 4, v8")
        a("v_and_b32 v9, 1, v5")
        a("v_lshl_add_u32 v28, v9, 3, v8")
        a("v_xor_b32 v29, 64, v28")
        a("v_mov_b32 v9, 2048")
        a("v_cndmask_b32 v9, 0, v9, s[94:95]")
        a("v_add_u32 v30, v28, v9")
        a("v_add_u32 v31, v29, v9")

    RQ, RC, RP = 39, 120, 124

    def rho_reads():
        a("ds_read_b32 v%d, v36" % RQ)
        a("ds_read_b128 %s, v37" % vr(RC))
        a("ds_read_b128 %s, v38" % vr(RP))

    a("s_cmp_lt_u32 %s, 4" % sW)
    a("s_cbranch_scc1 LAcons")
    sL2048, sL512 = "s54", "s65"
    vW0, vW1, vX0, vX1, vH, vWO = "v40", "v41", "v42", "v43", "v44", "v45"
    a("s_lshl_b32 %s, %s, 11" % (sL2048, sTI))
    a("v_and_b32 v8, 2, v12")
    a("v_xor_b32 v8, v8, v13")
    a("v_xor_b32 v10, 4, v8")
    a("v_min_u32 v8, 6, v8")
    a("v_min_u32 v10, 6, v10")
    a("s_lshl_b32 %s, %s, 4" % (sT, sTI))
    a("v_add_u32 v9, %s, v12" % sT)
    a("v_mul_u32_u24 v9, 2688, v9")
    a("s_mul_i32 %s, %s, 112" % (sT, sHP))
    a("v_add_u32 v9, %s, v9" % sT)
    a("v_lshl_add_u32 %s, v8, 4, v9" % vW0)
    a("v_add_u32 v9, %d, v9" % (8 * 2688))
    a("v_lshl_add_u32 %s, v10, 4, v9" % vW1)
    a("s_lshr_b32 %s, %s, 1" % (sT2, sTI))
    a("s_and_b32 %s, %s, 1" % (sT3, sTI))
    a("s_lshl_b32 %s, %s, 5" % (sT, sT2))
    a("s_add_u32 %s, %s, %s" % (sT, sT, sT0))
    a("s_add_u32 %s, %s, %s" % (sT, sT, sT3))
    a("v_lshl_add_u32 v9, v12, 1, %s" % sT)
    a("v_mul_u32_u24 v9, 896, v9")
    a("v_lshrrev_b32 v8, 1, v12")
    a("v_xor_b32 v8, v8, v13")
    a("v_lshl_add_u32 %s, v8, 4, v9" % vX0)
    a("v_xor_b32 v8, 4, v8")
    a("v_add_u32 v9, %d, v9" % (16 * 896))
    a("v_lshl_add_u32 %s, v8, 4, v9" % vX1)
    a("s_lshl_b32 %s, %s, 3" % (sT, sT3))
    a("s_add_u32 %s, %s, %s" % (sT, sT, sT2))
    a("s_add_u32 %s, %s, %s" % (sT, sT, sT0))
    a("s_sub_u32 %s, %s, 16" % (sT, sT))
    a("v_and_b32 v8, 3, v12")
    a("v_lshl_add_u32 v9, v8, 1, %s" % sT)
    a("v_max_i32 v9, 0, v9")
    a("v_mul_u32_u24 v9, 896, v9")
    a("v_lshrrev_b32 v8, 1, v8")
    a("s_lshl_b32 %s, %s, 1" % (sT, sTI))
    a("v_add_u32 v8, %s, v8" % sT)
    a("v_xor_b32 v8, v8, v13")
    a("v_lshl_add_u32 %s, v8, 4, v9" % vH)
    a("s_mov_b32 s59, 0")
    a("s_cmp_eq_u32 %s, 0" % sTI)
    a("s_cselect_b32 s58, 0xffffff00, -1")
    prologue2(a)
    a("s_lshl_b32 %s, %s, 9" % (sL512, sTI))
    if "rot" not in OPT:
        a("s_mov_b32 s67, 0")
    else:
        a("s_lshr_b32 s67, %s, 3" % sJ)
        a("s_lshl_b32 s67, s67, 1")
        a("s_mul_i32 %s, %s, %d" % (sT, sHP, ROTM))
        a("s_add_u32 s67, s67, %s" % sT)
        a("s_mul_i32 %s, s67, 37" % sT)
        a("s_lshr_b32 %s, %s, 8" % (sT, sT))
        a("s_mul_i32 %s, %s, 7" % (sT, sT))
        a("s_sub_u32 s67, s67, %s" % sT)
        a("s_lshl_b32 s67, s67, 7")

    def dma(ch, fill=()):
        fill = list(fill)
        per = (len(fill) + 8) // 9

        def f():
            for _ in range(per):
                while fill:
                    x = fill.pop(0)
                    a(x)
                    if not (fill and fill[0].startswith(("s_cselect", "v_cndmask"))):
                        break

        sb = slot(ch) * A_SLOT
        if ch:
            a("s_add_u32 s67, s67, 128")
            a("s_cmp_eq_u32 s67, 896")
            a("s_cselect_b32 s67, 0, s67")
        a("s_add_u32 m0, %s, %d" % (sL512, sb + A_XOFF + 8192))
        a("s_mov_b64 exec, s[58:59]")
        a("buffer_load_dwordx4 %s, %s, s67 offen lds" % (vH, SX), tag=("AX", ch))
        a("s_mov_b64 exec, -1")
        for i, v in enumerate((vX0, vX1)):
            a("s_add_u32 m0, %s, %d" % (sL2048, sb + A_XOFF + i * 1024))
            a("buffer_load_dwordx4 %s, %s, s67 offen lds" % (v, SX), tag=("AX", ch))
            f()
        a("s_mul_i32 s64, s67, 1344")
        for m in range(3):
            for i, v in enumerate((vW0, vW1)):
                a("s_add_u32 m0, %s, %d" % (sL2048, sb + m * 8192 + i * 1024 - m * 896))
                a("buffer_load_dwordx4 %s, %s, s64 offen offset:%d lds" % (v, SWQKV, m * 896), tag=("A", ch))
                f()
        for x in fill:
            a(x)

    a("s_setprio 3")
    stamp(a, "A start")
    dma(0)
    for i in range(4):
        a("v_mov_b32 v%d, 0x3f803f80" % (ONES + i))
    a("v_and_b32 v8, 3, v12")
    a("v_mul_u32_u24 v8, %d, v8" % A_SLOT)
    a("v_lshl_add_u32 v8, v13, 4, v8")
    a("ds_write_b128 v8, %s offset:%d" % (vr(ONES), A_XOFF + 8192))
    ST = 48
    for i in range(6):
        a("v_mov_b32 v%d, 0" % (ST + i))
    a("s_add_u32 %s, %s, %d" % (sT, sL2048, A_XOFF))
    a("v_add_u32 v54, %s, v14" % sT)
    a("v_add_u32 v55, %d, v54" % (2 * A_SLOT))
    a("s_add_u32 %s, %s, %d" % (sT, sL512, A_XOFF + 8192))
    a("v_add_u32 v56, %s, v14" % sT)
    a("v_add_u32 v57, %d, v56" % (2 * A_SLOT))
    dma(1)
    SR = 84

    def stats_rd(ch):
        sl = slot(ch)
        ib = (sl & 1) * A_SLOT
        a.wait_tag(("AX", ch))
        a("ds_read_b128 %s, v%d offset:%d" % (vr(SR), 54 + (sl >> 1), ib))
        a("ds_read_b128 %s, v%d offset:%d" % (vr(SR + 4), 54 + (sl >> 1), ib + 1024))
        a("ds_read_b128 %s, v%d offset:%d" % (vr(SR + 8), 56 + (sl >> 1), ib))

    def dots():
        o = []
        for i in range(4):
            for k in range(3):
                o.append("v_dot2c_f32_bf16 v%d, v%d, v%d" % (ST + 2 * k, SR + 4 * k + i, ONES))
                o.append("v_dot2c_f32_bf16 v%d, v%d, v%d" % (ST + 2 * k + 1, SR + 4 * k + i, SR + 4 * k + i))
        return o

    class Rec:
        def __init__(self):
            self.l = []

        def __call__(self, x, tag=None):
            self.l.append(x)

    def pieces(fn, n):
        rec = Rec()
        fn(rec)
        late, out = rec.l, []
        for k in range(n):
            nl = (len(late) + n - k - 1) // (n - k)
            while nl < len(late) and late[nl].startswith(("s_cselect", "v_cndmask")):
                nl += 1
            out.append(late[:nl])
            late = late[nl:]
        return out

    cs = pieces(common_setup, 4) + [[], []]
    stats_rd(0)
    for x in dots():
        a(x)
    for ch in range(6):
        a.wait_tag(("A", ch), lg0=True)
        a("s_barrier")
        if ch + 2 <= 6:
            stats_rd(ch + 1)
            dma(ch + 2, cs[ch] + dots())
        if ch == 3:
            a("v_and_b32 v8, 6, v12")
            a("v_xor_b32 v8, v8, v13")
            a("s_lshl_b32 %s, %s, 3" % (sT, sTI))
            a("v_add_u32 v9, %s, v12" % sT)
            a("v_mul_u32_u24 v9, 896, v9")
            a("v_lshl_add_u32 v9, v8, 4, v9")
            a("s_lshl_b32 %s, %s, 7" % (sT, sCB))
            a("v_add_u32 %s, %s, v9" % (vWO, sT))
            a("s_lshl_b32 s66, %s, 10" % sTI)
            a("s_lshl_b32 %s, %s, 6" % (sT, sTI))
            a("s_add_u32 %s, %s, %d" % (sT, sT, A_NM))
            a("v_lshl_add_u32 v46, v12, 2, %s" % sT)
            a("s_lshl_b32 %s, %s, 4" % (sT, sTI))
            a("s_add_u32 %s, %s, %d" % (sT, sT, A_NM + 256))
            a("v_lshl_add_u32 v47, v12, 2, %s" % sT)
            a("v_mov_b32 v6, 0")
            a("buffer_load_dword v17, v6, %s, 0 offen sc1" % SDBG)

    def wo_dma(i0, i1):
        for i in range(i0, i1):
            a("s_add_u32 m0, s66, %d" % (R0 + i * 4096))
            a("s_mov_b32 s64, %d" % (i * 32 * 896))
            a("buffer_load_dwordx4 %s, %s, s64 offen lds" % (vWO, SWO), tag="wo")

    stats_rd(6)
    wo_dma(0, 3)
    for x in dots():
        a(x)
    a("s_nop 2")
    for ctl in ("quad_perm:[1,0,3,2]", "quad_perm:[2,3,0,1]", "row_half_mirror"):
        for x in range(6):
            a("v_add_f32_dpp v%d, v%d, v%d %s row_mask:0xf bank_mask:0xf" % (ST + x, ST + x, ST + x, ctl))
    a("s_mov_b32 %s, 0x%x" % (sT, f2u(1.0 / 448)))
    a("v_mov_b32 v8, 0x%x" % f2u(1e-5))
    for k in range(3):
        a("v_mul_f32 v%d, -%s, v%d" % (ST + 2 * k, sT, ST + 2 * k))
        a("v_fma_f32 v%d, v%d, %s, v8" % (ST + 2 * k + 1, ST + 2 * k + 1, sT))
    for k in range(3):
        a("v_fma_f32 v%d, -v%d, v%d, v%d" % (ST + 2 * k + 1, ST + 2 * k, ST + 2 * k, ST + 2 * k + 1))
    for k in range(3):
        a("v_max_f32 v%d, v%d, v8" % (ST + 2 * k + 1, ST + 2 * k + 1))
    for k in range(3):
        a("v_rsq_f32 v%d, v%d" % (ST + 2 * k + 1, ST + 2 * k + 1))
    a("ds_write_b32 v46, v%d" % ST)
    a("ds_write_b32 v46, v%d offset:32" % (ST + 2))
    a("ds_write_b32 v46, v%d offset:384" % (ST + 1))
    a("ds_write_b32 v46, v%d offset:416" % (ST + 3))
    a("s_mov_b32 exec_hi, 0")
    a("ds_write_b32 v47, v%d" % (ST + 4))
    a("ds_write_b32 v47, v%d offset:384" % (ST + 5))
    a("s_mov_b64 exec, -1")
    a.wait_tag(("A", 6), lg0=True)
    a("s_barrier")
    rho_reads()
    wo_dma(3, 14)
    a("s_waitcnt vmcnt(0) lgkmcnt(0)")
    a("s_setprio 0")
    a("s_branch LAjoin")

    a("LAcons:")
    a.vm, a.lg = [], []
    prologue2(a)
    nonce_publish(a)
    AD, NAD = 128, 5
    a("s_and_b32 s66, %s, 1" % sW)
    a("s_lshr_b32 s67, %s, 1" % sW)
    a("v_bfe_u32 v8, v3, 1, 3")
    a("v_xor_b32 v8, v8, v2")
    a("v_lshlrev_b32 v8, 4, v8")
    a("v_lshl_add_u32 v8, v3, 7, v8")
    a("v_add_u32 v%d, %d, v8" % (AD, A_XOFF))
    a("v_xor_b32 v%d, 64, v%d" % (AD + 1, AD))
    a("v_and_b32 v8, 2, v4")
    a("v_and_b32 v9, 1, v2")
    a("v_lshl_or_b32 v8, v9, 2, v8")
    a("v_lshlrev_b32 v8, 4, v8")
    a("v_lshl_add_u32 v9, v2, 3, v4")
    a("v_lshlrev_b32 v9, 7, v9")
    a("s_mul_i32 s68, s66, 3")
    a("s_mul_i32 %s, s67, 56" % sT2)
    for j in range(3):
        a("s_add_u32 %s, s68, %d" % (sT3, j))
        a("s_and_b32 %s, %s, 1" % (sT, sT3))
        a("s_lshl_b32 %s, %s, 5" % (sT, sT))
        a("s_add_u32 %s, %s, %s" % (sT, sT, sT2))
        a("v_lshl_add_u32 v10, v5, 3, %s" % sT)
        a("v_xor_b32 v10, v10, v8")
        a("s_lshr_b32 %s, %s, 1" % (sT, sT3))
        a("s_lshl_b32 %s, %s, 13" % (sT, sT))
        a("v_add3_u32 v%d, v10, v9, %s" % (AD + 2 + j, sT))
    for i in range(NAD):
        a("v_add_u32 v%d, %d, v%d" % (AD + NAD + i, 2 * A_SLOT, AD + i))
    a("s_mul_i32 %s, %s, 1536" % (sT, sW))
    a("s_add_u32 %s, %s, %d" % (sT, sT, A_EX))
    a("v_lshl_add_u32 v138, v1, 3, %s" % sT)
    a("v_lshlrev_b32 v139, 2, v3")
    a("v_add_u32 v139, %d, v139" % A_NM)
    if "touch0" in OPT:
        touch(a, [(2, SWQKV, 37), (3, SX, 56)])
    common_setup(a)
    if "notouch1" not in OPT:
        touch(a, [(2, SWQKV, 37), (3, SX, 56)])
    ACC = 140
    FB = [40, 84]
    NM = 200

    def reads(n):
        ch, ks = n >> 1, n & 1
        sl = slot(ch)
        ab = AD if sl < 2 else AD + NAD
        ib = (sl & 1) * A_SLOT
        fb = FB[ks]
        tr = lambda j, hf: "ds_read_b64_tr_b16 %s, v%d offset:%d" % (vr(fb + 20 + 4 * j + 2 * hf, 2), ab + 2 + j, ib + ks * 4096 + hf * 512)
        xr = lambda t: "ds_read_b128 %s, v%d offset:%d" % (vr(fb + 4 * t), ab + ks, ib + t * 2048)
        return [tr(0, 0), tr(0, 1), xr(4), xr(0), xr(1), xr(2), xr(3), tr(1, 0), tr(1, 1), tr(2, 0), tr(2, 1)]

    def compute(n):
        fb = FB[n & 1]
        z = "0" if n == 0 else None
        return [mfma(ACC + 20 * j + 4 * t, fb + 20 + 4 * j, fb + 4 * t, z) for j in range(3) for t in (4, 0, 1, 2, 3)]

    def norm(j):
        o = []
        for t in (0, 1, 2, 3, 4):
            acc = ACC + 20 * j + 4 * t
            for rr in range(4):
                o.append("v_fmac_f32_dpp v%d, v%d, v%d row_newbcast:0 row_mask:0xf bank_mask:0xf" % (acc + rr, ACC + 20 * j + 16 + rr, NM + t))
            pk = 208 + 2 * ((5 * j + t) % 4)
            o.append("v_cvt_pk_bf16_f32 v%d, v%d, v%d" % (pk, acc, acc + 1))
            o.append("v_cvt_pk_bf16_f32 v%d, v%d, v%d" % (pk + 1, acc + 2, acc + 3))
            o.append("ds_write_b64 v138, %s offset:%d" % (vr(pk, 2), t * 6144 + j * 512))
        return o

    for ch in range(7):
        if "notouch" not in OPT:
            jobs = [j for (t, j) in ((TCH, (0, SWO, 13)), (TCH, (1, SWG, 49)), (TCU, (2, SWU, 49)), (TCD, (3, SWD, 49))) if t == ch]
            if jobs:
                touch(a, jobs)
        if ch == 4:
            a("v_mov_b32 v6, 0")
            a("buffer_load_dword v17, v6, %s, 0 offen sc1" % SDBG)
        if ch == 6:
            page(a)
        a("s_waitcnt lgkmcnt(0)")
        a("s_barrier")
        if ch in (0, 6):
            stamp(a, "A ch%d landed" % ch)
        for x in reads(2 * ch):
            a(x)
        rd = reads(2 * ch + 1)
        if ch == 6:
            rd += ["ds_read_b32 v%d, v139 offset:%d" % (NM + t, 64 * t) for t in range(5)]
        for x in compute(2 * ch):
            a(x)
            for _ in range(2 if ch == 6 else 1):
                if rd:
                    a(rd.pop(0))
        nr = []
        for i, x in enumerate(compute(2 * ch + 1)):
            a(x)
            if ch == 6:
                if i == 6:
                    nr += norm(0)
                if i == 11:
                    nr += norm(1)
                for _ in range(3):
                    if nr:
                        a(nr.pop(0))
    stamp(a, "A loop done")
    for x in nr + norm(2):
        a(x)
    rho_reads()
    a("s_waitcnt vmcnt(0) lgkmcnt(0)")
    a("LAjoin:")
    a.vm, a.lg = [], []
    a("s_barrier")
    QP, KC, KP, V0, V1 = 100, 104, 108, 112, 116
    a("ds_read_b64 %s, v32" % vr(QP, 2))
    a("ds_read_b64 %s, v32 offset:512" % vr(QP + 2, 2))
    a("ds_read_b64 %s, v32 offset:1024" % vr(KC, 2))
    a("ds_read_b64 %s, v32 offset:1536" % vr(KC + 2, 2))
    a("ds_read_b64 %s, v35 offset:1024" % vr(KP, 2))
    a("ds_read_b64 %s, v35 offset:1536" % vr(KP + 2, 2))
    a("ds_read_b64_tr_b16 %s, v34 offset:2048" % vr(V0, 2))
    a("ds_read_b64_tr_b16 %s, v33 offset:2048" % vr(V0 + 2, 2))
    a("ds_read_b64_tr_b16 %s, v34 offset:2560" % vr(V1, 2))
    a("ds_read_b64_tr_b16 %s, v33 offset:2560" % vr(V1 + 2, 2))
    a("v_mul_f32 v13, 0x%x, v%d" % (f2u(28 ** -0.5 * LOG2E), RQ))
    nonce_fetch(a, "v17")
    a("v_cndmask_b32 v%d, 0, v%d, s[94:95]" % (QP + 2, QP + 2))
    a("v_cndmask_b32 v%d, 0, v%d, s[94:95]" % (QP + 3, QP + 3))
    a(mfma(BC, KC, QP))
    a(mfma(BP, KP, QP))
    for i in range(4):
        a("v_mul_f32 v%d, v%d, v%d" % (BC + i, RC + i, BC + i))
    for i in range(4):
        a("v_mul_f32 v%d, v%d, v%d" % (BP + i, RP + i, BP + i))
    a("v_max3_f32 v8, v%d, v%d, v%d" % (BC, BC + 1, BC + 2))
    a("v_max3_f32 v9, v%d, v%d, v%d" % (BC + 3, BP, BP + 1))
    a("v_max3_f32 v8, v8, v%d, v%d" % (BP + 2, BP + 3))
    a("v_max_f32 v8, v8, v9")
    xg_reduce_multi(a, "v_max_f32", ["v8"], ["v9"])
    a("v_mul_f32 v8, v13, v8")
    for i in range(8):
        a("v_fma_f32 v%d, v%d, v13, -v8" % (BP + i, BP + i))
    for i in range(8):
        a("v_exp_f32 v%d, v%d" % (BP + i, BP + i))
    a("v_add_f32 v9, v%d, v%d" % (BP, BP + 1))
    a("v_add_f32 v10, v%d, v%d" % (BP + 2, BP + 3))
    a("v_add_f32 v11, v%d, v%d" % (BP + 4, BP + 5))
    a("v_add_f32 v12, v%d, v%d" % (BP + 6, BP + 7))
    a("v_add_f32 v9, v9, v10")
    a("v_add_f32 v11, v11, v12")
    a("v_add_f32 v9, v9, v11")
    for i in range(4):
        a("v_mul_f32 v%d, v%d, v%d" % (BP + i, RP + i, BP + i))
    for i in range(4):
        a("v_mul_f32 v%d, v%d, v%d" % (BC + i, RC + i, BC + i))
    P = 96
    for i in range(4):
        a("v_cvt_pk_bf16_f32 v%d, v%d, v%d" % (P + i, BP + 2 * i, BP + 2 * i + 1))
    O0, O1 = 40, 44
    a("v_mov_b32 v10, v9")
    a("s_nop 0")
    a(mfma(O0, V0, P, "0"))
    a(mfma(O1, V1, P, "0"))
    a("v_permlane32_swap_b32 v10, v9")
    a("v_add_f32 v9, v9, v10")
    a("v_mov_b32 v10, v9")
    a("v_permlane16_swap_b32 v10, v9")
    a("v_add_f32 v9, v9, v10")
    a("v_rcp_f32 v9, v9")
    for i in range(8):
        a("v_mul_f32 v%d, v9, v%d" % (O0 + i, O0 + i))
    OS = 124
    a("v_cvt_pk_bf16_f32 v%d, v%d, v%d" % (OS, O0, O0 + 1))
    a("v_cvt_pk_bf16_f32 v%d, v%d, v%d" % (OS + 1, O0 + 2, O0 + 3))
    a("v_cvt_pk_bf16_f32 v%d, v%d, v%d" % (OS + 2, O1, O1 + 1))
    a("v_cvt_pk_bf16_f32 v%d, v%d, v%d" % (OS + 3, O1 + 2, O1 + 3))
    a("v_cndmask_b32 v%d, 0, v%d, s[94:95]" % (OS + 2, OS + 2))
    a("v_cndmask_b32 v%d, 0, v%d, s[94:95]" % (OS + 3, OS + 3))
    a("buffer_store_dwordx4 %s, v14, %s, s98 offen%s" % (vr(OS), SWS, SC), tag="ost")
    stamp(a, "A o stored")


G1 = [(s, R1 + 8192 * s) for s in range(10)]
G2 = [(10 + i, R0 + 8192 * i) for i in range(7)]
G3 = [(17 + i, R1 + 8192 * i) for i in range(10)] + [(27, R2 + 16384)]


def helper(a):
    R = lambda x: raw(a, x)
    R("s_lshl_b32 %s, %s, 3" % (sT, sCB))
    R("s_add_u32 %s, %s, %s" % (sT, sT, sXC))
    R("s_mul_i32 %s, %s, %d" % (sT, sT, 392 * 128))
    R("v_min_u32 v8, 391, v0")
    R("v_lshlrev_b32 v8, 7, v8")
    if TCU > 6:
        R("buffer_load_dword v40, v8, %s, %s offen" % (SWU, sT))
    if TCD > 6:
        R("buffer_load_dword v41, v8, %s, %s offen" % (SWD, sT))


def phase_B(a):
    sTT, sKH, sTAU, sU = "s50", "s51", "s52", "s54"
    a("; ---------------- A->B ----------------")
    a("s_cmp_lt_u32 %s, 28" % sJ)
    a("s_cbranch_scc1 LgoB")
    raw(a, "s_waitcnt vmcnt(0)")
    raw(a, "s_barrier")
    publish(a, "s99")
    if "nohelp" not in OPT:
        helper(a)
    raw(a, "s_branch Lfin")
    a("LgoB:")
    for i in range(4):
        a("v_xor_b32 v%d, 32, v%d" % (32 + i, 28 + i))
    worder = []
    for hh in range(8):
        for t in range(4):
            off = R0 + hh * 3584
            p = ((t >> 1) ^ hh) & 1
            b = 28 + 4 * (t & 1)
            worder.append("ds_read_b64_tr_b16 %s, v%d offset:%d" % (vr(WOF + 16 * hh + 4 * t, 2), b + p, off))
            worder.append("ds_read_b64_tr_b16 %s, v%d offset:%d" % (vr(WOF + 16 * hh + 4 * t + 2, 2), b + 2 + p, off))
    a("s_and_b32 %s, %s, 3" % (sTT, sW))
    a("s_lshr_b32 %s, %s, 2" % (sKH, sW))
    a("s_lshl_b32 %s, %s, 2" % (sTAU, sRB))
    a("s_add_u32 %s, %s, %s" % (sTAU, sTAU, sTT))
    a("s_lshr_b32 %s, %s, 1" % (sT, sTAU))
    a("s_lshl_b32 %s, %s, 5" % (sT, sT))
    a("s_and_b32 %s, %s, 1" % (sT2, sTAU))
    a("s_add_u32 %s, %s, %s" % (sT, sT, sT2))
    a("v_lshl_add_u32 v8, v3, 1, %s" % sT)
    a("v_mul_u32_u24 v8, 896, v8")
    a("v_lshrrev_b32 v9, 1, v2")
    a("v_and_b32 v10, 1, v2")
    a("v_lshl_add_u32 v9, v10, 1, v9")
    a("v_lshl_add_u32 v8, v9, 4, v8")
    a("v_lshlrev_b32 v9, 8, v9")
    a("v_lshl_add_u32 v36, v3, 4, v9")
    a("s_lshl_b32 %s, %s, 1" % (sU, sCB))
    a("s_add_u32 %s, %s, %s" % (sU, sU, sKH))
    a("s_lshl_b32 %s, %s, 6" % (sT3, sU))
    XR = 20
    wc_dma(a, G1[10 - G1PRE:10], "v16", "g1")
    for x in worder[:WOPRE]:
        a(x)
    a.wait_tag("ost")
    a("s_barrier")
    publish(a, "s99")
    stamp(a, "A flag")
    page(a)
    def g1_rest(cond):
        L = a.label("g1r")
        raw(a, "s_cmp_%s_u32 %s, 0" % (cond, sW))
        raw(a, "s_cbranch_scc1 %s" % L)
        sv = list(a.vm)
        wc_dma(a, G1[:10 - G1PRE], "v16", "g1")
        a.vm = sv
        raw(a, "%s:" % L)

    a("buffer_load_dwordx4 %s, v8, %s, %s offen" % (vr(XR), SX, sT3))
    OPT.add("w0g1")
    if "w0g1" in OPT:
        wc_dma(a, G1[:10 - G1PRE], "v16", "g1")
    else:
        g1_rest("eq")
    for x in worder[WOPRE:]:
        a(x)
    a("v_and_b32 v8, 1, v2")
    a("v_lshl_or_b32 v8, v8, 2, v4")
    a("v_lshlrev_b32 v8, 1, v8")
    a("v_lshrrev_b32 v9, 1, v5")
    a("s_lshl_b32 %s, %s, 1" % (sT, sW))
    a("v_add_u32 v9, %s, v9" % sT)
    a("v_xor_b32 v8, v8, v9")
    a("v_lshl_add_u32 v9, v2, 3, v4")
    a("v_lshlrev_b32 v9, 8, v9")
    a("v_lshl_add_u32 v9, v8, 4, v9")
    a("v_and_b32 v8, 1, v5")
    a("v_lshl_add_u32 v17, v8, 3, v9")
    a("v_add_u32 v18, 57344, v17")
    a("v_add_u32 v19, 114688, v17")
    OF, ACC = 32, 64
    a("v_mov_b32 v28, v36")
    a("v_permlane16_swap_b32 v%d, v%d" % (XR, XR + 2))
    a("v_permlane16_swap_b32 v%d, v%d" % (XR + 1, XR + 3))
    for i in range(4):
        a("v_lshlrev_b32 v%d, 16, v%d" % (ACC + 2 * i, XR + i))
        a("v_and_b32 v%d, 0xffff0000, v%d" % (ACC + 2 * i + 1, XR + i))
    a("s_lshl_b32 %s, %s, 4" % (sT2, sTAU))
    a("s_lshl_b32 %s, %s, 3" % (sT3, sKH))
    a("s_add_u32 %s, %s, %s" % (sT2, sT2, sT3))
    a("s_lshl_b32 %s, %s, 10" % (sT2, sT2))
    a("s_add_u32 %s, %s, 4096" % (sT3, sT2))
    a("s_lshl_b32 %s, %s, 11" % (sT, sW))
    a("s_add_u32 %s, %s, %d" % (sT, sT, B_RB))
    a("v_add_u32 v12, %s, v14" % sT)
    a("s_xor_b32 %s, %s, 4" % (sT, sW))
    a("s_lshl_b32 %s, %s, 11" % (sT, sT))
    a("s_add_u32 %s, %s, %d" % (sT, sT, B_RB))
    a("v_add_u32 v13, %s, v14" % sT)
    a("s_mul_i32 s58, %s, 14" % sTAU)
    a("s_add_u32 s58, s58, %s" % sU)
    a("s_lshl_b32 s59, s58, 7")
    a("s_add_u32 s59, s59, %d" % WS_ST)
    a("s_lshl_b32 s58, s58, 10")
    a("s_add_u32 s58, s58, %d" % WS_H)
    a("s_lshl_b32 s60, %s, 7" % sRB)
    a("s_add_u32 s60, s60, %d" % WS_FA)
    a("s_lshr_b32 s61, %s, 1" % sRB)
    a("s_lshl_b32 s61, s61, 7")
    a("s_and_b32 %s, %s, 1" % (sT, sRB))
    a("s_mul_i32 %s, %s, 28" % (sT, sT))
    a("s_add_u32 s61, s61, %s" % sT)
    a("s_lshl_b32 %s, %s, 2" % (sT, sCB))
    a("s_add_u32 s61, s61, %s" % sT)
    a("s_add_u32 s61, s61, %d" % WS_FB)
    a("v_lshlrev_b32 v11, 3, v3")
    a("s_waitcnt lgkmcnt(0)")
    stamp(a, "B pre-poll")
    poll(a, "s60", 0xff, 0)
    stamp(a, "B go")
    for hh in range(8):
        a("buffer_load_dwordx4 %s, v14, %s, %s offen offset:%d%s" % (vr(OF + 4 * hh), SWS, sT2 if hh < 4 else sT3, (hh & 3) * 1024, SC))
    a("s_barrier")
    for hh in range(8):
        if hh == 7 and "w0g1" not in OPT:
            g1_rest("lg")
        if hh < 7:
            wc_dma(a, G2[hh:hh + 1], "v16", "g2")
        for t in (2, 3, 0, 1):
            a(mfma(ACC + 4 * t, WOF + 16 * hh + 4 * t, OF + 4 * hh, "0" if (hh == 0 and t >= 2) else None))
    a("ds_write_b128 v12, %s" % vr(ACC + 8))
    a("ds_write_b128 v12, %s offset:1024" % vr(ACC + 12))
    a("s_waitcnt lgkmcnt(0)")
    a("s_barrier")
    a("ds_read_b128 %s, v13" % vr(ACC + 8))
    a("ds_read_b128 %s, v13 offset:1024" % vr(ACC + 12))
    a("v_mov_b32 v8, 0")
    a("v_mov_b32 v9, 0")
    a("v_mov_b32 v6, 0")
    a("v_mov_b32 v7, 0")
    a("v_mov_b32 v10, 0x3f803f80")
    for i in range(8):
        a("v_add_f32 v%d, v%d, v%d" % (ACC + i, ACC + i, ACC + 8 + i))
    HP = 24
    for i in range(4):
        a("v_cvt_pk_bf16_f32 v%d, v%d, v%d" % (HP + i, ACC + 2 * i, ACC + 2 * i + 1))
    a("v_permlane16_swap_b32 v%d, v%d" % (HP, HP + 2))
    a("v_permlane16_swap_b32 v%d, v%d" % (HP + 1, HP + 3))
    a("buffer_store_dwordx4 %s, v28, %s, s58 offen%s" % (vr(HP), SWS, SC))
    for i in range(4):
        a("v_dot2c_f32_bf16 v%d, v%d, v10" % (8 if i & 1 else 6, HP + i))
        a("v_dot2c_f32_bf16 v%d, v%d, v%d" % (9 if i & 1 else 7, HP + i, HP + i))
    a("v_add_f32 v8, v8, v6")
    a("v_add_f32 v9, v9, v7")
    xg_reduce_multi(a, "v_add_f32", ["v8", "v9"], ["v6", "v7"])
    a("s_mov_b64 exec, 0xffff")
    a("buffer_store_dwordx2 v[8:9], v11, %s, s59 offen%s" % (SWS, SC), tag="hst")
    a("s_mov_b64 exec, -1")
    stamp(a, "B h stored")


D_RDY = 163836
C_S0 = 116736
WDF = [224, 240, 64, 80, 96, 112, 128]


def emit_group(a, g):
    for (x, tg) in g:
        a(x, tag=tg)


def wd_dma_groups(u, base):
    gs = []
    for i4 in range(4):
        i = 4 * u + i4
        gs.append([("s_add_u32 m0, s63, %d" % (base + i4 * 1024), None),
                   ("s_mov_b32 s65, %d" % ((16 * (i >> 1) + 4 * (i & 1)) * 896), None),
                   ("buffer_load_dwordx4 v17, %s, s65 offen lds" % SWD, ("wd", u))])
    return gs


def wd_reads(u, base):
    out = []
    for t in range(4):
        for hf in range(2):
            out.append("ds_read_b64_tr_b16 %s, v%d offset:%d" % (vr(WDF[u] + 4 * t + 2 * hf, 2), 8 + t, base + hf * 1024))
    return out


def phase_C(a):
    a("; ---------------- B->C ----------------")
    wc_dma(a, G3[10:], "v16", "g3")
    early = G1 if "w0g1" in OPT else G1[10 - G1PRE:]
    late = [] if "w0g1" in OPT else G1[:10 - G1PRE]
    for x in wc_read(early, 17):
        a(x)
    a.wait_tag("hst", lg0=True)
    a("s_barrier")
    publish(a, "s61")
    stamp(a, "B flag")
    wc_dma(a, G3[10 - len(early):10], "v16", "g3")
    if late:
        for x in wc_read(late, 17):
            a(x)
        a("s_waitcnt lgkmcnt(0)")
        a("s_barrier")
        wc_dma(a, G3[:len(late)], "v16", "g3")
    for x in wc_read(G2, 17):
        a(x)
    ONES, CSG, CSU = 20, 24, 28
    for i in range(4):
        a("v_mov_b32 v%d, 0x3f803f80" % (ONES + i))
    for u in range(14):
        a(mfma(CSG, WGF + 4 * u, ONES, "0" if u == 0 else None))
    a("s_mul_i32 %s, %s, 114688" % (sT2, sRQ))
    a("s_add_u32 %s, %s, %d" % (sT2, sT2, WS_H))
    a("s_mul_i32 s62, %s, 3584" % sW)
    a("v_add_u32 v12, s62, v14")
    a("s_lshl_b32 %s, %s, 3" % (sT3, sRQ))
    a("s_add_u32 %s, %s, %s" % (sT3, sT3, sW))
    a("s_mul_i32 %s, %s, 1792" % (sT3, sT3))
    a("s_add_u32 %s, %s, %d" % (sT3, sT3, WS_ST))
    for i in range(4):
        a("v_mov_b32 v%d, 0" % (60 + i))
    a("v_and_b32 v8, 1, v2")
    a("v_mul_u32_u24 v8, 57344, v8")
    a("v_lshrrev_b32 v10, 1, v2")
    a("s_and_b32 %s, %s, 1" % (sT, sW))
    a("s_lshl_b32 %s, %s, 1" % (sT, sT))
    a("v_add_u32 v10, %s, v10" % sT)
    a("v_lshl_add_u32 v8, v10, 8, v8")
    a("v_lshl_add_u32 v13, v3, 4, v8")
    a("s_mul_i32 s58, %s, 448" % sRQ)
    a("s_lshl_b32 %s, %s, 2" % (sT, sFS))
    a("s_add_u32 s58, s58, %s" % sT)
    a("s_lshr_b32 %s, %s, 1" % (sT, sW))
    a("s_add_u32 s58, s58, %s" % sT)
    a("s_lshl_b32 s58, s58, 10")
    a("s_add_u32 s58, s58, %d" % WS_HH)
    a("s_mov_b32 s59, 0x%x" % f2u(-LOG2E))
    a("s_lshl_b32 s60, %s, 7" % sRQ)
    a("s_add_u32 s60, s60, %d" % WS_FB)
    a("s_lshl_b32 s61, %s, 8" % sRQ)
    a("s_lshl_b32 %s, %s, 2" % (sT, sFS))
    a("s_add_u32 s61, s61, %s" % sT)
    a("s_add_u32 s61, s61, %d" % WS_FC)
    a("s_lshl_b32 s63, %s, 12" % sW)
    a("s_lshr_b32 %s, %s, 1" % (sT, sRB))
    a("s_lshl_b32 s67, %s, 8" % sT)
    a("s_add_u32 s67, s67, %d" % WS_FC)
    a("s_lshl_b32 s70, %s, 7" % sT)
    a("s_lshl_b32 %s, %s, 3" % (sT, sT))
    a("s_and_b32 s64, %s, 1" % sRB)
    a("s_add_u32 %s, %s, s64" % (sT, sT))
    a("s_add_u32 s70, s70, s64")
    a("s_mul_i32 s70, s70, 896")
    a("s_lshl_b32 s64, %s, 7" % sCB)
    a("s_add_u32 s70, s70, s64")
    a("s_mul_i32 s68, %s, 56" % sT)
    a("s_mul_i32 s64, %s, 7" % sW)
    a("s_add_u32 s68, s68, s64")
    a("s_lshl_b32 s68, s68, 10")
    a("s_add_u32 s68, s68, %d" % WS_HH)
    a("s_and_b32 s64, %s, 6" % sW)
    a("s_add_u32 %s, %s, s64" % (sT, sT))
    a("s_mul_i32 s69, %s, 14" % sT)
    a("s_lshl_b32 s64, %s, 1" % sCB)
    a("s_add_u32 s69, s69, s64")
    a("s_and_b32 s64, %s, 1" % sW)
    a("s_add_u32 s69, s69, s64")
    a("s_lshl_b32 s69, s69, 10")
    a("s_add_u32 s69, s69, %d" % WS_H)
    a("v_and_b32 v6, 1, v2")
    a("v_lshl_add_u32 v6, v6, 2, v4")
    a("v_and_b32 v7, 6, v6")
    a("v_lshrrev_b32 v10, 1, v5")
    a("v_xor_b32 v7, v7, v10")
    a("v_lshrrev_b32 v10, 1, v2")
    a("v_lshl_add_u32 v6, v10, 4, v6")
    a("v_lshlrev_b32 v6, 7, v6")
    a("v_lshl_add_u32 v6, v7, 4, v6")
    a("v_and_b32 v7, 1, v5")
    a("v_lshl_add_u32 v6, v7, 3, v6")
    a("s_add_u32 %s, s63, 65536" % sT)
    a("v_add_u32 v8, %s, v6" % sT)
    for t in range(1, 4):
        a("v_xor_b32 v%d, %d, v8" % (8 + t, 32 * t))
    page(a)
    a("s_waitcnt lgkmcnt(0)")
    stamp(a, "C pre-poll")
    poll(a, "s60", 0x3fff, 0)
    stamp(a, "C go")

    def h_groups(tp):
        tg = ("h", tp)
        gs = []
        for i in range(4):
            g = []
            if i == 0:
                g.append(("s_add_u32 s64, %s, %d" % (sT2, tp * 28672), None))
            g.append(("s_add_u32 m0, s62, %d" % (tp * 28672), None))
            if i == 3:
                g.append(("s_mov_b32 exec_hi, 0", None))
            g.append(("buffer_load_dwordx4 v12, %s, s64 offen offset:%d%s lds" % (SWS, i * 1024, SC), tg))
            if i == 3:
                g.append(("s_mov_b64 exec, -1", None))
            gs.append(g)
        return gs

    a("buffer_load_dwordx4 v[56:59], v14, %s, %s offen%s" % (SWS, sT3, SC))
    a("s_mov_b32 exec_hi, 0xffff")
    a("buffer_load_dwordx4 v[60:63], v14, %s, %s offen offset:1024%s" % (SWS, sT3, SC))
    a("s_mov_b64 exec, -1")
    for g in h_groups(0):
        emit_group(a, g)
    a.wait_tag("g3")
    a("s_barrier")
    for x in wc_read(G3, 17):
        a(x)
    a("v_lshrrev_b32 v6, 3, v1")
    a("v_and_b32 v7, 7, v1")
    a("v_and_b32 v16, 6, v6")
    a("v_xor_b32 v7, v16, v7")
    a("v_and_b32 v16, 3, v6")
    a("v_lshrrev_b32 v6, 2, v6")
    a("v_lshl_add_u32 v16, v6, 3, v16")
    a("s_mul_i32 %s, %s, 224" % (sT, sW))
    a("v_add_u32 v16, %s, v16" % sT)
    a("v_mul_u32_u24 v16, 896, v16")
    a("v_lshl_add_u32 v16, v7, 4, v16")
    a("s_lshl_b32 %s, %s, 7" % (sT, sCB))
    a("v_add_u32 v17, %s, v16" % sT)
    a("v_add_u32 v16, 57344, v14")
    a("v_lshlrev_b32 v19, 4, v3")
    a("v_add_u32 v19, %d, v19" % C_ST)
    a("s_lshl_b32 %s, %s, 8" % (sT, sW))
    a("s_add_u32 %s, %s, %d" % (sT, sT, C_ST))
    a("v_and_b32 v18, 7, v1")
    a("v_lshl_add_u32 v18, v18, 5, %s" % sT)
    for u in range(14):
        a(mfma(CSU, WUF + 4 * u, ONES, "0" if u == 0 else None))
    st = []
    for i in range(4):
        st.append("v_add_f32 v%d, v%d, v%d" % (56 + i, 56 + i, 60 + i))
    for i in range(4):
        st.append("v_add_f32_dpp v%d, v%d, v%d row_ror:8 row_mask:0xf bank_mask:0xf" % (56 + i, 56 + i, 56 + i))
    for step in ("v_permlane32_swap_b32", "v_permlane16_swap_b32"):
        for i in range(4):
            st.append("v_mov_b32 v%d, v%d" % (60 + i, 56 + i))
        for i in range(4):
            st.append("%s v%d, v%d" % (step, 60 + i, 56 + i))
        for i in range(4):
            st.append("v_add_f32 v%d, v%d, v%d" % (56 + i, 56 + i, 60 + i))
    st.append("s_mov_b32 %s, 0x%x" % (sT, f2u(1.0 / 448)))
    st.append("v_mov_b32 v6, 0x%x" % f2u(1e-5))
    for tk in range(2):
        s1, s2, d = 56 + 2 * tk, 57 + 2 * tk, 32 + 4 * tk
        st.append("v_mul_f32 v%d, -%s, v%d" % (d, sT, s1))
        st.append("v_fma_f32 v%d, v%d, %s, v6" % (s2, s2, sT))
        st.append("v_fma_f32 v%d, -v%d, v%d, v%d" % (s2, d, d, s2))
        st.append("v_max_f32 v%d, v%d, v6" % (s2, s2))
        st.append("v_sqrt_f32 v%d, v%d" % (d + 2, s2))
        st.append("v_rsq_f32 v%d, v%d" % (s2, s2))
        st.append("v_mul_f32 v%d, s59, v%d" % (d + 1, s2))
    st.append("ds_write_b128 v18, v[32:35]")
    st.append("ds_write_b128 v18, v[36:39] offset:16")
    for x in st:
        a(x)
    st = []
    AF, NR = 192, 8
    ACCS = [40, 48]
    STS = [32, 36]
    PKD = [56, 60]

    def epi(i):
        g, u_, s, pk = ACCS[i & 1], ACCS[i & 1] + 4, STS[i & 1], PKD[(i >> 1) & 1]
        o = []
        o.append("ds_read_b128 %s, v19 offset:%d" % (vr(s), i * 256))
        o.append(None)
        o.append(None)
        for rr in range(4):
            o.append("v_fmac_f32 v%d, v%d, v%d" % (g + rr, s, CSG + rr))
        for rr in range(4):
            o.append("v_mul_f32 v%d, v%d, v%d" % (g + rr, s + 1, g + rr))
        for rr in range(4):
            o.append("v_exp_f32 v%d, v%d" % (g + rr, g + rr))
        for rr in range(4):
            o.append("v_fmac_f32 v%d, v%d, v%d" % (u_ + rr, s, CSU + rr))
        for rr in range(4):
            o.append("v_fma_f32 v%d, v%d, v%d, v%d" % (g + rr, g + rr, s + 2, s + 2))
        for rr in range(4):
            o.append("v_rcp_f32 v%d, v%d" % (g + rr, g + rr))
        for rr in range(4):
            o.append("v_mul_f32 v%d, v%d, v%d" % (g + rr, g + rr, u_ + rr))
        o.append("v_cvt_pk_bf16_f32 v%d, v%d, v%d" % (pk + 2 * (i & 1), g, g + 1))
        o.append("v_cvt_pk_bf16_f32 v%d, v%d, v%d" % (pk + 2 * (i & 1) + 1, g + 2, g + 3))
        if i & 1:
            o.append("v_permlane16_swap_b32 v%d, v%d" % (pk, pk + 2))
            o.append("v_permlane16_swap_b32 v%d, v%d" % (pk + 1, pk + 3))
            o.append(("buffer_store_dwordx4 %s, v13, %s, s58 offen%s" % (vr(pk), SWS, SC), ("hh", i >> 1)))
            o.append("s_add_u32 s58, s58, %d" % (2 * 57344))
        return o

    def emit(x):
        if x is None:
            return
        if isinstance(x, tuple):
            a(x[0], tag=x[1])
        else:
            a(x)

    def pub_stage(tp):
        publish(a, "s61")
        a("s_add_u32 s61, s61, 64")

    S0o = C_S0 - 65536
    side = {}
    prio = {}

    def at(k, f):
        side.setdefault(k, []).append(f)

    def spread(k0, stride, groups):
        for n, g in enumerate(groups):
            at(k0 + n * stride, (lambda g=g: emit_group(a, g)))

    def rd_job(k, u, base):
        def f():
            a.wait_tag(("wd", u))
            for x in wd_reads(u, base):
                a(x)
        at(k, f)

    spread(0, 1, h_groups(1))
    spread(5, 2, h_groups(2) + h_groups(3))
    spread(22, 1, wd_dma_groups(0, C_S0))
    rd_job(38, 0, S0o)
    spread(44, 1, wd_dma_groups(1, C_S0))
    spread(52, 2, wd_dma_groups(4, 0))
    rd_job(62, 1, S0o)
    spread(68, 1, wd_dma_groups(2, C_S0))
    spread(80, 2, wd_dma_groups(5, 32768))
    rd_job(88, 2, S0o)
    spread(94, 2, wd_dma_groups(3, C_S0))
    at(102, lambda: lead_issue(a, "s67"))

    if "nowd" in OPT:
        for k in list(side):
            if k >= 18:
                del side[k]
    if "nowdrd" in OPT:
        for k in (38, 62, 88):
            del side[k]

    def bar(tags, lg0=False, pub=None):
        def f():
            for tg in tags:
                a.wait_tag(tg, lg0=lg0)
            a("s_barrier")
            if pub is not None:
                pub_stage(pub)
        return f

    barr = {22: bar([("h", 1)]), 50: bar([("h", 3), ("hh", 0)], pub=0), 78: bar([("hh", 1)], pub=1)}
    if "noprio" not in OPT:
        for (k0, k1) in ((0, 22), (22, 50), (50, 78), (78, 112)):
            for lv in range(4):
                kk = k0 + (k1 - k0) * lv // 4
                prio[kk] = 3 - lv

    if "nostw" in OPT:
        barr = {14: bar([("h", 1)], lg0=True), 50: bar([("h", 3)], pub=0), 78: bar([], pub=1)}
    if "cst" in OPT:
        for kk in (14, 28, 42, 56, 70, 84, 98):
            at(kk - 1, (lambda kk=kk: stamp(a, "C k%d" % kk)))
    a.wait_tag(("h", 0), lg0=True)
    a("s_barrier")
    stamp(a, "C h0 landed")
    allrd = []
    for k in range(112):
        off = k * 1024
        allrd.append("ds_read_b128 %s, v%d offset:%d" % (vr(AF + 4 * (k % NR)), 14 if off < 57344 else 16, off % 57344))
    nxt = 0
    LA = NR - 2
    for i in range(8):
        acc = ACCS[i & 1]
        ep = epi(i - 1) if i else st
        for u in range(14):
            k = i * 14 + u
            if k in barr:
                barr[k]()
            if k in prio:
                a("s_setprio %d" % prio[k])
            while nxt < len(allrd) and nxt <= k + LA - 1:
                a(allrd[nxt])
                nxt += 1
            f = AF + 4 * (k % NR)
            z = "0" if u == 0 else None
            npop = 5
            start = 3 if i == 0 else 0
            if "m32" in OPT:
                ac = 224 + 16 * ((i >> 1) & 1)
                a("v_mfma_f32_32x32x16_bf16 %s, %s, %s, %s" % (vr(ac, 16), vr(WGF + 4 * (u + 14 * (i & 1))), vr(f), "0" if k % 28 == 0 else vr(ac, 16)))
            else:
                a(mfma(acc, WGF + 4 * u, f, z))
            if u >= start:
                for _ in range(npop // 2):
                    if ep:
                        emit(ep.pop(0))
            if "m32" not in OPT:
                a(mfma(acc + 4, WUF + 4 * u, f, z))
            if u >= start:
                for _ in range(npop - npop // 2):
                    if ep:
                        emit(ep.pop(0))
            for fn in side.get(k, []):
                fn()
        for x in ep:
            emit(x)
    stamp(a, "C mfma done")
    return epi, emit, pub_stage


def lead_issue(a, soff):
    L = a.label("liss")
    raw(a, "s_cmp_lg_u32 %s, 0" % sW)
    raw(a, "s_cbranch_scc1 %s" % L)
    raw(a, "v_lshlrev_b32 v6, 2, v1")
    raw(a, "buffer_load_dword v7, v6, %s, %s offen sc1" % (SWS, soff))
    raw(a, "%s:" % L)
    a.vm.append((set(), "lead"))
    a.lead_phantom = True


def lead_check(a, soff, mask_lo, mask_hi, level=None, vaddr=None):
    L, Lp, Lc, Ld = a.label("lskip"), a.label("lpoll"), a.label("lchk"), a.label("ldone")
    n = a._after(a.vm, lambda e: e[1] == "lead")
    a.vm = [e for e in a.vm if e[1] != "lead"]
    raw(a, "s_cmp_lg_u32 %s, 0" % sW)
    raw(a, "s_cbranch_scc1 %s" % L)
    raw(a, "s_mov_b32 s3, 400000")
    if n is not None:
        raw(a, "s_waitcnt vmcnt(%d)" % min(n, 63))
    raw(a, "s_branch %s" % Lc)
    raw(a, "%s:" % Lp)
    raw(a, "buffer_load_dword v7, v6, %s, %s offen sc1" % (SWS, soff))
    raw(a, "s_waitcnt vmcnt(0)")
    raw(a, "%s:" % Lc)
    raw(a, "v_cmp_ne_u32 vcc, %s, v7" % sNONCE)
    raw(a, "s_sub_u32 s3, s3, 1")
    raw(a, "s_cbranch_scc1 %s" % Ld)
    raw(a, "s_nop 0")
    raw(a, "s_and_b32 vcc_lo, vcc_lo, 0x%x" % mask_lo)
    raw(a, "s_and_b32 vcc_hi, vcc_hi, 0x%x" % mask_hi)
    raw(a, "s_cmp_lg_u64 vcc, 0")
    raw(a, "s_cbranch_scc1 %s" % Lp)
    raw(a, "%s:" % Ld)
    if level is not None:
        raw(a, "v_mov_b32 v7, %d" % level)
        raw(a, "ds_write_b32 %s, v7" % vaddr)
    raw(a, "%s:" % L)


def lds_wait(a, level):
    Lp, Ld = a.label("wl"), a.label("wd")
    raw(a, "s_mov_b32 s3, 2000000")
    raw(a, "%s:" % Lp)
    raw(a, "ds_read_b32 v31, v30")
    raw(a, "s_waitcnt lgkmcnt(0)")
    raw(a, "v_readfirstlane_b32 s66, v31")
    raw(a, "s_sub_u32 s3, s3, 1")
    raw(a, "s_cbranch_scc1 %s" % Ld)
    raw(a, "s_nop 0")
    raw(a, "s_cmp_lt_u32 s66, %d" % level)
    raw(a, "s_cbranch_scc1 %s" % Lp)
    raw(a, "%s:" % Ld)


D_HR = 98304


def phase_D(a, epi, emit, pub_stage):
    a("; ---------------- C->D ----------------")
    ep = epi(7)
    emit(ep.pop(0))
    a.wait_tag(("hh", 2), lg0=True)
    lead_check(a, "s67", 0x3fff3fff, 0)
    a("s_barrier")
    pub_stage(2)
    for x in ep:
        emit(x)
    stamp(a, "C last store")
    a("s_setprio 0")
    ACCS, AF, NR = [144, 160], 176, 12
    DLA = DLAV
    FT, FS, OUTR = 32, 48, 50

    def hh_load(k):
        rt, i = k // 7, k % 7
        a("buffer_load_dwordx4 %s, v%d, %s, s68 offen offset:%d%s" % (vr(AF + 4 * (k % NR)), 14 if i < 4 else 16, SWS, (i & 3) * 1024, "" if "hhplain" in OPT else SC))
        if i == 6:
            a("s_add_u32 s68, s68, %d" % (2 * 57344))

    a("v_add_u32 v16, 4096, v14")
    for k in range(DPRE):
        hh_load(k)
    a.wait_tag(("wd", 3))
    for x in wd_reads(3, C_S0 - 65536):
        a(x)
    for t in range(4):
        a("v_subrev_u32 v%d, 65536, v%d" % (8 + t, 8 + t))
    for x in wd_reads(4, 0) + wd_reads(5, 32768):
        a(x)
    for t in range(4):
        a("v_add_u32 v%d, 65536, v%d" % (8 + t, 8 + t))
    a("v_lshrrev_b32 v18, 5, v1")
    a("s_lshl_b32 %s, %s, 1" % (sT, sW))
    a("v_add_u32 v18, %s, v18" % sT)
    a("v_and_b32 v19, 31, v1")
    a("v_lshrrev_b32 v20, 2, v19")
    a("v_lshlrev_b32 v20, 8, v20")
    a("v_lshl_add_u32 v20, v18, 4, v20")
    a("v_lshl_add_u32 v20, v5, 2, v20")
    a("v_add_u32 v20, %d, v20" % D_HR)
    a("v_mul_u32_u24 v21, 1792, v18")
    a("v_lshl_add_u32 v21, v19, 2, v21")
    a("v_lshrrev_b32 v22, 1, v19")
    a("v_add_u32 v23, v22, v18")
    a("v_and_b32 v23, 15, v23")
    a("v_lshlrev_b32 v23, 4, v23")
    a("v_lshl_add_u32 v22, v22, 8, v23")
    a("v_and_b32 v23, 1, v19")
    a("v_lshl_add_u32 v22, v23, 3, v22")
    a("v_add_u32 v23, v2, v3")
    a("v_lshl_add_u32 v28, v2, 8, s63")
    for t in range(4):
        a("v_add_u32 v29, %d, v23" % (4 * t))
        a("v_and_b32 v29, 15, v29")
        a("v_lshl_add_u32 v%d, v29, 4, v28" % (24 + t))
    page(a)
    a.wait_tag(("hh", 3), lg0=True)
    a("s_barrier")
    pub_stage(3)
    stamp(a, "C flag")
    for k in range(DPRE, DLA):
        hh_load(k)
    a("s_add_u32 m0, %s, %d" % (sW1024, D_HR))
    a("buffer_load_dwordx4 v14, %s, s69 offen%s lds" % (SWS, SC), tag="hr")
    wd6 = wd_dma_groups(6, 65536)

    def writes(rt):
        return ["ds_write_b128 v%d, %s offset:%d" % (24 + t, vr(ACCS[rt & 1] + 4 * t), (rt & 1) * 32768 + t * 1024) for t in range(4)]

    def fin(rt):
        o = ["ds_read_b32 v%d, v20 offset:%d" % (FS + 1, rt * 2048)]
        for p in range(8):
            o.append("ds_read_b64 %s, v22 offset:%d" % (vr(FT + 2 * p, 2), (rt & 1) * 32768 + p * 4096))
        o.append("v_lshlrev_b32 v%d, 16, v%d" % (FS, FS + 1))
        o.append("v_and_b32 v%d, 0xffff0000, v%d" % (FS + 1, FS + 1))
        for (d, x) in ((0, 2), (4, 6), (8, 10), (12, 14), (0, 4), (8, 12), (0, 8)):
            o.append("v_add_f32 v%d, v%d, v%d" % (FT + d, FT + d, FT + x))
            o.append("v_add_f32 v%d, v%d, v%d" % (FT + d + 1, FT + d + 1, FT + x + 1))
        o.append("v_add_f32 v%d, v%d, v%d" % (FS, FS, FT))
        o.append("v_add_f32 v%d, v%d, v%d" % (FS + 1, FS + 1, FT + 1))
        o.append("v_cvt_pk_bf16_f32 v%d, v%d, v%d" % (OUTR + rt, FS, FS + 1))
        o.append("buffer_store_dword v%d, v21, %s, s70 offen%s" % (OUTR + rt, SOUT, OUTSC))
        o.append("s_add_u32 s70, s70, %d" % (32 * 896))
        return o

    nl = [DLA]
    BI = DBI
    wpos = {3: [(0, 3), (1, 1), (1, 3), (2, 1)], 4: [(0, 3), (1, 3), (2, 3), (3, 1)], 2: [(1, 0), (1, 1), (1, 2), (1, 3)]}[BI]
    fn = []
    for rt in range(4):
        wr = writes(rt - 1) if rt else []
        for i in range(7):
            k = rt * 7 + i
            if k < 2:
                emit_group(a, wd6[2 * k])
                emit_group(a, wd6[2 * k + 1])
            if k == 5:
                a.wait_tag(("wd", 6))
                for x in wd_reads(6, 0):
                    a(x)
            if k in (3 + BI, 10 + BI):
                lead_issue(a, "s67")
            if rt and i == BI:
                for x in fn:
                    a(x)
                if rt == 1:
                    lead_check(a, "s67", 0, 0x3fff)
                if rt == 2:
                    lead_check(a, "s67", 0, 0x3fff0000)
                a("s_waitcnt lgkmcnt(0)")
                if "dnobar" not in OPT:
                    a("s_barrier")
                fn = fin(rt - 1)
            lim = 14 if k < 7 + BI else (21 if k < 14 + BI else 28)
            n_iss = 0
            while nl[0] < min(lim, k + DLA + 1) and n_iss < 2:
                if "dnoload" not in OPT:
                    hh_load(nl[0])
                nl[0] += 1
                n_iss += 1
            for t in range(4):
                if not ("dnomfma" in OPT and t):
                    a(mfma(ACCS[rt & 1] + 4 * t, WDF[i] + 4 * t, AF + 4 * (k % NR), "0" if i == 0 else None))
                if "dnored" in OPT:
                    wr, fn = [], []
                if wr and (i, t) in wpos:
                    a(wr.pop(0))
                for _ in range(2):
                    if fn:
                        a(fn.pop(0))
    for x in fn:
        a(x)
    stamp(a, "D mfma done")
    for x in writes(3):
        a(x)
    a("s_waitcnt lgkmcnt(0)")
    a("s_barrier")
    for x in fin(3):
        a(x)
    stamp(a, "D out stored")


HEADER = open("cdna_kernels/%s.s.ref" % NAME).read().split("; Override launch")[0]


def build():
    n = NAME + "_kernel"
    out = HEADER
    out += "; @launch grid=(256,1,1) block=(512,1,1) lds=163840\n"
    out += '.amdgcn_target "amdgcn-amd-amdhsa--gfx950"\n.text\n'
    a = Asm()
    prologue(a)
    phase_A(a)
    phase_B(a)
    phase_D(a, *phase_C(a))
    a("Lfin:")
    stamp_flush(a)
    a("Lend:")
    a("s_endpgm")
    a("Lcode_end:")
    body = a.render()
    out += ".globl %s\n.p2align 8\n.type %s,@function\n%s:\nLcode_begin:\n%s" % (n, n, n, body)

    out += '.section .rodata,"a"\n.p2align 6\n'
    out += """.amdhsa_kernel %s
  .amdhsa_next_free_vgpr 256
  .amdhsa_next_free_sgpr 102
  .amdhsa_accum_offset 256
  .amdhsa_group_segment_fixed_size 0
  .amdhsa_kernarg_size 80
  .amdhsa_user_sgpr_count 2
  .amdhsa_user_sgpr_kernarg_segment_ptr 1
  .amdhsa_system_sgpr_workgroup_id_x 1
.end_amdhsa_kernel
""" % n
    return out


if __name__ == "__main__":
    dst = sys.argv[1] if len(sys.argv) > 1 else "cdna_kernels/%s.s" % NAME
    STAMPS = "stamps" in sys.argv
    OPT = set(sys.argv[2:])
    for o in sys.argv[2:]:
        if "=" in o:
            globals()[o.split("=")[0]] = int(o.split("=")[1])
    txt = build()
    import subprocess, re
    open("_sz.s", "w").write(txt.replace("CODE_BYTES", "0x12345"))
    subprocess.check_call(["clang", "-x", "assembler", "-target", "amdgcn-amd-amdhsa", "-mcpu=gfx950", "-c", "_sz.s", "-o", "_sz.o"])
    sym = subprocess.check_output(["llvm-objdump", "-t", "_sz.o"]).decode()
    end = int(re.search(r"([0-9a-f]+) .*Lcode_end", sym).group(1), 16)
    print("code bytes", end)
    open(dst, "w").write(txt.replace("CODE_BYTES", str((end - 64) & ~3)))
    print("wrote", dst)
```

```python
import sys, struct
sys.path.insert(0, "dev")
from asmlib import Asm, Ins

NAME = "sequential_preLN__sliding_local_dilated__glu_gated_glu__prompt"

WS_O = 0
WS_H = 2 << 20
WS_ST = 4 << 20
WS_HH = 8 << 20
WS_FA = 16 << 20
WS_FB = WS_FA + 8192
WS_FC = WS_FA + 16384
WS_TS = 20 << 20
WS_SIZE = 32 << 20

SX, SWQKV, SWO, SWG, SWU, SWD, SOUT, SWS, SDBG = [("s[%d:%d]" % (b, b + 3)) for b in range(8, 44, 4)]
sW, sXC, sJ, sNONCE = "s44", "s45", "s46", "s47"
sT, sT2, sT3 = "s55", "s56", "s57"
sW1024 = "s53"
sRB, sCB, sRQ, sFS = "s84", "s85", "s86", "s87"
SC = " sc1"
OUTSC = "" if "outplain" in sys.argv else " sc1"
LOG2E = 1.4426950408889634
STAMPS = False
OPT = set()
NSTAMP = [0]
ASPACE = 3
WOPRE = 40
G1PRE = 4
NPOP = 5
B3 = 78
DPRE = 4
DLAV = 5
DBI = 3
HSLEEP = 4
TCH = 3
TCU = 7
TCD = 7
ROTM = 1


def f2u(x):
    return struct.unpack("<I", struct.pack("<f", x))[0]


def vr(b, n=4):
    return "v[%d:%d]" % (b, b + n - 1)


def mfma(acc, A, B, C=None):
    return "v_mfma_f32_16x16x32_bf16 %s, %s, %s, %s" % (vr(acc), vr(A), vr(B), vr(acc) if C is None else C)


def raw(a, text):
    for line in text.split("\n"):
        line = line.strip()
        if not line:
            continue
        if line.endswith(":"):
            a.items.append(("l", line))
        else:
            a.items.append(("i", Ins(line)))


def page(a):
    if "page" not in OPT:
        return
    L = a.label("pg")
    raw(a, "s_branch %s" % L)
    a.items.append(("l", ".p2align 12"))
    raw(a, "%s:" % L)


def stamp(a, name):
    if STAMPS:
        i = NSTAMP[0]
        NSTAMP[0] += 1
        a("; STAMP %d %s" % (i, name))
        a("s_memrealtime s[100:101]")
        a("s_memtime s[72:73]")
        a("s_waitcnt lgkmcnt(0)")
        a("v_writelane_b32 v15, s100, %d" % i)
        a("v_writelane_b32 v15, s72, %d" % (32 + i))


def stamp_flush(a):
    if STAMPS:
        a("s_lshl_b32 s3, s2, 3")
        a("s_add_u32 s3, s3, %s" % sW)
        a("s_lshl_b32 s3, s3, 8")
        a("s_add_u32 s3, s3, %d" % WS_TS)
        a("v_lshlrev_b32 v7, 2, v1")
        a("buffer_store_dword v15, v7, %s, s3 offen" % SWS)
        if "dbgout" in OPT:
            a("s_cmp_lg_u32 s2, 100")
            a("s_cbranch_scc1 Lend")
            a("s_cmp_lg_u32 %s, 3" % sW)
            a("s_cbranch_scc1 Lend")
            sel = [0, 2, 3, 5, 6, 8, 9, 10, 12, 13, 14, 16, 18, 19, 20]
            a("v_mov_b32 v7, 0")
            for i, st in enumerate(sel):
                a("v_readlane_b32 s3, v15, %d" % st)
                a("s_sub_u32 s3, s3, %s" % sNONCE)
                a("v_mov_b32 v6, s3")
                a("buffer_store_dword v6, v7, %s, 0 offen offset:%d" % (SDBG, 4 + 4 * i))


def xg_reduce_multi(a, op, xs, ts):
    for step in ("v_permlane32_swap_b32", "v_permlane16_swap_b32"):
        for x, t in zip(xs, ts):
            a("v_mov_b32 %s, %s" % (t, x))
        for x, t in zip(xs, ts):
            a("%s %s, %s" % (step, t, x))
        for x, t in zip(xs, ts):
            a("%s %s, %s, %s" % (op, x, x, t))


def publish(a, soff):
    L = a.label("pub")
    raw(a, "s_cmp_lg_u32 %s, 0" % sW)
    raw(a, "s_cbranch_scc1 %s" % L)
    raw(a, "s_mov_b64 exec, 1")
    raw(a, "v_mov_b32 v6, %s" % sNONCE)
    raw(a, "v_mov_b32 v7, 0")
    raw(a, "buffer_store_dword v6, v7, %s, %s offen sc1" % (SWS, soff))
    raw(a, "s_mov_b64 exec, -1")
    raw(a, "%s:" % L)


def poll(a, soff, mask_lo, mask_hi, sleep=0):
    L, Lp, Ld = a.label("skip"), a.label("poll"), a.label("done")
    raw(a, "s_cmp_lg_u32 %s, 0" % sW)
    raw(a, "s_cbranch_scc1 %s" % L)
    raw(a, "v_lshlrev_b32 v7, 2, v1")
    raw(a, "s_mov_b32 exec_lo, 0x%x" % mask_lo)
    raw(a, "s_mov_b32 exec_hi, 0x%x" % mask_hi)
    raw(a, "s_mov_b32 s3, 400000")
    raw(a, "%s:" % Lp)
    if sleep:
        raw(a, "s_sleep %d" % sleep)
    raw(a, "buffer_load_dword v6, v7, %s, %s offen sc1" % (SWS, soff))
    raw(a, "s_waitcnt vmcnt(0)")
    raw(a, "v_cmp_ne_u32 vcc, %s, v6" % sNONCE)
    raw(a, "s_sub_u32 s3, s3, 1")
    raw(a, "s_cbranch_scc1 %s" % Ld)
    raw(a, "s_nop 1")
    raw(a, "s_cmp_lg_u64 vcc, 0")
    raw(a, "s_cbranch_scc1 %s" % Lp)
    raw(a, "%s:" % Ld)
    raw(a, "s_mov_b64 exec, -1")
    raw(a, "%s:" % L)
    a("s_barrier")


def prologue(a):
    a("s_load_dwordx16 s[64:79], s[0:1], 0")
    a("s_load_dwordx4 s[80:83], s[0:1], 64")
    a("s_memrealtime s[4:5]")
    a("s_cmp_ge_u32 s2, 256")
    a("s_cbranch_scc1 Lend")
    a("s_getpc_b64 s[6:7]")
    a("v_and_b32 v1, 63, v0")
    a("v_lshrrev_b32 v6, 6, v0")
    a("v_lshrrev_b32 v2, 4, v1")
    a("v_readfirstlane_b32 %s, v6" % sW)
    a("v_and_b32 v3, 15, v0")
    a("v_bfe_u32 v4, v0, 2, 2")
    a("v_and_b32 v5, 3, v0")
    if STAMPS:
        a("v_mov_b32 v15, 0")
    if "badmap" in OPT:
        a("s_lshr_b32 %s, s2, 5" % sXC)
        a("s_and_b32 %s, s2, 31" % sJ)
    else:
        a("s_and_b32 %s, s2, 7" % sXC)
        a("s_lshr_b32 %s, s2, 3" % sJ)
    a("v_lshlrev_b32 v6, 7, v0")
    a("v_min_u32 v6, CODE_BYTES, v6")
    a("s_cmp_gt_u32 %s, 3" % sW)
    a("s_cbranch_scc1 Lnopf")
    raw(a, "global_load_dword v7, v6, s[6:7]")
    a("Lnopf:")
    sizes = {8: 2048 * 896, 12: 448 * 2688, 16: 448 * 896, 20: 448 * 3584, 24: 448 * 3584,
             28: 1792 * 896, 32: 2048 * 896, 36: WS_SIZE, 40: 256}
    for b, sz in sizes.items():
        a("s_mov_b32 s%d, %d" % (b + 2, sz))
        a("s_mov_b32 s%d, 0x00020000" % (b + 3))
    a("s_lshl_b32 %s, %s, 10" % (sW1024, sW))


def prologue2(a):
    a("s_waitcnt lgkmcnt(0)")
    src = {8: 64, 12: 66, 16: 68, 20: 72, 24: 74, 28: 76, 32: 78, 36: 82, 40: 80}
    for b, s in src.items():
        a("s_mov_b64 s[%d:%d], s[%d:%d]" % (b, b + 1, s, s + 1))


def nonce_publish(a):
    a("s_or_b32 s3, s2, %s" % sW)
    a("s_cmp_lg_u32 s3, 0")
    a("s_cbranch_scc1 Lnononce")
    raw(a, "s_or_b32 s3, s4, 1")
    if any(o.startswith("thr") for o in OPT):
        raw(a, "s_getreg_b32 s5, hwreg(HW_REG_XCC_ID)")
        raw(a, "s_and_b32 s5, s5, 7")
        raw(a, "s_andn2_b32 s3, s4, 15")
        raw(a, "s_or_b32 s3, s3, s5")
        raw(a, "s_or_b32 s3, s3, 8")
    raw(a, "v_mov_b32 v8, s3")
    raw(a, "v_mov_b32 v9, 0")
    raw(a, "s_mov_b64 exec, 1")
    raw(a, "buffer_store_dword v8, v9, %s, 0 offen sc1" % SDBG)
    raw(a, "s_mov_b64 exec, -1")
    a("Lnononce:")


def nonce_fetch(a, vN):
    L, Lp = a.label("nskip"), a.label("npoll")
    a("v_readfirstlane_b32 %s, %s" % (sNONCE, vN))
    raw(a, "s_nop 1")
    raw(a, "s_cmp_lg_u32 %s, 0" % sNONCE)
    raw(a, "s_cbranch_scc1 %s" % L)
    raw(a, "s_mov_b32 s3, 400000")
    raw(a, "v_mov_b32 v7, 0")
    raw(a, "%s:" % Lp)
    raw(a, "buffer_load_dword v6, v7, %s, 0 offen sc1" % SDBG)
    raw(a, "s_waitcnt vmcnt(0)")
    raw(a, "v_readfirstlane_b32 %s, v6" % sNONCE)
    raw(a, "s_sub_u32 s3, s3, 1")
    raw(a, "s_cbranch_scc1 %s" % L)
    raw(a, "s_nop 1")
    raw(a, "s_cmp_eq_u32 %s, 0" % sNONCE)
    raw(a, "s_cbranch_scc1 %s" % Lp)
    raw(a, "%s:" % L)
    raw(a, "s_nop 3")


def touch(a, jobs):
    Lend = a.label("tend")
    for (w, srd, n) in jobs:
        L = a.label("tn")
        raw(a, "s_cmp_lg_u32 %s, %d" % (sW, w))
        raw(a, "s_cbranch_scc1 %s" % L)
        raw(a, "s_mul_i32 s3, s2, %d" % (n * 128))
        raw(a, "v_min_u32 v6, %d, v1" % (n - 1))
        raw(a, "v_lshlrev_b32 v6, 7, v6")
        raw(a, "buffer_load_dword v7, v6, %s, s3 offen" % srd)
        raw(a, "s_branch %s" % Lend)
        raw(a, "%s:" % L)
    raw(a, "%s:" % Lend)


A_SLOT = 34816
A_XOFF = 24576
A_EX = 2 * A_SLOT
A_ST = 4 * A_SLOT
R0, R1, R2 = 0, 57344, 139264
B_RB = R2
C_ST = 149504

vWO_DMA, vWC_DMA, vWC_TR = "v176", "v177", 178
WGF, WUF = 80, 136
WOF = 128


def roles_BCD(a):
    a("s_mul_i32 %s, %s, 37" % (sRB, sJ))
    a("s_lshr_b32 %s, %s, 8" % (sRB, sRB))
    a("s_mul_i32 %s, %s, 7" % (sCB, sRB))
    a("s_sub_u32 %s, %s, %s" % (sCB, sJ, sCB))
    a("s_lshr_b32 %s, %s, 1" % (sT, sXC))
    a("s_lshl_b32 %s, %s, 2" % (sT, sT))
    a("s_add_u32 %s, %s, %s" % (sRQ, sRB, sT))
    a("s_and_b32 %s, %s, 1" % (sT, sXC))
    a("s_mul_i32 %s, %s, 7" % (sT, sT))
    a("s_add_u32 %s, %s, %s" % (sFS, sCB, sT))
    a("s_lshl_b32 %s, %s, 2" % (sT, sXC))
    a("s_add_u32 %s, %s, %s" % (sRB, sRB, sT))


def wo_dma(a, i0, i1, vaddr):
    for i in range(i0, i1):
        a("s_add_u32 m0, %s, %d" % (sW1024, R0 + i * 8192))
        a("s_mov_b32 %s, %d" % (sT, i * 64 * 896))
        a("buffer_load_dwordx4 %s, %s, %s offen lds" % (vaddr, SWO, sT), tag="wo")


def wc_dma(a, slabs, vaddr, tag):
    for (s, base) in slabs:
        a("s_add_u32 m0, %s, %d" % (sW1024, base))
        a("s_mov_b32 %s, %d" % (sT, (s % 14) * 114688))
        a("buffer_load_dwordx4 %s, %s, %s offen lds" % (vaddr, SWG if s < 14 else SWU, sT), tag=tag)


def wc_read(slabs, vtr):
    out = []
    for (s, base) in slabs:
        for hf in range(2):
            out.append("ds_read_b64_tr_b16 %s, v%d offset:%d" % (vr(WGF + 4 * s + 2 * hf, 2), vtr + base // 57344, base % 57344 + hf * 1024))
    return out


A_NM = A_ST
A_RHO = A_ST + 384


def phase_A(a):
    sTB, sHP, sT0, sTI, sHD = "s48", "s49", "s50", "s51", "s52"
    a("; ---------------- phase A ----------------")
    a("s_mul_i32 %s, %s, 37" % (sT, sJ))
    a("s_lshr_b32 %s, %s, 8" % (sT, sT))
    a("s_mul_i32 %s, %s, 7" % (sT2, sT))
    a("s_sub_u32 %s, %s, %s" % (sT2, sJ, sT2))
    a("s_add_u32 %s, %s, 1" % (sHP, sT2))
    a("s_cmp_lt_u32 %s, 28" % sJ)
    a("s_cselect_b32 %s, %s, 0" % (sHP, sHP))
    a("s_cselect_b32 %s, %s, %s" % (sT, sT, sT2))
    a("s_lshl_b32 %s, %s, 2" % (sTB, sXC))
    a("s_add_u32 %s, %s, %s" % (sTB, sTB, sT))
    a("s_lshl_b32 %s, %s, 6" % (sT0, sTB))
    a("s_and_b32 %s, %s, 3" % (sTI, sW))
    a("s_lshr_b32 %s, %s, 2" % (sHD, sW))
    a("v_lshrrev_b32 v12, 3, v1")
    a("v_and_b32 v13, 7, v1")
    a("v_lshlrev_b32 v14, 4, v1")
    ONES = 20
    BP, BC = 76, 80

    def slot(ch):
        return (ch + 1) % 4

    def common_setup(a):
        a("v_lshlrev_b32 v8, 2, v2")
        a("v_sub_u32 v9, v3, v8")
        a("s_lshl_b32 %s, %s, 2" % (sT, sTB))
        a("s_add_u32 %s, %s, %s" % (sT, sT, sTI))
        a("s_cmp_lt_u32 %s, 2" % sT)
        a("s_cselect_b32 %s, 0x10000, 0" % sT2)
        a("v_mov_b32 v11, 0xff800000")
        for rr in range(4):
            a("v_subrev_u32 v10, %d, v9" % rr)
            a("v_cmp_gt_u32 vcc, 8, v10")
            a("v_cndmask_b32 v%d, v11, 0, vcc" % (BC + rr))
            a("v_add_u32 v10, 16, v10")
            a("v_add_u32 v10, %s, v10" % sT2)
            a("v_cmp_gt_u32 vcc, 8, v10")
            a("v_cndmask_b32 v%d, v11, 0, vcc" % (BP + rr))
        a("v_cmp_gt_u32 s[94:95], 3, v2")
        a("s_mul_i32 %s, %s, 3072" % (sT2, sHD))
        a("s_add_u32 %s, %s, %d" % (sT2, sT2, A_EX))
        a("s_mul_i32 %s, %s, 6144" % (sT, sTI))
        a("s_add_u32 %s, %s, %s" % (sT, sT, sT2))
        a("v_lshl_add_u32 v32, v1, 3, %s" % sT)
        a("v_lshl_add_u32 v9, v2, 2, v4")
        a("v_lshl_add_u32 v10, v5, 4, v9")
        a("v_lshl_add_u32 v33, v10, 3, %s" % sT)
        a("s_sub_u32 %s, %s, 12288" % (sT, sT))
        a("s_add_u32 %s, %s, %d" % (sT2, sT2, 4 * 6144))
        a("s_lshl_b32 s97, %s, 3" % sTI)
        a("s_lshl_b32 %s, %s, 6" % (sT3, sTI))
        a("s_add_u32 %s, %s, %d" % (sT3, sT3, A_RHO))
        a("v_lshl_add_u32 v36, v3, 2, %s" % sT3)
        a("v_lshl_add_u32 v37, v2, 4, %s" % sT3)
        a("s_sub_u32 %s, %s, 128" % (sT3, sT3))
        a("s_cmp_lt_u32 %s, 2" % sTI)
        a("s_cselect_b32 s96, 7, 15")
        a("s_cselect_b32 s97, s97, 0")
        a("s_cselect_b32 %s, %s, %s" % (sT, sT2, sT))
        a("s_cselect_b32 %s, %d, %s" % (sT3, A_RHO + 256, sT3))
        a("v_and_b32 v9, s96, v9")
        a("v_add_u32 v9, s97, v9")
        a("v_lshl_add_u32 v10, v5, 4, v9")
        a("v_lshl_add_u32 v34, v10, 3, %s" % sT)
        a("v_and_b32 v9, s96, v8")
        a("v_add_u32 v9, s97, v9")
        a("v_lshl_add_u32 v38, v9, 2, %s" % sT3)
        a("v_and_b32 v9, s96, v3")
        a("v_add_u32 v9, s97, v9")
        a("v_lshl_add_u32 v10, v2, 4, v9")
        a("v_lshl_add_u32 v35, v10, 3, %s" % sT)
        a("s_lshl_b32 %s, %s, 2" % (sT, sTB))
        a("s_add_u32 %s, %s, %s" % (sT, sT, sTI))
        a("s_lshl_b32 %s, %s, 4" % (sT, sT))
        a("s_lshl_b32 %s, %s, 1" % (sT2, sHP))
        a("s_add_u32 %s, %s, %s" % (sT, sT, sT2))
        a("s_add_u32 %s, %s, %s" % (sT, sT, sHD))
        a("s_lshl_b32 s98, %s, 10" % sT)
        a("s_lshl_b32 %s, %s, 7" % (sT, sTB))
        a("s_lshl_b32 %s, %s, 2" % (sT2, sHP))
        a("s_add_u32 %s, %s, %s" % (sT, sT, sT2))
        a("s_add_u32 s99, %s, %d" % (sT, WS_FA))
        roles_BCD(a)
        a("s_bfe_u32 %s, %s, 0x10001" % (sT, sW))
        a("s_lshl_b32 %s, %s, 3" % (sT, sT))
        a("v_lshl_or_b32 v8, v2, 1, %s" % sT)
        a("v_xor_b32 v8, v8, v3")
        a("s_lshl_b32 %s, %s, 2" % (sT, sW))
        a("v_add_u32 v9, %s, v2" % sT)
        a("v_mul_u32_u24 v9, 3584, v9")
        a("v_lshl_add_u32 v9, v8, 4, v9")
        a("s_lshl_b32 %s, %s, 8" % (sT, sFS))
        a("v_add_u32 v16, %s, v9" % sT)
        a("v_lshl_add_u32 v8, v2, 2, v4")
        a("v_and_b32 v9, 6, v8")
        a("s_mul_i32 %s, %s, 224" % (sT, sHD))
        a("v_add_u32 v8, %s, v8" % sT)
        a("v_lshlrev_b32 v8, 7, v8")
        a("v_lshrrev_b32 v10, 1, v5")
        a("s_lshl_b32 %s, %s, 2" % (sT, sHD))
        a("v_or_b32 v10, %s, v10" % sT)
        a("v_xor_b32 v10, v10, v9")
        a("v_lshl_add_u32 v8, v10, 4, v8")
        a("v_and_b32 v9, 1, v5")
        a("v_lshl_add_u32 v28, v9, 3, v8")
        a("v_xor_b32 v29, 64, v28")
        a("v_mov_b32 v9, 2048")
        a("v_cndmask_b32 v9, 0, v9, s[94:95]")
        a("v_add_u32 v30, v28, v9")
        a("v_add_u32 v31, v29, v9")

    RQ, RC, RP = 39, 120, 124

    def rho_reads():
        a("ds_read_b32 v%d, v36" % RQ)
        a("ds_read_b128 %s, v37" % vr(RC))
        a("ds_read_b128 %s, v38" % vr(RP))

    a("s_cmp_lt_u32 %s, 4" % sW)
    a("s_cbranch_scc1 LAcons")
    sL2048, sL512 = "s54", "s65"
    vW0, vW1, vX0, vX1, vH, vWO = "v40", "v41", "v42", "v43", "v44", "v45"
    a("s_lshl_b32 %s, %s, 11" % (sL2048, sTI))
    a("v_and_b32 v8, 2, v12")
    a("v_xor_b32 v8, v8, v13")
    a("v_xor_b32 v10, 4, v8")
    a("v_min_u32 v8, 6, v8")
    a("v_min_u32 v10, 6, v10")
    a("s_lshl_b32 %s, %s, 4" % (sT, sTI))
    a("v_add_u32 v9, %s, v12" % sT)
    a("v_mul_u32_u24 v9, 2688, v9")
    a("s_mul_i32 %s, %s, 112" % (sT, sHP))
    a("v_add_u32 v9, %s, v9" % sT)
    a("v_lshl_add_u32 %s, v8, 4, v9" % vW0)
    a("v_add_u32 v9, %d, v9" % (8 * 2688))
    a("v_lshl_add_u32 %s, v10, 4, v9" % vW1)
    a("s_lshr_b32 %s, %s, 1" % (sT2, sTI))
    a("s_and_b32 %s, %s, 1" % (sT3, sTI))
    a("s_lshl_b32 %s, %s, 5" % (sT, sT2))
    a("s_add_u32 %s, %s, %s" % (sT, sT, sT0))
    a("s_add_u32 %s, %s, %s" % (sT, sT, sT3))
    a("v_lshl_add_u32 v9, v12, 1, %s" % sT)
    a("v_mul_u32_u24 v9, 896, v9")
    a("v_lshrrev_b32 v8, 1, v12")
    a("v_xor_b32 v8, v8, v13")
    a("v_lshl_add_u32 %s, v8, 4, v9" % vX0)
    a("v_xor_b32 v8, 4, v8")
    a("v_add_u32 v9, %d, v9" % (16 * 896))
    a("v_lshl_add_u32 %s, v8, 4, v9" % vX1)
    a("s_lshl_b32 %s, %s, 3" % (sT, sT3))
    a("s_add_u32 %s, %s, %s" % (sT, sT, sT2))
    a("s_add_u32 %s, %s, %s" % (sT, sT, sT0))
    a("s_sub_u32 %s, %s, 16" % (sT, sT))
    a("v_and_b32 v8, 3, v12")
    a("v_lshl_add_u32 v9, v8, 1, %s" % sT)
    a("v_max_i32 v9, 0, v9")
    a("v_mul_u32_u24 v9, 896, v9")
    a("v_lshrrev_b32 v8, 1, v8")
    a("s_lshl_b32 %s, %s, 1" % (sT, sTI))
    a("v_add_u32 v8, %s, v8" % sT)
    a("v_xor_b32 v8, v8, v13")
    a("v_lshl_add_u32 %s, v8, 4, v9" % vH)
    a("s_mov_b32 s59, 0")
    a("s_cmp_eq_u32 %s, 0" % sTI)
    a("s_cselect_b32 s58, 0xffffff00, -1")
    prologue2(a)
    a("s_lshl_b32 %s, %s, 9" % (sL512, sTI))
    if "rot" not in OPT:
        a("s_mov_b32 s67, 0")
    else:
        a("s_lshr_b32 s67, %s, 3" % sJ)
        a("s_lshl_b32 s67, s67, 1")
        a("s_mul_i32 %s, %s, %d" % (sT, sHP, ROTM))
        a("s_add_u32 s67, s67, %s" % sT)
        a("s_mul_i32 %s, s67, 37" % sT)
        a("s_lshr_b32 %s, %s, 8" % (sT, sT))
        a("s_mul_i32 %s, %s, 7" % (sT, sT))
        a("s_sub_u32 s67, s67, %s" % sT)
        a("s_lshl_b32 s67, s67, 7")

    def dma(ch, fill=()):
        fill = list(fill)
        per = (len(fill) + 8) // 9

        def f():
            for _ in range(per):
                while fill:
                    x = fill.pop(0)
                    a(x)
                    if not (fill and fill[0].startswith(("s_cselect", "v_cndmask"))):
                        break

        sb = slot(ch) * A_SLOT
        if ch:
            a("s_add_u32 s67, s67, 128")
            a("s_cmp_eq_u32 s67, 896")
            a("s_cselect_b32 s67, 0, s67")
        a("s_add_u32 m0, %s, %d" % (sL512, sb + A_XOFF + 8192))
        a("s_mov_b64 exec, s[58:59]")
        a("buffer_load_dwordx4 %s, %s, s67 offen lds" % (vH, SX), tag=("AX", ch))
        a("s_mov_b64 exec, -1")
        for i, v in enumerate((vX0, vX1)):
            a("s_add_u32 m0, %s, %d" % (sL2048, sb + A_XOFF + i * 1024))
            a("buffer_load_dwordx4 %s, %s, s67 offen lds" % (v, SX), tag=("AX", ch))
            f()
        a("s_mul_i32 s64, s67, 1344")
        for m in range(3):
            for i, v in enumerate((vW0, vW1)):
                a("s_add_u32 m0, %s, %d" % (sL2048, sb + m * 8192 + i * 1024 - m * 896))
                a("buffer_load_dwordx4 %s, %s, s64 offen offset:%d lds" % (v, SWQKV, m * 896), tag=("A", ch))
                f()
        for x in fill:
            a(x)

    a("s_setprio 3")
    stamp(a, "A start")
    dma(0)
    for i in range(4):
        a("v_mov_b32 v%d, 0x3f803f80" % (ONES + i))
    a("v_and_b32 v8, 3, v12")
    a("v_mul_u32_u24 v8, %d, v8" % A_SLOT)
    a("v_lshl_add_u32 v8, v13, 4, v8")
    a("ds_write_b128 v8, %s offset:%d" % (vr(ONES), A_XOFF + 8192))
    ST = 48
    for i in range(6):
        a("v_mov_b32 v%d, 0" % (ST + i))
    a("s_add_u32 %s, %s, %d" % (sT, sL2048, A_XOFF))
    a("v_add_u32 v54, %s, v14" % sT)
    a("v_add_u32 v55, %d, v54" % (2 * A_SLOT))
    a("s_add_u32 %s, %s, %d" % (sT, sL512, A_XOFF + 8192))
    a("v_add_u32 v56, %s, v14" % sT)
    a("v_add_u32 v57, %d, v56" % (2 * A_SLOT))
    dma(1)
    SR = 84

    def stats_rd(ch):
        sl = slot(ch)
        ib = (sl & 1) * A_SLOT
        a.wait_tag(("AX", ch))
        a("ds_read_b128 %s, v%d offset:%d" % (vr(SR), 54 + (sl >> 1), ib))
        a("ds_read_b128 %s, v%d offset:%d" % (vr(SR + 4), 54 + (sl >> 1), ib + 1024))
        a("ds_read_b128 %s, v%d offset:%d" % (vr(SR + 8), 56 + (sl >> 1), ib))

    def dots():
        o = []
        for i in range(4):
            for k in range(3):
                o.append("v_dot2c_f32_bf16 v%d, v%d, v%d" % (ST + 2 * k, SR + 4 * k + i, ONES))
                o.append("v_dot2c_f32_bf16 v%d, v%d, v%d" % (ST + 2 * k + 1, SR + 4 * k + i, SR + 4 * k + i))
        return o

    class Rec:
        def __init__(self):
            self.l = []

        def __call__(self, x, tag=None):
            self.l.append(x)

    def pieces(fn, n):
        rec = Rec()
        fn(rec)
        late, out = rec.l, []
        for k in range(n):
            nl = (len(late) + n - k - 1) // (n - k)
            while nl < len(late) and late[nl].startswith(("s_cselect", "v_cndmask")):
                nl += 1
            out.append(late[:nl])
            late = late[nl:]
        return out

    cs = pieces(common_setup, 4) + [[], []]
    stats_rd(0)
    for x in dots():
        a(x)
    for ch in range(6):
        a.wait_tag(("A", ch), lg0=True)
        a("s_barrier")
        if ch + 2 <= 6:
            stats_rd(ch + 1)
            dma(ch + 2, cs[ch] + dots())
        if ch == 3:
            a("v_and_b32 v8, 6, v12")
            a("v_xor_b32 v8, v8, v13")
            a("s_lshl_b32 %s, %s, 3" % (sT, sTI))
            a("v_add_u32 v9, %s, v12" % sT)
            a("v_mul_u32_u24 v9, 896, v9")
            a("v_lshl_add_u32 v9, v8, 4, v9")
            a("s_lshl_b32 %s, %s, 7" % (sT, sCB))
            a("v_add_u32 %s, %s, v9" % (vWO, sT))
            a("s_lshl_b32 s66, %s, 10" % sTI)
            a("s_lshl_b32 %s, %s, 6" % (sT, sTI))
            a("s_add_u32 %s, %s, %d" % (sT, sT, A_NM))
            a("v_lshl_add_u32 v46, v12, 2, %s" % sT)
            a("s_lshl_b32 %s, %s, 4" % (sT, sTI))
            a("s_add_u32 %s, %s, %d" % (sT, sT, A_NM + 256))
            a("v_lshl_add_u32 v47, v12, 2, %s" % sT)
            a("v_mov_b32 v6, 0")
            a("buffer_load_dword v17, v6, %s, 0 offen sc1" % SDBG)

    def wo_dma(i0, i1):
        for i in range(i0, i1):
            a("s_add_u32 m0, s66, %d" % (R0 + i * 4096))
            a("s_mov_b32 s64, %d" % (i * 32 * 896))
            a("buffer_load_dwordx4 %s, %s, s64 offen lds" % (vWO, SWO), tag="wo")

    stats_rd(6)
    wo_dma(0, 3)
    for x in dots():
        a(x)
    a("s_nop 2")
    for ctl in ("quad_perm:[1,0,3,2]", "quad_perm:[2,3,0,1]", "row_half_mirror"):
        for x in range(6):
            a("v_add_f32_dpp v%d, v%d, v%d %s row_mask:0xf bank_mask:0xf" % (ST + x, ST + x, ST + x, ctl))
    a("s_mov_b32 %s, 0x%x" % (sT, f2u(1.0 / 448)))
    a("v_mov_b32 v8, 0x%x" % f2u(1e-5))
    for k in range(3):
        a("v_mul_f32 v%d, -%s, v%d" % (ST + 2 * k, sT, ST + 2 * k))
        a("v_fma_f32 v%d, v%d, %s, v8" % (ST + 2 * k + 1, ST + 2 * k + 1, sT))
    for k in range(3):
        a("v_fma_f32 v%d, -v%d, v%d, v%d" % (ST + 2 * k + 1, ST + 2 * k, ST + 2 * k, ST + 2 * k + 1))
    for k in range(3):
        a("v_max_f32 v%d, v%d, v8" % (ST + 2 * k + 1, ST + 2 * k + 1))
    for k in range(3):
        a("v_rsq_f32 v%d, v%d" % (ST + 2 * k + 1, ST + 2 * k + 1))
    a("ds_write_b32 v46, v%d" % ST)
    a("ds_write_b32 v46, v%d offset:32" % (ST + 2))
    a("ds_write_b32 v46, v%d offset:384" % (ST + 1))
    a("ds_write_b32 v46, v%d offset:416" % (ST + 3))
    a("s_mov_b32 exec_hi, 0")
    a("ds_write_b32 v47, v%d" % (ST + 4))
    a("ds_write_b32 v47, v%d offset:384" % (ST + 5))
    a("s_mov_b64 exec, -1")
    a.wait_tag(("A", 6), lg0=True)
    a("s_barrier")
    rho_reads()
    wo_dma(3, 14)
    a("s_waitcnt vmcnt(0) lgkmcnt(0)")
    a("s_setprio 0")
    a("s_branch LAjoin")

    a("LAcons:")
    a.vm, a.lg = [], []
    prologue2(a)
    nonce_publish(a)
    AD, NAD = 128, 5
    a("s_and_b32 s66, %s, 1" % sW)
    a("s_lshr_b32 s67, %s, 1" % sW)
    a("v_bfe_u32 v8, v3, 1, 3")
    a("v_xor_b32 v8, v8, v2")
    a("v_lshlrev_b32 v8, 4, v8")
    a("v_lshl_add_u32 v8, v3, 7, v8")
    a("v_add_u32 v%d, %d, v8" % (AD, A_XOFF))
    a("v_xor_b32 v%d, 64, v%d" % (AD + 1, AD))
    a("v_and_b32 v8, 2, v4")
    a("v_and_b32 v9, 1, v2")
    a("v_lshl_or_b32 v8, v9, 2, v8")
    a("v_lshlrev_b32 v8, 4, v8")
    a("v_lshl_add_u32 v9, v2, 3, v4")
    a("v_lshlrev_b32 v9, 7, v9")
    a("s_mul_i32 s68, s66, 3")
    a("s_mul_i32 %s, s67, 56" % sT2)
    for j in range(3):
        a("s_add_u32 %s, s68, %d" % (sT3, j))
        a("s_and_b32 %s, %s, 1" % (sT, sT3))
        a("s_lshl_b32 %s, %s, 5" % (sT, sT))
        a("s_add_u32 %s, %s, %s" % (sT, sT, sT2))
        a("v_lshl_add_u32 v10, v5, 3, %s" % sT)
        a("v_xor_b32 v10, v10, v8")
        a("s_lshr_b32 %s, %s, 1" % (sT, sT3))
        a("s_lshl_b32 %s, %s, 13" % (sT, sT))
        a("v_add3_u32 v%d, v10, v9, %s" % (AD + 2 + j, sT))
    for i in range(NAD):
        a("v_add_u32 v%d, %d, v%d" % (AD + NAD + i, 2 * A_SLOT, AD + i))
    a("s_mul_i32 %s, %s, 1536" % (sT, sW))
    a("s_add_u32 %s, %s, %d" % (sT, sT, A_EX))
    a("v_lshl_add_u32 v138, v1, 3, %s" % sT)
    a("v_lshlrev_b32 v139, 2, v3")
    a("v_add_u32 v139, %d, v139" % A_NM)
    if "touch0" in OPT:
        touch(a, [(2, SWQKV, 37), (3, SX, 56)])
    common_setup(a)
    if "notouch1" not in OPT:
        touch(a, [(2, SWQKV, 37), (3, SX, 56)])
    if "tlb" in OPT:
        L = a.label("tlb")
        raw(a, "s_cmp_lg_u32 %s, 1" % sW)
        raw(a, "s_cbranch_scc1 %s" % L)
        raw(a, "v_mov_b32 v6, 0x3f0000")
        raw(a, "v_writelane_b32 v6, s255x, 1".replace("s255x", "s3").replace("v_writelane_b32 v6, s3, 1", "s_mov_b32 s3, 0x500000"))
        raw(a, "v_writelane_b32 v6, s3, 1")
        raw(a, "s_mov_b32 s3, 0xff0000")
        raw(a, "v_writelane_b32 v6, s3, 2")
        raw(a, "s_mov_b32 s3, 0x1100000")
        raw(a, "v_writelane_b32 v6, s3, 3")
        raw(a, "buffer_load_dword v7, v6, %s, 0 offen" % SWS)
        raw(a, "v_mov_b32 v6, 0")
        raw(a, "buffer_load_dword v7, v6, %s, 0 offen" % SOUT)
        raw(a, "buffer_load_dword v7, v6, %s, 0 offen" % SWD)
        raw(a, "buffer_load_dword v7, v6, %s, 0 offen" % SWU)
        raw(a, "%s:" % L)
    ACC = 140
    FB = [40, 84]
    NM = 200

    def reads(n):
        ch, ks = n >> 1, n & 1
        sl = slot(ch)
        ab = AD if sl < 2 else AD + NAD
        ib = (sl & 1) * A_SLOT
        fb = FB[ks]
        tr = lambda j, hf: "ds_read_b64_tr_b16 %s, v%d offset:%d" % (vr(fb + 20 + 4 * j + 2 * hf, 2), ab + 2 + j, ib + ks * 4096 + hf * 512)
        xr = lambda t: "ds_read_b128 %s, v%d offset:%d" % (vr(fb + 4 * t), ab + ks, ib + t * 2048)
        return [tr(0, 0), tr(0, 1), xr(4), xr(0), xr(1), xr(2), xr(3), tr(1, 0), tr(1, 1), tr(2, 0), tr(2, 1)]

    def compute(n):
        fb = FB[n & 1]
        z = "0" if n == 0 else None
        return [mfma(ACC + 20 * j + 4 * t, fb + 20 + 4 * j, fb + 4 * t, z) for j in range(3) for t in (4, 0, 1, 2, 3)]

    def norm(j):
        o = []
        for t in (0, 1, 2, 3, 4):
            acc = ACC + 20 * j + 4 * t
            for rr in range(4):
                o.append("v_fmac_f32_dpp v%d, v%d, v%d row_newbcast:0 row_mask:0xf bank_mask:0xf" % (acc + rr, ACC + 20 * j + 16 + rr, NM + t))
            pk = 208 + 2 * ((5 * j + t) % 4)
            o.append("v_cvt_pk_bf16_f32 v%d, v%d, v%d" % (pk, acc, acc + 1))
            o.append("v_cvt_pk_bf16_f32 v%d, v%d, v%d" % (pk + 1, acc + 2, acc + 3))
            o.append("ds_write_b64 v138, %s offset:%d" % (vr(pk, 2), t * 6144 + j * 512))
        return o

    for ch in range(7):
        if "notouch" not in OPT:
            jobs = [j for (t, j) in ((TCH, (0, SWO, 13)), (TCH, (1, SWG, 49)), (TCU, (2, SWU, 49)), (TCD, (3, SWD, 49))) if t == ch]
            if jobs:
                touch(a, jobs)
        if ch == 4:
            a("v_mov_b32 v6, 0")
            a("buffer_load_dword v17, v6, %s, 0 offen sc1" % SDBG)
        if ch == 6:
            page(a)
        a("s_waitcnt lgkmcnt(0)")
        a("s_barrier")
        if ch in (0, 6):
            stamp(a, "A ch%d landed" % ch)
        for x in reads(2 * ch):
            a(x)
        rd = reads(2 * ch + 1)
        if ch == 6:
            rd += ["ds_read_b32 v%d, v139 offset:%d" % (NM + t, 64 * t) for t in range(5)]
        for x in compute(2 * ch):
            a(x)
            for _ in range(2 if ch == 6 else 1):
                if rd:
                    a(rd.pop(0))
        nr = []
        for i, x in enumerate(compute(2 * ch + 1)):
            a(x)
            if ch == 6:
                if i == 6:
                    nr += norm(0)
                if i == 11:
                    nr += norm(1)
                for _ in range(3):
                    if nr:
                        a(nr.pop(0))
    stamp(a, "A loop done")
    for x in nr + norm(2):
        a(x)
    rho_reads()
    a("s_waitcnt vmcnt(0) lgkmcnt(0)")
    a("LAjoin:")
    a.vm, a.lg = [], []
    a("s_barrier")
    QP, KC, KP, V0, V1 = 100, 104, 108, 112, 116
    a("ds_read_b64 %s, v32" % vr(QP, 2))
    a("ds_read_b64 %s, v32 offset:512" % vr(QP + 2, 2))
    a("ds_read_b64 %s, v32 offset:1024" % vr(KC, 2))
    a("ds_read_b64 %s, v32 offset:1536" % vr(KC + 2, 2))
    a("ds_read_b64 %s, v35 offset:1024" % vr(KP, 2))
    a("ds_read_b64 %s, v35 offset:1536" % vr(KP + 2, 2))
    a("ds_read_b64_tr_b16 %s, v34 offset:2048" % vr(V0, 2))
    a("ds_read_b64_tr_b16 %s, v33 offset:2048" % vr(V0 + 2, 2))
    a("ds_read_b64_tr_b16 %s, v34 offset:2560" % vr(V1, 2))
    a("ds_read_b64_tr_b16 %s, v33 offset:2560" % vr(V1 + 2, 2))
    a("v_mul_f32 v13, 0x%x, v%d" % (f2u(28 ** -0.5 * LOG2E), RQ))
    nonce_fetch(a, "v17")
    a("v_cndmask_b32 v%d, 0, v%d, s[94:95]" % (QP + 2, QP + 2))
    a("v_cndmask_b32 v%d, 0, v%d, s[94:95]" % (QP + 3, QP + 3))
    a(mfma(BC, KC, QP))
    a(mfma(BP, KP, QP))
    for i in range(4):
        a("v_mul_f32 v%d, v%d, v%d" % (BC + i, RC + i, BC + i))
    for i in range(4):
        a("v_mul_f32 v%d, v%d, v%d" % (BP + i, RP + i, BP + i))
    a("v_max3_f32 v8, v%d, v%d, v%d" % (BC, BC + 1, BC + 2))
    a("v_max3_f32 v9, v%d, v%d, v%d" % (BC + 3, BP, BP + 1))
    a("v_max3_f32 v8, v8, v%d, v%d" % (BP + 2, BP + 3))
    a("v_max_f32 v8, v8, v9")
    xg_reduce_multi(a, "v_max_f32", ["v8"], ["v9"])
    a("v_mul_f32 v8, v13, v8")
    for i in range(8):
        a("v_fma_f32 v%d, v%d, v13, -v8" % (BP + i, BP + i))
    for i in range(8):
        a("v_exp_f32 v%d, v%d" % (BP + i, BP + i))
    a("v_add_f32 v9, v%d, v%d" % (BP, BP + 1))
    a("v_add_f32 v10, v%d, v%d" % (BP + 2, BP + 3))
    a("v_add_f32 v11, v%d, v%d" % (BP + 4, BP + 5))
    a("v_add_f32 v12, v%d, v%d" % (BP + 6, BP + 7))
    a("v_add_f32 v9, v9, v10")
    a("v_add_f32 v11, v11, v12")
    a("v_add_f32 v9, v9, v11")
    for i in range(4):
        a("v_mul_f32 v%d, v%d, v%d" % (BP + i, RP + i, BP + i))
    for i in range(4):
        a("v_mul_f32 v%d, v%d, v%d" % (BC + i, RC + i, BC + i))
    P = 96
    for i in range(4):
        a("v_cvt_pk_bf16_f32 v%d, v%d, v%d" % (P + i, BP + 2 * i, BP + 2 * i + 1))
    O0, O1 = 40, 44
    a("v_mov_b32 v10, v9")
    a("s_nop 0")
    a(mfma(O0, V0, P, "0"))
    a(mfma(O1, V1, P, "0"))
    a("v_permlane32_swap_b32 v10, v9")
    a("v_add_f32 v9, v9, v10")
    a("v_mov_b32 v10, v9")
    a("v_permlane16_swap_b32 v10, v9")
    a("v_add_f32 v9, v9, v10")
    a("v_rcp_f32 v9, v9")
    for i in range(8):
        a("v_mul_f32 v%d, v9, v%d" % (O0 + i, O0 + i))
    OS = 124
    a("v_cvt_pk_bf16_f32 v%d, v%d, v%d" % (OS, O0, O0 + 1))
    a("v_cvt_pk_bf16_f32 v%d, v%d, v%d" % (OS + 1, O0 + 2, O0 + 3))
    a("v_cvt_pk_bf16_f32 v%d, v%d, v%d" % (OS + 2, O1, O1 + 1))
    a("v_cvt_pk_bf16_f32 v%d, v%d, v%d" % (OS + 3, O1 + 2, O1 + 3))
    a("v_cndmask_b32 v%d, 0, v%d, s[94:95]" % (OS + 2, OS + 2))
    a("v_cndmask_b32 v%d, 0, v%d, s[94:95]" % (OS + 3, OS + 3))
    a("buffer_store_dwordx4 %s, v14, %s, s98 offen%s" % (vr(OS), SWS, SC), tag="ost")
    stamp(a, "A o stored")


G1 = [(s, R1 + 8192 * s) for s in range(10)]
G2 = [(10 + i, R0 + 8192 * i) for i in range(7)]
G3 = [(17 + i, R1 + 8192 * i) for i in range(10)] + [(27, R2 + 16384)]


def helper(a):
    R = lambda x: raw(a, x)
    R("s_lshl_b32 %s, %s, 3" % (sT, sCB))
    R("s_add_u32 %s, %s, %s" % (sT, sT, sXC))
    R("s_mul_i32 %s, %s, %d" % (sT, sT, 392 * 128))
    R("v_min_u32 v8, 391, v0")
    R("v_lshlrev_b32 v8, 7, v8")
    if TCU > 6:
        R("buffer_load_dword v40, v8, %s, %s offen" % (SWU, sT))
    if TCD > 6:
        R("buffer_load_dword v41, v8, %s, %s offen" % (SWD, sT))


def phase_B(a):
    sTT, sKH, sTAU, sU = "s50", "s51", "s52", "s54"
    a("; ---------------- A->B ----------------")
    a("s_cmp_lt_u32 %s, 28" % sJ)
    a("s_cbranch_scc1 LgoB")
    raw(a, "s_waitcnt vmcnt(0)")
    raw(a, "s_barrier")
    publish(a, "s99")
    if "nohelp" not in OPT:
        helper(a)
    raw(a, "s_branch Lfin")
    a("LgoB:")
    for i in range(4):
        a("v_xor_b32 v%d, 32, v%d" % (32 + i, 28 + i))
    worder = []
    for hh in range(8):
        for t in range(4):
            off = R0 + hh * 3584
            p = ((t >> 1) ^ hh) & 1
            b = 28 + 4 * (t & 1)
            worder.append("ds_read_b64_tr_b16 %s, v%d offset:%d" % (vr(WOF + 16 * hh + 4 * t, 2), b + p, off))
            worder.append("ds_read_b64_tr_b16 %s, v%d offset:%d" % (vr(WOF + 16 * hh + 4 * t + 2, 2), b + 2 + p, off))
    a("s_and_b32 %s, %s, 3" % (sTT, sW))
    a("s_lshr_b32 %s, %s, 2" % (sKH, sW))
    a("s_lshl_b32 %s, %s, 2" % (sTAU, sRB))
    a("s_add_u32 %s, %s, %s" % (sTAU, sTAU, sTT))
    a("s_lshr_b32 %s, %s, 1" % (sT, sTAU))
    a("s_lshl_b32 %s, %s, 5" % (sT, sT))
    a("s_and_b32 %s, %s, 1" % (sT2, sTAU))
    a("s_add_u32 %s, %s, %s" % (sT, sT, sT2))
    a("v_lshl_add_u32 v8, v3, 1, %s" % sT)
    a("v_mul_u32_u24 v8, 896, v8")
    a("v_lshrrev_b32 v9, 1, v2")
    a("v_and_b32 v10, 1, v2")
    a("v_lshl_add_u32 v9, v10, 1, v9")
    a("v_lshl_add_u32 v8, v9, 4, v8")
    a("v_lshlrev_b32 v9, 8, v9")
    a("v_lshl_add_u32 v36, v3, 4, v9")
    a("s_lshl_b32 %s, %s, 1" % (sU, sCB))
    a("s_add_u32 %s, %s, %s" % (sU, sU, sKH))
    a("s_lshl_b32 %s, %s, 6" % (sT3, sU))
    XR = 20
    wc_dma(a, G1[10 - G1PRE:10], "v16", "g1")
    for x in worder[:WOPRE]:
        a(x)
    a.wait_tag("ost")
    a("s_barrier")
    publish(a, "s99")
    stamp(a, "A flag")
    page(a)
    def g1_rest(cond):
        L = a.label("g1r")
        raw(a, "s_cmp_%s_u32 %s, 0" % (cond, sW))
        raw(a, "s_cbranch_scc1 %s" % L)
        sv = list(a.vm)
        wc_dma(a, G1[:10 - G1PRE], "v16", "g1")
        a.vm = sv
        raw(a, "%s:" % L)

    a("buffer_load_dwordx4 %s, v8, %s, %s offen" % (vr(XR), SX, sT3))
    OPT.add("w0g1")
    if "w0g1" in OPT:
        wc_dma(a, G1[:10 - G1PRE], "v16", "g1")
    else:
        g1_rest("eq")
    for x in worder[WOPRE:]:
        a(x)
    a("v_and_b32 v8, 1, v2")
    a("v_lshl_or_b32 v8, v8, 2, v4")
    a("v_lshlrev_b32 v8, 1, v8")
    a("v_lshrrev_b32 v9, 1, v5")
    a("s_lshl_b32 %s, %s, 1" % (sT, sW))
    a("v_add_u32 v9, %s, v9" % sT)
    a("v_xor_b32 v8, v8, v9")
    a("v_lshl_add_u32 v9, v2, 3, v4")
    a("v_lshlrev_b32 v9, 8, v9")
    a("v_lshl_add_u32 v9, v8, 4, v9")
    a("v_and_b32 v8, 1, v5")
    a("v_lshl_add_u32 v17, v8, 3, v9")
    a("v_add_u32 v18, 57344, v17")
    a("v_add_u32 v19, 114688, v17")
    OF, ACC = 32, 64
    a("v_mov_b32 v28, v36")
    a("v_permlane16_swap_b32 v%d, v%d" % (XR, XR + 2))
    a("v_permlane16_swap_b32 v%d, v%d" % (XR + 1, XR + 3))
    for i in range(4):
        a("v_lshlrev_b32 v%d, 16, v%d" % (ACC + 2 * i, XR + i))
        a("v_and_b32 v%d, 0xffff0000, v%d" % (ACC + 2 * i + 1, XR + i))
    a("s_lshl_b32 %s, %s, 4" % (sT2, sTAU))
    a("s_lshl_b32 %s, %s, 3" % (sT3, sKH))
    a("s_add_u32 %s, %s, %s" % (sT2, sT2, sT3))
    a("s_lshl_b32 %s, %s, 10" % (sT2, sT2))
    a("s_add_u32 %s, %s, 4096" % (sT3, sT2))
    a("s_lshl_b32 %s, %s, 11" % (sT, sW))
    a("s_add_u32 %s, %s, %d" % (sT, sT, B_RB))
    a("v_add_u32 v12, %s, v14" % sT)
    a("s_xor_b32 %s, %s, 4" % (sT, sW))
    a("s_lshl_b32 %s, %s, 11" % (sT, sT))
    a("s_add_u32 %s, %s, %d" % (sT, sT, B_RB))
    a("v_add_u32 v13, %s, v14" % sT)
    a("s_mul_i32 s58, %s, 14" % sTAU)
    a("s_add_u32 s58, s58, %s" % sU)
    a("s_lshl_b32 s59, s58, 7")
    a("s_add_u32 s59, s59, %d" % WS_ST)
    a("s_lshl_b32 s58, s58, 10")
    a("s_add_u32 s58, s58, %d" % WS_H)
    a("s_lshl_b32 s60, %s, 7" % sRB)
    a("s_add_u32 s60, s60, %d" % WS_FA)
    a("s_lshr_b32 s61, %s, 1" % sRB)
    a("s_lshl_b32 s61, s61, 7")
    a("s_and_b32 %s, %s, 1" % (sT, sRB))
    a("s_mul_i32 %s, %s, 28" % (sT, sT))
    a("s_add_u32 s61, s61, %s" % sT)
    a("s_lshl_b32 %s, %s, 2" % (sT, sCB))
    a("s_add_u32 s61, s61, %s" % sT)
    a("s_add_u32 s61, s61, %d" % WS_FB)
    a("v_lshlrev_b32 v11, 3, v3")
    a("s_waitcnt lgkmcnt(0)")
    stamp(a, "B pre-poll")
    poll(a, "s60", 0xff, 0)
    stamp(a, "B go")
    for hh in range(8):
        a("buffer_load_dwordx4 %s, v14, %s, %s offen offset:%d%s" % (vr(OF + 4 * hh), SWS, sT2 if hh < 4 else sT3, (hh & 3) * 1024, SC))
    a("s_barrier")
    for hh in range(8):
        if hh == 7 and "w0g1" not in OPT:
            g1_rest("lg")
        if hh < 7:
            wc_dma(a, G2[hh:hh + 1], "v16", "g2")
        for t in (2, 3, 0, 1):
            a(mfma(ACC + 4 * t, WOF + 16 * hh + 4 * t, OF + 4 * hh, "0" if (hh == 0 and t >= 2) else None))
    a("ds_write_b128 v12, %s" % vr(ACC + 8))
    a("ds_write_b128 v12, %s offset:1024" % vr(ACC + 12))
    a("s_waitcnt lgkmcnt(0)")
    a("s_barrier")
    a("ds_read_b128 %s, v13" % vr(ACC + 8))
    a("ds_read_b128 %s, v13 offset:1024" % vr(ACC + 12))
    a("v_mov_b32 v8, 0")
    a("v_mov_b32 v9, 0")
    a("v_mov_b32 v6, 0")
    a("v_mov_b32 v7, 0")
    a("v_mov_b32 v10, 0x3f803f80")
    for i in range(8):
        a("v_add_f32 v%d, v%d, v%d" % (ACC + i, ACC + i, ACC + 8 + i))
    HP = 24
    for i in range(4):
        a("v_cvt_pk_bf16_f32 v%d, v%d, v%d" % (HP + i, ACC + 2 * i, ACC + 2 * i + 1))
    a("v_permlane16_swap_b32 v%d, v%d" % (HP, HP + 2))
    a("v_permlane16_swap_b32 v%d, v%d" % (HP + 1, HP + 3))
    a("buffer_store_dwordx4 %s, v28, %s, s58 offen%s" % (vr(HP), SWS, SC))
    for i in range(4):
        a("v_dot2c_f32_bf16 v%d, v%d, v10" % (8 if i & 1 else 6, HP + i))
        a("v_dot2c_f32_bf16 v%d, v%d, v%d" % (9 if i & 1 else 7, HP + i, HP + i))
    a("v_add_f32 v8, v8, v6")
    a("v_add_f32 v9, v9, v7")
    xg_reduce_multi(a, "v_add_f32", ["v8", "v9"], ["v6", "v7"])
    a("s_mov_b64 exec, 0xffff")
    a("buffer_store_dwordx2 v[8:9], v11, %s, s59 offen%s" % (SWS, SC), tag="hst")
    a("s_mov_b64 exec, -1")
    stamp(a, "B h stored")


D_RDY = 163836
C_S0 = 116736
WDF = [224, 240, 64, 80, 96, 112, 128]


def emit_group(a, g):
    for (x, tg) in g:
        a(x, tag=tg)


def wd_dma_groups(u, base):
    gs = []
    for i4 in range(4):
        i = 4 * u + i4
        gs.append([("s_add_u32 m0, s63, %d" % (base + i4 * 1024), None),
                   ("s_mov_b32 s65, %d" % ((16 * (i >> 1) + 4 * (i & 1)) * 896), None),
                   ("buffer_load_dwordx4 v17, %s, s65 offen lds" % SWD, ("wd", u))])
    return gs


def wd_reads(u, base):
    out = []
    for t in range(4):
        for hf in range(2):
            out.append("ds_read_b64_tr_b16 %s, v%d offset:%d" % (vr(WDF[u] + 4 * t + 2 * hf, 2), 8 + t, base + hf * 1024))
    return out


def phase_C(a):
    a("; ---------------- B->C ----------------")
    wc_dma(a, G3[10:], "v16", "g3")
    early = G1 if "w0g1" in OPT else G1[10 - G1PRE:]
    late = [] if "w0g1" in OPT else G1[:10 - G1PRE]
    for x in wc_read(early, 17):
        a(x)
    a.wait_tag("hst", lg0=True)
    a("s_barrier")
    publish(a, "s61")
    stamp(a, "B flag")
    wc_dma(a, G3[10 - len(early):10], "v16", "g3")
    if late:
        for x in wc_read(late, 17):
            a(x)
        a("s_waitcnt lgkmcnt(0)")
        a("s_barrier")
        wc_dma(a, G3[:len(late)], "v16", "g3")
    for x in wc_read(G2, 17):
        a(x)
    ONES, CSG, CSU = 20, 24, 28
    for i in range(4):
        a("v_mov_b32 v%d, 0x3f803f80" % (ONES + i))
    for u in range(14):
        a(mfma(CSG, WGF + 4 * u, ONES, "0" if u == 0 else None))
    a("s_mul_i32 %s, %s, 114688" % (sT2, sRQ))
    a("s_add_u32 %s, %s, %d" % (sT2, sT2, WS_H))
    a("s_mul_i32 s62, %s, 3584" % sW)
    a("v_add_u32 v12, s62, v14")
    a("s_lshl_b32 %s, %s, 3" % (sT3, sRQ))
    a("s_add_u32 %s, %s, %s" % (sT3, sT3, sW))
    a("s_mul_i32 %s, %s, 1792" % (sT3, sT3))
    a("s_add_u32 %s, %s, %d" % (sT3, sT3, WS_ST))
    for i in range(4):
        a("v_mov_b32 v%d, 0" % (60 + i))
    a("v_and_b32 v8, 1, v2")
    a("v_mul_u32_u24 v8, 57344, v8")
    a("v_lshrrev_b32 v10, 1, v2")
    a("s_and_b32 %s, %s, 1" % (sT, sW))
    a("s_lshl_b32 %s, %s, 1" % (sT, sT))
    a("v_add_u32 v10, %s, v10" % sT)
    a("v_lshl_add_u32 v8, v10, 8, v8")
    a("v_lshl_add_u32 v13, v3, 4, v8")
    a("s_mul_i32 s58, %s, 448" % sRQ)
    a("s_lshl_b32 %s, %s, 2" % (sT, sFS))
    a("s_add_u32 s58, s58, %s" % sT)
    a("s_lshr_b32 %s, %s, 1" % (sT, sW))
    a("s_add_u32 s58, s58, %s" % sT)
    a("s_lshl_b32 s58, s58, 10")
    a("s_add_u32 s58, s58, %d" % WS_HH)
    a("s_mov_b32 s59, 0x%x" % f2u(-LOG2E))
    a("s_lshl_b32 s60, %s, 7" % sRQ)
    a("s_add_u32 s60, s60, %d" % WS_FB)
    a("s_lshl_b32 s61, %s, 8" % sRQ)
    a("s_lshl_b32 %s, %s, 2" % (sT, sFS))
    a("s_add_u32 s61, s61, %s" % sT)
    a("s_add_u32 s61, s61, %d" % WS_FC)
    a("s_lshl_b32 s63, %s, 12" % sW)
    a("s_lshr_b32 %s, %s, 1" % (sT, sRB))
    a("s_lshl_b32 s67, %s, 8" % sT)
    a("s_add_u32 s67, s67, %d" % WS_FC)
    a("s_lshl_b32 s70, %s, 7" % sT)
    a("s_lshl_b32 %s, %s, 3" % (sT, sT))
    a("s_and_b32 s64, %s, 1" % sRB)
    a("s_add_u32 %s, %s, s64" % (sT, sT))
    a("s_add_u32 s70, s70, s64")
    a("s_mul_i32 s70, s70, 896")
    a("s_lshl_b32 s64, %s, 7" % sCB)
    a("s_add_u32 s70, s70, s64")
    a("s_mul_i32 s68, %s, 56" % sT)
    a("s_mul_i32 s64, %s, 7" % sW)
    a("s_add_u32 s68, s68, s64")
    a("s_lshl_b32 s68, s68, 10")
    a("s_add_u32 s68, s68, %d" % WS_HH)
    a("s_and_b32 s64, %s, 6" % sW)
    a("s_add_u32 %s, %s, s64" % (sT, sT))
    a("s_mul_i32 s69, %s, 14" % sT)
    a("s_lshl_b32 s64, %s, 1" % sCB)
    a("s_add_u32 s69, s69, s64")
    a("s_and_b32 s64, %s, 1" % sW)
    a("s_add_u32 s69, s69, s64")
    a("s_lshl_b32 s69, s69, 10")
    a("s_add_u32 s69, s69, %d" % WS_H)
    a("v_and_b32 v6, 1, v2")
    a("v_lshl_add_u32 v6, v6, 2, v4")
    a("v_and_b32 v7, 6, v6")
    a("v_lshrrev_b32 v10, 1, v5")
    a("v_xor_b32 v7, v7, v10")
    a("v_lshrrev_b32 v10, 1, v2")
    a("v_lshl_add_u32 v6, v10, 4, v6")
    a("v_lshlrev_b32 v6, 7, v6")
    a("v_lshl_add_u32 v6, v7, 4, v6")
    a("v_and_b32 v7, 1, v5")
    a("v_lshl_add_u32 v6, v7, 3, v6")
    a("s_add_u32 %s, s63, 65536" % sT)
    a("v_add_u32 v8, %s, v6" % sT)
    for t in range(1, 4):
        a("v_xor_b32 v%d, %d, v8" % (8 + t, 32 * t))
    page(a)
    a("s_waitcnt lgkmcnt(0)")
    stamp(a, "C pre-poll")
    poll(a, "s60", 0x3fff, 0)
    stamp(a, "C go")

    def h_groups(tp):
        tg = ("h", tp)
        gs = []
        for i in range(4):
            g = []
            if i == 0:
                g.append(("s_add_u32 s64, %s, %d" % (sT2, tp * 28672), None))
            g.append(("s_add_u32 m0, s62, %d" % (tp * 28672), None))
            if i == 3:
                g.append(("s_mov_b32 exec_hi, 0", None))
            g.append(("buffer_load_dwordx4 v12, %s, s64 offen offset:%d%s lds" % (SWS, i * 1024, SC), tg))
            if i == 3:
                g.append(("s_mov_b64 exec, -1", None))
            gs.append(g)
        return gs

    a("buffer_load_dwordx4 v[56:59], v14, %s, %s offen%s" % (SWS, sT3, SC))
    a("s_mov_b32 exec_hi, 0xffff")
    a("buffer_load_dwordx4 v[60:63], v14, %s, %s offen offset:1024%s" % (SWS, sT3, SC))
    a("s_mov_b64 exec, -1")
    for g in h_groups(0):
        emit_group(a, g)
    a.wait_tag("g3")
    a("s_barrier")
    for x in wc_read(G3, 17):
        a(x)
    a("v_lshrrev_b32 v6, 3, v1")
    a("v_and_b32 v7, 7, v1")
    a("v_and_b32 v16, 6, v6")
    a("v_xor_b32 v7, v16, v7")
    a("v_and_b32 v16, 3, v6")
    a("v_lshrrev_b32 v6, 2, v6")
    a("v_lshl_add_u32 v16, v6, 3, v16")
    a("s_mul_i32 %s, %s, 224" % (sT, sW))
    a("v_add_u32 v16, %s, v16" % sT)
    a("v_mul_u32_u24 v16, 896, v16")
    a("v_lshl_add_u32 v16, v7, 4, v16")
    a("s_lshl_b32 %s, %s, 7" % (sT, sCB))
    a("v_add_u32 v17, %s, v16" % sT)
    a("v_add_u32 v16, 57344, v14")
    a("v_lshlrev_b32 v19, 4, v3")
    a("v_add_u32 v19, %d, v19" % C_ST)
    a("s_lshl_b32 %s, %s, 8" % (sT, sW))
    a("s_add_u32 %s, %s, %d" % (sT, sT, C_ST))
    a("v_and_b32 v18, 7, v1")
    a("v_lshl_add_u32 v18, v18, 5, %s" % sT)
    for u in range(14):
        a(mfma(CSU, WUF + 4 * u, ONES, "0" if u == 0 else None))
    st = []
    for i in range(4):
        st.append("v_add_f32 v%d, v%d, v%d" % (56 + i, 56 + i, 60 + i))
    for i in range(4):
        st.append("v_add_f32_dpp v%d, v%d, v%d row_ror:8 row_mask:0xf bank_mask:0xf" % (56 + i, 56 + i, 56 + i))
    for step in ("v_permlane32_swap_b32", "v_permlane16_swap_b32"):
        for i in range(4):
            st.append("v_mov_b32 v%d, v%d" % (60 + i, 56 + i))
        for i in range(4):
            st.append("%s v%d, v%d" % (step, 60 + i, 56 + i))
        for i in range(4):
            st.append("v_add_f32 v%d, v%d, v%d" % (56 + i, 56 + i, 60 + i))
    st.append("s_mov_b32 %s, 0x%x" % (sT, f2u(1.0 / 448)))
    st.append("v_mov_b32 v6, 0x%x" % f2u(1e-5))
    for tk in range(2):
        s1, s2, d = 56 + 2 * tk, 57 + 2 * tk, 32 + 4 * tk
        st.append("v_mul_f32 v%d, -%s, v%d" % (d, sT, s1))
        st.append("v_fma_f32 v%d, v%d, %s, v6" % (s2, s2, sT))
        st.append("v_fma_f32 v%d, -v%d, v%d, v%d" % (s2, d, d, s2))
        st.append("v_max_f32 v%d, v%d, v6" % (s2, s2))
        st.append("v_sqrt_f32 v%d, v%d" % (d + 2, s2))
        st.append("v_rsq_f32 v%d, v%d" % (s2, s2))
        st.append("v_mul_f32 v%d, s59, v%d" % (d + 1, s2))
    st.append("ds_write_b128 v18, v[32:35]")
    st.append("ds_write_b128 v18, v[36:39] offset:16")
    for x in st:
        a(x)
    st = []
    AF, NR = 192, 8
    ACCS = [40, 48]
    STS = [32, 36]
    PKD = [56, 60]

    def epi(i):
        g, u_, s, pk = ACCS[i & 1], ACCS[i & 1] + 4, STS[i & 1], PKD[(i >> 1) & 1]
        o = []
        o.append("ds_read_b128 %s, v19 offset:%d" % (vr(s), i * 256))
        o.append(None)
        o.append(None)
        for rr in range(4):
            o.append("v_fmac_f32 v%d, v%d, v%d" % (g + rr, s, CSG + rr))
        for rr in range(4):
            o.append("v_mul_f32 v%d, v%d, v%d" % (g + rr, s + 1, g + rr))
        for rr in range(4):
            o.append("v_exp_f32 v%d, v%d" % (g + rr, g + rr))
        for rr in range(4):
            o.append("v_fmac_f32 v%d, v%d, v%d" % (u_ + rr, s, CSU + rr))
        for rr in range(4):
            o.append("v_fma_f32 v%d, v%d, v%d, v%d" % (g + rr, g + rr, s + 2, s + 2))
        for rr in range(4):
            o.append("v_rcp_f32 v%d, v%d" % (g + rr, g + rr))
        for rr in range(4):
            o.append("v_mul_f32 v%d, v%d, v%d" % (g + rr, g + rr, u_ + rr))
        o.append("v_cvt_pk_bf16_f32 v%d, v%d, v%d" % (pk + 2 * (i & 1), g, g + 1))
        o.append("v_cvt_pk_bf16_f32 v%d, v%d, v%d" % (pk + 2 * (i & 1) + 1, g + 2, g + 3))
        if i & 1:
            o.append("v_permlane16_swap_b32 v%d, v%d" % (pk, pk + 2))
            o.append("v_permlane16_swap_b32 v%d, v%d" % (pk + 1, pk + 3))
            o.append(("buffer_store_dwordx4 %s, v13, %s, s58 offen%s" % (vr(pk), SWS, SC), ("hh", i >> 1)))
            o.append("s_add_u32 s58, s58, %d" % (2 * 57344))
        return o

    def emit(x):
        if x is None:
            return
        if isinstance(x, tuple):
            a(x[0], tag=x[1])
        else:
            a(x)

    def pub_stage(tp):
        publish(a, "s61")
        a("s_add_u32 s61, s61, 64")

    S0o = C_S0 - 65536
    side = {}
    prio = {}

    def at(k, f):
        side.setdefault(k, []).append(f)

    def spread(k0, stride, groups):
        for n, g in enumerate(groups):
            at(k0 + n * stride, (lambda g=g: emit_group(a, g)))

    def rd_job(k, u, base):
        def f():
            a.wait_tag(("wd", u))
            for x in wd_reads(u, base):
                a(x)
        at(k, f)

    spread(0, 1, h_groups(1))
    spread(5, 2, h_groups(2) + h_groups(3))
    spread(22, 1, wd_dma_groups(0, C_S0))
    rd_job(38, 0, S0o)
    spread(44, 1, wd_dma_groups(1, C_S0))
    spread(52, 2, wd_dma_groups(4, 0))
    rd_job(62, 1, S0o)
    spread(68, 1, wd_dma_groups(2, C_S0))
    spread(B3 + 2, 1 if B3 > 78 else 2, wd_dma_groups(5, 32768))
    rd_job(88, 2, S0o)
    spread(94, 2, wd_dma_groups(3, C_S0))
    at(102, lambda: lead_issue(a, "s67"))

    if "nowd" in OPT:
        for k in list(side):
            if k >= 18:
                del side[k]
    if "nowdrd" in OPT:
        for k in (38, 62, 88):
            del side[k]

    def bar(tags, lg0=False, pub=None):
        def f():
            for tg in tags:
                a.wait_tag(tg, lg0=lg0)
            a("s_barrier")
            if pub is not None:
                pub_stage(pub)
        return f

    barr = {22: bar([("h", 1)]), 50: bar([("h", 3), ("hh", 0)], pub=0), B3: bar([("hh", 1)], pub=1)}
    if "noprio" not in OPT:
        for (k0, k1) in ((0, 22), (22, 50), (50, B3), (B3, 112)):
            for lv in range(4):
                kk = k0 + (k1 - k0) * lv // 4
                prio[kk] = 3 - lv

    if "nostw" in OPT:
        barr = {14: bar([("h", 1)], lg0=True), 50: bar([("h", 3)], pub=0), 78: bar([], pub=1)}
    if "cst" in OPT:
        for kk in (14, 28, 42, 56, 70, 84, 98):
            at(kk - 1, (lambda kk=kk: stamp(a, "C k%d" % kk)))
    a.wait_tag(("h", 0), lg0=True)
    a("s_barrier")
    stamp(a, "C h0 landed")
    allrd = []
    for k in range(112):
        off = k * 1024
        allrd.append("ds_read_b128 %s, v%d offset:%d" % (vr(AF + 4 * (k % NR)), 14 if off < 57344 else 16, off % 57344))
    nxt = 0
    LA = NR - 2
    for i in range(8):
        acc = ACCS[i & 1]
        ep = epi(i - 1) if i else st
        for u in range(14):
            k = i * 14 + u
            if k in barr:
                barr[k]()
            if k in prio:
                a("s_setprio %d" % prio[k])
            while nxt < len(allrd) and nxt <= k + LA - 1:
                a(allrd[nxt])
                nxt += 1
            f = AF + 4 * (k % NR)
            z = "0" if u == 0 else None
            npop = NPOP
            start = 3 if i == 0 else 0
            if "m32" in OPT:
                ac = 224 + 16 * ((i >> 1) & 1)
                a("v_mfma_f32_32x32x16_bf16 %s, %s, %s, %s" % (vr(ac, 16), vr(WGF + 4 * (u + 14 * (i & 1))), vr(f), "0" if k % 28 == 0 else vr(ac, 16)))
            else:
                a(mfma(acc, WGF + 4 * u, f, z))
            if u >= start:
                for _ in range(npop // 2):
                    if ep:
                        emit(ep.pop(0))
            if "m32" not in OPT:
                a(mfma(acc + 4, WUF + 4 * u, f, z))
            if u >= start:
                for _ in range(npop - npop // 2):
                    if ep:
                        emit(ep.pop(0))
            for fn in side.get(k, []):
                fn()
        for x in ep:
            emit(x)
    stamp(a, "C mfma done")
    return epi, emit, pub_stage


def lead_issue(a, soff):
    L = a.label("liss")
    raw(a, "s_cmp_lg_u32 %s, 0" % sW)
    raw(a, "s_cbranch_scc1 %s" % L)
    raw(a, "v_lshlrev_b32 v6, 2, v1")
    raw(a, "buffer_load_dword v7, v6, %s, %s offen sc1" % (SWS, soff))
    raw(a, "%s:" % L)
    a.vm.append((set(), "lead"))
    a.lead_phantom = True


def lead_check(a, soff, mask_lo, mask_hi, level=None, vaddr=None):
    L, Lp, Lc, Ld = a.label("lskip"), a.label("lpoll"), a.label("lchk"), a.label("ldone")
    n = a._after(a.vm, lambda e: e[1] == "lead")
    a.vm = [e for e in a.vm if e[1] != "lead"]
    raw(a, "s_cmp_lg_u32 %s, 0" % sW)
    raw(a, "s_cbranch_scc1 %s" % L)
    raw(a, "s_mov_b32 s3, 400000")
    if n is not None:
        raw(a, "s_waitcnt vmcnt(%d)" % min(n, 63))
    raw(a, "s_branch %s" % Lc)
    raw(a, "%s:" % Lp)
    raw(a, "buffer_load_dword v7, v6, %s, %s offen sc1" % (SWS, soff))
    raw(a, "s_waitcnt vmcnt(0)")
    raw(a, "%s:" % Lc)
    raw(a, "v_cmp_ne_u32 vcc, %s, v7" % sNONCE)
    raw(a, "s_sub_u32 s3, s3, 1")
    raw(a, "s_cbranch_scc1 %s" % Ld)
    raw(a, "s_nop 0")
    raw(a, "s_and_b32 vcc_lo, vcc_lo, 0x%x" % mask_lo)
    raw(a, "s_and_b32 vcc_hi, vcc_hi, 0x%x" % mask_hi)
    raw(a, "s_cmp_lg_u64 vcc, 0")
    raw(a, "s_cbranch_scc1 %s" % Lp)
    raw(a, "%s:" % Ld)
    if level is not None:
        raw(a, "v_mov_b32 v7, %d" % level)
        raw(a, "ds_write_b32 %s, v7" % vaddr)
    raw(a, "%s:" % L)


def lds_wait(a, level):
    Lp, Ld = a.label("wl"), a.label("wd")
    raw(a, "s_mov_b32 s3, 2000000")
    raw(a, "%s:" % Lp)
    raw(a, "ds_read_b32 v31, v30")
    raw(a, "s_waitcnt lgkmcnt(0)")
    raw(a, "v_readfirstlane_b32 s66, v31")
    raw(a, "s_sub_u32 s3, s3, 1")
    raw(a, "s_cbranch_scc1 %s" % Ld)
    raw(a, "s_nop 0")
    raw(a, "s_cmp_lt_u32 s66, %d" % level)
    raw(a, "s_cbranch_scc1 %s" % Lp)
    raw(a, "%s:" % Ld)


D_HR = 98304


def phase_D(a, epi, emit, pub_stage):
    a("; ---------------- C->D ----------------")
    ep = epi(7)
    emit(ep.pop(0))
    a.wait_tag(("hh", 2), lg0=True)
    lead_check(a, "s67", 0x3fff3fff, 0)
    a("s_barrier")
    pub_stage(2)
    for x in ep:
        emit(x)
    stamp(a, "C last store")
    a("s_setprio 0")
    ACCS, AF, NR = [144, 160], 176, 12
    DLA = DLAV
    FT, FS, OUTR = 32, 48, 50

    def hh_load(k):
        rt, i = k // 7, k % 7
        a("buffer_load_dwordx4 %s, v%d, %s, s68 offen offset:%d%s" % (vr(AF + 4 * (k % NR)), 14 if i < 4 else 16, SWS, (i & 3) * 1024, "" if "hhplain" in OPT else SC))
        if i == 6:
            a("s_add_u32 s68, s68, %d" % (2 * 57344))

    a("v_add_u32 v16, 4096, v14")
    for k in range(DPRE):
        hh_load(k)
    a.wait_tag(("wd", 3))
    for x in wd_reads(3, C_S0 - 65536):
        a(x)
    for t in range(4):
        a("v_subrev_u32 v%d, 65536, v%d" % (8 + t, 8 + t))
    for x in wd_reads(4, 0) + wd_reads(5, 32768):
        a(x)
    for t in range(4):
        a("v_add_u32 v%d, 65536, v%d" % (8 + t, 8 + t))
    a("v_lshrrev_b32 v18, 5, v1")
    a("s_lshl_b32 %s, %s, 1" % (sT, sW))
    a("v_add_u32 v18, %s, v18" % sT)
    a("v_and_b32 v19, 31, v1")
    a("v_lshrrev_b32 v20, 2, v19")
    a("v_lshlrev_b32 v20, 8, v20")
    a("v_lshl_add_u32 v20, v18, 4, v20")
    a("v_lshl_add_u32 v20, v5, 2, v20")
    a("v_add_u32 v20, %d, v20" % D_HR)
    a("v_mul_u32_u24 v21, 1792, v18")
    a("v_lshl_add_u32 v21, v19, 2, v21")
    a("v_lshrrev_b32 v22, 1, v19")
    a("v_add_u32 v23, v22, v18")
    a("v_and_b32 v23, 15, v23")
    a("v_lshlrev_b32 v23, 4, v23")
    a("v_lshl_add_u32 v22, v22, 8, v23")
    a("v_and_b32 v23, 1, v19")
    a("v_lshl_add_u32 v22, v23, 3, v22")
    a("v_add_u32 v23, v2, v3")
    a("v_lshl_add_u32 v28, v2, 8, s63")
    for t in range(4):
        a("v_add_u32 v29, %d, v23" % (4 * t))
        a("v_and_b32 v29, 15, v29")
        a("v_lshl_add_u32 v%d, v29, 4, v28" % (24 + t))
    page(a)
    a.wait_tag(("hh", 3), lg0=True)
    a("s_barrier")
    pub_stage(3)
    stamp(a, "C flag")
    for k in range(DPRE, DLA):
        hh_load(k)
    a("s_add_u32 m0, %s, %d" % (sW1024, D_HR))
    a("buffer_load_dwordx4 v14, %s, s69 offen%s lds" % (SWS, SC), tag="hr")
    wd6 = wd_dma_groups(6, 65536)

    def writes(rt):
        return ["ds_write_b128 v%d, %s offset:%d" % (24 + t, vr(ACCS[rt & 1] + 4 * t), (rt & 1) * 32768 + t * 1024) for t in range(4)]

    def fin(rt):
        o = ["ds_read_b32 v%d, v20 offset:%d" % (FS + 1, rt * 2048)]
        for p in range(8):
            o.append("ds_read_b64 %s, v22 offset:%d" % (vr(FT + 2 * p, 2), (rt & 1) * 32768 + p * 4096))
        o.append("v_lshlrev_b32 v%d, 16, v%d" % (FS, FS + 1))
        o.append("v_and_b32 v%d, 0xffff0000, v%d" % (FS + 1, FS + 1))
        for (d, x) in ((0, 2), (4, 6), (8, 10), (12, 14), (0, 4), (8, 12), (0, 8)):
            o.append("v_add_f32 v%d, v%d, v%d" % (FT + d, FT + d, FT + x))
            o.append("v_add_f32 v%d, v%d, v%d" % (FT + d + 1, FT + d + 1, FT + x + 1))
        o.append("v_add_f32 v%d, v%d, v%d" % (FS, FS, FT))
        o.append("v_add_f32 v%d, v%d, v%d" % (FS + 1, FS + 1, FT + 1))
        o.append("v_cvt_pk_bf16_f32 v%d, v%d, v%d" % (OUTR + rt, FS, FS + 1))
        o.append("buffer_store_dword v%d, v21, %s, s70 offen%s" % (OUTR + rt, SOUT, OUTSC))
        o.append("s_add_u32 s70, s70, %d" % (32 * 896))
        return o

    nl = [DLA]
    BI = DBI
    wpos = {3: [(0, 3), (1, 1), (1, 3), (2, 1)], 4: [(0, 3), (1, 3), (2, 3), (3, 1)], 2: [(1, 0), (1, 1), (1, 2), (1, 3)]}[BI]
    fn = []
    for rt in range(4):
        wr = writes(rt - 1) if rt else []
        for i in range(7):
            k = rt * 7 + i
            if k < 2:
                emit_group(a, wd6[2 * k])
                emit_group(a, wd6[2 * k + 1])
            if k == 5:
                a.wait_tag(("wd", 6))
                for x in wd_reads(6, 0):
                    a(x)
            if k in (3 + BI, 10 + BI):
                lead_issue(a, "s67")
            if rt and i == BI:
                for x in fn:
                    a(x)
                if rt == 1:
                    lead_check(a, "s67", 0, 0x3fff)
                if rt == 2:
                    lead_check(a, "s67", 0, 0x3fff0000)
                a("s_waitcnt lgkmcnt(0)")
                if "dnobar" not in OPT:
                    a("s_barrier")
                fn = fin(rt - 1)
            lim = 14 if k < 7 + BI else (21 if k < 14 + BI else 28)
            n_iss = 0
            while nl[0] < min(lim, k + DLA + 1) and n_iss < 2:
                if "dnoload" not in OPT:
                    hh_load(nl[0])
                nl[0] += 1
                n_iss += 1
            for t in range(4):
                if not ("dnomfma" in OPT and t):
                    a(mfma(ACCS[rt & 1] + 4 * t, WDF[i] + 4 * t, AF + 4 * (k % NR), "0" if i == 0 else None))
                if "dnored" in OPT:
                    wr, fn = [], []
                if wr and (i, t) in wpos:
                    a(wr.pop(0))
                for _ in range(2):
                    if fn:
                        a(fn.pop(0))
    for x in fn:
        a(x)
    stamp(a, "D mfma done")
    for x in writes(3):
        a(x)
    a("s_waitcnt lgkmcnt(0)")
    a("s_barrier")
    for x in fin(3):
        a(x)
    stamp(a, "D out stored")


HEADER = open("cdna_kernels/%s.s.ref" % NAME).read().split("; Override launch")[0]


def build():
    n = NAME + "_kernel"
    out = HEADER
    out += "; @launch grid=(256,1,1) block=(512,1,1) lds=163840\n"
    out += '.amdgcn_target "amdgcn-amd-amdhsa--gfx950"\n.text\n'
    a = Asm()
    prologue(a)
    phase_A(a)
    phase_B(a)
    phase_D(a, *phase_C(a))
    a("Lfin:")
    stamp_flush(a)
    a("Lend:")
    a("s_endpgm")
    a("Lcode_end:")
    body = a.render()
    out += ".globl %s\n.p2align 8\n.type %s,@function\n%s:\nLcode_begin:\n%s" % (n, n, n, body)

    out += '.section .rodata,"a"\n.p2align 6\n'
    out += """.amdhsa_kernel %s
  .amdhsa_next_free_vgpr 256
  .amdhsa_next_free_sgpr 102
  .amdhsa_accum_offset 256
  .amdhsa_group_segment_fixed_size 0
  .amdhsa_kernarg_size 80
  .amdhsa_user_sgpr_count 2
  .amdhsa_user_sgpr_kernarg_segment_ptr 1
  .amdhsa_system_sgpr_workgroup_id_x 1
.end_amdhsa_kernel
""" % n
    return out


if __name__ == "__main__":
    dst = sys.argv[1] if len(sys.argv) > 1 else "cdna_kernels/%s.s" % NAME
    STAMPS = "stamps" in sys.argv
    OPT = set(sys.argv[2:])
    for o in sys.argv[2:]:
        if "=" in o:
            globals()[o.split("=")[0]] = int(o.split("=")[1])
    txt = build()
    import subprocess, re
    open("_sz.s", "w").write(txt.replace("CODE_BYTES", "0x12345"))
    subprocess.check_call(["clang", "-x", "assembler", "-target", "amdgcn-amd-amdhsa", "-mcpu=gfx950", "-c", "_sz.s", "-o", "_sz.o"])
    sym = subprocess.check_output(["llvm-objdump", "-t", "_sz.o"]).decode()
    end = int(re.search(r"([0-9a-f]+) .*Lcode_end", sym).group(1), 16)
    print("code bytes", end)
    open(dst, "w").write(txt.replace("CODE_BYTES", str((end - 64) & ~3)))
    print("wrote", dst)
```
